```python
import torch

def _softmax(x, axis=-1):
    return torch.softmax(x, dim=axis)

def _gelu(x):
    return torch.nn.functional.gelu(x, approximate='tanh')

def _silu(x):
    return torch.nn.functional.silu(x)

def _sigmoid(x):
    return torch.sigmoid(x)

def _layernorm(x, axis=-1, eps=1e-05):
    m = x.mean(dim=axis, keepdim=True)
    v = x.var(dim=axis, keepdim=True, unbiased=False)
    return (x - m) / torch.sqrt(v + eps)

def _scatter_add(tgt, idx, src, axis=0):
    return tgt.clone().index_add_(axis, idx, src)

def _segment_sum(src, seg, n):
    out = torch.zeros((n,) + src.shape[1:], dtype=src.dtype)
    return out.index_add_(0, seg, src)

def _pad(x, pw):
    flat = tuple((v for pair in reversed(pw) for v in pair))
    return torch.nn.functional.pad(x, flat)
kernel_name = 'adaLN_cond__sliding_block_cached__swiglu_ffn__decode'

def setup_inputs():

    _w = lambda a: (lambda t: t.to(torch.bfloat16) if t.is_floating_point() else t)(torch.as_tensor(a))

    def _A_setup():
        B, Sq, D = (4, 1, 512)
        Hq, Hkv, Sk, Dh = (32, 8, 4096, 128)
        assert Hq % Hkv == 0, (Hq, Hkv)
        return {'x': _w((lambda *s: torch.randn(*s, dtype=torch.bfloat16) * 0.05)(B, Sq, D)), 'k_cache': _w((lambda *s: torch.randn(*s, dtype=torch.bfloat16) * 3.2)(B, Hkv, Sk, Dh)), 'v_cache': _w((lambda *s: torch.randn(*s, dtype=torch.bfloat16) * 0.4)(B, Hkv, Sk, Dh)), 'wq': _w((lambda *s: torch.randn(*s, dtype=torch.bfloat16) * 3.2)(D, Hq * Dh) * D ** (-0.5)), 'wo': _w((lambda *s: torch.randn(*s, dtype=torch.bfloat16) * 0.4)(Hq * Dh, D) * (Hq * Dh) ** (-0.5))}
    _A_in = _A_setup()

    def _B_setup():
        B, S, D, F = (4, 1, 512, 1792)
        return {'x': _w((lambda *s: torch.randn(*s, dtype=torch.bfloat16) * 0.05)(B, S, D)), 'w_gate': _w((lambda *s: torch.randn(*s, dtype=torch.bfloat16) * 0.05)(D, F)), 'w_up': _w((lambda *s: torch.randn(*s, dtype=torch.bfloat16) * 0.05)(D, F)), 'w_down': _w((lambda *s: torch.randn(*s, dtype=torch.bfloat16) * 0.05)(F, D))}
    _B_in = _B_setup()
    return {'A_x': _A_in['x'], 'A_k_cache': _A_in['k_cache'], 'A_v_cache': _A_in['v_cache'], 'A_wq': _A_in['wq'], 'A_wo': _A_in['wo'], 'B_x': _B_in['x'], 'B_w_gate': _B_in['w_gate'], 'B_w_up': _B_in['w_up'], 'B_w_down': _B_in['w_down'], 'c': _w((lambda *s: torch.randn(*s, dtype=torch.bfloat16) * 0.1)(4, 512) * 8.0), 'w_mod': _w((lambda *s: torch.randn(*s, dtype=torch.bfloat16) * 0.1)(512, 6 * 512) * 512 ** (-0.5) * 8.0)}

def reference(A_x, A_k_cache, A_v_cache, A_wq, A_wo, B_x, B_w_gate, B_w_up, B_w_down, c, w_mod):

    def _A_ref(x, k_cache, v_cache, wq, wo):
        B, Sq, D = x.shape
        Hq, Dh = (32, 128)
        Hkv, Sk = (k_cache.shape[1], k_cache.shape[2])
        W = min(4096, max(256, Sk // 4))
        rep = Hq // Hkv
        q = (lambda x, *d: x.permute(*d))((x @ wq).reshape(B, Sq, Hq, Dh), 0, 2, 1, 3)
        k = (lambda x, n, axis: torch.repeat_interleave(x, n, dim=axis))(k_cache[:, :, Sk - W:, :], rep, axis=1)
        v = (lambda x, n, axis: torch.repeat_interleave(x, n, dim=axis))(v_cache[:, :, Sk - W:, :], rep, axis=1)
        scores = torch.einsum('bhqd,bhkd->bhqk', q, k) * Dh ** (-0.5)
        p = _softmax(scores, axis=-1)
        o = torch.einsum('bhqk,bhkd->bhqd', p, v)
        return (lambda x, *d: x.permute(*d))(o, 0, 2, 1, 3).reshape(B, Sq, Hq * Dh) @ wo

    def _B_ref(x, w_gate, w_up, w_down):
        g = _silu(x @ w_gate)
        u = x @ w_up
        return g * u @ w_down
    x = A_x
    mod = (_silu(c) @ w_mod).reshape(c.shape[0], 6, 1, -1)
    sa, ca, ga, sb, cb, gb = (mod[:, 0].clone(), mod[:, 1].clone(), mod[:, 2].clone(), mod[:, 3].clone(), mod[:, 4].clone(), mod[:, 5].clone())
    h = _layernorm(x, axis=-1) * (1 + ca) + sa
    x = x + ga * _A_ref(h, A_k_cache, A_v_cache, A_wq, A_wo)
    h = _layernorm(x, axis=-1) * (1 + cb) + sb
    x = x + gb * _B_ref(h, B_w_gate, B_w_up, B_w_down)
    return x
```

```python
import re

TRANS = ("v_exp_f32", "v_log_f32", "v_rcp_f32", "v_rsq_f32", "v_sqrt_f32", "v_sin_f32", "v_cos_f32")


def _regs(tok):
    tok = tok.strip()
    tok = tok.lstrip("-")
    m = re.match(r"^\|(.*)\|$", tok)
    if m:
        tok = m.group(1)
    m = re.match(r"^abs\((.*)\)$", tok)
    if m:
        tok = m.group(1)
    if tok == "vcc":
        return {("s", 106), ("s", 107)}
    if tok == "vcc_lo":
        return {("s", 106)}
    if tok == "vcc_hi":
        return {("s", 107)}
    if tok == "exec":
        return {("s", 126), ("s", 127)}
    if tok == "m0":
        return {("s", 124)}
    m = re.match(r"^([vs])(\d+)$", tok)
    if m:
        return {(m.group(1), int(m.group(2)))}
    m = re.match(r"^([vs])\[(\d+):(\d+)\]$", tok)
    if m:
        return {(m.group(1), i) for i in range(int(m.group(2)), int(m.group(3)) + 1)}
    return set()


def _split_ops(s):
    ops, depth, cur = [], 0, ""
    for ch in s:
        if ch in "[(":
            depth += 1
        if ch in "])":
            depth -= 1
        if ch == "," and depth == 0:
            ops.append(cur.strip())
            cur = ""
        else:
            cur += ch
    if cur.strip():
        ops.append(cur.strip())
    return ops


class Ins:
    def __init__(self, text):
        self.text = text
        code = text.split(";")[0].strip()
        self.is_label = code.endswith(":")
        self.is_dir = code.startswith(".") or code == ""
        self.op = ""
        self.dst = set()
        self.src = set()
        self.srcC = set()
        self.srcAB = set()
        self.dpp = False
        self.kind = "none"
        self.storedata = set()
        if self.is_label or self.is_dir:
            return
        parts = code.split(None, 1)
        self.op = parts[0]
        rest = parts[1] if len(parts) > 1 else ""
        ops = _split_ops(rest)
        toks = [o.split()[0] if o.split() else "" for o in ops]
        op = self.op
        self.dpp = "_dpp" in op or "row_" in rest or "quad_perm" in rest
        if op.startswith("v_mfma"):
            self.kind = "mfma"
            self.dst = _regs(toks[0])
            self.srcAB = _regs(toks[1]) | _regs(toks[2])
            self.srcC = _regs(toks[3])
            self.src = self.srcAB | self.srcC
        elif op.startswith("v_"):
            self.kind = "valu"
            if op.startswith("v_permlane") and "swap" in op:
                self.dst = _regs(toks[0]) | _regs(toks[1])
                self.src = set(self.dst)
            elif op.startswith(("v_add_co", "v_sub_co", "v_addc_co", "v_subb_co")):
                self.dst = _regs(toks[0]) | _regs(toks[1])
                for t in toks[2:]:
                    self.src |= _regs(t)
            else:
                self.dst = _regs(toks[0])
                for t in toks[1:]:
                    self.src |= _regs(t)
                if op.startswith(("v_fmac", "v_dot2c", "v_writelane")) or self.dpp or "sdwa" in op:
                    self.src |= self.dst
        elif op.startswith(("global_", "buffer_")):
            self.kind = "vmem"
            if "load" in op:
                self.dst = _regs(toks[0])
                for t in toks[1:]:
                    self.src |= _regs(t)
            else:
                for t in toks:
                    self.src |= _regs(t)
                if "dwordx4" in op or "dwordx3" in op:
                    self.storedata = _regs(toks[1]) if op.startswith("global_") else _regs(toks[0])
        elif op.startswith("ds_"):
            self.kind = "ds"
            if "read" in op or "permute" in op or "swizzle" in op:
                self.dst = _regs(toks[0])
                for t in toks[1:]:
                    self.src |= _regs(t)
            else:
                for t in toks:
                    self.src |= _regs(t)
        elif op.startswith(("s_load", "s_memtime", "s_memrealtime")):
            self.kind = "smem"
            self.dst = _regs(toks[0])
            for t in toks[1:]:
                self.src |= _regs(t)
        elif op.startswith("s_"):
            self.kind = "salu"
            if op.startswith(("s_cmp", "s_bitcmp", "s_cbranch", "s_branch", "s_waitcnt", "s_barrier", "s_nop",
                              "s_sleep", "s_setprio", "s_endpgm")):
                for t in toks:
                    self.src |= _regs(t)
            else:
                self.dst = _regs(toks[0])
                for t in toks[1:]:
                    self.src |= _regs(t)

    def states(self):
        if self.is_label or self.is_dir:
            return 0
        if self.op == "s_nop":
            return int(self.text.split(";")[0].split()[1], 0) + 1
        return 1


def vonly(s):
    return {r for r in s if r[0] == "v"}


def sonly(s):
    return {r for r in s if r[0] == "s"}


def required(p, c):
    need = 0
    if p.kind == "valu":
        pv, ps = vonly(p.dst), sonly(p.dst)
        isdot = p.op.startswith("v_dot")
        if c.kind == "valu":
            if c.dpp and pv & vonly(c.src):
                need = max(need, 2)
            if c.op.startswith("v_permlane") and pv & vonly(c.src):
                need = max(need, 2)
            if c.op.startswith(("v_readlane", "v_readfirstlane")) and pv & vonly(c.src):
                need = max(need, 1)
            if p.op.replace("_e32", "").replace("_e64", "") in TRANS and pv & vonly(c.src):
                need = max(need, 1)
            if "sdwa" in p.op and pv & (vonly(c.src) | vonly(c.dst)):
                need = max(need, 1)
            if ps & sonly(c.src):
                need = max(need, 4 if c.op.startswith(("v_readlane", "v_writelane")) else 2)
            if isdot and pv & (vonly(c.src) | vonly(c.dst)):
                same = c.op == p.op
                if same:
                    toks = [o.split()[0] for o in _split_ops(c.text.split(";")[0].strip().split(None, 1)[1])]
                    ab = _regs(toks[1]) | _regs(toks[2])
                    if pv & ab:
                        need = max(need, 3)
                else:
                    need = max(need, 3)
        if c.kind == "mfma" and pv & vonly(c.src):
            need = max(need, 3 if isdot else 2)
        if c.kind == "vmem" and ps & sonly(c.src):
            need = max(need, 5)
        if isdot and c.kind in ("vmem", "ds") and pv & vonly(c.src):
            need = max(need, 3)
    if p.kind == "mfma":
        d = p.dst
        if c.kind == "mfma":
            if d & c.srcAB:
                need = max(need, 8)
            if d & c.srcC and d != c.srcC:
                need = max(need, 6)
            if d & c.dst and not (d & c.srcC):
                need = max(need, 8)
        elif c.kind in ("valu", "vmem", "ds"):
            if d & (c.src | c.dst):
                need = max(need, 8)
        if c.kind == "valu" and p.srcC & c.dst:
            need = max(need, 3)
    if p.kind == "vmem" and p.storedata:
        if c.kind in ("valu", "mfma") and p.storedata & c.dst:
            need = max(need, 2)
        elif p.storedata & c.dst:
            need = max(need, 1)
    if p.kind == "salu" and ("s", 124) in p.dst and c.kind == "vmem" and "lds" in c.text:
        need = max(need, 1)
    return need


class Asm:
    def __init__(self):
        self.lines = []

    def __call__(self, s):
        for ln in s.split("\n"):
            ln = ln.strip()
            if ln:
                self.lines.append(ln)

    def label(self, name):
        self.lines.append(name + ":")

    def finish(self):
        out = []
        nins = 0
        for ln in self.lines:
            c = Ins(ln)
            if not (c.is_label or c.is_dir):
                dist = 0
                need = 0
                for p in reversed(out):
                    if dist >= 9:
                        break
                    if p.op in ("s_branch", "s_endpgm", "s_setpc_b64"):
                        break
                    r = required(p, c)
                    if r > dist:
                        need = max(need, r - dist)
                    dist += p.states()
                if need:
                    out.append(Ins(f"s_nop {need - 1}"))
                    nins += 1
            out.append(c)
        txt = []
        for i in out:
            txt.append(i.text if (i.is_label or i.is_dir) else "    " + i.text)
        return "\n".join(txt) + "\n"
```

```python
import sys
from asmlib import Asm

NAME = "adaLN_cond__sliding_block_cached__swiglu_ffn__decode"
OPT = dict(stamps=0, lds=81920, nt=1, limit=60000)
for arg in sys.argv[2:]:
    k, v = arg.split("=")
    OPT[k] = int(v, 0)
NT = " nt" if OPT["nt"] else ""

EPOCH = 0
H1 = 0x1000
H2 = 0x4000
CLR = 0x40000
MODB = CLR
H4 = MODB + 0x4000
ACT = H4 + 0x8000
X1 = ACT + 0x4000
H3ML = X1 + 0x1000
H3O = H3ML + 0x1000
CLR_END = H3O + 0x20000
CLR_PER_WAVE = 2
assert CLR_END - CLR <= 32 * 4 * CLR_PER_WAVE * 1024
STAMP = 0x100000

sX, sK, sV, sWQ, sWO, sWG, sWU = 4, 6, 8, 10, 12, 16, 18
sWD, sC, sWM, sOUT, sDBG, sWS = 20, 22, 24, 26, 28, 30
sG, sM, sWAVE, sTAG, sLO, sHI, sCNT, sT0 = 32, 33, 34, 35, 36, 37, 38, 39
sBA, sBB = 40, 42
sMK = 44
sT1, sT2, sT3, sT4 = 48, 49, 50, 51
sBC = 52
sSTAMP = 64

LOG2E = 0x3FB8AA3B
SCALE = 0x3DB504F3


def sp(r):
    return f"s[{r}:{r + 1}]"


def vr(a, n):
    return f"v[{a}:{a + n - 1}]" if n > 1 else f"v{a}"


a = Asm()
_uid = [0]


def uid(p):
    _uid[0] += 1
    return f"L_{p}{_uid[0]}"


def stamp(i):
    if OPT["stamps"]:
        a(f"s_memrealtime {sp(sSTAMP + 2 * i)}")


def finish_wave():
    if OPT["stamps"]:
        a("s_branch L_dump")
    else:
        a("s_endpgm")


def base(dst, ptr, off_s=None, off_imm=0):
    if off_s is not None:
        a(f"s_add_u32 s{dst}, s{ptr}, s{off_s}")
        a(f"s_addc_u32 s{dst + 1}, s{ptr + 1}, 0")
        if off_imm:
            a(f"s_add_u32 s{dst}, s{dst}, {off_imm}")
            a(f"s_addc_u32 s{dst + 1}, s{dst + 1}, 0")
    else:
        a(f"s_add_u32 s{dst}, s{ptr}, {off_imm}")
        a(f"s_addc_u32 s{dst + 1}, s{ptr + 1}, 0")


def set_exec(mask):
    if mask == -1:
        a("s_mov_b64 exec, -1")
    else:
        lo, hi = mask & 0xFFFFFFFF, mask >> 32
        a(f"s_mov_b32 exec_lo, {lo:#x}")
        a(f"s_mov_b32 exec_hi, {hi:#x}")


def perms8(W, F, waits=None):
    for x in range(4):
        if waits is not None:
            a(f"s_waitcnt vmcnt({waits[x]})")
        for e in range(8):
            sel = sHI if e & 1 else sLO
            a(f"v_perm_b32 v{F + 4 * e + x}, v{W + 4 * (2 * x + 1) + (e >> 1)}, v{W + 4 * (2 * x) + (e >> 1)}, s{sel}")


def unpack(dst, src, n):
    for i in range(n):
        a(f"v_lshlrev_b32 v{dst + 2 * i}, 16, v{src + i}")
        a(f"v_and_b32 v{dst + 2 * i + 1}, 0xffff0000, v{src + i}")


def round_bf16(regs, tmp):
    if len(regs) == 1:
        a(f"v_cvt_pk_bf16_f32 v{regs[0]}, v{regs[0]}, v{regs[0]}")
        a(f"v_lshlrev_b32 v{regs[0]}, 16, v{regs[0]}")
        return
    for i in range(0, len(regs), 2):
        a(f"v_cvt_pk_bf16_f32 v{regs[i + 1]}, v{regs[i]}, v{regs[i + 1]}")
    for i in range(0, len(regs), 2):
        a(f"v_lshlrev_b32 v{regs[i]}, 16, v{regs[i + 1]}")
        a(f"v_and_b32 v{regs[i + 1]}, 0xffff0000, v{regs[i + 1]}")


def poll_begin():
    lab = uid("poll")
    a(f"s_mov_b32 s{sCNT}, {OPT['limit']}")
    a.label(lab)
    return lab


def poll_mid():
    a(f"s_sub_u32 s{sCNT}, s{sCNT}, 1")
    a(f"s_cselect_b64 {sp(sMK)}, 0, -1")
    a("s_waitcnt vmcnt(0)")


def poll_end(lab):
    a(f"s_and_b64 vcc, vcc, {sp(sMK)}")
    a(f"s_cbranch_scc1 {lab}")


def check_sentinel(regs, tmp):
    regs = list(regs)
    if len(regs) == 1:
        a(f"v_cmp_eq_u32 vcc, -1, v{regs[0]}")
        return
    if len(regs) == 2:
        a(f"v_max_u32 v{tmp}, v{regs[0]}, v{regs[1]}")
    else:
        a(f"v_max3_u32 v{tmp}, v{regs[0]}, v{regs[1]}, v{regs[2]}")
        rest = regs[3:]
        while len(rest) >= 2:
            a(f"v_max3_u32 v{tmp}, v{tmp}, v{rest[0]}, v{rest[1]}")
            rest = rest[2:]
        if rest:
            a(f"v_max_u32 v{tmp}, v{tmp}, v{rest[0]}")
    a(f"v_cmp_eq_u32 vcc, -1, v{tmp}")


def check_tags(L0, L1, tmp):
    a(f"v_xor_b32 v{tmp}, s{sTAG}, v{L0 + 1}")
    a(f"v_xor_b32 v{tmp + 1}, s{sTAG}, v{L0 + 3}")
    a(f"v_xor_b32 v{tmp + 2}, s{sTAG}, v{L1 + 1}")
    a(f"v_xor_b32 v{tmp + 3}, s{sTAG}, v{L1 + 3}")
    a(f"v_or3_b32 v{tmp}, v{tmp}, v{tmp + 1}, v{tmp + 2}")
    a(f"v_or_b32 v{tmp}, v{tmp}, v{tmp + 3}")
    a(f"v_cmp_ne_u32 vcc, 0, v{tmp}")


def make_tag(vE):
    a(f"v_readfirstlane_b32 s{sTAG}, v{vE}")
    a("s_nop 1")
    a(f"s_mul_i32 s{sTAG}, s{sTAG}, 1664525")
    a(f"s_add_u32 s{sTAG}, s{sTAG}, 1013904223")


DPPM = "row_mask:0xf bank_mask:0xf"


def row_allsum(v):
    for n in (8, 4, 2, 1):
        a(f"v_add_f32_dpp v{v}, v{v}, v{v} row_ror:{n} {DPPM}")


def cross_rows(op, v, tmp):
    a(f"v_mov_b32 v{tmp}, v{v}")
    a(f"v_permlane16_swap_b32 v{tmp}, v{v}")
    a(f"{op} v{v}, v{v}, v{tmp}")
    a(f"v_mov_b32 v{tmp}, v{v}")
    a(f"v_permlane32_swap_b32 v{tmp}, v{v}")
    a(f"{op} v{v}, v{v}, v{tmp}")


a(f"{NAME}_kernel:")
stamp(0)
a("s_cmp_ge_u32 s2, 256")
a("s_cbranch_scc1 L_exit")
a("s_load_dwordx16 s[4:19], s[0:1], 0")
a("s_load_dwordx8 s[20:27], s[0:1], 64")
a("s_load_dwordx4 s[28:31], s[0:1], 96")
a("v_lshrrev_b32 v1, 6, v0")
a("v_and_b32 v0, 63, v0")
a(f"v_readfirstlane_b32 s{sWAVE}, v1")
a(f"s_and_b32 s{sG}, s2, 7")
a(f"s_lshr_b32 s{sM}, s2, 3")
a(f"s_mov_b32 s{sLO}, 0x05040100")
a(f"s_mov_b32 s{sHI}, 0x07060302")
a("v_lshrrev_b32 v1, 2, v0        ; l>>2")
a("v_and_b32 v2, 3, v0            ; l&3")
a("v_lshrrev_b32 v3, 4, v0        ; l>>4")
a("v_mov_b32 v4, 0")
a(f"s_cmp_ge_u32 s{sM}, 16")
a("s_cbranch_scc1 L_A")
a(f"s_cmp_ge_u32 s{sWAVE}, 4")
a("s_cbranch_scc1 L_GQ")

W, F, ACC, T = 16, 48, 16, 48
a(f"s_cmp_ge_u32 s{sM}, 12")
a("s_cbranch_scc1 L_GM_skip")
a(f"s_lshl_b32 s{sT0}, s{sG}, 2")
a(f"s_add_u32 s{sT0}, s{sT0}, s{sM}")
a(f"s_lshl_b32 s{sT0}, s{sT0}, 5")
a(f"s_lshl_b32 s{sT1}, s{sG}, 3")
a(f"s_add_u32 s{sT1}, s{sT1}, s{sM}")
a(f"s_lshl_b32 s{sT1}, s{sT1}, 6")
a(f"s_add_u32 s{sT1}, s{sT1}, {2048 - 256}")
a(f"s_cmp_lt_u32 s{sM}, 4")
a(f"s_cselect_b32 s{sT0}, s{sT0}, s{sT1}")
a(f"s_cselect_b32 s{sT2}, 1024, 32")
a(f"s_mul_i32 s{sT1}, s{sWAVE}, {128 * 6144}")
a(f"s_add_u32 s{sT0}, s{sT0}, s{sT1}")
a(f"s_lshl_b32 s{sT1}, s{sWAVE}, 8")
a("v_and_b32 v5, 3, v1")
a("v_lshlrev_b32 v5, 10, v5")
a("v_lshl_add_u32 v5, v3, 6, v5")
a("v_lshl_add_u32 v5, v2, 4, v5")
a("v_mul_u32_u24 v6, 49152, v1")
a("v_and_b32 v7, 1, v2")
a("v_lshl_add_u32 v6, v7, 4, v6")
a("v_lshrrev_b32 v7, 1, v2")
a(f"v_mad_u32_u24 v6, v7, s{sT2}, v6")
a(f"s_movk_i32 s{sT3}, 6144")
a("s_waitcnt lgkmcnt(0)")
base(sBA, sC, sT1)
base(sBB, sWM, sT0)
a(f"global_load_dwordx4 v[8:11], v5, {sp(sBA)}")
for j in range(8):
    a(f"global_load_dwordx4 {vr(W + 4 * j, 4)}, v6, {sp(sBB)}{NT}")
    if j < 7:
        a(f"v_add_u32 v6, s{sT3}, v6")
stamp(1)
a("s_waitcnt vmcnt(8)")
unpack(80, 8, 4)
for i in range(8):
    a(f"v_mul_f32 v{88 + i}, {0x80000000 | LOG2E:#x}, v{80 + i}")
for i in range(8):
    a(f"v_exp_f32 v{88 + i}, v{88 + i}")
for i in range(8):
    a(f"v_add_f32 v{88 + i}, 1.0, v{88 + i}")
for i in range(8):
    a(f"v_rcp_f32 v{88 + i}, v{88 + i}")
for i in range(8):
    a(f"v_mul_f32 v{80 + i}, v{80 + i}, v{88 + i}")
for i in range(4):
    a(f"v_cvt_pk_bf16_f32 v{8 + i}, v{80 + 2 * i}, v{81 + 2 * i}")
a(f"s_lshl_b32 s{sT0}, s{sWAVE}, 9")
a("v_lshlrev_b32 v5, 7, v3")
a("v_lshl_add_u32 v5, v2, 5, v5")
a(f"v_add_u32 v5, s{sT0}, v5")
perms8(W, F, waits=[6, 4, 2, 0])
stamp(2)


def mfma_diagX(Afrag, F, ACC, T):
    for e in range(8):
        a(f"v_mfma_f32_16x16x32_bf16 {vr(ACC + 4 * e, 4)}, {vr(Afrag, 4)}, {vr(F + 4 * e, 4)}, 0")
    for e in range(8):
        a(f"v_add_f32_dpp v{T + e}, v{ACC + 4 * e + 1}, v{ACC + 4 * e} row_shl:4 {DPPM}")
    for e in range(8):
        a(f"v_add_f32_dpp v{T + e}, v{ACC + 4 * e + 2}, v{T + e} row_shl:8 {DPPM}")
    for e in range(8):
        a(f"v_add_f32_dpp v{T + e}, v{ACC + 4 * e + 3}, v{T + e} row_shl:12 {DPPM}")


mfma_diagX(8, F, ACC, T)
set_exec(0x000F000F000F000F)
a(f"ds_write_b128 v5, {vr(T, 4)}")
a(f"ds_write_b128 v5, {vr(T + 4, 4)} offset:16")
set_exec(-1)
a.label("L_GM_skip")
a("s_waitcnt lgkmcnt(0)")
a("s_barrier                      ; #1")
stamp(3)
a(f"s_cmp_lg_u32 s{sWAVE}, 0")
a("s_cbranch_scc1 L_G_bar2")
a("v_lshlrev_b32 v5, 3, v0")
a("ds_read2st64_b64 v[16:19], v5 offset0:0 offset1:1")
a("ds_read2st64_b64 v[20:23], v5 offset0:2 offset1:3")
a("s_waitcnt lgkmcnt(0)")
a("v_pk_add_f32 v[16:17], v[16:17], v[18:19]")
a("v_pk_add_f32 v[20:21], v[20:21], v[22:23]")
a("v_pk_add_f32 v[16:17], v[16:17], v[20:21]")
a("v_cvt_pk_bf16_f32 v12, v16, v17")
a("s_barrier                      ; #2")
a(f"s_sub_u32 s{sT0}, s{sM}, 4")
a(f"s_cmp_ge_u32 s{sT0}, 8")
a("s_cbranch_scc1 L_WO")
a(f"s_lshl_b32 s{sT1}, s{sG}, 3")
a(f"s_add_u32 s{sT0}, s{sT0}, s{sT1}")
a(f"s_lshl_b32 s{sT0}, s{sT0}, 8")
base(sBA, sWS, sT0, MODB)
a("v_lshlrev_b32 v5, 2, v0")
a(f"global_store_dword v5, v12, {sp(sBA)} sc1")
a("s_branch L_WO")
a.label("L_G_bar2")
a("s_barrier                      ; #2")
a("s_branch L_WO")

a.label("L_GQ")
a(f"s_sub_u32 s{sT4}, s{sWAVE}, 4            ; i'")
a(f"s_lshl_b32 s{sT0}, s{sT4}, 20           ; i'*128*8192")
a(f"s_lshl_b32 s{sT1}, s{sG}, 10")
a(f"s_add_u32 s{sT0}, s{sT0}, s{sT1}")
a(f"s_lshl_b32 s{sT1}, s{sM}, 6")
a(f"s_add_u32 s{sT0}, s{sT0}, s{sT1}")
a("v_lshlrev_b32 v6, 16, v1")
a("v_lshl_add_u32 v6, v2, 4, v6")
a(f"s_movk_i32 s{sT3}, 8192")
a("s_waitcnt lgkmcnt(0)")
base(sBB, sWQ, sT0)
a(f"global_load_dword v12, v4, {sp(sWS)} sc1      ; epoch")
a(f"s_cmp_ge_u32 s{sM}, 4")
a("s_cbranch_scc1 L_GQ_ld")
a("v_and_b32 v7, 15, v0")
a("v_lshlrev_b32 v5, 10, v3")
a("v_lshl_add_u32 v8, v7, 4, v5")
for t in range(4):
    a(f"global_load_dwordx4 {vr(80 + 4 * t, 4)}, v8, {sp(sX)} offset:{256 * t}")
a(f"s_lshl_b32 s{sT0}, s{sG}, 2")
a(f"s_add_u32 s{sT0}, s{sT0}, s{sM}          ; p")
a(f"s_lshl_b32 s{sT1}, s{sT0}, 5")
a("v_lshl_add_u32 v8, v7, 1, v5")
a(f"v_add_u32 v8, s{sT1}, v8")
a(f"global_load_ushort v13, v8, {sp(sX)}")
a(f"s_lshl_b32 s{sT0}, s{sT0}, 2")
a(f"s_add_u32 s{sT0}, s{sT0}, s{sT4}")
a(f"s_mul_i32 s{sT0}, s{sT0}, {CLR_PER_WAVE * 1024}")
base(sBA, sWS, sT0, CLR)
a("v_lshlrev_b32 v5, 4, v0")
for i in range(4):
    a(f"v_mov_b32 v{8 + i}, -1")
for i in range(CLR_PER_WAVE):
    a(f"global_store_dwordx4 v5, v[8:11], {sp(sBA)} offset:{1024 * i} sc1")
a.label("L_GQ_ld")
for j in range(8):
    a(f"global_load_dwordx4 {vr(W + 4 * j, 4)}, v6, {sp(sBB)}{NT}")
    if j < 7:
        a(f"v_add_u32 v6, s{sT3}, v6")
stamp(1)
a("s_waitcnt vmcnt(8)")
make_tag(12)
a(f"s_cmp_ge_u32 s{sM}, 4")
a("s_cbranch_scc1 L_GQ_bar1")
a(f"s_cmp_lg_u32 s{sWAVE}, 4")
a("s_cbranch_scc1 L_GQ_bar1")
unpack(96, 80, 16)
a("v_pk_add_f32 v[8:9], v[96:97], v[98:99]")
for i in range(2, 16):
    a(f"v_pk_add_f32 v[8:9], v[8:9], v[{96 + 2 * i}:{97 + 2 * i}]")
a("v_add_f32 v8, v8, v9")
row_allsum(8)
a(f"v_mul_f32 v8, {0x3B000000:#x}, v8       ; mean")
a("v_mov_b32 v10, 0")
for i in range(32):
    a(f"v_sub_f32 v{96 + i}, v{96 + i}, v8")
for i in range(32):
    a(f"v_fmac_f32 v10, v{96 + i}, v{96 + i}")
row_allsum(10)
a(f"v_mul_f32 v9, {0x3B000000:#x}, v10      ; var")
round_bf16([8, 9], 0)
a(f"v_add_f32 v9, {0x3727C5AC:#x}, v9       ; + 1e-5")
round_bf16([9], 0)
a("v_sqrt_f32 v9, v9")
round_bf16([9], 0)
a("v_rcp_f32 v9, v9")
a("v_lshlrev_b32 v13, 16, v13")
a("v_sub_f32 v13, v13, v8")
round_bf16([13], 0)
a("v_mul_f32 v13, v13, v9")
round_bf16([13], 0)
a("v_and_b32 v7, 15, v0")
a("v_lshlrev_b32 v5, 7, v3")
a("v_lshl_add_u32 v5, v7, 2, v5")
a("v_lshlrev_b32 v14, 6, v3              ; b*64")
a("v_and_b32 v8, 8, v7")
a("v_lshl_add_u32 v14, v8, 2, v14        ; c'lo*32")
a("v_and_b32 v8, 2, v7")
a("v_lshl_add_u32 v14, v8, 3, v14        ; (d&1)*16")
a("v_and_b32 v8, 4, v7")
a("v_lshl_add_u32 v14, v8, 1, v14        ; (d>>1)*8")
a(f"s_lshl_b32 s{sT0}, s{sG}, 2")
a(f"s_add_u32 s{sT0}, s{sT0}, s{sM}")
a(f"s_lshl_b32 s{sT0}, s{sT0}, 8")
base(sBA, sWS, sT0, H1)
a(f"v_mov_b32 v9, s{sTAG}")
a("s_barrier                      ; #1")
a("ds_read2st64_b32 v[80:81], v5 offset0:0 offset1:2")
a("ds_read2st64_b32 v[82:83], v5 offset0:4 offset1:6")
a("v_add_u32 v5, 64, v5")
a("ds_read2st64_b32 v[84:85], v5 offset0:0 offset1:2")
a("ds_read2st64_b32 v[86:87], v5 offset0:4 offset1:6")
a("s_waitcnt lgkmcnt(0)")
a("v_pk_add_f32 v[80:81], v[80:81], v[82:83]")
a("v_pk_add_f32 v[84:85], v[84:85], v[86:87]")
a("v_add_f32 v80, v80, v81               ; sa")
a("v_add_f32 v81, v84, v85               ; ca")
round_bf16([80, 81], 0)
a("v_add_f32 v81, 1.0, v81")
round_bf16([81], 0)
a("v_mul_f32 v81, v13, v81")
round_bf16([81], 0)
a("v_add_f32 v80, v81, v80")
a(f"v_mov_b32_dpp v81, v80 quad_perm:[1,1,3,3] {DPPM}")
a("v_cvt_pk_bf16_f32 v8, v80, v81")
set_exec(0x5555555555555555)
a(f"global_store_dwordx2 v14, v[8:9], {sp(sBA)} sc1")
set_exec(-1)
stamp(3)
a("s_branch L_GQ_go")
a.label("L_GQ_bar1")
a("s_barrier                      ; #1")
a.label("L_GQ_go")
a("s_waitcnt vmcnt(0)")
perms8(W, F)
stamp(4)
a(f"s_lshl_b32 s{sT0}, s{sT4}, 11")
base(sBA, sWS, sT0, H1)
a("v_lshlrev_b32 v5, 5, v0")
a("v_lshlrev_b32 v6, 8, v3")
a("v_lshl_add_u32 v6, v2, 5, v6")
a(f"s_lshl_b32 s{sT0}, s{sT4}, 10")
a(f"s_add_u32 s{sT0}, s{sT0}, 2048")
a(f"v_add_u32 v6, s{sT0}, v6")
lab = poll_begin()
a(f"global_load_dwordx4 v[8:11], v5, {sp(sBA)} sc1")
a(f"global_load_dwordx4 v[12:15], v5, {sp(sBA)} offset:16 sc1")
poll_mid()
check_tags(8, 12, 80)
poll_end(lab)
stamp(5)
a("v_mov_b32 v9, v12")
a("v_mov_b32 v11, v14")
for e in range(8):
    a(f"v_mfma_f32_16x16x32_bf16 {vr(ACC + 4 * e, 4)}, v[8:11], {vr(F + 4 * e, 4)}, 0")
for b0 in range(2):
    for e in range(8):
        a(f"v_add_f32_dpp v{80 + 8 * b0 + e}, v{ACC + 4 * e + 2 * b0 + 1}, v{ACC + 4 * e + 2 * b0} row_shl:4 {DPPM}")
set_exec(0x0F000F00000F000F)
a("ds_write_b128 v6, v[80:83]")
a("ds_write_b128 v6, v[84:87] offset:16")
a("ds_write_b128 v6, v[88:91] offset:128")
a("ds_write_b128 v6, v[92:95] offset:144")
set_exec(-1)
a("s_waitcnt lgkmcnt(0)")
a("s_barrier                      ; #2")
a(f"s_cmp_lg_u32 s{sWAVE}, 4")
a("s_cbranch_scc1 L_WO")
a("v_lshlrev_b32 v5, 3, v0")
for t in range(4):
    a(f"ds_read2st64_b64 {vr(16 + 4 * t, 4)}, v5 offset0:{4 + 2 * t} offset1:{5 + 2 * t}")
a(f"s_lshl_b32 s{sT0}, s{sG}, 13")
a(f"s_lshl_b32 s{sT1}, s{sM}, 7")
a(f"s_add_u32 s{sT0}, s{sT0}, s{sT1}")
base(sBA, sWS, sT0, H2)
a("v_lshlrev_b32 v6, 11, v3")
a("v_and_b32 v7, 12, v0")
a("v_lshl_add_u32 v6, v7, 3, v6")
a("v_and_b32 v7, 1, v0")
a("v_lshl_add_u32 v6, v7, 4, v6")
a("v_and_b32 v7, 2, v0")
a("v_lshl_add_u32 v6, v7, 2, v6")
a(f"v_mov_b32 v9, s{sTAG}")
a("s_waitcnt lgkmcnt(0)")
for t in range(4):
    a(f"v_pk_add_f32 v[{16 + 4 * t}:{17 + 4 * t}], v[{16 + 4 * t}:{17 + 4 * t}], v[{18 + 4 * t}:{19 + 4 * t}]")
a("v_pk_add_f32 v[16:17], v[16:17], v[20:21]")
a("v_pk_add_f32 v[24:25], v[24:25], v[28:29]")
a("v_pk_add_f32 v[16:17], v[16:17], v[24:25]")
a("v_cvt_pk_bf16_f32 v8, v16, v17")
a(f"global_store_dwordx2 v6, v[8:9], {sp(sBA)} sc1")
stamp(6)

a.label("L_WO")
a(f"s_lshl_b32 s{sT0}, s{sG}, 19")
a(f"s_lshl_b32 s{sT1}, s{sWAVE}, 16")
a(f"s_add_u32 s{sT0}, s{sT0}, s{sT1}")
a(f"s_lshl_b32 s{sT1}, s{sM}, 6")
a(f"s_add_u32 s{sT0}, s{sT0}, s{sT1}")
base(sBB, sWO, sT0, 4096)
a("v_and_b32 v7, 15, v0")
a("v_lshlrev_b32 v6, 13, v3")
a("v_lshl_add_u32 v6, v7, 2, v6")
a("v_add_u32 v5, 0x8000, v6")
for ks in range(2):
    for j in range(8):
        a(f"global_load_dword v{16 + 8 * ks + j}, v{5 if ks else 6}, {sp(sBB)} offset:{1024 * j - 4096}{NT}")
a(f"s_lshl_b32 s{sT0}, s{sG}, 14")
a(f"s_lshl_b32 s{sT1}, s{sWAVE}, 11")
a(f"s_add_u32 s{sT0}, s{sT0}, s{sT1}")
base(sBA, sWS, sT0, H3O)
a(f"s_lshl_b32 s{sT0}, s{sG}, 9")
a(f"s_lshr_b32 s{sT1}, s{sWAVE}, 1")
a(f"s_lshl_b32 s{sT1}, s{sT1}, 7")
a(f"s_add_u32 s{sT0}, s{sT0}, s{sT1}")
base(sBC, sWS, sT0, H3ML)
a("v_lshlrev_b32 v5, 4, v0")
a("v_lshlrev_b32 v6, 5, v3")
a(f"s_lshl_b32 s{sT0}, s{sWAVE}, 9")
a(f"s_add_u32 s{sT0}, s{sT0}, 6144")
a(f"v_lshl_add_u32 v7, v0, 3, s{sT0}")
a("s_waitcnt vmcnt(0)")
stamp(7)
for ks in range(2):
    for eo in range(2):
        for x in range(4):
            a(f"v_perm_b32 v{32 + 8 * ks + 4 * eo + x}, v{16 + 8 * ks + 2 * x + 1}, v{16 + 8 * ks + 2 * x}, s{sHI if eo else sLO}")
lab = poll_begin()
a(f"global_load_dwordx4 v[48:51], v5, {sp(sBA)} sc1")
a(f"global_load_dwordx4 v[52:55], v5, {sp(sBA)} offset:1024 sc1")
a(f"global_load_dwordx4 v[56:59], v6, {sp(sBC)} sc1")
a(f"global_load_dwordx4 v[60:63], v6, {sp(sBC)} offset:16 sc1")
poll_mid()
check_sentinel(range(48, 64), 8)
poll_end(lab)
stamp(8)
a("v_mfma_f32_16x16x32_bf16 v[16:19], v[48:51], v[32:35], 0")
a("v_mfma_f32_16x16x32_bf16 v[20:23], v[48:51], v[36:39], 0")
a("v_mfma_f32_16x16x32_bf16 v[16:19], v[52:55], v[40:43], v[16:19]")
a("v_mfma_f32_16x16x32_bf16 v[20:23], v[52:55], v[44:47], v[20:23]")
a("v_max3_f32 v8, v56, v58, v60")
a("v_max_f32 v8, v8, v62")
for s in range(4):
    a(f"v_sub_f32 v{56 + 2 * s}, v{56 + 2 * s}, v8")
for s in range(4):
    a(f"v_exp_f32 v{56 + 2 * s}, v{56 + 2 * s}")
a("v_mul_f32 v9, v56, v57")
for s in range(1, 4):
    a(f"v_fmac_f32 v9, v{56 + 2 * s}, v{57 + 2 * s}")
a("v_rcp_f32 v9, v9")
a("v_mul_f32 v10, v16, v56")
a("v_mul_f32 v11, v20, v56")
for s in range(1, 4):
    a(f"v_fmac_f32 v10, v{16 + s}, v{56 + 2 * s}")
    a(f"v_fmac_f32 v11, v{20 + s}, v{56 + 2 * s}")
a("v_mul_f32 v10, v10, v9")
a("v_mul_f32 v11, v11, v9")
a("ds_write_b64 v7, v[10:11]")
a("s_waitcnt lgkmcnt(0)")
a("s_barrier                      ; #3")
a(f"s_cmp_lg_u32 s{sWAVE}, 7")
a("s_cbranch_scc1 L_DOWN")
a("v_lshlrev_b32 v5, 3, v0")
for t in range(4):
    a(f"ds_read2st64_b64 {vr(16 + 4 * t, 4)}, v5 offset0:{12 + 2 * t} offset1:{13 + 2 * t}")
a(f"s_lshl_b32 s{sT0}, s{sG}, 4")
a(f"s_add_u32 s{sT0}, s{sT0}, s{sM}")
a(f"s_lshl_b32 s{sT0}, s{sT0}, 8")
base(sBA, sWS, sT0, H4)
a("v_lshlrev_b32 v6, 2, v0")
a("s_waitcnt lgkmcnt(0)")
for t in range(4):
    a(f"v_pk_add_f32 v[{16 + 4 * t}:{17 + 4 * t}], v[{16 + 4 * t}:{17 + 4 * t}], v[{18 + 4 * t}:{19 + 4 * t}]")
a("v_pk_add_f32 v[16:17], v[16:17], v[20:21]")
a("v_pk_add_f32 v[24:25], v[24:25], v[28:29]")
a("v_pk_add_f32 v[16:17], v[16:17], v[24:25]")
a("v_cvt_pk_bf16_f32 v8, v16, v17")
a(f"global_store_dword v6, v8, {sp(sBA)} sc1")
stamp(9)
a(f"s_cmp_lt_u32 s{sM}, 12")
a("s_cbranch_scc1 L_fin")
a(f"s_sub_u32 s{sT1}, s{sM}, 12")
a(f"s_lshl_b32 s{sT0}, s{sG}, 2")
a(f"s_add_u32 s{sT2}, s{sT0}, s{sT1}          ; col0/16")
a(f"s_lshr_b32 s{sT0}, s{sT2}, 1")
a(f"s_lshl_b32 s{sT0}, s{sT0}, 8")
a(f"s_and_b32 s{sT1}, s{sT2}, 1")
a(f"s_lshl_b32 s{sT1}, s{sT1}, 5")
a(f"s_add_u32 s{sT0}, s{sT0}, s{sT1}")
base(sBA, sWS, sT0, X1)
base(sBB, sWS, sT0, MODB + 3 * 4096)
a("v_and_b32 v7, 14, v0")
a("v_lshlrev_b32 v5, 6, v3")
a("v_lshl_add_u32 v5, v7, 1, v5")
lab = poll_begin()
a(f"global_load_dword v8, v5, {sp(sBA)} sc1")
a(f"global_load_dword v9, v5, {sp(sBB)} sc1")
poll_mid()
check_sentinel([8, 9], 10)
poll_end(lab)
a("v_and_b32 v7, 1, v0")
a("v_lshlrev_b32 v7, 4, v7")
a("v_lshrrev_b32 v8, v7, v8")
a("v_lshrrev_b32 v9, v7, v9")
a("v_lshlrev_b32 v8, 16, v8              ; x1")
a("v_lshlrev_b32 v9, 16, v9              ; gb")
a(f"s_lshl_b32 s{sT0}, s{sT2}, 5")
base(sBA, sOUT, sT0)
a("v_and_b32 v7, 15, v0")
a("v_lshlrev_b32 v6, 10, v3")
a("v_lshl_add_u32 v6, v7, 1, v6")
a("v_lshlrev_b32 v5, 2, v0")
a("s_barrier                      ; #4")
for t in range(7):
    a(f"ds_read2st64_b32 v[{16 + 2 * t}:{17 + 2 * t}], v5 offset0:{40 + 2 * t} offset1:{41 + 2 * t}")
a("s_waitcnt lgkmcnt(0)")
a("v_pk_add_f32 v[16:17], v[16:17], v[18:19]")
a("v_pk_add_f32 v[20:21], v[20:21], v[22:23]")
a("v_pk_add_f32 v[24:25], v[24:25], v[26:27]")
a("v_pk_add_f32 v[16:17], v[16:17], v[28:29]")
a("v_pk_add_f32 v[20:21], v[20:21], v[24:25]")
a("v_pk_add_f32 v[16:17], v[16:17], v[20:21]")
a("v_add_f32 v16, v16, v17")
round_bf16([16], 0)
a("v_mul_f32 v16, v9, v16")
round_bf16([16], 0)
a("v_add_f32 v16, v8, v16")
a("v_cvt_pk_bf16_f32 v16, v16, v16")
a(f"global_store_short v6, v16, {sp(sBA)}")
stamp(12)
a("s_cmp_lg_u32 s2, 96")
a("s_cbranch_scc1 L_fin")
a(f"v_mov_b32 v8, s{sTAG}")
set_exec(1)
a(f"global_store_dword v4, v8, {sp(sWS)} sc1")
set_exec(-1)
a("s_branch L_fin")

a.label("L_DOWN")
a(f"s_cmp_lt_u32 s{sM}, 12")
a("s_cbranch_scc1 L_fin")
a(f"s_sub_u32 s{sT1}, s{sM}, 12")
a(f"s_lshl_b32 s{sT0}, s{sG}, 2")
a(f"s_add_u32 s{sT0}, s{sT0}, s{sT1}")
a(f"s_lshl_b32 s{sT0}, s{sT0}, 5")
a(f"s_lshl_b32 s{sT1}, s{sWAVE}, 18")
a(f"s_add_u32 s{sT0}, s{sT0}, s{sT1}")
base(sBB, sWD, sT0, 4096)
a("v_lshlrev_b32 v6, 13, v1")
a("v_lshl_add_u32 v6, v2, 3, v6")
a("v_add_u32 v5, 0x20000, v6")
for f in range(2):
    for j in range(8):
        a(f"global_load_dwordx2 {vr(16 + 16 * f + 2 * j, 2)}, v{5 if f else 6}, {sp(sBB)} offset:{1024 * j - 4096}{NT}")
a(f"s_lshl_b32 s{sT0}, s{sWAVE}, 11")
base(sBA, sWS, sT0, ACT)
a("v_lshlrev_b32 v5, 4, v0")
a("v_lshlrev_b32 v6, 7, v3")
a("v_lshl_add_u32 v6, v2, 4, v6")
a(f"s_lshl_b32 s{sT0}, s{sWAVE}, 9")
a(f"s_add_u32 s{sT0}, s{sT0}, 10240")
a(f"v_add_u32 v6, s{sT0}, v6")
a("s_waitcnt vmcnt(0)")
for f in range(2):
    for e in range(4):
        for x in range(4):
            a(f"v_perm_b32 v{48 + 16 * f + 4 * e + x}, v{16 + 16 * f + 2 * (2 * x + 1) + (e >> 1)}, "
              f"v{16 + 16 * f + 2 * (2 * x) + (e >> 1)}, s{sHI if e & 1 else sLO}")
stamp(10)
lab = poll_begin()
a(f"global_load_dwordx4 v[8:11], v5, {sp(sBA)} sc1")
a(f"global_load_dwordx4 v[12:15], v5, {sp(sBA)} offset:1024 sc1")
poll_mid()
check_sentinel(range(8, 16), 7)
poll_end(lab)
stamp(11)
for e in range(4):
    a(f"v_mfma_f32_16x16x32_bf16 {vr(16 + 4 * e, 4)}, v[8:11], {vr(48 + 4 * e, 4)}, 0")
for e in range(4):
    a(f"v_mfma_f32_16x16x32_bf16 {vr(16 + 4 * e, 4)}, v[12:15], {vr(64 + 4 * e, 4)}, {vr(16 + 4 * e, 4)}")
for e in range(4):
    for b0 in range(2):
        a(f"v_add_f32_dpp v{32 + 4 * b0 + e}, v{16 + 4 * e + 2 * b0 + 1}, v{16 + 4 * e + 2 * b0} row_shl:4 {DPPM}")
set_exec(0x0F000F00000F000F)
a("ds_write_b128 v6, v[32:35]")
a("ds_write_b128 v6, v[36:39] offset:64")
set_exec(-1)
a("s_waitcnt lgkmcnt(0)")
a("s_barrier                      ; #4")
a.label("L_fin")
finish_wave()

KR, VR, SA, VT, OA = 16, 48, 80, 16, 80
a.label("L_A")
a(f"s_sub_u32 s{sM}, s{sM}, 16               ; a = 4b + s")
a(f"s_lshr_b32 s{sT1}, s{sM}, 2              ; b")
a(f"s_lshl_b32 s{sT0}, s{sT1}, 3")
a(f"s_add_u32 s{sT0}, s{sT0}, s{sG}")
a(f"s_lshl_b32 s{sT0}, s{sT0}, 20")
a(f"s_and_b32 s{sT2}, s{sM}, 3")
a(f"s_lshl_b32 s{sT2}, s{sT2}, 16")
a(f"s_add_u32 s{sT0}, s{sT0}, s{sT2}")
a(f"s_lshl_b32 s{sT2}, s{sWAVE}, 13")
a(f"s_add_u32 s{sT0}, s{sT0}, s{sT2}")
a(f"s_add_u32 s{sT0}, s{sT0}, {3072 * 256 + 4096}")
a("v_and_b32 v5, 3, v1")
a("v_lshlrev_b32 v6, 8, v5")
a("v_lshl_add_u32 v6, v3, 6, v6")
a("v_lshl_add_u32 v6, v2, 4, v6")
a("v_lshlrev_b32 v7, 4, v0")
a("s_waitcnt lgkmcnt(0)")
base(sBA, sK, sT0)
base(sBB, sV, sT0)
a(f"global_load_dword v12, v4, {sp(sWS)} sc1      ; epoch")
for u in range(8):
    a(f"global_load_dwordx4 {vr(KR + 4 * u, 4)}, v6, {sp(sBA)} offset:{1024 * u - 4096}{NT}")
for u in range(8):
    a(f"global_load_dwordx4 {vr(VR + 4 * u, 4)}, v7, {sp(sBB)} offset:{1024 * u - 4096}{NT}")
stamp(1)
a(f"s_lshl_b32 s{sT0}, s{sG}, 13")
a(f"s_lshl_b32 s{sT1}, s{sT1}, 11")
a(f"s_add_u32 s{sT0}, s{sT0}, s{sT1}")
base(sBA, sWS, sT0, H2)
a("v_lshlrev_b32 v6, 9, v5")
a("v_lshl_add_u32 v6, v3, 7, v6")
a("v_lshl_add_u32 v6, v2, 5, v6")
a(f"s_mul_i32 s{sT0}, s{sWAVE}, 2304")
a("v_mul_u32_u24 v7, 576, v5")
a("v_mul_u32_u24 v13, 144, v3")
a(f"v_add3_u32 v7, v7, v13, s{sT0}")
a(f"s_lshl_b32 s{sT0}, s{sWAVE}, 3")
a(f"s_add_u32 s{sT0}, s{sT0}, 18432")
a(f"v_lshl_add_u32 v5, v5, 6, s{sT0}")
a("s_waitcnt vmcnt(8)")
make_tag(12)
stamp(2)
lab = poll_begin()
a(f"global_load_dwordx4 v[8:11], v6, {sp(sBA)} sc1")
a(f"global_load_dwordx4 v[12:15], v6, {sp(sBA)} offset:16 sc1")
poll_mid()
check_tags(8, 12, 112)
poll_end(lab)
stamp(3)
a("v_mov_b32 v9, v12")
a("v_mov_b32 v11, v14")
for u in range(8):
    a(f"v_mfma_f32_16x16x32_bf16 {vr(SA + 4 * u, 4)}, {vr(KR + 4 * u, 4)}, v[8:11], 0")
S = 112
for u in range(8):
    a(f"v_add_f32_dpp v{S + u}, v{SA + 4 * u + 1}, v{SA + 4 * u} row_shl:1 {DPPM}")
for u in range(8):
    a(f"v_add_f32_dpp v{S + u}, v{SA + 4 * u + 2}, v{S + u} row_shl:2 {DPPM}")
for u in range(8):
    a(f"v_add_f32_dpp v{S + u}, v{SA + 4 * u + 3}, v{S + u} row_shl:3 {DPPM}")
round_bf16(list(range(S, S + 8)), 0)
for u in range(8):
    a(f"v_mul_f32 v{S + u}, {SCALE:#x}, v{S + u}")
round_bf16(list(range(S, S + 8)), 0)
a(f"v_max3_f32 v12, v{S}, v{S + 1}, v{S + 2}")
a(f"v_max3_f32 v13, v{S + 3}, v{S + 4}, v{S + 5}")
a(f"v_max3_f32 v12, v12, v{S + 6}, v{S + 7}")
a("v_max_f32 v12, v12, v13")
cross_rows("v_max_f32", 12, 13)
a(f"v_mul_f32 v12, {LOG2E:#x}, v12")
a(f"s_mov_b32 s{sT0}, {LOG2E:#x}")
for u in range(8):
    a(f"v_fma_f32 v{S + u}, v{S + u}, s{sT0}, -v12")
for u in range(8):
    a(f"v_exp_f32 v{S + u}, v{S + u}")
for x in range(4):
    a(f"v_cvt_pk_bf16_f32 v{8 + x}, v{S + 2 * x}, v{S + 2 * x + 1}")
perms8(VR, VT)
for e in range(8):
    a(f"v_mfma_f32_16x16x32_bf16 {vr(OA + 4 * e, 4)}, {vr(VT + 4 * e, 4)}, v[8:11], 0")
a(f"v_pk_add_f32 v[{S}:{S + 1}], v[{S}:{S + 1}], v[{S + 2}:{S + 3}]")
a(f"v_pk_add_f32 v[{S + 4}:{S + 5}], v[{S + 4}:{S + 5}], v[{S + 6}:{S + 7}]")
a(f"v_pk_add_f32 v[{S}:{S + 1}], v[{S}:{S + 1}], v[{S + 4}:{S + 5}]")
a(f"v_add_f32 v13, v{S}, v{S + 1}")
cross_rows("v_add_f32", 13, 14)
set_exec(0x1111111111111111)
a("ds_write_b64 v5, v[12:13]")
for e in range(8):
    a(f"ds_write_b128 v7, {vr(OA + 4 * e, 4)} offset:{16 * e}")
set_exec(-1)
a("s_waitcnt lgkmcnt(0)")
stamp(4)
a("s_barrier                      ; #1")
a(f"s_cmp_ge_u32 s{sWAVE}, 4")
a("s_cbranch_scc1 L_AW")
a(f"s_mul_i32 s{sT0}, s{sWAVE}, 576")
a("v_mul_u32_u24 v5, 144, v3")
a("v_lshl_add_u32 v5, v2, 5, v5")
a("v_and_b32 v6, 3, v1")
a("v_lshl_add_u32 v5, v6, 2, v5")
a(f"v_add_u32 v5, s{sT0}, v5")
a(f"s_lshl_b32 s{sT0}, s{sWAVE}, 6")
a(f"s_add_u32 s{sT0}, s{sT0}, 18432")
a(f"v_mov_b32 v6, s{sT0}")
for t in range(4):
    a(f"ds_read_b128 {vr(16 + 4 * t, 4)}, v6 offset:{16 * t}")
for i in range(8):
    a(f"ds_read_b32 v{32 + 2 * i}, v5 offset:{2304 * i}")
    a(f"ds_read_b32 v{33 + 2 * i}, v5 offset:{2304 * i + 16}")
a(f"s_lshl_b32 s{sT0}, s{sG}, 14")
a(f"s_lshl_b32 s{sT1}, s{sWAVE}, 12")
a(f"s_add_u32 s{sT0}, s{sT0}, s{sT1}")
a(f"s_lshl_b32 s{sT1}, s{sM}, 4")
a(f"s_add_u32 s{sT0}, s{sT0}, s{sT1}")
base(sBA, sWS, sT0, H3O)
a(f"s_lshl_b32 s{sT0}, s{sG}, 9")
a(f"s_lshl_b32 s{sT1}, s{sWAVE}, 7")
a(f"s_add_u32 s{sT0}, s{sT0}, s{sT1}")
a(f"s_lshl_b32 s{sT1}, s{sM}, 3")
a(f"s_add_u32 s{sT0}, s{sT0}, s{sT1}")
base(sBB, sWS, sT0, H3ML)
a("v_lshlrev_b32 v7, 8, v1")
a("v_lshl_add_u32 v7, v2, 2, v7")
a("s_waitcnt lgkmcnt(0)")
a("v_max3_f32 v8, v16, v18, v20")
a("v_max3_f32 v9, v22, v24, v26")
a("v_max3_f32 v8, v8, v28, v30")
a("v_max_f32 v8, v8, v9")
for i in range(8):
    a(f"v_sub_f32 v{16 + 2 * i}, v{16 + 2 * i}, v8")
for i in range(8):
    a(f"v_exp_f32 v{16 + 2 * i}, v{16 + 2 * i}")
a("v_mul_f32 v10, v16, v32")
a("v_mul_f32 v11, v16, v33")
a("v_mul_f32 v9, v16, v17")
for i in range(1, 8):
    a(f"v_fmac_f32 v10, v{16 + 2 * i}, v{32 + 2 * i}")
    a(f"v_fmac_f32 v11, v{16 + 2 * i}, v{33 + 2 * i}")
    a(f"v_fmac_f32 v9, v{16 + 2 * i}, v{17 + 2 * i}")
a("v_cvt_pk_bf16_f32 v10, v10, v11")
a(f"global_store_dword v7, v10, {sp(sBA)} sc1")
set_exec(1)
a(f"global_store_dwordx2 v4, v[8:9], {sp(sBB)} sc1")
set_exec(-1)
stamp(5)
a(f"s_cmp_ge_u32 s{sM}, 14")
a("s_cbranch_scc1 L_fin2")
a(f"s_lshl_b32 s{sT0}, s{sWAVE}, 10")
base(sBB, sX, sT0)
a(f"s_lshl_b32 s{sT0}, s{sWAVE}, 6")
base(sBA, sWS, sT0, MODB + 4096)
a("v_lshlrev_b32 v6, 4, v0")
a("v_lshlrev_b32 v5, 8, v1")
a("v_lshl_add_u32 v5, v2, 4, v5          ; (l>>2)*256 + (l&3)*16")
a(f"global_load_dwordx4 v[16:19], v6, {sp(sBB)}")
a("v_add_u32 v6, 0x1000, v5")
lab = poll_begin()
a(f"global_load_dwordx4 v[20:23], v5, {sp(sBA)} offset:-4096 sc1")
a(f"global_load_dwordx4 v[24:27], v5, {sp(sBA)} sc1")
a(f"global_load_dwordx4 v[28:31], v6, {sp(sBA)} sc1")
poll_mid()
check_sentinel(range(20, 32), 8)
poll_end(lab)
XV, GA, SB, CB = 64, 72, 80, 88
unpack(XV, 16, 4)
unpack(GA, 20, 4)
unpack(SB, 24, 4)
unpack(CB, 28, 4)
for i in range(8):
    a(f"v_add_f32 v{CB + i}, 1.0, v{CB + i}")
round_bf16(list(range(CB, CB + 8)), 0)
base(sBA, sWS, sT0, H4 + 4096)
base(sBB, sWS, sT0, X1)
a("v_add_u32 v6, 0x2000, v5")
a("v_add_u32 v7, 0x4000, v5")
a("v_add_u32 v8, 0x6000, v5")
a(f"s_add_u32 s{sT0}, s{sT0}, 18688")
a(f"v_add_u32 v9, s{sT0}, v5")
a(f"s_mov_b32 s{sT1}, 0x00003f80")
a(f"s_mov_b32 s{sT2}, 0x3f800000")
stamp(6)
lab = poll_begin()
for gg in range(8):
    a(f"global_load_dwordx4 {vr(16 + 4 * gg, 4)}, v{5 + (gg >> 1)}, {sp(sBA)} offset:{-4096 if gg % 2 == 0 else 0} sc1")
poll_mid()
check_sentinel(range(16, 48), 10)
poll_end(lab)
stamp(7)
AT = 48
unpack(AT, 16, 4)
for gg in range(1, 8):
    for d in range(4):
        a(f"v_dot2_f32_bf16 v{AT + 2 * d}, v{16 + 4 * gg + d}, s{sT1}, v{AT + 2 * d}")
        a(f"v_dot2_f32_bf16 v{AT + 2 * d + 1}, v{16 + 4 * gg + d}, s{sT2}, v{AT + 2 * d + 1}")
R8 = list(range(AT, AT + 8))
round_bf16(R8, 0)
for i in range(8):
    a(f"v_mul_f32 v{AT + i}, v{GA + i}, v{AT + i}")
round_bf16(R8, 0)
for i in range(8):
    a(f"v_add_f32 v{AT + i}, v{XV + i}, v{AT + i}")
for i in range(4):
    a(f"v_cvt_pk_bf16_f32 v{16 + i}, v{AT + 2 * i}, v{AT + 2 * i + 1}")
unpack(AT, 16, 4)
a(f"v_pk_add_f32 v[10:11], v[{AT}:{AT + 1}], v[{AT + 2}:{AT + 3}]")
a(f"v_pk_add_f32 v[12:13], v[{AT + 4}:{AT + 5}], v[{AT + 6}:{AT + 7}]")
a("v_pk_add_f32 v[10:11], v[10:11], v[12:13]")
a("v_add_f32 v10, v10, v11")
row_allsum(10)
cross_rows("v_add_f32", 10, 11)
a(f"v_mul_f32 v10, {0x3B000000:#x}, v10     ; mean")
for i in range(8):
    a(f"v_sub_f32 v{56 + i}, v{AT + i}, v10")
a("v_mul_f32 v11, v56, v56")
for i in range(1, 8):
    a(f"v_fmac_f32 v11, v{56 + i}, v{56 + i}")
row_allsum(11)
cross_rows("v_add_f32", 11, 12)
a(f"v_mul_f32 v11, {0x3B000000:#x}, v11     ; var")
round_bf16([10, 11], 0)
a(f"v_add_f32 v11, {0x3727C5AC:#x}, v11")
round_bf16([11], 0)
a("v_sqrt_f32 v11, v11")
round_bf16([11], 0)
a("v_rcp_f32 v11, v11")
for i in range(8):
    a(f"v_sub_f32 v{AT + i}, v{AT + i}, v10")
round_bf16(R8, 0)
for i in range(8):
    a(f"v_mul_f32 v{AT + i}, v{AT + i}, v11")
round_bf16(R8, 0)
for i in range(8):
    a(f"v_mul_f32 v{AT + i}, v{AT + i}, v{CB + i}")
round_bf16(R8, 0)
for i in range(8):
    a(f"v_add_f32 v{AT + i}, v{AT + i}, v{SB + i}")
for i in range(4):
    a(f"v_cvt_pk_bf16_f32 v{20 + i}, v{AT + 2 * i}, v{AT + 2 * i + 1}")
a("ds_write_b128 v9, v[20:23]")
a("s_waitcnt lgkmcnt(0)")
stamp(8)
a("s_barrier                      ; #2")
a(f"s_cmp_lg_u32 s2, {(16 + 13) * 8}")
a("s_cbranch_scc1 L_A_nox1")
a(f"global_store_dwordx4 v5, v[16:19], {sp(sBB)} sc1")
a.label("L_A_nox1")
a(f"s_cmp_lg_u32 s{sWAVE}, 0")
a("s_cbranch_scc1 L_fin2")
a("v_bfe_u32 v5, v0, 3, 2")
a("v_lshlrev_b32 v5, 7, v5")
a("v_and_b32 v6, 7, v0")
a("v_lshl_add_u32 v5, v6, 3, v5")
a("v_lshrrev_b32 v6, 5, v0")
a("v_lshl_add_u32 v5, v6, 2, v5")
a("v_add_u32 v5, 22784, v5")
a("v_add_u32 v6, 64, v5")
a(f"s_mul_i32 s{sT0}, s{sG}, 14")
a(f"s_add_u32 s{sT0}, s{sT0}, s{sM}")
a(f"s_lshl_b32 s{sT0}, s{sT0}, 7")
base(sBA, sWS, sT0, ACT)
a("v_lshlrev_b32 v7, 2, v0")
a("s_barrier                      ; #3")
a("ds_read2st64_b32 v[16:17], v5 offset0:0 offset1:2")
a("ds_read2st64_b32 v[18:19], v5 offset0:4 offset1:6")
a("ds_read2st64_b32 v[20:21], v6 offset0:0 offset1:2")
a("ds_read2st64_b32 v[22:23], v6 offset0:4 offset1:6")
a("s_waitcnt lgkmcnt(0)")
a("v_pk_add_f32 v[16:17], v[16:17], v[18:19]")
a("v_pk_add_f32 v[20:21], v[20:21], v[22:23]")
a("v_add_f32 v16, v16, v17               ; gate")
a("v_add_f32 v17, v20, v21               ; up")
round_bf16([16, 17], 0)
a(f"v_mul_f32 v18, {0x80000000 | LOG2E:#x}, v16")
a("v_exp_f32 v18, v18")
a("v_add_f32 v18, 1.0, v18")
a("v_rcp_f32 v18, v18")
a("v_mul_f32 v16, v16, v18")
round_bf16([16], 0)
a("v_mul_f32 v16, v16, v17")
a("v_mov_b32 v17, v16")
a("v_permlane32_swap_b32 v16, v17")
a("v_cvt_pk_bf16_f32 v16, v16, v17")
set_exec(0xFFFFFFFF)
a(f"global_store_dword v7, v16, {sp(sBA)} sc1")
set_exec(-1)
stamp(10)
a.label("L_fin2")
finish_wave()

a.label("L_AW")
a(f"s_cmp_ge_u32 s{sM}, 14")
a("s_cbranch_scc1 L_fin2")
a(f"s_sub_u32 s{sT4}, s{sWAVE}, 4")
a(f"s_mul_i32 s{sT0}, s{sG}, 14")
a(f"s_add_u32 s{sT0}, s{sT0}, s{sM}")
a(f"s_lshl_b32 s{sT0}, s{sT0}, 5")
a(f"s_mul_i32 s{sT1}, s{sT4}, {128 * 3584}")
a(f"s_add_u32 s{sT0}, s{sT0}, s{sT1}")
a(f"s_add_u32 s{sT0}, s{sT0}, 3584")
a("v_mul_u32_u24 v6, 28672, v1")
a("v_and_b32 v7, 1, v2")
a("v_lshl_add_u32 v6, v7, 4, v6")
a(f"v_add_u32 v6, s{sT0}, v6")
a("v_mov_b32 v7, 0")
a("v_cmp_lt_u32 vcc, 1, v2")
a(f"v_mov_b32 v8, s{sWG}")
a(f"v_mov_b32 v9, s{sWG + 1}")
a(f"v_mov_b32 v10, s{sWU}")
a(f"v_mov_b32 v11, s{sWU + 1}")
a("v_cndmask_b32 v8, v8, v10, vcc")
a("v_cndmask_b32 v9, v9, v11, vcc")
a("v_lshl_add_u64 v[8:9], v[6:7], 0, v[8:9]")
a(f"v_mov_b32 v6, {3 * 3584}")
a("v_lshl_add_u64 v[10:11], v[6:7], 0, v[8:9]")
a("v_lshl_add_u64 v[12:13], v[6:7], 0, v[10:11]")
for j in range(8):
    r = 8 + 2 * (j // 3)
    a(f"global_load_dwordx4 {vr(W + 4 * j, 4)}, v[{r}:{r + 1}], off offset:{3584 * (j % 3) - 3584}{NT}")
a(f"s_lshl_b32 s{sT0}, s{sT4}, 10")
a(f"s_add_u32 s{sT0}, s{sT0}, 18688")
a(f"v_lshl_add_u32 v6, v0, 4, s{sT0}")
a(f"s_lshl_b32 s{sT0}, s{sT4}, 9")
a(f"s_add_u32 s{sT0}, s{sT0}, 22784")
a("v_lshlrev_b32 v5, 7, v3")
a("v_lshl_add_u32 v5, v2, 5, v5")
a(f"v_add_u32 v5, s{sT0}, v5")
perms8(W, F, waits=[6, 4, 2, 0])
stamp(6)
a("s_barrier                      ; #2")
a("ds_read_b128 v[8:11], v6")
a("s_waitcnt lgkmcnt(0)")
mfma_diagX(8, F, ACC, 80)
set_exec(0x000F000F000F000F)
a("ds_write_b128 v5, v[80:83]")
a("ds_write_b128 v5, v[84:87] offset:16")
set_exec(-1)
a("s_waitcnt lgkmcnt(0)")
stamp(9)
a("s_barrier                      ; #3")
finish_wave()

if OPT["stamps"]:
    a.label("L_dump")
    stamp(15)
    a("s_mov_b64 exec, -1")
    a("s_waitcnt vmcnt(0) lgkmcnt(0)")
    a(f"s_getreg_b32 s{sSTAMP + 28}, hwreg(HW_REG_XCC_ID)")
    a(f"s_getreg_b32 s{sSTAMP + 26}, hwreg(HW_REG_HW_ID)")
    for i in range(16):
        a(f"v_mov_b32 v{16 + i}, s{sSTAMP + 2 * i}")
    a(f"s_lshl_b32 s{sT0}, s2, 3")
    a(f"s_add_u32 s{sT0}, s{sT0}, s{sWAVE}")
    a(f"s_lshl_b32 s{sT0}, s{sT0}, 6")
    base(sBA, sWS, sT0, STAMP)
    a("v_mov_b32 v4, 0")
    set_exec(1)
    for i in range(4):
        a(f"global_store_dwordx4 v4, {vr(16 + 4 * i, 4)}, {sp(sBA)} offset:{16 * i}")
a.label("L_exit")
a("s_endpgm")

body = a.finish()
if OPT["stamps"]:
    zero = "".join(f"    s_mov_b32 s{sSTAMP + 2 * i}, 0\n" for i in range(1, 16))
    body = body.replace(f"{NAME}_kernel:\n", f"{NAME}_kernel:\n{zero}", 1)

hdr = open("cdna_kernels/" + NAME + ".s.ref").read().split("; Override launch geometry")[0]
out = hdr + f"""; Generated by a hand-written generator script (dev/gen.py); one persistent launch, 256 workgroups.
; @launch grid=(256,1,1) block=(512,1,1) lds={OPT['lds']}
.amdgcn_target "amdgcn-amd-amdhsa--gfx950"
.text
.globl {NAME}_kernel
.p2align 8
.type {NAME}_kernel,@function
{body}.section .rodata,"a"
.p2align 6
.amdhsa_kernel {NAME}_kernel
  .amdhsa_next_free_vgpr 128
  .amdhsa_next_free_sgpr 102
  .amdhsa_accum_offset 128
  .amdhsa_group_segment_fixed_size 0
  .amdhsa_kernarg_size 112
  .amdhsa_user_sgpr_count 2
  .amdhsa_user_sgpr_kernarg_segment_ptr 1
  .amdhsa_system_sgpr_workgroup_id_x 1
  .amdhsa_float_denorm_mode_32 3
.end_amdhsa_kernel
"""
open(sys.argv[1], "w").write(out)
```

```python
import sys
from asmlib import Asm

NAME = "adaLN_cond__sliding_block_cached__swiglu_ffn__decode"
OPT = dict(probe=-1, stamps=0, lds=84000, nt=1, limit=20000, nloc=40, pf=1)
for arg in sys.argv[2:]:
    k, v = arg.split("=")
    OPT[k] = int(v, 0)
NT = " nt" if OPT["nt"] else ""

EPOCH = 0
H1 = 0x1000
H2 = 0x4000
H2G = 0x14000
CLR = 0x40000
MODB = CLR
H4 = MODB + 0x4000
ACT = H4 + 0x8000
X1 = ACT + 0x4000
H3ML = X1 + 0x1000
H3O = H3ML + 0x1000
CLR_END = H3O + 0x20000
CLR_PER_WAVE = 2
assert CLR_END - CLR <= 32 * 4 * CLR_PER_WAVE * 1024
STAMP = 0x100000

sX, sK, sV, sWQ, sWO, sWG, sWU = 4, 6, 8, 10, 12, 16, 18
sWD, sC, sWM, sOUT, sDBG, sWS = 20, 22, 24, 26, 28, 30
sG, sM, sWAVE, sTAG, sLO, sHI, sCNT, sT0 = 32, 33, 34, 35, 36, 37, 38, 39
sBA, sBB = 40, 42
sMK = 44
sT1, sT2, sT3, sT4 = 48, 49, 50, 51
sBC = 52
sBD = 54
sXCC = 56
sLOCAL = 57
sPC = 58
sSTAMP = 64

LOG2E = 0x3FB8AA3B
SCALE = 0x3DB504F3


def sp(r):
    return f"s[{r}:{r + 1}]"


def vr(a, n):
    return f"v[{a}:{a + n - 1}]" if n > 1 else f"v{a}"


a = Asm()
_uid = [0]


def uid(p):
    _uid[0] += 1
    return f"L_{p}{_uid[0]}"


def stamp(i):
    if OPT["stamps"]:
        a(f"s_memrealtime {sp(sSTAMP + 2 * i)}")


def finish_wave():
    if OPT["stamps"]:
        a("s_branch L_dump")
    else:
        a("s_endpgm")


def base(dst, ptr, off_s=None, off_imm=0):
    if off_s is not None:
        a(f"s_add_u32 s{dst}, s{ptr}, s{off_s}")
        a(f"s_addc_u32 s{dst + 1}, s{ptr + 1}, 0")
        if off_imm:
            a(f"s_add_u32 s{dst}, s{dst}, {off_imm}")
            a(f"s_addc_u32 s{dst + 1}, s{dst + 1}, 0")
    else:
        a(f"s_add_u32 s{dst}, s{ptr}, {off_imm}")
        a(f"s_addc_u32 s{dst + 1}, s{ptr + 1}, 0")


def set_exec(mask):
    if mask == -1:
        a("s_mov_b64 exec, -1")
    else:
        lo, hi = mask & 0xFFFFFFFF, mask >> 32
        a(f"s_mov_b32 exec_lo, {lo:#x}")
        a(f"s_mov_b32 exec_hi, {hi:#x}")


def perms8(W, F, waits=None):
    for x in range(4):
        if waits is not None:
            a(f"s_waitcnt vmcnt({waits[x]})")
        for e in range(8):
            sel = sHI if e & 1 else sLO
            a(f"v_perm_b32 v{F + 4 * e + x}, v{W + 4 * (2 * x + 1) + (e >> 1)}, v{W + 4 * (2 * x) + (e >> 1)}, s{sel}")


def unpack(dst, src, n):
    for i in range(n):
        a(f"v_lshlrev_b32 v{dst + 2 * i}, 16, v{src + i}")
        a(f"v_and_b32 v{dst + 2 * i + 1}, 0xffff0000, v{src + i}")


def round_bf16(regs, tmp):
    if len(regs) == 1:
        a(f"v_cvt_pk_bf16_f32 v{regs[0]}, v{regs[0]}, v{regs[0]}")
        a(f"v_lshlrev_b32 v{regs[0]}, 16, v{regs[0]}")
        return
    for i in range(0, len(regs), 2):
        a(f"v_cvt_pk_bf16_f32 v{regs[i + 1]}, v{regs[i]}, v{regs[i + 1]}")
    for i in range(0, len(regs), 2):
        a(f"v_lshlrev_b32 v{regs[i]}, 16, v{regs[i + 1]}")
        a(f"v_and_b32 v{regs[i + 1]}, 0xffff0000, v{regs[i + 1]}")


def poll_begin():
    lab = uid("poll")
    a(f"s_mov_b32 s{sCNT}, {OPT['limit']}")
    a.label(lab)
    return lab


def poll_mid():
    a(f"s_sub_u32 s{sCNT}, s{sCNT}, 1")
    a(f"s_cselect_b64 {sp(sMK)}, 0, -1")
    a("s_waitcnt vmcnt(0)")


def poll_end(lab):
    a(f"s_and_b64 vcc, vcc, {sp(sMK)}")
    a(f"s_cbranch_scc1 {lab}")


def check_sentinel(regs, tmp):
    regs = list(regs)
    if len(regs) == 1:
        a(f"v_cmp_eq_u32 vcc, -1, v{regs[0]}")
        return
    if len(regs) == 2:
        a(f"v_max_u32 v{tmp}, v{regs[0]}, v{regs[1]}")
    else:
        a(f"v_max3_u32 v{tmp}, v{regs[0]}, v{regs[1]}, v{regs[2]}")
        rest = regs[3:]
        while len(rest) >= 2:
            a(f"v_max3_u32 v{tmp}, v{tmp}, v{rest[0]}, v{rest[1]}")
            rest = rest[2:]
        if rest:
            a(f"v_max_u32 v{tmp}, v{tmp}, v{rest[0]}")
    a(f"v_cmp_eq_u32 vcc, -1, v{tmp}")


def check_tags(L0, L1, tmp, lim=0):
    a(f"v_xor_b32 v{tmp}, s{sTAG}, v{L0 + 1}")
    a(f"v_xor_b32 v{tmp + 1}, s{sTAG}, v{L0 + 3}")
    a(f"v_xor_b32 v{tmp + 2}, s{sTAG}, v{L1 + 1}")
    a(f"v_xor_b32 v{tmp + 3}, s{sTAG}, v{L1 + 3}")
    a(f"v_or3_b32 v{tmp}, v{tmp}, v{tmp + 1}, v{tmp + 2}")
    a(f"v_or_b32 v{tmp}, v{tmp}, v{tmp + 3}")
    a(f"v_cmp_lt_u32 vcc, {lim}, v{tmp}")


def make_tag(vE):
    a(f"v_readfirstlane_b32 s{sTAG}, v{vE}")
    a("s_nop 1")
    a(f"s_mul_i32 s{sTAG}, s{sTAG}, 1664525")
    a(f"s_add_u32 s{sTAG}, s{sTAG}, 1013904223")


DPPM = "row_mask:0xf bank_mask:0xf"


def row_allsum(v):
    for n in (8, 4, 2, 1):
        a(f"v_add_f32_dpp v{v}, v{v}, v{v} row_ror:{n} {DPPM}")


def cross_rows(op, v, tmp):
    a(f"v_mov_b32 v{tmp}, v{v}")
    a(f"v_permlane16_swap_b32 v{tmp}, v{v}")
    a(f"{op} v{v}, v{v}, v{tmp}")
    a(f"v_mov_b32 v{tmp}, v{v}")
    a(f"v_permlane32_swap_b32 v{tmp}, v{v}")
    a(f"{op} v{v}, v{v}, v{tmp}")


W, F, ACC, T = 16, 48, 16, 48
KR, VR, SA, VT, OA = 16, 48, 80, 16, 80
a(f"{NAME}_kernel:")
stamp(0)
a("s_load_dwordx16 s[4:19], s[0:1], 0")
a("s_load_dwordx8 s[20:27], s[0:1], 64")
a("s_load_dwordx4 s[28:31], s[0:1], 96")
a("s_cmp_ge_u32 s2, 256")
a("s_cbranch_scc1 L_exit")
a("v_lshrrev_b32 v1, 6, v0")
if OPT["pf"]:
    a(f"s_getpc_b64 {sp(sPC)}")
    a.label("L_pc0")
    a("v_lshlrev_b32 v2, 7, v0")
a(f"v_readfirstlane_b32 s{sWAVE}, v1")
if OPT["pf"]:
    a("v_cmp_gt_u32 vcc, (L_exit-L_pc0)/128, v0")
    a("s_cbranch_vccz L_nopf")
    a("s_mov_b64 exec, vcc")
    a(f"global_load_dword v127, v2, {sp(sPC)}")
    a("s_mov_b64 exec, -1")
    a.label("L_nopf")
a("v_and_b32 v0, 63, v0")
a(f"s_and_b32 s{sG}, s2, 7")
a(f"s_lshr_b32 s{sM}, s2, 3")
a("v_lshrrev_b32 v1, 2, v0        ; l>>2")
a("v_and_b32 v2, 3, v0            ; l&3")
a("v_lshrrev_b32 v3, 4, v0        ; l>>4")
a("v_mov_b32 v4, 0")
a("v_and_b32 v5, 3, v1")
a(f"s_cmp_lt_u32 s{sM}, 16")
a("s_cbranch_scc1 L_G")
a(f"s_sub_u32 s{sM}, s{sM}, 16               ; a = 4b + s")
a(f"s_lshr_b32 s{sT1}, s{sM}, 2              ; b")
a(f"s_lshl_b32 s{sT0}, s{sT1}, 3")
a(f"s_add_u32 s{sT0}, s{sT0}, s{sG}")
a(f"s_lshl_b32 s{sT0}, s{sT0}, 4")
a(f"s_and_b32 s{sT2}, s{sM}, 3")
a(f"s_add_u32 s{sT0}, s{sT0}, s{sT2}")
a(f"s_lshl_b32 s{sT0}, s{sT0}, 3")
a(f"s_add_u32 s{sT0}, s{sT0}, s{sWAVE}")
a(f"s_lshl_b32 s{sT0}, s{sT0}, 13")
a(f"s_add_u32 s{sT0}, s{sT0}, {3072 * 256 + 4096}")
a("v_lshlrev_b32 v6, 8, v5")
a("v_lshl_add_u32 v6, v3, 6, v6")
a("v_lshl_add_u32 v6, v2, 4, v6")
a("v_lshlrev_b32 v7, 4, v0")
a("s_waitcnt lgkmcnt(0)")
base(sBA, sK, sT0)
base(sBB, sV, sT0)
a(f"global_load_dword v12, v4, {sp(sWS)} sc1      ; epoch")
for u in range(8):
    a(f"global_load_dwordx4 {vr(KR + 4 * u, 4)}, v6, {sp(sBA)} offset:{1024 * u - 4096}{NT}")
for u in range(8):
    a(f"global_load_dwordx4 {vr(VR + 4 * u, 4)}, v7, {sp(sBB)} offset:{1024 * u - 4096}{NT}")
a("s_branch L_A2")
a.label("L_G")
a(f"s_lshl_b32 s{sT0}, s{sG}, 2")
a(f"s_add_u32 s{sT2}, s{sT0}, s{sM}          ; p = 4g+j")
a(f"s_and_b32 s{sT4}, s{sWAVE}, 3            ; k quarter")
a(f"s_cmp_ge_u32 s{sWAVE}, 4")
a("s_cbranch_scc1 L_GQ")
a(f"s_cmp_ge_u32 s{sM}, 12")
a("s_cbranch_scc1 L_GM_skip")
a(f"s_add_u32 s{sT1}, s{sT2}, s{sT0}")
a(f"s_lshl_b32 s{sT1}, s{sT1}, 6")
a(f"s_add_u32 s{sT1}, s{sT1}, {2048 - 256}")
a(f"s_lshl_b32 s{sT0}, s{sT2}, 5")
a(f"s_cmp_lt_u32 s{sM}, 4")
a(f"s_cselect_b32 s{sT0}, s{sT0}, s{sT1}")
a(f"s_cselect_b32 s{sT2}, 1024, 32")
a(f"s_mul_i32 s{sT1}, s{sWAVE}, {128 * 6144}")
a(f"s_add_u32 s{sT0}, s{sT0}, s{sT1}")
a(f"s_lshl_b32 s{sT1}, s{sWAVE}, 8")
a("v_lshlrev_b32 v5, 10, v5")
a("v_lshl_add_u32 v5, v3, 6, v5")
a("v_lshl_add_u32 v5, v2, 4, v5")
a("v_mul_u32_u24 v6, 49152, v1")
a("v_and_b32 v7, 1, v2")
a("v_lshl_add_u32 v6, v7, 4, v6")
a("v_lshrrev_b32 v7, 1, v2")
a(f"v_mad_u32_u24 v6, v7, s{sT2}, v6")
a(f"s_movk_i32 s{sT3}, 6144")
a("s_waitcnt lgkmcnt(0)")
base(sBA, sC, sT1)
base(sBB, sWM, sT0)
a(f"global_load_dwordx4 v[8:11], v5, {sp(sBA)}")
a("s_branch L_G_ld")
a.label("L_GQ")
a(f"s_lshl_b32 s{sT0}, s{sT4}, 10")
a(f"s_add_u32 s{sT0}, s{sT0}, s{sG}")
a(f"s_lshl_b32 s{sT0}, s{sT0}, 4")
a(f"s_add_u32 s{sT0}, s{sT0}, s{sM}")
a(f"s_lshl_b32 s{sT0}, s{sT0}, 6            ; i'*128*8192 + g*1024 + j*64")
a("v_lshlrev_b32 v6, 16, v1")
a("v_lshl_add_u32 v6, v2, 4, v6")
a(f"s_movk_i32 s{sT3}, 8192")
a("s_waitcnt lgkmcnt(0)")
base(sBB, sWQ, sT0)
a(f"global_load_dword v12, v4, {sp(sWS)} sc1      ; epoch")
a(f"s_cmp_ge_u32 s{sM}, 4")
a("s_cbranch_scc1 L_G_ld")
a("v_and_b32 v7, 15, v0")
a("v_lshlrev_b32 v5, 10, v3")
a("v_lshl_add_u32 v8, v7, 4, v5")
for t in range(4):
    a(f"global_load_dwordx4 {vr(80 + 4 * t, 4)}, v8, {sp(sX)} offset:{256 * t}")
a(f"s_lshl_b32 s{sT1}, s{sT2}, 5")
a("v_lshl_add_u32 v8, v7, 1, v5")
a(f"v_add_u32 v8, s{sT1}, v8")
a(f"global_load_ushort v13, v8, {sp(sX)}")
a(f"s_lshl_b32 s{sT0}, s{sT2}, 2")
a(f"s_add_u32 s{sT0}, s{sT0}, s{sT4}")
a(f"s_mul_i32 s{sT0}, s{sT0}, {CLR_PER_WAVE * 1024}")
a(f"s_add_u32 s{sT0}, s{sT0}, {CLR}")
base(sBA, sWS, sT0)
a("v_lshlrev_b32 v5, 4, v0")
for i in range(4):
    a(f"v_mov_b32 v{8 + i}, -1")
for i in range(CLR_PER_WAVE):
    a(f"global_store_dwordx4 v5, v[8:11], {sp(sBA)} offset:{1024 * i} sc1")
a.label("L_G_ld")
for j in range(8):
    a(f"global_load_dwordx4 {vr(W + 4 * j, 4)}, v6, {sp(sBB)}{NT}")
    if j < 7:
        a(f"v_add_u32 v6, s{sT3}, v6")
a(f"s_mov_b32 s{sLO}, 0x05040100")
a(f"s_mov_b32 s{sHI}, 0x07060302")
a(f"s_cmp_ge_u32 s{sWAVE}, 4")
a("s_cbranch_scc1 L_GQ2")

stamp(1)
a("s_waitcnt vmcnt(8)")
unpack(80, 8, 4)
for i in range(8):
    a(f"v_mul_f32 v{88 + i}, {0x80000000 | LOG2E:#x}, v{80 + i}")
for i in range(8):
    a(f"v_exp_f32 v{88 + i}, v{88 + i}")
for i in range(8):
    a(f"v_add_f32 v{88 + i}, 1.0, v{88 + i}")
for i in range(8):
    a(f"v_rcp_f32 v{88 + i}, v{88 + i}")
for i in range(8):
    a(f"v_mul_f32 v{80 + i}, v{80 + i}, v{88 + i}")
for i in range(4):
    a(f"v_cvt_pk_bf16_f32 v{8 + i}, v{80 + 2 * i}, v{81 + 2 * i}")
a(f"s_lshl_b32 s{sT0}, s{sWAVE}, 9")
a("v_lshlrev_b32 v5, 7, v3")
a("v_lshl_add_u32 v5, v2, 5, v5")
a(f"v_add_u32 v5, s{sT0}, v5")
perms8(W, F, waits=[6, 4, 2, 0])
stamp(2)


def mfma_diagX(Afrag, F, ACC, T):
    for e in range(8):
        a(f"v_mfma_f32_16x16x32_bf16 {vr(ACC + 4 * e, 4)}, {vr(Afrag, 4)}, {vr(F + 4 * e, 4)}, 0")
    for e in range(8):
        a(f"v_add_f32_dpp v{T + e}, v{ACC + 4 * e + 1}, v{ACC + 4 * e} row_shl:4 {DPPM}")
    for e in range(8):
        a(f"v_add_f32_dpp v{T + e}, v{ACC + 4 * e + 2}, v{T + e} row_shl:8 {DPPM}")
    for e in range(8):
        a(f"v_add_f32_dpp v{T + e}, v{ACC + 4 * e + 3}, v{T + e} row_shl:12 {DPPM}")


mfma_diagX(8, F, ACC, T)
set_exec(0x000F000F000F000F)
a(f"ds_write_b128 v5, {vr(T, 4)}")
a(f"ds_write_b128 v5, {vr(T + 4, 4)} offset:16")
set_exec(-1)
a.label("L_GM_skip")
a(f"s_mov_b32 s{sLO}, 0x05040100")
a(f"s_mov_b32 s{sHI}, 0x07060302")
a("s_waitcnt lgkmcnt(0)")
a("s_barrier                      ; #1")
stamp(3)
a(f"s_cmp_lg_u32 s{sWAVE}, 0")
a("s_cbranch_scc1 L_G_bar2")
a("v_lshlrev_b32 v5, 3, v0")
a("ds_read2st64_b64 v[16:19], v5 offset0:0 offset1:1")
a("ds_read2st64_b64 v[20:23], v5 offset0:2 offset1:3")
a("s_waitcnt lgkmcnt(0)")
a("v_pk_add_f32 v[16:17], v[16:17], v[18:19]")
a("v_pk_add_f32 v[20:21], v[20:21], v[22:23]")
a("v_pk_add_f32 v[16:17], v[16:17], v[20:21]")
a("v_cvt_pk_bf16_f32 v12, v16, v17")
a("s_barrier                      ; #2")
a(f"s_sub_u32 s{sT0}, s{sM}, 4")
a(f"s_cmp_ge_u32 s{sT0}, 8")
a("s_cbranch_scc1 L_WO")
a(f"s_lshl_b32 s{sT1}, s{sG}, 3")
a(f"s_add_u32 s{sT0}, s{sT0}, s{sT1}")
a(f"s_lshl_b32 s{sT0}, s{sT0}, 8")
base(sBA, sWS, sT0, MODB)
a("v_lshlrev_b32 v5, 2, v0")
a(f"global_store_dword v5, v12, {sp(sBA)} sc1")
a("s_branch L_WO")
a.label("L_G_bar2")
a("s_barrier                      ; #2")
a("s_branch L_WO")

a.label("L_GQ2")
stamp(1)
a("s_waitcnt vmcnt(8)")
make_tag(12)
a(f"s_cmp_ge_u32 s{sM}, 4")
a("s_cbranch_scc1 L_GQ_bar1")
a(f"s_cmp_lg_u32 s{sWAVE}, 4")
a("s_cbranch_scc1 L_GQ_bar1")
unpack(96, 80, 16)
a("v_pk_add_f32 v[8:9], v[96:97], v[98:99]")
for i in range(2, 16):
    a(f"v_pk_add_f32 v[8:9], v[8:9], v[{96 + 2 * i}:{97 + 2 * i}]")
a("v_add_f32 v8, v8, v9")
row_allsum(8)
a(f"v_mul_f32 v8, {0x3B000000:#x}, v8       ; mean")
a("v_mov_b32 v10, 0")
for i in range(32):
    a(f"v_sub_f32 v{96 + i}, v{96 + i}, v8")
for i in range(32):
    a(f"v_fmac_f32 v10, v{96 + i}, v{96 + i}")
row_allsum(10)
a(f"v_mul_f32 v9, {0x3B000000:#x}, v10      ; var")
round_bf16([8, 9], 0)
a(f"v_add_f32 v9, {0x3727C5AC:#x}, v9       ; + 1e-5")
round_bf16([9], 0)
a("v_sqrt_f32 v9, v9")
round_bf16([9], 0)
a("v_rcp_f32 v9, v9")
a("v_lshlrev_b32 v13, 16, v13")
a("v_sub_f32 v13, v13, v8")
round_bf16([13], 0)
a("v_mul_f32 v13, v13, v9")
round_bf16([13], 0)
a("v_and_b32 v7, 15, v0")
a("v_lshlrev_b32 v5, 7, v3")
a("v_lshl_add_u32 v5, v7, 2, v5")
a("v_lshlrev_b32 v14, 6, v3              ; b*64")
a("v_and_b32 v8, 8, v7")
a("v_lshl_add_u32 v14, v8, 2, v14        ; c'lo*32")
a("v_and_b32 v8, 2, v7")
a("v_lshl_add_u32 v14, v8, 3, v14        ; (d&1)*16")
a("v_and_b32 v8, 4, v7")
a("v_lshl_add_u32 v14, v8, 1, v14        ; (d>>1)*8")
a(f"s_lshl_b32 s{sT0}, s{sG}, 2")
a(f"s_add_u32 s{sT0}, s{sT0}, s{sM}")
a(f"s_lshl_b32 s{sT0}, s{sT0}, 8")
base(sBA, sWS, sT0, H1)
a(f"v_mov_b32 v9, s{sTAG}")
a("s_barrier                      ; #1")
a("ds_read2st64_b32 v[80:81], v5 offset0:0 offset1:2")
a("ds_read2st64_b32 v[82:83], v5 offset0:4 offset1:6")
a("v_add_u32 v5, 64, v5")
a("ds_read2st64_b32 v[84:85], v5 offset0:0 offset1:2")
a("ds_read2st64_b32 v[86:87], v5 offset0:4 offset1:6")
a("s_waitcnt lgkmcnt(0)")
a("v_pk_add_f32 v[80:81], v[80:81], v[82:83]")
a("v_pk_add_f32 v[84:85], v[84:85], v[86:87]")
a("v_add_f32 v80, v80, v81               ; sa")
a("v_add_f32 v81, v84, v85               ; ca")
round_bf16([80, 81], 0)
a("v_add_f32 v81, 1.0, v81")
round_bf16([81], 0)
a("v_mul_f32 v81, v13, v81")
round_bf16([81], 0)
a("v_add_f32 v80, v81, v80")
a(f"v_mov_b32_dpp v81, v80 quad_perm:[1,1,3,3] {DPPM}")
a("v_cvt_pk_bf16_f32 v8, v80, v81")
set_exec(0x5555555555555555)
a(f"global_store_dwordx2 v14, v[8:9], {sp(sBA)} sc1")
set_exec(-1)
stamp(3)
a("s_branch L_GQ_go")
a.label("L_GQ_bar1")
a("s_barrier                      ; #1")
a.label("L_GQ_go")
a("s_waitcnt vmcnt(0)")
perms8(W, F)
stamp(4)
a(f"s_lshl_b32 s{sT0}, s{sT4}, 11")
base(sBA, sWS, sT0, H1)
a("v_lshlrev_b32 v5, 5, v0")
a("v_lshlrev_b32 v6, 8, v3")
a("v_lshl_add_u32 v6, v2, 5, v6")
a(f"s_lshl_b32 s{sT0}, s{sT4}, 10")
a(f"s_add_u32 s{sT0}, s{sT0}, 2048")
a(f"v_add_u32 v6, s{sT0}, v6")
lab = poll_begin()
a(f"global_load_dwordx4 v[8:11], v5, {sp(sBA)} sc1")
a(f"global_load_dwordx4 v[12:15], v5, {sp(sBA)} offset:16 sc1")
poll_mid()
check_tags(8, 12, 80)
poll_end(lab)
stamp(5)
a("v_mov_b32 v9, v12")
a("v_mov_b32 v11, v14")
for e in range(8):
    a(f"v_mfma_f32_16x16x32_bf16 {vr(ACC + 4 * e, 4)}, v[8:11], {vr(F + 4 * e, 4)}, 0")
for b0 in range(2):
    for e in range(8):
        a(f"v_add_f32_dpp v{80 + 8 * b0 + e}, v{ACC + 4 * e + 2 * b0 + 1}, v{ACC + 4 * e + 2 * b0} row_shl:4 {DPPM}")
set_exec(0x0F000F00000F000F)
a("ds_write_b128 v6, v[80:83]")
a("ds_write_b128 v6, v[84:87] offset:16")
a("ds_write_b128 v6, v[88:91] offset:128")
a("ds_write_b128 v6, v[92:95] offset:144")
set_exec(-1)
a("s_waitcnt lgkmcnt(0)")
a("s_barrier                      ; #2")
a(f"s_cmp_lg_u32 s{sWAVE}, 4")
a("s_cbranch_scc1 L_WO")
a("v_lshlrev_b32 v5, 3, v0")
for t in range(4):
    a(f"ds_read2st64_b64 {vr(16 + 4 * t, 4)}, v5 offset0:{4 + 2 * t} offset1:{5 + 2 * t}")
a(f"s_lshl_b32 s{sT0}, s{sG}, 13")
a(f"s_lshl_b32 s{sT1}, s{sM}, 7")
a(f"s_add_u32 s{sT0}, s{sT0}, s{sT1}")
base(sBA, sWS, sT0, H2)
a("v_lshlrev_b32 v6, 11, v3")
a("v_and_b32 v7, 12, v0")
a("v_lshl_add_u32 v6, v7, 3, v6")
a("v_and_b32 v7, 1, v0")
a("v_lshl_add_u32 v6, v7, 4, v6")
a("v_and_b32 v7, 2, v0")
a("v_lshl_add_u32 v6, v7, 2, v6")
a(f"s_getreg_b32 s{sXCC}, hwreg(HW_REG_XCC_ID, 0, 4)")
a(f"s_xor_b32 s{sT0}, s{sTAG}, s{sXCC}")
a(f"v_mov_b32 v9, s{sT0}")
a(f"v_add_u32 v7, {H2G - H2:#x}, v6")
a("s_waitcnt lgkmcnt(0)")
for t in range(4):
    a(f"v_pk_add_f32 v[{16 + 4 * t}:{17 + 4 * t}], v[{16 + 4 * t}:{17 + 4 * t}], v[{18 + 4 * t}:{19 + 4 * t}]")
a("v_pk_add_f32 v[16:17], v[16:17], v[20:21]")
a("v_pk_add_f32 v[24:25], v[24:25], v[28:29]")
a("v_pk_add_f32 v[16:17], v[16:17], v[24:25]")
a("v_cvt_pk_bf16_f32 v8, v16, v17")
a(f"global_store_dwordx2 v6, v[8:9], {sp(sBA)}")
a(f"global_store_dwordx2 v7, v[8:9], {sp(sBA)} sc1")
stamp(6)

a.label("L_WO")
a(f"s_lshl_b32 s{sT0}, s{sG}, 19")
a(f"s_lshl_b32 s{sT1}, s{sWAVE}, 16")
a(f"s_add_u32 s{sT0}, s{sT0}, s{sT1}")
a(f"s_lshl_b32 s{sT1}, s{sM}, 6")
a(f"s_add_u32 s{sT0}, s{sT0}, s{sT1}")
base(sBB, sWO, sT0, 4096)
a("v_and_b32 v7, 15, v0")
a("v_lshlrev_b32 v6, 13, v3")
a("v_lshl_add_u32 v6, v7, 2, v6")
a("v_add_u32 v5, 0x8000, v6")
for ks in range(2):
    for j in range(8):
        a(f"global_load_dword v{16 + 8 * ks + j}, v{5 if ks else 6}, {sp(sBB)} offset:{1024 * j - 4096}{NT}")
a(f"s_lshl_b32 s{sT0}, s{sG}, 14")
a(f"s_lshl_b32 s{sT1}, s{sWAVE}, 11")
a(f"s_add_u32 s{sT0}, s{sT0}, s{sT1}")
base(sBA, sWS, sT0, H3O)
a(f"s_lshl_b32 s{sT0}, s{sG}, 9")
a(f"s_lshr_b32 s{sT1}, s{sWAVE}, 1")
a(f"s_lshl_b32 s{sT1}, s{sT1}, 7")
a(f"s_add_u32 s{sT0}, s{sT0}, s{sT1}")
base(sBC, sWS, sT0, H3ML)
a("v_lshlrev_b32 v5, 4, v0")
a("v_lshlrev_b32 v6, 5, v3")
a(f"s_lshl_b32 s{sT0}, s{sWAVE}, 9")
a(f"s_add_u32 s{sT0}, s{sT0}, 6144")
a(f"v_lshl_add_u32 v7, v0, 3, s{sT0}")
a("s_waitcnt vmcnt(0)")
stamp(7)
for ks in range(2):
    for eo in range(2):
        for x in range(4):
            a(f"v_perm_b32 v{32 + 8 * ks + 4 * eo + x}, v{16 + 8 * ks + 2 * x + 1}, v{16 + 8 * ks + 2 * x}, s{sHI if eo else sLO}")
lab = poll_begin()
a(f"global_load_dwordx4 v[48:51], v5, {sp(sBA)} sc1")
a(f"global_load_dwordx4 v[52:55], v5, {sp(sBA)} offset:1024 sc1")
a(f"global_load_dwordx4 v[56:59], v6, {sp(sBC)} sc1")
a(f"global_load_dwordx4 v[60:63], v6, {sp(sBC)} offset:16 sc1")
poll_mid()
check_sentinel(range(48, 64), 8)
poll_end(lab)
stamp(8)
a("v_mfma_f32_16x16x32_bf16 v[16:19], v[48:51], v[32:35], 0")
a("v_mfma_f32_16x16x32_bf16 v[20:23], v[48:51], v[36:39], 0")
a("v_mfma_f32_16x16x32_bf16 v[16:19], v[52:55], v[40:43], v[16:19]")
a("v_mfma_f32_16x16x32_bf16 v[20:23], v[52:55], v[44:47], v[20:23]")
a("v_max3_f32 v8, v56, v58, v60")
a("v_max_f32 v8, v8, v62")
for s in range(4):
    a(f"v_sub_f32 v{56 + 2 * s}, v{56 + 2 * s}, v8")
for s in range(4):
    a(f"v_exp_f32 v{56 + 2 * s}, v{56 + 2 * s}")
a("v_mul_f32 v9, v56, v57")
for s in range(1, 4):
    a(f"v_fmac_f32 v9, v{56 + 2 * s}, v{57 + 2 * s}")
a("v_rcp_f32 v9, v9")
a("v_mul_f32 v10, v16, v56")
a("v_mul_f32 v11, v20, v56")
for s in range(1, 4):
    a(f"v_fmac_f32 v10, v{16 + s}, v{56 + 2 * s}")
    a(f"v_fmac_f32 v11, v{20 + s}, v{56 + 2 * s}")
a("v_mul_f32 v10, v10, v9")
a("v_mul_f32 v11, v11, v9")
a("ds_write_b64 v7, v[10:11]")
a("s_waitcnt lgkmcnt(0)")
a("s_barrier                      ; #3")
a(f"s_cmp_lg_u32 s{sWAVE}, 7")
a("s_cbranch_scc1 L_DOWN")
a("v_lshlrev_b32 v5, 3, v0")
for t in range(4):
    a(f"ds_read2st64_b64 {vr(16 + 4 * t, 4)}, v5 offset0:{12 + 2 * t} offset1:{13 + 2 * t}")
a(f"s_lshl_b32 s{sT0}, s{sG}, 4")
a(f"s_add_u32 s{sT0}, s{sT0}, s{sM}")
a(f"s_lshl_b32 s{sT0}, s{sT0}, 8")
base(sBA, sWS, sT0, H4)
a("v_lshlrev_b32 v6, 2, v0")
a("s_waitcnt lgkmcnt(0)")
for t in range(4):
    a(f"v_pk_add_f32 v[{16 + 4 * t}:{17 + 4 * t}], v[{16 + 4 * t}:{17 + 4 * t}], v[{18 + 4 * t}:{19 + 4 * t}]")
a("v_pk_add_f32 v[16:17], v[16:17], v[20:21]")
a("v_pk_add_f32 v[24:25], v[24:25], v[28:29]")
a("v_pk_add_f32 v[16:17], v[16:17], v[24:25]")
a("v_cvt_pk_bf16_f32 v8, v16, v17")
a(f"global_store_dword v6, v8, {sp(sBA)} sc1")
stamp(9)
a(f"s_cmp_lt_u32 s{sM}, 12")
a("s_cbranch_scc1 L_fin")
a(f"s_sub_u32 s{sT1}, s{sM}, 12")
a(f"s_lshl_b32 s{sT0}, s{sG}, 2")
a(f"s_add_u32 s{sT2}, s{sT0}, s{sT1}          ; col0/16")
a(f"s_lshr_b32 s{sT0}, s{sT2}, 1")
a(f"s_lshl_b32 s{sT0}, s{sT0}, 8")
a(f"s_and_b32 s{sT1}, s{sT2}, 1")
a(f"s_lshl_b32 s{sT1}, s{sT1}, 5")
a(f"s_add_u32 s{sT0}, s{sT0}, s{sT1}")
base(sBA, sWS, sT0, X1)
base(sBB, sWS, sT0, MODB + 3 * 4096)
a("v_and_b32 v7, 14, v0")
a("v_lshlrev_b32 v5, 6, v3")
a("v_lshl_add_u32 v5, v7, 1, v5")
lab = poll_begin()
a(f"global_load_dword v8, v5, {sp(sBA)} sc1")
a(f"global_load_dword v9, v5, {sp(sBB)} sc1")
poll_mid()
check_sentinel([8, 9], 10)
poll_end(lab)
a("v_and_b32 v7, 1, v0")
a("v_lshlrev_b32 v7, 4, v7")
a("v_lshrrev_b32 v8, v7, v8")
a("v_lshrrev_b32 v9, v7, v9")
a("v_lshlrev_b32 v8, 16, v8              ; x1")
a("v_lshlrev_b32 v9, 16, v9              ; gb")
a(f"s_lshl_b32 s{sT0}, s{sT2}, 5")
base(sBA, sOUT, sT0)
a("v_and_b32 v7, 15, v0")
a("v_lshlrev_b32 v6, 10, v3")
a("v_lshl_add_u32 v6, v7, 1, v6")
a("v_lshlrev_b32 v5, 2, v0")
a("s_barrier                      ; #4")
for t in range(7):
    a(f"ds_read2st64_b32 v[{16 + 2 * t}:{17 + 2 * t}], v5 offset0:{40 + 2 * t} offset1:{41 + 2 * t}")
a("s_waitcnt lgkmcnt(0)")
a("v_pk_add_f32 v[16:17], v[16:17], v[18:19]")
a("v_pk_add_f32 v[20:21], v[20:21], v[22:23]")
a("v_pk_add_f32 v[24:25], v[24:25], v[26:27]")
a("v_pk_add_f32 v[16:17], v[16:17], v[28:29]")
a("v_pk_add_f32 v[20:21], v[20:21], v[24:25]")
a("v_pk_add_f32 v[16:17], v[16:17], v[20:21]")
a("v_add_f32 v16, v16, v17")
round_bf16([16], 0)
a("v_mul_f32 v16, v9, v16")
round_bf16([16], 0)
a("v_add_f32 v16, v8, v16")
a("v_cvt_pk_bf16_f32 v16, v16, v16")
a(f"global_store_short v6, v16, {sp(sBA)}")
stamp(12)
a("s_cmp_lg_u32 s2, 96")
a("s_cbranch_scc1 L_fin")
a(f"v_mov_b32 v8, s{sTAG}")
set_exec(1)
a(f"global_store_dword v4, v8, {sp(sWS)} sc1")
set_exec(-1)
a("s_branch L_fin")

a.label("L_DOWN")
a(f"s_cmp_lt_u32 s{sM}, 12")
a("s_cbranch_scc1 L_fin")
a(f"s_sub_u32 s{sT1}, s{sM}, 12")
a(f"s_lshl_b32 s{sT0}, s{sG}, 2")
a(f"s_add_u32 s{sT0}, s{sT0}, s{sT1}")
a(f"s_lshl_b32 s{sT0}, s{sT0}, 5")
a(f"s_lshl_b32 s{sT1}, s{sWAVE}, 18")
a(f"s_add_u32 s{sT0}, s{sT0}, s{sT1}")
base(sBB, sWD, sT0, 4096)
a("v_lshlrev_b32 v6, 13, v1")
a("v_lshl_add_u32 v6, v2, 3, v6")
a("v_add_u32 v5, 0x20000, v6")
for f in range(2):
    for j in range(8):
        a(f"global_load_dwordx2 {vr(16 + 16 * f + 2 * j, 2)}, v{5 if f else 6}, {sp(sBB)} offset:{1024 * j - 4096}{NT}")
a(f"s_lshl_b32 s{sT0}, s{sWAVE}, 11")
base(sBA, sWS, sT0, ACT)
a("v_lshlrev_b32 v5, 4, v0")
a("v_lshlrev_b32 v6, 7, v3")
a("v_lshl_add_u32 v6, v2, 4, v6")
a(f"s_lshl_b32 s{sT0}, s{sWAVE}, 9")
a(f"s_add_u32 s{sT0}, s{sT0}, 10240")
a(f"v_add_u32 v6, s{sT0}, v6")
a("s_waitcnt vmcnt(0)")
for f in range(2):
    for e in range(4):
        for x in range(4):
            a(f"v_perm_b32 v{48 + 16 * f + 4 * e + x}, v{16 + 16 * f + 2 * (2 * x + 1) + (e >> 1)}, "
              f"v{16 + 16 * f + 2 * (2 * x) + (e >> 1)}, s{sHI if e & 1 else sLO}")
stamp(10)
lab = poll_begin()
a(f"global_load_dwordx4 v[8:11], v5, {sp(sBA)} sc1")
a(f"global_load_dwordx4 v[12:15], v5, {sp(sBA)} offset:1024 sc1")
poll_mid()
check_sentinel(range(8, 16), 7)
poll_end(lab)
stamp(11)
for e in range(4):
    a(f"v_mfma_f32_16x16x32_bf16 {vr(16 + 4 * e, 4)}, v[8:11], {vr(48 + 4 * e, 4)}, 0")
for e in range(4):
    a(f"v_mfma_f32_16x16x32_bf16 {vr(16 + 4 * e, 4)}, v[12:15], {vr(64 + 4 * e, 4)}, {vr(16 + 4 * e, 4)}")
for e in range(4):
    for b0 in range(2):
        a(f"v_add_f32_dpp v{32 + 4 * b0 + e}, v{16 + 4 * e + 2 * b0 + 1}, v{16 + 4 * e + 2 * b0} row_shl:4 {DPPM}")
set_exec(0x0F000F00000F000F)
a("ds_write_b128 v6, v[32:35]")
a("ds_write_b128 v6, v[36:39] offset:64")
set_exec(-1)
a("s_waitcnt lgkmcnt(0)")
a("s_barrier                      ; #4")
a.label("L_fin")
finish_wave()

a.label("L_A2")
a(f"s_mov_b32 s{sLO}, 0x05040100")
a(f"s_mov_b32 s{sHI}, 0x07060302")
stamp(1)
a(f"s_lshl_b32 s{sT0}, s{sG}, 13")
a(f"s_lshl_b32 s{sT1}, s{sT1}, 11")
a(f"s_add_u32 s{sT0}, s{sT0}, s{sT1}")
base(sBC, sWS, sT0, H2)
base(sBD, sWS, sT0, H2G)
a(f"s_mov_b64 {sp(sBA)}, {sp(sBC)}")
a(f"s_getreg_b32 s{sXCC}, hwreg(HW_REG_XCC_ID, 0, 4)")
a("v_lshlrev_b32 v6, 9, v5")
a("v_lshl_add_u32 v6, v3, 7, v6")
a("v_lshl_add_u32 v6, v2, 5, v6")
a(f"s_mul_i32 s{sT0}, s{sWAVE}, 2304")
a("v_mul_u32_u24 v7, 576, v5")
a("v_mul_u32_u24 v13, 144, v3")
a(f"v_add3_u32 v7, v7, v13, s{sT0}")
a(f"s_lshl_b32 s{sT0}, s{sWAVE}, 3")
a(f"s_add_u32 s{sT0}, s{sT0}, 18432")
a(f"v_lshl_add_u32 v5, v5, 6, s{sT0}")
a("s_waitcnt vmcnt(8)")
make_tag(12)
a(f"s_xor_b32 s{sTAG}, s{sTAG}, s{sXCC}")
stamp(2)
lab = poll_begin()
a(f"global_load_dwordx4 v[8:11], v6, {sp(sBA)} sc1")
a(f"global_load_dwordx4 v[12:15], v6, {sp(sBA)} offset:16 sc1")
a(f"s_cmp_lt_u32 s{sCNT}, {OPT['limit'] - OPT['nloc']}")
a(f"s_cselect_b32 s{sT0}, s{sCNT}, 0")
a(f"s_and_b32 s{sT0}, s{sT0}, 1")
a(f"s_cselect_b64 {sp(sBA)}, {sp(sBD)}, {sp(sBC)}")
poll_mid()
check_tags(8, 12, 112, 15)
poll_end(lab)
stamp(3)
a("v_cmp_ne_u32 vcc, 0, v112")
a("s_cmp_eq_u64 vcc, 0")
a(f"s_cselect_b32 s{sLOCAL}, 1, 0")
a("v_mov_b32 v9, v12")
a("v_mov_b32 v11, v14")
for u in range(8):
    a(f"v_mfma_f32_16x16x32_bf16 {vr(SA + 4 * u, 4)}, {vr(KR + 4 * u, 4)}, v[8:11], 0")
S = 112
for u in range(8):
    a(f"v_add_f32_dpp v{S + u}, v{SA + 4 * u + 1}, v{SA + 4 * u} row_shl:1 {DPPM}")
for u in range(8):
    a(f"v_add_f32_dpp v{S + u}, v{SA + 4 * u + 2}, v{S + u} row_shl:2 {DPPM}")
for u in range(8):
    a(f"v_add_f32_dpp v{S + u}, v{SA + 4 * u + 3}, v{S + u} row_shl:3 {DPPM}")
round_bf16(list(range(S, S + 8)), 0)
for u in range(8):
    a(f"v_mul_f32 v{S + u}, {SCALE:#x}, v{S + u}")
round_bf16(list(range(S, S + 8)), 0)
a(f"v_max3_f32 v12, v{S}, v{S + 1}, v{S + 2}")
a(f"v_max3_f32 v13, v{S + 3}, v{S + 4}, v{S + 5}")
a(f"v_max3_f32 v12, v12, v{S + 6}, v{S + 7}")
a("v_max_f32 v12, v12, v13")
cross_rows("v_max_f32", 12, 13)
a(f"v_mul_f32 v12, {LOG2E:#x}, v12")
a(f"s_mov_b32 s{sT0}, {LOG2E:#x}")
for u in range(8):
    a(f"v_fma_f32 v{S + u}, v{S + u}, s{sT0}, -v12")
for u in range(8):
    a(f"v_exp_f32 v{S + u}, v{S + u}")
for x in range(4):
    a(f"v_cvt_pk_bf16_f32 v{8 + x}, v{S + 2 * x}, v{S + 2 * x + 1}")
perms8(VR, VT)
for e in range(8):
    a(f"v_mfma_f32_16x16x32_bf16 {vr(OA + 4 * e, 4)}, {vr(VT + 4 * e, 4)}, v[8:11], 0")
a(f"v_pk_add_f32 v[{S}:{S + 1}], v[{S}:{S + 1}], v[{S + 2}:{S + 3}]")
a(f"v_pk_add_f32 v[{S + 4}:{S + 5}], v[{S + 4}:{S + 5}], v[{S + 6}:{S + 7}]")
a(f"v_pk_add_f32 v[{S}:{S + 1}], v[{S}:{S + 1}], v[{S + 4}:{S + 5}]")
a(f"v_add_f32 v13, v{S}, v{S + 1}")
cross_rows("v_add_f32", 13, 14)
set_exec(0x1111111111111111)
a("ds_write_b64 v5, v[12:13]")
for e in range(8):
    a(f"ds_write_b128 v7, {vr(OA + 4 * e, 4)} offset:{16 * e}")
set_exec(-1)
a("s_waitcnt lgkmcnt(0)")
stamp(4)
a("s_barrier                      ; #1")
a(f"s_cmp_ge_u32 s{sWAVE}, 4")
a("s_cbranch_scc1 L_AW")
a(f"s_mul_i32 s{sT0}, s{sWAVE}, 576")
a("v_mul_u32_u24 v5, 144, v3")
a("v_lshl_add_u32 v5, v2, 5, v5")
a("v_and_b32 v6, 3, v1")
a("v_lshl_add_u32 v5, v6, 2, v5")
a(f"v_add_u32 v5, s{sT0}, v5")
a(f"s_lshl_b32 s{sT0}, s{sWAVE}, 6")
a(f"s_add_u32 s{sT0}, s{sT0}, 18432")
a(f"v_mov_b32 v6, s{sT0}")
for t in range(4):
    a(f"ds_read_b128 {vr(16 + 4 * t, 4)}, v6 offset:{16 * t}")
for i in range(8):
    a(f"ds_read_b32 v{32 + 2 * i}, v5 offset:{2304 * i}")
    a(f"ds_read_b32 v{33 + 2 * i}, v5 offset:{2304 * i + 16}")
a(f"s_lshl_b32 s{sT0}, s{sG}, 14")
a(f"s_lshl_b32 s{sT1}, s{sWAVE}, 12")
a(f"s_add_u32 s{sT0}, s{sT0}, s{sT1}")
a(f"s_lshl_b32 s{sT1}, s{sM}, 4")
a(f"s_add_u32 s{sT0}, s{sT0}, s{sT1}")
base(sBA, sWS, sT0, H3O)
a(f"s_lshl_b32 s{sT0}, s{sG}, 9")
a(f"s_lshl_b32 s{sT1}, s{sWAVE}, 7")
a(f"s_add_u32 s{sT0}, s{sT0}, s{sT1}")
a(f"s_lshl_b32 s{sT1}, s{sM}, 3")
a(f"s_add_u32 s{sT0}, s{sT0}, s{sT1}")
base(sBB, sWS, sT0, H3ML)
a("v_lshlrev_b32 v7, 8, v1")
a("v_lshl_add_u32 v7, v2, 2, v7")
a("s_waitcnt lgkmcnt(0)")
a("v_max3_f32 v8, v16, v18, v20")
a("v_max3_f32 v9, v22, v24, v26")
a("v_max3_f32 v8, v8, v28, v30")
a("v_max_f32 v8, v8, v9")
for i in range(8):
    a(f"v_sub_f32 v{16 + 2 * i}, v{16 + 2 * i}, v8")
for i in range(8):
    a(f"v_exp_f32 v{16 + 2 * i}, v{16 + 2 * i}")
a("v_mul_f32 v10, v16, v32")
a("v_mul_f32 v11, v16, v33")
a("v_mul_f32 v9, v16, v17")
for i in range(1, 8):
    a(f"v_fmac_f32 v10, v{16 + 2 * i}, v{32 + 2 * i}")
    a(f"v_fmac_f32 v11, v{16 + 2 * i}, v{33 + 2 * i}")
    a(f"v_fmac_f32 v9, v{16 + 2 * i}, v{17 + 2 * i}")
a("v_cvt_pk_bf16_f32 v10, v10, v11")
a(f"s_cmp_eq_u32 s{sLOCAL}, 1")
a("s_cbranch_scc0 L_A_pubg")
a(f"global_store_dword v7, v10, {sp(sBA)}")
set_exec(1)
a(f"global_store_dwordx2 v4, v[8:9], {sp(sBB)}")
a.label("L_A_pubd")
set_exec(-1)
stamp(5)
a(f"s_cmp_ge_u32 s{sM}, 14")
a("s_cbranch_scc1 L_fin2")
a(f"s_lshl_b32 s{sT0}, s{sWAVE}, 10")
base(sBB, sX, sT0)
a(f"s_lshl_b32 s{sT0}, s{sWAVE}, 6")
base(sBA, sWS, sT0, MODB + 4096)
a("v_lshlrev_b32 v6, 4, v0")
a("v_lshlrev_b32 v5, 8, v1")
a("v_lshl_add_u32 v5, v2, 4, v5          ; (l>>2)*256 + (l&3)*16")
a(f"global_load_dwordx4 v[16:19], v6, {sp(sBB)}")
a("v_add_u32 v6, 0x1000, v5")
lab = poll_begin()
a(f"global_load_dwordx4 v[20:23], v5, {sp(sBA)} offset:-4096 sc1")
a(f"global_load_dwordx4 v[24:27], v5, {sp(sBA)} sc1")
a(f"global_load_dwordx4 v[28:31], v6, {sp(sBA)} sc1")
poll_mid()
check_sentinel(range(20, 32), 8)
poll_end(lab)
XV, GA, SB, CB = 64, 72, 80, 88
unpack(XV, 16, 4)
unpack(GA, 20, 4)
unpack(SB, 24, 4)
unpack(CB, 28, 4)
for i in range(8):
    a(f"v_add_f32 v{CB + i}, 1.0, v{CB + i}")
round_bf16(list(range(CB, CB + 8)), 0)
base(sBA, sWS, sT0, H4 + 4096)
base(sBB, sWS, sT0, X1)
a("v_add_u32 v6, 0x2000, v5")
a("v_add_u32 v7, 0x4000, v5")
a("v_add_u32 v8, 0x6000, v5")
a(f"s_add_u32 s{sT0}, s{sT0}, 18688")
a(f"v_add_u32 v9, s{sT0}, v5")
a(f"s_mov_b32 s{sT1}, 0x00003f80")
a(f"s_mov_b32 s{sT2}, 0x3f800000")
stamp(6)
lab = poll_begin()
for gg in range(8):
    a(f"global_load_dwordx4 {vr(16 + 4 * gg, 4)}, v{5 + (gg >> 1)}, {sp(sBA)} offset:{-4096 if gg % 2 == 0 else 0} sc1")
poll_mid()
check_sentinel(range(16, 48), 10)
poll_end(lab)
stamp(7)
AT = 48
unpack(AT, 16, 4)
for gg in range(1, 8):
    for d in range(4):
        a(f"v_dot2_f32_bf16 v{AT + 2 * d}, v{16 + 4 * gg + d}, s{sT1}, v{AT + 2 * d}")
        a(f"v_dot2_f32_bf16 v{AT + 2 * d + 1}, v{16 + 4 * gg + d}, s{sT2}, v{AT + 2 * d + 1}")
R8 = list(range(AT, AT + 8))
round_bf16(R8, 0)
for i in range(8):
    a(f"v_mul_f32 v{AT + i}, v{GA + i}, v{AT + i}")
round_bf16(R8, 0)
for i in range(8):
    a(f"v_add_f32 v{AT + i}, v{XV + i}, v{AT + i}")
for i in range(4):
    a(f"v_cvt_pk_bf16_f32 v{16 + i}, v{AT + 2 * i}, v{AT + 2 * i + 1}")
unpack(AT, 16, 4)
a(f"v_pk_add_f32 v[10:11], v[{AT}:{AT + 1}], v[{AT + 2}:{AT + 3}]")
a(f"v_pk_add_f32 v[12:13], v[{AT + 4}:{AT + 5}], v[{AT + 6}:{AT + 7}]")
a("v_pk_add_f32 v[10:11], v[10:11], v[12:13]")
a("v_add_f32 v10, v10, v11")
row_allsum(10)
cross_rows("v_add_f32", 10, 11)
a(f"v_mul_f32 v10, {0x3B000000:#x}, v10     ; mean")
for i in range(8):
    a(f"v_sub_f32 v{56 + i}, v{AT + i}, v10")
a("v_mul_f32 v11, v56, v56")
for i in range(1, 8):
    a(f"v_fmac_f32 v11, v{56 + i}, v{56 + i}")
row_allsum(11)
cross_rows("v_add_f32", 11, 12)
a(f"v_mul_f32 v11, {0x3B000000:#x}, v11     ; var")
round_bf16([10, 11], 0)
a(f"v_add_f32 v11, {0x3727C5AC:#x}, v11")
round_bf16([11], 0)
a("v_sqrt_f32 v11, v11")
round_bf16([11], 0)
a("v_rcp_f32 v11, v11")
for i in range(8):
    a(f"v_sub_f32 v{AT + i}, v{AT + i}, v10")
round_bf16(R8, 0)
for i in range(8):
    a(f"v_mul_f32 v{AT + i}, v{AT + i}, v11")
round_bf16(R8, 0)
for i in range(8):
    a(f"v_mul_f32 v{AT + i}, v{AT + i}, v{CB + i}")
round_bf16(R8, 0)
for i in range(8):
    a(f"v_add_f32 v{AT + i}, v{AT + i}, v{SB + i}")
for i in range(4):
    a(f"v_cvt_pk_bf16_f32 v{20 + i}, v{AT + 2 * i}, v{AT + 2 * i + 1}")
a("ds_write_b128 v9, v[20:23]")
a("s_waitcnt lgkmcnt(0)")
stamp(8)
a("s_barrier                      ; #2")
a(f"s_cmp_lg_u32 s2, {(16 + 13) * 8}")
a("s_cbranch_scc1 L_A_nox1")
a(f"global_store_dwordx4 v5, v[16:19], {sp(sBB)} sc1")
a.label("L_A_nox1")
a(f"s_cmp_lg_u32 s{sWAVE}, 0")
a("s_cbranch_scc1 L_fin2")
a("v_bfe_u32 v5, v0, 3, 2")
a("v_lshlrev_b32 v5, 7, v5")
a("v_and_b32 v6, 7, v0")
a("v_lshl_add_u32 v5, v6, 3, v5")
a("v_lshrrev_b32 v6, 5, v0")
a("v_lshl_add_u32 v5, v6, 2, v5")
a("v_add_u32 v5, 22784, v5")
a("v_add_u32 v6, 64, v5")
a(f"s_mul_i32 s{sT0}, s{sG}, 14")
a(f"s_add_u32 s{sT0}, s{sT0}, s{sM}")
a(f"s_lshl_b32 s{sT0}, s{sT0}, 7")
base(sBA, sWS, sT0, ACT)
a("v_lshlrev_b32 v7, 2, v0")
a("s_barrier                      ; #3")
a("ds_read2st64_b32 v[16:17], v5 offset0:0 offset1:2")
a("ds_read2st64_b32 v[18:19], v5 offset0:4 offset1:6")
a("ds_read2st64_b32 v[20:21], v6 offset0:0 offset1:2")
a("ds_read2st64_b32 v[22:23], v6 offset0:4 offset1:6")
a("s_waitcnt lgkmcnt(0)")
a("v_pk_add_f32 v[16:17], v[16:17], v[18:19]")
a("v_pk_add_f32 v[20:21], v[20:21], v[22:23]")
a("v_add_f32 v16, v16, v17               ; gate")
a("v_add_f32 v17, v20, v21               ; up")
round_bf16([16, 17], 0)
a(f"v_mul_f32 v18, {0x80000000 | LOG2E:#x}, v16")
a("v_exp_f32 v18, v18")
a("v_add_f32 v18, 1.0, v18")
a("v_rcp_f32 v18, v18")
a("v_mul_f32 v16, v16, v18")
round_bf16([16], 0)
a("v_mul_f32 v16, v16, v17")
a("v_mov_b32 v17, v16")
a("v_permlane32_swap_b32 v16, v17")
a("v_cvt_pk_bf16_f32 v16, v16, v17")
set_exec(0xFFFFFFFF)
a(f"global_store_dword v7, v16, {sp(sBA)} sc1")
set_exec(-1)
stamp(10)
a.label("L_fin2")
finish_wave()

a.label("L_A_pubg")
a(f"global_store_dword v7, v10, {sp(sBA)} sc1")
set_exec(1)
a(f"global_store_dwordx2 v4, v[8:9], {sp(sBB)} sc1")
a("s_branch L_A_pubd")

a.label("L_AW")
a(f"s_cmp_ge_u32 s{sM}, 14")
a("s_cbranch_scc1 L_fin2")
a(f"s_sub_u32 s{sT4}, s{sWAVE}, 4")
a(f"s_mul_i32 s{sT0}, s{sG}, 14")
a(f"s_add_u32 s{sT0}, s{sT0}, s{sM}")
a(f"s_lshl_b32 s{sT0}, s{sT0}, 5")
a(f"s_mul_i32 s{sT1}, s{sT4}, {128 * 3584}")
a(f"s_add_u32 s{sT0}, s{sT0}, s{sT1}")
a(f"s_add_u32 s{sT0}, s{sT0}, 3584")
a("v_mul_u32_u24 v6, 28672, v1")
a("v_and_b32 v7, 1, v2")
a("v_lshl_add_u32 v6, v7, 4, v6")
a(f"v_add_u32 v6, s{sT0}, v6")
a("v_mov_b32 v7, 0")
a("v_cmp_lt_u32 vcc, 1, v2")
a(f"v_mov_b32 v8, s{sWG}")
a(f"v_mov_b32 v9, s{sWG + 1}")
a(f"v_mov_b32 v10, s{sWU}")
a(f"v_mov_b32 v11, s{sWU + 1}")
a("v_cndmask_b32 v8, v8, v10, vcc")
a("v_cndmask_b32 v9, v9, v11, vcc")
a("v_lshl_add_u64 v[8:9], v[6:7], 0, v[8:9]")
a(f"v_mov_b32 v6, {3 * 3584}")
a("v_lshl_add_u64 v[10:11], v[6:7], 0, v[8:9]")
a("v_lshl_add_u64 v[12:13], v[6:7], 0, v[10:11]")
for j in range(8):
    r = 8 + 2 * (j // 3)
    a(f"global_load_dwordx4 {vr(W + 4 * j, 4)}, v[{r}:{r + 1}], off offset:{3584 * (j % 3) - 3584}{NT}")
a(f"s_lshl_b32 s{sT0}, s{sT4}, 10")
a(f"s_add_u32 s{sT0}, s{sT0}, 18688")
a(f"v_lshl_add_u32 v6, v0, 4, s{sT0}")
a(f"s_lshl_b32 s{sT0}, s{sT4}, 9")
a(f"s_add_u32 s{sT0}, s{sT0}, 22784")
a("v_lshlrev_b32 v5, 7, v3")
a("v_lshl_add_u32 v5, v2, 5, v5")
a(f"v_add_u32 v5, s{sT0}, v5")
perms8(W, F, waits=[6, 4, 2, 0])
stamp(6)
a("s_barrier                      ; #2")
a("ds_read_b128 v[8:11], v6")
a("s_waitcnt lgkmcnt(0)")
mfma_diagX(8, F, ACC, 80)
set_exec(0x000F000F000F000F)
a("ds_write_b128 v5, v[80:83]")
a("ds_write_b128 v5, v[84:87] offset:16")
set_exec(-1)
a("s_waitcnt lgkmcnt(0)")
stamp(9)
a("s_barrier                      ; #3")
finish_wave()

if OPT["probe"] >= 0:
    a.label("L_dump")
    a("s_waitcnt vmcnt(0) lgkmcnt(0)")
    pi = sSTAMP + 2 * OPT["probe"]
    a(f"s_sub_u32 s{sT0}, s{pi}, s{sSTAMP}")
    a(f"s_cmp_eq_u32 s{pi}, 0")
    a(f"s_cselect_b32 s{sT0}, 0, s{sT0}")
    a(f"s_min_u32 s{sT0}, s{sT0}, 20000")
    a(f"s_add_u32 s{sT0}, s{sT0}, 4000")
    a.label("L_spin")
    a(f"s_memrealtime {sp(sSTAMP + 30)}")
    a("s_waitcnt lgkmcnt(0)")
    a(f"s_sub_u32 s{sT1}, s{sSTAMP + 30}, s{sSTAMP}")
    a(f"s_cmp_lt_u32 s{sT1}, s{sT0}")
    a("s_cbranch_scc1 L_spin")
elif OPT["stamps"]:
    a.label("L_dump")
    stamp(15)
    a("s_mov_b64 exec, -1")
    a("s_waitcnt vmcnt(0) lgkmcnt(0)")
    a(f"s_getreg_b32 s{sSTAMP + 28}, hwreg(HW_REG_XCC_ID)")
    a(f"s_getreg_b32 s{sSTAMP + 26}, hwreg(HW_REG_HW_ID)")
    for i in range(16):
        a(f"v_mov_b32 v{16 + i}, s{sSTAMP + 2 * i}")
    a(f"s_lshl_b32 s{sT0}, s2, 3")
    a(f"s_add_u32 s{sT0}, s{sT0}, s{sWAVE}")
    a(f"s_lshl_b32 s{sT0}, s{sT0}, 6")
    base(sBA, sWS, sT0, STAMP)
    a("v_mov_b32 v4, 0")
    set_exec(1)
    for i in range(4):
        a(f"global_store_dwordx4 v4, {vr(16 + 4 * i, 4)}, {sp(sBA)} offset:{16 * i}")
a.label("L_exit")
a("s_endpgm")

body = a.finish()
if OPT["stamps"]:
    zero = "".join(f"    s_mov_b32 s{sSTAMP + 2 * i}, 0\n" for i in range(1, 16))
    body = body.replace(f"{NAME}_kernel:\n", f"{NAME}_kernel:\n{zero}", 1)

hdr = open("cdna_kernels/" + NAME + ".s.ref").read().split("; Override launch geometry")[0]
out = hdr + f"""; Generated by a hand-written generator script (dev/gen.py); one persistent launch, 256 workgroups.
; @launch grid=(256,1,1) block=(512,1,1) lds={OPT['lds']}
.amdgcn_target "amdgcn-amd-amdhsa--gfx950"
.text
.globl {NAME}_kernel
.p2align 12
.p2align 8
.type {NAME}_kernel,@function
{body}.section .rodata,"a"
.p2align 6
.amdhsa_kernel {NAME}_kernel
  .amdhsa_next_free_vgpr 128
  .amdhsa_next_free_sgpr 102
  .amdhsa_accum_offset 128
  .amdhsa_group_segment_fixed_size 0
  .amdhsa_kernarg_size 112
  .amdhsa_user_sgpr_count 2
  .amdhsa_user_sgpr_kernarg_segment_ptr 1
  .amdhsa_system_sgpr_workgroup_id_x 1
  .amdhsa_float_denorm_mode_32 3
.end_amdhsa_kernel
"""
open(sys.argv[1], "w").write(out)
```

```python
import sys
from asmlib import Asm

NAME = "adaLN_cond__sliding_block_cached__swiglu_ffn__decode"
OPT = dict(stamps=0, lds=84000, nt=1, limit=20000, pf=1, pfa=1, pfg=1, athr=8, nrep=32, qsleep=2, vgpr=160, psleep=0, ahelp=1, bhelp=1, wowait=1, pfpol=2, wpol=1, wopf=1)
for arg in sys.argv[2:]:
    k, v = arg.split("=")
    assert k in OPT, k
    OPT[k] = int(v, 0)
NT = " nt" if OPT["nt"] else ""
NREP = OPT["nrep"]
NTW = " nt" if OPT["wpol"] else ""

H1 = 0x1000
CF = 0x3000
QS = 0x4000
H2G = 0x10000
FL = 0x20000
assert FL + 32 * NREP * 128 <= 0x60000
CLR = 0x60000
MODB = CLR
H4 = MODB + 0x4000
ACT = H4 + 0x8000
X1 = ACT + 0x4000
H3ML = X1 + 0x1000
H3O = H3ML + 0x1000
CLR_END = H3O + 0x20000
CLR_PER_WG = 7
assert CLR_END - CLR <= 32 * CLR_PER_WG * 1024
STAMP = 0x100000

LO = 0
LQ = 20480
LQF = LQ + 1024
LM = LQF + 64
LL = LM + 128
LY = 22016
LU = LY + 2048
LV = LU + 2048
LST = LV + 2048

sX, sK, sV, sWQ, sWO, sWG, sWU = 4, 6, 8, 10, 12, 16, 18
sWD, sC, sWM, sOUT, sDBG, sWS = 20, 22, 24, 26, 28, 30
sG, sM, sWAVE, sTAG = 14, 15, 3, 28
sLO, sHI, sCNT, sT0 = 96, 97, 98, 99
sBA, sBB, sBC = 32, 34, 36
sMK = 38
sT1, sT2, sT3, sT4 = 40, 41, 42, 43
sLOCAL, sKIND = 29, 44
sPC = 46
sSTAMP = 48 if False else 64
sQ = 32

LOG2E = 0x3FB8AA3B
SCALE = 0x3DB504F3
INV512 = 0x3B000000
EPS = 0x3727C5AC


def sp(r):
    return f"s[{r}:{r + 1}]"


def vr(a, n):
    return f"v[{a}:{a + n - 1}]" if n > 1 else f"v{a}"


a = Asm()
_uid = [0]


def uid(p):
    _uid[0] += 1
    return f"L_{p}{_uid[0]}"


def stamp(i):
    if OPT["stamps"]:
        a("s_memrealtime s[100:101]")
        a("s_waitcnt lgkmcnt(0)")
        a(f"v_writelane_b32 v126, s100, {i}")


def finish_wave():
    a("s_branch L_dump" if OPT["stamps"] else "s_endpgm")


def base(dst, ptr, off_s=None, off_imm=0):
    if off_s is not None and off_imm:
        a(f"s_add_u32 s{dst}, s{off_s}, {off_imm:#x}")
        a(f"s_add_u32 s{dst}, s{ptr}, s{dst}")
    elif off_s is not None:
        a(f"s_add_u32 s{dst}, s{ptr}, s{off_s}")
    else:
        a(f"s_add_u32 s{dst}, s{ptr}, {off_imm:#x}")
    a(f"s_addc_u32 s{dst + 1}, s{ptr + 1}, 0")


def set_exec(mask):
    if mask in (-1, 1):
        a(f"s_mov_b64 exec, {mask}")
    else:
        lo, hi = mask & 0xFFFFFFFF, mask >> 32
        a(f"s_mov_b32 exec_lo, {lo:#x}")
        a(f"s_mov_b32 exec_hi, {hi:#x}")


def prefetch(v, b, late=False):
    if not late:
        a(f"global_load_dword v127, v{v}, {sp(b)} nt")
        return
    if OPT["pfpol"] == 1:
        a(f"global_load_dword v127, v{v}, {sp(b)}")
    else:
        a(f"global_load_dword v127, v{v}, {sp(b)} nt")
    if OPT["pfpol"] == 2:
        a(f"global_load_dword v127, v{v}, {sp(b)} sc1")


def sels():
    a(f"s_mov_b32 s{sLO}, 0x05040100")
    a(f"s_mov_b32 s{sHI}, 0x07060302")


def perms8(W, F, waits=None):
    for x in range(4):
        if waits is not None:
            a(f"s_waitcnt vmcnt({waits[x]})")
        for e in range(8):
            sel = sHI if e & 1 else sLO
            a(f"v_perm_b32 v{F + 4 * e + x}, v{W + 4 * (2 * x + 1) + (e >> 1)}, v{W + 4 * (2 * x) + (e >> 1)}, s{sel}")


def unpack(dst, src, n):
    for i in range(n):
        a(f"v_lshlrev_b32 v{dst + 2 * i}, 16, v{src + i}")
        a(f"v_and_b32 v{dst + 2 * i + 1}, 0xffff0000, v{src + i}")


def round_bf16(regs):
    if len(regs) == 1:
        a(f"v_cvt_pk_bf16_f32 v{regs[0]}, v{regs[0]}, v{regs[0]}")
        a(f"v_lshlrev_b32 v{regs[0]}, 16, v{regs[0]}")
        return
    for i in range(0, len(regs), 2):
        a(f"v_cvt_pk_bf16_f32 v{regs[i + 1]}, v{regs[i]}, v{regs[i + 1]}")
    for i in range(0, len(regs), 2):
        a(f"v_lshlrev_b32 v{regs[i]}, 16, v{regs[i + 1]}")
        a(f"v_and_b32 v{regs[i + 1]}, 0xffff0000, v{regs[i + 1]}")


def poll_begin():
    lab = uid("poll")
    a(f"s_mov_b32 s{sCNT}, {OPT['limit']}")
    a.label(lab)
    return lab


def poll_mid(cnt="vmcnt(0)", sleep=None):
    sleep = OPT["psleep"] if sleep is None else sleep
    if sleep and cnt.startswith("vm"):
        a(f"s_sleep {sleep}")
    a(f"s_sub_u32 s{sCNT}, s{sCNT}, 1")
    a(f"s_cselect_b64 {sp(sMK)}, 0, -1")
    a(f"s_waitcnt {cnt}")


def poll_end(lab):
    a(f"s_and_b64 vcc, vcc, {sp(sMK)}")
    a(f"s_cbranch_scc1 {lab}")


def sentinel_ops(regs, tmp):
    regs = list(regs)
    out = []
    if len(regs) == 2:
        out.append(f"v_max_u32 v{tmp}, v{regs[0]}, v{regs[1]}")
    else:
        out.append(f"v_max3_u32 v{tmp}, v{regs[0]}, v{regs[1]}, v{regs[2]}")
        rest = regs[3:]
        while len(rest) >= 2:
            out.append(f"v_max3_u32 v{tmp}, v{tmp}, v{rest[0]}, v{rest[1]}")
            rest = rest[2:]
        if rest:
            out.append(f"v_max_u32 v{tmp}, v{tmp}, v{rest[0]}")
    out.append(f"v_cmp_eq_u32 vcc, -1, v{tmp}")
    return out


def interleave(major, minor, per):
    minor = list(minor)
    for ins in major:
        a(ins)
        for _ in range(per):
            if minor:
                a(minor.pop(0))
    for ins in minor:
        a(ins)


def make_tag(vE):
    a(f"v_readfirstlane_b32 s{sTAG}, v{vE}")
    a("s_nop 1")
    a(f"s_mul_i32 s{sTAG}, s{sTAG}, 1664525")
    a(f"s_add_u32 s{sTAG}, s{sTAG}, 1013904223")


DPPM = "row_mask:0xf bank_mask:0xf"


def row_allsum(v):
    for n in (8, 4, 2, 1):
        a(f"v_add_f32_dpp v{v}, v{v}, v{v} row_ror:{n} {DPPM}")


def cross_rows(op, v, tmp):
    a(f"v_mov_b32 v{tmp}, v{v}")
    a(f"v_permlane16_swap_b32 v{tmp}, v{v}")
    a(f"{op} v{v}, v{v}, v{tmp}")
    a(f"v_mov_b32 v{tmp}, v{v}")
    a(f"v_permlane32_swap_b32 v{tmp}, v{v}")
    a(f"{op} v{v}, v{v}, v{tmp}")


def mfma(d, x, y, c=None):
    return f"v_mfma_f32_16x16x32_bf16 {vr(d, 4)}, {vr(x, 4)}, {vr(y, 4)}, {vr(c, 4) if c is not None else 0}"


def diagX_reduce(ACC, T):
    for e in range(8):
        a(f"v_add_f32_dpp v{T + e}, v{ACC + 4 * e + 1}, v{ACC + 4 * e} row_shl:4 {DPPM}")
    for e in range(8):
        a(f"v_add_f32_dpp v{T + e}, v{ACC + 4 * e + 2}, v{T + e} row_shl:8 {DPPM}")
    for e in range(8):
        a(f"v_add_f32_dpp v{T + e}, v{ACC + 4 * e + 3}, v{T + e} row_shl:12 {DPPM}")


def sum8_b64(r):
    for t in range(4):
        a(f"v_pk_add_f32 v[{r + 4 * t}:{r + 4 * t + 1}], v[{r + 4 * t}:{r + 4 * t + 1}], v[{r + 4 * t + 2}:{r + 4 * t + 3}]")
    a(f"v_pk_add_f32 v[{r}:{r + 1}], v[{r}:{r + 1}], v[{r + 4}:{r + 5}]")
    a(f"v_pk_add_f32 v[{r + 8}:{r + 9}], v[{r + 8}:{r + 9}], v[{r + 12}:{r + 13}]")
    a(f"v_pk_add_f32 v[{r}:{r + 1}], v[{r}:{r + 1}], v[{r + 8}:{r + 9}]")


def modb_loads():
    a(f"global_load_dwordx4 v[132:135], v124, {sp(sBA)} offset:-4096 sc1")
    a(f"global_load_dwordx4 v[136:139], v124, {sp(sBA)} sc1")
    a(f"global_load_dwordx4 v[140:143], v125, {sp(sBA)} sc1")


W, F, ACC = 16, 48, 16
KR, VR, SA, VT, OA = 16, 48, 80, 16, 80


def sec_ffn():
    a.label("L_FF")
    a(f"s_cmp_ge_u32 s{sM}, 14")
    a("s_cbranch_scc1 L_fin2")
    a(f"s_mul_i32 s{sT0}, s{sG}, 14")
    a(f"s_add_u32 s{sT0}, s{sT0}, s{sM}")
    a(f"s_lshl_b32 s{sT0}, s{sT0}, 5")
    a(f"s_mul_i32 s{sT1}, s{sT4}, {128 * 3584}")
    a(f"s_add_u32 s{sT0}, s{sT0}, s{sT1}")
    a(f"s_add_u32 s{sT0}, s{sT0}, 3584")
    a("v_lshrrev_b32 v6, 1, v3")
    a("v_and_b32 v7, 1, v3")
    a("v_and_b32 v5, 3, v1")
    a("v_lshlrev_b32 v8, 6, v6")
    a("v_lshl_add_u32 v8, v7, 2, v8")
    a("v_lshl_add_u32 v8, v5, 3, v8")
    a("v_mul_u32_u24 v10, 3584, v8")
    a("v_and_b32 v9, 1, v2")
    a("v_lshl_add_u32 v10, v9, 4, v10")
    a(f"v_add_u32 v10, s{sT0}, v10")
    a("v_mov_b32 v11, 0")
    a("v_cmp_lt_u32 vcc, 1, v2")
    a(f"v_mov_b32 v12, s{sWG}")
    a(f"v_mov_b32 v13, s{sWG + 1}")
    a(f"v_mov_b32 v14, s{sWU}")
    a(f"v_mov_b32 v15, s{sWU + 1}")
    a("v_cndmask_b32 v12, v12, v14, vcc")
    a("v_cndmask_b32 v13, v13, v15, vcc")
    a("v_lshl_add_u64 v[12:13], v[10:11], 0, v[12:13]      ; row +1")
    a(f"v_mov_b32 v10, {2 * 3584}")
    a("v_lshl_add_u64 v[14:15], v[10:11], 0, v[12:13]      ; row +3")
    a(f"v_mov_b32 v10, {32 * 3584}")
    a(f"s_lshl_b32 s{sT0}, s{sT4}, 10")
    a("v_and_b32 v9, 15, v0")
    a("s_barrier")
    for half in range(2):
        for jj in range(4):
            r, off = ((12, 3584 * (jj - 1)) if jj < 3 else (14, 0))
            a(f"global_load_dwordx4 {vr(W + 16 * half + 4 * jj, 4)}, v[{r}:{r + 1}], off offset:{off}{NTW}")
        if half == 0:
            a("v_lshl_add_u64 v[12:13], v[10:11], 0, v[12:13]")
            a("v_lshl_add_u64 v[14:15], v[10:11], 0, v[14:15]")
    a("v_lshlrev_b32 v12, 4, v9")
    a("v_lshl_add_u32 v12, v3, 12, v12")
    a("s_waitcnt vmcnt(8)")
    for ins in sentinel_ops(range(132, 144), 14):
        a(ins)
    a("s_cbranch_vccz L_FF1")
    lab = poll_begin()
    modb_loads()
    poll_mid()
    for ins in sentinel_ops(range(132, 144), 14):
        a(ins)
    poll_end(lab)
    a.label("L_FF1")
    stamp(7)
    XV, GA, P0, P1 = 96, 104, 112, 84
    unpack(XV, 128, 4)
    unpack(GA, 132, 4)
    unpack(P0, 140, 4)
    for i in range(8):
        a(f"v_add_f32 v{P0 + i}, 1.0, v{P0 + i}")
    for i in range(4):
        a(f"v_cvt_pk_bf16_f32 v{92 + i}, v{P0 + 2 * i}, v{P0 + 2 * i + 1}")
    unpack(P0, 92, 4)
    perms8(W, F, waits=[6, 4, 2, 0])
    stamp(9)
    for e in range(8):
        a(mfma(ACC + 4 * e, 136, F + 4 * e))
    a(f"s_lshl_b32 s{sT1}, s{sT4}, 9")
    a(f"s_add_u32 s{sT1}, s{sT1}, {LY}")
    a("v_lshlrev_b32 v5, 7, v3")
    a("v_lshl_add_u32 v5, v2, 5, v5")
    a(f"v_add_u32 v5, s{sT1}, v5")
    diagX_reduce(ACC, 80)
    for e in range(8):
        a(mfma(ACC + 4 * e, 92, F + 4 * e))
    set_exec(0x000F000F000F000F)
    a(f"ds_write_b128 v5, v[80:83] offset:{LV - LY}")
    a(f"ds_write_b128 v5, v[84:87] offset:{LV - LY + 16}")
    set_exec(-1)
    a("s_waitcnt lgkmcnt(0)")
    diagX_reduce(ACC, 80)
    set_exec(0x000F000F000F000F)
    a(f"ds_write_b128 v5, v[80:83] offset:{LU - LY}")
    a(f"ds_write_b128 v5, v[84:87] offset:{LU - LY + 16}")
    set_exec(-1)
    a("s_waitcnt lgkmcnt(0)")
    a("s_barrier                      ; 3: u, v partials")
    for i in range(8):
        a(f"v_mul_f32 v{P1 + i}, v{GA + i}, v{P0 + i}")
    for i in range(8):
        a(f"v_mul_f32 v{P0 + i}, v{XV + i}, v{P0 + i}")
    a("v_and_b32 v6, 1, v0")
    a("v_lshlrev_b32 v6, 4, v6")
    a("v_mov_b32 v7, 0x3f80")
    a("v_lshlrev_b32 v6, v6, v7")
    a("v_lshrrev_b32 v7, 1, v9")
    for x in range(8):
        a(f"v_cmp_eq_u32 vcc, {x}, v7")
        a(f"v_cndmask_b32 v{(120 + x) if x < 4 else (88 + x)}, 0, v6, vcc")
    base(sBA, sWS, sT0, H4)
    base(sBB, sWS, sT0, X1)
    a("v_add_u32 v13, 0x4000, v12")
    a(f"s_lshl_b32 s{sT1}, s{sT4}, 2")
    a(f"s_add_u32 s{sT1}, s{sT1}, {LST}")
    a("v_and_b32 v6, 3, v1")
    a("v_lshlrev_b32 v6, 5, v6")
    a("v_lshl_add_u32 v6, v3, 3, v6")
    a(f"v_add_u32 v6, s{sT1}, v6")
    stamp(8)
    lab = poll_begin()
    for t in range(4):
        for hf in range(2):
            a(f"global_load_dwordx4 {vr(16 + 8 * t + 4 * hf, 4)}, v{12 + hf}, {sp(sBA)} offset:{256 * t} sc1")
    poll_mid()
    AT = 8
    seq = [mfma(80, 120, 16), mfma(8, 120, 24), mfma(80, 120, 20, 80), mfma(8, 120, 28, 8),
           mfma(80, 92, 32, 80), mfma(8, 92, 40, 8), mfma(80, 92, 36, 80), mfma(8, 92, 44, 8)]
    interleave(seq, sentinel_ops(range(16, 48), 14), 2)
    poll_end(lab)
    att = [80, 82, 8, 10]
    for i in range(4):
        a(f"v_pk_fma_f32 v[{P0 + 2 * i}:{P0 + 2 * i + 1}], v[{att[i]}:{att[i] + 1}], v[{P1 + 2 * i}:{P1 + 2 * i + 1}], v[{P0 + 2 * i}:{P0 + 2 * i + 1}]")
    for i in range(4):
        a(f"v_cvt_pk_bf16_f32 v{84 + i}, v{P0 + 2 * i}, v{P0 + 2 * i + 1}")
    st = []
    for i in range(4):
        st.append(f"v_pk_fma_f32 v[{XV + 2 * i}:{XV + 2 * i + 1}], v[{att[i]}:{att[i] + 1}], v[{GA + 2 * i}:{GA + 2 * i + 1}], v[{XV + 2 * i}:{XV + 2 * i + 1}]")
    st.append(f"v_pk_mul_f32 v[8:9], v[{XV}:{XV + 1}], v[{XV}:{XV + 1}]")
    st.append(f"v_pk_add_f32 v[14:15], v[{XV}:{XV + 1}], v[{XV + 2}:{XV + 3}]")
    for i in range(1, 4):
        st.append(f"v_pk_fma_f32 v[8:9], v[{XV + 2 * i}:{XV + 2 * i + 1}], v[{XV + 2 * i}:{XV + 2 * i + 1}], v[8:9]")
        if i > 1:
            st.append(f"v_pk_add_f32 v[14:15], v[14:15], v[{XV + 2 * i}:{XV + 2 * i + 1}]")
    st.append("v_add_f32 v8, v8, v9")
    st.append("v_add_f32 v14, v14, v15")
    st.append("v_permlane32_swap_b32 v14, v8")
    st.append("v_add_f32 v14, v14, v8")
    interleave([mfma(ACC + 4 * e, 84, F + 4 * e) for e in range(8)], st, 2)
    d1 = [f"v_add_f32_dpp v{104 + e}, v{ACC + 4 * e + 1}, v{ACC + 4 * e} row_shl:4 {DPPM}" for e in range(8)]
    d2 = [f"v_add_f32_dpp v{104 + e}, v{ACC + 4 * e + 2}, v{104 + e} row_shl:8 {DPPM}" for e in range(8)]
    d3 = [f"v_add_f32_dpp v{104 + e}, v{ACC + 4 * e + 3}, v{104 + e} row_shl:12 {DPPM}" for e in range(8)]
    for ins in d1[:3]:
        a(ins)
    a(f"v_add_f32_dpp v14, v14, v14 quad_perm:[1,0,3,2] {DPPM}")
    for ins in d1[3:6]:
        a(ins)
    a(f"v_add_f32_dpp v14, v14, v14 quad_perm:[2,3,0,1] {DPPM}")
    for ins in d2[:3]:
        a(ins)
    a("v_mov_b32 v15, v14")
    for ins in d1[6:] + d2[3:5]:
        a(ins)
    a("v_permlane16_swap_b32 v15, v14")
    for ins in d2[5:]:
        a(ins)
    a("v_add_f32 v14, v14, v15")
    for ins in d3:
        a(ins)
    set_exec(0x000F000F000F000F)
    a("ds_write_b128 v5, v[104:107]")
    a("ds_write_b128 v5, v[108:111] offset:16")
    set_exec(0x0000111100001111)
    a("ds_write_b32 v6, v14")
    set_exec(-1)
    a("s_waitcnt lgkmcnt(0)")
    a("s_barrier")
    stamp(10)
    a(f"s_cmp_lg_u32 s2, {(16 + 13) * 8}")
    a("s_cbranch_scc1 L_fin2")
    for i in range(4):
        a(f"v_cvt_pk_bf16_f32 v{16 + i}, v{XV + 2 * i}, v{XV + 2 * i + 1}")
    a(f"global_store_dwordx4 v124, v[16:19], {sp(sBB)} sc1")
    a.label("L_fin2")
    finish_wave()

    a.label("L_FF0")
    a(f"s_cmp_ge_u32 s{sM}, 14")
    a("s_cbranch_scc1 L_fin2")
    a(f"s_cmp_lg_u32 s{sWAVE}, 0")
    a("s_cbranch_scc1 L_fin2")
    a("v_bfe_u32 v8, v0, 3, 2")
    a("v_lshlrev_b32 v5, 7, v8")
    a("v_and_b32 v6, 7, v0")
    a("v_lshl_add_u32 v5, v6, 3, v5")
    a("v_lshrrev_b32 v6, 5, v0")
    a("v_lshl_add_u32 v5, v6, 2, v5")
    a("v_add_u32 v6, 64, v5")
    a("v_lshlrev_b32 v8, 5, v8")
    a(f"s_mul_i32 s{sT0}, s{sG}, 14")
    a(f"s_add_u32 s{sT0}, s{sT0}, s{sM}")
    a(f"s_lshl_b32 s{sT0}, s{sT0}, 7")
    base(sBA, sWS, sT0, ACT)
    a("v_lshlrev_b32 v7, 2, v0")
    a(f"s_mov_b32 s{sT1}, {INV512:#x}")
    a("s_barrier                      ; 3")
    for k, L0 in enumerate((LU, LV)):
        o = L0 // 256
        a(f"ds_read2st64_b32 v[{16 + 8 * k}:{17 + 8 * k}], v5 offset0:{o} offset1:{o + 2}")
        a(f"ds_read2st64_b32 v[{18 + 8 * k}:{19 + 8 * k}], v5 offset0:{o + 4} offset1:{o + 6}")
        a(f"ds_read2st64_b32 v[{20 + 8 * k}:{21 + 8 * k}], v6 offset0:{o} offset1:{o + 2}")
        a(f"ds_read2st64_b32 v[{22 + 8 * k}:{23 + 8 * k}], v6 offset0:{o + 4} offset1:{o + 6}")
    a("s_waitcnt lgkmcnt(0)")
    for k in range(4):
        a(f"v_pk_add_f32 v[{16 + 4 * k}:{17 + 4 * k}], v[{16 + 4 * k}:{17 + 4 * k}], v[{18 + 4 * k}:{19 + 4 * k}]")
    for k in range(4):
        a(f"v_add_f32 v{40 + k}, v{16 + 4 * k}, v{17 + 4 * k}")
    a("s_barrier                      ; 4")
    o = LY // 256
    a(f"ds_read_b128 v[24:27], v8 offset:{LST}")
    a(f"ds_read_b128 v[28:31], v8 offset:{LST + 16}")
    a(f"ds_read2st64_b32 v[16:17], v5 offset0:{o} offset1:{o + 2}")
    a(f"ds_read2st64_b32 v[18:19], v5 offset0:{o + 4} offset1:{o + 6}")
    a(f"ds_read2st64_b32 v[20:21], v6 offset0:{o} offset1:{o + 2}")
    a(f"ds_read2st64_b32 v[22:23], v6 offset0:{o + 4} offset1:{o + 6}")
    a("s_waitcnt lgkmcnt(4)")
    a("v_pk_add_f32 v[24:25], v[24:25], v[26:27]")
    a("v_pk_add_f32 v[28:29], v[28:29], v[30:31]")
    a("v_add_f32 v24, v24, v25")
    a("v_add_f32 v28, v28, v29")
    a(f"v_mul_f32 v24, s{sT1}, v24             ; mean")
    a("v_mul_f32 v25, v24, v24")
    a(f"v_fma_f32 v28, v28, s{sT1}, -v25       ; variance")
    a("v_max_f32 v28, 0, v28")
    a(f"v_add_f32 v28, {EPS:#x}, v28")
    a("v_rsq_f32 v28, v28")
    a("s_waitcnt lgkmcnt(0)")
    a("v_pk_add_f32 v[16:17], v[16:17], v[18:19]")
    a("v_pk_add_f32 v[20:21], v[20:21], v[22:23]")
    a("v_add_f32 v16, v16, v17")
    a("v_add_f32 v17, v20, v21")
    a("v_fma_f32 v16, -v24, v40, v16")
    a("v_fma_f32 v17, -v24, v41, v17")
    a("v_fma_f32 v16, v16, v28, v42          ; gate")
    a("v_fma_f32 v17, v17, v28, v43          ; up")
    a(f"v_mul_f32 v18, {0x80000000 | LOG2E:#x}, v16")
    a("v_exp_f32 v18, v18")
    a("v_mul_f32 v16, v16, v17")
    a("v_add_f32 v18, 1.0, v18")
    a("v_rcp_f32 v18, v18")
    a("v_mul_f32 v16, v16, v18")
    a("v_mov_b32 v17, v16")
    a("v_permlane32_swap_b32 v16, v17")
    a("v_cvt_pk_bf16_f32 v16, v16, v17")
    set_exec(0xFFFFFFFF)
    a(f"global_store_dword v7, v16, {sp(sBA)} sc1")
    stamp(11)
    finish_wave()


def wq_pf():
    a(f"s_lshl_b32 s{sT0}, s{sT0}, 6")
    a(f"s_add_u32 s{sT0}, s{sT0}, s{sT1}")
    a(f"s_lshl_b32 s{sT0}, s{sT0}, 10")
    a("v_lshlrev_b32 v8, 13, v14")
    a("v_lshl_add_u32 v8, v15, 7, v8")
    a(f"v_add_u32 v8, s{sT0}, v8")
    prefetch(8, sWQ)


def sec_entry():
    a(f"{NAME}_kernel:")
    a("s_load_dwordx16 s[4:19], s[0:1], 0")
    a("s_load_dwordx8 s[20:27], s[0:1], 64")
    a("s_load_dwordx2 s[30:31], s[0:1], 104")
    if OPT["stamps"]:
        a("v_mov_b32 v126, 0")
        a("s_memrealtime s[100:101]")
    a("s_cmp_ge_u32 s2, 256")
    a("s_cbranch_scc1 L_exit")
    a("v_lshrrev_b32 v1, 6, v0")
    if OPT["pf"]:
        a(f"s_getpc_b64 {sp(sPC)}")
        a.label("L_pc0")
        a("v_lshlrev_b32 v2, 7, v0")
    a(f"v_readfirstlane_b32 s{sWAVE}, v1")
    if OPT["pf"]:
        a(f"s_sub_u32 s{sPC}, s{sPC}, L_pc0-L_code0")
        a(f"s_subb_u32 s{sPC + 1}, s{sPC + 1}, 0")
        a("v_cmp_gt_u32 vcc, (L_exit-L_code0)/128, v0")
        a("s_cbranch_vccz L_nopf")
        a("s_mov_b64 exec, vcc")
        a(f"global_load_dword v127, v2, {sp(sPC)}")
        a("s_mov_b64 exec, -1")
        a.label("L_nopf")
    a("v_and_b32 v0, 63, v0")
    a(f"s_and_b32 s{sT1}, s2, 7")
    a(f"s_lshr_b32 s{sT2}, s2, 3")
    a("v_lshrrev_b32 v1, 2, v0        ; l>>2")
    a("v_and_b32 v2, 3, v0            ; l&3")
    a("v_lshrrev_b32 v3, 4, v0        ; l>>4")
    a("v_mov_b32 v4, 0")
    a("v_and_b32 v5, 3, v1")
    a("v_lshrrev_b32 v14, 3, v0")
    a("v_and_b32 v15, 7, v0")
    a("s_cmp_lt_u32 s2, 128")
    a("s_cbranch_scc1 L_G")
    a(f"s_sub_u32 s{sT2}, s{sT2}, 16             ; a = 4b + s")
    a(f"s_and_b32 s{sT0}, s{sT2}, 12")
    a(f"s_lshl_b32 s{sT0}, s{sT0}, 1")
    a(f"s_add_u32 s{sT0}, s{sT0}, s{sT1}")
    a(f"s_lshl_b32 s{sT0}, s{sT0}, 4")
    a(f"s_and_b32 s{sT3}, s{sT2}, 3")
    a(f"s_add_u32 s{sT0}, s{sT0}, s{sT3}")
    a(f"s_lshl_b32 s{sT0}, s{sT0}, 3")
    a(f"s_add_u32 s{sT0}, s{sT0}, s{sWAVE}")
    a(f"s_lshl_b32 s{sT0}, s{sT0}, 13")
    a(f"s_add_u32 s{sT0}, s{sT0}, {3072 * 256 + 4096}")
    a("v_lshlrev_b32 v6, 8, v5")
    a("v_lshl_add_u32 v6, v3, 6, v6")
    a("v_lshl_add_u32 v6, v2, 4, v6")
    a("v_lshlrev_b32 v7, 4, v0")
    a("v_lshlrev_b32 v8, 2, v2")
    a(f"ds_write_b32 v8, v4 offset:{LQF}")
    a("s_waitcnt lgkmcnt(0)")
    a("s_barrier                      ; 0")
    base(sBA, sK, sT0)
    base(sBB, sV, sT0)
    a(f"global_load_dword v12, v4, {sp(sWS)} sc1      ; epoch")
    if OPT["ahelp"]:
        a(f"s_cmp_lg_u32 s{sWAVE}, 0")
        a("s_cbranch_scc1 L_nopfq")
        a(f"s_add_u32 s{sT0}, s{sT2}, 48")
        wq_pf()
        a.label("L_nopfq")
    if OPT["athr"] < 8:
        a(f"s_cmp_lt_u32 s{sWAVE}, {OPT['athr']}")
        a("s_cbranch_scc1 L_Ald")
        a("s_waitcnt vmcnt(0)")
        a.label("L_Ald")
    for u in range(8):
        a(f"global_load_dwordx4 {vr(KR + 4 * u, 4)}, v6, {sp(sBA)} offset:{1024 * u - 4096}{NT}")
    for u in range(8):
        a(f"global_load_dwordx4 {vr(VR + 4 * u, 4)}, v7, {sp(sBB)} offset:{1024 * u - 4096}{NT}")
    a("s_branch L_A2")
    a.label("L_G")
    a(f"s_and_b32 s{sT3}, s{sT2}, 1")
    a(f"s_lshr_b32 s{sT0}, s{sT2}, 2")
    a(f"s_and_b32 s{sT0}, s{sT0}, 2")
    a(f"s_or_b32 s{sKIND}, s{sT3}, s{sT0}")
    if OPT["pfa"]:
        a("v_lshrrev_b32 v6, 1, v0")
        a(f"v_lshl_add_u32 v6, s{sT2}, 5, v6")
        a("v_mul_u32_u24 v6, 6144, v6")
        a("v_and_b32 v7, 1, v0")
        a("v_lshl_add_u32 v6, v7, 10, v6")
        a(f"v_lshl_add_u32 v6, s{sT1}, 7, v6")
        a(f"s_cmp_lg_u32 s{sWAVE}, 0")
        a("s_cbranch_scc1 L_nopfa")
        a("s_waitcnt lgkmcnt(0)")
        prefetch(6, sWM)
        a.label("L_nopfa")
    a(f"s_bfe_u32 s{sT0}, s{sT2}, 0x20001")
    a(f"s_lshl2_add_u32 s{sCNT}, s{sT1}, s{sT0}      ; p = 4g + ((m>>1)&3)")
    a(f"s_cmp_eq_u32 s{sKIND}, 1")
    a("s_cbranch_scc1 L_GA")
    a(f"s_sub_u32 s{sT4}, s{sWAVE}, 1")
    a(f"s_cmp_ge_u32 s{sT4}, 4")
    a("s_cbranch_scc1 L_nopfw")
    a(f"s_lshr_b32 s{sT0}, s{sT2}, 1")
    a(f"s_lshl2_add_u32 s{sT0}, s{sT3}, s{sT0}")
    a(f"s_lshl2_add_u32 s{sT0}, s{sT0}, s{sT4}")
    a("s_waitcnt lgkmcnt(0)")
    wq_pf()
    a.label("L_nopfw")
    a(f"s_cmp_eq_u32 s{sKIND}, 3")
    a("s_cbranch_scc1 L_GB")
    a(f"s_lshl_b32 s{sT0}, s{sWAVE}, 9")
    a(f"s_add_u32 s{sT0}, s{sT0}, s{sT1}")
    a(f"s_lshl4_add_u32 s{sT0}, s{sT0}, s{sT2}")
    a(f"s_lshl_b32 s{sT0}, s{sT0}, 6")
    a("v_lshlrev_b32 v6, 16, v14")
    a("v_lshl_add_u32 v6, v15, 4, v6")
    a(f"s_movk_i32 s{sT3}, 8192")
    a(f"s_lshr_b32 s{sT4}, s{sT2}, 2")
    a(f"s_lshl2_add_u32 s{sT4}, s{sT1}, s{sT4}")
    a(f"s_mul_i32 s{sT4}, s{sT4}, {NREP * 128}")
    a(f"s_and_b32 s{sCNT}, s{sT2}, 2")
    a(f"s_add_u32 s{sCNT}, s{sCNT}, s{sWAVE}")
    a(f"s_lshl2_add_u32 s{sT4}, s{sCNT}, s{sT4}")
    a(f"s_add_u32 s{sT4}, s{sT4}, {FL:#x}")
    a(f"v_and_b32 v96, {NREP - 1}, v0")
    a(f"v_lshl_add_u32 v96, v96, 7, s{sT4}")
    a("s_waitcnt lgkmcnt(0)")
    base(sBB, sWQ, sT0)
    a(f"global_load_dword v12, v4, {sp(sWS)} sc1      ; epoch")
    a(f"s_cmp_lg_u32 s{sWAVE}, 1")
    a("s_cbranch_scc1 L_G_ld")
    a(f"global_load_dword v127, v96, {sp(sWS)} sc1")
    a.label("L_G_ld")
    for j in range(8):
        a(f"global_load_dwordx4 {vr(W + 4 * j, 4)}, v6, {sp(sBB)}{NT}")
        if j < 7:
            a(f"v_add_u32 v6, s{sT3}, v6")
    a(f"s_cmp_eq_u32 s{sKIND}, 1")
    a("s_cbranch_scc0 L_GQ2")
    a("s_branch L_GM2")
    a.label("L_GA")
    a(f"s_cmp_ge_u32 s{sWAVE}, 4")
    a("s_cbranch_scc1 L_GQA")
    a(f"s_lshl_b32 s{sT0}, s{sCNT}, 5")
    a(f"s_mul_i32 s{sT3}, s{sWAVE}, {128 * 6144}")
    a(f"s_add_u32 s{sT0}, s{sT0}, s{sT3}")
    a("v_lshlrev_b32 v5, 10, v5")
    a("v_lshl_add_u32 v5, v3, 6, v5")
    a("v_lshl_add_u32 v5, v2, 4, v5")
    a(f"v_lshl_add_u32 v5, s{sWAVE}, 8, v5")
    a("v_mul_u32_u24 v6, 49152, v1")
    a("v_and_b32 v7, 1, v2")
    a("v_lshl_add_u32 v6, v7, 4, v6")
    a("v_lshrrev_b32 v7, 1, v2")
    a("v_lshl_add_u32 v6, v7, 10, v6")
    a("v_mov_b32 v96, 0")
    a(f"s_movk_i32 s{sT3}, 6144")
    a("s_waitcnt lgkmcnt(0)")
    base(sBB, sWM, sT0)
    a(f"global_load_dwordx4 v[8:11], v5, {sp(sC)}")
    a("s_branch L_G_ld")
    a.label("L_GQA")
    a("s_setprio 3")
    a("v_and_b32 v7, 15, v0")
    a("v_lshlrev_b32 v13, 10, v3")
    a("v_lshl_add_u32 v14, v7, 4, v13")
    a("v_lshl_add_u32 v15, v7, 1, v13")
    a(f"v_lshl_add_u32 v15, s{sCNT}, 5, v15")
    a("s_waitcnt lgkmcnt(0)")
    a(f"s_cmp_lg_u32 s{sWAVE}, 7")
    a("s_cbranch_scc1 L_GQA2")
    a(f"global_load_dword v12, v4, {sp(sWS)} sc1      ; epoch")
    for t in range(4):
        a(f"global_load_dwordx4 {vr(80 + 4 * t, 4)}, v14, {sp(sX)} offset:{256 * t}")
    a(f"global_load_ushort v13, v15, {sp(sX)}")
    a("s_branch L_GQA2")
    a.label("L_GB")
    a(f"s_cmp_lg_u32 s{sWAVE}, 7")
    a("s_cbranch_scc1 L_GB1")
    a("s_setprio 3")
    a(f"s_mul_i32 s{sT0}, s{sCNT}, {CLR_PER_WG * 1024}")
    a("v_lshlrev_b32 v6, 4, v0")
    for i in range(4):
        a(f"v_mov_b32 v{8 + i}, -1")
    a("s_waitcnt lgkmcnt(0)")
    base(sBA, sWS, sT0, CLR + 4096)
    a(f"global_load_dword v12, v4, {sp(sWS)} sc1      ; epoch")
    for i in range(CLR_PER_WG):
        a(f"global_store_dwordx4 v6, v[8:11], {sp(sBA)} offset:{1024 * i - 4096} sc1")
    a("s_branch L_GB2")


def ids():
    a(f"s_mov_b32 s{sG}, s{sT1}")
    a(f"s_mov_b32 s{sM}, s{sT2}")
    sels()
    if OPT["stamps"]:
        a("v_writelane_b32 v126, s100, 0")


def silu_frag():
    unpack(80, 8, 4)
    for i in range(8):
        a(f"v_mul_f32 v{88 + i}, {0x80000000 | LOG2E:#x}, v{80 + i}")
    for i in range(8):
        a(f"v_exp_f32 v{88 + i}, v{88 + i}")
    for i in range(8):
        a(f"v_add_f32 v{88 + i}, 1.0, v{88 + i}")
    for i in range(8):
        a(f"v_rcp_f32 v{88 + i}, v{88 + i}")
    for i in range(8):
        a(f"v_mul_f32 v{80 + i}, v{80 + i}, v{88 + i}")
    for i in range(4):
        a(f"v_cvt_pk_bf16_f32 v{8 + i}, v{80 + 2 * i}, v{81 + 2 * i}")


def xcc_flag():
    a(f"s_lshr_b32 s{sT0}, s{sM}, 2")
    a(f"s_lshl2_add_u32 s{sT0}, s{sG}, s{sT0}")
    a(f"s_mul_i32 s{sT0}, s{sT0}, {NREP * 128}")
    a(f"s_and_b32 s{sT1}, s{sM}, 2")
    a(f"s_lshl1_add_u32 s{sT0}, s{sT1}, s{sT0}")
    a(f"s_add_u32 s{sT0}, s{sT0}, {FL + 16:#x}")
    a(f"v_and_b32 v5, {NREP - 1}, v0")
    a(f"v_lshl_add_u32 v5, v5, 7, s{sT0}")
    a(f"s_getreg_b32 s{sT0}, hwreg(HW_REG_XCC_ID, 0, 4)")
    a(f"s_xor_b32 s{sT0}, s{sTAG}, s{sT0}")
    a(f"v_mov_b32 v6, s{sT0}")
    a(f"global_store_dword v5, v6, {sp(sWS)}")


def cf_poll():
    base(sBB, sWS, None, CF)
    a("v_and_b32 v5, 31, v0")
    a("v_lshlrev_b32 v5, 7, v5")
    lab = poll_begin()
    a(f"global_load_dword v6, v5, {sp(sBB)} sc1")
    poll_mid(sleep=4)
    a(f"v_cmp_ne_u32 vcc, s{sTAG}, v6")
    poll_end(lab)


def tile64_tail(first):
    for e in range(first, 8):
        a(mfma(ACC + 4 * e, 8, F + 4 * e))
    for e in range(8):
        a(f"v_add_f32_dpp v{80 + e}, v{ACC + 4 * e + 1}, v{ACC + 4 * e} row_shl:8 {DPPM}")
    set_exec(0x00FF00FF00FF00FF)
    a("ds_write_b128 v6, v[80:83]")
    a("ds_write_b128 v6, v[84:87] offset:16")
    set_exec(-1)


def tile64_addr():
    a("v_lshlrev_b32 v6, 8, v3")
    a("v_lshl_add_u32 v6, v15, 5, v6")
    a(f"v_lshl_add_u32 v6, s{sWAVE}, 10, v6")
    a("v_lshlrev_b32 v7, 3, v0")
    a(f"v_lshl_add_u32 v7, s{sWAVE}, 9, v7")


def tile64_sum():
    for t in range(4):
        a(f"ds_read2st64_b64 {vr(16 + 4 * t, 4)}, v7 offset0:{4 * t} offset1:{4 * t + 2}")


def sec_gm():
    a.label("L_GM2")
    ids()
    stamp(1)
    a("s_waitcnt vmcnt(8)")
    silu_frag()
    a("v_lshlrev_b32 v5, 7, v3")
    a("v_lshl_add_u32 v5, v2, 5, v5")
    a(f"v_lshl_add_u32 v5, s{sWAVE}, 9, v5")
    perms8(W, F, waits=[6, 4, 2, 0])
    for e in range(8):
        a(mfma(ACC + 4 * e, 8, F + 4 * e))
    diagX_reduce(ACC, 48)
    set_exec(0x000F000F000F000F)
    a("ds_write_b128 v5, v[48:51]")
    a("ds_write_b128 v5, v[52:55] offset:16")
    set_exec(-1)
    a("s_waitcnt lgkmcnt(0)")
    stamp(2)
    a("s_barrier                      ; 1")
    if OPT["bhelp"]:
        a(f"s_lshl1_add_u32 s{sT0}, s{sM}, s{sWAVE}")
        a(f"s_add_u32 s{sT0}, s{sT0}, 14")
        a(f"s_mul_i32 s{sT0}, s{sT0}, {16 * 6144}")
        a(f"s_lshl_b32 s{sT1}, s{sG}, 9")
        a(f"s_add_u32 s{sT0}, s{sT0}, s{sT1}")
        a(f"s_add_u32 s{sT0}, s{sT0}, 2048")
        a("v_mul_u32_u24 v8, 6144, v1")
        a("v_lshl_add_u32 v8, v2, 7, v8")
        a(f"v_add_u32 v8, s{sT0}, v8")
        a("s_barrier")
        prefetch(8, sWM)
    a("s_branch L_WO")


def sec_gb():
    a.label("L_GB1")
    a("s_waitcnt lgkmcnt(0)")
    a.label("L_GB2")
    ids()
    a("v_lshlrev_b32 v5, 10, v5")
    a("v_lshl_add_u32 v5, v3, 5, v5")
    a("v_and_b32 v7, 1, v0")
    a("v_lshl_add_u32 v5, v7, 4, v5")
    a(f"v_lshl_add_u32 v16, s{sWAVE}, 7, v5")
    a(f"s_lshl_b32 s{sT0}, s{sCNT}, 7")
    a(f"s_mul_i32 s{sT3}, s{sWAVE}, {64 * 6144}")
    a(f"s_add_u32 s{sT0}, s{sT0}, s{sT3}")
    base(sBC, sWM, sT0, 2048)
    a(f"s_lshl_b32 s{sT4}, s{sCNT}, 9           ; p*512")
    a("v_mul_u32_u24 v13, 49152, v14")
    a("v_lshl_add_u32 v13, v15, 4, v13")
    a(f"s_movk_i32 s{sT3}, 6144")
    a(f"s_cmp_lg_u32 s{sWAVE}, 7")
    a("s_cbranch_scc1 L_GB3")
    a("s_waitcnt vmcnt(0)")
    make_tag(12)
    base(sBB, sWS, None, CF)
    a(f"v_lshlrev_b32_e64 v5, 7, s{sCNT}")
    a(f"v_mov_b32 v6, s{sTAG}")
    set_exec(1)
    a(f"global_store_dword v5, v6, {sp(sBB)} sc1")
    set_exec(-1)
    xcc_flag()
    a("s_setprio 0")
    a.label("L_GB3")
    stamp(1)
    a("s_barrier")
    a(f"global_load_dwordx4 v[8:11], v16, {sp(sC)}")
    for j in range(8):
        a(f"global_load_dwordx4 {vr(W + 4 * j, 4)}, v13, {sp(sBC)}{NT}")
        if j < 7:
            a(f"v_add_u32 v13, s{sT3}, v13")
    a("s_waitcnt vmcnt(8)")
    silu_frag()
    tile64_addr()
    perms8(W, F, waits=[6, 4, 2, 0])
    tile64_tail(0)
    a(f"s_cmp_lg_u32 s{sWAVE}, 7")
    a("s_cbranch_scc1 L_GB4")
    cf_poll()
    a.label("L_GB4")
    a("s_waitcnt lgkmcnt(0)")
    stamp(2)
    a("s_barrier                      ; 1")
    a(f"s_cmp_ge_u32 s{sWAVE}, 2")
    a("s_cbranch_scc1 L_WO")
    tile64_sum()
    base(sBA, sWS, sT4, MODB)
    a("v_and_b32 v5, 2, v0")
    a("v_lshlrev_b32 v5, 7, v5")
    a("v_and_b32 v6, 32, v0")
    a("v_lshl_add_u32 v5, v6, 1, v5")
    a(f"v_lshl_add_u32 v5, s{sWAVE}, 7, v5")
    a("v_and_b32 v6, 13, v0")
    a("v_lshl_add_u32 v5, v6, 2, v5")
    a("v_bfe_u32 v6, v0, 4, 1")
    a("v_lshl_add_u32 v5, v6, 3, v5")
    a("s_waitcnt lgkmcnt(0)")
    sum8_b64(16)
    a("v_cvt_pk_bf16_f32 v12, v16, v17")
    a(f"global_store_dword v5, v12, {sp(sBA)} sc1")
    stamp(3)
    a("s_branch L_WO")


def sec_ln():
    a.label("L_GQA2")
    ids()
    stamp(1)
    a(f"s_cmp_lg_u32 s{sWAVE}, 7")
    a("s_cbranch_scc1 L_GQA3")
    a("s_waitcnt vmcnt(0)")
    make_tag(12)
    unpack(16, 80, 16)
    a("v_pk_add_f32 v[8:9], v[16:17], v[18:19]")
    for i in range(2, 16):
        a(f"v_pk_add_f32 v[8:9], v[8:9], v[{16 + 2 * i}:{17 + 2 * i}]")
    a("v_add_f32 v8, v8, v9")
    row_allsum(8)
    a(f"v_mul_f32 v8, {INV512:#x}, v8       ; mean")
    a("v_mov_b32 v9, v8")
    for i in range(16):
        a(f"v_pk_add_f32 v[{16 + 2 * i}:{17 + 2 * i}], v[{16 + 2 * i}:{17 + 2 * i}], v[8:9] neg_lo:[0,1] neg_hi:[0,1]")
    a("v_pk_mul_f32 v[10:11], v[16:17], v[16:17]")
    for i in range(1, 16):
        a(f"v_pk_fma_f32 v[10:11], v[{16 + 2 * i}:{17 + 2 * i}], v[{16 + 2 * i}:{17 + 2 * i}], v[10:11]")
    a("v_add_f32 v10, v10, v11")
    row_allsum(10)
    a(f"v_mul_f32 v9, {INV512:#x}, v10      ; var")
    round_bf16([8, 9])
    a(f"v_add_f32 v9, {EPS:#x}, v9")
    round_bf16([9])
    a("v_sqrt_f32 v9, v9")
    round_bf16([9])
    a("v_rcp_f32 v9, v9")
    a("v_lshlrev_b32 v13, 16, v13")
    a("v_sub_f32 v13, v13, v8")
    round_bf16([13])
    a("v_mul_f32 v13, v13, v9")
    round_bf16([13])
    a("v_lshlrev_b32 v5, 7, v3")
    a("v_lshl_add_u32 v5, v7, 2, v5")
    a("v_add_u32 v10, 64, v5")
    a("v_lshlrev_b32 v14, 6, v3              ; b*64")
    a("v_and_b32 v8, 8, v7")
    a("v_lshl_add_u32 v14, v8, 2, v14        ; c'lo*32")
    a("v_and_b32 v8, 2, v7")
    a("v_lshl_add_u32 v14, v8, 3, v14        ; (d&1)*16")
    a("v_and_b32 v8, 4, v7")
    a("v_lshl_add_u32 v14, v8, 1, v14        ; (d>>1)*8")
    a(f"s_lshl_b32 s{sT0}, s{sCNT}, 8")
    base(sBA, sWS, sT0, H1)
    a(f"v_mov_b32 v9, s{sTAG}")
    stamp(2)
    a("s_barrier                      ; 1")
    a("ds_read2st64_b32 v[80:81], v5 offset0:0 offset1:2")
    a("ds_read2st64_b32 v[82:83], v5 offset0:4 offset1:6")
    a("ds_read2st64_b32 v[84:85], v10 offset0:0 offset1:2")
    a("ds_read2st64_b32 v[86:87], v10 offset0:4 offset1:6")
    a("s_waitcnt lgkmcnt(0)")
    a("v_pk_add_f32 v[80:81], v[80:81], v[82:83]")
    a("v_pk_add_f32 v[84:85], v[84:85], v[86:87]")
    a("v_add_f32 v80, v80, v81               ; sa")
    a("v_add_f32 v81, v84, v85               ; ca")
    round_bf16([80, 81])
    a("v_add_f32 v81, 1.0, v81")
    round_bf16([81])
    a("v_mul_f32 v81, v13, v81")
    round_bf16([81])
    a("v_add_f32 v80, v81, v80")
    a(f"v_mov_b32_dpp v81, v80 quad_perm:[1,1,3,3] {DPPM}")
    a("v_cvt_pk_bf16_f32 v8, v80, v81")
    set_exec(0x5555555555555555)
    a(f"global_store_dwordx2 v14, v[8:9], {sp(sBA)} sc1")
    set_exec(-1)
    stamp(3)
    xcc_flag()
    if OPT["bhelp"]:
        a("s_barrier                      ; 1b")
    cf_poll()
    a("s_branch L_WO")
    a.label("L_GQA3")
    a("s_barrier                      ; 1")
    if OPT["bhelp"]:
        a("s_barrier                      ; 1b")
    a("s_branch L_WO")


def sec_gq():
    a.label("L_GQ2")
    ids()
    stamp(1)
    a(f"s_lshl_b32 s{sT0}, s{sWAVE}, 10")
    base(sBA, sWS, sT0, H1)
    a(f"s_lshl_b32 s{sT0}, s{sWAVE}, 9")
    base(sBC, sWS, sT0, CF)
    a("v_lshlrev_b32 v5, 6, v1")
    a("v_and_b32 v7, 1, v0")
    a("v_lshl_add_u32 v5, v7, 5, v5")
    a("v_lshlrev_b32 v98, 7, v2")
    tile64_addr()
    a(f"s_lshl_b32 s{sT0}, s{sG}, 12")
    a(f"s_lshl_b32 s{sT1}, s{sM}, 6")
    a(f"s_add_u32 s{sT0}, s{sT0}, s{sT1}")
    a(f"s_lshl_b32 s{sT1}, s{sWAVE}, 11")
    a(f"s_add_u32 s{sT0}, s{sT0}, s{sT1}")
    a("v_and_b32 v97, 31, v0")
    a(f"v_lshl_add_u32 v97, v97, 2, s{sT0}")
    a("v_and_b32 v99, 32, v0")
    a("v_lshl_add_u32 v97, v99, 5, v97")
    a("v_lshlrev_b32 v99, 1, v97")
    base(sBB, sWS, None, QS)
    a(f"s_cmp_ge_u32 s{sWAVE}, 2")
    a("s_cbranch_scc1 L_GQ3")
    a(f"global_load_dword v127, v97, {sp(sBB)} sc1")
    a.label("L_GQ3")
    a("s_waitcnt vmcnt(8)")
    make_tag(12)
    perms8(W, F, waits=[6, 4, 2, 0])
    stamp(4)
    lab = poll_begin()
    a(f"global_load_dwordx4 v[8:11], v5, {sp(sBA)} sc1")
    a(f"global_load_dwordx4 v[12:15], v5, {sp(sBA)} offset:16 sc1")
    a(f"global_load_dword v84, v98, {sp(sBC)} sc1")
    poll_mid()
    a(f"v_xor_b32 v80, s{sTAG}, v9")
    a(f"v_xor_b32 v81, s{sTAG}, v11")
    a("v_mov_b32 v9, v12")
    a("v_mov_b32 v11, v14")
    a(f"v_xor_b32 v82, s{sTAG}, v13")
    a(f"v_xor_b32 v83, s{sTAG}, v15")
    interleave([mfma(ACC + 4 * e, 8, F + 4 * e) for e in range(2)],
               [f"v_xor_b32 v84, s{sTAG}, v84", "v_or3_b32 v80, v80, v81, v82", "v_or3_b32 v80, v80, v83, v84", "v_cmp_ne_u32 vcc, 0, v80"], 2)
    poll_end(lab)
    tile64_tail(2)
    a("s_waitcnt lgkmcnt(0)")
    stamp(5)
    a("s_barrier                      ; 1")
    a(f"s_cmp_ge_u32 s{sWAVE}, 2")
    a("s_cbranch_scc1 L_WO")
    tile64_sum()
    base(sBA, sWS, None, H2G)
    a(f"s_getreg_b32 s{sT0}, hwreg(HW_REG_XCC_ID, 0, 4)")
    a(f"s_xor_b32 s{sT0}, s{sTAG}, s{sT0}")
    a(f"v_mov_b32 v9, s{sT0}")
    a("s_waitcnt lgkmcnt(0)")
    sum8_b64(16)
    a("v_cvt_pk_bf16_f32 v8, v16, v17")
    a(f"global_store_dword v97, v8, {sp(sBB)}")
    a("s_waitcnt vmcnt(0)")
    a(f"global_store_dword v96, v9, {sp(sWS)}")
    a(f"global_store_dwordx2 v99, v[8:9], {sp(sBA)} sc1")
    stamp(6)
    a("s_branch L_WO")


WD = 128


def down_loads():
    a(f"s_lshr_b32 s{sT2}, s{sM}, 1")
    a(f"s_lshl2_add_u32 s{sT0}, s{sG}, s{sT2}")
    a(f"s_lshl_b32 s{sT0}, s{sT0}, 5")
    a(f"s_lshl_b32 s{sT2}, s{sWAVE}, 18")
    a(f"s_add_u32 s{sT0}, s{sT0}, s{sT2}")
    base(sBB, sWD, sT0, 4096)
    a("v_lshlrev_b32 v6, 13, v1")
    a("v_lshl_add_u32 v6, v2, 3, v6")
    a("v_add_u32 v7, 0x20000, v6")
    for f in range(2):
        for j in range(8):
            a(f"global_load_dwordx2 {vr(WD + 16 * f + 2 * j, 2)}, v{7 if f else 6}, {sp(sBB)} offset:{1024 * j - 4096}{NTW}")


def sec_wo():
    a.label("L_WO")
    a(f"s_lshr_b32 s{sT1}, s{sWAVE}, 1")
    a(f"s_lshl2_add_u32 s{sT0}, s{sG}, s{sT1}")
    a(f"s_lshl_b32 s{sT0}, s{sT0}, 5")
    a(f"s_and_b32 s{sT2}, s{sWAVE}, 1")
    a(f"s_add_u32 s{sT0}, s{sT0}, s{sT2}")
    a(f"s_lshl_b32 s{sT0}, s{sT0}, 6            ; (512g + 128h + 4*(i&1)) * 16")
    a(f"s_add_u32 s{sT0}, s{sT0}, s{sM}")
    a(f"s_lshl_b32 s{sT0}, s{sT0}, 6")
    base(sBB, sWO, sT0)
    a("v_and_b32 v7, 15, v0")
    a("v_and_b32 v6, 1, v3")
    a("v_lshlrev_b32 v6, 16, v6")
    a("v_lshrrev_b32 v5, 1, v3")
    a("v_lshl_add_u32 v6, v5, 10, v6")
    a("v_lshl_add_u32 v6, v7, 2, v6")
    a(f"s_movk_i32 s{sT3}, 8192")
    a("s_setprio 0")
    a(f"s_lshl4_add_u32 s{sT0}, s{sG}, s{sM}")
    a(f"s_lshl2_add_u32 s{sT0}, s{sT0}, s{sWAVE}")
    a(f"s_lshl_b32 s{sT0}, s{sT0}, 13")
    a(f"v_lshl_add_u32 v8, v0, 7, s{sT0}")
    if OPT["wowait"]:
        a(f"s_and_b32 s{sT0}, s{sM}, 1")
        a(f"s_lshl_b32 s{sT0}, s{sT0}, 3")
        a(f"s_add_u32 s{sT0}, s{sT0}, s{sWAVE}")
        a(f"s_cmp_lg_u32 s{sT0}, 15")
        a("s_cbranch_scc1 L_WO0")
        a(f"s_mul_i32 s{sT0}, s{sG}, {4 * NREP * 128}")
        base(sBA, sWS, sT0, FL)
        a("v_and_b32 v9, 3, v1")
        a(f"v_mul_u32_u24 v9, {NREP * 128}, v9")
        a("v_lshl_add_u32 v9, v2, 2, v9")
        a(f"s_movk_i32 s{sCNT}, 40")
        a.label("L_WOw")
        a(f"global_load_dword v10, v9, {sp(sBA)} sc1")
        poll_mid(sleep=2)
        a(f"v_xor_b32 v10, s{sTAG}, v10")
        a("v_cmp_gt_u32 vcc, 16, v10")
        a("s_cmp_eq_u64 vcc, 0")
        a("s_cselect_b64 vcc, -1, 0")
        poll_end("L_WOw")
        a.label("L_WO0")
    a("s_barrier")
    if OPT["wopf"]:
        a(f"s_cmp_ge_u32 s{sWAVE}, 4")
        a("s_cbranch_scc1 L_WO1")
        prefetch(8, sWO)
        a.label("L_WO1")
    for j in range(8):
        for ks in range(2):
            a(f"global_load_dword v{96 + 8 * ks + j}, v6, {sp(sBB)} offset:{2048 * ks}{NTW}")
        if j < 7:
            a(f"v_add_u32 v6, s{sT3}, v6")
    a(f"s_lshl3_add_u32 s{sT0}, s{sG}, s{sWAVE}")
    a(f"s_lshl_b32 s{sT0}, s{sT0}, 11")
    base(sBA, sWS, sT0, H3O)
    a(f"s_lshl2_add_u32 s{sT0}, s{sG}, s{sT1}")
    a(f"s_lshl_b32 s{sT0}, s{sT0}, 7")
    base(sBC, sWS, sT0, H3ML)
    a("v_lshlrev_b32 v5, 4, v0")
    a("v_lshlrev_b32 v6, 5, v3")
    a("v_lshlrev_b32 v12, 3, v0")
    a(f"v_lshl_add_u32 v7, s{sWAVE}, 9, v12")
    a("s_waitcnt vmcnt(0)")
    stamp(7)
    for ks in range(2):
        for eo in range(2):
            for x in range(4):
                a(f"v_perm_b32 v{32 + 8 * ks + 4 * eo + x}, v{96 + 8 * ks + 2 * x + 1}, v{96 + 8 * ks + 2 * x}, s{sHI if eo else sLO}")
    lab = poll_begin()
    a(f"global_load_dwordx4 v[56:59], v6, {sp(sBC)} sc1")
    a(f"global_load_dwordx4 v[60:63], v6, {sp(sBC)} offset:16 sc1")
    poll_mid()
    for ins in sentinel_ops(range(56, 64), 8):
        a(ins)
    poll_end(lab)
    a(f"s_lshl4_add_u32 s{sT0}, s{sG}, s{sM}")
    a(f"s_lshl_b32 s{sT0}, s{sT0}, 8")
    base(sBB, sWS, sT0, H4)
    a("v_lshlrev_b32 v6, 2, v0")
    a("v_max3_f32 v8, v56, v58, v60")
    a("v_max_f32 v8, v8, v62")
    for s in range(4):
        a(f"v_sub_f32 v{56 + 2 * s}, v{56 + 2 * s}, v8")
    for s in range(4):
        a(f"v_exp_f32 v{56 + 2 * s}, v{56 + 2 * s}")
    a("v_mul_f32 v9, v56, v57")
    for s in range(1, 4):
        a(f"v_fmac_f32 v9, v{56 + 2 * s}, v{57 + 2 * s}")
    a("v_rcp_f32 v9, v9")
    for s in range(4):
        a(f"v_mul_f32 v{64 + s}, v{56 + 2 * s}, v9")
    stamp(8)
    lab = poll_begin()
    a(f"global_load_dwordx4 v[48:51], v5, {sp(sBA)} sc1")
    a(f"global_load_dwordx4 v[52:55], v5, {sp(sBA)} offset:1024 sc1")
    poll_mid()
    interleave([mfma(16, 48, 32), mfma(20, 48, 36), mfma(16, 52, 40, 16), mfma(20, 52, 44, 20)],
               sentinel_ops(range(48, 56), 8), 2)
    poll_end(lab)
    a("v_pk_mul_f32 v[16:17], v[16:17], v[64:65]")
    a("v_pk_mul_f32 v[20:21], v[20:21], v[64:65]")
    a("v_pk_fma_f32 v[16:17], v[18:19], v[66:67], v[16:17]")
    a("v_pk_fma_f32 v[20:21], v[22:23], v[66:67], v[20:21]")
    a("v_add_f32 v10, v16, v17")
    a("v_add_f32 v11, v20, v21")
    a("ds_write_b64 v7, v[10:11] offset:6144")
    a("s_waitcnt lgkmcnt(0)")
    stamp(9)
    a("s_barrier                      ; 3")
    a(f"s_cmp_lg_u32 s{sWAVE}, 7")
    a("s_cbranch_scc1 L_DOWN")
    for t in range(4):
        a(f"ds_read2st64_b64 {vr(16 + 4 * t, 4)}, v12 offset0:{12 + 2 * t} offset1:{13 + 2 * t}")
    a("s_waitcnt lgkmcnt(0)")
    sum8_b64(16)
    a("v_cvt_pk_bf16_f32 v8, v16, v17")
    a(f"global_store_dword v6, v8, {sp(sBB)} sc1")
    a(f"s_mul_i32 s{sT0}, s{sM}, {112 * 1024}")
    a(f"s_lshl_b32 s{sT1}, s{sG}, 7")
    a(f"s_add_u32 s{sT0}, s{sT0}, s{sT1}")
    a(f"v_lshl_add_u32 v9, v0, 10, s{sT0}")
    a(f"v_add_u32 v10, {48 * 1024}, v9")
    prefetch(9, sWD, True)
    prefetch(10, sWD, True)
    stamp(10)
    a(f"s_cmp_lg_u32 s{sKIND}, 1")
    a("s_cbranch_scc1 L_fin")
    a("s_barrier                      ; 3b")
    a(f"s_lshr_b32 s{sT1}, s{sM}, 1")
    a(f"s_lshl2_add_u32 s{sT2}, s{sG}, s{sT1}       ; col0/16")
    a(f"s_lshl_b32 s{sT0}, s{sG}, 9")
    a(f"s_and_b32 s{sT3}, s{sT1}, 1")
    a(f"s_lshl_b32 s{sT3}, s{sT3}, 5")
    a(f"s_add_u32 s{sT0}, s{sT0}, s{sT3}")
    a(f"s_and_b32 s{sT3}, s{sT1}, 2")
    a(f"s_lshl2_add_u32 s{sT0}, s{sT3}, s{sT0}")
    base(sBA, sWS, sT0, X1)
    base(sBB, sWS, sT0, MODB + 3 * 4096)
    a("v_and_b32 v7, 4, v0")
    a("v_lshlrev_b32 v5, 6, v7")
    a("v_lshl_add_u32 v5, v3, 6, v5")
    a("v_and_b32 v7, 10, v0")
    a("v_lshl_add_u32 v5, v7, 1, v5")
    a(f"s_lshl_b32 s{sT0}, s{sT2}, 5")
    base(sBC, sOUT, sT0)
    a("v_and_b32 v7, 15, v0")
    a("v_lshlrev_b32 v11, 10, v3")
    a("v_lshl_add_u32 v11, v7, 1, v11")
    a("v_and_b32 v7, 1, v0")
    a("v_lshlrev_b32 v7, 4, v7")
    a("s_barrier")
    lab = poll_begin()
    a(f"global_load_dword v8, v5, {sp(sBA)} sc1")
    a(f"global_load_dword v9, v5, {sp(sBB)} sc1")
    poll_mid()
    for ins in sentinel_ops([8, 9], 10):
        a(ins)
    poll_end(lab)
    a("v_lshrrev_b32 v8, v7, v8")
    a("v_lshrrev_b32 v9, v7, v9")
    a("v_lshlrev_b32 v8, 16, v8              ; x1")
    a("v_lshlrev_b32 v9, 16, v9              ; gb")
    stamp(12)
    a("s_barrier                      ; 4")
    for t in range(7):
        a(f"ds_read2st64_b32 v[{16 + 2 * t}:{17 + 2 * t}], v6 offset0:{40 + 2 * t} offset1:{41 + 2 * t}")
    a("s_waitcnt lgkmcnt(3)")
    a("v_pk_add_f32 v[16:17], v[16:17], v[18:19]")
    a("v_pk_add_f32 v[20:21], v[20:21], v[22:23]")
    a("v_pk_add_f32 v[16:17], v[16:17], v[20:21]")
    a("s_waitcnt lgkmcnt(0)")
    a("v_pk_add_f32 v[24:25], v[24:25], v[26:27]")
    a("v_pk_add_f32 v[16:17], v[16:17], v[28:29]")
    a("v_pk_add_f32 v[16:17], v[16:17], v[24:25]")
    a("v_add_f32 v16, v16, v17")
    a("v_fma_f32 v16, v9, v16, v8")
    a("v_cvt_pk_bf16_f32 v16, v16, v16")
    a(f"global_store_short v11, v16, {sp(sBC)}")
    stamp(13)
    a("s_cmp_lg_u32 s2, 8")
    a("s_cbranch_scc1 L_fin")
    a(f"v_mov_b32 v8, s{sTAG}")
    set_exec(1)
    a(f"global_store_dword v4, v8, {sp(sWS)} sc1")
    a.label("L_fin")
    finish_wave()


def sec_down():
    a.label("L_DOWN")
    a(f"s_cmp_lg_u32 s{sKIND}, 1")
    a("s_cbranch_scc1 L_fin")
    a("s_barrier                      ; 3b")
    down_loads()
    a(f"s_lshl_b32 s{sT0}, s{sWAVE}, 11")
    base(sBA, sWS, sT0, ACT)
    a("v_lshlrev_b32 v6, 7, v3")
    a("v_lshl_add_u32 v6, v2, 4, v6")
    a(f"v_lshl_add_u32 v6, s{sWAVE}, 9, v6")
    a("s_waitcnt vmcnt(0)")
    a("s_barrier                      ; 3c")
    for f in range(2):
        for e in range(4):
            for x in range(4):
                a(f"v_perm_b32 v{48 + 16 * f + 4 * e + x}, v{WD + 16 * f + 2 * (2 * x + 1) + (e >> 1)}, "
                  f"v{WD + 16 * f + 2 * (2 * x) + (e >> 1)}, s{sHI if e & 1 else sLO}")
    stamp(11)
    lab = poll_begin()
    a(f"global_load_dwordx4 v[8:11], v5, {sp(sBA)} sc1")
    a(f"global_load_dwordx4 v[12:15], v5, {sp(sBA)} offset:1024 sc1")
    poll_mid()
    interleave([mfma(16 + 4 * e, 8, 48 + 4 * e) for e in range(3)], sentinel_ops(range(8, 16), 7), 2)
    poll_end(lab)
    a(mfma(28, 8, 60))
    for e in range(4):
        a(mfma(16 + 4 * e, 12, 64 + 4 * e, 16 + 4 * e))
    for e in range(4):
        for b0 in range(2):
            a(f"v_add_f32_dpp v{32 + 4 * b0 + e}, v{16 + 4 * e + 2 * b0 + 1}, v{16 + 4 * e + 2 * b0} row_shl:4 {DPPM}")
    set_exec(0x0F000F00000F000F)
    a("ds_write_b128 v6, v[32:35] offset:10240")
    a("ds_write_b128 v6, v[36:39] offset:10304")
    a("s_waitcnt lgkmcnt(0)")
    stamp(12)
    a("s_barrier                      ; 4")
    finish_wave()


def sec_att():
    a.label("L_A2")
    ids()
    stamp(1)
    a(f"s_cmp_lt_u32 s{sWAVE}, 4")
    a("s_cbranch_scc1 L_A2b")
    a(f"s_bitcmp1_b32 s{sWAVE}, 0")
    a(f"s_cselect_b64 {sp(sBA)}, {sp(sWU)}, {sp(sWG)}")
    a(f"s_and_b32 s{sT0}, s{sWAVE}, 2")
    a(f"s_lshl2_add_u32 s{sT0}, s{sM}, s{sT0}")
    a(f"s_mul_i32 s{sT0}, s{sT0}, {8 * 3584}")
    a(f"s_mul_i32 s{sT1}, s{sG}, 448")
    a(f"s_andn2_b32 s{sT1}, s{sT1}, 127")
    a(f"s_add_u32 s{sT0}, s{sT0}, s{sT1}")
    a("v_mul_u32_u24 v13, 3584, v1")
    a("v_lshl_add_u32 v13, v2, 7, v13")
    a(f"v_add_u32 v13, s{sT0}, v13")
    prefetch(13, sBA, True)
    a(f"s_waitcnt vmcnt({10 if OPT['pfpol'] == 2 else 9})")
    stamp(2)
    a("s_branch L_A3")
    a.label("L_A2b")
    a("s_waitcnt vmcnt(0)")
    make_tag(12)
    stamp(2)
    a(f"s_getreg_b32 s{sT0}, hwreg(HW_REG_XCC_ID, 0, 4)")
    a(f"s_xor_b32 s56, s{sTAG}, s{sT0}")
    a("s_mov_b32 s57, s56")
    a(f"s_lshl2_add_u32 s{sT0}, s{sG}, s{sWAVE}")
    a(f"s_mul_i32 s{sT0}, s{sT0}, {NREP * 128}")
    base(sBA, sWS, sT0, FL)
    a(f"s_mov_b32 s{sCNT}, 0")
    a.label("L_Aq")
    a(f"s_load_dwordx8 s[48:55], {sp(sBA)}, s{sCNT}")
    a(f"s_add_u32 s{sCNT}, s{sCNT}, 128")
    a("s_waitcnt lgkmcnt(0)")
    a("s_xor_b64 s[48:49], s[48:49], s[56:57]")
    a("s_xor_b64 s[50:51], s[50:51], s[56:57]")
    a("s_xor_b64 s[52:53], s[52:53], s[56:57]")
    a("s_or_b64 s[48:49], s[48:49], s[50:51]")
    a("s_or_b64 s[48:49], s[48:49], s[52:53]")
    a("s_cbranch_scc0 L_Aq_ok")
    if OPT["qsleep"]:
        a(f"s_sleep {OPT['qsleep']}")
    a(f"s_cmp_lt_u32 s{sCNT}, {NREP * 128}")
    a("s_cbranch_scc1 L_Aq")
    a(f"s_lshr_b32 s{sT0}, s{sM}, 2")
    a(f"s_lshl2_add_u32 s{sT0}, s{sG}, s{sT0}")
    a(f"s_lshl2_add_u32 s{sT0}, s{sT0}, s{sWAVE}")
    a(f"s_lshl_b32 s{sT0}, s{sT0}, 9")
    base(sBA, sWS, sT0, H2G)
    a("v_lshlrev_b32 v10, 3, v0")
    lab = poll_begin()
    a(f"global_load_dwordx2 v[8:9], v10, {sp(sBA)} sc1")
    poll_mid()
    a(f"v_xor_b32 v9, s{sTAG}, v9")
    a("v_cmp_lt_u32 vcc, 15, v9")
    poll_end(lab)
    a("v_mov_b32 v9, 2")
    a("s_branch L_Aq_st")
    a.label("L_Aq_ok")
    a(f"s_lshr_b32 s{sT0}, s{sM}, 2")
    a(f"s_lshl2_add_u32 s{sT0}, s{sG}, s{sT0}")
    a(f"s_lshl2_add_u32 s{sT0}, s{sT0}, s{sWAVE}")
    a(f"s_lshl_b32 s{sT0}, s{sT0}, 8")
    a(f"s_add_u32 s{sT0}, s{sT0}, {QS:#x}")
    a(f"s_add_u32 s0, s{sWS}, s{sT0}")
    a(f"s_addc_u32 s1, s{sWS + 1}, 0")
    for t in range(4):
        a(f"s_load_dwordx16 s[{sQ + 16 * t}:{sQ + 16 * t + 15}], s[0:1], {64 * t}")
    a("v_mov_b32 v9, 1")
    a("s_waitcnt lgkmcnt(0)")
    for i in range(64):
        a(f"v_writelane_b32 v8, s{sQ + i}, {i}")
    a.label("L_Aq_st")
    a("v_lshlrev_b32 v10, 2, v0")
    a(f"v_lshl_add_u32 v10, s{sWAVE}, 8, v10")
    a(f"v_lshlrev_b32_e64 v11, 2, s{sWAVE}")
    a(f"ds_write_b32 v10, v8 offset:{LQ}")
    a(f"ds_write_b32 v11, v9 offset:{LQF}")
    a.label("L_A3")
    a(f"s_mul_i32 s{sT0}, s{sWAVE}, 2560")
    a("v_mul_u32_u24 v7, 576, v5")
    a("v_lshl_add_u32 v7, v2, 6, v7")
    a("v_lshl_add_u32 v7, v3, 4, v7")
    a(f"v_add_u32 v7, s{sT0}, v7")
    a("v_lshlrev_b32 v5, 5, v5               ; h*32")
    a(f"v_lshl_add_u32 v120, s{sWAVE}, 2, v5     ; h*32 + wave*4")
    a("v_lshlrev_b32 v124, 4, v0")
    a("v_add_u32 v125, 0x1000, v124")
    lab = poll_begin()
    a(f"ds_read_b128 v[12:15], v4 offset:{LQF}")
    a(f"ds_read_b128 v[8:11], v6 offset:{LQ}")
    poll_mid("lgkmcnt(0)")
    a("v_min3_u32 v112, v12, v13, v14")
    a("v_min_u32 v112, v112, v15")
    a("v_cmp_eq_u32 vcc, 0, v112")
    poll_end(lab)
    stamp(3)
    for u in range(8):
        a(mfma(SA + 4 * u, KR + 4 * u, 8))
    a("v_or3_b32 v12, v12, v13, v14")
    a("v_or_b32 v12, v12, v15")
    a("v_lshrrev_b32 v12, 1, v12")
    a(f"v_readfirstlane_b32 s{sLOCAL}, v12")
    S = 112
    for u in range(8):
        a(f"v_add_f32_dpp v{S + u}, v{SA + 4 * u + 1}, v{SA + 4 * u} row_shl:1 {DPPM}")
    for u in range(8):
        a(f"v_add_f32_dpp v{S + u}, v{SA + 4 * u + 2}, v{S + u} row_shl:2 {DPPM}")
    for u in range(8):
        a(f"v_add_f32_dpp v{S + u}, v{SA + 4 * u + 3}, v{S + u} row_shl:3 {DPPM}")
    round_bf16(list(range(S, S + 8)))
    for u in range(8):
        a(f"v_mul_f32 v{S + u}, {SCALE:#x}, v{S + u}")
    round_bf16(list(range(S, S + 8)))
    a(f"v_max3_f32 v12, v{S}, v{S + 1}, v{S + 2}")
    a(f"v_max3_f32 v13, v{S + 3}, v{S + 4}, v{S + 5}")
    a(f"v_max3_f32 v12, v12, v{S + 6}, v{S + 7}")
    a("v_max_f32 v12, v12, v13")
    cross_rows("v_max_f32", 12, 13)
    set_exec(0x1111)
    a(f"ds_write_b32 v120, v12 offset:{LM}")
    set_exec(-1)
    a("s_waitcnt lgkmcnt(0)")
    a("s_barrier")
    a(f"ds_read_b128 v[80:83], v5 offset:{LM}")
    a(f"ds_read_b128 v[84:87], v5 offset:{LM + 16}")
    a(f"s_mov_b32 s{sT0}, {LOG2E:#x}")
    for y in range(4):
        a(f"v_cmp_eq_u32 s[{48 + 2 * y}:{49 + 2 * y}], {y}, v2")
    a("s_waitcnt lgkmcnt(0)")
    a("v_max3_f32 v12, v80, v81, v82")
    a("v_max3_f32 v13, v83, v84, v85")
    a("v_max3_f32 v12, v12, v86, v87")
    a("v_max_f32 v12, v12, v13")
    a(f"v_mul_f32 v12, {LOG2E:#x}, v12")
    for u in range(8):
        a(f"v_fma_f32 v{S + u}, v{S + u}, s{sT0}, -v12")
    for u in range(8):
        a(f"v_exp_f32 v{S + u}, v{S + u}")
    for x in range(4):
        a(f"v_cvt_pk_bf16_f32 v{8 + x}, v{S + 2 * x}, v{S + 2 * x + 1}")
    a(f"v_pk_add_f32 v[{S}:{S + 1}], v[{S}:{S + 1}], v[{S + 2}:{S + 3}]")
    a(f"v_pk_add_f32 v[{S + 4}:{S + 5}], v[{S + 4}:{S + 5}], v[{S + 6}:{S + 7}]")
    a(f"v_pk_add_f32 v[{S}:{S + 1}], v[{S}:{S + 1}], v[{S + 4}:{S + 5}]")
    a(f"v_add_f32 v13, v{S}, v{S + 1}")
    for x in range(4):
        a(f"v_mov_b32_dpp v{8 + x}, v{8 + x} quad_perm:[0,0,0,0] {DPPM}")
    cross_rows("v_add_f32", 13, 14)
    set_exec(0x1111)
    a(f"ds_write_b32 v120, v13 offset:{LL}")
    set_exec(-1)
    PY = 88
    for y in range(4):
        for x in range(4):
            a(f"v_cndmask_b32 v{PY + 4 * y + x}, 0, v{8 + x}, s[{48 + 2 * y}:{49 + 2 * y}]")
    a("s_waitcnt lgkmcnt(0)")
    a("s_barrier")
    stamp(4)
    a(f"s_lshl2_add_u32 s{sT0}, s{sG}, s{sWAVE}")
    a(f"s_lshl_b32 s{sT0}, s{sT0}, 8")
    a(f"s_add_u32 s{sT0}, s{sT0}, s{sM}")
    a(f"s_lshl_b32 s{sT0}, s{sT0}, 4")
    base(sBA, sWS, sT0, H3O)
    a("v_lshlrev_b32 v121, 8, v1")
    a("v_lshl_add_u32 v121, v2, 2, v121")
    a(f"s_mul_i32 s{sT0}, s{sWAVE}, 576")
    a(f"v_lshl_add_u32 v122, v0, 3, s{sT0}")
    a(f"s_cmp_lt_u32 s{sWAVE}, 4")
    a("s_cbranch_scc1 L_A5")
    a(f"s_and_b32 s{sT4}, s{sWAVE}, 3")
    a(f"s_lshl_b32 s{sT0}, s{sT4}, 8")
    base(sBB, sX, sT0)
    a(f"s_lshl_b32 s{sT0}, s{sT4}, 10")
    base(sBA, sWS, sT0, MODB + 4096)
    a("v_lshrrev_b32 v13, 1, v3")
    a("v_lshlrev_b32 v13, 7, v13")
    a("v_and_b32 v14, 1, v3")
    a("v_lshl_add_u32 v13, v14, 3, v13")
    a("v_lshl_add_u32 v13, v2, 4, v13")
    a("v_lshl_add_u32 v13, v5, 5, v13        ; x offset: b*1024 + (G>>1)*128 + c*16 + (G&1)*8")
    a(f"global_load_dwordx2 v[128:129], v13, {sp(sBB)}")
    a(f"global_load_dwordx2 v[130:131], v13, {sp(sBB)} offset:64")
    modb_loads()
    a("s_branch L_A6")
    a.label("L_A5")
    a(f"s_cmp_lg_u32 s{sWAVE}, 0")
    a("s_cbranch_scc1 L_A6")
    a(f"ds_read_b128 v[80:83], v5 offset:{LL}")
    a(f"ds_read_b128 v[84:87], v5 offset:{LL + 16}")
    a(f"s_lshl_b32 s{sT0}, s{sG}, 6")
    a(f"s_add_u32 s{sT0}, s{sT0}, s{sM}")
    a(f"s_lshl_b32 s{sT0}, s{sT0}, 3")
    base(sBB, sWS, sT0, H3ML)
    a("v_lshlrev_b32 v14, 2, v5              ; h*128")
    a("s_waitcnt lgkmcnt(0)")
    a("v_pk_add_f32 v[80:81], v[80:81], v[82:83]")
    a("v_pk_add_f32 v[84:85], v[84:85], v[86:87]")
    a("v_pk_add_f32 v[80:81], v[80:81], v[84:85]")
    a("v_add_f32 v13, v80, v81")
    set_exec(0x1111)
    a(f"s_cmp_lg_u32 s{sLOCAL}, 0")
    a("s_cbranch_scc1 L_A_mlg")
    a(f"global_store_dwordx2 v14, v[12:13], {sp(sBB)}")
    a.label("L_A_mld")
    set_exec(-1)
    a.label("L_A6")
    extra = 7 if OPT['pfpol'] == 2 else 6
    perms8(VR, VT, waits=[6 + extra, 4 + extra, 2 + extra, 0 + extra])
    for e in range(8):
        d = OA + 4 * (e >> 2)
        a(mfma(d, VT + 4 * e, PY + 4 * (e & 3), None if (e & 3) == 0 else d))
    a(f"ds_write_b128 v7, {vr(OA, 4)}")
    a(f"ds_write_b128 v7, {vr(OA + 4, 4)} offset:256")
    a("s_waitcnt lgkmcnt(0)")
    stamp(5)
    a("s_barrier                      ; 2")
    a(f"s_cmp_ge_u32 s{sWAVE}, 4")
    a("s_cbranch_scc1 L_FF")
    for t in range(4):
        a(f"ds_read2st64_b64 {vr(16 + 4 * t, 4)}, v122 offset0:{10 * t} offset1:{10 * t + 5}")
    a(f"s_cmp_lg_u32 s{sLOCAL}, 0")
    a("s_waitcnt lgkmcnt(0)")
    sum8_b64(16)
    a("v_cvt_pk_bf16_f32 v10, v16, v17")
    a("s_cbranch_scc1 L_A_pubg")
    a(f"global_store_dword v121, v10, {sp(sBA)}")
    a.label("L_A_pubd")
    stamp(6)
    a("s_barrier                      ; 2b")
    a("s_branch L_FF0")
    a.label("L_A_pubg")
    a(f"global_store_dword v121, v10, {sp(sBA)} sc1")
    a("s_branch L_A_pubd")
    a.label("L_A_mlg")
    a(f"global_store_dwordx2 v14, v[12:13], {sp(sBB)} sc1")
    a("s_branch L_A_mld")


def sec_dump():
    if OPT["stamps"]:
        a.label("L_dump")
        a("s_mov_b64 exec, -1")
        stamp(15)
        a(f"s_getreg_b32 s{sT0}, hwreg(HW_REG_XCC_ID)")
        a(f"v_writelane_b32 v126, s{sT0}, 14")
        a(f"s_lshl3_add_u32 s{sT0}, s2, s{sWAVE}")
        a(f"s_lshl_b32 s{sT0}, s{sT0}, 6")
        base(sBA, sWS, sT0, STAMP)
        a("v_lshlrev_b32 v4, 2, v0")
        set_exec(0xFFFF)
        a(f"global_store_dword v4, v126, {sp(sBA)}")
    a.label("L_exit")
    a("s_endpgm")


a(".p2align 12")
a.label("L_code0")
sec_wo()
sec_ln()
a(".p2align 8")
a(f".fill (4096-768-(.-L_code0))/4, 4, 0xbf810000")
a(f".type {NAME}_kernel,@function")
sec_entry()
sec_gm()
sec_gq()
sec_gb()
a(".p2align 12")
sec_att()
sec_down()
a(".p2align 12")
sec_ffn()
sec_dump()

body = a.finish()
hdr = open("cdna_kernels/" + NAME + ".s.ref").read().split("; Override launch geometry")[0]
out = hdr + f"""; Generated by a hand-written generator script; one persistent launch of 256 workgroups.
; @launch grid=(256,1,1) block=(512,1,1) lds={OPT['lds']}
.amdgcn_target "amdgcn-amd-amdhsa--gfx950"
.text
.globl {NAME}_kernel
{body}.section .rodata,"a"
.p2align 6
.amdhsa_kernel {NAME}_kernel
  .amdhsa_next_free_vgpr {OPT['vgpr']}
  .amdhsa_next_free_sgpr 102
  .amdhsa_accum_offset {OPT['vgpr']}
  .amdhsa_group_segment_fixed_size 0
  .amdhsa_kernarg_size 112
  .amdhsa_user_sgpr_count 2
  .amdhsa_user_sgpr_kernarg_segment_ptr 1
  .amdhsa_system_sgpr_workgroup_id_x 1
  .amdhsa_float_denorm_mode_32 3
.end_amdhsa_kernel
"""
open(sys.argv[1], "w").write(out)
```

```python
import sys
from asmlib import Asm

NAME = "adaLN_cond__sliding_block_cached__swiglu_ffn__decode"
OPT = dict(stamps=0, lds=84000, nt=1, limit=20000, pf=1, pfa=1, pfg=1, athr=8, nrep=32, qsleep=2, vgpr=160, psleep=0, ahelp=1, bhelp=1, wowait=1, pfpol=2, wpol=1, wopf=1, probe=0, pcls=0)
for arg in sys.argv[2:]:
    k, v = arg.split("=")
    assert k in OPT, k
    OPT[k] = int(v, 0)
if OPT["probe"]:
    OPT["vgpr"] = 168
NT = " nt" if OPT["nt"] else ""
NREP = OPT["nrep"]
NTW = " nt" if OPT["wpol"] else ""

H1 = 0x1000
CF = 0x3000
QS = 0x4000
H2G = 0x10000
FL = 0x20000
assert FL + 32 * NREP * 128 <= 0x60000
CLR = 0x60000
MODB = CLR
H4 = MODB + 0x4000
ACT = H4 + 0x8000
X1 = ACT + 0x4000
H3ML = X1 + 0x1000
H3O = H3ML + 0x1000
CLR_END = H3O + 0x20000
CLR_PER_WG = 7
assert CLR_END - CLR <= 32 * CLR_PER_WG * 1024
STAMP = 0x100000

LO = 0
LQ = 20480
LQF = LQ + 1024
LM = LQF + 64
LL = LM + 128
LY = 22016
LU = LY + 2048
LV = LU + 2048
LST = LV + 2048

sX, sK, sV, sWQ, sWO, sWG, sWU = 4, 6, 8, 10, 12, 16, 18
sWD, sC, sWM, sOUT, sDBG, sWS = 20, 22, 24, 26, 28, 30
sG, sM, sWAVE, sTAG = 14, 15, 3, 28
sLO, sHI, sCNT, sT0 = 96, 97, 98, 99
sBA, sBB, sBC = 32, 34, 36
sMK = 38
sT1, sT2, sT3, sT4 = 40, 41, 42, 43
sLOCAL, sKIND = 29, 44
sPC = 46
sSTAMP = 48 if False else 64
sQ = 32

LOG2E = 0x3FB8AA3B
SCALE = 0x3DB504F3
INV512 = 0x3B000000
EPS = 0x3727C5AC


def sp(r):
    return f"s[{r}:{r + 1}]"


def vr(a, n):
    return f"v[{a}:{a + n - 1}]" if n > 1 else f"v{a}"


a = Asm()
_uid = [0]


def uid(p):
    _uid[0] += 1
    return f"L_{p}{_uid[0]}"


CLS = [0]


def stamp(i):
    if OPT["probe"] == 100 + i and OPT["pcls"] == CLS[0]:
        a("s_memrealtime s[100:101]")
        a("s_waitcnt lgkmcnt(0)")
        a("s_mov_b32 s101, exec_lo")
        a("v_writelane_b32 v164, s101, 0")
        a("s_mov_b32 s101, exec_hi")
        a("v_writelane_b32 v164, s101, 1")
        a("s_mov_b64 exec, 1")
        a("v_mov_b32 v162, s100")
        a("global_atomic_umax v[160:161], v162, off offset:12")
        a("v_readlane_b32 s101, v164, 0")
        a("s_nop 3")
        a("s_mov_b32 exec_lo, s101")
        a("v_readlane_b32 s101, v164, 1")
        a("s_nop 3")
        a("s_mov_b32 exec_hi, s101")
    if OPT["stamps"]:
        a("s_memrealtime s[100:101]")
        a("s_waitcnt lgkmcnt(0)")
        a(f"v_writelane_b32 v126, s100, {i}")


def finish_wave():
    a("s_branch L_dump" if OPT["stamps"] or OPT["probe"] else "s_endpgm")


def base(dst, ptr, off_s=None, off_imm=0):
    if off_s is not None and off_imm:
        a(f"s_add_u32 s{dst}, s{off_s}, {off_imm:#x}")
        a(f"s_add_u32 s{dst}, s{ptr}, s{dst}")
    elif off_s is not None:
        a(f"s_add_u32 s{dst}, s{ptr}, s{off_s}")
    else:
        a(f"s_add_u32 s{dst}, s{ptr}, {off_imm:#x}")
    a(f"s_addc_u32 s{dst + 1}, s{ptr + 1}, 0")


def set_exec(mask):
    if mask in (-1, 1):
        a(f"s_mov_b64 exec, {mask}")
    else:
        lo, hi = mask & 0xFFFFFFFF, mask >> 32
        a(f"s_mov_b32 exec_lo, {lo:#x}")
        a(f"s_mov_b32 exec_hi, {hi:#x}")


def prefetch(v, b, late=False):
    if not late:
        a(f"global_load_dword v127, v{v}, {sp(b)} nt")
        return
    if OPT["pfpol"] == 1:
        a(f"global_load_dword v127, v{v}, {sp(b)}")
    else:
        a(f"global_load_dword v127, v{v}, {sp(b)} nt")
    if OPT["pfpol"] == 2:
        a(f"global_load_dword v127, v{v}, {sp(b)} sc1")


def sels():
    a(f"s_mov_b32 s{sLO}, 0x05040100")
    a(f"s_mov_b32 s{sHI}, 0x07060302")


def perms8(W, F, waits=None):
    for x in range(4):
        if waits is not None:
            a(f"s_waitcnt vmcnt({waits[x]})")
        for e in range(8):
            sel = sHI if e & 1 else sLO
            a(f"v_perm_b32 v{F + 4 * e + x}, v{W + 4 * (2 * x + 1) + (e >> 1)}, v{W + 4 * (2 * x) + (e >> 1)}, s{sel}")


def unpack(dst, src, n):
    for i in range(n):
        a(f"v_lshlrev_b32 v{dst + 2 * i}, 16, v{src + i}")
        a(f"v_and_b32 v{dst + 2 * i + 1}, 0xffff0000, v{src + i}")


def round_bf16(regs):
    if len(regs) == 1:
        a(f"v_cvt_pk_bf16_f32 v{regs[0]}, v{regs[0]}, v{regs[0]}")
        a(f"v_lshlrev_b32 v{regs[0]}, 16, v{regs[0]}")
        return
    for i in range(0, len(regs), 2):
        a(f"v_cvt_pk_bf16_f32 v{regs[i + 1]}, v{regs[i]}, v{regs[i + 1]}")
    for i in range(0, len(regs), 2):
        a(f"v_lshlrev_b32 v{regs[i]}, 16, v{regs[i + 1]}")
        a(f"v_and_b32 v{regs[i + 1]}, 0xffff0000, v{regs[i + 1]}")


def poll_begin():
    lab = uid("poll")
    a(f"s_mov_b32 s{sCNT}, {OPT['limit']}")
    a.label(lab)
    return lab


def poll_mid(cnt="vmcnt(0)", sleep=None):
    sleep = OPT["psleep"] if sleep is None else sleep
    if sleep and cnt.startswith("vm"):
        a(f"s_sleep {sleep}")
    a(f"s_sub_u32 s{sCNT}, s{sCNT}, 1")
    a(f"s_cselect_b64 {sp(sMK)}, 0, -1")
    a(f"s_waitcnt {cnt}")


def poll_end(lab):
    a(f"s_and_b64 vcc, vcc, {sp(sMK)}")
    a(f"s_cbranch_scc1 {lab}")


def sentinel_ops(regs, tmp):
    regs = list(regs)
    out = []
    if len(regs) == 2:
        out.append(f"v_max_u32 v{tmp}, v{regs[0]}, v{regs[1]}")
    else:
        out.append(f"v_max3_u32 v{tmp}, v{regs[0]}, v{regs[1]}, v{regs[2]}")
        rest = regs[3:]
        while len(rest) >= 2:
            out.append(f"v_max3_u32 v{tmp}, v{tmp}, v{rest[0]}, v{rest[1]}")
            rest = rest[2:]
        if rest:
            out.append(f"v_max_u32 v{tmp}, v{tmp}, v{rest[0]}")
    out.append(f"v_cmp_eq_u32 vcc, -1, v{tmp}")
    return out


def interleave(major, minor, per):
    minor = list(minor)
    for ins in major:
        a(ins)
        for _ in range(per):
            if minor:
                a(minor.pop(0))
    for ins in minor:
        a(ins)


def make_tag(vE):
    a(f"v_readfirstlane_b32 s{sTAG}, v{vE}")
    a("s_nop 1")
    a(f"s_mul_i32 s{sTAG}, s{sTAG}, 1664525")
    a(f"s_add_u32 s{sTAG}, s{sTAG}, 1013904223")


DPPM = "row_mask:0xf bank_mask:0xf"


def row_allsum(v):
    for n in (8, 4, 2, 1):
        a(f"v_add_f32_dpp v{v}, v{v}, v{v} row_ror:{n} {DPPM}")


def cross_rows(op, v, tmp):
    a(f"v_mov_b32 v{tmp}, v{v}")
    a(f"v_permlane16_swap_b32 v{tmp}, v{v}")
    a(f"{op} v{v}, v{v}, v{tmp}")
    a(f"v_mov_b32 v{tmp}, v{v}")
    a(f"v_permlane32_swap_b32 v{tmp}, v{v}")
    a(f"{op} v{v}, v{v}, v{tmp}")


def mfma(d, x, y, c=None):
    return f"v_mfma_f32_16x16x32_bf16 {vr(d, 4)}, {vr(x, 4)}, {vr(y, 4)}, {vr(c, 4) if c is not None else 0}"


def diagX_reduce(ACC, T):
    for e in range(8):
        a(f"v_add_f32_dpp v{T + e}, v{ACC + 4 * e + 1}, v{ACC + 4 * e} row_shl:4 {DPPM}")
    for e in range(8):
        a(f"v_add_f32_dpp v{T + e}, v{ACC + 4 * e + 2}, v{T + e} row_shl:8 {DPPM}")
    for e in range(8):
        a(f"v_add_f32_dpp v{T + e}, v{ACC + 4 * e + 3}, v{T + e} row_shl:12 {DPPM}")


def sum8_b64(r):
    for t in range(4):
        a(f"v_pk_add_f32 v[{r + 4 * t}:{r + 4 * t + 1}], v[{r + 4 * t}:{r + 4 * t + 1}], v[{r + 4 * t + 2}:{r + 4 * t + 3}]")
    a(f"v_pk_add_f32 v[{r}:{r + 1}], v[{r}:{r + 1}], v[{r + 4}:{r + 5}]")
    a(f"v_pk_add_f32 v[{r + 8}:{r + 9}], v[{r + 8}:{r + 9}], v[{r + 12}:{r + 13}]")
    a(f"v_pk_add_f32 v[{r}:{r + 1}], v[{r}:{r + 1}], v[{r + 8}:{r + 9}]")


def modb_loads():
    a(f"global_load_dwordx4 v[132:135], v124, {sp(sBA)} offset:-4096 sc1")
    a(f"global_load_dwordx4 v[136:139], v124, {sp(sBA)} sc1")
    a(f"global_load_dwordx4 v[140:143], v125, {sp(sBA)} sc1")


W, F, ACC = 16, 48, 16
KR, VR, SA, VT, OA = 16, 48, 80, 16, 80


def sec_ffn():
    CLS[0] = 1
    a.label("L_FF")
    a(f"s_cmp_ge_u32 s{sM}, 14")
    a("s_cbranch_scc1 L_fin2")
    a(f"s_mul_i32 s{sT0}, s{sG}, 14")
    a(f"s_add_u32 s{sT0}, s{sT0}, s{sM}")
    a(f"s_lshl_b32 s{sT0}, s{sT0}, 5")
    a(f"s_mul_i32 s{sT1}, s{sT4}, {128 * 3584}")
    a(f"s_add_u32 s{sT0}, s{sT0}, s{sT1}")
    a(f"s_add_u32 s{sT0}, s{sT0}, 3584")
    a("v_lshrrev_b32 v6, 1, v3")
    a("v_and_b32 v7, 1, v3")
    a("v_and_b32 v5, 3, v1")
    a("v_lshlrev_b32 v8, 6, v6")
    a("v_lshl_add_u32 v8, v7, 2, v8")
    a("v_lshl_add_u32 v8, v5, 3, v8")
    a("v_mul_u32_u24 v10, 3584, v8")
    a("v_and_b32 v9, 1, v2")
    a("v_lshl_add_u32 v10, v9, 4, v10")
    a(f"v_add_u32 v10, s{sT0}, v10")
    a("v_mov_b32 v11, 0")
    a("v_cmp_lt_u32 vcc, 1, v2")
    a(f"v_mov_b32 v12, s{sWG}")
    a(f"v_mov_b32 v13, s{sWG + 1}")
    a(f"v_mov_b32 v14, s{sWU}")
    a(f"v_mov_b32 v15, s{sWU + 1}")
    a("v_cndmask_b32 v12, v12, v14, vcc")
    a("v_cndmask_b32 v13, v13, v15, vcc")
    a("v_lshl_add_u64 v[12:13], v[10:11], 0, v[12:13]      ; row +1")
    a(f"v_mov_b32 v10, {2 * 3584}")
    a("v_lshl_add_u64 v[14:15], v[10:11], 0, v[12:13]      ; row +3")
    a(f"v_mov_b32 v10, {32 * 3584}")
    a(f"s_lshl_b32 s{sT0}, s{sT4}, 10")
    a("v_and_b32 v9, 15, v0")
    a("s_barrier")
    for half in range(2):
        for jj in range(4):
            r, off = ((12, 3584 * (jj - 1)) if jj < 3 else (14, 0))
            a(f"global_load_dwordx4 {vr(W + 16 * half + 4 * jj, 4)}, v[{r}:{r + 1}], off offset:{off}{NTW}")
        if half == 0:
            a("v_lshl_add_u64 v[12:13], v[10:11], 0, v[12:13]")
            a("v_lshl_add_u64 v[14:15], v[10:11], 0, v[14:15]")
    a("v_lshlrev_b32 v12, 4, v9")
    a("v_lshl_add_u32 v12, v3, 12, v12")
    a("s_waitcnt vmcnt(8)")
    for ins in sentinel_ops(range(132, 144), 14):
        a(ins)
    a("s_cbranch_vccz L_FF1")
    lab = poll_begin()
    modb_loads()
    poll_mid()
    for ins in sentinel_ops(range(132, 144), 14):
        a(ins)
    poll_end(lab)
    a.label("L_FF1")
    stamp(7)
    XV, GA, P0, P1 = 96, 104, 112, 84
    unpack(XV, 128, 4)
    unpack(GA, 132, 4)
    unpack(P0, 140, 4)
    for i in range(8):
        a(f"v_add_f32 v{P0 + i}, 1.0, v{P0 + i}")
    for i in range(4):
        a(f"v_cvt_pk_bf16_f32 v{92 + i}, v{P0 + 2 * i}, v{P0 + 2 * i + 1}")
    unpack(P0, 92, 4)
    perms8(W, F, waits=[6, 4, 2, 0])
    stamp(9)
    for e in range(8):
        a(mfma(ACC + 4 * e, 136, F + 4 * e))
    a(f"s_lshl_b32 s{sT1}, s{sT4}, 9")
    a(f"s_add_u32 s{sT1}, s{sT1}, {LY}")
    a("v_lshlrev_b32 v5, 7, v3")
    a("v_lshl_add_u32 v5, v2, 5, v5")
    a(f"v_add_u32 v5, s{sT1}, v5")
    diagX_reduce(ACC, 80)
    for e in range(8):
        a(mfma(ACC + 4 * e, 92, F + 4 * e))
    set_exec(0x000F000F000F000F)
    a(f"ds_write_b128 v5, v[80:83] offset:{LV - LY}")
    a(f"ds_write_b128 v5, v[84:87] offset:{LV - LY + 16}")
    set_exec(-1)
    a("s_waitcnt lgkmcnt(0)")
    diagX_reduce(ACC, 80)
    set_exec(0x000F000F000F000F)
    a(f"ds_write_b128 v5, v[80:83] offset:{LU - LY}")
    a(f"ds_write_b128 v5, v[84:87] offset:{LU - LY + 16}")
    set_exec(-1)
    a("s_waitcnt lgkmcnt(0)")
    a("s_barrier                      ; 3: u, v partials")
    for i in range(8):
        a(f"v_mul_f32 v{P1 + i}, v{GA + i}, v{P0 + i}")
    for i in range(8):
        a(f"v_mul_f32 v{P0 + i}, v{XV + i}, v{P0 + i}")
    a("v_and_b32 v6, 1, v0")
    a("v_lshlrev_b32 v6, 4, v6")
    a("v_mov_b32 v7, 0x3f80")
    a("v_lshlrev_b32 v6, v6, v7")
    a("v_lshrrev_b32 v7, 1, v9")
    for x in range(8):
        a(f"v_cmp_eq_u32 vcc, {x}, v7")
        a(f"v_cndmask_b32 v{(120 + x) if x < 4 else (88 + x)}, 0, v6, vcc")
    base(sBA, sWS, sT0, H4)
    base(sBB, sWS, sT0, X1)
    a("v_add_u32 v13, 0x4000, v12")
    a(f"s_lshl_b32 s{sT1}, s{sT4}, 2")
    a(f"s_add_u32 s{sT1}, s{sT1}, {LST}")
    a("v_and_b32 v6, 3, v1")
    a("v_lshlrev_b32 v6, 5, v6")
    a("v_lshl_add_u32 v6, v3, 3, v6")
    a(f"v_add_u32 v6, s{sT1}, v6")
    stamp(8)
    lab = poll_begin()
    for t in range(4):
        for hf in range(2):
            a(f"global_load_dwordx4 {vr(16 + 8 * t + 4 * hf, 4)}, v{12 + hf}, {sp(sBA)} offset:{256 * t} sc1")
    poll_mid()
    AT = 8
    seq = [mfma(80, 120, 16), mfma(8, 120, 24), mfma(80, 120, 20, 80), mfma(8, 120, 28, 8),
           mfma(80, 92, 32, 80), mfma(8, 92, 40, 8), mfma(80, 92, 36, 80), mfma(8, 92, 44, 8)]
    interleave(seq, sentinel_ops(range(16, 48), 14), 2)
    poll_end(lab)
    att = [80, 82, 8, 10]
    for i in range(4):
        a(f"v_pk_fma_f32 v[{P0 + 2 * i}:{P0 + 2 * i + 1}], v[{att[i]}:{att[i] + 1}], v[{P1 + 2 * i}:{P1 + 2 * i + 1}], v[{P0 + 2 * i}:{P0 + 2 * i + 1}]")
    for i in range(4):
        a(f"v_cvt_pk_bf16_f32 v{84 + i}, v{P0 + 2 * i}, v{P0 + 2 * i + 1}")
    st = []
    for i in range(4):
        st.append(f"v_pk_fma_f32 v[{XV + 2 * i}:{XV + 2 * i + 1}], v[{att[i]}:{att[i] + 1}], v[{GA + 2 * i}:{GA + 2 * i + 1}], v[{XV + 2 * i}:{XV + 2 * i + 1}]")
    st.append(f"v_pk_mul_f32 v[8:9], v[{XV}:{XV + 1}], v[{XV}:{XV + 1}]")
    st.append(f"v_pk_add_f32 v[14:15], v[{XV}:{XV + 1}], v[{XV + 2}:{XV + 3}]")
    for i in range(1, 4):
        st.append(f"v_pk_fma_f32 v[8:9], v[{XV + 2 * i}:{XV + 2 * i + 1}], v[{XV + 2 * i}:{XV + 2 * i + 1}], v[8:9]")
        if i > 1:
            st.append(f"v_pk_add_f32 v[14:15], v[14:15], v[{XV + 2 * i}:{XV + 2 * i + 1}]")
    st.append("v_add_f32 v8, v8, v9")
    st.append("v_add_f32 v14, v14, v15")
    st.append("v_permlane32_swap_b32 v14, v8")
    st.append("v_add_f32 v14, v14, v8")
    interleave([mfma(ACC + 4 * e, 84, F + 4 * e) for e in range(8)], st, 2)
    d1 = [f"v_add_f32_dpp v{104 + e}, v{ACC + 4 * e + 1}, v{ACC + 4 * e} row_shl:4 {DPPM}" for e in range(8)]
    d2 = [f"v_add_f32_dpp v{104 + e}, v{ACC + 4 * e + 2}, v{104 + e} row_shl:8 {DPPM}" for e in range(8)]
    d3 = [f"v_add_f32_dpp v{104 + e}, v{ACC + 4 * e + 3}, v{104 + e} row_shl:12 {DPPM}" for e in range(8)]
    for ins in d1[:3]:
        a(ins)
    a(f"v_add_f32_dpp v14, v14, v14 quad_perm:[1,0,3,2] {DPPM}")
    for ins in d1[3:6]:
        a(ins)
    a(f"v_add_f32_dpp v14, v14, v14 quad_perm:[2,3,0,1] {DPPM}")
    for ins in d2[:3]:
        a(ins)
    a("v_mov_b32 v15, v14")
    for ins in d1[6:] + d2[3:5]:
        a(ins)
    a("v_permlane16_swap_b32 v15, v14")
    for ins in d2[5:]:
        a(ins)
    a("v_add_f32 v14, v14, v15")
    for ins in d3:
        a(ins)
    set_exec(0x000F000F000F000F)
    a("ds_write_b128 v5, v[104:107]")
    a("ds_write_b128 v5, v[108:111] offset:16")
    set_exec(0x0000111100001111)
    a("ds_write_b32 v6, v14")
    set_exec(-1)
    a("s_waitcnt lgkmcnt(0)")
    a("s_barrier")
    stamp(10)
    a(f"s_cmp_lg_u32 s2, {(16 + 13) * 8}")
    a("s_cbranch_scc1 L_fin2")
    for i in range(4):
        a(f"v_cvt_pk_bf16_f32 v{16 + i}, v{XV + 2 * i}, v{XV + 2 * i + 1}")
    a(f"global_store_dwordx4 v124, v[16:19], {sp(sBB)} sc1")
    a.label("L_fin2")
    finish_wave()

    a.label("L_FF0")
    a(f"s_cmp_ge_u32 s{sM}, 14")
    a("s_cbranch_scc1 L_fin2")
    a(f"s_cmp_lg_u32 s{sWAVE}, 0")
    a("s_cbranch_scc1 L_fin2")
    a("v_bfe_u32 v8, v0, 3, 2")
    a("v_lshlrev_b32 v5, 7, v8")
    a("v_and_b32 v6, 7, v0")
    a("v_lshl_add_u32 v5, v6, 3, v5")
    a("v_lshrrev_b32 v6, 5, v0")
    a("v_lshl_add_u32 v5, v6, 2, v5")
    a("v_add_u32 v6, 64, v5")
    a("v_lshlrev_b32 v8, 5, v8")
    a(f"s_mul_i32 s{sT0}, s{sG}, 14")
    a(f"s_add_u32 s{sT0}, s{sT0}, s{sM}")
    a(f"s_lshl_b32 s{sT0}, s{sT0}, 7")
    base(sBA, sWS, sT0, ACT)
    a("v_lshlrev_b32 v7, 2, v0")
    a(f"s_mov_b32 s{sT1}, {INV512:#x}")
    a("s_barrier                      ; 3")
    for k, L0 in enumerate((LU, LV)):
        o = L0 // 256
        a(f"ds_read2st64_b32 v[{16 + 8 * k}:{17 + 8 * k}], v5 offset0:{o} offset1:{o + 2}")
        a(f"ds_read2st64_b32 v[{18 + 8 * k}:{19 + 8 * k}], v5 offset0:{o + 4} offset1:{o + 6}")
        a(f"ds_read2st64_b32 v[{20 + 8 * k}:{21 + 8 * k}], v6 offset0:{o} offset1:{o + 2}")
        a(f"ds_read2st64_b32 v[{22 + 8 * k}:{23 + 8 * k}], v6 offset0:{o + 4} offset1:{o + 6}")
    a("s_waitcnt lgkmcnt(0)")
    for k in range(4):
        a(f"v_pk_add_f32 v[{16 + 4 * k}:{17 + 4 * k}], v[{16 + 4 * k}:{17 + 4 * k}], v[{18 + 4 * k}:{19 + 4 * k}]")
    for k in range(4):
        a(f"v_add_f32 v{40 + k}, v{16 + 4 * k}, v{17 + 4 * k}")
    a("s_barrier                      ; 4")
    o = LY // 256
    a(f"ds_read_b128 v[24:27], v8 offset:{LST}")
    a(f"ds_read_b128 v[28:31], v8 offset:{LST + 16}")
    a(f"ds_read2st64_b32 v[16:17], v5 offset0:{o} offset1:{o + 2}")
    a(f"ds_read2st64_b32 v[18:19], v5 offset0:{o + 4} offset1:{o + 6}")
    a(f"ds_read2st64_b32 v[20:21], v6 offset0:{o} offset1:{o + 2}")
    a(f"ds_read2st64_b32 v[22:23], v6 offset0:{o + 4} offset1:{o + 6}")
    a("s_waitcnt lgkmcnt(4)")
    a("v_pk_add_f32 v[24:25], v[24:25], v[26:27]")
    a("v_pk_add_f32 v[28:29], v[28:29], v[30:31]")
    a("v_add_f32 v24, v24, v25")
    a("v_add_f32 v28, v28, v29")
    a(f"v_mul_f32 v24, s{sT1}, v24             ; mean")
    a("v_mul_f32 v25, v24, v24")
    a(f"v_fma_f32 v28, v28, s{sT1}, -v25       ; variance")
    a("v_max_f32 v28, 0, v28")
    a(f"v_add_f32 v28, {EPS:#x}, v28")
    a("v_rsq_f32 v28, v28")
    a("s_waitcnt lgkmcnt(0)")
    a("v_pk_add_f32 v[16:17], v[16:17], v[18:19]")
    a("v_pk_add_f32 v[20:21], v[20:21], v[22:23]")
    a("v_add_f32 v16, v16, v17")
    a("v_add_f32 v17, v20, v21")
    a("v_fma_f32 v16, -v24, v40, v16")
    a("v_fma_f32 v17, -v24, v41, v17")
    a("v_fma_f32 v16, v16, v28, v42          ; gate")
    a("v_fma_f32 v17, v17, v28, v43          ; up")
    a(f"v_mul_f32 v18, {0x80000000 | LOG2E:#x}, v16")
    a("v_exp_f32 v18, v18")
    a("v_mul_f32 v16, v16, v17")
    a("v_add_f32 v18, 1.0, v18")
    a("v_rcp_f32 v18, v18")
    a("v_mul_f32 v16, v16, v18")
    a("v_mov_b32 v17, v16")
    a("v_permlane32_swap_b32 v16, v17")
    a("v_cvt_pk_bf16_f32 v16, v16, v17")
    set_exec(0xFFFFFFFF)
    a(f"global_store_dword v7, v16, {sp(sBA)} sc1")
    stamp(11)
    finish_wave()


def wq_pf():
    a(f"s_lshl_b32 s{sT0}, s{sT0}, 6")
    a(f"s_add_u32 s{sT0}, s{sT0}, s{sT1}")
    a(f"s_lshl_b32 s{sT0}, s{sT0}, 10")
    a("v_lshlrev_b32 v8, 13, v14")
    a("v_lshl_add_u32 v8, v15, 7, v8")
    a(f"v_add_u32 v8, s{sT0}, v8")
    prefetch(8, sWQ)


def sec_entry():
    a(f"{NAME}_kernel:")
    a("s_load_dwordx16 s[4:19], s[0:1], 0")
    a("s_load_dwordx8 s[20:27], s[0:1], 64")
    a("s_load_dwordx2 s[30:31], s[0:1], 104")
    if OPT["stamps"]:
        a("v_mov_b32 v126, 0")
        a("s_memrealtime s[100:101]")
    if OPT["probe"]:
        a("s_load_dwordx2 s[28:29], s[0:1], 96")
        a("s_memrealtime s[100:101]")
    a("s_cmp_ge_u32 s2, 256")
    a("s_cbranch_scc1 L_exit")
    a("v_lshrrev_b32 v1, 6, v0")
    if OPT["pf"]:
        a(f"s_getpc_b64 {sp(sPC)}")
        a.label("L_pc0")
        a("v_lshlrev_b32 v2, 7, v0")
    a(f"v_readfirstlane_b32 s{sWAVE}, v1")
    if OPT["pf"]:
        a(f"s_sub_u32 s{sPC}, s{sPC}, L_pc0-L_code0")
        a(f"s_subb_u32 s{sPC + 1}, s{sPC + 1}, 0")
        a("v_cmp_gt_u32 vcc, (L_exit-L_code0)/128, v0")
        a("s_cbranch_vccz L_nopf")
        a("s_mov_b64 exec, vcc")
        a(f"global_load_dword v127, v2, {sp(sPC)}")
        a("s_mov_b64 exec, -1")
        a.label("L_nopf")
    a("v_and_b32 v0, 63, v0")
    a(f"s_and_b32 s{sT1}, s2, 7")
    a(f"s_lshr_b32 s{sT2}, s2, 3")
    a("v_lshrrev_b32 v1, 2, v0        ; l>>2")
    a("v_and_b32 v2, 3, v0            ; l&3")
    a("v_lshrrev_b32 v3, 4, v0        ; l>>4")
    a("v_mov_b32 v4, 0")
    a("v_and_b32 v5, 3, v1")
    a("v_lshrrev_b32 v14, 3, v0")
    a("v_and_b32 v15, 7, v0")
    a("s_cmp_lt_u32 s2, 128")
    a("s_cbranch_scc1 L_G")
    a(f"s_sub_u32 s{sT2}, s{sT2}, 16             ; a = 4b + s")
    a(f"s_and_b32 s{sT0}, s{sT2}, 12")
    a(f"s_lshl_b32 s{sT0}, s{sT0}, 1")
    a(f"s_add_u32 s{sT0}, s{sT0}, s{sT1}")
    a(f"s_lshl_b32 s{sT0}, s{sT0}, 4")
    a(f"s_and_b32 s{sT3}, s{sT2}, 3")
    a(f"s_add_u32 s{sT0}, s{sT0}, s{sT3}")
    a(f"s_lshl_b32 s{sT0}, s{sT0}, 3")
    a(f"s_add_u32 s{sT0}, s{sT0}, s{sWAVE}")
    a(f"s_lshl_b32 s{sT0}, s{sT0}, 13")
    a(f"s_add_u32 s{sT0}, s{sT0}, {3072 * 256 + 4096}")
    a("v_lshlrev_b32 v6, 8, v5")
    a("v_lshl_add_u32 v6, v3, 6, v6")
    a("v_lshl_add_u32 v6, v2, 4, v6")
    a("v_lshlrev_b32 v7, 4, v0")
    a("v_lshlrev_b32 v8, 2, v2")
    a(f"ds_write_b32 v8, v4 offset:{LQF}")
    a("s_waitcnt lgkmcnt(0)")
    a("s_barrier                      ; 0")
    base(sBA, sK, sT0)
    base(sBB, sV, sT0)
    a(f"global_load_dword v12, v4, {sp(sWS)} sc1      ; epoch")
    if OPT["ahelp"]:
        a(f"s_cmp_lg_u32 s{sWAVE}, 0")
        a("s_cbranch_scc1 L_nopfq")
        a(f"s_add_u32 s{sT0}, s{sT2}, 48")
        wq_pf()
        a.label("L_nopfq")
    if OPT["athr"] < 8:
        a(f"s_cmp_lt_u32 s{sWAVE}, {OPT['athr']}")
        a("s_cbranch_scc1 L_Ald")
        a("s_waitcnt vmcnt(0)")
        a.label("L_Ald")
    for u in range(8):
        a(f"global_load_dwordx4 {vr(KR + 4 * u, 4)}, v6, {sp(sBA)} offset:{1024 * u - 4096}{NT}")
    for u in range(8):
        a(f"global_load_dwordx4 {vr(VR + 4 * u, 4)}, v7, {sp(sBB)} offset:{1024 * u - 4096}{NT}")
    a("s_branch L_A2")
    a.label("L_G")
    a(f"s_and_b32 s{sT3}, s{sT2}, 1")
    a(f"s_lshr_b32 s{sT0}, s{sT2}, 2")
    a(f"s_and_b32 s{sT0}, s{sT0}, 2")
    a(f"s_or_b32 s{sKIND}, s{sT3}, s{sT0}")
    if OPT["pfa"]:
        a("v_lshrrev_b32 v6, 1, v0")
        a(f"v_lshl_add_u32 v6, s{sT2}, 5, v6")
        a("v_mul_u32_u24 v6, 6144, v6")
        a("v_and_b32 v7, 1, v0")
        a("v_lshl_add_u32 v6, v7, 10, v6")
        a(f"v_lshl_add_u32 v6, s{sT1}, 7, v6")
        a(f"s_cmp_lg_u32 s{sWAVE}, 0")
        a("s_cbranch_scc1 L_nopfa")
        a("s_waitcnt lgkmcnt(0)")
        prefetch(6, sWM)
        a.label("L_nopfa")
    a(f"s_bfe_u32 s{sT0}, s{sT2}, 0x20001")
    a(f"s_lshl2_add_u32 s{sCNT}, s{sT1}, s{sT0}      ; p = 4g + ((m>>1)&3)")
    a(f"s_cmp_eq_u32 s{sKIND}, 1")
    a("s_cbranch_scc1 L_GA")
    a(f"s_sub_u32 s{sT4}, s{sWAVE}, 1")
    a(f"s_cmp_ge_u32 s{sT4}, 4")
    a("s_cbranch_scc1 L_nopfw")
    a(f"s_lshr_b32 s{sT0}, s{sT2}, 1")
    a(f"s_lshl2_add_u32 s{sT0}, s{sT3}, s{sT0}")
    a(f"s_lshl2_add_u32 s{sT0}, s{sT0}, s{sT4}")
    a("s_waitcnt lgkmcnt(0)")
    wq_pf()
    a.label("L_nopfw")
    a(f"s_cmp_eq_u32 s{sKIND}, 3")
    a("s_cbranch_scc1 L_GB")
    a(f"s_lshl_b32 s{sT0}, s{sWAVE}, 9")
    a(f"s_add_u32 s{sT0}, s{sT0}, s{sT1}")
    a(f"s_lshl4_add_u32 s{sT0}, s{sT0}, s{sT2}")
    a(f"s_lshl_b32 s{sT0}, s{sT0}, 6")
    a("v_lshlrev_b32 v6, 16, v14")
    a("v_lshl_add_u32 v6, v15, 4, v6")
    a(f"s_movk_i32 s{sT3}, 8192")
    a(f"s_lshr_b32 s{sT4}, s{sT2}, 2")
    a(f"s_lshl2_add_u32 s{sT4}, s{sT1}, s{sT4}")
    a(f"s_mul_i32 s{sT4}, s{sT4}, {NREP * 128}")
    a(f"s_and_b32 s{sCNT}, s{sT2}, 2")
    a(f"s_add_u32 s{sCNT}, s{sCNT}, s{sWAVE}")
    a(f"s_lshl2_add_u32 s{sT4}, s{sCNT}, s{sT4}")
    a(f"s_add_u32 s{sT4}, s{sT4}, {FL:#x}")
    a(f"v_and_b32 v96, {NREP - 1}, v0")
    a(f"v_lshl_add_u32 v96, v96, 7, s{sT4}")
    a("s_waitcnt lgkmcnt(0)")
    base(sBB, sWQ, sT0)
    a(f"global_load_dword v12, v4, {sp(sWS)} sc1      ; epoch")
    a(f"s_cmp_lg_u32 s{sWAVE}, 1")
    a("s_cbranch_scc1 L_G_ld")
    a(f"global_load_dword v127, v96, {sp(sWS)} sc1")
    a.label("L_G_ld")
    for j in range(8):
        a(f"global_load_dwordx4 {vr(W + 4 * j, 4)}, v6, {sp(sBB)}{NT}")
        if j < 7:
            a(f"v_add_u32 v6, s{sT3}, v6")
    a(f"s_cmp_eq_u32 s{sKIND}, 1")
    a("s_cbranch_scc0 L_GQ2")
    a("s_branch L_GM2")
    a.label("L_GA")
    a(f"s_cmp_ge_u32 s{sWAVE}, 4")
    a("s_cbranch_scc1 L_GQA")
    a(f"s_lshl_b32 s{sT0}, s{sCNT}, 5")
    a(f"s_mul_i32 s{sT3}, s{sWAVE}, {128 * 6144}")
    a(f"s_add_u32 s{sT0}, s{sT0}, s{sT3}")
    a("v_lshlrev_b32 v5, 10, v5")
    a("v_lshl_add_u32 v5, v3, 6, v5")
    a("v_lshl_add_u32 v5, v2, 4, v5")
    a(f"v_lshl_add_u32 v5, s{sWAVE}, 8, v5")
    a("v_mul_u32_u24 v6, 49152, v1")
    a("v_and_b32 v7, 1, v2")
    a("v_lshl_add_u32 v6, v7, 4, v6")
    a("v_lshrrev_b32 v7, 1, v2")
    a("v_lshl_add_u32 v6, v7, 10, v6")
    a("v_mov_b32 v96, 0")
    a(f"s_movk_i32 s{sT3}, 6144")
    a("s_waitcnt lgkmcnt(0)")
    base(sBB, sWM, sT0)
    a(f"global_load_dwordx4 v[8:11], v5, {sp(sC)}")
    a("s_branch L_G_ld")
    a.label("L_GQA")
    a("s_setprio 3")
    a("v_and_b32 v7, 15, v0")
    a("v_lshlrev_b32 v13, 10, v3")
    a("v_lshl_add_u32 v14, v7, 4, v13")
    a("v_lshl_add_u32 v15, v7, 1, v13")
    a(f"v_lshl_add_u32 v15, s{sCNT}, 5, v15")
    a("s_waitcnt lgkmcnt(0)")
    a(f"s_cmp_lg_u32 s{sWAVE}, 7")
    a("s_cbranch_scc1 L_GQA2")
    a(f"global_load_dword v12, v4, {sp(sWS)} sc1      ; epoch")
    for t in range(4):
        a(f"global_load_dwordx4 {vr(80 + 4 * t, 4)}, v14, {sp(sX)} offset:{256 * t}")
    a(f"global_load_ushort v13, v15, {sp(sX)}")
    a("s_branch L_GQA2")
    a.label("L_GB")
    a(f"s_cmp_lg_u32 s{sWAVE}, 7")
    a("s_cbranch_scc1 L_GB1")
    a("s_setprio 3")
    a(f"s_mul_i32 s{sT0}, s{sCNT}, {CLR_PER_WG * 1024}")
    a("v_lshlrev_b32 v6, 4, v0")
    for i in range(4):
        a(f"v_mov_b32 v{8 + i}, -1")
    a("s_waitcnt lgkmcnt(0)")
    base(sBA, sWS, sT0, CLR + 4096)
    a(f"global_load_dword v12, v4, {sp(sWS)} sc1      ; epoch")
    for i in range(CLR_PER_WG):
        a(f"global_store_dwordx4 v6, v[8:11], {sp(sBA)} offset:{1024 * i - 4096} sc1")
    a("s_branch L_GB2")


def ids():
    a(f"s_mov_b32 s{sG}, s{sT1}")
    a(f"s_mov_b32 s{sM}, s{sT2}")
    sels()
    if OPT["stamps"]:
        a("v_writelane_b32 v126, s100, 0")
    if OPT["probe"]:
        a("v_mov_b32 v160, s28")
        a("v_mov_b32 v161, s29")
        a("v_mov_b32 v163, s100")


def silu_frag():
    unpack(80, 8, 4)
    for i in range(8):
        a(f"v_mul_f32 v{88 + i}, {0x80000000 | LOG2E:#x}, v{80 + i}")
    for i in range(8):
        a(f"v_exp_f32 v{88 + i}, v{88 + i}")
    for i in range(8):
        a(f"v_add_f32 v{88 + i}, 1.0, v{88 + i}")
    for i in range(8):
        a(f"v_rcp_f32 v{88 + i}, v{88 + i}")
    for i in range(8):
        a(f"v_mul_f32 v{80 + i}, v{80 + i}, v{88 + i}")
    for i in range(4):
        a(f"v_cvt_pk_bf16_f32 v{8 + i}, v{80 + 2 * i}, v{81 + 2 * i}")


def xcc_flag():
    a(f"s_lshr_b32 s{sT0}, s{sM}, 2")
    a(f"s_lshl2_add_u32 s{sT0}, s{sG}, s{sT0}")
    a(f"s_mul_i32 s{sT0}, s{sT0}, {NREP * 128}")
    a(f"s_and_b32 s{sT1}, s{sM}, 2")
    a(f"s_lshl1_add_u32 s{sT0}, s{sT1}, s{sT0}")
    a(f"s_add_u32 s{sT0}, s{sT0}, {FL + 16:#x}")
    a(f"v_and_b32 v5, {NREP - 1}, v0")
    a(f"v_lshl_add_u32 v5, v5, 7, s{sT0}")
    a(f"s_getreg_b32 s{sT0}, hwreg(HW_REG_XCC_ID, 0, 4)")
    a(f"s_xor_b32 s{sT0}, s{sTAG}, s{sT0}")
    a(f"v_mov_b32 v6, s{sT0}")
    a(f"global_store_dword v5, v6, {sp(sWS)}")


def cf_poll():
    base(sBB, sWS, None, CF)
    a("v_and_b32 v5, 31, v0")
    a("v_lshlrev_b32 v5, 7, v5")
    lab = poll_begin()
    a(f"global_load_dword v6, v5, {sp(sBB)} sc1")
    poll_mid(sleep=4)
    a(f"v_cmp_ne_u32 vcc, s{sTAG}, v6")
    poll_end(lab)


def tile64_tail(first):
    for e in range(first, 8):
        a(mfma(ACC + 4 * e, 8, F + 4 * e))
    for e in range(8):
        a(f"v_add_f32_dpp v{80 + e}, v{ACC + 4 * e + 1}, v{ACC + 4 * e} row_shl:8 {DPPM}")
    set_exec(0x00FF00FF00FF00FF)
    a("ds_write_b128 v6, v[80:83]")
    a("ds_write_b128 v6, v[84:87] offset:16")
    set_exec(-1)


def tile64_addr():
    a("v_lshlrev_b32 v6, 8, v3")
    a("v_lshl_add_u32 v6, v15, 5, v6")
    a(f"v_lshl_add_u32 v6, s{sWAVE}, 10, v6")
    a("v_lshlrev_b32 v7, 3, v0")
    a(f"v_lshl_add_u32 v7, s{sWAVE}, 9, v7")


def tile64_sum():
    for t in range(4):
        a(f"ds_read2st64_b64 {vr(16 + 4 * t, 4)}, v7 offset0:{4 * t} offset1:{4 * t + 2}")


def sec_gm():
    CLS[0] = 0
    a.label("L_GM2")
    ids()
    stamp(1)
    a("s_waitcnt vmcnt(8)")
    silu_frag()
    a("v_lshlrev_b32 v5, 7, v3")
    a("v_lshl_add_u32 v5, v2, 5, v5")
    a(f"v_lshl_add_u32 v5, s{sWAVE}, 9, v5")
    perms8(W, F, waits=[6, 4, 2, 0])
    for e in range(8):
        a(mfma(ACC + 4 * e, 8, F + 4 * e))
    diagX_reduce(ACC, 48)
    set_exec(0x000F000F000F000F)
    a("ds_write_b128 v5, v[48:51]")
    a("ds_write_b128 v5, v[52:55] offset:16")
    set_exec(-1)
    a("s_waitcnt lgkmcnt(0)")
    stamp(2)
    a("s_barrier                      ; 1")
    if OPT["bhelp"]:
        a(f"s_lshl1_add_u32 s{sT0}, s{sM}, s{sWAVE}")
        a(f"s_add_u32 s{sT0}, s{sT0}, 14")
        a(f"s_mul_i32 s{sT0}, s{sT0}, {16 * 6144}")
        a(f"s_lshl_b32 s{sT1}, s{sG}, 9")
        a(f"s_add_u32 s{sT0}, s{sT0}, s{sT1}")
        a(f"s_add_u32 s{sT0}, s{sT0}, 2048")
        a("v_mul_u32_u24 v8, 6144, v1")
        a("v_lshl_add_u32 v8, v2, 7, v8")
        a(f"v_add_u32 v8, s{sT0}, v8")
        a("s_barrier")
        prefetch(8, sWM)
    a("s_branch L_WO")


def sec_gb():
    CLS[0] = 0
    a.label("L_GB1")
    a("s_waitcnt lgkmcnt(0)")
    a.label("L_GB2")
    ids()
    a("v_lshlrev_b32 v5, 10, v5")
    a("v_lshl_add_u32 v5, v3, 5, v5")
    a("v_and_b32 v7, 1, v0")
    a("v_lshl_add_u32 v5, v7, 4, v5")
    a(f"v_lshl_add_u32 v16, s{sWAVE}, 7, v5")
    a(f"s_lshl_b32 s{sT0}, s{sCNT}, 7")
    a(f"s_mul_i32 s{sT3}, s{sWAVE}, {64 * 6144}")
    a(f"s_add_u32 s{sT0}, s{sT0}, s{sT3}")
    base(sBC, sWM, sT0, 2048)
    a(f"s_lshl_b32 s{sT4}, s{sCNT}, 9           ; p*512")
    a("v_mul_u32_u24 v13, 49152, v14")
    a("v_lshl_add_u32 v13, v15, 4, v13")
    a(f"s_movk_i32 s{sT3}, 6144")
    a(f"s_cmp_lg_u32 s{sWAVE}, 7")
    a("s_cbranch_scc1 L_GB3")
    a("s_waitcnt vmcnt(0)")
    make_tag(12)
    base(sBB, sWS, None, CF)
    a(f"v_lshlrev_b32_e64 v5, 7, s{sCNT}")
    a(f"v_mov_b32 v6, s{sTAG}")
    set_exec(1)
    a(f"global_store_dword v5, v6, {sp(sBB)} sc1")
    set_exec(-1)
    xcc_flag()
    a("s_setprio 0")
    a.label("L_GB3")
    stamp(1)
    a("s_barrier")
    a(f"global_load_dwordx4 v[8:11], v16, {sp(sC)}")
    for j in range(8):
        a(f"global_load_dwordx4 {vr(W + 4 * j, 4)}, v13, {sp(sBC)}{NT}")
        if j < 7:
            a(f"v_add_u32 v13, s{sT3}, v13")
    a("s_waitcnt vmcnt(8)")
    silu_frag()
    tile64_addr()
    perms8(W, F, waits=[6, 4, 2, 0])
    tile64_tail(0)
    a(f"s_cmp_lg_u32 s{sWAVE}, 7")
    a("s_cbranch_scc1 L_GB4")
    cf_poll()
    a.label("L_GB4")
    a("s_waitcnt lgkmcnt(0)")
    stamp(2)
    a("s_barrier                      ; 1")
    a(f"s_cmp_ge_u32 s{sWAVE}, 2")
    a("s_cbranch_scc1 L_WO")
    tile64_sum()
    base(sBA, sWS, sT4, MODB)
    a("v_and_b32 v5, 2, v0")
    a("v_lshlrev_b32 v5, 7, v5")
    a("v_and_b32 v6, 32, v0")
    a("v_lshl_add_u32 v5, v6, 1, v5")
    a(f"v_lshl_add_u32 v5, s{sWAVE}, 7, v5")
    a("v_and_b32 v6, 13, v0")
    a("v_lshl_add_u32 v5, v6, 2, v5")
    a("v_bfe_u32 v6, v0, 4, 1")
    a("v_lshl_add_u32 v5, v6, 3, v5")
    a("s_waitcnt lgkmcnt(0)")
    sum8_b64(16)
    a("v_cvt_pk_bf16_f32 v12, v16, v17")
    a(f"global_store_dword v5, v12, {sp(sBA)} sc1")
    stamp(3)
    a("s_branch L_WO")


def sec_ln():
    CLS[0] = 0
    a.label("L_GQA2")
    ids()
    stamp(1)
    a(f"s_cmp_lg_u32 s{sWAVE}, 7")
    a("s_cbranch_scc1 L_GQA3")
    a("s_waitcnt vmcnt(0)")
    make_tag(12)
    unpack(16, 80, 16)
    a("v_pk_add_f32 v[8:9], v[16:17], v[18:19]")
    for i in range(2, 16):
        a(f"v_pk_add_f32 v[8:9], v[8:9], v[{16 + 2 * i}:{17 + 2 * i}]")
    a("v_add_f32 v8, v8, v9")
    row_allsum(8)
    a(f"v_mul_f32 v8, {INV512:#x}, v8       ; mean")
    a("v_mov_b32 v9, v8")
    for i in range(16):
        a(f"v_pk_add_f32 v[{16 + 2 * i}:{17 + 2 * i}], v[{16 + 2 * i}:{17 + 2 * i}], v[8:9] neg_lo:[0,1] neg_hi:[0,1]")
    a("v_pk_mul_f32 v[10:11], v[16:17], v[16:17]")
    for i in range(1, 16):
        a(f"v_pk_fma_f32 v[10:11], v[{16 + 2 * i}:{17 + 2 * i}], v[{16 + 2 * i}:{17 + 2 * i}], v[10:11]")
    a("v_add_f32 v10, v10, v11")
    row_allsum(10)
    a(f"v_mul_f32 v9, {INV512:#x}, v10      ; var")
    round_bf16([8, 9])
    a(f"v_add_f32 v9, {EPS:#x}, v9")
    round_bf16([9])
    a("v_sqrt_f32 v9, v9")
    round_bf16([9])
    a("v_rcp_f32 v9, v9")
    a("v_lshlrev_b32 v13, 16, v13")
    a("v_sub_f32 v13, v13, v8")
    round_bf16([13])
    a("v_mul_f32 v13, v13, v9")
    round_bf16([13])
    a("v_lshlrev_b32 v5, 7, v3")
    a("v_lshl_add_u32 v5, v7, 2, v5")
    a("v_add_u32 v10, 64, v5")
    a("v_lshlrev_b32 v14, 6, v3              ; b*64")
    a("v_and_b32 v8, 8, v7")
    a("v_lshl_add_u32 v14, v8, 2, v14        ; c'lo*32")
    a("v_and_b32 v8, 2, v7")
    a("v_lshl_add_u32 v14, v8, 3, v14        ; (d&1)*16")
    a("v_and_b32 v8, 4, v7")
    a("v_lshl_add_u32 v14, v8, 1, v14        ; (d>>1)*8")
    a(f"s_lshl_b32 s{sT0}, s{sCNT}, 8")
    base(sBA, sWS, sT0, H1)
    a(f"v_mov_b32 v9, s{sTAG}")
    stamp(2)
    a("s_barrier                      ; 1")
    a("ds_read2st64_b32 v[80:81], v5 offset0:0 offset1:2")
    a("ds_read2st64_b32 v[82:83], v5 offset0:4 offset1:6")
    a("ds_read2st64_b32 v[84:85], v10 offset0:0 offset1:2")
    a("ds_read2st64_b32 v[86:87], v10 offset0:4 offset1:6")
    a("s_waitcnt lgkmcnt(0)")
    a("v_pk_add_f32 v[80:81], v[80:81], v[82:83]")
    a("v_pk_add_f32 v[84:85], v[84:85], v[86:87]")
    a("v_add_f32 v80, v80, v81               ; sa")
    a("v_add_f32 v81, v84, v85               ; ca")
    round_bf16([80, 81])
    a("v_add_f32 v81, 1.0, v81")
    round_bf16([81])
    a("v_mul_f32 v81, v13, v81")
    round_bf16([81])
    a("v_add_f32 v80, v81, v80")
    a(f"v_mov_b32_dpp v81, v80 quad_perm:[1,1,3,3] {DPPM}")
    a("v_cvt_pk_bf16_f32 v8, v80, v81")
    set_exec(0x5555555555555555)
    a(f"global_store_dwordx2 v14, v[8:9], {sp(sBA)} sc1")
    set_exec(-1)
    stamp(3)
    xcc_flag()
    if OPT["bhelp"]:
        a("s_barrier                      ; 1b")
    cf_poll()
    a("s_branch L_WO")
    a.label("L_GQA3")
    a("s_barrier                      ; 1")
    if OPT["bhelp"]:
        a("s_barrier                      ; 1b")
    a("s_branch L_WO")


def sec_gq():
    CLS[0] = 0
    a.label("L_GQ2")
    ids()
    stamp(1)
    a(f"s_lshl_b32 s{sT0}, s{sWAVE}, 10")
    base(sBA, sWS, sT0, H1)
    a(f"s_lshl_b32 s{sT0}, s{sWAVE}, 9")
    base(sBC, sWS, sT0, CF)
    a("v_lshlrev_b32 v5, 6, v1")
    a("v_and_b32 v7, 1, v0")
    a("v_lshl_add_u32 v5, v7, 5, v5")
    a("v_lshlrev_b32 v98, 7, v2")
    tile64_addr()
    a(f"s_lshl_b32 s{sT0}, s{sG}, 12")
    a(f"s_lshl_b32 s{sT1}, s{sM}, 6")
    a(f"s_add_u32 s{sT0}, s{sT0}, s{sT1}")
    a(f"s_lshl_b32 s{sT1}, s{sWAVE}, 11")
    a(f"s_add_u32 s{sT0}, s{sT0}, s{sT1}")
    a("v_and_b32 v97, 31, v0")
    a(f"v_lshl_add_u32 v97, v97, 2, s{sT0}")
    a("v_and_b32 v99, 32, v0")
    a("v_lshl_add_u32 v97, v99, 5, v97")
    a("v_lshlrev_b32 v99, 1, v97")
    base(sBB, sWS, None, QS)
    a(f"s_cmp_ge_u32 s{sWAVE}, 2")
    a("s_cbranch_scc1 L_GQ3")
    a(f"global_load_dword v127, v97, {sp(sBB)} sc1")
    a.label("L_GQ3")
    a("s_waitcnt vmcnt(8)")
    make_tag(12)
    perms8(W, F, waits=[6, 4, 2, 0])
    stamp(4)
    lab = poll_begin()
    a(f"global_load_dwordx4 v[8:11], v5, {sp(sBA)} sc1")
    a(f"global_load_dwordx4 v[12:15], v5, {sp(sBA)} offset:16 sc1")
    a(f"global_load_dword v84, v98, {sp(sBC)} sc1")
    poll_mid()
    a(f"v_xor_b32 v80, s{sTAG}, v9")
    a(f"v_xor_b32 v81, s{sTAG}, v11")
    a("v_mov_b32 v9, v12")
    a("v_mov_b32 v11, v14")
    a(f"v_xor_b32 v82, s{sTAG}, v13")
    a(f"v_xor_b32 v83, s{sTAG}, v15")
    interleave([mfma(ACC + 4 * e, 8, F + 4 * e) for e in range(2)],
               [f"v_xor_b32 v84, s{sTAG}, v84", "v_or3_b32 v80, v80, v81, v82", "v_or3_b32 v80, v80, v83, v84", "v_cmp_ne_u32 vcc, 0, v80"], 2)
    poll_end(lab)
    tile64_tail(2)
    a("s_waitcnt lgkmcnt(0)")
    stamp(5)
    a("s_barrier                      ; 1")
    a(f"s_cmp_ge_u32 s{sWAVE}, 2")
    a("s_cbranch_scc1 L_WO")
    tile64_sum()
    base(sBA, sWS, None, H2G)
    a(f"s_getreg_b32 s{sT0}, hwreg(HW_REG_XCC_ID, 0, 4)")
    a(f"s_xor_b32 s{sT0}, s{sTAG}, s{sT0}")
    a(f"v_mov_b32 v9, s{sT0}")
    a("s_waitcnt lgkmcnt(0)")
    sum8_b64(16)
    a("v_cvt_pk_bf16_f32 v8, v16, v17")
    a(f"global_store_dword v97, v8, {sp(sBB)}")
    a("s_waitcnt vmcnt(0)")
    a(f"global_store_dword v96, v9, {sp(sWS)}")
    a(f"global_store_dwordx2 v99, v[8:9], {sp(sBA)} sc1")
    stamp(6)
    a("s_branch L_WO")


WD = 128


def down_loads():
    a(f"s_lshr_b32 s{sT2}, s{sM}, 1")
    a(f"s_lshl2_add_u32 s{sT0}, s{sG}, s{sT2}")
    a(f"s_lshl_b32 s{sT0}, s{sT0}, 5")
    a(f"s_lshl_b32 s{sT2}, s{sWAVE}, 18")
    a(f"s_add_u32 s{sT0}, s{sT0}, s{sT2}")
    base(sBB, sWD, sT0, 4096)
    a("v_lshlrev_b32 v6, 13, v1")
    a("v_lshl_add_u32 v6, v2, 3, v6")
    a("v_add_u32 v7, 0x20000, v6")
    for f in range(2):
        for j in range(8):
            a(f"global_load_dwordx2 {vr(WD + 16 * f + 2 * j, 2)}, v{7 if f else 6}, {sp(sBB)} offset:{1024 * j - 4096}{NTW}")


def sec_wo():
    CLS[0] = 0
    a.label("L_WO")
    a(f"s_lshr_b32 s{sT1}, s{sWAVE}, 1")
    a(f"s_lshl2_add_u32 s{sT0}, s{sG}, s{sT1}")
    a(f"s_lshl_b32 s{sT0}, s{sT0}, 5")
    a(f"s_and_b32 s{sT2}, s{sWAVE}, 1")
    a(f"s_add_u32 s{sT0}, s{sT0}, s{sT2}")
    a(f"s_lshl_b32 s{sT0}, s{sT0}, 6            ; (512g + 128h + 4*(i&1)) * 16")
    a(f"s_add_u32 s{sT0}, s{sT0}, s{sM}")
    a(f"s_lshl_b32 s{sT0}, s{sT0}, 6")
    base(sBB, sWO, sT0)
    a("v_and_b32 v7, 15, v0")
    a("v_and_b32 v6, 1, v3")
    a("v_lshlrev_b32 v6, 16, v6")
    a("v_lshrrev_b32 v5, 1, v3")
    a("v_lshl_add_u32 v6, v5, 10, v6")
    a("v_lshl_add_u32 v6, v7, 2, v6")
    a(f"s_movk_i32 s{sT3}, 8192")
    a("s_setprio 0")
    a(f"s_lshl4_add_u32 s{sT0}, s{sG}, s{sM}")
    a(f"s_lshl2_add_u32 s{sT0}, s{sT0}, s{sWAVE}")
    a(f"s_lshl_b32 s{sT0}, s{sT0}, 13")
    a(f"v_lshl_add_u32 v8, v0, 7, s{sT0}")
    if OPT["wowait"]:
        a(f"s_and_b32 s{sT0}, s{sM}, 1")
        a(f"s_lshl_b32 s{sT0}, s{sT0}, 3")
        a(f"s_add_u32 s{sT0}, s{sT0}, s{sWAVE}")
        a(f"s_cmp_lg_u32 s{sT0}, 15")
        a("s_cbranch_scc1 L_WO0")
        a(f"s_mul_i32 s{sT0}, s{sG}, {4 * NREP * 128}")
        base(sBA, sWS, sT0, FL)
        a("v_and_b32 v9, 3, v1")
        a(f"v_mul_u32_u24 v9, {NREP * 128}, v9")
        a("v_lshl_add_u32 v9, v2, 2, v9")
        a(f"s_movk_i32 s{sCNT}, 40")
        a.label("L_WOw")
        a(f"global_load_dword v10, v9, {sp(sBA)} sc1")
        poll_mid(sleep=2)
        a(f"v_xor_b32 v10, s{sTAG}, v10")
        a("v_cmp_gt_u32 vcc, 16, v10")
        a("s_cmp_eq_u64 vcc, 0")
        a("s_cselect_b64 vcc, -1, 0")
        poll_end("L_WOw")
        a.label("L_WO0")
    a("s_barrier")
    if OPT["wopf"]:
        a(f"s_cmp_ge_u32 s{sWAVE}, 4")
        a("s_cbranch_scc1 L_WO1")
        prefetch(8, sWO)
        a.label("L_WO1")
    for j in range(8):
        for ks in range(2):
            a(f"global_load_dword v{96 + 8 * ks + j}, v6, {sp(sBB)} offset:{2048 * ks}{NTW}")
        if j < 7:
            a(f"v_add_u32 v6, s{sT3}, v6")
    a(f"s_lshl3_add_u32 s{sT0}, s{sG}, s{sWAVE}")
    a(f"s_lshl_b32 s{sT0}, s{sT0}, 11")
    base(sBA, sWS, sT0, H3O)
    a(f"s_lshl2_add_u32 s{sT0}, s{sG}, s{sT1}")
    a(f"s_lshl_b32 s{sT0}, s{sT0}, 7")
    base(sBC, sWS, sT0, H3ML)
    a("v_lshlrev_b32 v5, 4, v0")
    a("v_lshlrev_b32 v6, 5, v3")
    a("v_lshlrev_b32 v12, 3, v0")
    a(f"v_lshl_add_u32 v7, s{sWAVE}, 9, v12")
    a("s_waitcnt vmcnt(0)")
    stamp(7)
    for ks in range(2):
        for eo in range(2):
            for x in range(4):
                a(f"v_perm_b32 v{32 + 8 * ks + 4 * eo + x}, v{96 + 8 * ks + 2 * x + 1}, v{96 + 8 * ks + 2 * x}, s{sHI if eo else sLO}")
    lab = poll_begin()
    a(f"global_load_dwordx4 v[56:59], v6, {sp(sBC)} sc1")
    a(f"global_load_dwordx4 v[60:63], v6, {sp(sBC)} offset:16 sc1")
    poll_mid()
    for ins in sentinel_ops(range(56, 64), 8):
        a(ins)
    poll_end(lab)
    a(f"s_lshl4_add_u32 s{sT0}, s{sG}, s{sM}")
    a(f"s_lshl_b32 s{sT0}, s{sT0}, 8")
    base(sBB, sWS, sT0, H4)
    a("v_lshlrev_b32 v6, 2, v0")
    a("v_max3_f32 v8, v56, v58, v60")
    a("v_max_f32 v8, v8, v62")
    for s in range(4):
        a(f"v_sub_f32 v{56 + 2 * s}, v{56 + 2 * s}, v8")
    for s in range(4):
        a(f"v_exp_f32 v{56 + 2 * s}, v{56 + 2 * s}")
    a("v_mul_f32 v9, v56, v57")
    for s in range(1, 4):
        a(f"v_fmac_f32 v9, v{56 + 2 * s}, v{57 + 2 * s}")
    a("v_rcp_f32 v9, v9")
    for s in range(4):
        a(f"v_mul_f32 v{64 + s}, v{56 + 2 * s}, v9")
    stamp(8)
    lab = poll_begin()
    a(f"global_load_dwordx4 v[48:51], v5, {sp(sBA)} sc1")
    a(f"global_load_dwordx4 v[52:55], v5, {sp(sBA)} offset:1024 sc1")
    poll_mid()
    interleave([mfma(16, 48, 32), mfma(20, 48, 36), mfma(16, 52, 40, 16), mfma(20, 52, 44, 20)],
               sentinel_ops(range(48, 56), 8), 2)
    poll_end(lab)
    a("v_pk_mul_f32 v[16:17], v[16:17], v[64:65]")
    a("v_pk_mul_f32 v[20:21], v[20:21], v[64:65]")
    a("v_pk_fma_f32 v[16:17], v[18:19], v[66:67], v[16:17]")
    a("v_pk_fma_f32 v[20:21], v[22:23], v[66:67], v[20:21]")
    a("v_add_f32 v10, v16, v17")
    a("v_add_f32 v11, v20, v21")
    a("ds_write_b64 v7, v[10:11] offset:6144")
    a("s_waitcnt lgkmcnt(0)")
    stamp(9)
    a("s_barrier                      ; 3")
    a(f"s_cmp_lg_u32 s{sWAVE}, 7")
    a("s_cbranch_scc1 L_DOWN")
    for t in range(4):
        a(f"ds_read2st64_b64 {vr(16 + 4 * t, 4)}, v12 offset0:{12 + 2 * t} offset1:{13 + 2 * t}")
    a("s_waitcnt lgkmcnt(0)")
    sum8_b64(16)
    a("v_cvt_pk_bf16_f32 v8, v16, v17")
    a(f"global_store_dword v6, v8, {sp(sBB)} sc1")
    a(f"s_mul_i32 s{sT0}, s{sM}, {112 * 1024}")
    a(f"s_lshl_b32 s{sT1}, s{sG}, 7")
    a(f"s_add_u32 s{sT0}, s{sT0}, s{sT1}")
    a(f"v_lshl_add_u32 v9, v0, 10, s{sT0}")
    a(f"v_add_u32 v10, {48 * 1024}, v9")
    prefetch(9, sWD, True)
    prefetch(10, sWD, True)
    stamp(10)
    a(f"s_cmp_lg_u32 s{sKIND}, 1")
    a("s_cbranch_scc1 L_fin")
    a("s_barrier                      ; 3b")
    a(f"s_lshr_b32 s{sT1}, s{sM}, 1")
    a(f"s_lshl2_add_u32 s{sT2}, s{sG}, s{sT1}       ; col0/16")
    a(f"s_lshl_b32 s{sT0}, s{sG}, 9")
    a(f"s_and_b32 s{sT3}, s{sT1}, 1")
    a(f"s_lshl_b32 s{sT3}, s{sT3}, 5")
    a(f"s_add_u32 s{sT0}, s{sT0}, s{sT3}")
    a(f"s_and_b32 s{sT3}, s{sT1}, 2")
    a(f"s_lshl2_add_u32 s{sT0}, s{sT3}, s{sT0}")
    base(sBA, sWS, sT0, X1)
    base(sBB, sWS, sT0, MODB + 3 * 4096)
    a("v_and_b32 v7, 4, v0")
    a("v_lshlrev_b32 v5, 6, v7")
    a("v_lshl_add_u32 v5, v3, 6, v5")
    a("v_and_b32 v7, 10, v0")
    a("v_lshl_add_u32 v5, v7, 1, v5")
    a(f"s_lshl_b32 s{sT0}, s{sT2}, 5")
    base(sBC, sOUT, sT0)
    a("v_and_b32 v7, 15, v0")
    a("v_lshlrev_b32 v11, 10, v3")
    a("v_lshl_add_u32 v11, v7, 1, v11")
    a("v_and_b32 v7, 1, v0")
    a("v_lshlrev_b32 v7, 4, v7")
    a("s_barrier")
    lab = poll_begin()
    a(f"global_load_dword v8, v5, {sp(sBA)} sc1")
    a(f"global_load_dword v9, v5, {sp(sBB)} sc1")
    poll_mid()
    for ins in sentinel_ops([8, 9], 10):
        a(ins)
    poll_end(lab)
    a("v_lshrrev_b32 v8, v7, v8")
    a("v_lshrrev_b32 v9, v7, v9")
    a("v_lshlrev_b32 v8, 16, v8              ; x1")
    a("v_lshlrev_b32 v9, 16, v9              ; gb")
    stamp(12)
    a("s_barrier                      ; 4")
    for t in range(7):
        a(f"ds_read2st64_b32 v[{16 + 2 * t}:{17 + 2 * t}], v6 offset0:{40 + 2 * t} offset1:{41 + 2 * t}")
    a("s_waitcnt lgkmcnt(3)")
    a("v_pk_add_f32 v[16:17], v[16:17], v[18:19]")
    a("v_pk_add_f32 v[20:21], v[20:21], v[22:23]")
    a("v_pk_add_f32 v[16:17], v[16:17], v[20:21]")
    a("s_waitcnt lgkmcnt(0)")
    a("v_pk_add_f32 v[24:25], v[24:25], v[26:27]")
    a("v_pk_add_f32 v[16:17], v[16:17], v[28:29]")
    a("v_pk_add_f32 v[16:17], v[16:17], v[24:25]")
    a("v_add_f32 v16, v16, v17")
    a("v_fma_f32 v16, v9, v16, v8")
    a("v_cvt_pk_bf16_f32 v16, v16, v16")
    a(f"global_store_short v11, v16, {sp(sBC)}")
    stamp(13)
    a("s_cmp_lg_u32 s2, 8")
    a("s_cbranch_scc1 L_fin")
    a(f"v_mov_b32 v8, s{sTAG}")
    set_exec(1)
    a(f"global_store_dword v4, v8, {sp(sWS)} sc1")
    a.label("L_fin")
    finish_wave()


def sec_down():
    CLS[0] = 0
    a.label("L_DOWN")
    a(f"s_cmp_lg_u32 s{sKIND}, 1")
    a("s_cbranch_scc1 L_fin")
    a("s_barrier                      ; 3b")
    down_loads()
    a(f"s_lshl_b32 s{sT0}, s{sWAVE}, 11")
    base(sBA, sWS, sT0, ACT)
    a("v_lshlrev_b32 v6, 7, v3")
    a("v_lshl_add_u32 v6, v2, 4, v6")
    a(f"v_lshl_add_u32 v6, s{sWAVE}, 9, v6")
    a("s_waitcnt vmcnt(0)")
    a("s_barrier                      ; 3c")
    for f in range(2):
        for e in range(4):
            for x in range(4):
                a(f"v_perm_b32 v{48 + 16 * f + 4 * e + x}, v{WD + 16 * f + 2 * (2 * x + 1) + (e >> 1)}, "
                  f"v{WD + 16 * f + 2 * (2 * x) + (e >> 1)}, s{sHI if e & 1 else sLO}")
    stamp(11)
    lab = poll_begin()
    a(f"global_load_dwordx4 v[8:11], v5, {sp(sBA)} sc1")
    a(f"global_load_dwordx4 v[12:15], v5, {sp(sBA)} offset:1024 sc1")
    poll_mid()
    interleave([mfma(16 + 4 * e, 8, 48 + 4 * e) for e in range(3)], sentinel_ops(range(8, 16), 7), 2)
    poll_end(lab)
    a(mfma(28, 8, 60))
    for e in range(4):
        a(mfma(16 + 4 * e, 12, 64 + 4 * e, 16 + 4 * e))
    for e in range(4):
        for b0 in range(2):
            a(f"v_add_f32_dpp v{32 + 4 * b0 + e}, v{16 + 4 * e + 2 * b0 + 1}, v{16 + 4 * e + 2 * b0} row_shl:4 {DPPM}")
    set_exec(0x0F000F00000F000F)
    a("ds_write_b128 v6, v[32:35] offset:10240")
    a("ds_write_b128 v6, v[36:39] offset:10304")
    a("s_waitcnt lgkmcnt(0)")
    stamp(12)
    a("s_barrier                      ; 4")
    finish_wave()


def sec_att():
    CLS[0] = 1
    a.label("L_A2")
    ids()
    stamp(1)
    a(f"s_cmp_lt_u32 s{sWAVE}, 4")
    a("s_cbranch_scc1 L_A2b")
    a(f"s_bitcmp1_b32 s{sWAVE}, 0")
    a(f"s_cselect_b64 {sp(sBA)}, {sp(sWU)}, {sp(sWG)}")
    a(f"s_and_b32 s{sT0}, s{sWAVE}, 2")
    a(f"s_lshl2_add_u32 s{sT0}, s{sM}, s{sT0}")
    a(f"s_mul_i32 s{sT0}, s{sT0}, {8 * 3584}")
    a(f"s_mul_i32 s{sT1}, s{sG}, 448")
    a(f"s_andn2_b32 s{sT1}, s{sT1}, 127")
    a(f"s_add_u32 s{sT0}, s{sT0}, s{sT1}")
    a("v_mul_u32_u24 v13, 3584, v1")
    a("v_lshl_add_u32 v13, v2, 7, v13")
    a(f"v_add_u32 v13, s{sT0}, v13")
    prefetch(13, sBA, True)
    a(f"s_waitcnt vmcnt({10 if OPT['pfpol'] == 2 else 9})")
    stamp(2)
    a("s_branch L_A3")
    a.label("L_A2b")
    a("s_waitcnt vmcnt(0)")
    make_tag(12)
    stamp(2)
    a(f"s_getreg_b32 s{sT0}, hwreg(HW_REG_XCC_ID, 0, 4)")
    a(f"s_xor_b32 s56, s{sTAG}, s{sT0}")
    a("s_mov_b32 s57, s56")
    a(f"s_lshl2_add_u32 s{sT0}, s{sG}, s{sWAVE}")
    a(f"s_mul_i32 s{sT0}, s{sT0}, {NREP * 128}")
    base(sBA, sWS, sT0, FL)
    a(f"s_mov_b32 s{sCNT}, 0")
    a.label("L_Aq")
    a(f"s_load_dwordx8 s[48:55], {sp(sBA)}, s{sCNT}")
    a(f"s_add_u32 s{sCNT}, s{sCNT}, 128")
    a("s_waitcnt lgkmcnt(0)")
    a("s_xor_b64 s[48:49], s[48:49], s[56:57]")
    a("s_xor_b64 s[50:51], s[50:51], s[56:57]")
    a("s_xor_b64 s[52:53], s[52:53], s[56:57]")
    a("s_or_b64 s[48:49], s[48:49], s[50:51]")
    a("s_or_b64 s[48:49], s[48:49], s[52:53]")
    a("s_cbranch_scc0 L_Aq_ok")
    if OPT["qsleep"]:
        a(f"s_sleep {OPT['qsleep']}")
    a(f"s_cmp_lt_u32 s{sCNT}, {NREP * 128}")
    a("s_cbranch_scc1 L_Aq")
    a(f"s_lshr_b32 s{sT0}, s{sM}, 2")
    a(f"s_lshl2_add_u32 s{sT0}, s{sG}, s{sT0}")
    a(f"s_lshl2_add_u32 s{sT0}, s{sT0}, s{sWAVE}")
    a(f"s_lshl_b32 s{sT0}, s{sT0}, 9")
    base(sBA, sWS, sT0, H2G)
    a("v_lshlrev_b32 v10, 3, v0")
    lab = poll_begin()
    a(f"global_load_dwordx2 v[8:9], v10, {sp(sBA)} sc1")
    poll_mid()
    a(f"v_xor_b32 v9, s{sTAG}, v9")
    a("v_cmp_lt_u32 vcc, 15, v9")
    poll_end(lab)
    a("v_mov_b32 v9, 2")
    if OPT["probe"] == 3:
        a("s_mov_b64 exec, 1")
        a("global_atomic_add v[160:161], v9, off offset:8")
        a("s_mov_b64 exec, -1")
    a("s_branch L_Aq_st")
    a.label("L_Aq_ok")
    a(f"s_lshr_b32 s{sT0}, s{sM}, 2")
    a(f"s_lshl2_add_u32 s{sT0}, s{sG}, s{sT0}")
    a(f"s_lshl2_add_u32 s{sT0}, s{sT0}, s{sWAVE}")
    a(f"s_lshl_b32 s{sT0}, s{sT0}, 8")
    a(f"s_add_u32 s{sT0}, s{sT0}, {QS:#x}")
    a(f"s_add_u32 s0, s{sWS}, s{sT0}")
    a(f"s_addc_u32 s1, s{sWS + 1}, 0")
    for t in range(4):
        a(f"s_load_dwordx16 s[{sQ + 16 * t}:{sQ + 16 * t + 15}], s[0:1], {64 * t}")
    a("v_mov_b32 v9, 1")
    a("s_waitcnt lgkmcnt(0)")
    for i in range(64):
        a(f"v_writelane_b32 v8, s{sQ + i}, {i}")
    a.label("L_Aq_st")
    a("v_lshlrev_b32 v10, 2, v0")
    a(f"v_lshl_add_u32 v10, s{sWAVE}, 8, v10")
    a(f"v_lshlrev_b32_e64 v11, 2, s{sWAVE}")
    a(f"ds_write_b32 v10, v8 offset:{LQ}")
    a(f"ds_write_b32 v11, v9 offset:{LQF}")
    a.label("L_A3")
    a(f"s_mul_i32 s{sT0}, s{sWAVE}, 2560")
    a("v_mul_u32_u24 v7, 576, v5")
    a("v_lshl_add_u32 v7, v2, 6, v7")
    a("v_lshl_add_u32 v7, v3, 4, v7")
    a(f"v_add_u32 v7, s{sT0}, v7")
    a("v_lshlrev_b32 v5, 5, v5               ; h*32")
    a(f"v_lshl_add_u32 v120, s{sWAVE}, 2, v5     ; h*32 + wave*4")
    a("v_lshlrev_b32 v124, 4, v0")
    a("v_add_u32 v125, 0x1000, v124")
    lab = poll_begin()
    a(f"ds_read_b128 v[12:15], v4 offset:{LQF}")
    a(f"ds_read_b128 v[8:11], v6 offset:{LQ}")
    poll_mid("lgkmcnt(0)")
    a("v_min3_u32 v112, v12, v13, v14")
    a("v_min_u32 v112, v112, v15")
    a("v_cmp_eq_u32 vcc, 0, v112")
    poll_end(lab)
    stamp(3)
    for u in range(8):
        a(mfma(SA + 4 * u, KR + 4 * u, 8))
    a("v_or3_b32 v12, v12, v13, v14")
    a("v_or_b32 v12, v12, v15")
    a("v_lshrrev_b32 v12, 1, v12")
    a(f"v_readfirstlane_b32 s{sLOCAL}, v12")
    S = 112
    for u in range(8):
        a(f"v_add_f32_dpp v{S + u}, v{SA + 4 * u + 1}, v{SA + 4 * u} row_shl:1 {DPPM}")
    for u in range(8):
        a(f"v_add_f32_dpp v{S + u}, v{SA + 4 * u + 2}, v{S + u} row_shl:2 {DPPM}")
    for u in range(8):
        a(f"v_add_f32_dpp v{S + u}, v{SA + 4 * u + 3}, v{S + u} row_shl:3 {DPPM}")
    round_bf16(list(range(S, S + 8)))
    for u in range(8):
        a(f"v_mul_f32 v{S + u}, {SCALE:#x}, v{S + u}")
    round_bf16(list(range(S, S + 8)))
    a(f"v_max3_f32 v12, v{S}, v{S + 1}, v{S + 2}")
    a(f"v_max3_f32 v13, v{S + 3}, v{S + 4}, v{S + 5}")
    a(f"v_max3_f32 v12, v12, v{S + 6}, v{S + 7}")
    a("v_max_f32 v12, v12, v13")
    cross_rows("v_max_f32", 12, 13)
    set_exec(0x1111)
    a(f"ds_write_b32 v120, v12 offset:{LM}")
    set_exec(-1)
    a("s_waitcnt lgkmcnt(0)")
    a("s_barrier")
    a(f"ds_read_b128 v[80:83], v5 offset:{LM}")
    a(f"ds_read_b128 v[84:87], v5 offset:{LM + 16}")
    a(f"s_mov_b32 s{sT0}, {LOG2E:#x}")
    for y in range(4):
        a(f"v_cmp_eq_u32 s[{48 + 2 * y}:{49 + 2 * y}], {y}, v2")
    a("s_waitcnt lgkmcnt(0)")
    a("v_max3_f32 v12, v80, v81, v82")
    a("v_max3_f32 v13, v83, v84, v85")
    a("v_max3_f32 v12, v12, v86, v87")
    a("v_max_f32 v12, v12, v13")
    a(f"v_mul_f32 v12, {LOG2E:#x}, v12")
    for u in range(8):
        a(f"v_fma_f32 v{S + u}, v{S + u}, s{sT0}, -v12")
    for u in range(8):
        a(f"v_exp_f32 v{S + u}, v{S + u}")
    for x in range(4):
        a(f"v_cvt_pk_bf16_f32 v{8 + x}, v{S + 2 * x}, v{S + 2 * x + 1}")
    a(f"v_pk_add_f32 v[{S}:{S + 1}], v[{S}:{S + 1}], v[{S + 2}:{S + 3}]")
    a(f"v_pk_add_f32 v[{S + 4}:{S + 5}], v[{S + 4}:{S + 5}], v[{S + 6}:{S + 7}]")
    a(f"v_pk_add_f32 v[{S}:{S + 1}], v[{S}:{S + 1}], v[{S + 4}:{S + 5}]")
    a(f"v_add_f32 v13, v{S}, v{S + 1}")
    for x in range(4):
        a(f"v_mov_b32_dpp v{8 + x}, v{8 + x} quad_perm:[0,0,0,0] {DPPM}")
    cross_rows("v_add_f32", 13, 14)
    set_exec(0x1111)
    a(f"ds_write_b32 v120, v13 offset:{LL}")
    set_exec(-1)
    PY = 88
    for y in range(4):
        for x in range(4):
            a(f"v_cndmask_b32 v{PY + 4 * y + x}, 0, v{8 + x}, s[{48 + 2 * y}:{49 + 2 * y}]")
    a("s_waitcnt lgkmcnt(0)")
    a("s_barrier")
    stamp(4)
    a(f"s_lshl2_add_u32 s{sT0}, s{sG}, s{sWAVE}")
    a(f"s_lshl_b32 s{sT0}, s{sT0}, 8")
    a(f"s_add_u32 s{sT0}, s{sT0}, s{sM}")
    a(f"s_lshl_b32 s{sT0}, s{sT0}, 4")
    base(sBA, sWS, sT0, H3O)
    a("v_lshlrev_b32 v121, 8, v1")
    a("v_lshl_add_u32 v121, v2, 2, v121")
    a(f"s_mul_i32 s{sT0}, s{sWAVE}, 576")
    a(f"v_lshl_add_u32 v122, v0, 3, s{sT0}")
    a(f"s_cmp_lt_u32 s{sWAVE}, 4")
    a("s_cbranch_scc1 L_A5")
    a(f"s_and_b32 s{sT4}, s{sWAVE}, 3")
    a(f"s_lshl_b32 s{sT0}, s{sT4}, 8")
    base(sBB, sX, sT0)
    a(f"s_lshl_b32 s{sT0}, s{sT4}, 10")
    base(sBA, sWS, sT0, MODB + 4096)
    a("v_lshrrev_b32 v13, 1, v3")
    a("v_lshlrev_b32 v13, 7, v13")
    a("v_and_b32 v14, 1, v3")
    a("v_lshl_add_u32 v13, v14, 3, v13")
    a("v_lshl_add_u32 v13, v2, 4, v13")
    a("v_lshl_add_u32 v13, v5, 5, v13        ; x offset: b*1024 + (G>>1)*128 + c*16 + (G&1)*8")
    a(f"global_load_dwordx2 v[128:129], v13, {sp(sBB)}")
    a(f"global_load_dwordx2 v[130:131], v13, {sp(sBB)} offset:64")
    modb_loads()
    a("s_branch L_A6")
    a.label("L_A5")
    a(f"s_cmp_lg_u32 s{sWAVE}, 0")
    a("s_cbranch_scc1 L_A6")
    a(f"ds_read_b128 v[80:83], v5 offset:{LL}")
    a(f"ds_read_b128 v[84:87], v5 offset:{LL + 16}")
    a(f"s_lshl_b32 s{sT0}, s{sG}, 6")
    a(f"s_add_u32 s{sT0}, s{sT0}, s{sM}")
    a(f"s_lshl_b32 s{sT0}, s{sT0}, 3")
    base(sBB, sWS, sT0, H3ML)
    a("v_lshlrev_b32 v14, 2, v5              ; h*128")
    a("s_waitcnt lgkmcnt(0)")
    a("v_pk_add_f32 v[80:81], v[80:81], v[82:83]")
    a("v_pk_add_f32 v[84:85], v[84:85], v[86:87]")
    a("v_pk_add_f32 v[80:81], v[80:81], v[84:85]")
    a("v_add_f32 v13, v80, v81")
    set_exec(0x1111)
    a(f"s_cmp_lg_u32 s{sLOCAL}, 0")
    a("s_cbranch_scc1 L_A_mlg")
    a(f"global_store_dwordx2 v14, v[12:13], {sp(sBB)}")
    a.label("L_A_mld")
    set_exec(-1)
    a.label("L_A6")
    extra = 7 if OPT['pfpol'] == 2 else 6
    perms8(VR, VT, waits=[6 + extra, 4 + extra, 2 + extra, 0 + extra])
    for e in range(8):
        d = OA + 4 * (e >> 2)
        a(mfma(d, VT + 4 * e, PY + 4 * (e & 3), None if (e & 3) == 0 else d))
    a(f"ds_write_b128 v7, {vr(OA, 4)}")
    a(f"ds_write_b128 v7, {vr(OA + 4, 4)} offset:256")
    a("s_waitcnt lgkmcnt(0)")
    stamp(5)
    a("s_barrier                      ; 2")
    a(f"s_cmp_ge_u32 s{sWAVE}, 4")
    a("s_cbranch_scc1 L_FF")
    for t in range(4):
        a(f"ds_read2st64_b64 {vr(16 + 4 * t, 4)}, v122 offset0:{10 * t} offset1:{10 * t + 5}")
    a(f"s_cmp_lg_u32 s{sLOCAL}, 0")
    a("s_waitcnt lgkmcnt(0)")
    sum8_b64(16)
    a("v_cvt_pk_bf16_f32 v10, v16, v17")
    a("s_cbranch_scc1 L_A_pubg")
    a(f"global_store_dword v121, v10, {sp(sBA)}")
    a.label("L_A_pubd")
    stamp(6)
    a("s_barrier                      ; 2b")
    a("s_branch L_FF0")
    a.label("L_A_pubg")
    a(f"global_store_dword v121, v10, {sp(sBA)} sc1")
    a("s_branch L_A_pubd")
    a.label("L_A_mlg")
    a(f"global_store_dwordx2 v14, v[12:13], {sp(sBB)} sc1")
    a("s_branch L_A_mld")


def sec_dump():
    if OPT["probe"]:
        a.label("L_dump")
        a("s_mov_b64 exec, 1")
        a("v_not_b32 v162, v163")
        a("global_atomic_umax v[160:161], v163, off")
        a("global_atomic_umax v[160:161], v162, off offset:4")
        a("s_cmp_lg_u32 s2, 8")
        a("s_cbranch_scc1 L_exit")
        a(f"s_cmp_lg_u32 s{sWAVE}, 7")
        a("s_cbranch_scc1 L_exit")
        a("s_memrealtime s[60:61]")
        a("s_sleep 64")
        a("s_waitcnt vmcnt(0) lgkmcnt(0)")
        a("global_load_dwordx4 v[8:11], v[160:161], off sc1")
        a("s_waitcnt vmcnt(0)")
        for i in range(4):
            a(f"v_readfirstlane_b32 s{50 + i}, v{8 + i}")
        a("s_nop 3")
        a("s_not_b32 s51, s51")
        p = OPT["probe"]
        if p == 1:
            a("s_sub_u32 s54, s50, s51")
        elif p == 2:
            a("s_sub_u32 s54, s60, s51")
        elif p == 3:
            a("s_mul_i32 s54, s52, 1")
        elif p >= 100:
            a("s_sub_u32 s54, s53, s51")
        else:
            a("s_mov_b32 s54, 0")
        a("s_min_u32 s54, s54, 10000")
        a("s_add_u32 s54, s54, 500")
        a.label("L_spin")
        a("s_memrealtime s[62:63]")
        a("s_waitcnt lgkmcnt(0)")
        a("s_sub_u32 s55, s62, s60")
        a("s_cmp_lt_u32 s55, s54")
        a("s_cbranch_scc1 L_spin")
    if OPT["stamps"]:
        a.label("L_dump")
        a("s_mov_b64 exec, -1")
        stamp(15)
        a(f"s_getreg_b32 s{sT0}, hwreg(HW_REG_XCC_ID)")
        a(f"v_writelane_b32 v126, s{sT0}, 14")
        a(f"s_lshl3_add_u32 s{sT0}, s2, s{sWAVE}")
        a(f"s_lshl_b32 s{sT0}, s{sT0}, 6")
        base(sBA, sWS, sT0, STAMP)
        a("v_lshlrev_b32 v4, 2, v0")
        set_exec(0xFFFF)
        a(f"global_store_dword v4, v126, {sp(sBA)}")
    a.label("L_exit")
    a("s_endpgm")


a(".p2align 12")
a.label("L_code0")
sec_wo()
sec_ln()
a(".p2align 8")
a(f".fill (4096-768-(.-L_code0))/4, 4, 0xbf810000")
a(f".type {NAME}_kernel,@function")
sec_entry()
sec_gm()
sec_gq()
sec_gb()
a(".p2align 12")
sec_att()
sec_down()
a(".p2align 12")
sec_ffn()
sec_dump()

body = a.finish()
hdr = open("cdna_kernels/" + NAME + ".s.ref").read().split("; Override launch geometry")[0]
out = hdr + f"""; Generated by a hand-written generator script; one persistent launch of 256 workgroups.
; @launch grid=(256,1,1) block=(512,1,1) lds={OPT['lds']}
.amdgcn_target "amdgcn-amd-amdhsa--gfx950"
.text
.globl {NAME}_kernel
{body}.section .rodata,"a"
.p2align 6
.amdhsa_kernel {NAME}_kernel
  .amdhsa_next_free_vgpr {OPT['vgpr']}
  .amdhsa_next_free_sgpr 102
  .amdhsa_accum_offset {OPT['vgpr']}
  .amdhsa_group_segment_fixed_size 0
  .amdhsa_kernarg_size 112
  .amdhsa_user_sgpr_count 2
  .amdhsa_user_sgpr_kernarg_segment_ptr 1
  .amdhsa_system_sgpr_workgroup_id_x 1
  .amdhsa_float_denorm_mode_32 3
.end_amdhsa_kernel
"""
open(sys.argv[1], "w").write(out)
```

```python
import sys
from asmlib import Asm

NAME = "adaLN_cond__sliding_block_cached__swiglu_ffn__decode"
OPT = dict(stamps=0, lds=84000, nt=1, limit=20000, pf=1, pfa=1, pfg=1, athr=8, nrep=32, qsleep=2, vgpr=160, psleep=0, ahelp=1, bhelp=1, wowait=1, pfpol=2, wpol=1, wopf=1, probe=0, pcls=0)
for arg in sys.argv[2:]:
    k, v = arg.split("=")
    assert k in OPT, k
    OPT[k] = int(v, 0)
if OPT["probe"]:
    OPT["vgpr"] = 168
NT = " nt" if OPT["nt"] else ""
NREP = OPT["nrep"]
NTW = " nt" if OPT["wpol"] else ""

H1 = 0x1000
CF = 0x3000
QS = 0x4000
H2G = 0x10000
FL = 0x20000
assert FL + 32 * NREP * 128 <= 0x60000
CLR = 0x60000
MODB = CLR
H4 = MODB + 0x4000
ACT = H4 + 0x8000
X1 = ACT + 0x4000
H3ML = X1 + 0x1000
H3O = H3ML + 0x1000
CLR_END = H3O + 0x20000
CLR_PER_WG = 7
assert CLR_END - CLR <= 32 * CLR_PER_WG * 1024
STAMP = 0x100000

LO = 0
LQ = 20480
LQF = LQ + 1024
LM = LQF + 64
LL = LM + 128
LY = 22016
LU = LY + 2048
LV = LU + 2048
LST = LV + 2048

sX, sK, sV, sWQ, sWO, sWG, sWU = 4, 6, 8, 10, 12, 16, 18
sWD, sC, sWM, sOUT, sDBG, sWS = 20, 22, 24, 26, 28, 30
sG, sM, sWAVE, sTAG = 14, 15, 3, 28
sLO, sHI, sCNT, sT0 = 96, 97, 98, 99
sBA, sBB, sBC = 32, 34, 36
sMK = 38
sT1, sT2, sT3, sT4 = 40, 41, 42, 43
sLOCAL, sKIND = 29, 44
sPC = 46
sSTAMP = 48 if False else 64
sQ = 32

LOG2E = 0x3FB8AA3B
SCALE = 0x3DB504F3
INV512 = 0x3B000000
EPS = 0x3727C5AC


def sp(r):
    return f"s[{r}:{r + 1}]"


def vr(a, n):
    return f"v[{a}:{a + n - 1}]" if n > 1 else f"v{a}"


a = Asm()
_uid = [0]


def uid(p):
    _uid[0] += 1
    return f"L_{p}{_uid[0]}"


CLS = [0]


def stamp(i):
    if OPT["probe"] == 100 + i and OPT["pcls"] == CLS[0]:
        a("s_memrealtime s[100:101]")
        a("s_waitcnt lgkmcnt(0)")
        a("v_writelane_b32 v161, s100, 0")
    if OPT["stamps"]:
        a("s_memrealtime s[100:101]")
        a("s_waitcnt lgkmcnt(0)")
        a(f"v_writelane_b32 v126, s100, {i}")


def finish_wave():
    a("s_branch L_dump" if OPT["stamps"] or OPT["probe"] else "s_endpgm")


def base(dst, ptr, off_s=None, off_imm=0):
    if off_s is not None and off_imm:
        a(f"s_add_u32 s{dst}, s{off_s}, {off_imm:#x}")
        a(f"s_add_u32 s{dst}, s{ptr}, s{dst}")
    elif off_s is not None:
        a(f"s_add_u32 s{dst}, s{ptr}, s{off_s}")
    else:
        a(f"s_add_u32 s{dst}, s{ptr}, {off_imm:#x}")
    a(f"s_addc_u32 s{dst + 1}, s{ptr + 1}, 0")


def set_exec(mask):
    if mask in (-1, 1):
        a(f"s_mov_b64 exec, {mask}")
    else:
        lo, hi = mask & 0xFFFFFFFF, mask >> 32
        a(f"s_mov_b32 exec_lo, {lo:#x}")
        a(f"s_mov_b32 exec_hi, {hi:#x}")


def prefetch(v, b, late=False):
    if not late:
        a(f"global_load_dword v127, v{v}, {sp(b)} nt")
        return
    if OPT["pfpol"] == 1:
        a(f"global_load_dword v127, v{v}, {sp(b)}")
    else:
        a(f"global_load_dword v127, v{v}, {sp(b)} nt")
    if OPT["pfpol"] == 2:
        a(f"global_load_dword v127, v{v}, {sp(b)} sc1")


def sels():
    a(f"s_mov_b32 s{sLO}, 0x05040100")
    a(f"s_mov_b32 s{sHI}, 0x07060302")


def perms8(W, F, waits=None):
    for x in range(4):
        if waits is not None:
            a(f"s_waitcnt vmcnt({waits[x]})")
        for e in range(8):
            sel = sHI if e & 1 else sLO
            a(f"v_perm_b32 v{F + 4 * e + x}, v{W + 4 * (2 * x + 1) + (e >> 1)}, v{W + 4 * (2 * x) + (e >> 1)}, s{sel}")


def unpack(dst, src, n):
    for i in range(n):
        a(f"v_lshlrev_b32 v{dst + 2 * i}, 16, v{src + i}")
        a(f"v_and_b32 v{dst + 2 * i + 1}, 0xffff0000, v{src + i}")


def round_bf16(regs):
    if len(regs) == 1:
        a(f"v_cvt_pk_bf16_f32 v{regs[0]}, v{regs[0]}, v{regs[0]}")
        a(f"v_lshlrev_b32 v{regs[0]}, 16, v{regs[0]}")
        return
    for i in range(0, len(regs), 2):
        a(f"v_cvt_pk_bf16_f32 v{regs[i + 1]}, v{regs[i]}, v{regs[i + 1]}")
    for i in range(0, len(regs), 2):
        a(f"v_lshlrev_b32 v{regs[i]}, 16, v{regs[i + 1]}")
        a(f"v_and_b32 v{regs[i + 1]}, 0xffff0000, v{regs[i + 1]}")


def poll_begin():
    lab = uid("poll")
    a(f"s_mov_b32 s{sCNT}, {OPT['limit']}")
    a.label(lab)
    return lab


def poll_mid(cnt="vmcnt(0)", sleep=None):
    sleep = OPT["psleep"] if sleep is None else sleep
    if sleep and cnt.startswith("vm"):
        a(f"s_sleep {sleep}")
    a(f"s_sub_u32 s{sCNT}, s{sCNT}, 1")
    a(f"s_cselect_b64 {sp(sMK)}, 0, -1")
    a(f"s_waitcnt {cnt}")


def poll_end(lab):
    a(f"s_and_b64 vcc, vcc, {sp(sMK)}")
    a(f"s_cbranch_scc1 {lab}")


def sentinel_ops(regs, tmp):
    regs = list(regs)
    out = []
    if len(regs) == 2:
        out.append(f"v_max_u32 v{tmp}, v{regs[0]}, v{regs[1]}")
    else:
        out.append(f"v_max3_u32 v{tmp}, v{regs[0]}, v{regs[1]}, v{regs[2]}")
        rest = regs[3:]
        while len(rest) >= 2:
            out.append(f"v_max3_u32 v{tmp}, v{tmp}, v{rest[0]}, v{rest[1]}")
            rest = rest[2:]
        if rest:
            out.append(f"v_max_u32 v{tmp}, v{tmp}, v{rest[0]}")
    out.append(f"v_cmp_eq_u32 vcc, -1, v{tmp}")
    return out


def interleave(major, minor, per):
    minor = list(minor)
    for ins in major:
        a(ins)
        for _ in range(per):
            if minor:
                a(minor.pop(0))
    for ins in minor:
        a(ins)


def make_tag(vE):
    a(f"v_readfirstlane_b32 s{sTAG}, v{vE}")
    a("s_nop 1")
    a(f"s_mul_i32 s{sTAG}, s{sTAG}, 1664525")
    a(f"s_add_u32 s{sTAG}, s{sTAG}, 1013904223")


DPPM = "row_mask:0xf bank_mask:0xf"


def row_allsum(v):
    for n in (8, 4, 2, 1):
        a(f"v_add_f32_dpp v{v}, v{v}, v{v} row_ror:{n} {DPPM}")


def cross_rows(op, v, tmp):
    a(f"v_mov_b32 v{tmp}, v{v}")
    a(f"v_permlane16_swap_b32 v{tmp}, v{v}")
    a(f"{op} v{v}, v{v}, v{tmp}")
    a(f"v_mov_b32 v{tmp}, v{v}")
    a(f"v_permlane32_swap_b32 v{tmp}, v{v}")
    a(f"{op} v{v}, v{v}, v{tmp}")


def mfma(d, x, y, c=None):
    return f"v_mfma_f32_16x16x32_bf16 {vr(d, 4)}, {vr(x, 4)}, {vr(y, 4)}, {vr(c, 4) if c is not None else 0}"


def diagX_reduce(ACC, T):
    for e in range(8):
        a(f"v_add_f32_dpp v{T + e}, v{ACC + 4 * e + 1}, v{ACC + 4 * e} row_shl:4 {DPPM}")
    for e in range(8):
        a(f"v_add_f32_dpp v{T + e}, v{ACC + 4 * e + 2}, v{T + e} row_shl:8 {DPPM}")
    for e in range(8):
        a(f"v_add_f32_dpp v{T + e}, v{ACC + 4 * e + 3}, v{T + e} row_shl:12 {DPPM}")


def sum8_b64(r):
    for t in range(4):
        a(f"v_pk_add_f32 v[{r + 4 * t}:{r + 4 * t + 1}], v[{r + 4 * t}:{r + 4 * t + 1}], v[{r + 4 * t + 2}:{r + 4 * t + 3}]")
    a(f"v_pk_add_f32 v[{r}:{r + 1}], v[{r}:{r + 1}], v[{r + 4}:{r + 5}]")
    a(f"v_pk_add_f32 v[{r + 8}:{r + 9}], v[{r + 8}:{r + 9}], v[{r + 12}:{r + 13}]")
    a(f"v_pk_add_f32 v[{r}:{r + 1}], v[{r}:{r + 1}], v[{r + 8}:{r + 9}]")


def modb_loads():
    a(f"global_load_dwordx4 v[132:135], v124, {sp(sBA)} offset:-4096 sc1")
    a(f"global_load_dwordx4 v[136:139], v124, {sp(sBA)} sc1")
    a(f"global_load_dwordx4 v[140:143], v125, {sp(sBA)} sc1")


W, F, ACC = 16, 48, 16
KR, VR, SA, VT, OA = 16, 48, 80, 16, 80


def sec_ffn():
    CLS[0] = 1
    a.label("L_FF")
    a(f"s_cmp_ge_u32 s{sM}, 14")
    a("s_cbranch_scc1 L_fin2")
    a(f"s_mul_i32 s{sT0}, s{sG}, 14")
    a(f"s_add_u32 s{sT0}, s{sT0}, s{sM}")
    a(f"s_lshl_b32 s{sT0}, s{sT0}, 5")
    a(f"s_mul_i32 s{sT1}, s{sT4}, {128 * 3584}")
    a(f"s_add_u32 s{sT0}, s{sT0}, s{sT1}")
    a(f"s_add_u32 s{sT0}, s{sT0}, 3584")
    a("v_lshrrev_b32 v6, 1, v3")
    a("v_and_b32 v7, 1, v3")
    a("v_and_b32 v5, 3, v1")
    a("v_lshlrev_b32 v8, 6, v6")
    a("v_lshl_add_u32 v8, v7, 2, v8")
    a("v_lshl_add_u32 v8, v5, 3, v8")
    a("v_mul_u32_u24 v10, 3584, v8")
    a("v_and_b32 v9, 1, v2")
    a("v_lshl_add_u32 v10, v9, 4, v10")
    a(f"v_add_u32 v10, s{sT0}, v10")
    a("v_mov_b32 v11, 0")
    a("v_cmp_lt_u32 vcc, 1, v2")
    a(f"v_mov_b32 v12, s{sWG}")
    a(f"v_mov_b32 v13, s{sWG + 1}")
    a(f"v_mov_b32 v14, s{sWU}")
    a(f"v_mov_b32 v15, s{sWU + 1}")
    a("v_cndmask_b32 v12, v12, v14, vcc")
    a("v_cndmask_b32 v13, v13, v15, vcc")
    a("v_lshl_add_u64 v[12:13], v[10:11], 0, v[12:13]      ; row +1")
    a(f"v_mov_b32 v10, {2 * 3584}")
    a("v_lshl_add_u64 v[14:15], v[10:11], 0, v[12:13]      ; row +3")
    a(f"v_mov_b32 v10, {32 * 3584}")
    a(f"s_lshl_b32 s{sT0}, s{sT4}, 10")
    a("v_and_b32 v9, 15, v0")
    a("s_barrier")
    for half in range(2):
        for jj in range(4):
            r, off = ((12, 3584 * (jj - 1)) if jj < 3 else (14, 0))
            a(f"global_load_dwordx4 {vr(W + 16 * half + 4 * jj, 4)}, v[{r}:{r + 1}], off offset:{off}{NTW}")
        if half == 0:
            a("v_lshl_add_u64 v[12:13], v[10:11], 0, v[12:13]")
            a("v_lshl_add_u64 v[14:15], v[10:11], 0, v[14:15]")
    a("v_lshlrev_b32 v12, 4, v9")
    a("v_lshl_add_u32 v12, v3, 12, v12")
    a("s_waitcnt vmcnt(8)")
    for ins in sentinel_ops(range(132, 144), 14):
        a(ins)
    a("s_cbranch_vccz L_FF1")
    lab = poll_begin()
    modb_loads()
    poll_mid()
    for ins in sentinel_ops(range(132, 144), 14):
        a(ins)
    poll_end(lab)
    a.label("L_FF1")
    stamp(7)
    XV, GA, P0, P1 = 96, 104, 112, 84
    unpack(XV, 128, 4)
    unpack(GA, 132, 4)
    unpack(P0, 140, 4)
    for i in range(8):
        a(f"v_add_f32 v{P0 + i}, 1.0, v{P0 + i}")
    for i in range(4):
        a(f"v_cvt_pk_bf16_f32 v{92 + i}, v{P0 + 2 * i}, v{P0 + 2 * i + 1}")
    unpack(P0, 92, 4)
    perms8(W, F, waits=[6, 4, 2, 0])
    stamp(9)
    for e in range(8):
        a(mfma(ACC + 4 * e, 136, F + 4 * e))
    a(f"s_lshl_b32 s{sT1}, s{sT4}, 9")
    a(f"s_add_u32 s{sT1}, s{sT1}, {LY}")
    a("v_lshlrev_b32 v5, 7, v3")
    a("v_lshl_add_u32 v5, v2, 5, v5")
    a(f"v_add_u32 v5, s{sT1}, v5")
    diagX_reduce(ACC, 80)
    for e in range(8):
        a(mfma(ACC + 4 * e, 92, F + 4 * e))
    set_exec(0x000F000F000F000F)
    a(f"ds_write_b128 v5, v[80:83] offset:{LV - LY}")
    a(f"ds_write_b128 v5, v[84:87] offset:{LV - LY + 16}")
    set_exec(-1)
    a("s_waitcnt lgkmcnt(0)")
    diagX_reduce(ACC, 80)
    set_exec(0x000F000F000F000F)
    a(f"ds_write_b128 v5, v[80:83] offset:{LU - LY}")
    a(f"ds_write_b128 v5, v[84:87] offset:{LU - LY + 16}")
    set_exec(-1)
    a("s_waitcnt lgkmcnt(0)")
    a("s_barrier                      ; 3: u, v partials")
    for i in range(8):
        a(f"v_mul_f32 v{P1 + i}, v{GA + i}, v{P0 + i}")
    for i in range(8):
        a(f"v_mul_f32 v{P0 + i}, v{XV + i}, v{P0 + i}")
    a("v_and_b32 v6, 1, v0")
    a("v_lshlrev_b32 v6, 4, v6")
    a("v_mov_b32 v7, 0x3f80")
    a("v_lshlrev_b32 v6, v6, v7")
    a("v_lshrrev_b32 v7, 1, v9")
    for x in range(8):
        a(f"v_cmp_eq_u32 vcc, {x}, v7")
        a(f"v_cndmask_b32 v{(120 + x) if x < 4 else (88 + x)}, 0, v6, vcc")
    base(sBA, sWS, sT0, H4)
    base(sBB, sWS, sT0, X1)
    a("v_add_u32 v13, 0x4000, v12")
    a(f"s_lshl_b32 s{sT1}, s{sT4}, 2")
    a(f"s_add_u32 s{sT1}, s{sT1}, {LST}")
    a("v_and_b32 v6, 3, v1")
    a("v_lshlrev_b32 v6, 5, v6")
    a("v_lshl_add_u32 v6, v3, 3, v6")
    a(f"v_add_u32 v6, s{sT1}, v6")
    stamp(8)
    lab = poll_begin()
    for t in range(4):
        for hf in range(2):
            a(f"global_load_dwordx4 {vr(16 + 8 * t + 4 * hf, 4)}, v{12 + hf}, {sp(sBA)} offset:{256 * t} sc1")
    poll_mid()
    AT = 8
    seq = [mfma(80, 120, 16), mfma(8, 120, 24), mfma(80, 120, 20, 80), mfma(8, 120, 28, 8),
           mfma(80, 92, 32, 80), mfma(8, 92, 40, 8), mfma(80, 92, 36, 80), mfma(8, 92, 44, 8)]
    interleave(seq, sentinel_ops(range(16, 48), 14), 2)
    poll_end(lab)
    att = [80, 82, 8, 10]
    for i in range(4):
        a(f"v_pk_fma_f32 v[{P0 + 2 * i}:{P0 + 2 * i + 1}], v[{att[i]}:{att[i] + 1}], v[{P1 + 2 * i}:{P1 + 2 * i + 1}], v[{P0 + 2 * i}:{P0 + 2 * i + 1}]")
    for i in range(4):
        a(f"v_cvt_pk_bf16_f32 v{84 + i}, v{P0 + 2 * i}, v{P0 + 2 * i + 1}")
    st = []
    for i in range(4):
        st.append(f"v_pk_fma_f32 v[{XV + 2 * i}:{XV + 2 * i + 1}], v[{att[i]}:{att[i] + 1}], v[{GA + 2 * i}:{GA + 2 * i + 1}], v[{XV + 2 * i}:{XV + 2 * i + 1}]")
    st.append(f"v_pk_mul_f32 v[8:9], v[{XV}:{XV + 1}], v[{XV}:{XV + 1}]")
    st.append(f"v_pk_add_f32 v[14:15], v[{XV}:{XV + 1}], v[{XV + 2}:{XV + 3}]")
    for i in range(1, 4):
        st.append(f"v_pk_fma_f32 v[8:9], v[{XV + 2 * i}:{XV + 2 * i + 1}], v[{XV + 2 * i}:{XV + 2 * i + 1}], v[8:9]")
        if i > 1:
            st.append(f"v_pk_add_f32 v[14:15], v[14:15], v[{XV + 2 * i}:{XV + 2 * i + 1}]")
    st.append("v_add_f32 v8, v8, v9")
    st.append("v_add_f32 v14, v14, v15")
    st.append("v_permlane32_swap_b32 v14, v8")
    st.append("v_add_f32 v14, v14, v8")
    interleave([mfma(ACC + 4 * e, 84, F + 4 * e) for e in range(8)], st, 2)
    d1 = [f"v_add_f32_dpp v{104 + e}, v{ACC + 4 * e + 1}, v{ACC + 4 * e} row_shl:4 {DPPM}" for e in range(8)]
    d2 = [f"v_add_f32_dpp v{104 + e}, v{ACC + 4 * e + 2}, v{104 + e} row_shl:8 {DPPM}" for e in range(8)]
    d3 = [f"v_add_f32_dpp v{104 + e}, v{ACC + 4 * e + 3}, v{104 + e} row_shl:12 {DPPM}" for e in range(8)]
    for ins in d1[:3]:
        a(ins)
    a(f"v_add_f32_dpp v14, v14, v14 quad_perm:[1,0,3,2] {DPPM}")
    for ins in d1[3:6]:
        a(ins)
    a(f"v_add_f32_dpp v14, v14, v14 quad_perm:[2,3,0,1] {DPPM}")
    for ins in d2[:3]:
        a(ins)
    a("v_mov_b32 v15, v14")
    for ins in d1[6:] + d2[3:5]:
        a(ins)
    a("v_permlane16_swap_b32 v15, v14")
    for ins in d2[5:]:
        a(ins)
    a("v_add_f32 v14, v14, v15")
    for ins in d3:
        a(ins)
    set_exec(0x000F000F000F000F)
    a("ds_write_b128 v5, v[104:107]")
    a("ds_write_b128 v5, v[108:111] offset:16")
    set_exec(0x0000111100001111)
    a("ds_write_b32 v6, v14")
    set_exec(-1)
    a("s_waitcnt lgkmcnt(0)")
    a("s_barrier")
    stamp(10)
    a(f"s_cmp_lg_u32 s2, {(16 + 13) * 8}")
    a("s_cbranch_scc1 L_fin2")
    for i in range(4):
        a(f"v_cvt_pk_bf16_f32 v{16 + i}, v{XV + 2 * i}, v{XV + 2 * i + 1}")
    a(f"global_store_dwordx4 v124, v[16:19], {sp(sBB)} sc1")
    a.label("L_fin2")
    finish_wave()

    a.label("L_FF0")
    a(f"s_cmp_ge_u32 s{sM}, 14")
    a("s_cbranch_scc1 L_fin2")
    a(f"s_cmp_lg_u32 s{sWAVE}, 0")
    a("s_cbranch_scc1 L_fin2")
    a("v_bfe_u32 v8, v0, 3, 2")
    a("v_lshlrev_b32 v5, 7, v8")
    a("v_and_b32 v6, 7, v0")
    a("v_lshl_add_u32 v5, v6, 3, v5")
    a("v_lshrrev_b32 v6, 5, v0")
    a("v_lshl_add_u32 v5, v6, 2, v5")
    a("v_add_u32 v6, 64, v5")
    a("v_lshlrev_b32 v8, 5, v8")
    a(f"s_mul_i32 s{sT0}, s{sG}, 14")
    a(f"s_add_u32 s{sT0}, s{sT0}, s{sM}")
    a(f"s_lshl_b32 s{sT0}, s{sT0}, 7")
    base(sBA, sWS, sT0, ACT)
    a("v_lshlrev_b32 v7, 2, v0")
    a(f"s_mov_b32 s{sT1}, {INV512:#x}")
    a("s_barrier                      ; 3")
    for k, L0 in enumerate((LU, LV)):
        o = L0 // 256
        a(f"ds_read2st64_b32 v[{16 + 8 * k}:{17 + 8 * k}], v5 offset0:{o} offset1:{o + 2}")
        a(f"ds_read2st64_b32 v[{18 + 8 * k}:{19 + 8 * k}], v5 offset0:{o + 4} offset1:{o + 6}")
        a(f"ds_read2st64_b32 v[{20 + 8 * k}:{21 + 8 * k}], v6 offset0:{o} offset1:{o + 2}")
        a(f"ds_read2st64_b32 v[{22 + 8 * k}:{23 + 8 * k}], v6 offset0:{o + 4} offset1:{o + 6}")
    a("s_waitcnt lgkmcnt(0)")
    for k in range(4):
        a(f"v_pk_add_f32 v[{16 + 4 * k}:{17 + 4 * k}], v[{16 + 4 * k}:{17 + 4 * k}], v[{18 + 4 * k}:{19 + 4 * k}]")
    for k in range(4):
        a(f"v_add_f32 v{40 + k}, v{16 + 4 * k}, v{17 + 4 * k}")
    a("s_barrier                      ; 4")
    o = LY // 256
    a(f"ds_read_b128 v[24:27], v8 offset:{LST}")
    a(f"ds_read_b128 v[28:31], v8 offset:{LST + 16}")
    a(f"ds_read2st64_b32 v[16:17], v5 offset0:{o} offset1:{o + 2}")
    a(f"ds_read2st64_b32 v[18:19], v5 offset0:{o + 4} offset1:{o + 6}")
    a(f"ds_read2st64_b32 v[20:21], v6 offset0:{o} offset1:{o + 2}")
    a(f"ds_read2st64_b32 v[22:23], v6 offset0:{o + 4} offset1:{o + 6}")
    a("s_waitcnt lgkmcnt(4)")
    a("v_pk_add_f32 v[24:25], v[24:25], v[26:27]")
    a("v_pk_add_f32 v[28:29], v[28:29], v[30:31]")
    a("v_add_f32 v24, v24, v25")
    a("v_add_f32 v28, v28, v29")
    a(f"v_mul_f32 v24, s{sT1}, v24             ; mean")
    a("v_mul_f32 v25, v24, v24")
    a(f"v_fma_f32 v28, v28, s{sT1}, -v25       ; variance")
    a("v_max_f32 v28, 0, v28")
    a(f"v_add_f32 v28, {EPS:#x}, v28")
    a("v_rsq_f32 v28, v28")
    a("s_waitcnt lgkmcnt(0)")
    a("v_pk_add_f32 v[16:17], v[16:17], v[18:19]")
    a("v_pk_add_f32 v[20:21], v[20:21], v[22:23]")
    a("v_add_f32 v16, v16, v17")
    a("v_add_f32 v17, v20, v21")
    a("v_fma_f32 v16, -v24, v40, v16")
    a("v_fma_f32 v17, -v24, v41, v17")
    a("v_fma_f32 v16, v16, v28, v42          ; gate")
    a("v_fma_f32 v17, v17, v28, v43          ; up")
    a(f"v_mul_f32 v18, {0x80000000 | LOG2E:#x}, v16")
    a("v_exp_f32 v18, v18")
    a("v_mul_f32 v16, v16, v17")
    a("v_add_f32 v18, 1.0, v18")
    a("v_rcp_f32 v18, v18")
    a("v_mul_f32 v16, v16, v18")
    a("v_mov_b32 v17, v16")
    a("v_permlane32_swap_b32 v16, v17")
    a("v_cvt_pk_bf16_f32 v16, v16, v17")
    set_exec(0xFFFFFFFF)
    a(f"global_store_dword v7, v16, {sp(sBA)} sc1")
    stamp(11)
    finish_wave()


def wq_pf():
    a(f"s_lshl_b32 s{sT0}, s{sT0}, 6")
    a(f"s_add_u32 s{sT0}, s{sT0}, s{sT1}")
    a(f"s_lshl_b32 s{sT0}, s{sT0}, 10")
    a("v_lshlrev_b32 v8, 13, v14")
    a("v_lshl_add_u32 v8, v15, 7, v8")
    a(f"v_add_u32 v8, s{sT0}, v8")
    prefetch(8, sWQ)


def sec_entry():
    a(f"{NAME}_kernel:")
    a("s_load_dwordx16 s[4:19], s[0:1], 0")
    a("s_load_dwordx8 s[20:27], s[0:1], 64")
    a("s_load_dwordx2 s[30:31], s[0:1], 104")
    if OPT["stamps"]:
        a("v_mov_b32 v126, 0")
        a("s_memrealtime s[100:101]")
    if OPT["probe"]:
        a("s_memrealtime s[100:101]")
    a("s_cmp_ge_u32 s2, 256")
    a("s_cbranch_scc1 L_exit")
    a("v_lshrrev_b32 v1, 6, v0")
    if OPT["pf"]:
        a(f"s_getpc_b64 {sp(sPC)}")
        a.label("L_pc0")
        a("v_lshlrev_b32 v2, 7, v0")
    a(f"v_readfirstlane_b32 s{sWAVE}, v1")
    if OPT["pf"]:
        a(f"s_sub_u32 s{sPC}, s{sPC}, L_pc0-L_code0")
        a(f"s_subb_u32 s{sPC + 1}, s{sPC + 1}, 0")
        a("v_cmp_gt_u32 vcc, (L_exit-L_code0)/128, v0")
        a("s_cbranch_vccz L_nopf")
        a("s_mov_b64 exec, vcc")
        a(f"global_load_dword v127, v2, {sp(sPC)}")
        a("s_mov_b64 exec, -1")
        a.label("L_nopf")
    a("v_and_b32 v0, 63, v0")
    a(f"s_and_b32 s{sT1}, s2, 7")
    a(f"s_lshr_b32 s{sT2}, s2, 3")
    a("v_lshrrev_b32 v1, 2, v0        ; l>>2")
    a("v_and_b32 v2, 3, v0            ; l&3")
    a("v_lshrrev_b32 v3, 4, v0        ; l>>4")
    a("v_mov_b32 v4, 0")
    a("v_and_b32 v5, 3, v1")
    a("v_lshrrev_b32 v14, 3, v0")
    a("v_and_b32 v15, 7, v0")
    a("s_cmp_lt_u32 s2, 128")
    a("s_cbranch_scc1 L_G")
    a(f"s_sub_u32 s{sT2}, s{sT2}, 16             ; a = 4b + s")
    a(f"s_and_b32 s{sT0}, s{sT2}, 12")
    a(f"s_lshl_b32 s{sT0}, s{sT0}, 1")
    a(f"s_add_u32 s{sT0}, s{sT0}, s{sT1}")
    a(f"s_lshl_b32 s{sT0}, s{sT0}, 4")
    a(f"s_and_b32 s{sT3}, s{sT2}, 3")
    a(f"s_add_u32 s{sT0}, s{sT0}, s{sT3}")
    a(f"s_lshl_b32 s{sT0}, s{sT0}, 3")
    a(f"s_add_u32 s{sT0}, s{sT0}, s{sWAVE}")
    a(f"s_lshl_b32 s{sT0}, s{sT0}, 13")
    a(f"s_add_u32 s{sT0}, s{sT0}, {3072 * 256 + 4096}")
    a("v_lshlrev_b32 v6, 8, v5")
    a("v_lshl_add_u32 v6, v3, 6, v6")
    a("v_lshl_add_u32 v6, v2, 4, v6")
    a("v_lshlrev_b32 v7, 4, v0")
    a("v_lshlrev_b32 v8, 2, v2")
    a(f"ds_write_b32 v8, v4 offset:{LQF}")
    a("s_waitcnt lgkmcnt(0)")
    a("s_barrier                      ; 0")
    base(sBA, sK, sT0)
    base(sBB, sV, sT0)
    a(f"global_load_dword v12, v4, {sp(sWS)} sc1      ; epoch")
    if OPT["ahelp"]:
        a(f"s_cmp_lg_u32 s{sWAVE}, 0")
        a("s_cbranch_scc1 L_nopfq")
        a(f"s_add_u32 s{sT0}, s{sT2}, 48")
        wq_pf()
        a.label("L_nopfq")
    if OPT["athr"] < 8:
        a(f"s_cmp_lt_u32 s{sWAVE}, {OPT['athr']}")
        a("s_cbranch_scc1 L_Ald")
        a("s_waitcnt vmcnt(0)")
        a.label("L_Ald")
    for u in range(8):
        a(f"global_load_dwordx4 {vr(KR + 4 * u, 4)}, v6, {sp(sBA)} offset:{1024 * u - 4096}{NT}")
    for u in range(8):
        a(f"global_load_dwordx4 {vr(VR + 4 * u, 4)}, v7, {sp(sBB)} offset:{1024 * u - 4096}{NT}")
    a("s_branch L_A2")
    a.label("L_G")
    a(f"s_and_b32 s{sT3}, s{sT2}, 1")
    a(f"s_lshr_b32 s{sT0}, s{sT2}, 2")
    a(f"s_and_b32 s{sT0}, s{sT0}, 2")
    a(f"s_or_b32 s{sKIND}, s{sT3}, s{sT0}")
    if OPT["pfa"]:
        a("v_lshrrev_b32 v6, 1, v0")
        a(f"v_lshl_add_u32 v6, s{sT2}, 5, v6")
        a("v_mul_u32_u24 v6, 6144, v6")
        a("v_and_b32 v7, 1, v0")
        a("v_lshl_add_u32 v6, v7, 10, v6")
        a(f"v_lshl_add_u32 v6, s{sT1}, 7, v6")
        a(f"s_cmp_lg_u32 s{sWAVE}, 0")
        a("s_cbranch_scc1 L_nopfa")
        a("s_waitcnt lgkmcnt(0)")
        prefetch(6, sWM)
        a.label("L_nopfa")
    a(f"s_bfe_u32 s{sT0}, s{sT2}, 0x20001")
    a(f"s_lshl2_add_u32 s{sCNT}, s{sT1}, s{sT0}      ; p = 4g + ((m>>1)&3)")
    a(f"s_cmp_eq_u32 s{sKIND}, 1")
    a("s_cbranch_scc1 L_GA")
    a(f"s_sub_u32 s{sT4}, s{sWAVE}, 1")
    a(f"s_cmp_ge_u32 s{sT4}, 4")
    a("s_cbranch_scc1 L_nopfw")
    a(f"s_lshr_b32 s{sT0}, s{sT2}, 1")
    a(f"s_lshl2_add_u32 s{sT0}, s{sT3}, s{sT0}")
    a(f"s_lshl2_add_u32 s{sT0}, s{sT0}, s{sT4}")
    a("s_waitcnt lgkmcnt(0)")
    wq_pf()
    a.label("L_nopfw")
    a(f"s_cmp_eq_u32 s{sKIND}, 3")
    a("s_cbranch_scc1 L_GB")
    a(f"s_lshl_b32 s{sT0}, s{sWAVE}, 9")
    a(f"s_add_u32 s{sT0}, s{sT0}, s{sT1}")
    a(f"s_lshl4_add_u32 s{sT0}, s{sT0}, s{sT2}")
    a(f"s_lshl_b32 s{sT0}, s{sT0}, 6")
    a("v_lshlrev_b32 v6, 16, v14")
    a("v_lshl_add_u32 v6, v15, 4, v6")
    a(f"s_movk_i32 s{sT3}, 8192")
    a(f"s_lshr_b32 s{sT4}, s{sT2}, 2")
    a(f"s_lshl2_add_u32 s{sT4}, s{sT1}, s{sT4}")
    a(f"s_mul_i32 s{sT4}, s{sT4}, {NREP * 128}")
    a(f"s_and_b32 s{sCNT}, s{sT2}, 2")
    a(f"s_add_u32 s{sCNT}, s{sCNT}, s{sWAVE}")
    a(f"s_lshl2_add_u32 s{sT4}, s{sCNT}, s{sT4}")
    a(f"s_add_u32 s{sT4}, s{sT4}, {FL:#x}")
    a(f"v_and_b32 v96, {NREP - 1}, v0")
    a(f"v_lshl_add_u32 v96, v96, 7, s{sT4}")
    a("s_waitcnt lgkmcnt(0)")
    base(sBB, sWQ, sT0)
    a(f"global_load_dword v12, v4, {sp(sWS)} sc1      ; epoch")
    a(f"s_cmp_lg_u32 s{sWAVE}, 1")
    a("s_cbranch_scc1 L_G_ld")
    a(f"global_load_dword v127, v96, {sp(sWS)} sc1")
    a.label("L_G_ld")
    for j in range(8):
        a(f"global_load_dwordx4 {vr(W + 4 * j, 4)}, v6, {sp(sBB)}{NT}")
        if j < 7:
            a(f"v_add_u32 v6, s{sT3}, v6")
    a(f"s_cmp_eq_u32 s{sKIND}, 1")
    a("s_cbranch_scc0 L_GQ2")
    a("s_branch L_GM2")
    a.label("L_GA")
    a(f"s_cmp_ge_u32 s{sWAVE}, 4")
    a("s_cbranch_scc1 L_GQA")
    a(f"s_lshl_b32 s{sT0}, s{sCNT}, 5")
    a(f"s_mul_i32 s{sT3}, s{sWAVE}, {128 * 6144}")
    a(f"s_add_u32 s{sT0}, s{sT0}, s{sT3}")
    a("v_lshlrev_b32 v5, 10, v5")
    a("v_lshl_add_u32 v5, v3, 6, v5")
    a("v_lshl_add_u32 v5, v2, 4, v5")
    a(f"v_lshl_add_u32 v5, s{sWAVE}, 8, v5")
    a("v_mul_u32_u24 v6, 49152, v1")
    a("v_and_b32 v7, 1, v2")
    a("v_lshl_add_u32 v6, v7, 4, v6")
    a("v_lshrrev_b32 v7, 1, v2")
    a("v_lshl_add_u32 v6, v7, 10, v6")
    a("v_mov_b32 v96, 0")
    a(f"s_movk_i32 s{sT3}, 6144")
    a("s_waitcnt lgkmcnt(0)")
    base(sBB, sWM, sT0)
    a(f"global_load_dwordx4 v[8:11], v5, {sp(sC)}")
    a("s_branch L_G_ld")
    a.label("L_GQA")
    a("s_setprio 3")
    a("v_and_b32 v7, 15, v0")
    a("v_lshlrev_b32 v13, 10, v3")
    a("v_lshl_add_u32 v14, v7, 4, v13")
    a("v_lshl_add_u32 v15, v7, 1, v13")
    a(f"v_lshl_add_u32 v15, s{sCNT}, 5, v15")
    a("s_waitcnt lgkmcnt(0)")
    a(f"s_cmp_lg_u32 s{sWAVE}, 7")
    a("s_cbranch_scc1 L_GQA2")
    a(f"global_load_dword v12, v4, {sp(sWS)} sc1      ; epoch")
    for t in range(4):
        a(f"global_load_dwordx4 {vr(80 + 4 * t, 4)}, v14, {sp(sX)} offset:{256 * t}")
    a(f"global_load_ushort v13, v15, {sp(sX)}")
    a("s_branch L_GQA2")
    a.label("L_GB")
    a(f"s_cmp_lg_u32 s{sWAVE}, 7")
    a("s_cbranch_scc1 L_GB1")
    a("s_setprio 3")
    a(f"s_mul_i32 s{sT0}, s{sCNT}, {CLR_PER_WG * 1024}")
    a("v_lshlrev_b32 v6, 4, v0")
    for i in range(4):
        a(f"v_mov_b32 v{8 + i}, -1")
    a("s_waitcnt lgkmcnt(0)")
    base(sBA, sWS, sT0, CLR + 4096)
    a(f"global_load_dword v12, v4, {sp(sWS)} sc1      ; epoch")
    for i in range(CLR_PER_WG):
        a(f"global_store_dwordx4 v6, v[8:11], {sp(sBA)} offset:{1024 * i - 4096} sc1")
    a("s_branch L_GB2")


def ids():
    a(f"s_mov_b32 s{sG}, s{sT1}")
    a(f"s_mov_b32 s{sM}, s{sT2}")
    sels()
    if OPT["stamps"]:
        a("v_writelane_b32 v126, s100, 0")
    if OPT["probe"]:
        a("v_mov_b32 v160, s100")
        a("v_mov_b32 v161, s100")
        a("v_mov_b32 v162, 0")
        a(f"s_getreg_b32 s100, hwreg(HW_REG_XCC_ID, 0, 4)")
        a("v_mov_b32 v163, s100")


def silu_frag():
    unpack(80, 8, 4)
    for i in range(8):
        a(f"v_mul_f32 v{88 + i}, {0x80000000 | LOG2E:#x}, v{80 + i}")
    for i in range(8):
        a(f"v_exp_f32 v{88 + i}, v{88 + i}")
    for i in range(8):
        a(f"v_add_f32 v{88 + i}, 1.0, v{88 + i}")
    for i in range(8):
        a(f"v_rcp_f32 v{88 + i}, v{88 + i}")
    for i in range(8):
        a(f"v_mul_f32 v{80 + i}, v{80 + i}, v{88 + i}")
    for i in range(4):
        a(f"v_cvt_pk_bf16_f32 v{8 + i}, v{80 + 2 * i}, v{81 + 2 * i}")


def xcc_flag():
    a(f"s_lshr_b32 s{sT0}, s{sM}, 2")
    a(f"s_lshl2_add_u32 s{sT0}, s{sG}, s{sT0}")
    a(f"s_mul_i32 s{sT0}, s{sT0}, {NREP * 128}")
    a(f"s_and_b32 s{sT1}, s{sM}, 2")
    a(f"s_lshl1_add_u32 s{sT0}, s{sT1}, s{sT0}")
    a(f"s_add_u32 s{sT0}, s{sT0}, {FL + 16:#x}")
    a(f"v_and_b32 v5, {NREP - 1}, v0")
    a(f"v_lshl_add_u32 v5, v5, 7, s{sT0}")
    a(f"s_getreg_b32 s{sT0}, hwreg(HW_REG_XCC_ID, 0, 4)")
    a(f"s_xor_b32 s{sT0}, s{sTAG}, s{sT0}")
    a(f"v_mov_b32 v6, s{sT0}")
    a(f"global_store_dword v5, v6, {sp(sWS)}")


def cf_poll():
    base(sBB, sWS, None, CF)
    a("v_and_b32 v5, 31, v0")
    a("v_lshlrev_b32 v5, 7, v5")
    lab = poll_begin()
    a(f"global_load_dword v6, v5, {sp(sBB)} sc1")
    poll_mid(sleep=4)
    a(f"v_cmp_ne_u32 vcc, s{sTAG}, v6")
    poll_end(lab)


def tile64_tail(first):
    for e in range(first, 8):
        a(mfma(ACC + 4 * e, 8, F + 4 * e))
    for e in range(8):
        a(f"v_add_f32_dpp v{80 + e}, v{ACC + 4 * e + 1}, v{ACC + 4 * e} row_shl:8 {DPPM}")
    set_exec(0x00FF00FF00FF00FF)
    a("ds_write_b128 v6, v[80:83]")
    a("ds_write_b128 v6, v[84:87] offset:16")
    set_exec(-1)


def tile64_addr():
    a("v_lshlrev_b32 v6, 8, v3")
    a("v_lshl_add_u32 v6, v15, 5, v6")
    a(f"v_lshl_add_u32 v6, s{sWAVE}, 10, v6")
    a("v_lshlrev_b32 v7, 3, v0")
    a(f"v_lshl_add_u32 v7, s{sWAVE}, 9, v7")


def tile64_sum():
    for t in range(4):
        a(f"ds_read2st64_b64 {vr(16 + 4 * t, 4)}, v7 offset0:{4 * t} offset1:{4 * t + 2}")


def sec_gm():
    CLS[0] = 4
    a.label("L_GM2")
    ids()
    stamp(1)
    a("s_waitcnt vmcnt(8)")
    silu_frag()
    a("v_lshlrev_b32 v5, 7, v3")
    a("v_lshl_add_u32 v5, v2, 5, v5")
    a(f"v_lshl_add_u32 v5, s{sWAVE}, 9, v5")
    perms8(W, F, waits=[6, 4, 2, 0])
    for e in range(8):
        a(mfma(ACC + 4 * e, 8, F + 4 * e))
    diagX_reduce(ACC, 48)
    set_exec(0x000F000F000F000F)
    a("ds_write_b128 v5, v[48:51]")
    a("ds_write_b128 v5, v[52:55] offset:16")
    set_exec(-1)
    a("s_waitcnt lgkmcnt(0)")
    stamp(2)
    a("s_barrier                      ; 1")
    if OPT["bhelp"]:
        a(f"s_lshl1_add_u32 s{sT0}, s{sM}, s{sWAVE}")
        a(f"s_add_u32 s{sT0}, s{sT0}, 14")
        a(f"s_mul_i32 s{sT0}, s{sT0}, {16 * 6144}")
        a(f"s_lshl_b32 s{sT1}, s{sG}, 9")
        a(f"s_add_u32 s{sT0}, s{sT0}, s{sT1}")
        a(f"s_add_u32 s{sT0}, s{sT0}, 2048")
        a("v_mul_u32_u24 v8, 6144, v1")
        a("v_lshl_add_u32 v8, v2, 7, v8")
        a(f"v_add_u32 v8, s{sT0}, v8")
        a("s_barrier")
        prefetch(8, sWM)
    a("s_branch L_WO")


def sec_gb():
    CLS[0] = 2
    a.label("L_GB1")
    a("s_waitcnt lgkmcnt(0)")
    a.label("L_GB2")
    ids()
    a("v_lshlrev_b32 v5, 10, v5")
    a("v_lshl_add_u32 v5, v3, 5, v5")
    a("v_and_b32 v7, 1, v0")
    a("v_lshl_add_u32 v5, v7, 4, v5")
    a(f"v_lshl_add_u32 v16, s{sWAVE}, 7, v5")
    a(f"s_lshl_b32 s{sT0}, s{sCNT}, 7")
    a(f"s_mul_i32 s{sT3}, s{sWAVE}, {64 * 6144}")
    a(f"s_add_u32 s{sT0}, s{sT0}, s{sT3}")
    base(sBC, sWM, sT0, 2048)
    a(f"s_lshl_b32 s{sT4}, s{sCNT}, 9           ; p*512")
    a("v_mul_u32_u24 v13, 49152, v14")
    a("v_lshl_add_u32 v13, v15, 4, v13")
    a(f"s_movk_i32 s{sT3}, 6144")
    a(f"s_cmp_lg_u32 s{sWAVE}, 7")
    a("s_cbranch_scc1 L_GB3")
    a("s_waitcnt vmcnt(0)")
    make_tag(12)
    base(sBB, sWS, None, CF)
    a(f"v_lshlrev_b32_e64 v5, 7, s{sCNT}")
    a(f"v_mov_b32 v6, s{sTAG}")
    set_exec(1)
    a(f"global_store_dword v5, v6, {sp(sBB)} sc1")
    set_exec(-1)
    xcc_flag()
    a("s_setprio 0")
    a.label("L_GB3")
    stamp(1)
    a("s_barrier")
    a(f"global_load_dwordx4 v[8:11], v16, {sp(sC)}")
    for j in range(8):
        a(f"global_load_dwordx4 {vr(W + 4 * j, 4)}, v13, {sp(sBC)}{NT}")
        if j < 7:
            a(f"v_add_u32 v13, s{sT3}, v13")
    a("s_waitcnt vmcnt(8)")
    silu_frag()
    tile64_addr()
    perms8(W, F, waits=[6, 4, 2, 0])
    tile64_tail(0)
    a(f"s_cmp_lg_u32 s{sWAVE}, 7")
    a("s_cbranch_scc1 L_GB4")
    cf_poll()
    a.label("L_GB4")
    a("s_waitcnt lgkmcnt(0)")
    stamp(2)
    a("s_barrier                      ; 1")
    a(f"s_cmp_ge_u32 s{sWAVE}, 2")
    a("s_cbranch_scc1 L_WO")
    tile64_sum()
    base(sBA, sWS, sT4, MODB)
    a("v_and_b32 v5, 2, v0")
    a("v_lshlrev_b32 v5, 7, v5")
    a("v_and_b32 v6, 32, v0")
    a("v_lshl_add_u32 v5, v6, 1, v5")
    a(f"v_lshl_add_u32 v5, s{sWAVE}, 7, v5")
    a("v_and_b32 v6, 13, v0")
    a("v_lshl_add_u32 v5, v6, 2, v5")
    a("v_bfe_u32 v6, v0, 4, 1")
    a("v_lshl_add_u32 v5, v6, 3, v5")
    a("s_waitcnt lgkmcnt(0)")
    sum8_b64(16)
    a("v_cvt_pk_bf16_f32 v12, v16, v17")
    a(f"global_store_dword v5, v12, {sp(sBA)} sc1")
    stamp(3)
    a("s_branch L_WO")


def sec_ln():
    CLS[0] = 3
    a.label("L_GQA2")
    ids()
    stamp(1)
    a(f"s_cmp_lg_u32 s{sWAVE}, 7")
    a("s_cbranch_scc1 L_GQA3")
    a("s_waitcnt vmcnt(0)")
    make_tag(12)
    unpack(16, 80, 16)
    a("v_pk_add_f32 v[8:9], v[16:17], v[18:19]")
    for i in range(2, 16):
        a(f"v_pk_add_f32 v[8:9], v[8:9], v[{16 + 2 * i}:{17 + 2 * i}]")
    a("v_add_f32 v8, v8, v9")
    row_allsum(8)
    a(f"v_mul_f32 v8, {INV512:#x}, v8       ; mean")
    a("v_mov_b32 v9, v8")
    for i in range(16):
        a(f"v_pk_add_f32 v[{16 + 2 * i}:{17 + 2 * i}], v[{16 + 2 * i}:{17 + 2 * i}], v[8:9] neg_lo:[0,1] neg_hi:[0,1]")
    a("v_pk_mul_f32 v[10:11], v[16:17], v[16:17]")
    for i in range(1, 16):
        a(f"v_pk_fma_f32 v[10:11], v[{16 + 2 * i}:{17 + 2 * i}], v[{16 + 2 * i}:{17 + 2 * i}], v[10:11]")
    a("v_add_f32 v10, v10, v11")
    row_allsum(10)
    a(f"v_mul_f32 v9, {INV512:#x}, v10      ; var")
    round_bf16([8, 9])
    a(f"v_add_f32 v9, {EPS:#x}, v9")
    round_bf16([9])
    a("v_sqrt_f32 v9, v9")
    round_bf16([9])
    a("v_rcp_f32 v9, v9")
    a("v_lshlrev_b32 v13, 16, v13")
    a("v_sub_f32 v13, v13, v8")
    round_bf16([13])
    a("v_mul_f32 v13, v13, v9")
    round_bf16([13])
    a("v_lshlrev_b32 v5, 7, v3")
    a("v_lshl_add_u32 v5, v7, 2, v5")
    a("v_add_u32 v10, 64, v5")
    a("v_lshlrev_b32 v14, 6, v3              ; b*64")
    a("v_and_b32 v8, 8, v7")
    a("v_lshl_add_u32 v14, v8, 2, v14        ; c'lo*32")
    a("v_and_b32 v8, 2, v7")
    a("v_lshl_add_u32 v14, v8, 3, v14        ; (d&1)*16")
    a("v_and_b32 v8, 4, v7")
    a("v_lshl_add_u32 v14, v8, 1, v14        ; (d>>1)*8")
    a(f"s_lshl_b32 s{sT0}, s{sCNT}, 8")
    base(sBA, sWS, sT0, H1)
    a(f"v_mov_b32 v9, s{sTAG}")
    stamp(2)
    a("s_barrier                      ; 1")
    a("ds_read2st64_b32 v[80:81], v5 offset0:0 offset1:2")
    a("ds_read2st64_b32 v[82:83], v5 offset0:4 offset1:6")
    a("ds_read2st64_b32 v[84:85], v10 offset0:0 offset1:2")
    a("ds_read2st64_b32 v[86:87], v10 offset0:4 offset1:6")
    a("s_waitcnt lgkmcnt(0)")
    a("v_pk_add_f32 v[80:81], v[80:81], v[82:83]")
    a("v_pk_add_f32 v[84:85], v[84:85], v[86:87]")
    a("v_add_f32 v80, v80, v81               ; sa")
    a("v_add_f32 v81, v84, v85               ; ca")
    round_bf16([80, 81])
    a("v_add_f32 v81, 1.0, v81")
    round_bf16([81])
    a("v_mul_f32 v81, v13, v81")
    round_bf16([81])
    a("v_add_f32 v80, v81, v80")
    a(f"v_mov_b32_dpp v81, v80 quad_perm:[1,1,3,3] {DPPM}")
    a("v_cvt_pk_bf16_f32 v8, v80, v81")
    set_exec(0x5555555555555555)
    a(f"global_store_dwordx2 v14, v[8:9], {sp(sBA)} sc1")
    set_exec(-1)
    stamp(3)
    xcc_flag()
    if OPT["bhelp"]:
        a("s_barrier                      ; 1b")
    cf_poll()
    a("s_branch L_WO")
    a.label("L_GQA3")
    a("s_barrier                      ; 1")
    if OPT["bhelp"]:
        a("s_barrier                      ; 1b")
    a("s_branch L_WO")


def sec_gq():
    CLS[0] = 0
    a.label("L_GQ2")
    ids()
    stamp(1)
    a(f"s_lshl_b32 s{sT0}, s{sWAVE}, 10")
    base(sBA, sWS, sT0, H1)
    a(f"s_lshl_b32 s{sT0}, s{sWAVE}, 9")
    base(sBC, sWS, sT0, CF)
    a("v_lshlrev_b32 v5, 6, v1")
    a("v_and_b32 v7, 1, v0")
    a("v_lshl_add_u32 v5, v7, 5, v5")
    a("v_lshlrev_b32 v98, 7, v2")
    tile64_addr()
    a(f"s_lshl_b32 s{sT0}, s{sG}, 12")
    a(f"s_lshl_b32 s{sT1}, s{sM}, 6")
    a(f"s_add_u32 s{sT0}, s{sT0}, s{sT1}")
    a(f"s_lshl_b32 s{sT1}, s{sWAVE}, 11")
    a(f"s_add_u32 s{sT0}, s{sT0}, s{sT1}")
    a("v_and_b32 v97, 31, v0")
    a(f"v_lshl_add_u32 v97, v97, 2, s{sT0}")
    a("v_and_b32 v99, 32, v0")
    a("v_lshl_add_u32 v97, v99, 5, v97")
    a("v_lshlrev_b32 v99, 1, v97")
    base(sBB, sWS, None, QS)
    a(f"s_cmp_ge_u32 s{sWAVE}, 2")
    a("s_cbranch_scc1 L_GQ3")
    a(f"global_load_dword v127, v97, {sp(sBB)} sc1")
    a.label("L_GQ3")
    a("s_waitcnt vmcnt(8)")
    make_tag(12)
    perms8(W, F, waits=[6, 4, 2, 0])
    stamp(4)
    lab = poll_begin()
    a(f"global_load_dwordx4 v[8:11], v5, {sp(sBA)} sc1")
    a(f"global_load_dwordx4 v[12:15], v5, {sp(sBA)} offset:16 sc1")
    a(f"global_load_dword v84, v98, {sp(sBC)} sc1")
    poll_mid()
    a(f"v_xor_b32 v80, s{sTAG}, v9")
    a(f"v_xor_b32 v81, s{sTAG}, v11")
    a("v_mov_b32 v9, v12")
    a("v_mov_b32 v11, v14")
    a(f"v_xor_b32 v82, s{sTAG}, v13")
    a(f"v_xor_b32 v83, s{sTAG}, v15")
    interleave([mfma(ACC + 4 * e, 8, F + 4 * e) for e in range(2)],
               [f"v_xor_b32 v84, s{sTAG}, v84", "v_or3_b32 v80, v80, v81, v82", "v_or3_b32 v80, v80, v83, v84", "v_cmp_ne_u32 vcc, 0, v80"], 2)
    poll_end(lab)
    tile64_tail(2)
    a("s_waitcnt lgkmcnt(0)")
    stamp(5)
    a("s_barrier                      ; 1")
    a(f"s_cmp_ge_u32 s{sWAVE}, 2")
    a("s_cbranch_scc1 L_WO")
    tile64_sum()
    base(sBA, sWS, None, H2G)
    a(f"s_getreg_b32 s{sT0}, hwreg(HW_REG_XCC_ID, 0, 4)")
    a(f"s_xor_b32 s{sT0}, s{sTAG}, s{sT0}")
    a(f"v_mov_b32 v9, s{sT0}")
    a("s_waitcnt lgkmcnt(0)")
    sum8_b64(16)
    a("v_cvt_pk_bf16_f32 v8, v16, v17")
    a(f"global_store_dword v97, v8, {sp(sBB)}")
    a("s_waitcnt vmcnt(0)")
    a(f"global_store_dword v96, v9, {sp(sWS)}")
    a(f"global_store_dwordx2 v99, v[8:9], {sp(sBA)} sc1")
    stamp(6)
    a("s_branch L_WO")


WD = 128


def down_loads():
    a(f"s_lshr_b32 s{sT2}, s{sM}, 1")
    a(f"s_lshl2_add_u32 s{sT0}, s{sG}, s{sT2}")
    a(f"s_lshl_b32 s{sT0}, s{sT0}, 5")
    a(f"s_lshl_b32 s{sT2}, s{sWAVE}, 18")
    a(f"s_add_u32 s{sT0}, s{sT0}, s{sT2}")
    base(sBB, sWD, sT0, 4096)
    a("v_lshlrev_b32 v6, 13, v1")
    a("v_lshl_add_u32 v6, v2, 3, v6")
    a("v_add_u32 v7, 0x20000, v6")
    for f in range(2):
        for j in range(8):
            a(f"global_load_dwordx2 {vr(WD + 16 * f + 2 * j, 2)}, v{7 if f else 6}, {sp(sBB)} offset:{1024 * j - 4096}{NTW}")


def sec_wo():
    CLS[0] = 0
    a.label("L_WO")
    a(f"s_lshr_b32 s{sT1}, s{sWAVE}, 1")
    a(f"s_lshl2_add_u32 s{sT0}, s{sG}, s{sT1}")
    a(f"s_lshl_b32 s{sT0}, s{sT0}, 5")
    a(f"s_and_b32 s{sT2}, s{sWAVE}, 1")
    a(f"s_add_u32 s{sT0}, s{sT0}, s{sT2}")
    a(f"s_lshl_b32 s{sT0}, s{sT0}, 6            ; (512g + 128h + 4*(i&1)) * 16")
    a(f"s_add_u32 s{sT0}, s{sT0}, s{sM}")
    a(f"s_lshl_b32 s{sT0}, s{sT0}, 6")
    base(sBB, sWO, sT0)
    a("v_and_b32 v7, 15, v0")
    a("v_and_b32 v6, 1, v3")
    a("v_lshlrev_b32 v6, 16, v6")
    a("v_lshrrev_b32 v5, 1, v3")
    a("v_lshl_add_u32 v6, v5, 10, v6")
    a("v_lshl_add_u32 v6, v7, 2, v6")
    a(f"s_movk_i32 s{sT3}, 8192")
    a("s_setprio 0")
    a(f"s_lshl4_add_u32 s{sT0}, s{sG}, s{sM}")
    a(f"s_lshl2_add_u32 s{sT0}, s{sT0}, s{sWAVE}")
    a(f"s_lshl_b32 s{sT0}, s{sT0}, 13")
    a(f"v_lshl_add_u32 v8, v0, 7, s{sT0}")
    if OPT["wowait"]:
        a(f"s_and_b32 s{sT0}, s{sM}, 1")
        a(f"s_lshl_b32 s{sT0}, s{sT0}, 3")
        a(f"s_add_u32 s{sT0}, s{sT0}, s{sWAVE}")
        a(f"s_cmp_lg_u32 s{sT0}, 15")
        a("s_cbranch_scc1 L_WO0")
        a(f"s_mul_i32 s{sT0}, s{sG}, {4 * NREP * 128}")
        base(sBA, sWS, sT0, FL)
        a("v_and_b32 v9, 3, v1")
        a(f"v_mul_u32_u24 v9, {NREP * 128}, v9")
        a("v_lshl_add_u32 v9, v2, 2, v9")
        a(f"s_movk_i32 s{sCNT}, 40")
        a.label("L_WOw")
        a(f"global_load_dword v10, v9, {sp(sBA)} sc1")
        poll_mid(sleep=2)
        a(f"v_xor_b32 v10, s{sTAG}, v10")
        a("v_cmp_gt_u32 vcc, 16, v10")
        a("s_cmp_eq_u64 vcc, 0")
        a("s_cselect_b64 vcc, -1, 0")
        poll_end("L_WOw")
        a.label("L_WO0")
    a("s_barrier")
    if OPT["wopf"]:
        a(f"s_cmp_ge_u32 s{sWAVE}, 4")
        a("s_cbranch_scc1 L_WO1")
        prefetch(8, sWO)
        a.label("L_WO1")
    for j in range(8):
        for ks in range(2):
            a(f"global_load_dword v{96 + 8 * ks + j}, v6, {sp(sBB)} offset:{2048 * ks}{NTW}")
        if j < 7:
            a(f"v_add_u32 v6, s{sT3}, v6")
    a(f"s_lshl3_add_u32 s{sT0}, s{sG}, s{sWAVE}")
    a(f"s_lshl_b32 s{sT0}, s{sT0}, 11")
    base(sBA, sWS, sT0, H3O)
    a(f"s_lshl2_add_u32 s{sT0}, s{sG}, s{sT1}")
    a(f"s_lshl_b32 s{sT0}, s{sT0}, 7")
    base(sBC, sWS, sT0, H3ML)
    a("v_lshlrev_b32 v5, 4, v0")
    a("v_lshlrev_b32 v6, 5, v3")
    a("v_lshlrev_b32 v12, 3, v0")
    a(f"v_lshl_add_u32 v7, s{sWAVE}, 9, v12")
    a("s_waitcnt vmcnt(0)")
    stamp(7)
    for ks in range(2):
        for eo in range(2):
            for x in range(4):
                a(f"v_perm_b32 v{32 + 8 * ks + 4 * eo + x}, v{96 + 8 * ks + 2 * x + 1}, v{96 + 8 * ks + 2 * x}, s{sHI if eo else sLO}")
    lab = poll_begin()
    a(f"global_load_dwordx4 v[56:59], v6, {sp(sBC)} sc1")
    a(f"global_load_dwordx4 v[60:63], v6, {sp(sBC)} offset:16 sc1")
    poll_mid()
    for ins in sentinel_ops(range(56, 64), 8):
        a(ins)
    poll_end(lab)
    a(f"s_lshl4_add_u32 s{sT0}, s{sG}, s{sM}")
    a(f"s_lshl_b32 s{sT0}, s{sT0}, 8")
    base(sBB, sWS, sT0, H4)
    a("v_lshlrev_b32 v6, 2, v0")
    a("v_max3_f32 v8, v56, v58, v60")
    a("v_max_f32 v8, v8, v62")
    for s in range(4):
        a(f"v_sub_f32 v{56 + 2 * s}, v{56 + 2 * s}, v8")
    for s in range(4):
        a(f"v_exp_f32 v{56 + 2 * s}, v{56 + 2 * s}")
    a("v_mul_f32 v9, v56, v57")
    for s in range(1, 4):
        a(f"v_fmac_f32 v9, v{56 + 2 * s}, v{57 + 2 * s}")
    a("v_rcp_f32 v9, v9")
    for s in range(4):
        a(f"v_mul_f32 v{64 + s}, v{56 + 2 * s}, v9")
    stamp(8)
    lab = poll_begin()
    a(f"global_load_dwordx4 v[48:51], v5, {sp(sBA)} sc1")
    a(f"global_load_dwordx4 v[52:55], v5, {sp(sBA)} offset:1024 sc1")
    poll_mid()
    interleave([mfma(16, 48, 32), mfma(20, 48, 36), mfma(16, 52, 40, 16), mfma(20, 52, 44, 20)],
               sentinel_ops(range(48, 56), 8), 2)
    poll_end(lab)
    a("v_pk_mul_f32 v[16:17], v[16:17], v[64:65]")
    a("v_pk_mul_f32 v[20:21], v[20:21], v[64:65]")
    a("v_pk_fma_f32 v[16:17], v[18:19], v[66:67], v[16:17]")
    a("v_pk_fma_f32 v[20:21], v[22:23], v[66:67], v[20:21]")
    a("v_add_f32 v10, v16, v17")
    a("v_add_f32 v11, v20, v21")
    a("ds_write_b64 v7, v[10:11] offset:6144")
    a("s_waitcnt lgkmcnt(0)")
    stamp(9)
    a("s_barrier                      ; 3")
    a(f"s_cmp_lg_u32 s{sWAVE}, 7")
    a("s_cbranch_scc1 L_DOWN")
    for t in range(4):
        a(f"ds_read2st64_b64 {vr(16 + 4 * t, 4)}, v12 offset0:{12 + 2 * t} offset1:{13 + 2 * t}")
    a("s_waitcnt lgkmcnt(0)")
    sum8_b64(16)
    a("v_cvt_pk_bf16_f32 v8, v16, v17")
    a(f"global_store_dword v6, v8, {sp(sBB)} sc1")
    a(f"s_mul_i32 s{sT0}, s{sM}, {112 * 1024}")
    a(f"s_lshl_b32 s{sT1}, s{sG}, 7")
    a(f"s_add_u32 s{sT0}, s{sT0}, s{sT1}")
    a(f"v_lshl_add_u32 v9, v0, 10, s{sT0}")
    a(f"v_add_u32 v10, {48 * 1024}, v9")
    prefetch(9, sWD, True)
    prefetch(10, sWD, True)
    stamp(10)
    a(f"s_cmp_lg_u32 s{sKIND}, 1")
    a("s_cbranch_scc1 L_fin")
    a("s_barrier                      ; 3b")
    a(f"s_lshr_b32 s{sT1}, s{sM}, 1")
    a(f"s_lshl2_add_u32 s{sT2}, s{sG}, s{sT1}       ; col0/16")
    a(f"s_lshl_b32 s{sT0}, s{sG}, 9")
    a(f"s_and_b32 s{sT3}, s{sT1}, 1")
    a(f"s_lshl_b32 s{sT3}, s{sT3}, 5")
    a(f"s_add_u32 s{sT0}, s{sT0}, s{sT3}")
    a(f"s_and_b32 s{sT3}, s{sT1}, 2")
    a(f"s_lshl2_add_u32 s{sT0}, s{sT3}, s{sT0}")
    base(sBA, sWS, sT0, X1)
    base(sBB, sWS, sT0, MODB + 3 * 4096)
    a("v_and_b32 v7, 4, v0")
    a("v_lshlrev_b32 v5, 6, v7")
    a("v_lshl_add_u32 v5, v3, 6, v5")
    a("v_and_b32 v7, 10, v0")
    a("v_lshl_add_u32 v5, v7, 1, v5")
    a(f"s_lshl_b32 s{sT0}, s{sT2}, 5")
    base(sBC, sOUT, sT0)
    a("v_and_b32 v7, 15, v0")
    a("v_lshlrev_b32 v11, 10, v3")
    a("v_lshl_add_u32 v11, v7, 1, v11")
    a("v_and_b32 v7, 1, v0")
    a("v_lshlrev_b32 v7, 4, v7")
    a("s_barrier")
    lab = poll_begin()
    a(f"global_load_dword v8, v5, {sp(sBA)} sc1")
    a(f"global_load_dword v9, v5, {sp(sBB)} sc1")
    poll_mid()
    for ins in sentinel_ops([8, 9], 10):
        a(ins)
    poll_end(lab)
    a("v_lshrrev_b32 v8, v7, v8")
    a("v_lshrrev_b32 v9, v7, v9")
    a("v_lshlrev_b32 v8, 16, v8              ; x1")
    a("v_lshlrev_b32 v9, 16, v9              ; gb")
    stamp(12)
    a("s_barrier                      ; 4")
    for t in range(7):
        a(f"ds_read2st64_b32 v[{16 + 2 * t}:{17 + 2 * t}], v6 offset0:{40 + 2 * t} offset1:{41 + 2 * t}")
    a("s_waitcnt lgkmcnt(3)")
    a("v_pk_add_f32 v[16:17], v[16:17], v[18:19]")
    a("v_pk_add_f32 v[20:21], v[20:21], v[22:23]")
    a("v_pk_add_f32 v[16:17], v[16:17], v[20:21]")
    a("s_waitcnt lgkmcnt(0)")
    a("v_pk_add_f32 v[24:25], v[24:25], v[26:27]")
    a("v_pk_add_f32 v[16:17], v[16:17], v[28:29]")
    a("v_pk_add_f32 v[16:17], v[16:17], v[24:25]")
    a("v_add_f32 v16, v16, v17")
    a("v_fma_f32 v16, v9, v16, v8")
    a("v_cvt_pk_bf16_f32 v16, v16, v16")
    a(f"global_store_short v11, v16, {sp(sBC)}")
    stamp(13)
    a("s_cmp_lg_u32 s2, 8")
    a("s_cbranch_scc1 L_fin")
    a(f"v_mov_b32 v8, s{sTAG}")
    set_exec(1)
    a(f"global_store_dword v4, v8, {sp(sWS)} sc1")
    a.label("L_fin")
    finish_wave()


def sec_down():
    CLS[0] = 0
    a.label("L_DOWN")
    a(f"s_cmp_lg_u32 s{sKIND}, 1")
    a("s_cbranch_scc1 L_fin")
    a("s_barrier                      ; 3b")
    down_loads()
    a(f"s_lshl_b32 s{sT0}, s{sWAVE}, 11")
    base(sBA, sWS, sT0, ACT)
    a("v_lshlrev_b32 v6, 7, v3")
    a("v_lshl_add_u32 v6, v2, 4, v6")
    a(f"v_lshl_add_u32 v6, s{sWAVE}, 9, v6")
    a("s_waitcnt vmcnt(0)")
    a("s_barrier                      ; 3c")
    for f in range(2):
        for e in range(4):
            for x in range(4):
                a(f"v_perm_b32 v{48 + 16 * f + 4 * e + x}, v{WD + 16 * f + 2 * (2 * x + 1) + (e >> 1)}, "
                  f"v{WD + 16 * f + 2 * (2 * x) + (e >> 1)}, s{sHI if e & 1 else sLO}")
    stamp(11)
    lab = poll_begin()
    a(f"global_load_dwordx4 v[8:11], v5, {sp(sBA)} sc1")
    a(f"global_load_dwordx4 v[12:15], v5, {sp(sBA)} offset:1024 sc1")
    poll_mid()
    interleave([mfma(16 + 4 * e, 8, 48 + 4 * e) for e in range(3)], sentinel_ops(range(8, 16), 7), 2)
    poll_end(lab)
    a(mfma(28, 8, 60))
    for e in range(4):
        a(mfma(16 + 4 * e, 12, 64 + 4 * e, 16 + 4 * e))
    for e in range(4):
        for b0 in range(2):
            a(f"v_add_f32_dpp v{32 + 4 * b0 + e}, v{16 + 4 * e + 2 * b0 + 1}, v{16 + 4 * e + 2 * b0} row_shl:4 {DPPM}")
    set_exec(0x0F000F00000F000F)
    a("ds_write_b128 v6, v[32:35] offset:10240")
    a("ds_write_b128 v6, v[36:39] offset:10304")
    a("s_waitcnt lgkmcnt(0)")
    stamp(12)
    a("s_barrier                      ; 4")
    finish_wave()


def sec_att():
    CLS[0] = 1
    a.label("L_A2")
    ids()
    stamp(1)
    a(f"s_cmp_lt_u32 s{sWAVE}, 4")
    a("s_cbranch_scc1 L_A2b")
    a(f"s_bitcmp1_b32 s{sWAVE}, 0")
    a(f"s_cselect_b64 {sp(sBA)}, {sp(sWU)}, {sp(sWG)}")
    a(f"s_and_b32 s{sT0}, s{sWAVE}, 2")
    a(f"s_lshl2_add_u32 s{sT0}, s{sM}, s{sT0}")
    a(f"s_mul_i32 s{sT0}, s{sT0}, {8 * 3584}")
    a(f"s_mul_i32 s{sT1}, s{sG}, 448")
    a(f"s_andn2_b32 s{sT1}, s{sT1}, 127")
    a(f"s_add_u32 s{sT0}, s{sT0}, s{sT1}")
    a("v_mul_u32_u24 v13, 3584, v1")
    a("v_lshl_add_u32 v13, v2, 7, v13")
    a(f"v_add_u32 v13, s{sT0}, v13")
    prefetch(13, sBA, True)
    a(f"s_waitcnt vmcnt({10 if OPT['pfpol'] == 2 else 9})")
    stamp(2)
    a("s_branch L_A3")
    a.label("L_A2b")
    a("s_waitcnt vmcnt(0)")
    make_tag(12)
    stamp(2)
    a(f"s_getreg_b32 s{sT0}, hwreg(HW_REG_XCC_ID, 0, 4)")
    a(f"s_xor_b32 s56, s{sTAG}, s{sT0}")
    a("s_mov_b32 s57, s56")
    a(f"s_lshl2_add_u32 s{sT0}, s{sG}, s{sWAVE}")
    a(f"s_mul_i32 s{sT0}, s{sT0}, {NREP * 128}")
    base(sBA, sWS, sT0, FL)
    a(f"s_mov_b32 s{sCNT}, 0")
    a.label("L_Aq")
    a(f"s_load_dwordx8 s[48:55], {sp(sBA)}, s{sCNT}")
    a(f"s_add_u32 s{sCNT}, s{sCNT}, 128")
    a("s_waitcnt lgkmcnt(0)")
    a("s_xor_b64 s[48:49], s[48:49], s[56:57]")
    a("s_xor_b64 s[50:51], s[50:51], s[56:57]")
    a("s_xor_b64 s[52:53], s[52:53], s[56:57]")
    a("s_or_b64 s[48:49], s[48:49], s[50:51]")
    a("s_or_b64 s[48:49], s[48:49], s[52:53]")
    a("s_cbranch_scc0 L_Aq_ok")
    if OPT["qsleep"]:
        a(f"s_sleep {OPT['qsleep']}")
    a(f"s_cmp_lt_u32 s{sCNT}, {NREP * 128}")
    a("s_cbranch_scc1 L_Aq")
    a(f"s_lshr_b32 s{sT0}, s{sM}, 2")
    a(f"s_lshl2_add_u32 s{sT0}, s{sG}, s{sT0}")
    a(f"s_lshl2_add_u32 s{sT0}, s{sT0}, s{sWAVE}")
    a(f"s_lshl_b32 s{sT0}, s{sT0}, 9")
    base(sBA, sWS, sT0, H2G)
    a("v_lshlrev_b32 v10, 3, v0")
    lab = poll_begin()
    a(f"global_load_dwordx2 v[8:9], v10, {sp(sBA)} sc1")
    poll_mid()
    a(f"v_xor_b32 v9, s{sTAG}, v9")
    a("v_cmp_lt_u32 vcc, 15, v9")
    poll_end(lab)
    a("v_mov_b32 v9, 2")
    if OPT["probe"] == 3:
        a("v_mov_b32 v162, 1")
    a("s_branch L_Aq_st")
    a.label("L_Aq_ok")
    a(f"s_lshr_b32 s{sT0}, s{sM}, 2")
    a(f"s_lshl2_add_u32 s{sT0}, s{sG}, s{sT0}")
    a(f"s_lshl2_add_u32 s{sT0}, s{sT0}, s{sWAVE}")
    a(f"s_lshl_b32 s{sT0}, s{sT0}, 8")
    a(f"s_add_u32 s{sT0}, s{sT0}, {QS:#x}")
    a(f"s_add_u32 s0, s{sWS}, s{sT0}")
    a(f"s_addc_u32 s1, s{sWS + 1}, 0")
    for t in range(4):
        a(f"s_load_dwordx16 s[{sQ + 16 * t}:{sQ + 16 * t + 15}], s[0:1], {64 * t}")
    a("v_mov_b32 v9, 1")
    a("s_waitcnt lgkmcnt(0)")
    for i in range(64):
        a(f"v_writelane_b32 v8, s{sQ + i}, {i}")
    a.label("L_Aq_st")
    a("v_lshlrev_b32 v10, 2, v0")
    a(f"v_lshl_add_u32 v10, s{sWAVE}, 8, v10")
    a(f"v_lshlrev_b32_e64 v11, 2, s{sWAVE}")
    a(f"ds_write_b32 v10, v8 offset:{LQ}")
    a(f"ds_write_b32 v11, v9 offset:{LQF}")
    a.label("L_A3")
    a(f"s_mul_i32 s{sT0}, s{sWAVE}, 2560")
    a("v_mul_u32_u24 v7, 576, v5")
    a("v_lshl_add_u32 v7, v2, 6, v7")
    a("v_lshl_add_u32 v7, v3, 4, v7")
    a(f"v_add_u32 v7, s{sT0}, v7")
    a("v_lshlrev_b32 v5, 5, v5               ; h*32")
    a(f"v_lshl_add_u32 v120, s{sWAVE}, 2, v5     ; h*32 + wave*4")
    a("v_lshlrev_b32 v124, 4, v0")
    a("v_add_u32 v125, 0x1000, v124")
    lab = poll_begin()
    a(f"ds_read_b128 v[12:15], v4 offset:{LQF}")
    a(f"ds_read_b128 v[8:11], v6 offset:{LQ}")
    poll_mid("lgkmcnt(0)")
    a("v_min3_u32 v112, v12, v13, v14")
    a("v_min_u32 v112, v112, v15")
    a("v_cmp_eq_u32 vcc, 0, v112")
    poll_end(lab)
    stamp(3)
    for u in range(8):
        a(mfma(SA + 4 * u, KR + 4 * u, 8))
    a("v_or3_b32 v12, v12, v13, v14")
    a("v_or_b32 v12, v12, v15")
    a("v_lshrrev_b32 v12, 1, v12")
    a(f"v_readfirstlane_b32 s{sLOCAL}, v12")
    S = 112
    for u in range(8):
        a(f"v_add_f32_dpp v{S + u}, v{SA + 4 * u + 1}, v{SA + 4 * u} row_shl:1 {DPPM}")
    for u in range(8):
        a(f"v_add_f32_dpp v{S + u}, v{SA + 4 * u + 2}, v{S + u} row_shl:2 {DPPM}")
    for u in range(8):
        a(f"v_add_f32_dpp v{S + u}, v{SA + 4 * u + 3}, v{S + u} row_shl:3 {DPPM}")
    round_bf16(list(range(S, S + 8)))
    for u in range(8):
        a(f"v_mul_f32 v{S + u}, {SCALE:#x}, v{S + u}")
    round_bf16(list(range(S, S + 8)))
    a(f"v_max3_f32 v12, v{S}, v{S + 1}, v{S + 2}")
    a(f"v_max3_f32 v13, v{S + 3}, v{S + 4}, v{S + 5}")
    a(f"v_max3_f32 v12, v12, v{S + 6}, v{S + 7}")
    a("v_max_f32 v12, v12, v13")
    cross_rows("v_max_f32", 12, 13)
    set_exec(0x1111)
    a(f"ds_write_b32 v120, v12 offset:{LM}")
    set_exec(-1)
    a("s_waitcnt lgkmcnt(0)")
    a("s_barrier")
    a(f"ds_read_b128 v[80:83], v5 offset:{LM}")
    a(f"ds_read_b128 v[84:87], v5 offset:{LM + 16}")
    a(f"s_mov_b32 s{sT0}, {LOG2E:#x}")
    for y in range(4):
        a(f"v_cmp_eq_u32 s[{48 + 2 * y}:{49 + 2 * y}], {y}, v2")
    a("s_waitcnt lgkmcnt(0)")
    a("v_max3_f32 v12, v80, v81, v82")
    a("v_max3_f32 v13, v83, v84, v85")
    a("v_max3_f32 v12, v12, v86, v87")
    a("v_max_f32 v12, v12, v13")
    a(f"v_mul_f32 v12, {LOG2E:#x}, v12")
    for u in range(8):
        a(f"v_fma_f32 v{S + u}, v{S + u}, s{sT0}, -v12")
    for u in range(8):
        a(f"v_exp_f32 v{S + u}, v{S + u}")
    for x in range(4):
        a(f"v_cvt_pk_bf16_f32 v{8 + x}, v{S + 2 * x}, v{S + 2 * x + 1}")
    a(f"v_pk_add_f32 v[{S}:{S + 1}], v[{S}:{S + 1}], v[{S + 2}:{S + 3}]")
    a(f"v_pk_add_f32 v[{S + 4}:{S + 5}], v[{S + 4}:{S + 5}], v[{S + 6}:{S + 7}]")
    a(f"v_pk_add_f32 v[{S}:{S + 1}], v[{S}:{S + 1}], v[{S + 4}:{S + 5}]")
    a(f"v_add_f32 v13, v{S}, v{S + 1}")
    for x in range(4):
        a(f"v_mov_b32_dpp v{8 + x}, v{8 + x} quad_perm:[0,0,0,0] {DPPM}")
    cross_rows("v_add_f32", 13, 14)
    set_exec(0x1111)
    a(f"ds_write_b32 v120, v13 offset:{LL}")
    set_exec(-1)
    PY = 88
    for y in range(4):
        for x in range(4):
            a(f"v_cndmask_b32 v{PY + 4 * y + x}, 0, v{8 + x}, s[{48 + 2 * y}:{49 + 2 * y}]")
    a("s_waitcnt lgkmcnt(0)")
    a("s_barrier")
    stamp(4)
    a(f"s_lshl2_add_u32 s{sT0}, s{sG}, s{sWAVE}")
    a(f"s_lshl_b32 s{sT0}, s{sT0}, 8")
    a(f"s_add_u32 s{sT0}, s{sT0}, s{sM}")
    a(f"s_lshl_b32 s{sT0}, s{sT0}, 4")
    base(sBA, sWS, sT0, H3O)
    a("v_lshlrev_b32 v121, 8, v1")
    a("v_lshl_add_u32 v121, v2, 2, v121")
    a(f"s_mul_i32 s{sT0}, s{sWAVE}, 576")
    a(f"v_lshl_add_u32 v122, v0, 3, s{sT0}")
    a(f"s_cmp_lt_u32 s{sWAVE}, 4")
    a("s_cbranch_scc1 L_A5")
    a(f"s_and_b32 s{sT4}, s{sWAVE}, 3")
    a(f"s_lshl_b32 s{sT0}, s{sT4}, 8")
    base(sBB, sX, sT0)
    a(f"s_lshl_b32 s{sT0}, s{sT4}, 10")
    base(sBA, sWS, sT0, MODB + 4096)
    a("v_lshrrev_b32 v13, 1, v3")
    a("v_lshlrev_b32 v13, 7, v13")
    a("v_and_b32 v14, 1, v3")
    a("v_lshl_add_u32 v13, v14, 3, v13")
    a("v_lshl_add_u32 v13, v2, 4, v13")
    a("v_lshl_add_u32 v13, v5, 5, v13        ; x offset: b*1024 + (G>>1)*128 + c*16 + (G&1)*8")
    a(f"global_load_dwordx2 v[128:129], v13, {sp(sBB)}")
    a(f"global_load_dwordx2 v[130:131], v13, {sp(sBB)} offset:64")
    modb_loads()
    a("s_branch L_A6")
    a.label("L_A5")
    a(f"s_cmp_lg_u32 s{sWAVE}, 0")
    a("s_cbranch_scc1 L_A6")
    a(f"ds_read_b128 v[80:83], v5 offset:{LL}")
    a(f"ds_read_b128 v[84:87], v5 offset:{LL + 16}")
    a(f"s_lshl_b32 s{sT0}, s{sG}, 6")
    a(f"s_add_u32 s{sT0}, s{sT0}, s{sM}")
    a(f"s_lshl_b32 s{sT0}, s{sT0}, 3")
    base(sBB, sWS, sT0, H3ML)
    a("v_lshlrev_b32 v14, 2, v5              ; h*128")
    a("s_waitcnt lgkmcnt(0)")
    a("v_pk_add_f32 v[80:81], v[80:81], v[82:83]")
    a("v_pk_add_f32 v[84:85], v[84:85], v[86:87]")
    a("v_pk_add_f32 v[80:81], v[80:81], v[84:85]")
    a("v_add_f32 v13, v80, v81")
    set_exec(0x1111)
    a(f"s_cmp_lg_u32 s{sLOCAL}, 0")
    a("s_cbranch_scc1 L_A_mlg")
    a(f"global_store_dwordx2 v14, v[12:13], {sp(sBB)}")
    a.label("L_A_mld")
    set_exec(-1)
    a.label("L_A6")
    extra = 7 if OPT['pfpol'] == 2 else 6
    perms8(VR, VT, waits=[6 + extra, 4 + extra, 2 + extra, 0 + extra])
    for e in range(8):
        d = OA + 4 * (e >> 2)
        a(mfma(d, VT + 4 * e, PY + 4 * (e & 3), None if (e & 3) == 0 else d))
    a(f"ds_write_b128 v7, {vr(OA, 4)}")
    a(f"ds_write_b128 v7, {vr(OA + 4, 4)} offset:256")
    a("s_waitcnt lgkmcnt(0)")
    stamp(5)
    a("s_barrier                      ; 2")
    a(f"s_cmp_ge_u32 s{sWAVE}, 4")
    a("s_cbranch_scc1 L_FF")
    for t in range(4):
        a(f"ds_read2st64_b64 {vr(16 + 4 * t, 4)}, v122 offset0:{10 * t} offset1:{10 * t + 5}")
    a(f"s_cmp_lg_u32 s{sLOCAL}, 0")
    a("s_waitcnt lgkmcnt(0)")
    sum8_b64(16)
    a("v_cvt_pk_bf16_f32 v10, v16, v17")
    a("s_cbranch_scc1 L_A_pubg")
    a(f"global_store_dword v121, v10, {sp(sBA)}")
    a.label("L_A_pubd")
    stamp(6)
    a("s_barrier                      ; 2b")
    a("s_branch L_FF0")
    a.label("L_A_pubg")
    a(f"global_store_dword v121, v10, {sp(sBA)} sc1")
    a("s_branch L_A_pubd")
    a.label("L_A_mlg")
    a(f"global_store_dwordx2 v14, v[12:13], {sp(sBB)} sc1")
    a("s_branch L_A_mld")


def sec_dump():
    if OPT["probe"]:
        a.label("L_dump")
        a("s_mov_b64 exec, 1")
        a(f"s_lshl3_add_u32 s{sT0}, s2, s{sWAVE}")
        a(f"s_lshl_b32 s{sT0}, s{sT0}, 4")
        base(sBA, sWS, sT0, STAMP)
        a("v_mov_b32 v4, 0")
        a(f"global_store_dwordx4 v4, v[160:163], {sp(sBA)} sc1")
        a("s_cmp_lg_u32 s2, 8")
        a("s_cbranch_scc1 L_exit")
        a(f"s_cmp_lg_u32 s{sWAVE}, 7")
        a("s_cbranch_scc1 L_exit")
        a("s_mov_b64 exec, -1")
        a("s_memrealtime s[60:61]")
        a("s_sleep 100")
        a("s_waitcnt vmcnt(0) lgkmcnt(0)")
        base(sBA, sWS, None, STAMP)
        a("v_lshlrev_b32 v4, 4, v0")
        for i in range(32):
            a(f"global_load_dwordx4 {vr(16 + 4 * i, 4)}, v4, {sp(sBA)} sc1")
            a("v_add_u32 v4, 0x400, v4")
        a("s_waitcnt vmcnt(0)")
        a("v_mov_b32 v8, v16")
        a("v_mov_b32 v9, 0")
        for i in range(1, 32):
            a(f"v_max_u32 v8, v8, v{16 + 4 * i}")
            a(f"v_min_u32 v16, v16, v{16 + 4 * i}")
            a(f"v_max_u32 v17, v17, v{17 + 4 * i}")
            a(f"v_add_u32 v18, v18, v{18 + 4 * i}")
            a(f"v_cmp_ne_u32 vcc, v19, v{19 + 4 * i}")
            a(f"v_addc_co_u32 v9, vcc, 0, v9, vcc")
        for op, r in (("v_max_u32", 8), ("v_min_u32", 16), ("v_max_u32", 17), ("v_add_u32", 18), ("v_add_u32", 9)):
            for n in (8, 4, 2, 1):
                a(f"{op}_dpp v{r}, v{r}, v{r} row_ror:{n} {DPPM}")
            cross_rows(op, r, 10)
        a("v_readfirstlane_b32 s50, v8")
        a("v_readfirstlane_b32 s51, v16")
        a("v_readfirstlane_b32 s53, v17")
        a("v_readfirstlane_b32 s52, v18")
        a("v_readfirstlane_b32 s56, v9")
        a("s_nop 3")
        p = OPT["probe"]
        if p == 1:
            a("s_sub_u32 s54, s50, s51")
        elif p == 2:
            a("s_sub_u32 s54, s60, s51")
        elif p == 3:
            a("s_mul_i32 s54, s52, 1")
        elif p == 4:
            a("s_lshr_b32 s54, s56, 1")
        elif p >= 100:
            a("s_sub_u32 s54, s53, s51")
        else:
            a("s_mov_b32 s54, 0")
        a("s_min_u32 s54, s54, 10000")
        a("s_add_u32 s54, s54, 600")
        a.label("L_spin")
        a("s_memrealtime s[62:63]")
        a("s_waitcnt lgkmcnt(0)")
        a("s_sub_u32 s55, s62, s60")
        a("s_cmp_lt_u32 s55, s54")
        a("s_cbranch_scc1 L_spin")
    if OPT["stamps"]:
        a.label("L_dump")
        a("s_mov_b64 exec, -1")
        stamp(15)
        a(f"s_getreg_b32 s{sT0}, hwreg(HW_REG_XCC_ID)")
        a(f"v_writelane_b32 v126, s{sT0}, 14")
        a(f"s_lshl3_add_u32 s{sT0}, s2, s{sWAVE}")
        a(f"s_lshl_b32 s{sT0}, s{sT0}, 6")
        base(sBA, sWS, sT0, STAMP)
        a("v_lshlrev_b32 v4, 2, v0")
        set_exec(0xFFFF)
        a(f"global_store_dword v4, v126, {sp(sBA)}")
    a.label("L_exit")
    a("s_endpgm")


a(".p2align 12")
a.label("L_code0")
sec_wo()
sec_ln()
a(".p2align 8")
a(f".fill (4096-768-(.-L_code0))/4, 4, 0xbf810000")
a(f".type {NAME}_kernel,@function")
sec_entry()
sec_gm()
sec_gq()
sec_gb()
a(".p2align 12")
sec_att()
sec_down()
a(".p2align 12")
sec_ffn()
sec_dump()

body = a.finish()
hdr = open("cdna_kernels/" + NAME + ".s.ref").read().split("; Override launch geometry")[0]
out = hdr + f"""; Generated by a hand-written generator script; one persistent launch of 256 workgroups.
; @launch grid=(256,1,1) block=(512,1,1) lds={OPT['lds']}
.amdgcn_target "amdgcn-amd-amdhsa--gfx950"
.text
.globl {NAME}_kernel
{body}.section .rodata,"a"
.p2align 6
.amdhsa_kernel {NAME}_kernel
  .amdhsa_next_free_vgpr {OPT['vgpr']}
  .amdhsa_next_free_sgpr 102
  .amdhsa_accum_offset {OPT['vgpr']}
  .amdhsa_group_segment_fixed_size 0
  .amdhsa_kernarg_size 112
  .amdhsa_user_sgpr_count 2
  .amdhsa_user_sgpr_kernarg_segment_ptr 1
  .amdhsa_system_sgpr_workgroup_id_x 1
  .amdhsa_float_denorm_mode_32 3
.end_amdhsa_kernel
"""
open(sys.argv[1], "w").write(out)
```

```python
import sys
from asmlib import Asm

NAME = "adaLN_cond__sliding_block_cached__swiglu_ffn__decode"
OPT = dict(stamps=0, lds=84000, nt=1, limit=20000, pf=1, pfa=1, pfg=1, athr=8, nrep=32, qsleep=2, vgpr=160, psleep=0, ahelp=1, bhelp=1, wowait=1, pfpol=2, wpol=1, wopf=1, epair=1, probe=0, pcls=0)
for arg in sys.argv[2:]:
    k, v = arg.split("=")
    assert k in OPT, k
    OPT[k] = int(v, 0)
if OPT["probe"]:
    OPT["vgpr"] = 168
NT = " nt" if OPT["nt"] else ""
NREP = OPT["nrep"]
NTW = " nt" if OPT["wpol"] else ""

H1 = 0x1000
CF = 0x3000
QS = 0x4000
H2G = 0x10000
FL = 0x20000
assert FL + 32 * NREP * 128 <= 0x60000
CLR = 0x60000
MODB = CLR
H4 = MODB + 0x4000
ACT = H4 + 0x8000
X1 = ACT + 0x4000
H3ML = X1 + 0x1000
H3O = H3ML + 0x1000
CLR_END = H3O + 0x20000
CLR_PER_WG = 7
assert CLR_END - CLR <= 32 * CLR_PER_WG * 1024
STAMP = 0x100000

LO = 0
LQ = 20480
LQF = LQ + 1024
LM = LQF + 64
LL = LM + 128
LY = 22016
LU = LY + 2048
LV = LU + 2048
LST = LV + 2048

sX, sK, sV, sWQ, sWO, sWG, sWU = 4, 6, 8, 10, 12, 16, 18
sWD, sC, sWM, sOUT, sDBG, sWS = 20, 22, 24, 26, 28, 30
sG, sM, sWAVE, sTAG = 14, 15, 3, 28
sLO, sHI, sCNT, sT0 = 96, 97, 98, 99
sBA, sBB, sBC = 32, 34, 36
sMK = 38
sT1, sT2, sT3, sT4 = 40, 41, 42, 43
sLOCAL, sKIND = 29, 44
sPC = 46
sSTAMP = 48 if False else 64
sQ = 32

LOG2E = 0x3FB8AA3B
SCALE = 0x3DB504F3
INV512 = 0x3B000000
EPS = 0x3727C5AC


def sp(r):
    return f"s[{r}:{r + 1}]"


def vr(a, n):
    return f"v[{a}:{a + n - 1}]" if n > 1 else f"v{a}"


a = Asm()
_uid = [0]


def uid(p):
    _uid[0] += 1
    return f"L_{p}{_uid[0]}"


CLS = [0]


def stamp(i):
    if OPT["probe"] == 100 + i and OPT["pcls"] == CLS[0]:
        a("s_memrealtime s[100:101]")
        a("s_waitcnt lgkmcnt(0)")
        a("v_writelane_b32 v161, s100, 0")
    if OPT["stamps"]:
        a("s_memrealtime s[100:101]")
        a("s_waitcnt lgkmcnt(0)")
        a(f"v_writelane_b32 v126, s100, {i}")


def finish_wave():
    a("s_branch L_dump" if OPT["stamps"] or OPT["probe"] else "s_endpgm")


def base(dst, ptr, off_s=None, off_imm=0):
    if off_s is not None and off_imm:
        a(f"s_add_u32 s{dst}, s{off_s}, {off_imm:#x}")
        a(f"s_add_u32 s{dst}, s{ptr}, s{dst}")
    elif off_s is not None:
        a(f"s_add_u32 s{dst}, s{ptr}, s{off_s}")
    else:
        a(f"s_add_u32 s{dst}, s{ptr}, {off_imm:#x}")
    a(f"s_addc_u32 s{dst + 1}, s{ptr + 1}, 0")


def set_exec(mask):
    if mask in (-1, 1):
        a(f"s_mov_b64 exec, {mask}")
    else:
        lo, hi = mask & 0xFFFFFFFF, mask >> 32
        a(f"s_mov_b32 exec_lo, {lo:#x}")
        a(f"s_mov_b32 exec_hi, {hi:#x}")


def prefetch(v, b, late=False):
    if not late and not OPT["epair"]:
        a(f"global_load_dword v127, v{v}, {sp(b)} nt")
        return
    if OPT["pfpol"] == 1:
        a(f"global_load_dword v127, v{v}, {sp(b)}")
    else:
        a(f"global_load_dword v127, v{v}, {sp(b)} nt")
    if OPT["pfpol"] == 2:
        a(f"global_load_dword v127, v{v}, {sp(b)} sc1")


def sels():
    a(f"s_mov_b32 s{sLO}, 0x05040100")
    a(f"s_mov_b32 s{sHI}, 0x07060302")


def perms8(W, F, waits=None):
    for x in range(4):
        if waits is not None:
            a(f"s_waitcnt vmcnt({waits[x]})")
        for e in range(8):
            sel = sHI if e & 1 else sLO
            a(f"v_perm_b32 v{F + 4 * e + x}, v{W + 4 * (2 * x + 1) + (e >> 1)}, v{W + 4 * (2 * x) + (e >> 1)}, s{sel}")


def unpack(dst, src, n):
    for i in range(n):
        a(f"v_lshlrev_b32 v{dst + 2 * i}, 16, v{src + i}")
        a(f"v_and_b32 v{dst + 2 * i + 1}, 0xffff0000, v{src + i}")


def round_bf16(regs):
    if len(regs) == 1:
        a(f"v_cvt_pk_bf16_f32 v{regs[0]}, v{regs[0]}, v{regs[0]}")
        a(f"v_lshlrev_b32 v{regs[0]}, 16, v{regs[0]}")
        return
    for i in range(0, len(regs), 2):
        a(f"v_cvt_pk_bf16_f32 v{regs[i + 1]}, v{regs[i]}, v{regs[i + 1]}")
    for i in range(0, len(regs), 2):
        a(f"v_lshlrev_b32 v{regs[i]}, 16, v{regs[i + 1]}")
        a(f"v_and_b32 v{regs[i + 1]}, 0xffff0000, v{regs[i + 1]}")


def poll_begin():
    lab = uid("poll")
    a(f"s_mov_b32 s{sCNT}, {OPT['limit']}")
    a.label(lab)
    return lab


def poll_mid(cnt="vmcnt(0)", sleep=None):
    sleep = OPT["psleep"] if sleep is None else sleep
    if sleep and cnt.startswith("vm"):
        a(f"s_sleep {sleep}")
    a(f"s_sub_u32 s{sCNT}, s{sCNT}, 1")
    a(f"s_cselect_b64 {sp(sMK)}, 0, -1")
    a(f"s_waitcnt {cnt}")


def poll_end(lab):
    a(f"s_and_b64 vcc, vcc, {sp(sMK)}")
    a(f"s_cbranch_scc1 {lab}")


def sentinel_ops(regs, tmp):
    regs = list(regs)
    out = []
    if len(regs) == 2:
        out.append(f"v_max_u32 v{tmp}, v{regs[0]}, v{regs[1]}")
    else:
        out.append(f"v_max3_u32 v{tmp}, v{regs[0]}, v{regs[1]}, v{regs[2]}")
        rest = regs[3:]
        while len(rest) >= 2:
            out.append(f"v_max3_u32 v{tmp}, v{tmp}, v{rest[0]}, v{rest[1]}")
            rest = rest[2:]
        if rest:
            out.append(f"v_max_u32 v{tmp}, v{tmp}, v{rest[0]}")
    out.append(f"v_cmp_eq_u32 vcc, -1, v{tmp}")
    return out


def interleave(major, minor, per):
    minor = list(minor)
    for ins in major:
        a(ins)
        for _ in range(per):
            if minor:
                a(minor.pop(0))
    for ins in minor:
        a(ins)


def make_tag(vE):
    a(f"v_readfirstlane_b32 s{sTAG}, v{vE}")
    a("s_nop 1")
    a(f"s_mul_i32 s{sTAG}, s{sTAG}, 1664525")
    a(f"s_add_u32 s{sTAG}, s{sTAG}, 1013904223")


DPPM = "row_mask:0xf bank_mask:0xf"


def row_allsum(v):
    for n in (8, 4, 2, 1):
        a(f"v_add_f32_dpp v{v}, v{v}, v{v} row_ror:{n} {DPPM}")


def cross_rows(op, v, tmp):
    a(f"v_mov_b32 v{tmp}, v{v}")
    a(f"v_permlane16_swap_b32 v{tmp}, v{v}")
    a(f"{op} v{v}, v{v}, v{tmp}")
    a(f"v_mov_b32 v{tmp}, v{v}")
    a(f"v_permlane32_swap_b32 v{tmp}, v{v}")
    a(f"{op} v{v}, v{v}, v{tmp}")


def mfma(d, x, y, c=None):
    return f"v_mfma_f32_16x16x32_bf16 {vr(d, 4)}, {vr(x, 4)}, {vr(y, 4)}, {vr(c, 4) if c is not None else 0}"


def diagX_reduce(ACC, T):
    for e in range(8):
        a(f"v_add_f32_dpp v{T + e}, v{ACC + 4 * e + 1}, v{ACC + 4 * e} row_shl:4 {DPPM}")
    for e in range(8):
        a(f"v_add_f32_dpp v{T + e}, v{ACC + 4 * e + 2}, v{T + e} row_shl:8 {DPPM}")
    for e in range(8):
        a(f"v_add_f32_dpp v{T + e}, v{ACC + 4 * e + 3}, v{T + e} row_shl:12 {DPPM}")


def sum8_b64(r):
    for t in range(4):
        a(f"v_pk_add_f32 v[{r + 4 * t}:{r + 4 * t + 1}], v[{r + 4 * t}:{r + 4 * t + 1}], v[{r + 4 * t + 2}:{r + 4 * t + 3}]")
    a(f"v_pk_add_f32 v[{r}:{r + 1}], v[{r}:{r + 1}], v[{r + 4}:{r + 5}]")
    a(f"v_pk_add_f32 v[{r + 8}:{r + 9}], v[{r + 8}:{r + 9}], v[{r + 12}:{r + 13}]")
    a(f"v_pk_add_f32 v[{r}:{r + 1}], v[{r}:{r + 1}], v[{r + 8}:{r + 9}]")


def modb_loads():
    a(f"global_load_dwordx4 v[132:135], v124, {sp(sBA)} offset:-4096 sc1")
    a(f"global_load_dwordx4 v[136:139], v124, {sp(sBA)} sc1")
    a(f"global_load_dwordx4 v[140:143], v125, {sp(sBA)} sc1")


W, F, ACC = 16, 48, 16
KR, VR, SA, VT, OA = 16, 48, 80, 16, 80


def sec_ffn():
    CLS[0] = 1
    a.label("L_FF")
    a(f"s_cmp_ge_u32 s{sM}, 14")
    a("s_cbranch_scc1 L_fin2")
    a(f"s_mul_i32 s{sT0}, s{sG}, 14")
    a(f"s_add_u32 s{sT0}, s{sT0}, s{sM}")
    a(f"s_lshl_b32 s{sT0}, s{sT0}, 5")
    a(f"s_mul_i32 s{sT1}, s{sT4}, {128 * 3584}")
    a(f"s_add_u32 s{sT0}, s{sT0}, s{sT1}")
    a(f"s_add_u32 s{sT0}, s{sT0}, 3584")
    a("v_lshrrev_b32 v6, 1, v3")
    a("v_and_b32 v7, 1, v3")
    a("v_and_b32 v5, 3, v1")
    a("v_lshlrev_b32 v8, 6, v6")
    a("v_lshl_add_u32 v8, v7, 2, v8")
    a("v_lshl_add_u32 v8, v5, 3, v8")
    a("v_mul_u32_u24 v10, 3584, v8")
    a("v_and_b32 v9, 1, v2")
    a("v_lshl_add_u32 v10, v9, 4, v10")
    a(f"v_add_u32 v10, s{sT0}, v10")
    a("v_mov_b32 v11, 0")
    a("v_cmp_lt_u32 vcc, 1, v2")
    a(f"v_mov_b32 v12, s{sWG}")
    a(f"v_mov_b32 v13, s{sWG + 1}")
    a(f"v_mov_b32 v14, s{sWU}")
    a(f"v_mov_b32 v15, s{sWU + 1}")
    a("v_cndmask_b32 v12, v12, v14, vcc")
    a("v_cndmask_b32 v13, v13, v15, vcc")
    a("v_lshl_add_u64 v[12:13], v[10:11], 0, v[12:13]      ; row +1")
    a(f"v_mov_b32 v10, {2 * 3584}")
    a("v_lshl_add_u64 v[14:15], v[10:11], 0, v[12:13]      ; row +3")
    a(f"v_mov_b32 v10, {32 * 3584}")
    a(f"s_lshl_b32 s{sT0}, s{sT4}, 10")
    a("v_and_b32 v9, 15, v0")
    a("s_barrier")
    for half in range(2):
        for jj in range(4):
            r, off = ((12, 3584 * (jj - 1)) if jj < 3 else (14, 0))
            a(f"global_load_dwordx4 {vr(W + 16 * half + 4 * jj, 4)}, v[{r}:{r + 1}], off offset:{off}{NTW}")
        if half == 0:
            a("v_lshl_add_u64 v[12:13], v[10:11], 0, v[12:13]")
            a("v_lshl_add_u64 v[14:15], v[10:11], 0, v[14:15]")
    a("v_lshlrev_b32 v12, 4, v9")
    a("v_lshl_add_u32 v12, v3, 12, v12")
    a("s_waitcnt vmcnt(8)")
    for ins in sentinel_ops(range(132, 144), 14):
        a(ins)
    a("s_cbranch_vccz L_FF1")
    lab = poll_begin()
    modb_loads()
    poll_mid()
    for ins in sentinel_ops(range(132, 144), 14):
        a(ins)
    poll_end(lab)
    a.label("L_FF1")
    stamp(7)
    XV, GA, P0, P1 = 96, 104, 112, 84
    unpack(XV, 128, 4)
    unpack(GA, 132, 4)
    unpack(P0, 140, 4)
    for i in range(8):
        a(f"v_add_f32 v{P0 + i}, 1.0, v{P0 + i}")
    for i in range(4):
        a(f"v_cvt_pk_bf16_f32 v{92 + i}, v{P0 + 2 * i}, v{P0 + 2 * i + 1}")
    unpack(P0, 92, 4)
    perms8(W, F, waits=[6, 4, 2, 0])
    stamp(9)
    for e in range(8):
        a(mfma(ACC + 4 * e, 136, F + 4 * e))
    a(f"s_lshl_b32 s{sT1}, s{sT4}, 9")
    a(f"s_add_u32 s{sT1}, s{sT1}, {LY}")
    a("v_lshlrev_b32 v5, 7, v3")
    a("v_lshl_add_u32 v5, v2, 5, v5")
    a(f"v_add_u32 v5, s{sT1}, v5")
    diagX_reduce(ACC, 80)
    for e in range(8):
        a(mfma(ACC + 4 * e, 92, F + 4 * e))
    set_exec(0x000F000F000F000F)
    a(f"ds_write_b128 v5, v[80:83] offset:{LV - LY}")
    a(f"ds_write_b128 v5, v[84:87] offset:{LV - LY + 16}")
    set_exec(-1)
    a("s_waitcnt lgkmcnt(0)")
    diagX_reduce(ACC, 80)
    set_exec(0x000F000F000F000F)
    a(f"ds_write_b128 v5, v[80:83] offset:{LU - LY}")
    a(f"ds_write_b128 v5, v[84:87] offset:{LU - LY + 16}")
    set_exec(-1)
    a("s_waitcnt lgkmcnt(0)")
    a("s_barrier                      ; 3: u, v partials")
    for i in range(8):
        a(f"v_mul_f32 v{P1 + i}, v{GA + i}, v{P0 + i}")
    for i in range(8):
        a(f"v_mul_f32 v{P0 + i}, v{XV + i}, v{P0 + i}")
    a("v_and_b32 v6, 1, v0")
    a("v_lshlrev_b32 v6, 4, v6")
    a("v_mov_b32 v7, 0x3f80")
    a("v_lshlrev_b32 v6, v6, v7")
    a("v_lshrrev_b32 v7, 1, v9")
    for x in range(8):
        a(f"v_cmp_eq_u32 vcc, {x}, v7")
        a(f"v_cndmask_b32 v{(120 + x) if x < 4 else (88 + x)}, 0, v6, vcc")
    base(sBA, sWS, sT0, H4)
    base(sBB, sWS, sT0, X1)
    a("v_add_u32 v13, 0x4000, v12")
    a(f"s_lshl_b32 s{sT1}, s{sT4}, 2")
    a(f"s_add_u32 s{sT1}, s{sT1}, {LST}")
    a("v_and_b32 v6, 3, v1")
    a("v_lshlrev_b32 v6, 5, v6")
    a("v_lshl_add_u32 v6, v3, 3, v6")
    a(f"v_add_u32 v6, s{sT1}, v6")
    stamp(8)
    lab = poll_begin()
    for t in range(4):
        for hf in range(2):
            a(f"global_load_dwordx4 {vr(16 + 8 * t + 4 * hf, 4)}, v{12 + hf}, {sp(sBA)} offset:{256 * t} sc1")
    poll_mid()
    AT = 8
    seq = [mfma(80, 120, 16), mfma(8, 120, 24), mfma(80, 120, 20, 80), mfma(8, 120, 28, 8),
           mfma(80, 92, 32, 80), mfma(8, 92, 40, 8), mfma(80, 92, 36, 80), mfma(8, 92, 44, 8)]
    interleave(seq, sentinel_ops(range(16, 48), 14), 2)
    poll_end(lab)
    att = [80, 82, 8, 10]
    for i in range(4):
        a(f"v_pk_fma_f32 v[{P0 + 2 * i}:{P0 + 2 * i + 1}], v[{att[i]}:{att[i] + 1}], v[{P1 + 2 * i}:{P1 + 2 * i + 1}], v[{P0 + 2 * i}:{P0 + 2 * i + 1}]")
    for i in range(4):
        a(f"v_cvt_pk_bf16_f32 v{84 + i}, v{P0 + 2 * i}, v{P0 + 2 * i + 1}")
    st = []
    for i in range(4):
        st.append(f"v_pk_fma_f32 v[{XV + 2 * i}:{XV + 2 * i + 1}], v[{att[i]}:{att[i] + 1}], v[{GA + 2 * i}:{GA + 2 * i + 1}], v[{XV + 2 * i}:{XV + 2 * i + 1}]")
    st.append(f"v_pk_mul_f32 v[8:9], v[{XV}:{XV + 1}], v[{XV}:{XV + 1}]")
    st.append(f"v_pk_add_f32 v[14:15], v[{XV}:{XV + 1}], v[{XV + 2}:{XV + 3}]")
    for i in range(1, 4):
        st.append(f"v_pk_fma_f32 v[8:9], v[{XV + 2 * i}:{XV + 2 * i + 1}], v[{XV + 2 * i}:{XV + 2 * i + 1}], v[8:9]")
        if i > 1:
            st.append(f"v_pk_add_f32 v[14:15], v[14:15], v[{XV + 2 * i}:{XV + 2 * i + 1}]")
    st.append("v_add_f32 v8, v8, v9")
    st.append("v_add_f32 v14, v14, v15")
    st.append("v_permlane32_swap_b32 v14, v8")
    st.append("v_add_f32 v14, v14, v8")
    interleave([mfma(ACC + 4 * e, 84, F + 4 * e) for e in range(8)], st, 2)
    d1 = [f"v_add_f32_dpp v{104 + e}, v{ACC + 4 * e + 1}, v{ACC + 4 * e} row_shl:4 {DPPM}" for e in range(8)]
    d2 = [f"v_add_f32_dpp v{104 + e}, v{ACC + 4 * e + 2}, v{104 + e} row_shl:8 {DPPM}" for e in range(8)]
    d3 = [f"v_add_f32_dpp v{104 + e}, v{ACC + 4 * e + 3}, v{104 + e} row_shl:12 {DPPM}" for e in range(8)]
    for ins in d1[:3]:
        a(ins)
    a(f"v_add_f32_dpp v14, v14, v14 quad_perm:[1,0,3,2] {DPPM}")
    for ins in d1[3:6]:
        a(ins)
    a(f"v_add_f32_dpp v14, v14, v14 quad_perm:[2,3,0,1] {DPPM}")
    for ins in d2[:3]:
        a(ins)
    a("v_mov_b32 v15, v14")
    for ins in d1[6:] + d2[3:5]:
        a(ins)
    a("v_permlane16_swap_b32 v15, v14")
    for ins in d2[5:]:
        a(ins)
    a("v_add_f32 v14, v14, v15")
    for ins in d3:
        a(ins)
    set_exec(0x000F000F000F000F)
    a("ds_write_b128 v5, v[104:107]")
    a("ds_write_b128 v5, v[108:111] offset:16")
    set_exec(0x0000111100001111)
    a("ds_write_b32 v6, v14")
    set_exec(-1)
    a("s_waitcnt lgkmcnt(0)")
    a("s_barrier")
    stamp(10)
    a(f"s_cmp_lg_u32 s2, {(16 + 13) * 8}")
    a("s_cbranch_scc1 L_fin2")
    for i in range(4):
        a(f"v_cvt_pk_bf16_f32 v{16 + i}, v{XV + 2 * i}, v{XV + 2 * i + 1}")
    a(f"global_store_dwordx4 v124, v[16:19], {sp(sBB)} sc1")
    a.label("L_fin2")
    finish_wave()

    a.label("L_FF0")
    a(f"s_cmp_ge_u32 s{sM}, 14")
    a("s_cbranch_scc1 L_fin2")
    a(f"s_cmp_lg_u32 s{sWAVE}, 0")
    a("s_cbranch_scc1 L_fin2")
    a("v_bfe_u32 v8, v0, 3, 2")
    a("v_lshlrev_b32 v5, 7, v8")
    a("v_and_b32 v6, 7, v0")
    a("v_lshl_add_u32 v5, v6, 3, v5")
    a("v_lshrrev_b32 v6, 5, v0")
    a("v_lshl_add_u32 v5, v6, 2, v5")
    a("v_add_u32 v6, 64, v5")
    a("v_lshlrev_b32 v8, 5, v8")
    a(f"s_mul_i32 s{sT0}, s{sG}, 14")
    a(f"s_add_u32 s{sT0}, s{sT0}, s{sM}")
    a(f"s_lshl_b32 s{sT0}, s{sT0}, 7")
    base(sBA, sWS, sT0, ACT)
    a("v_lshlrev_b32 v7, 2, v0")
    a(f"s_mov_b32 s{sT1}, {INV512:#x}")
    a("s_barrier                      ; 3")
    for k, L0 in enumerate((LU, LV)):
        o = L0 // 256
        a(f"ds_read2st64_b32 v[{16 + 8 * k}:{17 + 8 * k}], v5 offset0:{o} offset1:{o + 2}")
        a(f"ds_read2st64_b32 v[{18 + 8 * k}:{19 + 8 * k}], v5 offset0:{o + 4} offset1:{o + 6}")
        a(f"ds_read2st64_b32 v[{20 + 8 * k}:{21 + 8 * k}], v6 offset0:{o} offset1:{o + 2}")
        a(f"ds_read2st64_b32 v[{22 + 8 * k}:{23 + 8 * k}], v6 offset0:{o + 4} offset1:{o + 6}")
    a("s_waitcnt lgkmcnt(0)")
    for k in range(4):
        a(f"v_pk_add_f32 v[{16 + 4 * k}:{17 + 4 * k}], v[{16 + 4 * k}:{17 + 4 * k}], v[{18 + 4 * k}:{19 + 4 * k}]")
    for k in range(4):
        a(f"v_add_f32 v{40 + k}, v{16 + 4 * k}, v{17 + 4 * k}")
    a("s_barrier                      ; 4")
    o = LY // 256
    a(f"ds_read_b128 v[24:27], v8 offset:{LST}")
    a(f"ds_read_b128 v[28:31], v8 offset:{LST + 16}")
    a(f"ds_read2st64_b32 v[16:17], v5 offset0:{o} offset1:{o + 2}")
    a(f"ds_read2st64_b32 v[18:19], v5 offset0:{o + 4} offset1:{o + 6}")
    a(f"ds_read2st64_b32 v[20:21], v6 offset0:{o} offset1:{o + 2}")
    a(f"ds_read2st64_b32 v[22:23], v6 offset0:{o + 4} offset1:{o + 6}")
    a("s_waitcnt lgkmcnt(4)")
    a("v_pk_add_f32 v[24:25], v[24:25], v[26:27]")
    a("v_pk_add_f32 v[28:29], v[28:29], v[30:31]")
    a("v_add_f32 v24, v24, v25")
    a("v_add_f32 v28, v28, v29")
    a(f"v_mul_f32 v24, s{sT1}, v24             ; mean")
    a("v_mul_f32 v25, v24, v24")
    a(f"v_fma_f32 v28, v28, s{sT1}, -v25       ; variance")
    a("v_max_f32 v28, 0, v28")
    a(f"v_add_f32 v28, {EPS:#x}, v28")
    a("v_rsq_f32 v28, v28")
    a("s_waitcnt lgkmcnt(0)")
    a("v_pk_add_f32 v[16:17], v[16:17], v[18:19]")
    a("v_pk_add_f32 v[20:21], v[20:21], v[22:23]")
    a("v_add_f32 v16, v16, v17")
    a("v_add_f32 v17, v20, v21")
    a("v_fma_f32 v16, -v24, v40, v16")
    a("v_fma_f32 v17, -v24, v41, v17")
    a("v_fma_f32 v16, v16, v28, v42          ; gate")
    a("v_fma_f32 v17, v17, v28, v43          ; up")
    a(f"v_mul_f32 v18, {0x80000000 | LOG2E:#x}, v16")
    a("v_exp_f32 v18, v18")
    a("v_mul_f32 v16, v16, v17")
    a("v_add_f32 v18, 1.0, v18")
    a("v_rcp_f32 v18, v18")
    a("v_mul_f32 v16, v16, v18")
    a("v_mov_b32 v17, v16")
    a("v_permlane32_swap_b32 v16, v17")
    a("v_cvt_pk_bf16_f32 v16, v16, v17")
    set_exec(0xFFFFFFFF)
    a(f"global_store_dword v7, v16, {sp(sBA)} sc1")
    stamp(11)
    finish_wave()


def wq_pf():
    a(f"s_lshl_b32 s{sT0}, s{sT0}, 6")
    a(f"s_add_u32 s{sT0}, s{sT0}, s{sT1}")
    a(f"s_lshl_b32 s{sT0}, s{sT0}, 10")
    a("v_lshlrev_b32 v8, 13, v14")
    a("v_lshl_add_u32 v8, v15, 7, v8")
    a(f"v_add_u32 v8, s{sT0}, v8")
    prefetch(8, sWQ)


def sec_entry():
    a(f"{NAME}_kernel:")
    a("s_load_dwordx16 s[4:19], s[0:1], 0")
    a("s_load_dwordx8 s[20:27], s[0:1], 64")
    a("s_load_dwordx2 s[30:31], s[0:1], 104")
    if OPT["stamps"]:
        a("v_mov_b32 v126, 0")
        a("s_memrealtime s[100:101]")
    if OPT["probe"]:
        a("s_memrealtime s[100:101]")
    a("s_cmp_ge_u32 s2, 256")
    a("s_cbranch_scc1 L_exit")
    a("v_lshrrev_b32 v1, 6, v0")
    if OPT["pf"]:
        a(f"s_getpc_b64 {sp(sPC)}")
        a.label("L_pc0")
        a("v_lshlrev_b32 v2, 7, v0")
    a(f"v_readfirstlane_b32 s{sWAVE}, v1")
    if OPT["pf"]:
        a(f"s_sub_u32 s{sPC}, s{sPC}, L_pc0-L_code0")
        a(f"s_subb_u32 s{sPC + 1}, s{sPC + 1}, 0")
        a("v_cmp_gt_u32 vcc, (L_exit-L_code0)/128, v0")
        a("s_cbranch_vccz L_nopf")
        a("s_mov_b64 exec, vcc")
        a(f"global_load_dword v127, v2, {sp(sPC)}")
        a("s_mov_b64 exec, -1")
        a.label("L_nopf")
    a("v_and_b32 v0, 63, v0")
    a(f"s_and_b32 s{sT1}, s2, 7")
    a(f"s_lshr_b32 s{sT2}, s2, 3")
    a("v_lshrrev_b32 v1, 2, v0        ; l>>2")
    a("v_and_b32 v2, 3, v0            ; l&3")
    a("v_lshrrev_b32 v3, 4, v0        ; l>>4")
    a("v_mov_b32 v4, 0")
    a("v_and_b32 v5, 3, v1")
    a("v_lshrrev_b32 v14, 3, v0")
    a("v_and_b32 v15, 7, v0")
    a("s_cmp_lt_u32 s2, 128")
    a("s_cbranch_scc1 L_G")
    a(f"s_sub_u32 s{sT2}, s{sT2}, 16             ; a = 4b + s")
    a(f"s_and_b32 s{sT0}, s{sT2}, 12")
    a(f"s_lshl_b32 s{sT0}, s{sT0}, 1")
    a(f"s_add_u32 s{sT0}, s{sT0}, s{sT1}")
    a(f"s_lshl_b32 s{sT0}, s{sT0}, 4")
    a(f"s_and_b32 s{sT3}, s{sT2}, 3")
    a(f"s_add_u32 s{sT0}, s{sT0}, s{sT3}")
    a(f"s_lshl_b32 s{sT0}, s{sT0}, 3")
    a(f"s_add_u32 s{sT0}, s{sT0}, s{sWAVE}")
    a(f"s_lshl_b32 s{sT0}, s{sT0}, 13")
    a(f"s_add_u32 s{sT0}, s{sT0}, {3072 * 256 + 4096}")
    a("v_lshlrev_b32 v6, 8, v5")
    a("v_lshl_add_u32 v6, v3, 6, v6")
    a("v_lshl_add_u32 v6, v2, 4, v6")
    a("v_lshlrev_b32 v7, 4, v0")
    a("v_lshlrev_b32 v8, 2, v2")
    a(f"ds_write_b32 v8, v4 offset:{LQF}")
    a("s_waitcnt lgkmcnt(0)")
    a("s_barrier                      ; 0")
    base(sBA, sK, sT0)
    base(sBB, sV, sT0)
    a(f"global_load_dword v12, v4, {sp(sWS)} sc1      ; epoch")
    if OPT["ahelp"]:
        a(f"s_cmp_lg_u32 s{sWAVE}, 0")
        a("s_cbranch_scc1 L_nopfq")
        a(f"s_add_u32 s{sT0}, s{sT2}, 48")
        wq_pf()
        a.label("L_nopfq")
    if OPT["athr"] < 8:
        a(f"s_cmp_lt_u32 s{sWAVE}, {OPT['athr']}")
        a("s_cbranch_scc1 L_Ald")
        a("s_waitcnt vmcnt(0)")
        a.label("L_Ald")
    for u in range(8):
        a(f"global_load_dwordx4 {vr(KR + 4 * u, 4)}, v6, {sp(sBA)} offset:{1024 * u - 4096}{NT}")
    for u in range(8):
        a(f"global_load_dwordx4 {vr(VR + 4 * u, 4)}, v7, {sp(sBB)} offset:{1024 * u - 4096}{NT}")
    a("s_branch L_A2")
    a.label("L_G")
    a(f"s_and_b32 s{sT3}, s{sT2}, 1")
    a(f"s_lshr_b32 s{sT0}, s{sT2}, 2")
    a(f"s_and_b32 s{sT0}, s{sT0}, 2")
    a(f"s_or_b32 s{sKIND}, s{sT3}, s{sT0}")
    if OPT["pfa"]:
        a("v_lshrrev_b32 v6, 1, v0")
        a(f"v_lshl_add_u32 v6, s{sT2}, 5, v6")
        a("v_mul_u32_u24 v6, 6144, v6")
        a("v_and_b32 v7, 1, v0")
        a("v_lshl_add_u32 v6, v7, 10, v6")
        a(f"v_lshl_add_u32 v6, s{sT1}, 7, v6")
        a(f"s_cmp_lg_u32 s{sWAVE}, 0")
        a("s_cbranch_scc1 L_nopfa")
        a("s_waitcnt lgkmcnt(0)")
        prefetch(6, sWM)
        a.label("L_nopfa")
    a(f"s_bfe_u32 s{sT0}, s{sT2}, 0x20001")
    a(f"s_lshl2_add_u32 s{sCNT}, s{sT1}, s{sT0}      ; p = 4g + ((m>>1)&3)")
    a(f"s_cmp_eq_u32 s{sKIND}, 1")
    a("s_cbranch_scc1 L_GA")
    a(f"s_sub_u32 s{sT4}, s{sWAVE}, 1")
    a(f"s_cmp_ge_u32 s{sT4}, 4")
    a("s_cbranch_scc1 L_nopfw")
    a(f"s_lshr_b32 s{sT0}, s{sT2}, 1")
    a(f"s_lshl2_add_u32 s{sT0}, s{sT3}, s{sT0}")
    a(f"s_lshl2_add_u32 s{sT0}, s{sT0}, s{sT4}")
    a("s_waitcnt lgkmcnt(0)")
    wq_pf()
    a.label("L_nopfw")
    a(f"s_cmp_eq_u32 s{sKIND}, 3")
    a("s_cbranch_scc1 L_GB")
    a(f"s_lshl_b32 s{sT0}, s{sWAVE}, 9")
    a(f"s_add_u32 s{sT0}, s{sT0}, s{sT1}")
    a(f"s_lshl4_add_u32 s{sT0}, s{sT0}, s{sT2}")
    a(f"s_lshl_b32 s{sT0}, s{sT0}, 6")
    a("v_lshlrev_b32 v6, 16, v14")
    a("v_lshl_add_u32 v6, v15, 4, v6")
    a(f"s_movk_i32 s{sT3}, 8192")
    a(f"s_lshr_b32 s{sT4}, s{sT2}, 2")
    a(f"s_lshl2_add_u32 s{sT4}, s{sT1}, s{sT4}")
    a(f"s_mul_i32 s{sT4}, s{sT4}, {NREP * 128}")
    a(f"s_and_b32 s{sCNT}, s{sT2}, 2")
    a(f"s_add_u32 s{sCNT}, s{sCNT}, s{sWAVE}")
    a(f"s_lshl2_add_u32 s{sT4}, s{sCNT}, s{sT4}")
    a(f"s_add_u32 s{sT4}, s{sT4}, {FL:#x}")
    a(f"v_and_b32 v96, {NREP - 1}, v0")
    a(f"v_lshl_add_u32 v96, v96, 7, s{sT4}")
    a("s_waitcnt lgkmcnt(0)")
    base(sBB, sWQ, sT0)
    a(f"global_load_dword v12, v4, {sp(sWS)} sc1      ; epoch")
    a(f"s_cmp_lg_u32 s{sWAVE}, 1")
    a("s_cbranch_scc1 L_G_ld")
    a(f"global_load_dword v127, v96, {sp(sWS)} sc1")
    a.label("L_G_ld")
    for j in range(8):
        a(f"global_load_dwordx4 {vr(W + 4 * j, 4)}, v6, {sp(sBB)}{NT}")
        if j < 7:
            a(f"v_add_u32 v6, s{sT3}, v6")
    a(f"s_cmp_eq_u32 s{sKIND}, 1")
    a("s_cbranch_scc0 L_GQ2")
    a("s_branch L_GM2")
    a.label("L_GA")
    a(f"s_cmp_ge_u32 s{sWAVE}, 4")
    a("s_cbranch_scc1 L_GQA")
    a(f"s_lshl_b32 s{sT0}, s{sCNT}, 5")
    a(f"s_mul_i32 s{sT3}, s{sWAVE}, {128 * 6144}")
    a(f"s_add_u32 s{sT0}, s{sT0}, s{sT3}")
    a("v_lshlrev_b32 v5, 10, v5")
    a("v_lshl_add_u32 v5, v3, 6, v5")
    a("v_lshl_add_u32 v5, v2, 4, v5")
    a(f"v_lshl_add_u32 v5, s{sWAVE}, 8, v5")
    a("v_mul_u32_u24 v6, 49152, v1")
    a("v_and_b32 v7, 1, v2")
    a("v_lshl_add_u32 v6, v7, 4, v6")
    a("v_lshrrev_b32 v7, 1, v2")
    a("v_lshl_add_u32 v6, v7, 10, v6")
    a("v_mov_b32 v96, 0")
    a(f"s_movk_i32 s{sT3}, 6144")
    a("s_waitcnt lgkmcnt(0)")
    base(sBB, sWM, sT0)
    a(f"global_load_dwordx4 v[8:11], v5, {sp(sC)}")
    a("s_branch L_G_ld")
    a.label("L_GQA")
    a("s_setprio 3")
    a("v_and_b32 v7, 15, v0")
    a("v_lshlrev_b32 v13, 10, v3")
    a("v_lshl_add_u32 v14, v7, 4, v13")
    a("v_lshl_add_u32 v15, v7, 1, v13")
    a(f"v_lshl_add_u32 v15, s{sCNT}, 5, v15")
    a("s_waitcnt lgkmcnt(0)")
    a(f"s_cmp_lg_u32 s{sWAVE}, 7")
    a("s_cbranch_scc1 L_GQA2")
    a(f"global_load_dword v12, v4, {sp(sWS)} sc1      ; epoch")
    for t in range(4):
        a(f"global_load_dwordx4 {vr(80 + 4 * t, 4)}, v14, {sp(sX)} offset:{256 * t}")
    a(f"global_load_ushort v13, v15, {sp(sX)}")
    a("s_branch L_GQA2")
    a.label("L_GB")
    a(f"s_cmp_lg_u32 s{sWAVE}, 7")
    a("s_cbranch_scc1 L_GB1")
    a("s_setprio 3")
    a(f"s_mul_i32 s{sT0}, s{sCNT}, {CLR_PER_WG * 1024}")
    a("v_lshlrev_b32 v6, 4, v0")
    for i in range(4):
        a(f"v_mov_b32 v{8 + i}, -1")
    a("s_waitcnt lgkmcnt(0)")
    base(sBA, sWS, sT0, CLR + 4096)
    a(f"global_load_dword v12, v4, {sp(sWS)} sc1      ; epoch")
    for i in range(CLR_PER_WG):
        a(f"global_store_dwordx4 v6, v[8:11], {sp(sBA)} offset:{1024 * i - 4096} sc1")
    a("s_branch L_GB2")


def ids():
    a(f"s_mov_b32 s{sG}, s{sT1}")
    a(f"s_mov_b32 s{sM}, s{sT2}")
    sels()
    if OPT["stamps"]:
        a("v_writelane_b32 v126, s100, 0")
    if OPT["probe"]:
        a("v_mov_b32 v160, s100")
        a("v_mov_b32 v161, s100")
        a("v_mov_b32 v162, 0")
        a(f"s_getreg_b32 s100, hwreg(HW_REG_XCC_ID, 0, 4)")
        a("v_mov_b32 v163, s100")


def silu_frag():
    unpack(80, 8, 4)
    for i in range(8):
        a(f"v_mul_f32 v{88 + i}, {0x80000000 | LOG2E:#x}, v{80 + i}")
    for i in range(8):
        a(f"v_exp_f32 v{88 + i}, v{88 + i}")
    for i in range(8):
        a(f"v_add_f32 v{88 + i}, 1.0, v{88 + i}")
    for i in range(8):
        a(f"v_rcp_f32 v{88 + i}, v{88 + i}")
    for i in range(8):
        a(f"v_mul_f32 v{80 + i}, v{80 + i}, v{88 + i}")
    for i in range(4):
        a(f"v_cvt_pk_bf16_f32 v{8 + i}, v{80 + 2 * i}, v{81 + 2 * i}")


def xcc_flag():
    a(f"s_lshr_b32 s{sT0}, s{sM}, 2")
    a(f"s_lshl2_add_u32 s{sT0}, s{sG}, s{sT0}")
    a(f"s_mul_i32 s{sT0}, s{sT0}, {NREP * 128}")
    a(f"s_and_b32 s{sT1}, s{sM}, 2")
    a(f"s_lshl1_add_u32 s{sT0}, s{sT1}, s{sT0}")
    a(f"s_add_u32 s{sT0}, s{sT0}, {FL + 16:#x}")
    a(f"v_and_b32 v5, {NREP - 1}, v0")
    a(f"v_lshl_add_u32 v5, v5, 7, s{sT0}")
    a(f"s_getreg_b32 s{sT0}, hwreg(HW_REG_XCC_ID, 0, 4)")
    a(f"s_xor_b32 s{sT0}, s{sTAG}, s{sT0}")
    a(f"v_mov_b32 v6, s{sT0}")
    a(f"global_store_dword v5, v6, {sp(sWS)}")


def cf_poll():
    base(sBB, sWS, None, CF)
    a("v_and_b32 v5, 31, v0")
    a("v_lshlrev_b32 v5, 7, v5")
    lab = poll_begin()
    a(f"global_load_dword v6, v5, {sp(sBB)} sc1")
    poll_mid(sleep=4)
    a(f"v_cmp_ne_u32 vcc, s{sTAG}, v6")
    poll_end(lab)


def tile64_tail(first):
    for e in range(first, 8):
        a(mfma(ACC + 4 * e, 8, F + 4 * e))
    for e in range(8):
        a(f"v_add_f32_dpp v{80 + e}, v{ACC + 4 * e + 1}, v{ACC + 4 * e} row_shl:8 {DPPM}")
    set_exec(0x00FF00FF00FF00FF)
    a("ds_write_b128 v6, v[80:83]")
    a("ds_write_b128 v6, v[84:87] offset:16")
    set_exec(-1)


def tile64_addr():
    a("v_lshlrev_b32 v6, 8, v3")
    a("v_lshl_add_u32 v6, v15, 5, v6")
    a(f"v_lshl_add_u32 v6, s{sWAVE}, 10, v6")
    a("v_lshlrev_b32 v7, 3, v0")
    a(f"v_lshl_add_u32 v7, s{sWAVE}, 9, v7")


def tile64_sum():
    for t in range(4):
        a(f"ds_read2st64_b64 {vr(16 + 4 * t, 4)}, v7 offset0:{4 * t} offset1:{4 * t + 2}")


def sec_gm():
    CLS[0] = 4
    a.label("L_GM2")
    ids()
    stamp(1)
    a("s_waitcnt vmcnt(8)")
    silu_frag()
    a("v_lshlrev_b32 v5, 7, v3")
    a("v_lshl_add_u32 v5, v2, 5, v5")
    a(f"v_lshl_add_u32 v5, s{sWAVE}, 9, v5")
    perms8(W, F, waits=[6, 4, 2, 0])
    for e in range(8):
        a(mfma(ACC + 4 * e, 8, F + 4 * e))
    diagX_reduce(ACC, 48)
    set_exec(0x000F000F000F000F)
    a("ds_write_b128 v5, v[48:51]")
    a("ds_write_b128 v5, v[52:55] offset:16")
    set_exec(-1)
    a("s_waitcnt lgkmcnt(0)")
    stamp(2)
    a("s_barrier                      ; 1")
    if OPT["bhelp"]:
        a(f"s_lshl1_add_u32 s{sT0}, s{sM}, s{sWAVE}")
        a(f"s_add_u32 s{sT0}, s{sT0}, 14")
        a(f"s_mul_i32 s{sT0}, s{sT0}, {16 * 6144}")
        a(f"s_lshl_b32 s{sT1}, s{sG}, 9")
        a(f"s_add_u32 s{sT0}, s{sT0}, s{sT1}")
        a(f"s_add_u32 s{sT0}, s{sT0}, 2048")
        a("v_mul_u32_u24 v8, 6144, v1")
        a("v_lshl_add_u32 v8, v2, 7, v8")
        a(f"v_add_u32 v8, s{sT0}, v8")
        a("s_barrier")
        prefetch(8, sWM)
    a("s_branch L_WO")


def sec_gb():
    CLS[0] = 2
    a.label("L_GB1")
    a("s_waitcnt lgkmcnt(0)")
    a.label("L_GB2")
    ids()
    a("v_lshlrev_b32 v5, 10, v5")
    a("v_lshl_add_u32 v5, v3, 5, v5")
    a("v_and_b32 v7, 1, v0")
    a("v_lshl_add_u32 v5, v7, 4, v5")
    a(f"v_lshl_add_u32 v16, s{sWAVE}, 7, v5")
    a(f"s_lshl_b32 s{sT0}, s{sCNT}, 7")
    a(f"s_mul_i32 s{sT3}, s{sWAVE}, {64 * 6144}")
    a(f"s_add_u32 s{sT0}, s{sT0}, s{sT3}")
    base(sBC, sWM, sT0, 2048)
    a(f"s_lshl_b32 s{sT4}, s{sCNT}, 9           ; p*512")
    a("v_mul_u32_u24 v13, 49152, v14")
    a("v_lshl_add_u32 v13, v15, 4, v13")
    a(f"s_movk_i32 s{sT3}, 6144")
    a(f"s_cmp_lg_u32 s{sWAVE}, 7")
    a("s_cbranch_scc1 L_GB3")
    a("s_waitcnt vmcnt(0)")
    make_tag(12)
    base(sBB, sWS, None, CF)
    a(f"v_lshlrev_b32_e64 v5, 7, s{sCNT}")
    a(f"v_mov_b32 v6, s{sTAG}")
    set_exec(1)
    a(f"global_store_dword v5, v6, {sp(sBB)} sc1")
    set_exec(-1)
    xcc_flag()
    a("s_setprio 0")
    a.label("L_GB3")
    stamp(1)
    a("s_barrier")
    a(f"global_load_dwordx4 v[8:11], v16, {sp(sC)}")
    for j in range(8):
        a(f"global_load_dwordx4 {vr(W + 4 * j, 4)}, v13, {sp(sBC)}{NT}")
        if j < 7:
            a(f"v_add_u32 v13, s{sT3}, v13")
    a("s_waitcnt vmcnt(8)")
    silu_frag()
    tile64_addr()
    perms8(W, F, waits=[6, 4, 2, 0])
    tile64_tail(0)
    a(f"s_cmp_lg_u32 s{sWAVE}, 7")
    a("s_cbranch_scc1 L_GB4")
    cf_poll()
    a.label("L_GB4")
    a("s_waitcnt lgkmcnt(0)")
    stamp(2)
    a("s_barrier                      ; 1")
    a(f"s_cmp_ge_u32 s{sWAVE}, 2")
    a("s_cbranch_scc1 L_WO")
    tile64_sum()
    base(sBA, sWS, sT4, MODB)
    a("v_and_b32 v5, 2, v0")
    a("v_lshlrev_b32 v5, 7, v5")
    a("v_and_b32 v6, 32, v0")
    a("v_lshl_add_u32 v5, v6, 1, v5")
    a(f"v_lshl_add_u32 v5, s{sWAVE}, 7, v5")
    a("v_and_b32 v6, 13, v0")
    a("v_lshl_add_u32 v5, v6, 2, v5")
    a("v_bfe_u32 v6, v0, 4, 1")
    a("v_lshl_add_u32 v5, v6, 3, v5")
    a("s_waitcnt lgkmcnt(0)")
    sum8_b64(16)
    a("v_cvt_pk_bf16_f32 v12, v16, v17")
    a(f"global_store_dword v5, v12, {sp(sBA)} sc1")
    stamp(3)
    a("s_branch L_WO")


def sec_ln():
    CLS[0] = 3
    a.label("L_GQA2")
    ids()
    stamp(1)
    a(f"s_cmp_lg_u32 s{sWAVE}, 7")
    a("s_cbranch_scc1 L_GQA3")
    a("s_waitcnt vmcnt(0)")
    make_tag(12)
    unpack(16, 80, 16)
    a("v_pk_add_f32 v[8:9], v[16:17], v[18:19]")
    for i in range(2, 16):
        a(f"v_pk_add_f32 v[8:9], v[8:9], v[{16 + 2 * i}:{17 + 2 * i}]")
    a("v_add_f32 v8, v8, v9")
    row_allsum(8)
    a(f"v_mul_f32 v8, {INV512:#x}, v8       ; mean")
    a("v_mov_b32 v9, v8")
    for i in range(16):
        a(f"v_pk_add_f32 v[{16 + 2 * i}:{17 + 2 * i}], v[{16 + 2 * i}:{17 + 2 * i}], v[8:9] neg_lo:[0,1] neg_hi:[0,1]")
    a("v_pk_mul_f32 v[10:11], v[16:17], v[16:17]")
    for i in range(1, 16):
        a(f"v_pk_fma_f32 v[10:11], v[{16 + 2 * i}:{17 + 2 * i}], v[{16 + 2 * i}:{17 + 2 * i}], v[10:11]")
    a("v_add_f32 v10, v10, v11")
    row_allsum(10)
    a(f"v_mul_f32 v9, {INV512:#x}, v10      ; var")
    round_bf16([8, 9])
    a(f"v_add_f32 v9, {EPS:#x}, v9")
    round_bf16([9])
    a("v_sqrt_f32 v9, v9")
    round_bf16([9])
    a("v_rcp_f32 v9, v9")
    a("v_lshlrev_b32 v13, 16, v13")
    a("v_sub_f32 v13, v13, v8")
    round_bf16([13])
    a("v_mul_f32 v13, v13, v9")
    round_bf16([13])
    a("v_lshlrev_b32 v5, 7, v3")
    a("v_lshl_add_u32 v5, v7, 2, v5")
    a("v_add_u32 v10, 64, v5")
    a("v_lshlrev_b32 v14, 6, v3              ; b*64")
    a("v_and_b32 v8, 8, v7")
    a("v_lshl_add_u32 v14, v8, 2, v14        ; c'lo*32")
    a("v_and_b32 v8, 2, v7")
    a("v_lshl_add_u32 v14, v8, 3, v14        ; (d&1)*16")
    a("v_and_b32 v8, 4, v7")
    a("v_lshl_add_u32 v14, v8, 1, v14        ; (d>>1)*8")
    a(f"s_lshl_b32 s{sT0}, s{sCNT}, 8")
    base(sBA, sWS, sT0, H1)
    a(f"v_mov_b32 v9, s{sTAG}")
    stamp(2)
    a("s_barrier                      ; 1")
    a("ds_read2st64_b32 v[80:81], v5 offset0:0 offset1:2")
    a("ds_read2st64_b32 v[82:83], v5 offset0:4 offset1:6")
    a("ds_read2st64_b32 v[84:85], v10 offset0:0 offset1:2")
    a("ds_read2st64_b32 v[86:87], v10 offset0:4 offset1:6")
    a("s_waitcnt lgkmcnt(0)")
    a("v_pk_add_f32 v[80:81], v[80:81], v[82:83]")
    a("v_pk_add_f32 v[84:85], v[84:85], v[86:87]")
    a("v_add_f32 v80, v80, v81               ; sa")
    a("v_add_f32 v81, v84, v85               ; ca")
    round_bf16([80, 81])
    a("v_add_f32 v81, 1.0, v81")
    round_bf16([81])
    a("v_mul_f32 v81, v13, v81")
    round_bf16([81])
    a("v_add_f32 v80, v81, v80")
    a(f"v_mov_b32_dpp v81, v80 quad_perm:[1,1,3,3] {DPPM}")
    a("v_cvt_pk_bf16_f32 v8, v80, v81")
    set_exec(0x5555555555555555)
    a(f"global_store_dwordx2 v14, v[8:9], {sp(sBA)} sc1")
    set_exec(-1)
    stamp(3)
    xcc_flag()
    if OPT["bhelp"]:
        a("s_barrier                      ; 1b")
    cf_poll()
    a("s_branch L_WO")
    a.label("L_GQA3")
    a("s_barrier                      ; 1")
    if OPT["bhelp"]:
        a("s_barrier                      ; 1b")
    a("s_branch L_WO")


def sec_gq():
    CLS[0] = 0
    a.label("L_GQ2")
    ids()
    stamp(1)
    a(f"s_lshl_b32 s{sT0}, s{sWAVE}, 10")
    base(sBA, sWS, sT0, H1)
    a(f"s_lshl_b32 s{sT0}, s{sWAVE}, 9")
    base(sBC, sWS, sT0, CF)
    a("v_lshlrev_b32 v5, 6, v1")
    a("v_and_b32 v7, 1, v0")
    a("v_lshl_add_u32 v5, v7, 5, v5")
    a("v_lshlrev_b32 v98, 7, v2")
    tile64_addr()
    a(f"s_lshl_b32 s{sT0}, s{sG}, 12")
    a(f"s_lshl_b32 s{sT1}, s{sM}, 6")
    a(f"s_add_u32 s{sT0}, s{sT0}, s{sT1}")
    a(f"s_lshl_b32 s{sT1}, s{sWAVE}, 11")
    a(f"s_add_u32 s{sT0}, s{sT0}, s{sT1}")
    a("v_and_b32 v97, 31, v0")
    a(f"v_lshl_add_u32 v97, v97, 2, s{sT0}")
    a("v_and_b32 v99, 32, v0")
    a("v_lshl_add_u32 v97, v99, 5, v97")
    a("v_lshlrev_b32 v99, 1, v97")
    base(sBB, sWS, None, QS)
    a(f"s_cmp_ge_u32 s{sWAVE}, 2")
    a("s_cbranch_scc1 L_GQ3")
    a(f"global_load_dword v127, v97, {sp(sBB)} sc1")
    a.label("L_GQ3")
    a("s_waitcnt vmcnt(8)")
    make_tag(12)
    perms8(W, F, waits=[6, 4, 2, 0])
    stamp(4)
    lab = poll_begin()
    a(f"global_load_dwordx4 v[8:11], v5, {sp(sBA)} sc1")
    a(f"global_load_dwordx4 v[12:15], v5, {sp(sBA)} offset:16 sc1")
    a(f"global_load_dword v84, v98, {sp(sBC)} sc1")
    poll_mid()
    a(f"v_xor_b32 v80, s{sTAG}, v9")
    a(f"v_xor_b32 v81, s{sTAG}, v11")
    a("v_mov_b32 v9, v12")
    a("v_mov_b32 v11, v14")
    a(f"v_xor_b32 v82, s{sTAG}, v13")
    a(f"v_xor_b32 v83, s{sTAG}, v15")
    interleave([mfma(ACC + 4 * e, 8, F + 4 * e) for e in range(2)],
               [f"v_xor_b32 v84, s{sTAG}, v84", "v_or3_b32 v80, v80, v81, v82", "v_or3_b32 v80, v80, v83, v84", "v_cmp_ne_u32 vcc, 0, v80"], 2)
    poll_end(lab)
    tile64_tail(2)
    a("s_waitcnt lgkmcnt(0)")
    stamp(5)
    a("s_barrier                      ; 1")
    a(f"s_cmp_ge_u32 s{sWAVE}, 2")
    a("s_cbranch_scc1 L_WO")
    tile64_sum()
    base(sBA, sWS, None, H2G)
    a(f"s_getreg_b32 s{sT0}, hwreg(HW_REG_XCC_ID, 0, 4)")
    a(f"s_xor_b32 s{sT0}, s{sTAG}, s{sT0}")
    a(f"v_mov_b32 v9, s{sT0}")
    a("s_waitcnt lgkmcnt(0)")
    sum8_b64(16)
    a("v_cvt_pk_bf16_f32 v8, v16, v17")
    a(f"global_store_dword v97, v8, {sp(sBB)}")
    a("s_waitcnt vmcnt(0)")
    a(f"global_store_dword v96, v9, {sp(sWS)}")
    a(f"global_store_dwordx2 v99, v[8:9], {sp(sBA)} sc1")
    stamp(6)
    a("s_branch L_WO")


WD = 128


def down_loads():
    a(f"s_lshr_b32 s{sT2}, s{sM}, 1")
    a(f"s_lshl2_add_u32 s{sT0}, s{sG}, s{sT2}")
    a(f"s_lshl_b32 s{sT0}, s{sT0}, 5")
    a(f"s_lshl_b32 s{sT2}, s{sWAVE}, 18")
    a(f"s_add_u32 s{sT0}, s{sT0}, s{sT2}")
    base(sBB, sWD, sT0, 4096)
    a("v_lshlrev_b32 v6, 13, v1")
    a("v_lshl_add_u32 v6, v2, 3, v6")
    a("v_add_u32 v7, 0x20000, v6")
    for f in range(2):
        for j in range(8):
            a(f"global_load_dwordx2 {vr(WD + 16 * f + 2 * j, 2)}, v{7 if f else 6}, {sp(sBB)} offset:{1024 * j - 4096}{NTW}")


def sec_wo():
    CLS[0] = 0
    a.label("L_WO")
    a(f"s_lshr_b32 s{sT1}, s{sWAVE}, 1")
    a(f"s_lshl2_add_u32 s{sT0}, s{sG}, s{sT1}")
    a(f"s_lshl_b32 s{sT0}, s{sT0}, 5")
    a(f"s_and_b32 s{sT2}, s{sWAVE}, 1")
    a(f"s_add_u32 s{sT0}, s{sT0}, s{sT2}")
    a(f"s_lshl_b32 s{sT0}, s{sT0}, 6            ; (512g + 128h + 4*(i&1)) * 16")
    a(f"s_add_u32 s{sT0}, s{sT0}, s{sM}")
    a(f"s_lshl_b32 s{sT0}, s{sT0}, 6")
    base(sBB, sWO, sT0)
    a("v_and_b32 v7, 15, v0")
    a("v_and_b32 v6, 1, v3")
    a("v_lshlrev_b32 v6, 16, v6")
    a("v_lshrrev_b32 v5, 1, v3")
    a("v_lshl_add_u32 v6, v5, 10, v6")
    a("v_lshl_add_u32 v6, v7, 2, v6")
    a(f"s_movk_i32 s{sT3}, 8192")
    a("s_setprio 0")
    a(f"s_lshl4_add_u32 s{sT0}, s{sG}, s{sM}")
    a(f"s_lshl2_add_u32 s{sT0}, s{sT0}, s{sWAVE}")
    a(f"s_lshl_b32 s{sT0}, s{sT0}, 13")
    a(f"v_lshl_add_u32 v8, v0, 7, s{sT0}")
    if OPT["wowait"]:
        a(f"s_and_b32 s{sT0}, s{sM}, 1")
        a(f"s_lshl_b32 s{sT0}, s{sT0}, 3")
        a(f"s_add_u32 s{sT0}, s{sT0}, s{sWAVE}")
        a(f"s_cmp_lg_u32 s{sT0}, 15")
        a("s_cbranch_scc1 L_WO0")
        a(f"s_mul_i32 s{sT0}, s{sG}, {4 * NREP * 128}")
        base(sBA, sWS, sT0, FL)
        a("v_and_b32 v9, 3, v1")
        a(f"v_mul_u32_u24 v9, {NREP * 128}, v9")
        a("v_lshl_add_u32 v9, v2, 2, v9")
        a(f"s_movk_i32 s{sCNT}, 40")
        a.label("L_WOw")
        a(f"global_load_dword v10, v9, {sp(sBA)} sc1")
        poll_mid(sleep=2)
        a(f"v_xor_b32 v10, s{sTAG}, v10")
        a("v_cmp_gt_u32 vcc, 16, v10")
        a("s_cmp_eq_u64 vcc, 0")
        a("s_cselect_b64 vcc, -1, 0")
        poll_end("L_WOw")
        a.label("L_WO0")
    a("s_barrier")
    if OPT["wopf"]:
        a(f"s_cmp_ge_u32 s{sWAVE}, 4")
        a("s_cbranch_scc1 L_WO1")
        prefetch(8, sWO)
        a.label("L_WO1")
    for j in range(8):
        for ks in range(2):
            a(f"global_load_dword v{96 + 8 * ks + j}, v6, {sp(sBB)} offset:{2048 * ks}{NTW}")
        if j < 7:
            a(f"v_add_u32 v6, s{sT3}, v6")
    a(f"s_lshl3_add_u32 s{sT0}, s{sG}, s{sWAVE}")
    a(f"s_lshl_b32 s{sT0}, s{sT0}, 11")
    base(sBA, sWS, sT0, H3O)
    a(f"s_lshl2_add_u32 s{sT0}, s{sG}, s{sT1}")
    a(f"s_lshl_b32 s{sT0}, s{sT0}, 7")
    base(sBC, sWS, sT0, H3ML)
    a("v_lshlrev_b32 v5, 4, v0")
    a("v_lshlrev_b32 v6, 5, v3")
    a("v_lshlrev_b32 v12, 3, v0")
    a(f"v_lshl_add_u32 v7, s{sWAVE}, 9, v12")
    a("s_waitcnt vmcnt(0)")
    stamp(7)
    for ks in range(2):
        for eo in range(2):
            for x in range(4):
                a(f"v_perm_b32 v{32 + 8 * ks + 4 * eo + x}, v{96 + 8 * ks + 2 * x + 1}, v{96 + 8 * ks + 2 * x}, s{sHI if eo else sLO}")
    lab = poll_begin()
    a(f"global_load_dwordx4 v[56:59], v6, {sp(sBC)} sc1")
    a(f"global_load_dwordx4 v[60:63], v6, {sp(sBC)} offset:16 sc1")
    poll_mid()
    for ins in sentinel_ops(range(56, 64), 8):
        a(ins)
    poll_end(lab)
    a(f"s_lshl4_add_u32 s{sT0}, s{sG}, s{sM}")
    a(f"s_lshl_b32 s{sT0}, s{sT0}, 8")
    base(sBB, sWS, sT0, H4)
    a("v_lshlrev_b32 v6, 2, v0")
    a("v_max3_f32 v8, v56, v58, v60")
    a("v_max_f32 v8, v8, v62")
    for s in range(4):
        a(f"v_sub_f32 v{56 + 2 * s}, v{56 + 2 * s}, v8")
    for s in range(4):
        a(f"v_exp_f32 v{56 + 2 * s}, v{56 + 2 * s}")
    a("v_mul_f32 v9, v56, v57")
    for s in range(1, 4):
        a(f"v_fmac_f32 v9, v{56 + 2 * s}, v{57 + 2 * s}")
    a("v_rcp_f32 v9, v9")
    for s in range(4):
        a(f"v_mul_f32 v{64 + s}, v{56 + 2 * s}, v9")
    stamp(8)
    lab = poll_begin()
    a(f"global_load_dwordx4 v[48:51], v5, {sp(sBA)} sc1")
    a(f"global_load_dwordx4 v[52:55], v5, {sp(sBA)} offset:1024 sc1")
    poll_mid()
    interleave([mfma(16, 48, 32), mfma(20, 48, 36), mfma(16, 52, 40, 16), mfma(20, 52, 44, 20)],
               sentinel_ops(range(48, 56), 8), 2)
    poll_end(lab)
    a("v_pk_mul_f32 v[16:17], v[16:17], v[64:65]")
    a("v_pk_mul_f32 v[20:21], v[20:21], v[64:65]")
    a("v_pk_fma_f32 v[16:17], v[18:19], v[66:67], v[16:17]")
    a("v_pk_fma_f32 v[20:21], v[22:23], v[66:67], v[20:21]")
    a("v_add_f32 v10, v16, v17")
    a("v_add_f32 v11, v20, v21")
    a("ds_write_b64 v7, v[10:11] offset:6144")
    a("s_waitcnt lgkmcnt(0)")
    stamp(9)
    a("s_barrier                      ; 3")
    a(f"s_cmp_lg_u32 s{sWAVE}, 7")
    a("s_cbranch_scc1 L_DOWN")
    for t in range(4):
        a(f"ds_read2st64_b64 {vr(16 + 4 * t, 4)}, v12 offset0:{12 + 2 * t} offset1:{13 + 2 * t}")
    a("s_waitcnt lgkmcnt(0)")
    sum8_b64(16)
    a("v_cvt_pk_bf16_f32 v8, v16, v17")
    a(f"global_store_dword v6, v8, {sp(sBB)} sc1")
    a(f"s_mul_i32 s{sT0}, s{sM}, {112 * 1024}")
    a(f"s_lshl_b32 s{sT1}, s{sG}, 7")
    a(f"s_add_u32 s{sT0}, s{sT0}, s{sT1}")
    a(f"v_lshl_add_u32 v9, v0, 10, s{sT0}")
    a(f"v_add_u32 v10, {48 * 1024}, v9")
    prefetch(9, sWD, True)
    prefetch(10, sWD, True)
    stamp(10)
    a(f"s_cmp_lg_u32 s{sKIND}, 1")
    a("s_cbranch_scc1 L_fin")
    a("s_barrier                      ; 3b")
    a(f"s_lshr_b32 s{sT1}, s{sM}, 1")
    a(f"s_lshl2_add_u32 s{sT2}, s{sG}, s{sT1}       ; col0/16")
    a(f"s_lshl_b32 s{sT0}, s{sG}, 9")
    a(f"s_and_b32 s{sT3}, s{sT1}, 1")
    a(f"s_lshl_b32 s{sT3}, s{sT3}, 5")
    a(f"s_add_u32 s{sT0}, s{sT0}, s{sT3}")
    a(f"s_and_b32 s{sT3}, s{sT1}, 2")
    a(f"s_lshl2_add_u32 s{sT0}, s{sT3}, s{sT0}")
    base(sBA, sWS, sT0, X1)
    base(sBB, sWS, sT0, MODB + 3 * 4096)
    a("v_and_b32 v7, 4, v0")
    a("v_lshlrev_b32 v5, 6, v7")
    a("v_lshl_add_u32 v5, v3, 6, v5")
    a("v_and_b32 v7, 10, v0")
    a("v_lshl_add_u32 v5, v7, 1, v5")
    a(f"s_lshl_b32 s{sT0}, s{sT2}, 5")
    base(sBC, sOUT, sT0)
    a("v_and_b32 v7, 15, v0")
    a("v_lshlrev_b32 v11, 10, v3")
    a("v_lshl_add_u32 v11, v7, 1, v11")
    a("v_and_b32 v7, 1, v0")
    a("v_lshlrev_b32 v7, 4, v7")
    a("s_barrier")
    lab = poll_begin()
    a(f"global_load_dword v8, v5, {sp(sBA)} sc1")
    a(f"global_load_dword v9, v5, {sp(sBB)} sc1")
    poll_mid()
    for ins in sentinel_ops([8, 9], 10):
        a(ins)
    poll_end(lab)
    a("v_lshrrev_b32 v8, v7, v8")
    a("v_lshrrev_b32 v9, v7, v9")
    a("v_lshlrev_b32 v8, 16, v8              ; x1")
    a("v_lshlrev_b32 v9, 16, v9              ; gb")
    stamp(12)
    a("s_barrier                      ; 4")
    for t in range(7):
        a(f"ds_read2st64_b32 v[{16 + 2 * t}:{17 + 2 * t}], v6 offset0:{40 + 2 * t} offset1:{41 + 2 * t}")
    a("s_waitcnt lgkmcnt(3)")
    a("v_pk_add_f32 v[16:17], v[16:17], v[18:19]")
    a("v_pk_add_f32 v[20:21], v[20:21], v[22:23]")
    a("v_pk_add_f32 v[16:17], v[16:17], v[20:21]")
    a("s_waitcnt lgkmcnt(0)")
    a("v_pk_add_f32 v[24:25], v[24:25], v[26:27]")
    a("v_pk_add_f32 v[16:17], v[16:17], v[28:29]")
    a("v_pk_add_f32 v[16:17], v[16:17], v[24:25]")
    a("v_add_f32 v16, v16, v17")
    a("v_fma_f32 v16, v9, v16, v8")
    a("v_cvt_pk_bf16_f32 v16, v16, v16")
    a(f"global_store_short v11, v16, {sp(sBC)}")
    stamp(13)
    a("s_cmp_lg_u32 s2, 8")
    a("s_cbranch_scc1 L_fin")
    a(f"v_mov_b32 v8, s{sTAG}")
    set_exec(1)
    a(f"global_store_dword v4, v8, {sp(sWS)} sc1")
    a.label("L_fin")
    finish_wave()


def sec_down():
    CLS[0] = 0
    a.label("L_DOWN")
    a(f"s_cmp_lg_u32 s{sKIND}, 1")
    a("s_cbranch_scc1 L_fin")
    a("s_barrier                      ; 3b")
    down_loads()
    a(f"s_lshl_b32 s{sT0}, s{sWAVE}, 11")
    base(sBA, sWS, sT0, ACT)
    a("v_lshlrev_b32 v6, 7, v3")
    a("v_lshl_add_u32 v6, v2, 4, v6")
    a(f"v_lshl_add_u32 v6, s{sWAVE}, 9, v6")
    a("s_waitcnt vmcnt(0)")
    a("s_barrier                      ; 3c")
    for f in range(2):
        for e in range(4):
            for x in range(4):
                a(f"v_perm_b32 v{48 + 16 * f + 4 * e + x}, v{WD + 16 * f + 2 * (2 * x + 1) + (e >> 1)}, "
                  f"v{WD + 16 * f + 2 * (2 * x) + (e >> 1)}, s{sHI if e & 1 else sLO}")
    stamp(11)
    lab = poll_begin()
    a(f"global_load_dwordx4 v[8:11], v5, {sp(sBA)} sc1")
    a(f"global_load_dwordx4 v[12:15], v5, {sp(sBA)} offset:1024 sc1")
    poll_mid()
    interleave([mfma(16 + 4 * e, 8, 48 + 4 * e) for e in range(3)], sentinel_ops(range(8, 16), 7), 2)
    poll_end(lab)
    a(mfma(28, 8, 60))
    for e in range(4):
        a(mfma(16 + 4 * e, 12, 64 + 4 * e, 16 + 4 * e))
    for e in range(4):
        for b0 in range(2):
            a(f"v_add_f32_dpp v{32 + 4 * b0 + e}, v{16 + 4 * e + 2 * b0 + 1}, v{16 + 4 * e + 2 * b0} row_shl:4 {DPPM}")
    set_exec(0x0F000F00000F000F)
    a("ds_write_b128 v6, v[32:35] offset:10240")
    a("ds_write_b128 v6, v[36:39] offset:10304")
    a("s_waitcnt lgkmcnt(0)")
    stamp(12)
    a("s_barrier                      ; 4")
    finish_wave()


def sec_att():
    CLS[0] = 1
    a.label("L_A2")
    ids()
    stamp(1)
    a(f"s_cmp_lt_u32 s{sWAVE}, 4")
    a("s_cbranch_scc1 L_A2b")
    a(f"s_bitcmp1_b32 s{sWAVE}, 0")
    a(f"s_cselect_b64 {sp(sBA)}, {sp(sWU)}, {sp(sWG)}")
    a(f"s_and_b32 s{sT0}, s{sWAVE}, 2")
    a(f"s_lshl2_add_u32 s{sT0}, s{sM}, s{sT0}")
    a(f"s_mul_i32 s{sT0}, s{sT0}, {8 * 3584}")
    a(f"s_mul_i32 s{sT1}, s{sG}, 448")
    a(f"s_andn2_b32 s{sT1}, s{sT1}, 127")
    a(f"s_add_u32 s{sT0}, s{sT0}, s{sT1}")
    a("v_mul_u32_u24 v13, 3584, v1")
    a("v_lshl_add_u32 v13, v2, 7, v13")
    a(f"v_add_u32 v13, s{sT0}, v13")
    prefetch(13, sBA, True)
    a(f"s_waitcnt vmcnt({10 if OPT['pfpol'] == 2 else 9})")
    stamp(2)
    a("s_branch L_A3")
    a.label("L_A2b")
    a("s_waitcnt vmcnt(0)")
    make_tag(12)
    stamp(2)
    a(f"s_getreg_b32 s{sT0}, hwreg(HW_REG_XCC_ID, 0, 4)")
    a(f"s_xor_b32 s56, s{sTAG}, s{sT0}")
    a("s_mov_b32 s57, s56")
    a(f"s_lshl2_add_u32 s{sT0}, s{sG}, s{sWAVE}")
    a(f"s_mul_i32 s{sT0}, s{sT0}, {NREP * 128}")
    base(sBA, sWS, sT0, FL)
    a(f"s_mov_b32 s{sCNT}, 0")
    a.label("L_Aq")
    a(f"s_load_dwordx8 s[48:55], {sp(sBA)}, s{sCNT}")
    a(f"s_add_u32 s{sCNT}, s{sCNT}, 128")
    a("s_waitcnt lgkmcnt(0)")
    a("s_xor_b64 s[48:49], s[48:49], s[56:57]")
    a("s_xor_b64 s[50:51], s[50:51], s[56:57]")
    a("s_xor_b64 s[52:53], s[52:53], s[56:57]")
    a("s_or_b64 s[48:49], s[48:49], s[50:51]")
    a("s_or_b64 s[48:49], s[48:49], s[52:53]")
    a("s_cbranch_scc0 L_Aq_ok")
    if OPT["qsleep"]:
        a(f"s_sleep {OPT['qsleep']}")
    a(f"s_cmp_lt_u32 s{sCNT}, {NREP * 128}")
    a("s_cbranch_scc1 L_Aq")
    a(f"s_lshr_b32 s{sT0}, s{sM}, 2")
    a(f"s_lshl2_add_u32 s{sT0}, s{sG}, s{sT0}")
    a(f"s_lshl2_add_u32 s{sT0}, s{sT0}, s{sWAVE}")
    a(f"s_lshl_b32 s{sT0}, s{sT0}, 9")
    base(sBA, sWS, sT0, H2G)
    a("v_lshlrev_b32 v10, 3, v0")
    lab = poll_begin()
    a(f"global_load_dwordx2 v[8:9], v10, {sp(sBA)} sc1")
    poll_mid()
    a(f"v_xor_b32 v9, s{sTAG}, v9")
    a("v_cmp_lt_u32 vcc, 15, v9")
    poll_end(lab)
    a("v_mov_b32 v9, 2")
    if OPT["probe"] == 3:
        a("v_mov_b32 v162, 1")
    a("s_branch L_Aq_st")
    a.label("L_Aq_ok")
    a(f"s_lshr_b32 s{sT0}, s{sM}, 2")
    a(f"s_lshl2_add_u32 s{sT0}, s{sG}, s{sT0}")
    a(f"s_lshl2_add_u32 s{sT0}, s{sT0}, s{sWAVE}")
    a(f"s_lshl_b32 s{sT0}, s{sT0}, 8")
    a(f"s_add_u32 s{sT0}, s{sT0}, {QS:#x}")
    a(f"s_add_u32 s0, s{sWS}, s{sT0}")
    a(f"s_addc_u32 s1, s{sWS + 1}, 0")
    for t in range(4):
        a(f"s_load_dwordx16 s[{sQ + 16 * t}:{sQ + 16 * t + 15}], s[0:1], {64 * t}")
    a("v_mov_b32 v9, 1")
    a("s_waitcnt lgkmcnt(0)")
    for i in range(64):
        a(f"v_writelane_b32 v8, s{sQ + i}, {i}")
    a.label("L_Aq_st")
    a("v_lshlrev_b32 v10, 2, v0")
    a(f"v_lshl_add_u32 v10, s{sWAVE}, 8, v10")
    a(f"v_lshlrev_b32_e64 v11, 2, s{sWAVE}")
    a(f"ds_write_b32 v10, v8 offset:{LQ}")
    a(f"ds_write_b32 v11, v9 offset:{LQF}")
    a.label("L_A3")
    a(f"s_mul_i32 s{sT0}, s{sWAVE}, 2560")
    a("v_mul_u32_u24 v7, 576, v5")
    a("v_lshl_add_u32 v7, v2, 6, v7")
    a("v_lshl_add_u32 v7, v3, 4, v7")
    a(f"v_add_u32 v7, s{sT0}, v7")
    a("v_lshlrev_b32 v5, 5, v5               ; h*32")
    a(f"v_lshl_add_u32 v120, s{sWAVE}, 2, v5     ; h*32 + wave*4")
    a("v_lshlrev_b32 v124, 4, v0")
    a("v_add_u32 v125, 0x1000, v124")
    lab = poll_begin()
    a(f"ds_read_b128 v[12:15], v4 offset:{LQF}")
    a(f"ds_read_b128 v[8:11], v6 offset:{LQ}")
    poll_mid("lgkmcnt(0)")
    a("v_min3_u32 v112, v12, v13, v14")
    a("v_min_u32 v112, v112, v15")
    a("v_cmp_eq_u32 vcc, 0, v112")
    poll_end(lab)
    stamp(3)
    for u in range(8):
        a(mfma(SA + 4 * u, KR + 4 * u, 8))
    a("v_or3_b32 v12, v12, v13, v14")
    a("v_or_b32 v12, v12, v15")
    a("v_lshrrev_b32 v12, 1, v12")
    a(f"v_readfirstlane_b32 s{sLOCAL}, v12")
    S = 112
    for u in range(8):
        a(f"v_add_f32_dpp v{S + u}, v{SA + 4 * u + 1}, v{SA + 4 * u} row_shl:1 {DPPM}")
    for u in range(8):
        a(f"v_add_f32_dpp v{S + u}, v{SA + 4 * u + 2}, v{S + u} row_shl:2 {DPPM}")
    for u in range(8):
        a(f"v_add_f32_dpp v{S + u}, v{SA + 4 * u + 3}, v{S + u} row_shl:3 {DPPM}")
    round_bf16(list(range(S, S + 8)))
    for u in range(8):
        a(f"v_mul_f32 v{S + u}, {SCALE:#x}, v{S + u}")
    round_bf16(list(range(S, S + 8)))
    a(f"v_max3_f32 v12, v{S}, v{S + 1}, v{S + 2}")
    a(f"v_max3_f32 v13, v{S + 3}, v{S + 4}, v{S + 5}")
    a(f"v_max3_f32 v12, v12, v{S + 6}, v{S + 7}")
    a("v_max_f32 v12, v12, v13")
    cross_rows("v_max_f32", 12, 13)
    set_exec(0x1111)
    a(f"ds_write_b32 v120, v12 offset:{LM}")
    set_exec(-1)
    a("s_waitcnt lgkmcnt(0)")
    a("s_barrier")
    a(f"ds_read_b128 v[80:83], v5 offset:{LM}")
    a(f"ds_read_b128 v[84:87], v5 offset:{LM + 16}")
    a(f"s_mov_b32 s{sT0}, {LOG2E:#x}")
    for y in range(4):
        a(f"v_cmp_eq_u32 s[{48 + 2 * y}:{49 + 2 * y}], {y}, v2")
    a("s_waitcnt lgkmcnt(0)")
    a("v_max3_f32 v12, v80, v81, v82")
    a("v_max3_f32 v13, v83, v84, v85")
    a("v_max3_f32 v12, v12, v86, v87")
    a("v_max_f32 v12, v12, v13")
    a(f"v_mul_f32 v12, {LOG2E:#x}, v12")
    for u in range(8):
        a(f"v_fma_f32 v{S + u}, v{S + u}, s{sT0}, -v12")
    for u in range(8):
        a(f"v_exp_f32 v{S + u}, v{S + u}")
    for x in range(4):
        a(f"v_cvt_pk_bf16_f32 v{8 + x}, v{S + 2 * x}, v{S + 2 * x + 1}")
    a(f"v_pk_add_f32 v[{S}:{S + 1}], v[{S}:{S + 1}], v[{S + 2}:{S + 3}]")
    a(f"v_pk_add_f32 v[{S + 4}:{S + 5}], v[{S + 4}:{S + 5}], v[{S + 6}:{S + 7}]")
    a(f"v_pk_add_f32 v[{S}:{S + 1}], v[{S}:{S + 1}], v[{S + 4}:{S + 5}]")
    a(f"v_add_f32 v13, v{S}, v{S + 1}")
    for x in range(4):
        a(f"v_mov_b32_dpp v{8 + x}, v{8 + x} quad_perm:[0,0,0,0] {DPPM}")
    cross_rows("v_add_f32", 13, 14)
    set_exec(0x1111)
    a(f"ds_write_b32 v120, v13 offset:{LL}")
    set_exec(-1)
    PY = 88
    for y in range(4):
        for x in range(4):
            a(f"v_cndmask_b32 v{PY + 4 * y + x}, 0, v{8 + x}, s[{48 + 2 * y}:{49 + 2 * y}]")
    a("s_waitcnt lgkmcnt(0)")
    a("s_barrier")
    stamp(4)
    a(f"s_lshl2_add_u32 s{sT0}, s{sG}, s{sWAVE}")
    a(f"s_lshl_b32 s{sT0}, s{sT0}, 8")
    a(f"s_add_u32 s{sT0}, s{sT0}, s{sM}")
    a(f"s_lshl_b32 s{sT0}, s{sT0}, 4")
    base(sBA, sWS, sT0, H3O)
    a("v_lshlrev_b32 v121, 8, v1")
    a("v_lshl_add_u32 v121, v2, 2, v121")
    a(f"s_mul_i32 s{sT0}, s{sWAVE}, 576")
    a(f"v_lshl_add_u32 v122, v0, 3, s{sT0}")
    a(f"s_cmp_lt_u32 s{sWAVE}, 4")
    a("s_cbranch_scc1 L_A5")
    a(f"s_and_b32 s{sT4}, s{sWAVE}, 3")
    a(f"s_lshl_b32 s{sT0}, s{sT4}, 8")
    base(sBB, sX, sT0)
    a(f"s_lshl_b32 s{sT0}, s{sT4}, 10")
    base(sBA, sWS, sT0, MODB + 4096)
    a("v_lshrrev_b32 v13, 1, v3")
    a("v_lshlrev_b32 v13, 7, v13")
    a("v_and_b32 v14, 1, v3")
    a("v_lshl_add_u32 v13, v14, 3, v13")
    a("v_lshl_add_u32 v13, v2, 4, v13")
    a("v_lshl_add_u32 v13, v5, 5, v13        ; x offset: b*1024 + (G>>1)*128 + c*16 + (G&1)*8")
    a(f"global_load_dwordx2 v[128:129], v13, {sp(sBB)}")
    a(f"global_load_dwordx2 v[130:131], v13, {sp(sBB)} offset:64")
    modb_loads()
    a("s_branch L_A6")
    a.label("L_A5")
    a(f"s_cmp_lg_u32 s{sWAVE}, 0")
    a("s_cbranch_scc1 L_A6")
    a(f"ds_read_b128 v[80:83], v5 offset:{LL}")
    a(f"ds_read_b128 v[84:87], v5 offset:{LL + 16}")
    a(f"s_lshl_b32 s{sT0}, s{sG}, 6")
    a(f"s_add_u32 s{sT0}, s{sT0}, s{sM}")
    a(f"s_lshl_b32 s{sT0}, s{sT0}, 3")
    base(sBB, sWS, sT0, H3ML)
    a("v_lshlrev_b32 v14, 2, v5              ; h*128")
    a("s_waitcnt lgkmcnt(0)")
    a("v_pk_add_f32 v[80:81], v[80:81], v[82:83]")
    a("v_pk_add_f32 v[84:85], v[84:85], v[86:87]")
    a("v_pk_add_f32 v[80:81], v[80:81], v[84:85]")
    a("v_add_f32 v13, v80, v81")
    set_exec(0x1111)
    a(f"s_cmp_lg_u32 s{sLOCAL}, 0")
    a("s_cbranch_scc1 L_A_mlg")
    a(f"global_store_dwordx2 v14, v[12:13], {sp(sBB)}")
    a.label("L_A_mld")
    set_exec(-1)
    a.label("L_A6")
    extra = 7 if OPT['pfpol'] == 2 else 6
    perms8(VR, VT, waits=[6 + extra, 4 + extra, 2 + extra, 0 + extra])
    for e in range(8):
        d = OA + 4 * (e >> 2)
        a(mfma(d, VT + 4 * e, PY + 4 * (e & 3), None if (e & 3) == 0 else d))
    a(f"ds_write_b128 v7, {vr(OA, 4)}")
    a(f"ds_write_b128 v7, {vr(OA + 4, 4)} offset:256")
    a("s_waitcnt lgkmcnt(0)")
    stamp(5)
    a("s_barrier                      ; 2")
    a(f"s_cmp_ge_u32 s{sWAVE}, 4")
    a("s_cbranch_scc1 L_FF")
    for t in range(4):
        a(f"ds_read2st64_b64 {vr(16 + 4 * t, 4)}, v122 offset0:{10 * t} offset1:{10 * t + 5}")
    a(f"s_cmp_lg_u32 s{sLOCAL}, 0")
    a("s_waitcnt lgkmcnt(0)")
    sum8_b64(16)
    a("v_cvt_pk_bf16_f32 v10, v16, v17")
    a("s_cbranch_scc1 L_A_pubg")
    a(f"global_store_dword v121, v10, {sp(sBA)}")
    a.label("L_A_pubd")
    stamp(6)
    a("s_barrier                      ; 2b")
    a("s_branch L_FF0")
    a.label("L_A_pubg")
    a(f"global_store_dword v121, v10, {sp(sBA)} sc1")
    a("s_branch L_A_pubd")
    a.label("L_A_mlg")
    a(f"global_store_dwordx2 v14, v[12:13], {sp(sBB)} sc1")
    a("s_branch L_A_mld")


def sec_dump():
    if OPT["probe"]:
        a.label("L_dump")
        a("s_mov_b64 exec, 1")
        a(f"s_lshl3_add_u32 s{sT0}, s2, s{sWAVE}")
        a(f"s_lshl_b32 s{sT0}, s{sT0}, 4")
        base(sBA, sWS, sT0, STAMP)
        a("v_mov_b32 v4, 0")
        a(f"global_store_dwordx4 v4, v[160:163], {sp(sBA)} sc1")
        a("s_cmp_lg_u32 s2, 8")
        a("s_cbranch_scc1 L_exit")
        a(f"s_cmp_lg_u32 s{sWAVE}, 7")
        a("s_cbranch_scc1 L_exit")
        a("s_mov_b64 exec, -1")
        a("s_memrealtime s[60:61]")
        a("s_sleep 100")
        a("s_waitcnt vmcnt(0) lgkmcnt(0)")
        base(sBA, sWS, None, STAMP)
        a("v_lshlrev_b32 v4, 4, v0")
        for i in range(32):
            a(f"global_load_dwordx4 {vr(16 + 4 * i, 4)}, v4, {sp(sBA)} sc1")
            a("v_add_u32 v4, 0x400, v4")
        a("s_waitcnt vmcnt(0)")
        a("v_mov_b32 v8, v16")
        a("v_mov_b32 v9, 0")
        for i in range(1, 32):
            a(f"v_max_u32 v8, v8, v{16 + 4 * i}")
            a(f"v_min_u32 v16, v16, v{16 + 4 * i}")
            a(f"v_max_u32 v17, v17, v{17 + 4 * i}")
            a(f"v_add_u32 v18, v18, v{18 + 4 * i}")
            a(f"v_cmp_ne_u32 vcc, v19, v{19 + 4 * i}")
            a(f"v_addc_co_u32 v9, vcc, 0, v9, vcc")
        for op, r in (("v_max_u32", 8), ("v_min_u32", 16), ("v_max_u32", 17), ("v_add_u32", 18), ("v_add_u32", 9)):
            for n in (8, 4, 2, 1):
                a(f"{op}_dpp v{r}, v{r}, v{r} row_ror:{n} {DPPM}")
            cross_rows(op, r, 10)
        a("v_readfirstlane_b32 s50, v8")
        a("v_readfirstlane_b32 s51, v16")
        a("v_readfirstlane_b32 s53, v17")
        a("v_readfirstlane_b32 s52, v18")
        a("v_readfirstlane_b32 s56, v9")
        a("s_nop 3")
        p = OPT["probe"]
        if p == 1:
            a("s_sub_u32 s54, s50, s51")
        elif p == 2:
            a("s_sub_u32 s54, s60, s51")
        elif p == 3:
            a("s_mul_i32 s54, s52, 1")
        elif p == 4:
            a("s_lshr_b32 s54, s56, 1")
        elif p >= 100:
            a("s_sub_u32 s54, s53, s51")
        else:
            a("s_mov_b32 s54, 0")
        a("s_min_u32 s54, s54, 10000")
        a("s_add_u32 s54, s54, 3000")
        a.label("L_spin")
        a("s_memrealtime s[62:63]")
        a("s_waitcnt lgkmcnt(0)")
        a("s_sub_u32 s55, s62, s51")
        a("s_cmp_lt_u32 s55, s54")
        a("s_cbranch_scc1 L_spin")
    if OPT["stamps"]:
        a.label("L_dump")
        a("s_mov_b64 exec, -1")
        stamp(15)
        a(f"s_getreg_b32 s{sT0}, hwreg(HW_REG_XCC_ID)")
        a(f"v_writelane_b32 v126, s{sT0}, 14")
        a(f"s_lshl3_add_u32 s{sT0}, s2, s{sWAVE}")
        a(f"s_lshl_b32 s{sT0}, s{sT0}, 6")
        base(sBA, sWS, sT0, STAMP)
        a("v_lshlrev_b32 v4, 2, v0")
        set_exec(0xFFFF)
        a(f"global_store_dword v4, v126, {sp(sBA)}")
    a.label("L_exit")
    a("s_endpgm")


a(".p2align 12")
a.label("L_code0")
sec_wo()
sec_ln()
a(".p2align 8")
a(f".fill (4096-768-(.-L_code0))/4, 4, 0xbf810000")
a(f".type {NAME}_kernel,@function")
sec_entry()
sec_gm()
sec_gq()
sec_gb()
a(".p2align 12")
sec_att()
sec_down()
a(".p2align 12")
sec_ffn()
sec_dump()

body = a.finish()
hdr = open("cdna_kernels/" + NAME + ".s.ref").read().split("; Override launch geometry")[0]
out = hdr + f"""; Generated by a hand-written generator script; one persistent launch of 256 workgroups.
; @launch grid=(256,1,1) block=(512,1,1) lds={OPT['lds']}
.amdgcn_target "amdgcn-amd-amdhsa--gfx950"
.text
.globl {NAME}_kernel
{body}.section .rodata,"a"
.p2align 6
.amdhsa_kernel {NAME}_kernel
  .amdhsa_next_free_vgpr {OPT['vgpr']}
  .amdhsa_next_free_sgpr 102
  .amdhsa_accum_offset {OPT['vgpr']}
  .amdhsa_group_segment_fixed_size 0
  .amdhsa_kernarg_size 112
  .amdhsa_user_sgpr_count 2
  .amdhsa_user_sgpr_kernarg_segment_ptr 1
  .amdhsa_system_sgpr_workgroup_id_x 1
  .amdhsa_float_denorm_mode_32 3
.end_amdhsa_kernel
"""
open(sys.argv[1], "w").write(out)
```

```python
import sys
from asmlib import Asm

NAME = "adaLN_cond__sliding_block_cached__swiglu_ffn__decode"
OPT = dict(stamps=0, lds=84000, nt=1, limit=20000, pf=1, pfa=1, pfg=1, athr=8, nrep=32, qsleep=2, vgpr=160, psleep=0, ahelp=1, bhelp=1, wowait=1, pfpol=2, wpol=1, wopf=1, epair=1, wb=0, probe=0, pcls=0)
for arg in sys.argv[2:]:
    k, v = arg.split("=")
    assert k in OPT, k
    OPT[k] = int(v, 0)
if OPT["probe"]:
    OPT["vgpr"] = 168
NT = " nt" if OPT["nt"] else ""
NREP = OPT["nrep"]
NTW = " nt" if OPT["wpol"] else ""

H1 = 0x1000
CF = 0x3000
QS = 0x4000
H2G = 0x10000
FL = 0x20000
assert FL + 32 * NREP * 128 <= 0x60000
CLR = 0x60000
MODB = CLR
H4 = MODB + 0x4000
ACT = H4 + 0x8000
X1 = ACT + 0x4000
H3ML = X1 + 0x1000
H3O = H3ML + 0x1000
CLR_END = H3O + 0x20000
CLR_PER_WG = 7
assert CLR_END - CLR <= 32 * CLR_PER_WG * 1024
STAMP = 0x100000

LO = 0
LQ = 20480
LQF = LQ + 1024
LM = LQF + 64
LL = LM + 128
LY = 22016
LU = LY + 2048
LV = LU + 2048
LST = LV + 2048

sX, sK, sV, sWQ, sWO, sWG, sWU = 4, 6, 8, 10, 12, 16, 18
sWD, sC, sWM, sOUT, sDBG, sWS = 20, 22, 24, 26, 28, 30
sG, sM, sWAVE, sTAG = 14, 15, 3, 28
sLO, sHI, sCNT, sT0 = 96, 97, 98, 99
sBA, sBB, sBC = 32, 34, 36
sMK = 38
sT1, sT2, sT3, sT4 = 40, 41, 42, 43
sLOCAL, sKIND = 29, 44
sPC = 46
sSTAMP = 48 if False else 64
sQ = 32

LOG2E = 0x3FB8AA3B
SCALE = 0x3DB504F3
INV512 = 0x3B000000
EPS = 0x3727C5AC


def sp(r):
    return f"s[{r}:{r + 1}]"


def vr(a, n):
    return f"v[{a}:{a + n - 1}]" if n > 1 else f"v{a}"


a = Asm()
_uid = [0]


def uid(p):
    _uid[0] += 1
    return f"L_{p}{_uid[0]}"


CLS = [0]


def stamp(i):
    if OPT["probe"] == 100 + i and OPT["pcls"] == CLS[0]:
        a("s_memrealtime s[100:101]")
        a("s_waitcnt lgkmcnt(0)")
        a("v_writelane_b32 v161, s100, 0")
    if OPT["stamps"]:
        a("s_memrealtime s[100:101]")
        a("s_waitcnt lgkmcnt(0)")
        a(f"v_writelane_b32 v126, s100, {i}")


def finish_wave():
    a("s_branch L_dump" if OPT["stamps"] or OPT["probe"] else "s_endpgm")


def base(dst, ptr, off_s=None, off_imm=0):
    if off_s is not None and off_imm:
        a(f"s_add_u32 s{dst}, s{off_s}, {off_imm:#x}")
        a(f"s_add_u32 s{dst}, s{ptr}, s{dst}")
    elif off_s is not None:
        a(f"s_add_u32 s{dst}, s{ptr}, s{off_s}")
    else:
        a(f"s_add_u32 s{dst}, s{ptr}, {off_imm:#x}")
    a(f"s_addc_u32 s{dst + 1}, s{ptr + 1}, 0")


def set_exec(mask):
    if mask in (-1, 1):
        a(f"s_mov_b64 exec, {mask}")
    else:
        lo, hi = mask & 0xFFFFFFFF, mask >> 32
        a(f"s_mov_b32 exec_lo, {lo:#x}")
        a(f"s_mov_b32 exec_hi, {hi:#x}")


def prefetch(v, b, late=False):
    if not late and not OPT["epair"]:
        a(f"global_load_dword v127, v{v}, {sp(b)} nt")
        return
    if OPT["pfpol"] == 1:
        a(f"global_load_dword v127, v{v}, {sp(b)}")
    else:
        a(f"global_load_dword v127, v{v}, {sp(b)} nt")
    if OPT["pfpol"] == 2:
        a(f"global_load_dword v127, v{v}, {sp(b)} sc1")


def sels():
    a(f"s_mov_b32 s{sLO}, 0x05040100")
    a(f"s_mov_b32 s{sHI}, 0x07060302")


def perms8(W, F, waits=None):
    for x in range(4):
        if waits is not None:
            a(f"s_waitcnt vmcnt({waits[x]})")
        for e in range(8):
            sel = sHI if e & 1 else sLO
            a(f"v_perm_b32 v{F + 4 * e + x}, v{W + 4 * (2 * x + 1) + (e >> 1)}, v{W + 4 * (2 * x) + (e >> 1)}, s{sel}")


def unpack(dst, src, n):
    for i in range(n):
        a(f"v_lshlrev_b32 v{dst + 2 * i}, 16, v{src + i}")
        a(f"v_and_b32 v{dst + 2 * i + 1}, 0xffff0000, v{src + i}")


def round_bf16(regs):
    if len(regs) == 1:
        a(f"v_cvt_pk_bf16_f32 v{regs[0]}, v{regs[0]}, v{regs[0]}")
        a(f"v_lshlrev_b32 v{regs[0]}, 16, v{regs[0]}")
        return
    for i in range(0, len(regs), 2):
        a(f"v_cvt_pk_bf16_f32 v{regs[i + 1]}, v{regs[i]}, v{regs[i + 1]}")
    for i in range(0, len(regs), 2):
        a(f"v_lshlrev_b32 v{regs[i]}, 16, v{regs[i + 1]}")
        a(f"v_and_b32 v{regs[i + 1]}, 0xffff0000, v{regs[i + 1]}")


def poll_begin():
    lab = uid("poll")
    a(f"s_mov_b32 s{sCNT}, {OPT['limit']}")
    a.label(lab)
    return lab


def poll_mid(cnt="vmcnt(0)", sleep=None):
    sleep = OPT["psleep"] if sleep is None else sleep
    if sleep and cnt.startswith("vm"):
        a(f"s_sleep {sleep}")
    a(f"s_sub_u32 s{sCNT}, s{sCNT}, 1")
    a(f"s_cselect_b64 {sp(sMK)}, 0, -1")
    a(f"s_waitcnt {cnt}")


def poll_end(lab):
    a(f"s_and_b64 vcc, vcc, {sp(sMK)}")
    a(f"s_cbranch_scc1 {lab}")


def sentinel_ops(regs, tmp):
    regs = list(regs)
    out = []
    if len(regs) == 2:
        out.append(f"v_max_u32 v{tmp}, v{regs[0]}, v{regs[1]}")
    else:
        out.append(f"v_max3_u32 v{tmp}, v{regs[0]}, v{regs[1]}, v{regs[2]}")
        rest = regs[3:]
        while len(rest) >= 2:
            out.append(f"v_max3_u32 v{tmp}, v{tmp}, v{rest[0]}, v{rest[1]}")
            rest = rest[2:]
        if rest:
            out.append(f"v_max_u32 v{tmp}, v{tmp}, v{rest[0]}")
    out.append(f"v_cmp_eq_u32 vcc, -1, v{tmp}")
    return out


def interleave(major, minor, per):
    minor = list(minor)
    for ins in major:
        a(ins)
        for _ in range(per):
            if minor:
                a(minor.pop(0))
    for ins in minor:
        a(ins)


def make_tag(vE):
    a(f"v_readfirstlane_b32 s{sTAG}, v{vE}")
    a("s_nop 1")
    a(f"s_mul_i32 s{sTAG}, s{sTAG}, 1664525")
    a(f"s_add_u32 s{sTAG}, s{sTAG}, 1013904223")


DPPM = "row_mask:0xf bank_mask:0xf"


def row_allsum(v):
    for n in (8, 4, 2, 1):
        a(f"v_add_f32_dpp v{v}, v{v}, v{v} row_ror:{n} {DPPM}")


def cross_rows(op, v, tmp):
    a(f"v_mov_b32 v{tmp}, v{v}")
    a(f"v_permlane16_swap_b32 v{tmp}, v{v}")
    a(f"{op} v{v}, v{v}, v{tmp}")
    a(f"v_mov_b32 v{tmp}, v{v}")
    a(f"v_permlane32_swap_b32 v{tmp}, v{v}")
    a(f"{op} v{v}, v{v}, v{tmp}")


def mfma(d, x, y, c=None):
    return f"v_mfma_f32_16x16x32_bf16 {vr(d, 4)}, {vr(x, 4)}, {vr(y, 4)}, {vr(c, 4) if c is not None else 0}"


def diagX_reduce(ACC, T):
    for e in range(8):
        a(f"v_add_f32_dpp v{T + e}, v{ACC + 4 * e + 1}, v{ACC + 4 * e} row_shl:4 {DPPM}")
    for e in range(8):
        a(f"v_add_f32_dpp v{T + e}, v{ACC + 4 * e + 2}, v{T + e} row_shl:8 {DPPM}")
    for e in range(8):
        a(f"v_add_f32_dpp v{T + e}, v{ACC + 4 * e + 3}, v{T + e} row_shl:12 {DPPM}")


def sum8_b64(r):
    for t in range(4):
        a(f"v_pk_add_f32 v[{r + 4 * t}:{r + 4 * t + 1}], v[{r + 4 * t}:{r + 4 * t + 1}], v[{r + 4 * t + 2}:{r + 4 * t + 3}]")
    a(f"v_pk_add_f32 v[{r}:{r + 1}], v[{r}:{r + 1}], v[{r + 4}:{r + 5}]")
    a(f"v_pk_add_f32 v[{r + 8}:{r + 9}], v[{r + 8}:{r + 9}], v[{r + 12}:{r + 13}]")
    a(f"v_pk_add_f32 v[{r}:{r + 1}], v[{r}:{r + 1}], v[{r + 8}:{r + 9}]")


def modb_loads():
    a(f"global_load_dwordx4 v[132:135], v124, {sp(sBA)} offset:-4096 sc1")
    a(f"global_load_dwordx4 v[136:139], v124, {sp(sBA)} sc1")
    a(f"global_load_dwordx4 v[140:143], v125, {sp(sBA)} sc1")


W, F, ACC = 16, 48, 16
KR, VR, SA, VT, OA = 16, 48, 80, 16, 80


def sec_ffn():
    CLS[0] = 1
    a.label("L_FF")
    a(f"s_cmp_ge_u32 s{sM}, 14")
    a("s_cbranch_scc1 L_fin2")
    a(f"s_mul_i32 s{sT0}, s{sG}, 14")
    a(f"s_add_u32 s{sT0}, s{sT0}, s{sM}")
    a(f"s_lshl_b32 s{sT0}, s{sT0}, 5")
    a(f"s_mul_i32 s{sT1}, s{sT4}, {128 * 3584}")
    a(f"s_add_u32 s{sT0}, s{sT0}, s{sT1}")
    a(f"s_add_u32 s{sT0}, s{sT0}, 3584")
    a("v_lshrrev_b32 v6, 1, v3")
    a("v_and_b32 v7, 1, v3")
    a("v_and_b32 v5, 3, v1")
    a("v_lshlrev_b32 v8, 6, v6")
    a("v_lshl_add_u32 v8, v7, 2, v8")
    a("v_lshl_add_u32 v8, v5, 3, v8")
    a("v_mul_u32_u24 v10, 3584, v8")
    a("v_and_b32 v9, 1, v2")
    a("v_lshl_add_u32 v10, v9, 4, v10")
    a(f"v_add_u32 v10, s{sT0}, v10")
    a("v_mov_b32 v11, 0")
    a("v_cmp_lt_u32 vcc, 1, v2")
    a(f"v_mov_b32 v12, s{sWG}")
    a(f"v_mov_b32 v13, s{sWG + 1}")
    a(f"v_mov_b32 v14, s{sWU}")
    a(f"v_mov_b32 v15, s{sWU + 1}")
    a("v_cndmask_b32 v12, v12, v14, vcc")
    a("v_cndmask_b32 v13, v13, v15, vcc")
    a("v_lshl_add_u64 v[12:13], v[10:11], 0, v[12:13]      ; row +1")
    a(f"v_mov_b32 v10, {2 * 3584}")
    a("v_lshl_add_u64 v[14:15], v[10:11], 0, v[12:13]      ; row +3")
    a(f"v_mov_b32 v10, {32 * 3584}")
    a(f"s_lshl_b32 s{sT0}, s{sT4}, 10")
    a("v_and_b32 v9, 15, v0")
    a("s_barrier")
    for half in range(2):
        for jj in range(4):
            r, off = ((12, 3584 * (jj - 1)) if jj < 3 else (14, 0))
            a(f"global_load_dwordx4 {vr(W + 16 * half + 4 * jj, 4)}, v[{r}:{r + 1}], off offset:{off}{NTW}")
        if half == 0:
            a("v_lshl_add_u64 v[12:13], v[10:11], 0, v[12:13]")
            a("v_lshl_add_u64 v[14:15], v[10:11], 0, v[14:15]")
    a("v_lshlrev_b32 v12, 4, v9")
    a("v_lshl_add_u32 v12, v3, 12, v12")
    a("s_waitcnt vmcnt(8)")
    for ins in sentinel_ops(range(132, 144), 14):
        a(ins)
    a("s_cbranch_vccz L_FF1")
    lab = poll_begin()
    modb_loads()
    poll_mid()
    for ins in sentinel_ops(range(132, 144), 14):
        a(ins)
    poll_end(lab)
    a.label("L_FF1")
    stamp(7)
    XV, GA, P0, P1 = 96, 104, 112, 84
    unpack(XV, 128, 4)
    unpack(GA, 132, 4)
    unpack(P0, 140, 4)
    for i in range(8):
        a(f"v_add_f32 v{P0 + i}, 1.0, v{P0 + i}")
    for i in range(4):
        a(f"v_cvt_pk_bf16_f32 v{92 + i}, v{P0 + 2 * i}, v{P0 + 2 * i + 1}")
    unpack(P0, 92, 4)
    perms8(W, F, waits=[6, 4, 2, 0])
    stamp(9)
    for e in range(8):
        a(mfma(ACC + 4 * e, 136, F + 4 * e))
    a(f"s_lshl_b32 s{sT1}, s{sT4}, 9")
    a(f"s_add_u32 s{sT1}, s{sT1}, {LY}")
    a("v_lshlrev_b32 v5, 7, v3")
    a("v_lshl_add_u32 v5, v2, 5, v5")
    a(f"v_add_u32 v5, s{sT1}, v5")
    diagX_reduce(ACC, 80)
    for e in range(8):
        a(mfma(ACC + 4 * e, 92, F + 4 * e))
    set_exec(0x000F000F000F000F)
    a(f"ds_write_b128 v5, v[80:83] offset:{LV - LY}")
    a(f"ds_write_b128 v5, v[84:87] offset:{LV - LY + 16}")
    set_exec(-1)
    a("s_waitcnt lgkmcnt(0)")
    diagX_reduce(ACC, 80)
    set_exec(0x000F000F000F000F)
    a(f"ds_write_b128 v5, v[80:83] offset:{LU - LY}")
    a(f"ds_write_b128 v5, v[84:87] offset:{LU - LY + 16}")
    set_exec(-1)
    a("s_waitcnt lgkmcnt(0)")
    a("s_barrier                      ; 3: u, v partials")
    for i in range(8):
        a(f"v_mul_f32 v{P1 + i}, v{GA + i}, v{P0 + i}")
    for i in range(8):
        a(f"v_mul_f32 v{P0 + i}, v{XV + i}, v{P0 + i}")
    a("v_and_b32 v6, 1, v0")
    a("v_lshlrev_b32 v6, 4, v6")
    a("v_mov_b32 v7, 0x3f80")
    a("v_lshlrev_b32 v6, v6, v7")
    a("v_lshrrev_b32 v7, 1, v9")
    for x in range(8):
        a(f"v_cmp_eq_u32 vcc, {x}, v7")
        a(f"v_cndmask_b32 v{(120 + x) if x < 4 else (88 + x)}, 0, v6, vcc")
    base(sBA, sWS, sT0, H4)
    base(sBB, sWS, sT0, X1)
    a("v_add_u32 v13, 0x4000, v12")
    a(f"s_lshl_b32 s{sT1}, s{sT4}, 2")
    a(f"s_add_u32 s{sT1}, s{sT1}, {LST}")
    a("v_and_b32 v6, 3, v1")
    a("v_lshlrev_b32 v6, 5, v6")
    a("v_lshl_add_u32 v6, v3, 3, v6")
    a(f"v_add_u32 v6, s{sT1}, v6")
    stamp(8)
    lab = poll_begin()
    for t in range(4):
        for hf in range(2):
            a(f"global_load_dwordx4 {vr(16 + 8 * t + 4 * hf, 4)}, v{12 + hf}, {sp(sBA)} offset:{256 * t} sc1")
    poll_mid()
    AT = 8
    seq = [mfma(80, 120, 16), mfma(8, 120, 24), mfma(80, 120, 20, 80), mfma(8, 120, 28, 8),
           mfma(80, 92, 32, 80), mfma(8, 92, 40, 8), mfma(80, 92, 36, 80), mfma(8, 92, 44, 8)]
    interleave(seq, sentinel_ops(range(16, 48), 14), 2)
    poll_end(lab)
    att = [80, 82, 8, 10]
    for i in range(4):
        a(f"v_pk_fma_f32 v[{P0 + 2 * i}:{P0 + 2 * i + 1}], v[{att[i]}:{att[i] + 1}], v[{P1 + 2 * i}:{P1 + 2 * i + 1}], v[{P0 + 2 * i}:{P0 + 2 * i + 1}]")
    for i in range(4):
        a(f"v_cvt_pk_bf16_f32 v{84 + i}, v{P0 + 2 * i}, v{P0 + 2 * i + 1}")
    st = []
    for i in range(4):
        st.append(f"v_pk_fma_f32 v[{XV + 2 * i}:{XV + 2 * i + 1}], v[{att[i]}:{att[i] + 1}], v[{GA + 2 * i}:{GA + 2 * i + 1}], v[{XV + 2 * i}:{XV + 2 * i + 1}]")
    st.append(f"v_pk_mul_f32 v[8:9], v[{XV}:{XV + 1}], v[{XV}:{XV + 1}]")
    st.append(f"v_pk_add_f32 v[14:15], v[{XV}:{XV + 1}], v[{XV + 2}:{XV + 3}]")
    for i in range(1, 4):
        st.append(f"v_pk_fma_f32 v[8:9], v[{XV + 2 * i}:{XV + 2 * i + 1}], v[{XV + 2 * i}:{XV + 2 * i + 1}], v[8:9]")
        if i > 1:
            st.append(f"v_pk_add_f32 v[14:15], v[14:15], v[{XV + 2 * i}:{XV + 2 * i + 1}]")
    st.append("v_add_f32 v8, v8, v9")
    st.append("v_add_f32 v14, v14, v15")
    st.append("v_permlane32_swap_b32 v14, v8")
    st.append("v_add_f32 v14, v14, v8")
    interleave([mfma(ACC + 4 * e, 84, F + 4 * e) for e in range(8)], st, 2)
    d1 = [f"v_add_f32_dpp v{104 + e}, v{ACC + 4 * e + 1}, v{ACC + 4 * e} row_shl:4 {DPPM}" for e in range(8)]
    d2 = [f"v_add_f32_dpp v{104 + e}, v{ACC + 4 * e + 2}, v{104 + e} row_shl:8 {DPPM}" for e in range(8)]
    d3 = [f"v_add_f32_dpp v{104 + e}, v{ACC + 4 * e + 3}, v{104 + e} row_shl:12 {DPPM}" for e in range(8)]
    for ins in d1[:3]:
        a(ins)
    a(f"v_add_f32_dpp v14, v14, v14 quad_perm:[1,0,3,2] {DPPM}")
    for ins in d1[3:6]:
        a(ins)
    a(f"v_add_f32_dpp v14, v14, v14 quad_perm:[2,3,0,1] {DPPM}")
    for ins in d2[:3]:
        a(ins)
    a("v_mov_b32 v15, v14")
    for ins in d1[6:] + d2[3:5]:
        a(ins)
    a("v_permlane16_swap_b32 v15, v14")
    for ins in d2[5:]:
        a(ins)
    a("v_add_f32 v14, v14, v15")
    for ins in d3:
        a(ins)
    set_exec(0x000F000F000F000F)
    a("ds_write_b128 v5, v[104:107]")
    a("ds_write_b128 v5, v[108:111] offset:16")
    set_exec(0x0000111100001111)
    a("ds_write_b32 v6, v14")
    set_exec(-1)
    a("s_waitcnt lgkmcnt(0)")
    a("s_barrier")
    stamp(10)
    a(f"s_cmp_lg_u32 s2, {(16 + 13) * 8}")
    a("s_cbranch_scc1 L_fin2")
    for i in range(4):
        a(f"v_cvt_pk_bf16_f32 v{16 + i}, v{XV + 2 * i}, v{XV + 2 * i + 1}")
    a(f"global_store_dwordx4 v124, v[16:19], {sp(sBB)} sc1")
    a.label("L_fin2")
    finish_wave()

    a.label("L_FF0")
    a(f"s_cmp_ge_u32 s{sM}, 14")
    a("s_cbranch_scc1 L_fin2")
    a(f"s_cmp_lg_u32 s{sWAVE}, 0")
    a("s_cbranch_scc1 L_fin2")
    a("v_bfe_u32 v8, v0, 3, 2")
    a("v_lshlrev_b32 v5, 7, v8")
    a("v_and_b32 v6, 7, v0")
    a("v_lshl_add_u32 v5, v6, 3, v5")
    a("v_lshrrev_b32 v6, 5, v0")
    a("v_lshl_add_u32 v5, v6, 2, v5")
    a("v_add_u32 v6, 64, v5")
    a("v_lshlrev_b32 v8, 5, v8")
    a(f"s_mul_i32 s{sT0}, s{sG}, 14")
    a(f"s_add_u32 s{sT0}, s{sT0}, s{sM}")
    a(f"s_lshl_b32 s{sT0}, s{sT0}, 7")
    base(sBA, sWS, sT0, ACT)
    a("v_lshlrev_b32 v7, 2, v0")
    a(f"s_mov_b32 s{sT1}, {INV512:#x}")
    a("s_barrier                      ; 3")
    for k, L0 in enumerate((LU, LV)):
        o = L0 // 256
        a(f"ds_read2st64_b32 v[{16 + 8 * k}:{17 + 8 * k}], v5 offset0:{o} offset1:{o + 2}")
        a(f"ds_read2st64_b32 v[{18 + 8 * k}:{19 + 8 * k}], v5 offset0:{o + 4} offset1:{o + 6}")
        a(f"ds_read2st64_b32 v[{20 + 8 * k}:{21 + 8 * k}], v6 offset0:{o} offset1:{o + 2}")
        a(f"ds_read2st64_b32 v[{22 + 8 * k}:{23 + 8 * k}], v6 offset0:{o + 4} offset1:{o + 6}")
    a("s_waitcnt lgkmcnt(0)")
    for k in range(4):
        a(f"v_pk_add_f32 v[{16 + 4 * k}:{17 + 4 * k}], v[{16 + 4 * k}:{17 + 4 * k}], v[{18 + 4 * k}:{19 + 4 * k}]")
    for k in range(4):
        a(f"v_add_f32 v{40 + k}, v{16 + 4 * k}, v{17 + 4 * k}")
    a("s_barrier                      ; 4")
    o = LY // 256
    a(f"ds_read_b128 v[24:27], v8 offset:{LST}")
    a(f"ds_read_b128 v[28:31], v8 offset:{LST + 16}")
    a(f"ds_read2st64_b32 v[16:17], v5 offset0:{o} offset1:{o + 2}")
    a(f"ds_read2st64_b32 v[18:19], v5 offset0:{o + 4} offset1:{o + 6}")
    a(f"ds_read2st64_b32 v[20:21], v6 offset0:{o} offset1:{o + 2}")
    a(f"ds_read2st64_b32 v[22:23], v6 offset0:{o + 4} offset1:{o + 6}")
    a("s_waitcnt lgkmcnt(4)")
    a("v_pk_add_f32 v[24:25], v[24:25], v[26:27]")
    a("v_pk_add_f32 v[28:29], v[28:29], v[30:31]")
    a("v_add_f32 v24, v24, v25")
    a("v_add_f32 v28, v28, v29")
    a(f"v_mul_f32 v24, s{sT1}, v24             ; mean")
    a("v_mul_f32 v25, v24, v24")
    a(f"v_fma_f32 v28, v28, s{sT1}, -v25       ; variance")
    a("v_max_f32 v28, 0, v28")
    a(f"v_add_f32 v28, {EPS:#x}, v28")
    a("v_rsq_f32 v28, v28")
    a("s_waitcnt lgkmcnt(0)")
    a("v_pk_add_f32 v[16:17], v[16:17], v[18:19]")
    a("v_pk_add_f32 v[20:21], v[20:21], v[22:23]")
    a("v_add_f32 v16, v16, v17")
    a("v_add_f32 v17, v20, v21")
    a("v_fma_f32 v16, -v24, v40, v16")
    a("v_fma_f32 v17, -v24, v41, v17")
    a("v_fma_f32 v16, v16, v28, v42          ; gate")
    a("v_fma_f32 v17, v17, v28, v43          ; up")
    a(f"v_mul_f32 v18, {0x80000000 | LOG2E:#x}, v16")
    a("v_exp_f32 v18, v18")
    a("v_mul_f32 v16, v16, v17")
    a("v_add_f32 v18, 1.0, v18")
    a("v_rcp_f32 v18, v18")
    a("v_mul_f32 v16, v16, v18")
    a("v_mov_b32 v17, v16")
    a("v_permlane32_swap_b32 v16, v17")
    a("v_cvt_pk_bf16_f32 v16, v16, v17")
    set_exec(0xFFFFFFFF)
    a(f"global_store_dword v7, v16, {sp(sBA)} sc1")
    stamp(11)
    finish_wave()


def wq_pf():
    a(f"s_lshl_b32 s{sT0}, s{sT0}, 6")
    a(f"s_add_u32 s{sT0}, s{sT0}, s{sT1}")
    a(f"s_lshl_b32 s{sT0}, s{sT0}, 10")
    a("v_lshlrev_b32 v8, 13, v14")
    a("v_lshl_add_u32 v8, v15, 7, v8")
    a(f"v_add_u32 v8, s{sT0}, v8")
    prefetch(8, sWQ)


def sec_entry():
    a(f"{NAME}_kernel:")
    a("s_load_dwordx16 s[4:19], s[0:1], 0")
    a("s_load_dwordx8 s[20:27], s[0:1], 64")
    a("s_load_dwordx2 s[30:31], s[0:1], 104")
    if OPT["stamps"]:
        a("v_mov_b32 v126, 0")
        a("s_memrealtime s[100:101]")
    if OPT["probe"]:
        a("s_memrealtime s[100:101]")
    a("s_cmp_ge_u32 s2, 256")
    a("s_cbranch_scc1 L_exit")
    a("v_lshrrev_b32 v1, 6, v0")
    if OPT["pf"]:
        a(f"s_getpc_b64 {sp(sPC)}")
        a.label("L_pc0")
        a("v_lshlrev_b32 v2, 7, v0")
    a(f"v_readfirstlane_b32 s{sWAVE}, v1")
    if OPT["pf"]:
        a(f"s_sub_u32 s{sPC}, s{sPC}, L_pc0-L_code0")
        a(f"s_subb_u32 s{sPC + 1}, s{sPC + 1}, 0")
        a("v_cmp_gt_u32 vcc, (L_exit-L_code0)/128, v0")
        a("s_cbranch_vccz L_nopf")
        a("s_mov_b64 exec, vcc")
        a(f"global_load_dword v127, v2, {sp(sPC)}")
        a("s_mov_b64 exec, -1")
        a.label("L_nopf")
    a("v_and_b32 v0, 63, v0")
    a(f"s_and_b32 s{sT1}, s2, 7")
    a(f"s_lshr_b32 s{sT2}, s2, 3")
    a("v_lshrrev_b32 v1, 2, v0        ; l>>2")
    a("v_and_b32 v2, 3, v0            ; l&3")
    a("v_lshrrev_b32 v3, 4, v0        ; l>>4")
    a("v_mov_b32 v4, 0")
    a("v_and_b32 v5, 3, v1")
    a("v_lshrrev_b32 v14, 3, v0")
    a("v_and_b32 v15, 7, v0")
    a("s_cmp_lt_u32 s2, 128")
    a("s_cbranch_scc1 L_G")
    a(f"s_sub_u32 s{sT2}, s{sT2}, 16             ; a = 4b + s")
    a(f"s_and_b32 s{sT0}, s{sT2}, 12")
    a(f"s_lshl_b32 s{sT0}, s{sT0}, 1")
    a(f"s_add_u32 s{sT0}, s{sT0}, s{sT1}")
    a(f"s_lshl_b32 s{sT0}, s{sT0}, 4")
    a(f"s_and_b32 s{sT3}, s{sT2}, 3")
    a(f"s_add_u32 s{sT0}, s{sT0}, s{sT3}")
    a(f"s_lshl_b32 s{sT0}, s{sT0}, 3")
    a(f"s_add_u32 s{sT0}, s{sT0}, s{sWAVE}")
    a(f"s_lshl_b32 s{sT0}, s{sT0}, 13")
    a(f"s_add_u32 s{sT0}, s{sT0}, {3072 * 256 + 4096}")
    a("v_lshlrev_b32 v6, 8, v5")
    a("v_lshl_add_u32 v6, v3, 6, v6")
    a("v_lshl_add_u32 v6, v2, 4, v6")
    a("v_lshlrev_b32 v7, 4, v0")
    a("v_lshlrev_b32 v8, 2, v2")
    a(f"ds_write_b32 v8, v4 offset:{LQF}")
    a("s_waitcnt lgkmcnt(0)")
    a("s_barrier                      ; 0")
    base(sBA, sK, sT0)
    base(sBB, sV, sT0)
    a(f"global_load_dword v12, v4, {sp(sWS)} sc1      ; epoch")
    if OPT["ahelp"]:
        a(f"s_cmp_lg_u32 s{sWAVE}, 0")
        a("s_cbranch_scc1 L_nopfq")
        a(f"s_add_u32 s{sT0}, s{sT2}, 48")
        wq_pf()
        a.label("L_nopfq")
    if OPT["athr"] < 8:
        a(f"s_cmp_lt_u32 s{sWAVE}, {OPT['athr']}")
        a("s_cbranch_scc1 L_Ald")
        a("s_waitcnt vmcnt(0)")
        a.label("L_Ald")
    for u in range(8):
        a(f"global_load_dwordx4 {vr(KR + 4 * u, 4)}, v6, {sp(sBA)} offset:{1024 * u - 4096}{NT}")
    for u in range(8):
        a(f"global_load_dwordx4 {vr(VR + 4 * u, 4)}, v7, {sp(sBB)} offset:{1024 * u - 4096}{NT}")
    a("s_branch L_A2")
    a.label("L_G")
    a(f"s_and_b32 s{sT3}, s{sT2}, 1")
    a(f"s_lshr_b32 s{sT0}, s{sT2}, 2")
    a(f"s_and_b32 s{sT0}, s{sT0}, 2")
    a(f"s_or_b32 s{sKIND}, s{sT3}, s{sT0}")
    if OPT["pfa"]:
        a("v_lshrrev_b32 v6, 1, v0")
        a(f"v_lshl_add_u32 v6, s{sT2}, 5, v6")
        a("v_mul_u32_u24 v6, 6144, v6")
        a("v_and_b32 v7, 1, v0")
        a("v_lshl_add_u32 v6, v7, 10, v6")
        a(f"v_lshl_add_u32 v6, s{sT1}, 7, v6")
        a(f"s_cmp_lg_u32 s{sWAVE}, 0")
        a("s_cbranch_scc1 L_nopfa")
        a("s_waitcnt lgkmcnt(0)")
        prefetch(6, sWM)
        a.label("L_nopfa")
    a(f"s_bfe_u32 s{sT0}, s{sT2}, 0x20001")
    a(f"s_lshl2_add_u32 s{sCNT}, s{sT1}, s{sT0}      ; p = 4g + ((m>>1)&3)")
    a(f"s_cmp_eq_u32 s{sKIND}, 1")
    a("s_cbranch_scc1 L_GA")
    a(f"s_sub_u32 s{sT4}, s{sWAVE}, 1")
    a(f"s_cmp_ge_u32 s{sT4}, 4")
    a("s_cbranch_scc1 L_nopfw")
    a(f"s_lshr_b32 s{sT0}, s{sT2}, 1")
    a(f"s_lshl2_add_u32 s{sT0}, s{sT3}, s{sT0}")
    a(f"s_lshl2_add_u32 s{sT0}, s{sT0}, s{sT4}")
    a("s_waitcnt lgkmcnt(0)")
    wq_pf()
    a.label("L_nopfw")
    a(f"s_cmp_eq_u32 s{sKIND}, 3")
    a("s_cbranch_scc1 L_GB")
    a(f"s_lshl_b32 s{sT0}, s{sWAVE}, 9")
    a(f"s_add_u32 s{sT0}, s{sT0}, s{sT1}")
    a(f"s_lshl4_add_u32 s{sT0}, s{sT0}, s{sT2}")
    a(f"s_lshl_b32 s{sT0}, s{sT0}, 6")
    a("v_lshlrev_b32 v6, 16, v14")
    a("v_lshl_add_u32 v6, v15, 4, v6")
    a(f"s_movk_i32 s{sT3}, 8192")
    a(f"s_lshr_b32 s{sT4}, s{sT2}, 2")
    a(f"s_lshl2_add_u32 s{sT4}, s{sT1}, s{sT4}")
    a(f"s_mul_i32 s{sT4}, s{sT4}, {NREP * 128}")
    a(f"s_and_b32 s{sCNT}, s{sT2}, 2")
    a(f"s_add_u32 s{sCNT}, s{sCNT}, s{sWAVE}")
    a(f"s_lshl2_add_u32 s{sT4}, s{sCNT}, s{sT4}")
    a(f"s_add_u32 s{sT4}, s{sT4}, {FL:#x}")
    a(f"v_and_b32 v96, {NREP - 1}, v0")
    a(f"v_lshl_add_u32 v96, v96, 7, s{sT4}")
    a("s_waitcnt lgkmcnt(0)")
    base(sBB, sWQ, sT0)
    a(f"global_load_dword v12, v4, {sp(sWS)} sc1      ; epoch")
    a(f"s_cmp_lg_u32 s{sWAVE}, 1")
    a("s_cbranch_scc1 L_G_ld")
    a(f"global_load_dword v127, v96, {sp(sWS)} sc1")
    a.label("L_G_ld")
    for j in range(8):
        a(f"global_load_dwordx4 {vr(W + 4 * j, 4)}, v6, {sp(sBB)}{NT}")
        if j < 7:
            a(f"v_add_u32 v6, s{sT3}, v6")
    a(f"s_cmp_eq_u32 s{sKIND}, 1")
    a("s_cbranch_scc0 L_GQ2")
    a("s_branch L_GM2")
    a.label("L_GA")
    a(f"s_cmp_ge_u32 s{sWAVE}, 4")
    a("s_cbranch_scc1 L_GQA")
    a(f"s_lshl_b32 s{sT0}, s{sCNT}, 5")
    a(f"s_mul_i32 s{sT3}, s{sWAVE}, {128 * 6144}")
    a(f"s_add_u32 s{sT0}, s{sT0}, s{sT3}")
    a("v_lshlrev_b32 v5, 10, v5")
    a("v_lshl_add_u32 v5, v3, 6, v5")
    a("v_lshl_add_u32 v5, v2, 4, v5")
    a(f"v_lshl_add_u32 v5, s{sWAVE}, 8, v5")
    a("v_mul_u32_u24 v6, 49152, v1")
    a("v_and_b32 v7, 1, v2")
    a("v_lshl_add_u32 v6, v7, 4, v6")
    a("v_lshrrev_b32 v7, 1, v2")
    a("v_lshl_add_u32 v6, v7, 10, v6")
    a("v_mov_b32 v96, 0")
    a(f"s_movk_i32 s{sT3}, 6144")
    a("s_waitcnt lgkmcnt(0)")
    base(sBB, sWM, sT0)
    a(f"global_load_dwordx4 v[8:11], v5, {sp(sC)}")
    a("s_branch L_G_ld")
    a.label("L_GQA")
    a("s_setprio 3")
    a("v_and_b32 v7, 15, v0")
    a("v_lshlrev_b32 v13, 10, v3")
    a("v_lshl_add_u32 v14, v7, 4, v13")
    a("v_lshl_add_u32 v15, v7, 1, v13")
    a(f"v_lshl_add_u32 v15, s{sCNT}, 5, v15")
    a("s_waitcnt lgkmcnt(0)")
    a(f"s_cmp_lg_u32 s{sWAVE}, 7")
    a("s_cbranch_scc1 L_GQA2")
    a(f"global_load_dword v12, v4, {sp(sWS)} sc1      ; epoch")
    for t in range(4):
        a(f"global_load_dwordx4 {vr(80 + 4 * t, 4)}, v14, {sp(sX)} offset:{256 * t}")
    a(f"global_load_ushort v13, v15, {sp(sX)}")
    a("s_branch L_GQA2")
    a.label("L_GB")
    a(f"s_cmp_lg_u32 s{sWAVE}, 7")
    a("s_cbranch_scc1 L_GB1")
    a("s_setprio 3")
    a(f"s_mul_i32 s{sT0}, s{sCNT}, {CLR_PER_WG * 1024}")
    a("v_lshlrev_b32 v6, 4, v0")
    for i in range(4):
        a(f"v_mov_b32 v{8 + i}, -1")
    a("s_waitcnt lgkmcnt(0)")
    base(sBA, sWS, sT0, CLR + 4096)
    a(f"global_load_dword v12, v4, {sp(sWS)} sc1      ; epoch")
    for i in range(CLR_PER_WG):
        a(f"global_store_dwordx4 v6, v[8:11], {sp(sBA)} offset:{1024 * i - 4096} sc1")
    a("s_branch L_GB2")


def ids():
    a(f"s_mov_b32 s{sG}, s{sT1}")
    a(f"s_mov_b32 s{sM}, s{sT2}")
    sels()
    if OPT["stamps"]:
        a("v_writelane_b32 v126, s100, 0")
    if OPT["probe"]:
        a("v_mov_b32 v160, s100")
        a("v_mov_b32 v161, s100")
        a("v_mov_b32 v162, 0")
        a(f"s_getreg_b32 s100, hwreg(HW_REG_XCC_ID, 0, 4)")
        a("v_mov_b32 v163, s100")


def silu_frag():
    unpack(80, 8, 4)
    for i in range(8):
        a(f"v_mul_f32 v{88 + i}, {0x80000000 | LOG2E:#x}, v{80 + i}")
    for i in range(8):
        a(f"v_exp_f32 v{88 + i}, v{88 + i}")
    for i in range(8):
        a(f"v_add_f32 v{88 + i}, 1.0, v{88 + i}")
    for i in range(8):
        a(f"v_rcp_f32 v{88 + i}, v{88 + i}")
    for i in range(8):
        a(f"v_mul_f32 v{80 + i}, v{80 + i}, v{88 + i}")
    for i in range(4):
        a(f"v_cvt_pk_bf16_f32 v{8 + i}, v{80 + 2 * i}, v{81 + 2 * i}")


def xcc_flag():
    a(f"s_lshr_b32 s{sT0}, s{sM}, 2")
    a(f"s_lshl2_add_u32 s{sT0}, s{sG}, s{sT0}")
    a(f"s_mul_i32 s{sT0}, s{sT0}, {NREP * 128}")
    a(f"s_and_b32 s{sT1}, s{sM}, 2")
    a(f"s_lshl1_add_u32 s{sT0}, s{sT1}, s{sT0}")
    a(f"s_add_u32 s{sT0}, s{sT0}, {FL + 16:#x}")
    a(f"v_and_b32 v5, {NREP - 1}, v0")
    a(f"v_lshl_add_u32 v5, v5, 7, s{sT0}")
    a(f"s_getreg_b32 s{sT0}, hwreg(HW_REG_XCC_ID, 0, 4)")
    a(f"s_xor_b32 s{sT0}, s{sTAG}, s{sT0}")
    a(f"v_mov_b32 v6, s{sT0}")
    a(f"global_store_dword v5, v6, {sp(sWS)}")


def cf_poll():
    base(sBB, sWS, None, CF)
    a("v_and_b32 v5, 31, v0")
    a("v_lshlrev_b32 v5, 7, v5")
    lab = poll_begin()
    a(f"global_load_dword v6, v5, {sp(sBB)} sc1")
    poll_mid(sleep=4)
    a(f"v_cmp_ne_u32 vcc, s{sTAG}, v6")
    poll_end(lab)


def tile64_tail(first):
    for e in range(first, 8):
        a(mfma(ACC + 4 * e, 8, F + 4 * e))
    for e in range(8):
        a(f"v_add_f32_dpp v{80 + e}, v{ACC + 4 * e + 1}, v{ACC + 4 * e} row_shl:8 {DPPM}")
    set_exec(0x00FF00FF00FF00FF)
    a("ds_write_b128 v6, v[80:83]")
    a("ds_write_b128 v6, v[84:87] offset:16")
    set_exec(-1)


def tile64_addr():
    a("v_lshlrev_b32 v6, 8, v3")
    a("v_lshl_add_u32 v6, v15, 5, v6")
    a(f"v_lshl_add_u32 v6, s{sWAVE}, 10, v6")
    a("v_lshlrev_b32 v7, 3, v0")
    a(f"v_lshl_add_u32 v7, s{sWAVE}, 9, v7")


def tile64_sum():
    for t in range(4):
        a(f"ds_read2st64_b64 {vr(16 + 4 * t, 4)}, v7 offset0:{4 * t} offset1:{4 * t + 2}")


def sec_gm():
    CLS[0] = 4
    a.label("L_GM2")
    ids()
    stamp(1)
    a("s_waitcnt vmcnt(8)")
    silu_frag()
    a("v_lshlrev_b32 v5, 7, v3")
    a("v_lshl_add_u32 v5, v2, 5, v5")
    a(f"v_lshl_add_u32 v5, s{sWAVE}, 9, v5")
    perms8(W, F, waits=[6, 4, 2, 0])
    for e in range(8):
        a(mfma(ACC + 4 * e, 8, F + 4 * e))
    diagX_reduce(ACC, 48)
    set_exec(0x000F000F000F000F)
    a("ds_write_b128 v5, v[48:51]")
    a("ds_write_b128 v5, v[52:55] offset:16")
    set_exec(-1)
    a("s_waitcnt lgkmcnt(0)")
    stamp(2)
    a("s_barrier                      ; 1")
    if OPT["bhelp"]:
        a(f"s_lshl1_add_u32 s{sT0}, s{sM}, s{sWAVE}")
        a(f"s_add_u32 s{sT0}, s{sT0}, 14")
        a(f"s_mul_i32 s{sT0}, s{sT0}, {16 * 6144}")
        a(f"s_lshl_b32 s{sT1}, s{sG}, 9")
        a(f"s_add_u32 s{sT0}, s{sT0}, s{sT1}")
        a(f"s_add_u32 s{sT0}, s{sT0}, 2048")
        a("v_mul_u32_u24 v8, 6144, v1")
        a("v_lshl_add_u32 v8, v2, 7, v8")
        a(f"v_add_u32 v8, s{sT0}, v8")
        a("s_barrier")
        prefetch(8, sWM)
    a("s_branch L_WO")


def sec_gb():
    CLS[0] = 2
    a.label("L_GB1")
    a("s_waitcnt lgkmcnt(0)")
    a.label("L_GB2")
    ids()
    a("v_lshlrev_b32 v5, 10, v5")
    a("v_lshl_add_u32 v5, v3, 5, v5")
    a("v_and_b32 v7, 1, v0")
    a("v_lshl_add_u32 v5, v7, 4, v5")
    a(f"v_lshl_add_u32 v16, s{sWAVE}, 7, v5")
    a(f"s_lshl_b32 s{sT0}, s{sCNT}, 7")
    a(f"s_mul_i32 s{sT3}, s{sWAVE}, {64 * 6144}")
    a(f"s_add_u32 s{sT0}, s{sT0}, s{sT3}")
    base(sBC, sWM, sT0, 2048)
    a(f"s_lshl_b32 s{sT4}, s{sCNT}, 9           ; p*512")
    a("v_mul_u32_u24 v13, 49152, v14")
    a("v_lshl_add_u32 v13, v15, 4, v13")
    a(f"s_movk_i32 s{sT3}, 6144")
    a(f"s_cmp_lg_u32 s{sWAVE}, 7")
    a("s_cbranch_scc1 L_GB3")
    a("s_waitcnt vmcnt(0)")
    make_tag(12)
    base(sBB, sWS, None, CF)
    a(f"v_lshlrev_b32_e64 v5, 7, s{sCNT}")
    a(f"v_mov_b32 v6, s{sTAG}")
    set_exec(1)
    a(f"global_store_dword v5, v6, {sp(sBB)} sc1")
    set_exec(-1)
    xcc_flag()
    a("s_setprio 0")
    a.label("L_GB3")
    stamp(1)
    a("s_barrier")
    a(f"global_load_dwordx4 v[8:11], v16, {sp(sC)}")
    for j in range(8):
        a(f"global_load_dwordx4 {vr(W + 4 * j, 4)}, v13, {sp(sBC)}{NT}")
        if j < 7:
            a(f"v_add_u32 v13, s{sT3}, v13")
    a("s_waitcnt vmcnt(8)")
    silu_frag()
    tile64_addr()
    perms8(W, F, waits=[6, 4, 2, 0])
    tile64_tail(0)
    a(f"s_cmp_lg_u32 s{sWAVE}, 7")
    a("s_cbranch_scc1 L_GB4")
    cf_poll()
    a.label("L_GB4")
    a("s_waitcnt lgkmcnt(0)")
    stamp(2)
    a("s_barrier                      ; 1")
    a(f"s_cmp_ge_u32 s{sWAVE}, 2")
    a("s_cbranch_scc1 L_WO")
    tile64_sum()
    base(sBA, sWS, sT4, MODB)
    a("v_and_b32 v5, 2, v0")
    a("v_lshlrev_b32 v5, 7, v5")
    a("v_and_b32 v6, 32, v0")
    a("v_lshl_add_u32 v5, v6, 1, v5")
    a(f"v_lshl_add_u32 v5, s{sWAVE}, 7, v5")
    a("v_and_b32 v6, 13, v0")
    a("v_lshl_add_u32 v5, v6, 2, v5")
    a("v_bfe_u32 v6, v0, 4, 1")
    a("v_lshl_add_u32 v5, v6, 3, v5")
    a("s_waitcnt lgkmcnt(0)")
    sum8_b64(16)
    a("v_cvt_pk_bf16_f32 v12, v16, v17")
    a(f"global_store_dword v5, v12, {sp(sBA)} sc1")
    stamp(3)
    a("s_branch L_WO")


def sec_ln():
    CLS[0] = 3
    a.label("L_GQA2")
    ids()
    stamp(1)
    a(f"s_cmp_lg_u32 s{sWAVE}, 7")
    a("s_cbranch_scc1 L_GQA3")
    a("s_waitcnt vmcnt(0)")
    make_tag(12)
    unpack(16, 80, 16)
    a("v_pk_add_f32 v[8:9], v[16:17], v[18:19]")
    for i in range(2, 16):
        a(f"v_pk_add_f32 v[8:9], v[8:9], v[{16 + 2 * i}:{17 + 2 * i}]")
    a("v_add_f32 v8, v8, v9")
    row_allsum(8)
    a(f"v_mul_f32 v8, {INV512:#x}, v8       ; mean")
    a("v_mov_b32 v9, v8")
    for i in range(16):
        a(f"v_pk_add_f32 v[{16 + 2 * i}:{17 + 2 * i}], v[{16 + 2 * i}:{17 + 2 * i}], v[8:9] neg_lo:[0,1] neg_hi:[0,1]")
    a("v_pk_mul_f32 v[10:11], v[16:17], v[16:17]")
    for i in range(1, 16):
        a(f"v_pk_fma_f32 v[10:11], v[{16 + 2 * i}:{17 + 2 * i}], v[{16 + 2 * i}:{17 + 2 * i}], v[10:11]")
    a("v_add_f32 v10, v10, v11")
    row_allsum(10)
    a(f"v_mul_f32 v9, {INV512:#x}, v10      ; var")
    round_bf16([8, 9])
    a(f"v_add_f32 v9, {EPS:#x}, v9")
    round_bf16([9])
    a("v_sqrt_f32 v9, v9")
    round_bf16([9])
    a("v_rcp_f32 v9, v9")
    a("v_lshlrev_b32 v13, 16, v13")
    a("v_sub_f32 v13, v13, v8")
    round_bf16([13])
    a("v_mul_f32 v13, v13, v9")
    round_bf16([13])
    a("v_lshlrev_b32 v5, 7, v3")
    a("v_lshl_add_u32 v5, v7, 2, v5")
    a("v_add_u32 v10, 64, v5")
    a("v_lshlrev_b32 v14, 6, v3              ; b*64")
    a("v_and_b32 v8, 8, v7")
    a("v_lshl_add_u32 v14, v8, 2, v14        ; c'lo*32")
    a("v_and_b32 v8, 2, v7")
    a("v_lshl_add_u32 v14, v8, 3, v14        ; (d&1)*16")
    a("v_and_b32 v8, 4, v7")
    a("v_lshl_add_u32 v14, v8, 1, v14        ; (d>>1)*8")
    a(f"s_lshl_b32 s{sT0}, s{sCNT}, 8")
    base(sBA, sWS, sT0, H1)
    a(f"v_mov_b32 v9, s{sTAG}")
    stamp(2)
    a("s_barrier                      ; 1")
    a("ds_read2st64_b32 v[80:81], v5 offset0:0 offset1:2")
    a("ds_read2st64_b32 v[82:83], v5 offset0:4 offset1:6")
    a("ds_read2st64_b32 v[84:85], v10 offset0:0 offset1:2")
    a("ds_read2st64_b32 v[86:87], v10 offset0:4 offset1:6")
    a("s_waitcnt lgkmcnt(0)")
    a("v_pk_add_f32 v[80:81], v[80:81], v[82:83]")
    a("v_pk_add_f32 v[84:85], v[84:85], v[86:87]")
    a("v_add_f32 v80, v80, v81               ; sa")
    a("v_add_f32 v81, v84, v85               ; ca")
    round_bf16([80, 81])
    a("v_add_f32 v81, 1.0, v81")
    round_bf16([81])
    a("v_mul_f32 v81, v13, v81")
    round_bf16([81])
    a("v_add_f32 v80, v81, v80")
    a(f"v_mov_b32_dpp v81, v80 quad_perm:[1,1,3,3] {DPPM}")
    a("v_cvt_pk_bf16_f32 v8, v80, v81")
    set_exec(0x5555555555555555)
    a(f"global_store_dwordx2 v14, v[8:9], {sp(sBA)} sc1")
    set_exec(-1)
    stamp(3)
    xcc_flag()
    if OPT["bhelp"]:
        a("s_barrier                      ; 1b")
    cf_poll()
    a("s_branch L_WO")
    a.label("L_GQA3")
    a("s_barrier                      ; 1")
    if OPT["bhelp"]:
        a("s_barrier                      ; 1b")
    a("s_branch L_WO")


def sec_gq():
    CLS[0] = 0
    a.label("L_GQ2")
    ids()
    stamp(1)
    a(f"s_lshl_b32 s{sT0}, s{sWAVE}, 10")
    base(sBA, sWS, sT0, H1)
    a(f"s_lshl_b32 s{sT0}, s{sWAVE}, 9")
    base(sBC, sWS, sT0, CF)
    a("v_lshlrev_b32 v5, 6, v1")
    a("v_and_b32 v7, 1, v0")
    a("v_lshl_add_u32 v5, v7, 5, v5")
    a("v_lshlrev_b32 v98, 7, v2")
    tile64_addr()
    a(f"s_lshl_b32 s{sT0}, s{sG}, 12")
    a(f"s_lshl_b32 s{sT1}, s{sM}, 6")
    a(f"s_add_u32 s{sT0}, s{sT0}, s{sT1}")
    a(f"s_lshl_b32 s{sT1}, s{sWAVE}, 11")
    a(f"s_add_u32 s{sT0}, s{sT0}, s{sT1}")
    a("v_and_b32 v97, 31, v0")
    a(f"v_lshl_add_u32 v97, v97, 2, s{sT0}")
    a("v_and_b32 v99, 32, v0")
    a("v_lshl_add_u32 v97, v99, 5, v97")
    a("v_lshlrev_b32 v99, 1, v97")
    base(sBB, sWS, None, QS)
    a(f"s_cmp_ge_u32 s{sWAVE}, 2")
    a("s_cbranch_scc1 L_GQ3")
    a(f"global_load_dword v127, v97, {sp(sBB)} sc1")
    a.label("L_GQ3")
    a("s_waitcnt vmcnt(8)")
    make_tag(12)
    perms8(W, F, waits=[6, 4, 2, 0])
    stamp(4)
    lab = poll_begin()
    a(f"global_load_dwordx4 v[8:11], v5, {sp(sBA)} sc1")
    a(f"global_load_dwordx4 v[12:15], v5, {sp(sBA)} offset:16 sc1")
    a(f"global_load_dword v84, v98, {sp(sBC)} sc1")
    poll_mid()
    a(f"v_xor_b32 v80, s{sTAG}, v9")
    a(f"v_xor_b32 v81, s{sTAG}, v11")
    a("v_mov_b32 v9, v12")
    a("v_mov_b32 v11, v14")
    a(f"v_xor_b32 v82, s{sTAG}, v13")
    a(f"v_xor_b32 v83, s{sTAG}, v15")
    interleave([mfma(ACC + 4 * e, 8, F + 4 * e) for e in range(2)],
               [f"v_xor_b32 v84, s{sTAG}, v84", "v_or3_b32 v80, v80, v81, v82", "v_or3_b32 v80, v80, v83, v84", "v_cmp_ne_u32 vcc, 0, v80"], 2)
    poll_end(lab)
    tile64_tail(2)
    a("s_waitcnt lgkmcnt(0)")
    stamp(5)
    a("s_barrier                      ; 1")
    a(f"s_cmp_ge_u32 s{sWAVE}, 2")
    a("s_cbranch_scc1 L_WO")
    tile64_sum()
    base(sBA, sWS, None, H2G)
    a(f"s_getreg_b32 s{sT0}, hwreg(HW_REG_XCC_ID, 0, 4)")
    a(f"s_xor_b32 s{sT0}, s{sTAG}, s{sT0}")
    a(f"v_mov_b32 v9, s{sT0}")
    a("s_waitcnt lgkmcnt(0)")
    sum8_b64(16)
    a("v_cvt_pk_bf16_f32 v8, v16, v17")
    a(f"global_store_dword v97, v8, {sp(sBB)}")
    a("s_waitcnt vmcnt(0)")
    a(f"global_store_dword v96, v9, {sp(sWS)}")
    a(f"global_store_dwordx2 v99, v[8:9], {sp(sBA)} sc1")
    stamp(6)
    a("s_branch L_WO")


WD = 128


def down_loads():
    a(f"s_lshr_b32 s{sT2}, s{sM}, 1")
    a(f"s_lshl2_add_u32 s{sT0}, s{sG}, s{sT2}")
    a(f"s_lshl_b32 s{sT0}, s{sT0}, 5")
    a(f"s_lshl_b32 s{sT2}, s{sWAVE}, 18")
    a(f"s_add_u32 s{sT0}, s{sT0}, s{sT2}")
    base(sBB, sWD, sT0, 4096)
    a("v_lshlrev_b32 v6, 13, v1")
    a("v_lshl_add_u32 v6, v2, 3, v6")
    a("v_add_u32 v7, 0x20000, v6")
    for f in range(2):
        for j in range(8):
            a(f"global_load_dwordx2 {vr(WD + 16 * f + 2 * j, 2)}, v{7 if f else 6}, {sp(sBB)} offset:{1024 * j - 4096}{NTW}")


def sec_wo():
    CLS[0] = 0
    a.label("L_WO")
    a(f"s_lshr_b32 s{sT1}, s{sWAVE}, 1")
    a(f"s_lshl2_add_u32 s{sT0}, s{sG}, s{sT1}")
    a(f"s_lshl_b32 s{sT0}, s{sT0}, 5")
    a(f"s_and_b32 s{sT2}, s{sWAVE}, 1")
    a(f"s_add_u32 s{sT0}, s{sT0}, s{sT2}")
    a(f"s_lshl_b32 s{sT0}, s{sT0}, 6            ; (512g + 128h + 4*(i&1)) * 16")
    a(f"s_add_u32 s{sT0}, s{sT0}, s{sM}")
    a(f"s_lshl_b32 s{sT0}, s{sT0}, 6")
    base(sBB, sWO, sT0)
    a("v_and_b32 v7, 15, v0")
    a("v_and_b32 v6, 1, v3")
    a("v_lshlrev_b32 v6, 16, v6")
    a("v_lshrrev_b32 v5, 1, v3")
    a("v_lshl_add_u32 v6, v5, 10, v6")
    a("v_lshl_add_u32 v6, v7, 2, v6")
    a(f"s_movk_i32 s{sT3}, 8192")
    a("s_setprio 0")
    a(f"s_lshl4_add_u32 s{sT0}, s{sG}, s{sM}")
    a(f"s_lshl2_add_u32 s{sT0}, s{sT0}, s{sWAVE}")
    a(f"s_lshl_b32 s{sT0}, s{sT0}, 13")
    a(f"v_lshl_add_u32 v8, v0, 7, s{sT0}")
    if OPT["wowait"]:
        a(f"s_and_b32 s{sT0}, s{sM}, 1")
        a(f"s_lshl_b32 s{sT0}, s{sT0}, 3")
        a(f"s_add_u32 s{sT0}, s{sT0}, s{sWAVE}")
        a(f"s_cmp_lg_u32 s{sT0}, 15")
        a("s_cbranch_scc1 L_WO0")
        a(f"s_mul_i32 s{sT0}, s{sG}, {4 * NREP * 128}")
        base(sBA, sWS, sT0, FL)
        a("v_and_b32 v9, 3, v1")
        a(f"v_mul_u32_u24 v9, {NREP * 128}, v9")
        a("v_lshl_add_u32 v9, v2, 2, v9")
        a(f"s_movk_i32 s{sCNT}, 40")
        a.label("L_WOw")
        a(f"global_load_dword v10, v9, {sp(sBA)} sc1")
        poll_mid(sleep=2)
        a(f"v_xor_b32 v10, s{sTAG}, v10")
        a("v_cmp_gt_u32 vcc, 16, v10")
        a("s_cmp_eq_u64 vcc, 0")
        a("s_cselect_b64 vcc, -1, 0")
        poll_end("L_WOw")
        a.label("L_WO0")
    a("s_barrier")
    if OPT["wopf"]:
        a(f"s_cmp_ge_u32 s{sWAVE}, 4")
        a("s_cbranch_scc1 L_WO1")
        prefetch(8, sWO)
        a.label("L_WO1")
    for j in range(8):
        for ks in range(2):
            a(f"global_load_dword v{96 + 8 * ks + j}, v6, {sp(sBB)} offset:{2048 * ks}{NTW}")
        if j < 7:
            a(f"v_add_u32 v6, s{sT3}, v6")
    a(f"s_lshl3_add_u32 s{sT0}, s{sG}, s{sWAVE}")
    a(f"s_lshl_b32 s{sT0}, s{sT0}, 11")
    base(sBA, sWS, sT0, H3O)
    a(f"s_lshl2_add_u32 s{sT0}, s{sG}, s{sT1}")
    a(f"s_lshl_b32 s{sT0}, s{sT0}, 7")
    base(sBC, sWS, sT0, H3ML)
    a("v_lshlrev_b32 v5, 4, v0")
    a("v_lshlrev_b32 v6, 5, v3")
    a("v_lshlrev_b32 v12, 3, v0")
    a(f"v_lshl_add_u32 v7, s{sWAVE}, 9, v12")
    a("s_waitcnt vmcnt(0)")
    stamp(7)
    for ks in range(2):
        for eo in range(2):
            for x in range(4):
                a(f"v_perm_b32 v{32 + 8 * ks + 4 * eo + x}, v{96 + 8 * ks + 2 * x + 1}, v{96 + 8 * ks + 2 * x}, s{sHI if eo else sLO}")
    lab = poll_begin()
    a(f"global_load_dwordx4 v[56:59], v6, {sp(sBC)} sc1")
    a(f"global_load_dwordx4 v[60:63], v6, {sp(sBC)} offset:16 sc1")
    poll_mid()
    for ins in sentinel_ops(range(56, 64), 8):
        a(ins)
    poll_end(lab)
    a(f"s_lshl4_add_u32 s{sT0}, s{sG}, s{sM}")
    a(f"s_lshl_b32 s{sT0}, s{sT0}, 8")
    base(sBB, sWS, sT0, H4)
    a("v_lshlrev_b32 v6, 2, v0")
    a("v_max3_f32 v8, v56, v58, v60")
    a("v_max_f32 v8, v8, v62")
    for s in range(4):
        a(f"v_sub_f32 v{56 + 2 * s}, v{56 + 2 * s}, v8")
    for s in range(4):
        a(f"v_exp_f32 v{56 + 2 * s}, v{56 + 2 * s}")
    a("v_mul_f32 v9, v56, v57")
    for s in range(1, 4):
        a(f"v_fmac_f32 v9, v{56 + 2 * s}, v{57 + 2 * s}")
    a("v_rcp_f32 v9, v9")
    for s in range(4):
        a(f"v_mul_f32 v{64 + s}, v{56 + 2 * s}, v9")
    stamp(8)
    lab = poll_begin()
    a(f"global_load_dwordx4 v[48:51], v5, {sp(sBA)} sc1")
    a(f"global_load_dwordx4 v[52:55], v5, {sp(sBA)} offset:1024 sc1")
    poll_mid()
    interleave([mfma(16, 48, 32), mfma(20, 48, 36), mfma(16, 52, 40, 16), mfma(20, 52, 44, 20)],
               sentinel_ops(range(48, 56), 8), 2)
    poll_end(lab)
    a("v_pk_mul_f32 v[16:17], v[16:17], v[64:65]")
    a("v_pk_mul_f32 v[20:21], v[20:21], v[64:65]")
    a("v_pk_fma_f32 v[16:17], v[18:19], v[66:67], v[16:17]")
    a("v_pk_fma_f32 v[20:21], v[22:23], v[66:67], v[20:21]")
    a("v_add_f32 v10, v16, v17")
    a("v_add_f32 v11, v20, v21")
    a("ds_write_b64 v7, v[10:11] offset:6144")
    a("s_waitcnt lgkmcnt(0)")
    stamp(9)
    a("s_barrier                      ; 3")
    a(f"s_cmp_lg_u32 s{sWAVE}, 7")
    a("s_cbranch_scc1 L_DOWN")
    for t in range(4):
        a(f"ds_read2st64_b64 {vr(16 + 4 * t, 4)}, v12 offset0:{12 + 2 * t} offset1:{13 + 2 * t}")
    a("s_waitcnt lgkmcnt(0)")
    sum8_b64(16)
    a("v_cvt_pk_bf16_f32 v8, v16, v17")
    a(f"global_store_dword v6, v8, {sp(sBB)} sc1")
    a(f"s_mul_i32 s{sT0}, s{sM}, {112 * 1024}")
    a(f"s_lshl_b32 s{sT1}, s{sG}, 7")
    a(f"s_add_u32 s{sT0}, s{sT0}, s{sT1}")
    a(f"v_lshl_add_u32 v9, v0, 10, s{sT0}")
    a(f"v_add_u32 v10, {48 * 1024}, v9")
    prefetch(9, sWD, True)
    prefetch(10, sWD, True)
    stamp(10)
    a(f"s_cmp_lg_u32 s{sKIND}, 1")
    a("s_cbranch_scc1 L_fin")
    a("s_barrier                      ; 3b")
    a(f"s_lshr_b32 s{sT1}, s{sM}, 1")
    a(f"s_lshl2_add_u32 s{sT2}, s{sG}, s{sT1}       ; col0/16")
    a(f"s_lshl_b32 s{sT0}, s{sG}, 9")
    a(f"s_and_b32 s{sT3}, s{sT1}, 1")
    a(f"s_lshl_b32 s{sT3}, s{sT3}, 5")
    a(f"s_add_u32 s{sT0}, s{sT0}, s{sT3}")
    a(f"s_and_b32 s{sT3}, s{sT1}, 2")
    a(f"s_lshl2_add_u32 s{sT0}, s{sT3}, s{sT0}")
    base(sBA, sWS, sT0, X1)
    base(sBB, sWS, sT0, MODB + 3 * 4096)
    a("v_and_b32 v7, 4, v0")
    a("v_lshlrev_b32 v5, 6, v7")
    a("v_lshl_add_u32 v5, v3, 6, v5")
    a("v_and_b32 v7, 10, v0")
    a("v_lshl_add_u32 v5, v7, 1, v5")
    a(f"s_lshl_b32 s{sT0}, s{sT2}, 5")
    base(sBC, sOUT, sT0)
    a("v_and_b32 v7, 15, v0")
    a("v_lshlrev_b32 v11, 10, v3")
    a("v_lshl_add_u32 v11, v7, 1, v11")
    a("v_and_b32 v7, 1, v0")
    a("v_lshlrev_b32 v7, 4, v7")
    a("s_barrier")
    lab = poll_begin()
    a(f"global_load_dword v8, v5, {sp(sBA)} sc1")
    a(f"global_load_dword v9, v5, {sp(sBB)} sc1")
    poll_mid()
    for ins in sentinel_ops([8, 9], 10):
        a(ins)
    poll_end(lab)
    a("v_lshrrev_b32 v8, v7, v8")
    a("v_lshrrev_b32 v9, v7, v9")
    a("v_lshlrev_b32 v8, 16, v8              ; x1")
    a("v_lshlrev_b32 v9, 16, v9              ; gb")
    stamp(12)
    a("s_barrier                      ; 4")
    for t in range(7):
        a(f"ds_read2st64_b32 v[{16 + 2 * t}:{17 + 2 * t}], v6 offset0:{40 + 2 * t} offset1:{41 + 2 * t}")
    a("s_waitcnt lgkmcnt(3)")
    a("v_pk_add_f32 v[16:17], v[16:17], v[18:19]")
    a("v_pk_add_f32 v[20:21], v[20:21], v[22:23]")
    a("v_pk_add_f32 v[16:17], v[16:17], v[20:21]")
    a("s_waitcnt lgkmcnt(0)")
    a("v_pk_add_f32 v[24:25], v[24:25], v[26:27]")
    a("v_pk_add_f32 v[16:17], v[16:17], v[28:29]")
    a("v_pk_add_f32 v[16:17], v[16:17], v[24:25]")
    a("v_add_f32 v16, v16, v17")
    a("v_fma_f32 v16, v9, v16, v8")
    a("v_cvt_pk_bf16_f32 v16, v16, v16")
    a(f"global_store_short v11, v16, {sp(sBC)}")
    stamp(13)
    a("s_cmp_lg_u32 s2, 8")
    a("s_cbranch_scc1 L_fin")
    a(f"v_mov_b32 v8, s{sTAG}")
    set_exec(1)
    a(f"global_store_dword v4, v8, {sp(sWS)} sc1")
    a.label("L_fin")
    finish_wave()


def sec_down():
    CLS[0] = 0
    a.label("L_DOWN")
    a(f"s_cmp_lg_u32 s{sKIND}, 1")
    a("s_cbranch_scc1 L_fin")
    a("s_barrier                      ; 3b")
    down_loads()
    a(f"s_lshl_b32 s{sT0}, s{sWAVE}, 11")
    base(sBA, sWS, sT0, ACT)
    a("v_lshlrev_b32 v6, 7, v3")
    a("v_lshl_add_u32 v6, v2, 4, v6")
    a(f"v_lshl_add_u32 v6, s{sWAVE}, 9, v6")
    a("s_waitcnt vmcnt(0)")
    a("s_barrier                      ; 3c")
    for f in range(2):
        for e in range(4):
            for x in range(4):
                a(f"v_perm_b32 v{48 + 16 * f + 4 * e + x}, v{WD + 16 * f + 2 * (2 * x + 1) + (e >> 1)}, "
                  f"v{WD + 16 * f + 2 * (2 * x) + (e >> 1)}, s{sHI if e & 1 else sLO}")
    stamp(11)
    lab = poll_begin()
    a(f"global_load_dwordx4 v[8:11], v5, {sp(sBA)} sc1")
    a(f"global_load_dwordx4 v[12:15], v5, {sp(sBA)} offset:1024 sc1")
    poll_mid()
    interleave([mfma(16 + 4 * e, 8, 48 + 4 * e) for e in range(3)], sentinel_ops(range(8, 16), 7), 2)
    poll_end(lab)
    a(mfma(28, 8, 60))
    for e in range(4):
        a(mfma(16 + 4 * e, 12, 64 + 4 * e, 16 + 4 * e))
    for e in range(4):
        for b0 in range(2):
            a(f"v_add_f32_dpp v{32 + 4 * b0 + e}, v{16 + 4 * e + 2 * b0 + 1}, v{16 + 4 * e + 2 * b0} row_shl:4 {DPPM}")
    set_exec(0x0F000F00000F000F)
    a("ds_write_b128 v6, v[32:35] offset:10240")
    a("ds_write_b128 v6, v[36:39] offset:10304")
    a("s_waitcnt lgkmcnt(0)")
    stamp(12)
    a("s_barrier                      ; 4")
    finish_wave()


def sec_att():
    CLS[0] = 1
    a.label("L_A2")
    ids()
    stamp(1)
    a(f"s_cmp_lt_u32 s{sWAVE}, 4")
    a("s_cbranch_scc1 L_A2b")
    a(f"s_bitcmp1_b32 s{sWAVE}, 0")
    a(f"s_cselect_b64 {sp(sBA)}, {sp(sWU)}, {sp(sWG)}")
    a(f"s_and_b32 s{sT0}, s{sWAVE}, 2")
    a(f"s_lshl2_add_u32 s{sT0}, s{sM}, s{sT0}")
    a(f"s_mul_i32 s{sT0}, s{sT0}, {8 * 3584}")
    a(f"s_mul_i32 s{sT1}, s{sG}, 448")
    a(f"s_andn2_b32 s{sT1}, s{sT1}, 127")
    a(f"s_add_u32 s{sT0}, s{sT0}, s{sT1}")
    a("v_mul_u32_u24 v13, 3584, v1")
    a("v_lshl_add_u32 v13, v2, 7, v13")
    a(f"v_add_u32 v13, s{sT0}, v13")
    prefetch(13, sBA, True)
    a(f"s_waitcnt vmcnt({10 if OPT['pfpol'] == 2 else 9})")
    stamp(2)
    a("s_branch L_A3")
    a.label("L_A2b")
    a("s_waitcnt vmcnt(0)")
    make_tag(12)
    stamp(2)
    a(f"s_getreg_b32 s{sT0}, hwreg(HW_REG_XCC_ID, 0, 4)")
    a(f"s_xor_b32 s56, s{sTAG}, s{sT0}")
    a("s_mov_b32 s57, s56")
    a(f"s_lshl2_add_u32 s{sT0}, s{sG}, s{sWAVE}")
    a(f"s_mul_i32 s{sT0}, s{sT0}, {NREP * 128}")
    base(sBA, sWS, sT0, FL)
    a(f"s_mov_b32 s{sCNT}, 0")
    a.label("L_Aq")
    a(f"s_load_dwordx8 s[48:55], {sp(sBA)}, s{sCNT}")
    a(f"s_add_u32 s{sCNT}, s{sCNT}, 128")
    a("s_waitcnt lgkmcnt(0)")
    a("s_xor_b64 s[48:49], s[48:49], s[56:57]")
    a("s_xor_b64 s[50:51], s[50:51], s[56:57]")
    a("s_xor_b64 s[52:53], s[52:53], s[56:57]")
    a("s_or_b64 s[48:49], s[48:49], s[50:51]")
    a("s_or_b64 s[48:49], s[48:49], s[52:53]")
    a("s_cbranch_scc0 L_Aq_ok")
    if OPT["qsleep"]:
        a(f"s_sleep {OPT['qsleep']}")
    a(f"s_cmp_lt_u32 s{sCNT}, {NREP * 128}")
    a("s_cbranch_scc1 L_Aq")
    a(f"s_lshr_b32 s{sT0}, s{sM}, 2")
    a(f"s_lshl2_add_u32 s{sT0}, s{sG}, s{sT0}")
    a(f"s_lshl2_add_u32 s{sT0}, s{sT0}, s{sWAVE}")
    a(f"s_lshl_b32 s{sT0}, s{sT0}, 9")
    base(sBA, sWS, sT0, H2G)
    a("v_lshlrev_b32 v10, 3, v0")
    lab = poll_begin()
    a(f"global_load_dwordx2 v[8:9], v10, {sp(sBA)} sc1")
    poll_mid()
    a(f"v_xor_b32 v9, s{sTAG}, v9")
    a("v_cmp_lt_u32 vcc, 15, v9")
    poll_end(lab)
    a("v_mov_b32 v9, 2")
    if OPT["probe"] == 3:
        a("v_mov_b32 v162, 1")
    a("s_branch L_Aq_st")
    a.label("L_Aq_ok")
    a(f"s_lshr_b32 s{sT0}, s{sM}, 2")
    a(f"s_lshl2_add_u32 s{sT0}, s{sG}, s{sT0}")
    a(f"s_lshl2_add_u32 s{sT0}, s{sT0}, s{sWAVE}")
    a(f"s_lshl_b32 s{sT0}, s{sT0}, 8")
    a(f"s_add_u32 s{sT0}, s{sT0}, {QS:#x}")
    a(f"s_add_u32 s0, s{sWS}, s{sT0}")
    a(f"s_addc_u32 s1, s{sWS + 1}, 0")
    for t in range(4):
        a(f"s_load_dwordx16 s[{sQ + 16 * t}:{sQ + 16 * t + 15}], s[0:1], {64 * t}")
    a("v_mov_b32 v9, 1")
    a("s_waitcnt lgkmcnt(0)")
    for i in range(64):
        a(f"v_writelane_b32 v8, s{sQ + i}, {i}")
    a.label("L_Aq_st")
    a("v_lshlrev_b32 v10, 2, v0")
    a(f"v_lshl_add_u32 v10, s{sWAVE}, 8, v10")
    a(f"v_lshlrev_b32_e64 v11, 2, s{sWAVE}")
    a(f"ds_write_b32 v10, v8 offset:{LQ}")
    a(f"ds_write_b32 v11, v9 offset:{LQF}")
    a.label("L_A3")
    a(f"s_mul_i32 s{sT0}, s{sWAVE}, 2560")
    a("v_mul_u32_u24 v7, 576, v5")
    a("v_lshl_add_u32 v7, v2, 6, v7")
    a("v_lshl_add_u32 v7, v3, 4, v7")
    a(f"v_add_u32 v7, s{sT0}, v7")
    a("v_lshlrev_b32 v5, 5, v5               ; h*32")
    a(f"v_lshl_add_u32 v120, s{sWAVE}, 2, v5     ; h*32 + wave*4")
    a("v_lshlrev_b32 v124, 4, v0")
    a("v_add_u32 v125, 0x1000, v124")
    lab = poll_begin()
    a(f"ds_read_b128 v[12:15], v4 offset:{LQF}")
    a(f"ds_read_b128 v[8:11], v6 offset:{LQ}")
    poll_mid("lgkmcnt(0)")
    a("v_min3_u32 v112, v12, v13, v14")
    a("v_min_u32 v112, v112, v15")
    a("v_cmp_eq_u32 vcc, 0, v112")
    poll_end(lab)
    stamp(3)
    for u in range(8):
        a(mfma(SA + 4 * u, KR + 4 * u, 8))
    a("v_or3_b32 v12, v12, v13, v14")
    a("v_or_b32 v12, v12, v15")
    a("v_lshrrev_b32 v12, 1, v12")
    a(f"v_readfirstlane_b32 s{sLOCAL}, v12")
    S = 112
    for u in range(8):
        a(f"v_add_f32_dpp v{S + u}, v{SA + 4 * u + 1}, v{SA + 4 * u} row_shl:1 {DPPM}")
    for u in range(8):
        a(f"v_add_f32_dpp v{S + u}, v{SA + 4 * u + 2}, v{S + u} row_shl:2 {DPPM}")
    for u in range(8):
        a(f"v_add_f32_dpp v{S + u}, v{SA + 4 * u + 3}, v{S + u} row_shl:3 {DPPM}")
    round_bf16(list(range(S, S + 8)))
    for u in range(8):
        a(f"v_mul_f32 v{S + u}, {SCALE:#x}, v{S + u}")
    round_bf16(list(range(S, S + 8)))
    a(f"v_max3_f32 v12, v{S}, v{S + 1}, v{S + 2}")
    a(f"v_max3_f32 v13, v{S + 3}, v{S + 4}, v{S + 5}")
    a(f"v_max3_f32 v12, v12, v{S + 6}, v{S + 7}")
    a("v_max_f32 v12, v12, v13")
    cross_rows("v_max_f32", 12, 13)
    set_exec(0x1111)
    a(f"ds_write_b32 v120, v12 offset:{LM}")
    set_exec(-1)
    a("s_waitcnt lgkmcnt(0)")
    a("s_barrier")
    a(f"ds_read_b128 v[80:83], v5 offset:{LM}")
    a(f"ds_read_b128 v[84:87], v5 offset:{LM + 16}")
    a(f"s_mov_b32 s{sT0}, {LOG2E:#x}")
    for y in range(4):
        a(f"v_cmp_eq_u32 s[{48 + 2 * y}:{49 + 2 * y}], {y}, v2")
    a("s_waitcnt lgkmcnt(0)")
    a("v_max3_f32 v12, v80, v81, v82")
    a("v_max3_f32 v13, v83, v84, v85")
    a("v_max3_f32 v12, v12, v86, v87")
    a("v_max_f32 v12, v12, v13")
    a(f"v_mul_f32 v12, {LOG2E:#x}, v12")
    for u in range(8):
        a(f"v_fma_f32 v{S + u}, v{S + u}, s{sT0}, -v12")
    for u in range(8):
        a(f"v_exp_f32 v{S + u}, v{S + u}")
    for x in range(4):
        a(f"v_cvt_pk_bf16_f32 v{8 + x}, v{S + 2 * x}, v{S + 2 * x + 1}")
    a(f"v_pk_add_f32 v[{S}:{S + 1}], v[{S}:{S + 1}], v[{S + 2}:{S + 3}]")
    a(f"v_pk_add_f32 v[{S + 4}:{S + 5}], v[{S + 4}:{S + 5}], v[{S + 6}:{S + 7}]")
    a(f"v_pk_add_f32 v[{S}:{S + 1}], v[{S}:{S + 1}], v[{S + 4}:{S + 5}]")
    a(f"v_add_f32 v13, v{S}, v{S + 1}")
    for x in range(4):
        a(f"v_mov_b32_dpp v{8 + x}, v{8 + x} quad_perm:[0,0,0,0] {DPPM}")
    cross_rows("v_add_f32", 13, 14)
    set_exec(0x1111)
    a(f"ds_write_b32 v120, v13 offset:{LL}")
    set_exec(-1)
    PY = 88
    for y in range(4):
        for x in range(4):
            a(f"v_cndmask_b32 v{PY + 4 * y + x}, 0, v{8 + x}, s[{48 + 2 * y}:{49 + 2 * y}]")
    a("s_waitcnt lgkmcnt(0)")
    a("s_barrier")
    stamp(4)
    a(f"s_lshl2_add_u32 s{sT0}, s{sG}, s{sWAVE}")
    a(f"s_lshl_b32 s{sT0}, s{sT0}, 8")
    a(f"s_add_u32 s{sT0}, s{sT0}, s{sM}")
    a(f"s_lshl_b32 s{sT0}, s{sT0}, 4")
    base(sBA, sWS, sT0, H3O)
    a("v_lshlrev_b32 v121, 8, v1")
    a("v_lshl_add_u32 v121, v2, 2, v121")
    a(f"s_mul_i32 s{sT0}, s{sWAVE}, 576")
    a(f"v_lshl_add_u32 v122, v0, 3, s{sT0}")
    a(f"s_cmp_lt_u32 s{sWAVE}, 4")
    a("s_cbranch_scc1 L_A5")
    a(f"s_and_b32 s{sT4}, s{sWAVE}, 3")
    a(f"s_lshl_b32 s{sT0}, s{sT4}, 8")
    base(sBB, sX, sT0)
    a(f"s_lshl_b32 s{sT0}, s{sT4}, 10")
    base(sBA, sWS, sT0, MODB + 4096)
    a("v_lshrrev_b32 v13, 1, v3")
    a("v_lshlrev_b32 v13, 7, v13")
    a("v_and_b32 v14, 1, v3")
    a("v_lshl_add_u32 v13, v14, 3, v13")
    a("v_lshl_add_u32 v13, v2, 4, v13")
    a("v_lshl_add_u32 v13, v5, 5, v13        ; x offset: b*1024 + (G>>1)*128 + c*16 + (G&1)*8")
    a(f"global_load_dwordx2 v[128:129], v13, {sp(sBB)}")
    a(f"global_load_dwordx2 v[130:131], v13, {sp(sBB)} offset:64")
    modb_loads()
    a("s_branch L_A6")
    a.label("L_A5")
    a(f"s_cmp_lg_u32 s{sWAVE}, 0")
    a("s_cbranch_scc1 L_A6")
    a(f"ds_read_b128 v[80:83], v5 offset:{LL}")
    a(f"ds_read_b128 v[84:87], v5 offset:{LL + 16}")
    a(f"s_lshl_b32 s{sT0}, s{sG}, 6")
    a(f"s_add_u32 s{sT0}, s{sT0}, s{sM}")
    a(f"s_lshl_b32 s{sT0}, s{sT0}, 3")
    base(sBB, sWS, sT0, H3ML)
    a("v_lshlrev_b32 v14, 2, v5              ; h*128")
    a("s_waitcnt lgkmcnt(0)")
    a("v_pk_add_f32 v[80:81], v[80:81], v[82:83]")
    a("v_pk_add_f32 v[84:85], v[84:85], v[86:87]")
    a("v_pk_add_f32 v[80:81], v[80:81], v[84:85]")
    a("v_add_f32 v13, v80, v81")
    set_exec(0x1111)
    a(f"s_cmp_lg_u32 s{sLOCAL}, 0")
    a("s_cbranch_scc1 L_A_mlg")
    a(f"global_store_dwordx2 v14, v[12:13], {sp(sBB)}")
    a.label("L_A_mld")
    set_exec(-1)
    a.label("L_A6")
    extra = 7 if OPT['pfpol'] == 2 else 6
    perms8(VR, VT, waits=[6 + extra, 4 + extra, 2 + extra, 0 + extra])
    for e in range(8):
        d = OA + 4 * (e >> 2)
        a(mfma(d, VT + 4 * e, PY + 4 * (e & 3), None if (e & 3) == 0 else d))
    a(f"ds_write_b128 v7, {vr(OA, 4)}")
    a(f"ds_write_b128 v7, {vr(OA + 4, 4)} offset:256")
    a("s_waitcnt lgkmcnt(0)")
    stamp(5)
    a("s_barrier                      ; 2")
    a(f"s_cmp_ge_u32 s{sWAVE}, 4")
    a("s_cbranch_scc1 L_FF")
    for t in range(4):
        a(f"ds_read2st64_b64 {vr(16 + 4 * t, 4)}, v122 offset0:{10 * t} offset1:{10 * t + 5}")
    a(f"s_cmp_lg_u32 s{sLOCAL}, 0")
    a("s_waitcnt lgkmcnt(0)")
    sum8_b64(16)
    a("v_cvt_pk_bf16_f32 v10, v16, v17")
    a("s_cbranch_scc1 L_A_pubg")
    a(f"global_store_dword v121, v10, {sp(sBA)}")
    a.label("L_A_pubd")
    stamp(6)
    a("s_barrier                      ; 2b")
    a("s_branch L_FF0")
    a.label("L_A_pubg")
    a(f"global_store_dword v121, v10, {sp(sBA)} sc1")
    a("s_branch L_A_pubd")
    a.label("L_A_mlg")
    a(f"global_store_dwordx2 v14, v[12:13], {sp(sBB)} sc1")
    a("s_branch L_A_mld")


def sec_dump():
    if OPT["probe"]:
        a.label("L_dump")
        a("s_mov_b64 exec, 1")
        a(f"s_lshl3_add_u32 s{sT0}, s2, s{sWAVE}")
        a(f"s_lshl_b32 s{sT0}, s{sT0}, 4")
        base(sBA, sWS, sT0, STAMP)
        a("v_mov_b32 v4, 0")
        a(f"global_store_dwordx4 v4, v[160:163], {sp(sBA)} sc1")
        if OPT["wb"]:
            a("s_waitcnt vmcnt(0)")
            a("buffer_wbl2 sc1")
            a("s_waitcnt vmcnt(0)")
        a("s_cmp_lg_u32 s2, 8")
        a("s_cbranch_scc1 L_exit")
        a(f"s_cmp_lg_u32 s{sWAVE}, 7")
        a("s_cbranch_scc1 L_exit")
        a("s_mov_b64 exec, -1")
        a("s_memrealtime s[60:61]")
        a("s_sleep 100")
        a("s_waitcnt vmcnt(0) lgkmcnt(0)")
        base(sBA, sWS, None, STAMP)
        a("v_lshlrev_b32 v4, 4, v0")
        for i in range(32):
            a(f"global_load_dwordx4 {vr(16 + 4 * i, 4)}, v4, {sp(sBA)} sc1")
            a("v_add_u32 v4, 0x400, v4")
        a("s_waitcnt vmcnt(0)")
        a("v_mov_b32 v8, v16")
        a("v_mov_b32 v9, 0")
        for i in range(1, 32):
            a(f"v_max_u32 v8, v8, v{16 + 4 * i}")
            a(f"v_min_u32 v16, v16, v{16 + 4 * i}")
            a(f"v_max_u32 v17, v17, v{17 + 4 * i}")
            a(f"v_add_u32 v18, v18, v{18 + 4 * i}")
            a(f"v_cmp_ne_u32 vcc, v19, v{19 + 4 * i}")
            a(f"v_addc_co_u32 v9, vcc, 0, v9, vcc")
        for op, r in (("v_max_u32", 8), ("v_min_u32", 16), ("v_max_u32", 17), ("v_add_u32", 18), ("v_add_u32", 9)):
            for n in (8, 4, 2, 1):
                a(f"{op}_dpp v{r}, v{r}, v{r} row_ror:{n} {DPPM}")
            cross_rows(op, r, 10)
        a("v_readfirstlane_b32 s50, v8")
        a("v_readfirstlane_b32 s51, v16")
        a("v_readfirstlane_b32 s53, v17")
        a("v_readfirstlane_b32 s52, v18")
        a("v_readfirstlane_b32 s56, v9")
        a("s_nop 3")
        p = OPT["probe"]
        if p == 1:
            a("s_sub_u32 s54, s50, s51")
        elif p == 2:
            a("s_sub_u32 s54, s60, s51")
        elif p == 3:
            a("s_mul_i32 s54, s52, 1")
        elif p == 4:
            a("s_lshr_b32 s54, s56, 1")
        elif p >= 100:
            a("s_sub_u32 s54, s53, s51")
        else:
            a("s_mov_b32 s54, 0")
        a("s_min_u32 s54, s54, 10000")
        a("s_add_u32 s54, s54, 3000")
        a.label("L_spin")
        a("s_memrealtime s[62:63]")
        a("s_waitcnt lgkmcnt(0)")
        a("s_sub_u32 s55, s62, s51")
        a("s_cmp_lt_u32 s55, s54")
        a("s_cbranch_scc1 L_spin")
    if OPT["stamps"]:
        a.label("L_dump")
        a("s_mov_b64 exec, -1")
        stamp(15)
        a(f"s_getreg_b32 s{sT0}, hwreg(HW_REG_XCC_ID)")
        a(f"v_writelane_b32 v126, s{sT0}, 14")
        a(f"s_lshl3_add_u32 s{sT0}, s2, s{sWAVE}")
        a(f"s_lshl_b32 s{sT0}, s{sT0}, 6")
        base(sBA, sWS, sT0, STAMP)
        a("v_lshlrev_b32 v4, 2, v0")
        set_exec(0xFFFF)
        a(f"global_store_dword v4, v126, {sp(sBA)}")
    a.label("L_exit")
    a("s_endpgm")


a(".p2align 12")
a.label("L_code0")
sec_wo()
sec_ln()
a(".p2align 8")
a(f".fill (4096-768-(.-L_code0))/4, 4, 0xbf810000")
a(f".type {NAME}_kernel,@function")
sec_entry()
sec_gm()
sec_gq()
sec_gb()
a(".p2align 12")
sec_att()
sec_down()
a(".p2align 12")
sec_ffn()
sec_dump()

body = a.finish()
hdr = open("cdna_kernels/" + NAME + ".s.ref").read().split("; Override launch geometry")[0]
out = hdr + f"""; Generated by a hand-written generator script; one persistent launch of 256 workgroups.
; @launch grid=(256,1,1) block=(512,1,1) lds={OPT['lds']}
.amdgcn_target "amdgcn-amd-amdhsa--gfx950"
.text
.globl {NAME}_kernel
{body}.section .rodata,"a"
.p2align 6
.amdhsa_kernel {NAME}_kernel
  .amdhsa_next_free_vgpr {OPT['vgpr']}
  .amdhsa_next_free_sgpr 102
  .amdhsa_accum_offset {OPT['vgpr']}
  .amdhsa_group_segment_fixed_size 0
  .amdhsa_kernarg_size 112
  .amdhsa_user_sgpr_count 2
  .amdhsa_user_sgpr_kernarg_segment_ptr 1
  .amdhsa_system_sgpr_workgroup_id_x 1
  .amdhsa_float_denorm_mode_32 3
.end_amdhsa_kernel
"""
open(sys.argv[1], "w").write(out)
```

```python
import sys
from asmlib import Asm

NAME = "adaLN_cond__sliding_block_cached__swiglu_ffn__decode"
OPT = dict(stamps=0, lds=84000, nt=1, limit=20000, pf=1, pfa=1, pfg=1, athr=8, nrep=32, qsleep=2, vgpr=160, psleep=0, ahelp=1, bhelp=1, wowait=1, pfpol=2, wpol=1, wopf=1, epair=1, wb=0, probe=0, pcls=0)
for arg in sys.argv[2:]:
    k, v = arg.split("=")
    assert k in OPT, k
    OPT[k] = int(v, 0)
if OPT["probe"]:
    OPT["vgpr"] = 168
NT = " nt" if OPT["nt"] else ""
NREP = OPT["nrep"]
NTW = " nt" if OPT["wpol"] else ""

H1 = 0x1000
CF = 0x3000
QS = 0x4000
H2G = 0x10000
FL = 0x20000
assert FL + 32 * NREP * 128 <= 0x60000
CLR = 0x60000
MODB = CLR
H4 = MODB + 0x4000
ACT = H4 + 0x8000
X1 = ACT + 0x4000
H3ML = X1 + 0x1000
H3O = H3ML + 0x1000
CLR_END = H3O + 0x20000
CLR_PER_WG = 7
assert CLR_END - CLR <= 32 * CLR_PER_WG * 1024
STAMP = 0x100000

LO = 0
LQ = 20480
LQF = LQ + 1024
LM = LQF + 64
LL = LM + 128
LY = 22016
LU = LY + 2048
LV = LU + 2048
LST = LV + 2048

sX, sK, sV, sWQ, sWO, sWG, sWU = 4, 6, 8, 10, 12, 16, 18
sWD, sC, sWM, sOUT, sDBG, sWS = 20, 22, 24, 26, 28, 30
sG, sM, sWAVE, sTAG = 14, 15, 3, 28
sLO, sHI, sCNT, sT0 = 96, 97, 98, 99
sBA, sBB, sBC = 32, 34, 36
sMK = 38
sT1, sT2, sT3, sT4 = 40, 41, 42, 43
sLOCAL, sKIND = 29, 44
sPC = 46
sSTAMP = 48 if False else 64
sQ = 32

LOG2E = 0x3FB8AA3B
SCALE = 0x3DB504F3
INV512 = 0x3B000000
EPS = 0x3727C5AC


def sp(r):
    return f"s[{r}:{r + 1}]"


def vr(a, n):
    return f"v[{a}:{a + n - 1}]" if n > 1 else f"v{a}"


a = Asm()
_uid = [0]


def uid(p):
    _uid[0] += 1
    return f"L_{p}{_uid[0]}"


CLS = [0]


def stamp(i):
    if OPT["probe"] == 100 + i and OPT["pcls"] == CLS[0]:
        a("s_memrealtime s[100:101]")
        a("s_waitcnt lgkmcnt(0)")
        a("v_writelane_b32 v161, s100, 0")
    if OPT["stamps"]:
        a("s_waitcnt lgkmcnt(0)")
        a("v_writelane_b32 v126, s100, m0")
        a(f"s_mov_b32 m0, {i}")
        a("s_memrealtime s[100:101]")


def finish_wave():
    a("s_branch L_dump" if OPT["stamps"] or OPT["probe"] else "s_endpgm")


def base(dst, ptr, off_s=None, off_imm=0):
    if off_s is not None and off_imm:
        a(f"s_add_u32 s{dst}, s{off_s}, {off_imm:#x}")
        a(f"s_add_u32 s{dst}, s{ptr}, s{dst}")
    elif off_s is not None:
        a(f"s_add_u32 s{dst}, s{ptr}, s{off_s}")
    else:
        a(f"s_add_u32 s{dst}, s{ptr}, {off_imm:#x}")
    a(f"s_addc_u32 s{dst + 1}, s{ptr + 1}, 0")


def set_exec(mask):
    if mask in (-1, 1):
        a(f"s_mov_b64 exec, {mask}")
    else:
        lo, hi = mask & 0xFFFFFFFF, mask >> 32
        a(f"s_mov_b32 exec_lo, {lo:#x}")
        a(f"s_mov_b32 exec_hi, {hi:#x}")


def prefetch(v, b, late=False):
    if not late and not OPT["epair"]:
        a(f"global_load_dword v127, v{v}, {sp(b)} nt")
        return
    if OPT["pfpol"] == 1:
        a(f"global_load_dword v127, v{v}, {sp(b)}")
    else:
        a(f"global_load_dword v127, v{v}, {sp(b)} nt")
    if OPT["pfpol"] == 2:
        a(f"global_load_dword v127, v{v}, {sp(b)} sc1")


def sels():
    a(f"s_mov_b32 s{sLO}, 0x05040100")
    a(f"s_mov_b32 s{sHI}, 0x07060302")


def perms8(W, F, waits=None):
    for x in range(4):
        if waits is not None:
            a(f"s_waitcnt vmcnt({waits[x]})")
        for e in range(8):
            sel = sHI if e & 1 else sLO
            a(f"v_perm_b32 v{F + 4 * e + x}, v{W + 4 * (2 * x + 1) + (e >> 1)}, v{W + 4 * (2 * x) + (e >> 1)}, s{sel}")


def unpack(dst, src, n):
    for i in range(n):
        a(f"v_lshlrev_b32 v{dst + 2 * i}, 16, v{src + i}")
        a(f"v_and_b32 v{dst + 2 * i + 1}, 0xffff0000, v{src + i}")


def round_bf16(regs):
    if len(regs) == 1:
        a(f"v_cvt_pk_bf16_f32 v{regs[0]}, v{regs[0]}, v{regs[0]}")
        a(f"v_lshlrev_b32 v{regs[0]}, 16, v{regs[0]}")
        return
    for i in range(0, len(regs), 2):
        a(f"v_cvt_pk_bf16_f32 v{regs[i + 1]}, v{regs[i]}, v{regs[i + 1]}")
    for i in range(0, len(regs), 2):
        a(f"v_lshlrev_b32 v{regs[i]}, 16, v{regs[i + 1]}")
        a(f"v_and_b32 v{regs[i + 1]}, 0xffff0000, v{regs[i + 1]}")


def poll_begin():
    lab = uid("poll")
    a(f"s_mov_b32 s{sCNT}, {OPT['limit']}")
    a.label(lab)
    return lab


def poll_mid(cnt="vmcnt(0)", sleep=None):
    sleep = OPT["psleep"] if sleep is None else sleep
    if sleep and cnt.startswith("vm"):
        a(f"s_sleep {sleep}")
    a(f"s_sub_u32 s{sCNT}, s{sCNT}, 1")
    a(f"s_cselect_b64 {sp(sMK)}, 0, -1")
    a(f"s_waitcnt {cnt}")


def poll_end(lab):
    a(f"s_and_b64 vcc, vcc, {sp(sMK)}")
    a(f"s_cbranch_scc1 {lab}")


def sentinel_ops(regs, tmp):
    regs = list(regs)
    out = []
    if len(regs) == 2:
        out.append(f"v_max_u32 v{tmp}, v{regs[0]}, v{regs[1]}")
    else:
        out.append(f"v_max3_u32 v{tmp}, v{regs[0]}, v{regs[1]}, v{regs[2]}")
        rest = regs[3:]
        while len(rest) >= 2:
            out.append(f"v_max3_u32 v{tmp}, v{tmp}, v{rest[0]}, v{rest[1]}")
            rest = rest[2:]
        if rest:
            out.append(f"v_max_u32 v{tmp}, v{tmp}, v{rest[0]}")
    out.append(f"v_cmp_eq_u32 vcc, -1, v{tmp}")
    return out


def interleave(major, minor, per):
    minor = list(minor)
    for ins in major:
        a(ins)
        for _ in range(per):
            if minor:
                a(minor.pop(0))
    for ins in minor:
        a(ins)


def make_tag(vE):
    a(f"v_readfirstlane_b32 s{sTAG}, v{vE}")
    a("s_nop 1")
    a(f"s_mul_i32 s{sTAG}, s{sTAG}, 1664525")
    a(f"s_add_u32 s{sTAG}, s{sTAG}, 1013904223")


DPPM = "row_mask:0xf bank_mask:0xf"


def row_allsum(v):
    for n in (8, 4, 2, 1):
        a(f"v_add_f32_dpp v{v}, v{v}, v{v} row_ror:{n} {DPPM}")


def cross_rows(op, v, tmp):
    a(f"v_mov_b32 v{tmp}, v{v}")
    a(f"v_permlane16_swap_b32 v{tmp}, v{v}")
    a(f"{op} v{v}, v{v}, v{tmp}")
    a(f"v_mov_b32 v{tmp}, v{v}")
    a(f"v_permlane32_swap_b32 v{tmp}, v{v}")
    a(f"{op} v{v}, v{v}, v{tmp}")


def mfma(d, x, y, c=None):
    return f"v_mfma_f32_16x16x32_bf16 {vr(d, 4)}, {vr(x, 4)}, {vr(y, 4)}, {vr(c, 4) if c is not None else 0}"


def diagX_reduce(ACC, T):
    for e in range(8):
        a(f"v_add_f32_dpp v{T + e}, v{ACC + 4 * e + 1}, v{ACC + 4 * e} row_shl:4 {DPPM}")
    for e in range(8):
        a(f"v_add_f32_dpp v{T + e}, v{ACC + 4 * e + 2}, v{T + e} row_shl:8 {DPPM}")
    for e in range(8):
        a(f"v_add_f32_dpp v{T + e}, v{ACC + 4 * e + 3}, v{T + e} row_shl:12 {DPPM}")


def sum8_b64(r):
    for t in range(4):
        a(f"v_pk_add_f32 v[{r + 4 * t}:{r + 4 * t + 1}], v[{r + 4 * t}:{r + 4 * t + 1}], v[{r + 4 * t + 2}:{r + 4 * t + 3}]")
    a(f"v_pk_add_f32 v[{r}:{r + 1}], v[{r}:{r + 1}], v[{r + 4}:{r + 5}]")
    a(f"v_pk_add_f32 v[{r + 8}:{r + 9}], v[{r + 8}:{r + 9}], v[{r + 12}:{r + 13}]")
    a(f"v_pk_add_f32 v[{r}:{r + 1}], v[{r}:{r + 1}], v[{r + 8}:{r + 9}]")


def modb_loads():
    a(f"global_load_dwordx4 v[132:135], v124, {sp(sBA)} offset:-4096 sc1")
    a(f"global_load_dwordx4 v[136:139], v124, {sp(sBA)} sc1")
    a(f"global_load_dwordx4 v[140:143], v125, {sp(sBA)} sc1")


W, F, ACC = 16, 48, 16
KR, VR, SA, VT, OA = 16, 48, 80, 16, 80


def sec_ffn():
    CLS[0] = 1
    a.label("L_FF")
    a(f"s_cmp_ge_u32 s{sM}, 14")
    a("s_cbranch_scc1 L_fin2")
    a(f"s_mul_i32 s{sT0}, s{sG}, 14")
    a(f"s_add_u32 s{sT0}, s{sT0}, s{sM}")
    a(f"s_lshl_b32 s{sT0}, s{sT0}, 5")
    a(f"s_mul_i32 s{sT1}, s{sT4}, {128 * 3584}")
    a(f"s_add_u32 s{sT0}, s{sT0}, s{sT1}")
    a(f"s_add_u32 s{sT0}, s{sT0}, 3584")
    a("v_lshrrev_b32 v6, 1, v3")
    a("v_and_b32 v7, 1, v3")
    a("v_and_b32 v5, 3, v1")
    a("v_lshlrev_b32 v8, 6, v6")
    a("v_lshl_add_u32 v8, v7, 2, v8")
    a("v_lshl_add_u32 v8, v5, 3, v8")
    a("v_mul_u32_u24 v10, 3584, v8")
    a("v_and_b32 v9, 1, v2")
    a("v_lshl_add_u32 v10, v9, 4, v10")
    a(f"v_add_u32 v10, s{sT0}, v10")
    a("v_mov_b32 v11, 0")
    a("v_cmp_lt_u32 vcc, 1, v2")
    a(f"v_mov_b32 v12, s{sWG}")
    a(f"v_mov_b32 v13, s{sWG + 1}")
    a(f"v_mov_b32 v14, s{sWU}")
    a(f"v_mov_b32 v15, s{sWU + 1}")
    a("v_cndmask_b32 v12, v12, v14, vcc")
    a("v_cndmask_b32 v13, v13, v15, vcc")
    a("v_lshl_add_u64 v[12:13], v[10:11], 0, v[12:13]      ; row +1")
    a(f"v_mov_b32 v10, {2 * 3584}")
    a("v_lshl_add_u64 v[14:15], v[10:11], 0, v[12:13]      ; row +3")
    a(f"v_mov_b32 v10, {32 * 3584}")
    a(f"s_lshl_b32 s{sT0}, s{sT4}, 10")
    a("v_and_b32 v9, 15, v0")
    a("s_barrier")
    for half in range(2):
        for jj in range(4):
            r, off = ((12, 3584 * (jj - 1)) if jj < 3 else (14, 0))
            a(f"global_load_dwordx4 {vr(W + 16 * half + 4 * jj, 4)}, v[{r}:{r + 1}], off offset:{off}{NTW}")
        if half == 0:
            a("v_lshl_add_u64 v[12:13], v[10:11], 0, v[12:13]")
            a("v_lshl_add_u64 v[14:15], v[10:11], 0, v[14:15]")
    a("v_lshlrev_b32 v12, 4, v9")
    a("v_lshl_add_u32 v12, v3, 12, v12")
    a("s_waitcnt vmcnt(8)")
    for ins in sentinel_ops(range(132, 144), 14):
        a(ins)
    a("s_cbranch_vccz L_FF1")
    lab = poll_begin()
    modb_loads()
    poll_mid()
    for ins in sentinel_ops(range(132, 144), 14):
        a(ins)
    poll_end(lab)
    a.label("L_FF1")
    stamp(7)
    XV, GA, P0, P1 = 96, 104, 112, 84
    unpack(XV, 128, 4)
    unpack(GA, 132, 4)
    unpack(P0, 140, 4)
    for i in range(8):
        a(f"v_add_f32 v{P0 + i}, 1.0, v{P0 + i}")
    for i in range(4):
        a(f"v_cvt_pk_bf16_f32 v{92 + i}, v{P0 + 2 * i}, v{P0 + 2 * i + 1}")
    unpack(P0, 92, 4)
    perms8(W, F, waits=[6, 4, 2, 0])
    stamp(9)
    for e in range(8):
        a(mfma(ACC + 4 * e, 136, F + 4 * e))
    a(f"s_lshl_b32 s{sT1}, s{sT4}, 9")
    a(f"s_add_u32 s{sT1}, s{sT1}, {LY}")
    a("v_lshlrev_b32 v5, 7, v3")
    a("v_lshl_add_u32 v5, v2, 5, v5")
    a(f"v_add_u32 v5, s{sT1}, v5")
    diagX_reduce(ACC, 80)
    for e in range(8):
        a(mfma(ACC + 4 * e, 92, F + 4 * e))
    set_exec(0x000F000F000F000F)
    a(f"ds_write_b128 v5, v[80:83] offset:{LV - LY}")
    a(f"ds_write_b128 v5, v[84:87] offset:{LV - LY + 16}")
    set_exec(-1)
    a("s_waitcnt lgkmcnt(0)")
    diagX_reduce(ACC, 80)
    set_exec(0x000F000F000F000F)
    a(f"ds_write_b128 v5, v[80:83] offset:{LU - LY}")
    a(f"ds_write_b128 v5, v[84:87] offset:{LU - LY + 16}")
    set_exec(-1)
    a("s_waitcnt lgkmcnt(0)")
    a("s_barrier                      ; 3: u, v partials")
    for i in range(8):
        a(f"v_mul_f32 v{P1 + i}, v{GA + i}, v{P0 + i}")
    for i in range(8):
        a(f"v_mul_f32 v{P0 + i}, v{XV + i}, v{P0 + i}")
    a("v_and_b32 v6, 1, v0")
    a("v_lshlrev_b32 v6, 4, v6")
    a("v_mov_b32 v7, 0x3f80")
    a("v_lshlrev_b32 v6, v6, v7")
    a("v_lshrrev_b32 v7, 1, v9")
    for x in range(8):
        a(f"v_cmp_eq_u32 vcc, {x}, v7")
        a(f"v_cndmask_b32 v{(120 + x) if x < 4 else (88 + x)}, 0, v6, vcc")
    base(sBA, sWS, sT0, H4)
    base(sBB, sWS, sT0, X1)
    a("v_add_u32 v13, 0x4000, v12")
    a(f"s_lshl_b32 s{sT1}, s{sT4}, 2")
    a(f"s_add_u32 s{sT1}, s{sT1}, {LST}")
    a("v_and_b32 v6, 3, v1")
    a("v_lshlrev_b32 v6, 5, v6")
    a("v_lshl_add_u32 v6, v3, 3, v6")
    a(f"v_add_u32 v6, s{sT1}, v6")
    stamp(8)
    lab = poll_begin()
    for t in range(4):
        for hf in range(2):
            a(f"global_load_dwordx4 {vr(16 + 8 * t + 4 * hf, 4)}, v{12 + hf}, {sp(sBA)} offset:{256 * t} sc1")
    poll_mid()
    AT = 8
    seq = [mfma(80, 120, 16), mfma(8, 120, 24), mfma(80, 120, 20, 80), mfma(8, 120, 28, 8),
           mfma(80, 92, 32, 80), mfma(8, 92, 40, 8), mfma(80, 92, 36, 80), mfma(8, 92, 44, 8)]
    interleave(seq, sentinel_ops(range(16, 48), 14), 2)
    poll_end(lab)
    att = [80, 82, 8, 10]
    for i in range(4):
        a(f"v_pk_fma_f32 v[{P0 + 2 * i}:{P0 + 2 * i + 1}], v[{att[i]}:{att[i] + 1}], v[{P1 + 2 * i}:{P1 + 2 * i + 1}], v[{P0 + 2 * i}:{P0 + 2 * i + 1}]")
    for i in range(4):
        a(f"v_cvt_pk_bf16_f32 v{84 + i}, v{P0 + 2 * i}, v{P0 + 2 * i + 1}")
    st = []
    for i in range(4):
        st.append(f"v_pk_fma_f32 v[{XV + 2 * i}:{XV + 2 * i + 1}], v[{att[i]}:{att[i] + 1}], v[{GA + 2 * i}:{GA + 2 * i + 1}], v[{XV + 2 * i}:{XV + 2 * i + 1}]")
    st.append(f"v_pk_mul_f32 v[8:9], v[{XV}:{XV + 1}], v[{XV}:{XV + 1}]")
    st.append(f"v_pk_add_f32 v[14:15], v[{XV}:{XV + 1}], v[{XV + 2}:{XV + 3}]")
    for i in range(1, 4):
        st.append(f"v_pk_fma_f32 v[8:9], v[{XV + 2 * i}:{XV + 2 * i + 1}], v[{XV + 2 * i}:{XV + 2 * i + 1}], v[8:9]")
        if i > 1:
            st.append(f"v_pk_add_f32 v[14:15], v[14:15], v[{XV + 2 * i}:{XV + 2 * i + 1}]")
    st.append("v_add_f32 v8, v8, v9")
    st.append("v_add_f32 v14, v14, v15")
    st.append("v_permlane32_swap_b32 v14, v8")
    st.append("v_add_f32 v14, v14, v8")
    interleave([mfma(ACC + 4 * e, 84, F + 4 * e) for e in range(8)], st, 2)
    d1 = [f"v_add_f32_dpp v{104 + e}, v{ACC + 4 * e + 1}, v{ACC + 4 * e} row_shl:4 {DPPM}" for e in range(8)]
    d2 = [f"v_add_f32_dpp v{104 + e}, v{ACC + 4 * e + 2}, v{104 + e} row_shl:8 {DPPM}" for e in range(8)]
    d3 = [f"v_add_f32_dpp v{104 + e}, v{ACC + 4 * e + 3}, v{104 + e} row_shl:12 {DPPM}" for e in range(8)]
    for ins in d1[:3]:
        a(ins)
    a(f"v_add_f32_dpp v14, v14, v14 quad_perm:[1,0,3,2] {DPPM}")
    for ins in d1[3:6]:
        a(ins)
    a(f"v_add_f32_dpp v14, v14, v14 quad_perm:[2,3,0,1] {DPPM}")
    for ins in d2[:3]:
        a(ins)
    a("v_mov_b32 v15, v14")
    for ins in d1[6:] + d2[3:5]:
        a(ins)
    a("v_permlane16_swap_b32 v15, v14")
    for ins in d2[5:]:
        a(ins)
    a("v_add_f32 v14, v14, v15")
    for ins in d3:
        a(ins)
    set_exec(0x000F000F000F000F)
    a("ds_write_b128 v5, v[104:107]")
    a("ds_write_b128 v5, v[108:111] offset:16")
    set_exec(0x0000111100001111)
    a("ds_write_b32 v6, v14")
    set_exec(-1)
    a("s_waitcnt lgkmcnt(0)")
    a("s_barrier")
    stamp(10)
    a(f"s_cmp_lg_u32 s2, {(16 + 13) * 8}")
    a("s_cbranch_scc1 L_fin2")
    for i in range(4):
        a(f"v_cvt_pk_bf16_f32 v{16 + i}, v{XV + 2 * i}, v{XV + 2 * i + 1}")
    a(f"global_store_dwordx4 v124, v[16:19], {sp(sBB)} sc1")
    a.label("L_fin2")
    finish_wave()

    a.label("L_FF0")
    a(f"s_cmp_ge_u32 s{sM}, 14")
    a("s_cbranch_scc1 L_fin2")
    a(f"s_cmp_lg_u32 s{sWAVE}, 0")
    a("s_cbranch_scc1 L_fin2")
    a("v_bfe_u32 v8, v0, 3, 2")
    a("v_lshlrev_b32 v5, 7, v8")
    a("v_and_b32 v6, 7, v0")
    a("v_lshl_add_u32 v5, v6, 3, v5")
    a("v_lshrrev_b32 v6, 5, v0")
    a("v_lshl_add_u32 v5, v6, 2, v5")
    a("v_add_u32 v6, 64, v5")
    a("v_lshlrev_b32 v8, 5, v8")
    a(f"s_mul_i32 s{sT0}, s{sG}, 14")
    a(f"s_add_u32 s{sT0}, s{sT0}, s{sM}")
    a(f"s_lshl_b32 s{sT0}, s{sT0}, 7")
    base(sBA, sWS, sT0, ACT)
    a("v_lshlrev_b32 v7, 2, v0")
    a(f"s_mov_b32 s{sT1}, {INV512:#x}")
    a("s_barrier                      ; 3")
    for k, L0 in enumerate((LU, LV)):
        o = L0 // 256
        a(f"ds_read2st64_b32 v[{16 + 8 * k}:{17 + 8 * k}], v5 offset0:{o} offset1:{o + 2}")
        a(f"ds_read2st64_b32 v[{18 + 8 * k}:{19 + 8 * k}], v5 offset0:{o + 4} offset1:{o + 6}")
        a(f"ds_read2st64_b32 v[{20 + 8 * k}:{21 + 8 * k}], v6 offset0:{o} offset1:{o + 2}")
        a(f"ds_read2st64_b32 v[{22 + 8 * k}:{23 + 8 * k}], v6 offset0:{o + 4} offset1:{o + 6}")
    a("s_waitcnt lgkmcnt(0)")
    for k in range(4):
        a(f"v_pk_add_f32 v[{16 + 4 * k}:{17 + 4 * k}], v[{16 + 4 * k}:{17 + 4 * k}], v[{18 + 4 * k}:{19 + 4 * k}]")
    for k in range(4):
        a(f"v_add_f32 v{40 + k}, v{16 + 4 * k}, v{17 + 4 * k}")
    a("s_barrier                      ; 4")
    o = LY // 256
    a(f"ds_read_b128 v[24:27], v8 offset:{LST}")
    a(f"ds_read_b128 v[28:31], v8 offset:{LST + 16}")
    a(f"ds_read2st64_b32 v[16:17], v5 offset0:{o} offset1:{o + 2}")
    a(f"ds_read2st64_b32 v[18:19], v5 offset0:{o + 4} offset1:{o + 6}")
    a(f"ds_read2st64_b32 v[20:21], v6 offset0:{o} offset1:{o + 2}")
    a(f"ds_read2st64_b32 v[22:23], v6 offset0:{o + 4} offset1:{o + 6}")
    a("s_waitcnt lgkmcnt(4)")
    a("v_pk_add_f32 v[24:25], v[24:25], v[26:27]")
    a("v_pk_add_f32 v[28:29], v[28:29], v[30:31]")
    a("v_add_f32 v24, v24, v25")
    a("v_add_f32 v28, v28, v29")
    a(f"v_mul_f32 v24, s{sT1}, v24             ; mean")
    a("v_mul_f32 v25, v24, v24")
    a(f"v_fma_f32 v28, v28, s{sT1}, -v25       ; variance")
    a("v_max_f32 v28, 0, v28")
    a(f"v_add_f32 v28, {EPS:#x}, v28")
    a("v_rsq_f32 v28, v28")
    a("s_waitcnt lgkmcnt(0)")
    a("v_pk_add_f32 v[16:17], v[16:17], v[18:19]")
    a("v_pk_add_f32 v[20:21], v[20:21], v[22:23]")
    a("v_add_f32 v16, v16, v17")
    a("v_add_f32 v17, v20, v21")
    a("v_fma_f32 v16, -v24, v40, v16")
    a("v_fma_f32 v17, -v24, v41, v17")
    a("v_fma_f32 v16, v16, v28, v42          ; gate")
    a("v_fma_f32 v17, v17, v28, v43          ; up")
    a(f"v_mul_f32 v18, {0x80000000 | LOG2E:#x}, v16")
    a("v_exp_f32 v18, v18")
    a("v_mul_f32 v16, v16, v17")
    a("v_add_f32 v18, 1.0, v18")
    a("v_rcp_f32 v18, v18")
    a("v_mul_f32 v16, v16, v18")
    a("v_mov_b32 v17, v16")
    a("v_permlane32_swap_b32 v16, v17")
    a("v_cvt_pk_bf16_f32 v16, v16, v17")
    set_exec(0xFFFFFFFF)
    a(f"global_store_dword v7, v16, {sp(sBA)} sc1")
    stamp(11)
    finish_wave()


def wq_pf():
    a(f"s_lshl_b32 s{sT0}, s{sT0}, 6")
    a(f"s_add_u32 s{sT0}, s{sT0}, s{sT1}")
    a(f"s_lshl_b32 s{sT0}, s{sT0}, 10")
    a("v_lshlrev_b32 v8, 13, v14")
    a("v_lshl_add_u32 v8, v15, 7, v8")
    a(f"v_add_u32 v8, s{sT0}, v8")
    prefetch(8, sWQ)


def sec_entry():
    a(f"{NAME}_kernel:")
    a("s_load_dwordx16 s[4:19], s[0:1], 0")
    a("s_load_dwordx8 s[20:27], s[0:1], 64")
    a("s_load_dwordx2 s[30:31], s[0:1], 104")
    if OPT["stamps"]:
        a("v_mov_b32 v126, 0")
        a("s_memrealtime s[100:101]")
    if OPT["probe"]:
        a("s_memrealtime s[100:101]")
    a("s_cmp_ge_u32 s2, 256")
    a("s_cbranch_scc1 L_exit")
    a("v_lshrrev_b32 v1, 6, v0")
    if OPT["pf"]:
        a(f"s_getpc_b64 {sp(sPC)}")
        a.label("L_pc0")
        a("v_lshlrev_b32 v2, 7, v0")
    a(f"v_readfirstlane_b32 s{sWAVE}, v1")
    if OPT["pf"]:
        a(f"s_sub_u32 s{sPC}, s{sPC}, L_pc0-L_code0")
        a(f"s_subb_u32 s{sPC + 1}, s{sPC + 1}, 0")
        a("v_cmp_gt_u32 vcc, (L_exit-L_code0)/128, v0")
        a("s_cbranch_vccz L_nopf")
        a("s_mov_b64 exec, vcc")
        a(f"global_load_dword v127, v2, {sp(sPC)}")
        a("s_mov_b64 exec, -1")
        a.label("L_nopf")
    a("v_and_b32 v0, 63, v0")
    a(f"s_and_b32 s{sT1}, s2, 7")
    a(f"s_lshr_b32 s{sT2}, s2, 3")
    a("v_lshrrev_b32 v1, 2, v0        ; l>>2")
    a("v_and_b32 v2, 3, v0            ; l&3")
    a("v_lshrrev_b32 v3, 4, v0        ; l>>4")
    a("v_mov_b32 v4, 0")
    a("v_and_b32 v5, 3, v1")
    a("v_lshrrev_b32 v14, 3, v0")
    a("v_and_b32 v15, 7, v0")
    a("s_cmp_lt_u32 s2, 128")
    a("s_cbranch_scc1 L_G")
    a(f"s_sub_u32 s{sT2}, s{sT2}, 16             ; a = 4b + s")
    a(f"s_and_b32 s{sT0}, s{sT2}, 12")
    a(f"s_lshl_b32 s{sT0}, s{sT0}, 1")
    a(f"s_add_u32 s{sT0}, s{sT0}, s{sT1}")
    a(f"s_lshl_b32 s{sT0}, s{sT0}, 4")
    a(f"s_and_b32 s{sT3}, s{sT2}, 3")
    a(f"s_add_u32 s{sT0}, s{sT0}, s{sT3}")
    a(f"s_lshl_b32 s{sT0}, s{sT0}, 3")
    a(f"s_add_u32 s{sT0}, s{sT0}, s{sWAVE}")
    a(f"s_lshl_b32 s{sT0}, s{sT0}, 13")
    a(f"s_add_u32 s{sT0}, s{sT0}, {3072 * 256 + 4096}")
    a("v_lshlrev_b32 v6, 8, v5")
    a("v_lshl_add_u32 v6, v3, 6, v6")
    a("v_lshl_add_u32 v6, v2, 4, v6")
    a("v_lshlrev_b32 v7, 4, v0")
    a("v_lshlrev_b32 v8, 2, v2")
    a(f"ds_write_b32 v8, v4 offset:{LQF}")
    a("s_waitcnt lgkmcnt(0)")
    a("s_barrier                      ; 0")
    base(sBA, sK, sT0)
    base(sBB, sV, sT0)
    a(f"global_load_dword v12, v4, {sp(sWS)} sc1      ; epoch")
    if OPT["ahelp"]:
        a(f"s_cmp_lg_u32 s{sWAVE}, 0")
        a("s_cbranch_scc1 L_nopfq")
        a(f"s_add_u32 s{sT0}, s{sT2}, 48")
        wq_pf()
        a.label("L_nopfq")
    if OPT["athr"] < 8:
        a(f"s_cmp_lt_u32 s{sWAVE}, {OPT['athr']}")
        a("s_cbranch_scc1 L_Ald")
        a("s_waitcnt vmcnt(0)")
        a.label("L_Ald")
    for u in range(8):
        a(f"global_load_dwordx4 {vr(KR + 4 * u, 4)}, v6, {sp(sBA)} offset:{1024 * u - 4096}{NT}")
    for u in range(8):
        a(f"global_load_dwordx4 {vr(VR + 4 * u, 4)}, v7, {sp(sBB)} offset:{1024 * u - 4096}{NT}")
    a("s_branch L_A2")
    a.label("L_G")
    a(f"s_and_b32 s{sT3}, s{sT2}, 1")
    a(f"s_lshr_b32 s{sT0}, s{sT2}, 2")
    a(f"s_and_b32 s{sT0}, s{sT0}, 2")
    a(f"s_or_b32 s{sKIND}, s{sT3}, s{sT0}")
    if OPT["pfa"]:
        a("v_lshrrev_b32 v6, 1, v0")
        a(f"v_lshl_add_u32 v6, s{sT2}, 5, v6")
        a("v_mul_u32_u24 v6, 6144, v6")
        a("v_and_b32 v7, 1, v0")
        a("v_lshl_add_u32 v6, v7, 10, v6")
        a(f"v_lshl_add_u32 v6, s{sT1}, 7, v6")
        a(f"s_cmp_lg_u32 s{sWAVE}, 0")
        a("s_cbranch_scc1 L_nopfa")
        a("s_waitcnt lgkmcnt(0)")
        prefetch(6, sWM)
        a.label("L_nopfa")
    a(f"s_bfe_u32 s{sT0}, s{sT2}, 0x20001")
    a(f"s_lshl2_add_u32 s{sCNT}, s{sT1}, s{sT0}      ; p = 4g + ((m>>1)&3)")
    a(f"s_cmp_eq_u32 s{sKIND}, 1")
    a("s_cbranch_scc1 L_GA")
    a(f"s_sub_u32 s{sT4}, s{sWAVE}, 1")
    a(f"s_cmp_ge_u32 s{sT4}, 4")
    a("s_cbranch_scc1 L_nopfw")
    a(f"s_lshr_b32 s{sT0}, s{sT2}, 1")
    a(f"s_lshl2_add_u32 s{sT0}, s{sT3}, s{sT0}")
    a(f"s_lshl2_add_u32 s{sT0}, s{sT0}, s{sT4}")
    a("s_waitcnt lgkmcnt(0)")
    wq_pf()
    a.label("L_nopfw")
    a(f"s_cmp_eq_u32 s{sKIND}, 3")
    a("s_cbranch_scc1 L_GB")
    a(f"s_lshl_b32 s{sT0}, s{sWAVE}, 9")
    a(f"s_add_u32 s{sT0}, s{sT0}, s{sT1}")
    a(f"s_lshl4_add_u32 s{sT0}, s{sT0}, s{sT2}")
    a(f"s_lshl_b32 s{sT0}, s{sT0}, 6")
    a("v_lshlrev_b32 v6, 16, v14")
    a("v_lshl_add_u32 v6, v15, 4, v6")
    a(f"s_movk_i32 s{sT3}, 8192")
    a(f"s_lshr_b32 s{sT4}, s{sT2}, 2")
    a(f"s_lshl2_add_u32 s{sT4}, s{sT1}, s{sT4}")
    a(f"s_mul_i32 s{sT4}, s{sT4}, {NREP * 128}")
    a(f"s_and_b32 s{sCNT}, s{sT2}, 2")
    a(f"s_add_u32 s{sCNT}, s{sCNT}, s{sWAVE}")
    a(f"s_lshl2_add_u32 s{sT4}, s{sCNT}, s{sT4}")
    a(f"s_add_u32 s{sT4}, s{sT4}, {FL:#x}")
    a(f"v_and_b32 v96, {NREP - 1}, v0")
    a(f"v_lshl_add_u32 v96, v96, 7, s{sT4}")
    a("s_waitcnt lgkmcnt(0)")
    base(sBB, sWQ, sT0)
    a(f"global_load_dword v12, v4, {sp(sWS)} sc1      ; epoch")
    a(f"s_cmp_lg_u32 s{sWAVE}, 1")
    a("s_cbranch_scc1 L_G_ld")
    a(f"global_load_dword v127, v96, {sp(sWS)} sc1")
    a.label("L_G_ld")
    for j in range(8):
        a(f"global_load_dwordx4 {vr(W + 4 * j, 4)}, v6, {sp(sBB)}{NT}")
        if j < 7:
            a(f"v_add_u32 v6, s{sT3}, v6")
    a(f"s_cmp_eq_u32 s{sKIND}, 1")
    a("s_cbranch_scc0 L_GQ2")
    a("s_branch L_GM2")
    a.label("L_GA")
    a(f"s_cmp_ge_u32 s{sWAVE}, 4")
    a("s_cbranch_scc1 L_GQA")
    a(f"s_lshl_b32 s{sT0}, s{sCNT}, 5")
    a(f"s_mul_i32 s{sT3}, s{sWAVE}, {128 * 6144}")
    a(f"s_add_u32 s{sT0}, s{sT0}, s{sT3}")
    a("v_lshlrev_b32 v5, 10, v5")
    a("v_lshl_add_u32 v5, v3, 6, v5")
    a("v_lshl_add_u32 v5, v2, 4, v5")
    a(f"v_lshl_add_u32 v5, s{sWAVE}, 8, v5")
    a("v_mul_u32_u24 v6, 49152, v1")
    a("v_and_b32 v7, 1, v2")
    a("v_lshl_add_u32 v6, v7, 4, v6")
    a("v_lshrrev_b32 v7, 1, v2")
    a("v_lshl_add_u32 v6, v7, 10, v6")
    a("v_mov_b32 v96, 0")
    a(f"s_movk_i32 s{sT3}, 6144")
    a("s_waitcnt lgkmcnt(0)")
    base(sBB, sWM, sT0)
    a(f"global_load_dwordx4 v[8:11], v5, {sp(sC)}")
    a("s_branch L_G_ld")
    a.label("L_GQA")
    a("s_setprio 3")
    a("v_and_b32 v7, 15, v0")
    a("v_lshlrev_b32 v13, 10, v3")
    a("v_lshl_add_u32 v14, v7, 4, v13")
    a("v_lshl_add_u32 v15, v7, 1, v13")
    a(f"v_lshl_add_u32 v15, s{sCNT}, 5, v15")
    a("s_waitcnt lgkmcnt(0)")
    a(f"s_cmp_lg_u32 s{sWAVE}, 7")
    a("s_cbranch_scc1 L_GQA2")
    a(f"global_load_dword v12, v4, {sp(sWS)} sc1      ; epoch")
    for t in range(4):
        a(f"global_load_dwordx4 {vr(80 + 4 * t, 4)}, v14, {sp(sX)} offset:{256 * t}")
    a(f"global_load_ushort v13, v15, {sp(sX)}")
    a("s_branch L_GQA2")
    a.label("L_GB")
    a(f"s_cmp_lg_u32 s{sWAVE}, 7")
    a("s_cbranch_scc1 L_GB1")
    a("s_setprio 3")
    a(f"s_mul_i32 s{sT0}, s{sCNT}, {CLR_PER_WG * 1024}")
    a("v_lshlrev_b32 v6, 4, v0")
    for i in range(4):
        a(f"v_mov_b32 v{8 + i}, -1")
    a("s_waitcnt lgkmcnt(0)")
    base(sBA, sWS, sT0, CLR + 4096)
    a(f"global_load_dword v12, v4, {sp(sWS)} sc1      ; epoch")
    for i in range(CLR_PER_WG):
        a(f"global_store_dwordx4 v6, v[8:11], {sp(sBA)} offset:{1024 * i - 4096} sc1")
    a("s_branch L_GB2")


def ids():
    a(f"s_mov_b32 s{sG}, s{sT1}")
    a(f"s_mov_b32 s{sM}, s{sT2}")
    sels()
    if OPT["stamps"]:
        a("s_mov_b32 m0, 0")
    if OPT["probe"]:
        a("v_mov_b32 v160, s100")
        a("v_mov_b32 v161, s100")
        a("v_mov_b32 v162, 0")
        a(f"s_getreg_b32 s100, hwreg(HW_REG_XCC_ID, 0, 4)")
        a("v_mov_b32 v163, s100")


def silu_frag():
    unpack(80, 8, 4)
    for i in range(8):
        a(f"v_mul_f32 v{88 + i}, {0x80000000 | LOG2E:#x}, v{80 + i}")
    for i in range(8):
        a(f"v_exp_f32 v{88 + i}, v{88 + i}")
    for i in range(8):
        a(f"v_add_f32 v{88 + i}, 1.0, v{88 + i}")
    for i in range(8):
        a(f"v_rcp_f32 v{88 + i}, v{88 + i}")
    for i in range(8):
        a(f"v_mul_f32 v{80 + i}, v{80 + i}, v{88 + i}")
    for i in range(4):
        a(f"v_cvt_pk_bf16_f32 v{8 + i}, v{80 + 2 * i}, v{81 + 2 * i}")


def xcc_flag():
    a(f"s_lshr_b32 s{sT0}, s{sM}, 2")
    a(f"s_lshl2_add_u32 s{sT0}, s{sG}, s{sT0}")
    a(f"s_mul_i32 s{sT0}, s{sT0}, {NREP * 128}")
    a(f"s_and_b32 s{sT1}, s{sM}, 2")
    a(f"s_lshl1_add_u32 s{sT0}, s{sT1}, s{sT0}")
    a(f"s_add_u32 s{sT0}, s{sT0}, {FL + 16:#x}")
    a(f"v_and_b32 v5, {NREP - 1}, v0")
    a(f"v_lshl_add_u32 v5, v5, 7, s{sT0}")
    a(f"s_getreg_b32 s{sT0}, hwreg(HW_REG_XCC_ID, 0, 4)")
    a(f"s_xor_b32 s{sT0}, s{sTAG}, s{sT0}")
    a(f"v_mov_b32 v6, s{sT0}")
    a(f"global_store_dword v5, v6, {sp(sWS)}")


def cf_poll():
    base(sBB, sWS, None, CF)
    a("v_and_b32 v5, 31, v0")
    a("v_lshlrev_b32 v5, 7, v5")
    lab = poll_begin()
    a(f"global_load_dword v6, v5, {sp(sBB)} sc1")
    poll_mid(sleep=4)
    a(f"v_cmp_ne_u32 vcc, s{sTAG}, v6")
    poll_end(lab)


def tile64_tail(first):
    for e in range(first, 8):
        a(mfma(ACC + 4 * e, 8, F + 4 * e))
    for e in range(8):
        a(f"v_add_f32_dpp v{80 + e}, v{ACC + 4 * e + 1}, v{ACC + 4 * e} row_shl:8 {DPPM}")
    set_exec(0x00FF00FF00FF00FF)
    a("ds_write_b128 v6, v[80:83]")
    a("ds_write_b128 v6, v[84:87] offset:16")
    set_exec(-1)


def tile64_addr():
    a("v_lshlrev_b32 v6, 8, v3")
    a("v_lshl_add_u32 v6, v15, 5, v6")
    a(f"v_lshl_add_u32 v6, s{sWAVE}, 10, v6")
    a("v_lshlrev_b32 v7, 3, v0")
    a(f"v_lshl_add_u32 v7, s{sWAVE}, 9, v7")


def tile64_sum():
    for t in range(4):
        a(f"ds_read2st64_b64 {vr(16 + 4 * t, 4)}, v7 offset0:{4 * t} offset1:{4 * t + 2}")


def sec_gm():
    CLS[0] = 4
    a.label("L_GM2")
    ids()
    stamp(1)
    a("s_waitcnt vmcnt(8)")
    silu_frag()
    a("v_lshlrev_b32 v5, 7, v3")
    a("v_lshl_add_u32 v5, v2, 5, v5")
    a(f"v_lshl_add_u32 v5, s{sWAVE}, 9, v5")
    perms8(W, F, waits=[6, 4, 2, 0])
    for e in range(8):
        a(mfma(ACC + 4 * e, 8, F + 4 * e))
    diagX_reduce(ACC, 48)
    set_exec(0x000F000F000F000F)
    a("ds_write_b128 v5, v[48:51]")
    a("ds_write_b128 v5, v[52:55] offset:16")
    set_exec(-1)
    a("s_waitcnt lgkmcnt(0)")
    stamp(2)
    a("s_barrier                      ; 1")
    if OPT["bhelp"]:
        a(f"s_lshl1_add_u32 s{sT0}, s{sM}, s{sWAVE}")
        a(f"s_add_u32 s{sT0}, s{sT0}, 14")
        a(f"s_mul_i32 s{sT0}, s{sT0}, {16 * 6144}")
        a(f"s_lshl_b32 s{sT1}, s{sG}, 9")
        a(f"s_add_u32 s{sT0}, s{sT0}, s{sT1}")
        a(f"s_add_u32 s{sT0}, s{sT0}, 2048")
        a("v_mul_u32_u24 v8, 6144, v1")
        a("v_lshl_add_u32 v8, v2, 7, v8")
        a(f"v_add_u32 v8, s{sT0}, v8")
        a("s_barrier")
        prefetch(8, sWM)
    a("s_branch L_WO")


def sec_gb():
    CLS[0] = 2
    a.label("L_GB1")
    a("s_waitcnt lgkmcnt(0)")
    a.label("L_GB2")
    ids()
    a("v_lshlrev_b32 v5, 10, v5")
    a("v_lshl_add_u32 v5, v3, 5, v5")
    a("v_and_b32 v7, 1, v0")
    a("v_lshl_add_u32 v5, v7, 4, v5")
    a(f"v_lshl_add_u32 v16, s{sWAVE}, 7, v5")
    a(f"s_lshl_b32 s{sT0}, s{sCNT}, 7")
    a(f"s_mul_i32 s{sT3}, s{sWAVE}, {64 * 6144}")
    a(f"s_add_u32 s{sT0}, s{sT0}, s{sT3}")
    base(sBC, sWM, sT0, 2048)
    a(f"s_lshl_b32 s{sT4}, s{sCNT}, 9           ; p*512")
    a("v_mul_u32_u24 v13, 49152, v14")
    a("v_lshl_add_u32 v13, v15, 4, v13")
    a(f"s_movk_i32 s{sT3}, 6144")
    a(f"s_cmp_lg_u32 s{sWAVE}, 7")
    a("s_cbranch_scc1 L_GB3")
    a("s_waitcnt vmcnt(0)")
    make_tag(12)
    base(sBB, sWS, None, CF)
    a(f"v_lshlrev_b32_e64 v5, 7, s{sCNT}")
    a(f"v_mov_b32 v6, s{sTAG}")
    set_exec(1)
    a(f"global_store_dword v5, v6, {sp(sBB)} sc1")
    set_exec(-1)
    xcc_flag()
    a("s_setprio 0")
    a.label("L_GB3")
    stamp(1)
    a("s_barrier")
    a(f"global_load_dwordx4 v[8:11], v16, {sp(sC)}")
    for j in range(8):
        a(f"global_load_dwordx4 {vr(W + 4 * j, 4)}, v13, {sp(sBC)}{NT}")
        if j < 7:
            a(f"v_add_u32 v13, s{sT3}, v13")
    a("s_waitcnt vmcnt(8)")
    silu_frag()
    tile64_addr()
    perms8(W, F, waits=[6, 4, 2, 0])
    tile64_tail(0)
    a(f"s_cmp_lg_u32 s{sWAVE}, 7")
    a("s_cbranch_scc1 L_GB4")
    cf_poll()
    a.label("L_GB4")
    a("s_waitcnt lgkmcnt(0)")
    stamp(2)
    a("s_barrier                      ; 1")
    a(f"s_cmp_ge_u32 s{sWAVE}, 2")
    a("s_cbranch_scc1 L_WO")
    tile64_sum()
    base(sBA, sWS, sT4, MODB)
    a("v_and_b32 v5, 2, v0")
    a("v_lshlrev_b32 v5, 7, v5")
    a("v_and_b32 v6, 32, v0")
    a("v_lshl_add_u32 v5, v6, 1, v5")
    a(f"v_lshl_add_u32 v5, s{sWAVE}, 7, v5")
    a("v_and_b32 v6, 13, v0")
    a("v_lshl_add_u32 v5, v6, 2, v5")
    a("v_bfe_u32 v6, v0, 4, 1")
    a("v_lshl_add_u32 v5, v6, 3, v5")
    a("s_waitcnt lgkmcnt(0)")
    sum8_b64(16)
    a("v_cvt_pk_bf16_f32 v12, v16, v17")
    a(f"global_store_dword v5, v12, {sp(sBA)} sc1")
    stamp(3)
    a("s_branch L_WO")


def sec_ln():
    CLS[0] = 3
    a.label("L_GQA2")
    ids()
    stamp(1)
    a(f"s_cmp_lg_u32 s{sWAVE}, 7")
    a("s_cbranch_scc1 L_GQA3")
    a("s_waitcnt vmcnt(0)")
    make_tag(12)
    unpack(16, 80, 16)
    a("v_pk_add_f32 v[8:9], v[16:17], v[18:19]")
    for i in range(2, 16):
        a(f"v_pk_add_f32 v[8:9], v[8:9], v[{16 + 2 * i}:{17 + 2 * i}]")
    a("v_add_f32 v8, v8, v9")
    row_allsum(8)
    a(f"v_mul_f32 v8, {INV512:#x}, v8       ; mean")
    a("v_mov_b32 v9, v8")
    for i in range(16):
        a(f"v_pk_add_f32 v[{16 + 2 * i}:{17 + 2 * i}], v[{16 + 2 * i}:{17 + 2 * i}], v[8:9] neg_lo:[0,1] neg_hi:[0,1]")
    a("v_pk_mul_f32 v[10:11], v[16:17], v[16:17]")
    for i in range(1, 16):
        a(f"v_pk_fma_f32 v[10:11], v[{16 + 2 * i}:{17 + 2 * i}], v[{16 + 2 * i}:{17 + 2 * i}], v[10:11]")
    a("v_add_f32 v10, v10, v11")
    row_allsum(10)
    a(f"v_mul_f32 v9, {INV512:#x}, v10      ; var")
    round_bf16([8, 9])
    a(f"v_add_f32 v9, {EPS:#x}, v9")
    round_bf16([9])
    a("v_sqrt_f32 v9, v9")
    round_bf16([9])
    a("v_rcp_f32 v9, v9")
    a("v_lshlrev_b32 v13, 16, v13")
    a("v_sub_f32 v13, v13, v8")
    round_bf16([13])
    a("v_mul_f32 v13, v13, v9")
    round_bf16([13])
    a("v_lshlrev_b32 v5, 7, v3")
    a("v_lshl_add_u32 v5, v7, 2, v5")
    a("v_add_u32 v10, 64, v5")
    a("v_lshlrev_b32 v14, 6, v3              ; b*64")
    a("v_and_b32 v8, 8, v7")
    a("v_lshl_add_u32 v14, v8, 2, v14        ; c'lo*32")
    a("v_and_b32 v8, 2, v7")
    a("v_lshl_add_u32 v14, v8, 3, v14        ; (d&1)*16")
    a("v_and_b32 v8, 4, v7")
    a("v_lshl_add_u32 v14, v8, 1, v14        ; (d>>1)*8")
    a(f"s_lshl_b32 s{sT0}, s{sCNT}, 8")
    base(sBA, sWS, sT0, H1)
    a(f"v_mov_b32 v9, s{sTAG}")
    stamp(2)
    a("s_barrier                      ; 1")
    a("ds_read2st64_b32 v[80:81], v5 offset0:0 offset1:2")
    a("ds_read2st64_b32 v[82:83], v5 offset0:4 offset1:6")
    a("ds_read2st64_b32 v[84:85], v10 offset0:0 offset1:2")
    a("ds_read2st64_b32 v[86:87], v10 offset0:4 offset1:6")
    a("s_waitcnt lgkmcnt(0)")
    a("v_pk_add_f32 v[80:81], v[80:81], v[82:83]")
    a("v_pk_add_f32 v[84:85], v[84:85], v[86:87]")
    a("v_add_f32 v80, v80, v81               ; sa")
    a("v_add_f32 v81, v84, v85               ; ca")
    round_bf16([80, 81])
    a("v_add_f32 v81, 1.0, v81")
    round_bf16([81])
    a("v_mul_f32 v81, v13, v81")
    round_bf16([81])
    a("v_add_f32 v80, v81, v80")
    a(f"v_mov_b32_dpp v81, v80 quad_perm:[1,1,3,3] {DPPM}")
    a("v_cvt_pk_bf16_f32 v8, v80, v81")
    set_exec(0x5555555555555555)
    a(f"global_store_dwordx2 v14, v[8:9], {sp(sBA)} sc1")
    set_exec(-1)
    stamp(3)
    xcc_flag()
    if OPT["bhelp"]:
        a("s_barrier                      ; 1b")
    cf_poll()
    a("s_branch L_WO")
    a.label("L_GQA3")
    a("s_barrier                      ; 1")
    if OPT["bhelp"]:
        a("s_barrier                      ; 1b")
    a("s_branch L_WO")


def sec_gq():
    CLS[0] = 0
    a.label("L_GQ2")
    ids()
    stamp(1)
    a(f"s_lshl_b32 s{sT0}, s{sWAVE}, 10")
    base(sBA, sWS, sT0, H1)
    a(f"s_lshl_b32 s{sT0}, s{sWAVE}, 9")
    base(sBC, sWS, sT0, CF)
    a("v_lshlrev_b32 v5, 6, v1")
    a("v_and_b32 v7, 1, v0")
    a("v_lshl_add_u32 v5, v7, 5, v5")
    a("v_lshlrev_b32 v98, 7, v2")
    tile64_addr()
    a(f"s_lshl_b32 s{sT0}, s{sG}, 12")
    a(f"s_lshl_b32 s{sT1}, s{sM}, 6")
    a(f"s_add_u32 s{sT0}, s{sT0}, s{sT1}")
    a(f"s_lshl_b32 s{sT1}, s{sWAVE}, 11")
    a(f"s_add_u32 s{sT0}, s{sT0}, s{sT1}")
    a("v_and_b32 v97, 31, v0")
    a(f"v_lshl_add_u32 v97, v97, 2, s{sT0}")
    a("v_and_b32 v99, 32, v0")
    a("v_lshl_add_u32 v97, v99, 5, v97")
    a("v_lshlrev_b32 v99, 1, v97")
    base(sBB, sWS, None, QS)
    a(f"s_cmp_ge_u32 s{sWAVE}, 2")
    a("s_cbranch_scc1 L_GQ3")
    a(f"global_load_dword v127, v97, {sp(sBB)} sc1")
    a.label("L_GQ3")
    a("s_waitcnt vmcnt(8)")
    make_tag(12)
    perms8(W, F, waits=[6, 4, 2, 0])
    stamp(4)
    lab = poll_begin()
    a(f"global_load_dwordx4 v[8:11], v5, {sp(sBA)} sc1")
    a(f"global_load_dwordx4 v[12:15], v5, {sp(sBA)} offset:16 sc1")
    a(f"global_load_dword v84, v98, {sp(sBC)} sc1")
    poll_mid()
    a(f"v_xor_b32 v80, s{sTAG}, v9")
    a(f"v_xor_b32 v81, s{sTAG}, v11")
    a("v_mov_b32 v9, v12")
    a("v_mov_b32 v11, v14")
    a(f"v_xor_b32 v82, s{sTAG}, v13")
    a(f"v_xor_b32 v83, s{sTAG}, v15")
    interleave([mfma(ACC + 4 * e, 8, F + 4 * e) for e in range(2)],
               [f"v_xor_b32 v84, s{sTAG}, v84", "v_or3_b32 v80, v80, v81, v82", "v_or3_b32 v80, v80, v83, v84", "v_cmp_ne_u32 vcc, 0, v80"], 2)
    poll_end(lab)
    tile64_tail(2)
    a("s_waitcnt lgkmcnt(0)")
    stamp(5)
    a("s_barrier                      ; 1")
    a(f"s_cmp_ge_u32 s{sWAVE}, 2")
    a("s_cbranch_scc1 L_WO")
    tile64_sum()
    base(sBA, sWS, None, H2G)
    a(f"s_getreg_b32 s{sT0}, hwreg(HW_REG_XCC_ID, 0, 4)")
    a(f"s_xor_b32 s{sT0}, s{sTAG}, s{sT0}")
    a(f"v_mov_b32 v9, s{sT0}")
    a("s_waitcnt lgkmcnt(0)")
    sum8_b64(16)
    a("v_cvt_pk_bf16_f32 v8, v16, v17")
    a(f"global_store_dword v97, v8, {sp(sBB)}")
    a("s_waitcnt vmcnt(0)")
    a(f"global_store_dword v96, v9, {sp(sWS)}")
    a(f"global_store_dwordx2 v99, v[8:9], {sp(sBA)} sc1")
    stamp(6)
    a("s_branch L_WO")


WD = 128


def down_loads():
    a(f"s_lshr_b32 s{sT2}, s{sM}, 1")
    a(f"s_lshl2_add_u32 s{sT0}, s{sG}, s{sT2}")
    a(f"s_lshl_b32 s{sT0}, s{sT0}, 5")
    a(f"s_lshl_b32 s{sT2}, s{sWAVE}, 18")
    a(f"s_add_u32 s{sT0}, s{sT0}, s{sT2}")
    base(sBB, sWD, sT0, 4096)
    a("v_lshlrev_b32 v6, 13, v1")
    a("v_lshl_add_u32 v6, v2, 3, v6")
    a("v_add_u32 v7, 0x20000, v6")
    for f in range(2):
        for j in range(8):
            a(f"global_load_dwordx2 {vr(WD + 16 * f + 2 * j, 2)}, v{7 if f else 6}, {sp(sBB)} offset:{1024 * j - 4096}{NTW}")


def sec_wo():
    CLS[0] = 0
    a.label("L_WO")
    a(f"s_lshr_b32 s{sT1}, s{sWAVE}, 1")
    a(f"s_lshl2_add_u32 s{sT0}, s{sG}, s{sT1}")
    a(f"s_lshl_b32 s{sT0}, s{sT0}, 5")
    a(f"s_and_b32 s{sT2}, s{sWAVE}, 1")
    a(f"s_add_u32 s{sT0}, s{sT0}, s{sT2}")
    a(f"s_lshl_b32 s{sT0}, s{sT0}, 6            ; (512g + 128h + 4*(i&1)) * 16")
    a(f"s_add_u32 s{sT0}, s{sT0}, s{sM}")
    a(f"s_lshl_b32 s{sT0}, s{sT0}, 6")
    base(sBB, sWO, sT0)
    a("v_and_b32 v7, 15, v0")
    a("v_and_b32 v6, 1, v3")
    a("v_lshlrev_b32 v6, 16, v6")
    a("v_lshrrev_b32 v5, 1, v3")
    a("v_lshl_add_u32 v6, v5, 10, v6")
    a("v_lshl_add_u32 v6, v7, 2, v6")
    a(f"s_movk_i32 s{sT3}, 8192")
    a("s_setprio 0")
    a(f"s_lshl4_add_u32 s{sT0}, s{sG}, s{sM}")
    a(f"s_lshl2_add_u32 s{sT0}, s{sT0}, s{sWAVE}")
    a(f"s_lshl_b32 s{sT0}, s{sT0}, 13")
    a(f"v_lshl_add_u32 v8, v0, 7, s{sT0}")
    if OPT["wowait"]:
        a(f"s_and_b32 s{sT0}, s{sM}, 1")
        a(f"s_lshl_b32 s{sT0}, s{sT0}, 3")
        a(f"s_add_u32 s{sT0}, s{sT0}, s{sWAVE}")
        a(f"s_cmp_lg_u32 s{sT0}, 15")
        a("s_cbranch_scc1 L_WO0")
        a(f"s_mul_i32 s{sT0}, s{sG}, {4 * NREP * 128}")
        base(sBA, sWS, sT0, FL)
        a("v_and_b32 v9, 3, v1")
        a(f"v_mul_u32_u24 v9, {NREP * 128}, v9")
        a("v_lshl_add_u32 v9, v2, 2, v9")
        a(f"s_movk_i32 s{sCNT}, 40")
        a.label("L_WOw")
        a(f"global_load_dword v10, v9, {sp(sBA)} sc1")
        poll_mid(sleep=2)
        a(f"v_xor_b32 v10, s{sTAG}, v10")
        a("v_cmp_gt_u32 vcc, 16, v10")
        a("s_cmp_eq_u64 vcc, 0")
        a("s_cselect_b64 vcc, -1, 0")
        poll_end("L_WOw")
        a.label("L_WO0")
    a("s_barrier")
    if OPT["wopf"]:
        a(f"s_cmp_ge_u32 s{sWAVE}, 4")
        a("s_cbranch_scc1 L_WO1")
        prefetch(8, sWO)
        a.label("L_WO1")
    for j in range(8):
        for ks in range(2):
            a(f"global_load_dword v{96 + 8 * ks + j}, v6, {sp(sBB)} offset:{2048 * ks}{NTW}")
        if j < 7:
            a(f"v_add_u32 v6, s{sT3}, v6")
    a(f"s_lshl3_add_u32 s{sT0}, s{sG}, s{sWAVE}")
    a(f"s_lshl_b32 s{sT0}, s{sT0}, 11")
    base(sBA, sWS, sT0, H3O)
    a(f"s_lshl2_add_u32 s{sT0}, s{sG}, s{sT1}")
    a(f"s_lshl_b32 s{sT0}, s{sT0}, 7")
    base(sBC, sWS, sT0, H3ML)
    a("v_lshlrev_b32 v5, 4, v0")
    a("v_lshlrev_b32 v6, 5, v3")
    a("v_lshlrev_b32 v12, 3, v0")
    a(f"v_lshl_add_u32 v7, s{sWAVE}, 9, v12")
    a("s_waitcnt vmcnt(0)")
    stamp(7)
    for ks in range(2):
        for eo in range(2):
            for x in range(4):
                a(f"v_perm_b32 v{32 + 8 * ks + 4 * eo + x}, v{96 + 8 * ks + 2 * x + 1}, v{96 + 8 * ks + 2 * x}, s{sHI if eo else sLO}")
    lab = poll_begin()
    a(f"global_load_dwordx4 v[56:59], v6, {sp(sBC)} sc1")
    a(f"global_load_dwordx4 v[60:63], v6, {sp(sBC)} offset:16 sc1")
    poll_mid()
    for ins in sentinel_ops(range(56, 64), 8):
        a(ins)
    poll_end(lab)
    a(f"s_lshl4_add_u32 s{sT0}, s{sG}, s{sM}")
    a(f"s_lshl_b32 s{sT0}, s{sT0}, 8")
    base(sBB, sWS, sT0, H4)
    a("v_lshlrev_b32 v6, 2, v0")
    a("v_max3_f32 v8, v56, v58, v60")
    a("v_max_f32 v8, v8, v62")
    for s in range(4):
        a(f"v_sub_f32 v{56 + 2 * s}, v{56 + 2 * s}, v8")
    for s in range(4):
        a(f"v_exp_f32 v{56 + 2 * s}, v{56 + 2 * s}")
    a("v_mul_f32 v9, v56, v57")
    for s in range(1, 4):
        a(f"v_fmac_f32 v9, v{56 + 2 * s}, v{57 + 2 * s}")
    a("v_rcp_f32 v9, v9")
    for s in range(4):
        a(f"v_mul_f32 v{64 + s}, v{56 + 2 * s}, v9")
    stamp(8)
    lab = poll_begin()
    a(f"global_load_dwordx4 v[48:51], v5, {sp(sBA)} sc1")
    a(f"global_load_dwordx4 v[52:55], v5, {sp(sBA)} offset:1024 sc1")
    poll_mid()
    interleave([mfma(16, 48, 32), mfma(20, 48, 36), mfma(16, 52, 40, 16), mfma(20, 52, 44, 20)],
               sentinel_ops(range(48, 56), 8), 2)
    poll_end(lab)
    a("v_pk_mul_f32 v[16:17], v[16:17], v[64:65]")
    a("v_pk_mul_f32 v[20:21], v[20:21], v[64:65]")
    a("v_pk_fma_f32 v[16:17], v[18:19], v[66:67], v[16:17]")
    a("v_pk_fma_f32 v[20:21], v[22:23], v[66:67], v[20:21]")
    a("v_add_f32 v10, v16, v17")
    a("v_add_f32 v11, v20, v21")
    a("ds_write_b64 v7, v[10:11] offset:6144")
    a("s_waitcnt lgkmcnt(0)")
    stamp(9)
    a("s_barrier                      ; 3")
    a(f"s_cmp_lg_u32 s{sWAVE}, 7")
    a("s_cbranch_scc1 L_DOWN")
    for t in range(4):
        a(f"ds_read2st64_b64 {vr(16 + 4 * t, 4)}, v12 offset0:{12 + 2 * t} offset1:{13 + 2 * t}")
    a("s_waitcnt lgkmcnt(0)")
    sum8_b64(16)
    a("v_cvt_pk_bf16_f32 v8, v16, v17")
    a(f"global_store_dword v6, v8, {sp(sBB)} sc1")
    a(f"s_mul_i32 s{sT0}, s{sM}, {112 * 1024}")
    a(f"s_lshl_b32 s{sT1}, s{sG}, 7")
    a(f"s_add_u32 s{sT0}, s{sT0}, s{sT1}")
    a(f"v_lshl_add_u32 v9, v0, 10, s{sT0}")
    a(f"v_add_u32 v10, {48 * 1024}, v9")
    prefetch(9, sWD, True)
    prefetch(10, sWD, True)
    stamp(10)
    a(f"s_cmp_lg_u32 s{sKIND}, 1")
    a("s_cbranch_scc1 L_fin")
    a("s_barrier                      ; 3b")
    a(f"s_lshr_b32 s{sT1}, s{sM}, 1")
    a(f"s_lshl2_add_u32 s{sT2}, s{sG}, s{sT1}       ; col0/16")
    a(f"s_lshl_b32 s{sT0}, s{sG}, 9")
    a(f"s_and_b32 s{sT3}, s{sT1}, 1")
    a(f"s_lshl_b32 s{sT3}, s{sT3}, 5")
    a(f"s_add_u32 s{sT0}, s{sT0}, s{sT3}")
    a(f"s_and_b32 s{sT3}, s{sT1}, 2")
    a(f"s_lshl2_add_u32 s{sT0}, s{sT3}, s{sT0}")
    base(sBA, sWS, sT0, X1)
    base(sBB, sWS, sT0, MODB + 3 * 4096)
    a("v_and_b32 v7, 4, v0")
    a("v_lshlrev_b32 v5, 6, v7")
    a("v_lshl_add_u32 v5, v3, 6, v5")
    a("v_and_b32 v7, 10, v0")
    a("v_lshl_add_u32 v5, v7, 1, v5")
    a(f"s_lshl_b32 s{sT0}, s{sT2}, 5")
    base(sBC, sOUT, sT0)
    a("v_and_b32 v7, 15, v0")
    a("v_lshlrev_b32 v11, 10, v3")
    a("v_lshl_add_u32 v11, v7, 1, v11")
    a("v_and_b32 v7, 1, v0")
    a("v_lshlrev_b32 v7, 4, v7")
    a("s_barrier")
    lab = poll_begin()
    a(f"global_load_dword v8, v5, {sp(sBA)} sc1")
    a(f"global_load_dword v9, v5, {sp(sBB)} sc1")
    poll_mid()
    for ins in sentinel_ops([8, 9], 10):
        a(ins)
    poll_end(lab)
    a("v_lshrrev_b32 v8, v7, v8")
    a("v_lshrrev_b32 v9, v7, v9")
    a("v_lshlrev_b32 v8, 16, v8              ; x1")
    a("v_lshlrev_b32 v9, 16, v9              ; gb")
    stamp(12)
    a("s_barrier                      ; 4")
    for t in range(7):
        a(f"ds_read2st64_b32 v[{16 + 2 * t}:{17 + 2 * t}], v6 offset0:{40 + 2 * t} offset1:{41 + 2 * t}")
    a("s_waitcnt lgkmcnt(3)")
    a("v_pk_add_f32 v[16:17], v[16:17], v[18:19]")
    a("v_pk_add_f32 v[20:21], v[20:21], v[22:23]")
    a("v_pk_add_f32 v[16:17], v[16:17], v[20:21]")
    a("s_waitcnt lgkmcnt(0)")
    a("v_pk_add_f32 v[24:25], v[24:25], v[26:27]")
    a("v_pk_add_f32 v[16:17], v[16:17], v[28:29]")
    a("v_pk_add_f32 v[16:17], v[16:17], v[24:25]")
    a("v_add_f32 v16, v16, v17")
    a("v_fma_f32 v16, v9, v16, v8")
    a("v_cvt_pk_bf16_f32 v16, v16, v16")
    a(f"global_store_short v11, v16, {sp(sBC)}")
    stamp(13)
    a("s_cmp_lg_u32 s2, 8")
    a("s_cbranch_scc1 L_fin")
    a(f"v_mov_b32 v8, s{sTAG}")
    set_exec(1)
    a(f"global_store_dword v4, v8, {sp(sWS)} sc1")
    a.label("L_fin")
    finish_wave()


def sec_down():
    CLS[0] = 0
    a.label("L_DOWN")
    a(f"s_cmp_lg_u32 s{sKIND}, 1")
    a("s_cbranch_scc1 L_fin")
    a("s_barrier                      ; 3b")
    down_loads()
    a(f"s_lshl_b32 s{sT0}, s{sWAVE}, 11")
    base(sBA, sWS, sT0, ACT)
    a("v_lshlrev_b32 v6, 7, v3")
    a("v_lshl_add_u32 v6, v2, 4, v6")
    a(f"v_lshl_add_u32 v6, s{sWAVE}, 9, v6")
    a("s_waitcnt vmcnt(0)")
    a("s_barrier                      ; 3c")
    for f in range(2):
        for e in range(4):
            for x in range(4):
                a(f"v_perm_b32 v{48 + 16 * f + 4 * e + x}, v{WD + 16 * f + 2 * (2 * x + 1) + (e >> 1)}, "
                  f"v{WD + 16 * f + 2 * (2 * x) + (e >> 1)}, s{sHI if e & 1 else sLO}")
    stamp(11)
    lab = poll_begin()
    a(f"global_load_dwordx4 v[8:11], v5, {sp(sBA)} sc1")
    a(f"global_load_dwordx4 v[12:15], v5, {sp(sBA)} offset:1024 sc1")
    poll_mid()
    interleave([mfma(16 + 4 * e, 8, 48 + 4 * e) for e in range(3)], sentinel_ops(range(8, 16), 7), 2)
    poll_end(lab)
    a(mfma(28, 8, 60))
    for e in range(4):
        a(mfma(16 + 4 * e, 12, 64 + 4 * e, 16 + 4 * e))
    for e in range(4):
        for b0 in range(2):
            a(f"v_add_f32_dpp v{32 + 4 * b0 + e}, v{16 + 4 * e + 2 * b0 + 1}, v{16 + 4 * e + 2 * b0} row_shl:4 {DPPM}")
    set_exec(0x0F000F00000F000F)
    a("ds_write_b128 v6, v[32:35] offset:10240")
    a("ds_write_b128 v6, v[36:39] offset:10304")
    a("s_waitcnt lgkmcnt(0)")
    stamp(12)
    a("s_barrier                      ; 4")
    finish_wave()


def sec_att():
    CLS[0] = 1
    a.label("L_A2")
    ids()
    stamp(1)
    a(f"s_cmp_lt_u32 s{sWAVE}, 4")
    a("s_cbranch_scc1 L_A2b")
    a(f"s_bitcmp1_b32 s{sWAVE}, 0")
    a(f"s_cselect_b64 {sp(sBA)}, {sp(sWU)}, {sp(sWG)}")
    a(f"s_and_b32 s{sT0}, s{sWAVE}, 2")
    a(f"s_lshl2_add_u32 s{sT0}, s{sM}, s{sT0}")
    a(f"s_mul_i32 s{sT0}, s{sT0}, {8 * 3584}")
    a(f"s_mul_i32 s{sT1}, s{sG}, 448")
    a(f"s_andn2_b32 s{sT1}, s{sT1}, 127")
    a(f"s_add_u32 s{sT0}, s{sT0}, s{sT1}")
    a("v_mul_u32_u24 v13, 3584, v1")
    a("v_lshl_add_u32 v13, v2, 7, v13")
    a(f"v_add_u32 v13, s{sT0}, v13")
    prefetch(13, sBA, True)
    a(f"s_waitcnt vmcnt({10 if OPT['pfpol'] == 2 else 9})")
    stamp(2)
    a("s_branch L_A3")
    a.label("L_A2b")
    a("s_waitcnt vmcnt(0)")
    make_tag(12)
    stamp(2)
    a(f"s_getreg_b32 s{sT0}, hwreg(HW_REG_XCC_ID, 0, 4)")
    a(f"s_xor_b32 s56, s{sTAG}, s{sT0}")
    a("s_mov_b32 s57, s56")
    a(f"s_lshl2_add_u32 s{sT0}, s{sG}, s{sWAVE}")
    a(f"s_mul_i32 s{sT0}, s{sT0}, {NREP * 128}")
    base(sBA, sWS, sT0, FL)
    a(f"s_mov_b32 s{sCNT}, 0")
    a.label("L_Aq")
    a(f"s_load_dwordx8 s[48:55], {sp(sBA)}, s{sCNT}")
    a(f"s_add_u32 s{sCNT}, s{sCNT}, 128")
    a("s_waitcnt lgkmcnt(0)")
    a("s_xor_b64 s[48:49], s[48:49], s[56:57]")
    a("s_xor_b64 s[50:51], s[50:51], s[56:57]")
    a("s_xor_b64 s[52:53], s[52:53], s[56:57]")
    a("s_or_b64 s[48:49], s[48:49], s[50:51]")
    a("s_or_b64 s[48:49], s[48:49], s[52:53]")
    a("s_cbranch_scc0 L_Aq_ok")
    if OPT["qsleep"]:
        a(f"s_sleep {OPT['qsleep']}")
    a(f"s_cmp_lt_u32 s{sCNT}, {NREP * 128}")
    a("s_cbranch_scc1 L_Aq")
    a(f"s_lshr_b32 s{sT0}, s{sM}, 2")
    a(f"s_lshl2_add_u32 s{sT0}, s{sG}, s{sT0}")
    a(f"s_lshl2_add_u32 s{sT0}, s{sT0}, s{sWAVE}")
    a(f"s_lshl_b32 s{sT0}, s{sT0}, 9")
    base(sBA, sWS, sT0, H2G)
    a("v_lshlrev_b32 v10, 3, v0")
    lab = poll_begin()
    a(f"global_load_dwordx2 v[8:9], v10, {sp(sBA)} sc1")
    poll_mid()
    a(f"v_xor_b32 v9, s{sTAG}, v9")
    a("v_cmp_lt_u32 vcc, 15, v9")
    poll_end(lab)
    a("v_mov_b32 v9, 2")
    if OPT["probe"] == 3:
        a("v_mov_b32 v162, 1")
    a("s_branch L_Aq_st")
    a.label("L_Aq_ok")
    a(f"s_lshr_b32 s{sT0}, s{sM}, 2")
    a(f"s_lshl2_add_u32 s{sT0}, s{sG}, s{sT0}")
    a(f"s_lshl2_add_u32 s{sT0}, s{sT0}, s{sWAVE}")
    a(f"s_lshl_b32 s{sT0}, s{sT0}, 8")
    a(f"s_add_u32 s{sT0}, s{sT0}, {QS:#x}")
    a(f"s_add_u32 s0, s{sWS}, s{sT0}")
    a(f"s_addc_u32 s1, s{sWS + 1}, 0")
    for t in range(4):
        a(f"s_load_dwordx16 s[{sQ + 16 * t}:{sQ + 16 * t + 15}], s[0:1], {64 * t}")
    a("v_mov_b32 v9, 1")
    a("s_waitcnt lgkmcnt(0)")
    for i in range(64):
        a(f"v_writelane_b32 v8, s{sQ + i}, {i}")
    a.label("L_Aq_st")
    a("v_lshlrev_b32 v10, 2, v0")
    a(f"v_lshl_add_u32 v10, s{sWAVE}, 8, v10")
    a(f"v_lshlrev_b32_e64 v11, 2, s{sWAVE}")
    a(f"ds_write_b32 v10, v8 offset:{LQ}")
    a(f"ds_write_b32 v11, v9 offset:{LQF}")
    a.label("L_A3")
    a(f"s_mul_i32 s{sT0}, s{sWAVE}, 2560")
    a("v_mul_u32_u24 v7, 576, v5")
    a("v_lshl_add_u32 v7, v2, 6, v7")
    a("v_lshl_add_u32 v7, v3, 4, v7")
    a(f"v_add_u32 v7, s{sT0}, v7")
    a("v_lshlrev_b32 v5, 5, v5               ; h*32")
    a(f"v_lshl_add_u32 v120, s{sWAVE}, 2, v5     ; h*32 + wave*4")
    a("v_lshlrev_b32 v124, 4, v0")
    a("v_add_u32 v125, 0x1000, v124")
    lab = poll_begin()
    a(f"ds_read_b128 v[12:15], v4 offset:{LQF}")
    a(f"ds_read_b128 v[8:11], v6 offset:{LQ}")
    poll_mid("lgkmcnt(0)")
    a("v_min3_u32 v112, v12, v13, v14")
    a("v_min_u32 v112, v112, v15")
    a("v_cmp_eq_u32 vcc, 0, v112")
    poll_end(lab)
    stamp(3)
    for u in range(8):
        a(mfma(SA + 4 * u, KR + 4 * u, 8))
    a("v_or3_b32 v12, v12, v13, v14")
    a("v_or_b32 v12, v12, v15")
    a("v_lshrrev_b32 v12, 1, v12")
    a(f"v_readfirstlane_b32 s{sLOCAL}, v12")
    S = 112
    for u in range(8):
        a(f"v_add_f32_dpp v{S + u}, v{SA + 4 * u + 1}, v{SA + 4 * u} row_shl:1 {DPPM}")
    for u in range(8):
        a(f"v_add_f32_dpp v{S + u}, v{SA + 4 * u + 2}, v{S + u} row_shl:2 {DPPM}")
    for u in range(8):
        a(f"v_add_f32_dpp v{S + u}, v{SA + 4 * u + 3}, v{S + u} row_shl:3 {DPPM}")
    round_bf16(list(range(S, S + 8)))
    for u in range(8):
        a(f"v_mul_f32 v{S + u}, {SCALE:#x}, v{S + u}")
    round_bf16(list(range(S, S + 8)))
    a(f"v_max3_f32 v12, v{S}, v{S + 1}, v{S + 2}")
    a(f"v_max3_f32 v13, v{S + 3}, v{S + 4}, v{S + 5}")
    a(f"v_max3_f32 v12, v12, v{S + 6}, v{S + 7}")
    a("v_max_f32 v12, v12, v13")
    cross_rows("v_max_f32", 12, 13)
    set_exec(0x1111)
    a(f"ds_write_b32 v120, v12 offset:{LM}")
    set_exec(-1)
    a("s_waitcnt lgkmcnt(0)")
    a("s_barrier")
    a(f"ds_read_b128 v[80:83], v5 offset:{LM}")
    a(f"ds_read_b128 v[84:87], v5 offset:{LM + 16}")
    a(f"s_mov_b32 s{sT0}, {LOG2E:#x}")
    for y in range(4):
        a(f"v_cmp_eq_u32 s[{48 + 2 * y}:{49 + 2 * y}], {y}, v2")
    a("s_waitcnt lgkmcnt(0)")
    a("v_max3_f32 v12, v80, v81, v82")
    a("v_max3_f32 v13, v83, v84, v85")
    a("v_max3_f32 v12, v12, v86, v87")
    a("v_max_f32 v12, v12, v13")
    a(f"v_mul_f32 v12, {LOG2E:#x}, v12")
    for u in range(8):
        a(f"v_fma_f32 v{S + u}, v{S + u}, s{sT0}, -v12")
    for u in range(8):
        a(f"v_exp_f32 v{S + u}, v{S + u}")
    for x in range(4):
        a(f"v_cvt_pk_bf16_f32 v{8 + x}, v{S + 2 * x}, v{S + 2 * x + 1}")
    a(f"v_pk_add_f32 v[{S}:{S + 1}], v[{S}:{S + 1}], v[{S + 2}:{S + 3}]")
    a(f"v_pk_add_f32 v[{S + 4}:{S + 5}], v[{S + 4}:{S + 5}], v[{S + 6}:{S + 7}]")
    a(f"v_pk_add_f32 v[{S}:{S + 1}], v[{S}:{S + 1}], v[{S + 4}:{S + 5}]")
    a(f"v_add_f32 v13, v{S}, v{S + 1}")
    for x in range(4):
        a(f"v_mov_b32_dpp v{8 + x}, v{8 + x} quad_perm:[0,0,0,0] {DPPM}")
    cross_rows("v_add_f32", 13, 14)
    set_exec(0x1111)
    a(f"ds_write_b32 v120, v13 offset:{LL}")
    set_exec(-1)
    PY = 88
    for y in range(4):
        for x in range(4):
            a(f"v_cndmask_b32 v{PY + 4 * y + x}, 0, v{8 + x}, s[{48 + 2 * y}:{49 + 2 * y}]")
    a("s_waitcnt lgkmcnt(0)")
    a("s_barrier")
    stamp(4)
    a(f"s_lshl2_add_u32 s{sT0}, s{sG}, s{sWAVE}")
    a(f"s_lshl_b32 s{sT0}, s{sT0}, 8")
    a(f"s_add_u32 s{sT0}, s{sT0}, s{sM}")
    a(f"s_lshl_b32 s{sT0}, s{sT0}, 4")
    base(sBA, sWS, sT0, H3O)
    a("v_lshlrev_b32 v121, 8, v1")
    a("v_lshl_add_u32 v121, v2, 2, v121")
    a(f"s_mul_i32 s{sT0}, s{sWAVE}, 576")
    a(f"v_lshl_add_u32 v122, v0, 3, s{sT0}")
    a(f"s_cmp_lt_u32 s{sWAVE}, 4")
    a("s_cbranch_scc1 L_A5")
    a(f"s_and_b32 s{sT4}, s{sWAVE}, 3")
    a(f"s_lshl_b32 s{sT0}, s{sT4}, 8")
    base(sBB, sX, sT0)
    a(f"s_lshl_b32 s{sT0}, s{sT4}, 10")
    base(sBA, sWS, sT0, MODB + 4096)
    a("v_lshrrev_b32 v13, 1, v3")
    a("v_lshlrev_b32 v13, 7, v13")
    a("v_and_b32 v14, 1, v3")
    a("v_lshl_add_u32 v13, v14, 3, v13")
    a("v_lshl_add_u32 v13, v2, 4, v13")
    a("v_lshl_add_u32 v13, v5, 5, v13        ; x offset: b*1024 + (G>>1)*128 + c*16 + (G&1)*8")
    a(f"global_load_dwordx2 v[128:129], v13, {sp(sBB)}")
    a(f"global_load_dwordx2 v[130:131], v13, {sp(sBB)} offset:64")
    modb_loads()
    a("s_branch L_A6")
    a.label("L_A5")
    a(f"s_cmp_lg_u32 s{sWAVE}, 0")
    a("s_cbranch_scc1 L_A6")
    a(f"ds_read_b128 v[80:83], v5 offset:{LL}")
    a(f"ds_read_b128 v[84:87], v5 offset:{LL + 16}")
    a(f"s_lshl_b32 s{sT0}, s{sG}, 6")
    a(f"s_add_u32 s{sT0}, s{sT0}, s{sM}")
    a(f"s_lshl_b32 s{sT0}, s{sT0}, 3")
    base(sBB, sWS, sT0, H3ML)
    a("v_lshlrev_b32 v14, 2, v5              ; h*128")
    a("s_waitcnt lgkmcnt(0)")
    a("v_pk_add_f32 v[80:81], v[80:81], v[82:83]")
    a("v_pk_add_f32 v[84:85], v[84:85], v[86:87]")
    a("v_pk_add_f32 v[80:81], v[80:81], v[84:85]")
    a("v_add_f32 v13, v80, v81")
    set_exec(0x1111)
    a(f"s_cmp_lg_u32 s{sLOCAL}, 0")
    a("s_cbranch_scc1 L_A_mlg")
    a(f"global_store_dwordx2 v14, v[12:13], {sp(sBB)}")
    a.label("L_A_mld")
    set_exec(-1)
    a.label("L_A6")
    extra = 7 if OPT['pfpol'] == 2 else 6
    perms8(VR, VT, waits=[6 + extra, 4 + extra, 2 + extra, 0 + extra])
    for e in range(8):
        d = OA + 4 * (e >> 2)
        a(mfma(d, VT + 4 * e, PY + 4 * (e & 3), None if (e & 3) == 0 else d))
    a(f"ds_write_b128 v7, {vr(OA, 4)}")
    a(f"ds_write_b128 v7, {vr(OA + 4, 4)} offset:256")
    a("s_waitcnt lgkmcnt(0)")
    stamp(5)
    a("s_barrier                      ; 2")
    a(f"s_cmp_ge_u32 s{sWAVE}, 4")
    a("s_cbranch_scc1 L_FF")
    for t in range(4):
        a(f"ds_read2st64_b64 {vr(16 + 4 * t, 4)}, v122 offset0:{10 * t} offset1:{10 * t + 5}")
    a(f"s_cmp_lg_u32 s{sLOCAL}, 0")
    a("s_waitcnt lgkmcnt(0)")
    sum8_b64(16)
    a("v_cvt_pk_bf16_f32 v10, v16, v17")
    a("s_cbranch_scc1 L_A_pubg")
    a(f"global_store_dword v121, v10, {sp(sBA)}")
    a.label("L_A_pubd")
    stamp(6)
    a("s_barrier                      ; 2b")
    a("s_branch L_FF0")
    a.label("L_A_pubg")
    a(f"global_store_dword v121, v10, {sp(sBA)} sc1")
    a("s_branch L_A_pubd")
    a.label("L_A_mlg")
    a(f"global_store_dwordx2 v14, v[12:13], {sp(sBB)} sc1")
    a("s_branch L_A_mld")


def sec_dump():
    if OPT["probe"]:
        a.label("L_dump")
        a("s_mov_b64 exec, 1")
        a(f"s_lshl3_add_u32 s{sT0}, s2, s{sWAVE}")
        a(f"s_lshl_b32 s{sT0}, s{sT0}, 4")
        base(sBA, sWS, sT0, STAMP)
        a("v_mov_b32 v4, 0")
        a(f"global_store_dwordx4 v4, v[160:163], {sp(sBA)} sc1")
        if OPT["wb"]:
            a("s_waitcnt vmcnt(0)")
            a("buffer_wbl2 sc1")
            a("s_waitcnt vmcnt(0)")
        a("s_cmp_lg_u32 s2, 8")
        a("s_cbranch_scc1 L_exit")
        a(f"s_cmp_lg_u32 s{sWAVE}, 7")
        a("s_cbranch_scc1 L_exit")
        a("s_mov_b64 exec, -1")
        a("s_memrealtime s[60:61]")
        a("s_sleep 100")
        a("s_waitcnt vmcnt(0) lgkmcnt(0)")
        base(sBA, sWS, None, STAMP)
        a("v_lshlrev_b32 v4, 4, v0")
        for i in range(32):
            a(f"global_load_dwordx4 {vr(16 + 4 * i, 4)}, v4, {sp(sBA)} sc1")
            a("v_add_u32 v4, 0x400, v4")
        a("s_waitcnt vmcnt(0)")
        a("v_mov_b32 v8, v16")
        a("v_mov_b32 v9, 0")
        for i in range(1, 32):
            a(f"v_max_u32 v8, v8, v{16 + 4 * i}")
            a(f"v_min_u32 v16, v16, v{16 + 4 * i}")
            a(f"v_max_u32 v17, v17, v{17 + 4 * i}")
            a(f"v_add_u32 v18, v18, v{18 + 4 * i}")
            a(f"v_cmp_ne_u32 vcc, v19, v{19 + 4 * i}")
            a(f"v_addc_co_u32 v9, vcc, 0, v9, vcc")
        for op, r in (("v_max_u32", 8), ("v_min_u32", 16), ("v_max_u32", 17), ("v_add_u32", 18), ("v_add_u32", 9)):
            for n in (8, 4, 2, 1):
                a(f"{op}_dpp v{r}, v{r}, v{r} row_ror:{n} {DPPM}")
            cross_rows(op, r, 10)
        a("v_readfirstlane_b32 s50, v8")
        a("v_readfirstlane_b32 s51, v16")
        a("v_readfirstlane_b32 s53, v17")
        a("v_readfirstlane_b32 s52, v18")
        a("v_readfirstlane_b32 s56, v9")
        a("s_nop 3")
        p = OPT["probe"]
        if p == 1:
            a("s_sub_u32 s54, s50, s51")
        elif p == 2:
            a("s_sub_u32 s54, s60, s51")
        elif p == 3:
            a("s_mul_i32 s54, s52, 1")
        elif p == 4:
            a("s_lshr_b32 s54, s56, 1")
        elif p >= 100:
            a("s_sub_u32 s54, s53, s51")
        else:
            a("s_mov_b32 s54, 0")
        a("s_min_u32 s54, s54, 5000")
        a("s_lshl_b32 s54, s54, 2")
        a("s_add_u32 s54, s54, 3000")
        a.label("L_spin")
        a("s_memrealtime s[62:63]")
        a("s_waitcnt lgkmcnt(0)")
        a("s_sub_u32 s55, s62, s51")
        a("s_cmp_lt_u32 s55, s54")
        a("s_cbranch_scc1 L_spin")
    if OPT["stamps"]:
        a.label("L_dump")
        a("s_mov_b64 exec, -1")
        stamp(15)
        stamp(16)
        a(f"s_getreg_b32 s{sT0}, hwreg(HW_REG_XCC_ID)")
        a(f"v_writelane_b32 v126, s{sT0}, 14")
        a(f"s_lshl3_add_u32 s{sT0}, s2, s{sWAVE}")
        a(f"s_lshl_b32 s{sT0}, s{sT0}, 6")
        base(sBA, sWS, sT0, STAMP)
        a("v_lshlrev_b32 v4, 2, v0")
        set_exec(0xFFFF)
        a(f"global_store_dword v4, v126, {sp(sBA)}")
    a.label("L_exit")
    a("s_endpgm")


a(".p2align 12")
a.label("L_code0")
sec_wo()
sec_ln()
a(".p2align 8")
a(f".fill (4096-768-(.-L_code0))/4, 4, 0xbf810000")
a(f".type {NAME}_kernel,@function")
sec_entry()
sec_gm()
sec_gq()
sec_gb()
a(".p2align 12")
sec_att()
sec_down()
a(".p2align 12")
sec_ffn()
sec_dump()

body = a.finish()
hdr = open("cdna_kernels/" + NAME + ".s.ref").read().split("; Override launch geometry")[0]
out = hdr + f"""; Generated by a hand-written generator script; one persistent launch of 256 workgroups.
; @launch grid=(256,1,1) block=(512,1,1) lds={OPT['lds']}
.amdgcn_target "amdgcn-amd-amdhsa--gfx950"
.text
.globl {NAME}_kernel
{body}.section .rodata,"a"
.p2align 6
.amdhsa_kernel {NAME}_kernel
  .amdhsa_next_free_vgpr {OPT['vgpr']}
  .amdhsa_next_free_sgpr 102
  .amdhsa_accum_offset {OPT['vgpr']}
  .amdhsa_group_segment_fixed_size 0
  .amdhsa_kernarg_size 112
  .amdhsa_user_sgpr_count 2
  .amdhsa_user_sgpr_kernarg_segment_ptr 1
  .amdhsa_system_sgpr_workgroup_id_x 1
  .amdhsa_float_denorm_mode_32 3
.end_amdhsa_kernel
"""
open(sys.argv[1], "w").write(out)
```

```python
import sys
from asmlib import Asm

NAME = "adaLN_cond__sliding_block_cached__swiglu_ffn__decode"
OPT = dict(stamps=0, lds=94208, nt=1, limit=20000, pf=1, pfa=1, pfg=1, athr=8, nrep=32, qsleep=1, vgpr=208, psleep=0, ahelp=1, bhelp=0, wowait=0, pfpol=1, wpol=0, wopf=1, epair=1, wb=0, qmv=0, hpull=0, kfirst=1, cpf1=0, vfirst=0, mlm=0, woe=0, h4e=0, stag=0, pfgl=0, h4d=0, mls=0, touch=1, plan=3, bcoop=2, pf2=0, late=0, woa=12, woq=1, xgate=1, gub=0, gate=3, gatew=0, adap=0, qfast=0, h1m=1, kstage=0, wdl=0, vh=0, gue=0, mls2=1, vlate=1, b3=0, mll=1, gua=4, xml=0, pfaw=0, pfgw=1, probe=0, pcls=0)
for arg in sys.argv[2:]:
    k, v = arg.split("=")
    assert k in OPT, k
    OPT[k] = int(v, 0)
if OPT["probe"]:
    OPT["vgpr"] = 216
NT = " nt" if OPT["nt"] else ""
NREP = OPT["nrep"]
NTW = " nt" if OPT["wpol"] else ""

H1 = 0x1000
CF = 0x3000
H2G = 0x10000
FL = 0x20000
assert FL + 32 * NREP * 128 <= 0x60000
CLR = 0x60000
MODB = CLR
H4 = MODB + 0x4000
ACT = H4 + 0x8000
X1 = ACT + 0x4000
QS = X1 + 0x2000
H3ML = QS + 0x8000
H3O = H3ML + 0x1000
GATE = H3O + 0x20000 - 0x2000
CLR_END = GATE + 0x2400
CLR_PER_WG = 8
assert CLR_END - CLR <= 32 * CLR_PER_WG * 1024
STAMP = 0x100000

LO = 0
LQ = 20480
LQF = LQ + 1024
LM = LQF + 64
LL = LM + 128
LY = 22016
LU = LY + 2048
LV = LU + 2048
LST = LV + 2048
LGT = LST + 128
LK = 28672

sX, sK, sV, sWQ, sWO, sWG, sWU = 4, 6, 8, 10, 12, 16, 18
sWD, sC, sWM, sOUT, sDBG, sWS = 20, 22, 24, 26, 28, 30
sG, sM, sWAVE, sTAG = 14, 15, 3, 28
sLO, sHI, sCNT, sT0 = 96, 97, 98, 99
sBA, sBB, sBC = 32, 34, 36
sMK = 38
sT1, sT2, sT3, sT4 = 40, 41, 42, 43
sLOCAL, sKIND = 29, 44
sPC = 46
sSTAMP = 48 if False else 64
sQ = 32

LOG2E = 0x3FB8AA3B
SCALE = 0x3DB504F3
INV512 = 0x3B000000
EPS = 0x3727C5AC


def sp(r):
    return f"s[{r}:{r + 1}]"


def vr(a, n):
    return f"v[{a}:{a + n - 1}]" if n > 1 else f"v{a}"


a = Asm()
_uid = [0]


def uid(p):
    _uid[0] += 1
    return f"L_{p}{_uid[0]}"


CLS = [0]


def stamp(i):
    if OPT["probe"] == 100 + i and OPT["pcls"] == CLS[0]:
        a("s_memrealtime s[100:101]")
        a("s_waitcnt lgkmcnt(0)")
        a("v_writelane_b32 v209, s100, 0")
    if OPT["stamps"] == 1 or (OPT["stamps"] and i >= 13):
        a("s_waitcnt lgkmcnt(0)")
        a("v_writelane_b32 v126, s100, m0")
        a(f"s_mov_b32 m0, {i}")
        a("s_memrealtime s[100:101]")


def finish_wave():
    a("s_branch L_dump" if OPT["stamps"] or OPT["probe"] else "s_endpgm")


def base(dst, ptr, off_s=None, off_imm=0):
    if off_s is not None and off_imm:
        a(f"s_add_u32 s{dst}, s{off_s}, {off_imm:#x}")
        a(f"s_add_u32 s{dst}, s{ptr}, s{dst}")
    elif off_s is not None:
        a(f"s_add_u32 s{dst}, s{ptr}, s{off_s}")
    else:
        a(f"s_add_u32 s{dst}, s{ptr}, {off_imm:#x}")
    a(f"s_addc_u32 s{dst + 1}, s{ptr + 1}, 0")


def set_exec(mask):
    if mask in (-1, 1):
        a(f"s_mov_b64 exec, {mask}")
    else:
        lo, hi = mask & 0xFFFFFFFF, mask >> 32
        a(f"s_mov_b32 exec_lo, {lo:#x}")
        a(f"s_mov_b32 exec_hi, {hi:#x}")


def prefetch(v, b, late=False, delta=None):
    pol = "" if OPT["pfpol"] == 1 else " nt"
    if OPT["pf2"] == 2:
        a("v_lshrrev_b32 v114, 1, v0")
        a("v_and_b32 v114, 28, v114")
        a(f"ds_bpermute_b32 v115, v114, v{v}")
        a("v_and_b32 v114, 7, v0")
        a("s_waitcnt lgkmcnt(0)")
        a("v_lshl_add_u32 v115, v114, 4, v115")
        for k in range(8):
            a(f"global_load_dwordx4 v[204:207], v115, {sp(b)}{pol}")
            if k < 7:
                a(f"v_add_u32 v115, {delta:#x}, v115")
    elif OPT["pf2"]:
        a("v_lshlrev_b32 v114, 6, v0")
        a("v_and_b32 v114, 64, v114")
        a(f"v_add_u32_dpp v115, v{v}, v114 quad_perm:[0,0,2,2] row_mask:0xf bank_mask:0xf")
        a(f"v_add_u32_dpp v116, v{v}, v114 quad_perm:[1,1,3,3] row_mask:0xf bank_mask:0xf")
        if PFWAIT[0]:
            a("s_waitcnt lgkmcnt(0)")
        a(f"global_load_dword v127, v115, {sp(b)}{pol}")
        a(f"global_load_dword v127, v116, {sp(b)}{pol}")
    else:
        if PFWAIT[0]:
            a("s_waitcnt lgkmcnt(0)")
        a(f"global_load_dword v127, v{v}, {sp(b)}{pol}")
    PFWAIT[0] = False


PFWAIT = [False]
NPF = (1, 2, 8)[OPT["pf2"]]


def sels():
    a(f"s_mov_b32 s{sLO}, 0x05040100")
    a(f"s_mov_b32 s{sHI}, 0x07060302")


def perms8(W, F, waits=None):
    for x in range(4):
        if waits is not None:
            a(f"s_waitcnt vmcnt({waits[x]})")
        for e in range(8):
            sel = sHI if e & 1 else sLO
            a(f"v_perm_b32 v{F + 4 * e + x}, v{W + 4 * (2 * x + 1) + (e >> 1)}, v{W + 4 * (2 * x) + (e >> 1)}, s{sel}")


def unpack(dst, src, n):
    for i in range(n):
        a(f"v_lshlrev_b32 v{dst + 2 * i}, 16, v{src + i}")
        a(f"v_and_b32 v{dst + 2 * i + 1}, 0xffff0000, v{src + i}")


def round_bf16(regs):
    if len(regs) == 1:
        a(f"v_cvt_pk_bf16_f32 v{regs[0]}, v{regs[0]}, v{regs[0]}")
        a(f"v_lshlrev_b32 v{regs[0]}, 16, v{regs[0]}")
        return
    for i in range(0, len(regs), 2):
        a(f"v_cvt_pk_bf16_f32 v{regs[i + 1]}, v{regs[i]}, v{regs[i + 1]}")
    for i in range(0, len(regs), 2):
        a(f"v_lshlrev_b32 v{regs[i]}, 16, v{regs[i + 1]}")
        a(f"v_and_b32 v{regs[i + 1]}, 0xffff0000, v{regs[i + 1]}")


def poll_begin():
    lab = uid("poll")
    a(f"s_mov_b32 s{sCNT}, {OPT['limit']}")
    a.label(lab)
    return lab


def poll_mid(cnt="vmcnt(0)", sleep=None):
    sleep = OPT["psleep"] if sleep is None else sleep
    if sleep and cnt.startswith("vm"):
        a(f"s_sleep {sleep}")
    a(f"s_sub_u32 s{sCNT}, s{sCNT}, 1")
    a(f"s_cselect_b64 {sp(sMK)}, 0, -1")
    a(f"s_waitcnt {cnt}")


def poll_end(lab):
    a(f"s_and_b64 vcc, vcc, {sp(sMK)}")
    a(f"s_cbranch_scc1 {lab}")


def sentinel_ops(regs, tmp):
    regs = list(regs)
    out = []
    if len(regs) == 2:
        out.append(f"v_max_u32 v{tmp}, v{regs[0]}, v{regs[1]}")
    else:
        out.append(f"v_max3_u32 v{tmp}, v{regs[0]}, v{regs[1]}, v{regs[2]}")
        rest = regs[3:]
        while len(rest) >= 2:
            out.append(f"v_max3_u32 v{tmp}, v{tmp}, v{rest[0]}, v{rest[1]}")
            rest = rest[2:]
        if rest:
            out.append(f"v_max_u32 v{tmp}, v{tmp}, v{rest[0]}")
    out.append(f"v_cmp_eq_u32 vcc, -1, v{tmp}")
    return out


def interleave(major, minor, per):
    minor = list(minor)
    for ins in major:
        a(ins)
        for _ in range(per):
            if minor:
                a(minor.pop(0))
    for ins in minor:
        a(ins)


def make_tag(vE):
    a(f"v_readfirstlane_b32 s{sTAG}, v{vE}")
    a("s_nop 1")
    a(f"s_mul_i32 s{sTAG}, s{sTAG}, 1664525")
    a(f"s_add_u32 s{sTAG}, s{sTAG}, 1013904223")


DPPM = "row_mask:0xf bank_mask:0xf"


def row_allsum(v):
    for n in (8, 4, 2, 1):
        a(f"v_add_f32_dpp v{v}, v{v}, v{v} row_ror:{n} {DPPM}")


def cross_rows(op, v, tmp):
    a(f"v_mov_b32 v{tmp}, v{v}")
    a(f"v_permlane16_swap_b32 v{tmp}, v{v}")
    a(f"{op} v{v}, v{v}, v{tmp}")
    a(f"v_mov_b32 v{tmp}, v{v}")
    a(f"v_permlane32_swap_b32 v{tmp}, v{v}")
    a(f"{op} v{v}, v{v}, v{tmp}")


def mfma(d, x, y, c=None):
    return f"v_mfma_f32_16x16x32_bf16 {vr(d, 4)}, {vr(x, 4)}, {vr(y, 4)}, {vr(c, 4) if c is not None else 0}"


def diagX_reduce(ACC, T):
    for e in range(8):
        a(f"v_add_f32_dpp v{T + e}, v{ACC + 4 * e + 1}, v{ACC + 4 * e} row_shl:4 {DPPM}")
    for e in range(8):
        a(f"v_add_f32_dpp v{T + e}, v{ACC + 4 * e + 2}, v{T + e} row_shl:8 {DPPM}")
    for e in range(8):
        a(f"v_add_f32_dpp v{T + e}, v{ACC + 4 * e + 3}, v{T + e} row_shl:12 {DPPM}")


def sum8_b64(r):
    for t in range(4):
        a(f"v_pk_add_f32 v[{r + 4 * t}:{r + 4 * t + 1}], v[{r + 4 * t}:{r + 4 * t + 1}], v[{r + 4 * t + 2}:{r + 4 * t + 3}]")
    a(f"v_pk_add_f32 v[{r}:{r + 1}], v[{r}:{r + 1}], v[{r + 4}:{r + 5}]")
    a(f"v_pk_add_f32 v[{r + 8}:{r + 9}], v[{r + 8}:{r + 9}], v[{r + 12}:{r + 13}]")
    a(f"v_pk_add_f32 v[{r}:{r + 1}], v[{r}:{r + 1}], v[{r + 8}:{r + 9}]")


def gu_loads(half):
    for jj in range(4):
        r, off = ((176, 3584 * (jj - 1)) if jj < 3 else (178, 0))
        a(f"global_load_dwordx4 {vr(16 + 16 * half + 4 * jj, 4)}, v[{r + 4 * half}:{r + 4 * half + 1}], off offset:{off}{NTW}")


def gu_addr():
    a(f"s_min_u32 s{sT1}, s{sM}, 13")
    a(f"s_mul_i32 s{sT0}, s{sG}, 14")
    a(f"s_add_u32 s{sT0}, s{sT0}, s{sT1}")
    a(f"s_lshl_b32 s{sT0}, s{sT0}, 5")
    a(f"s_mul_i32 s{sT1}, s{sT4}, {128 * 3584}")
    a(f"s_add_u32 s{sT0}, s{sT0}, s{sT1}")
    a(f"s_add_u32 s{sT0}, s{sT0}, 3584")
    a("v_lshrrev_b32 v8, 1, v3")
    a("v_and_b32 v9, 1, v3")
    a("v_lshlrev_b32 v8, 6, v8")
    a("v_lshl_add_u32 v8, v9, 2, v8")
    a("v_and_b32 v9, 3, v1")
    a("v_lshl_add_u32 v8, v9, 3, v8")
    a("v_mul_u32_u24 v10, 3584, v8")
    a("v_and_b32 v9, 1, v2")
    a("v_lshl_add_u32 v10, v9, 4, v10")
    a(f"v_add_u32 v10, s{sT0}, v10")
    a("v_mov_b32 v11, 0")
    a("v_cmp_lt_u32 vcc, 1, v2")
    a(f"v_mov_b32 v176, s{sWG}")
    a(f"v_mov_b32 v177, s{sWG + 1}")
    a(f"v_mov_b32 v178, s{sWU}")
    a(f"v_mov_b32 v179, s{sWU + 1}")
    a("v_cndmask_b32 v176, v176, v178, vcc")
    a("v_cndmask_b32 v177, v177, v179, vcc")
    a("v_lshl_add_u64 v[176:177], v[10:11], 0, v[176:177]      ; row +1")
    a(f"v_mov_b32 v10, {2 * 3584}")
    a("v_lshl_add_u64 v[178:179], v[10:11], 0, v[176:177]      ; row +3")
    a(f"v_mov_b32 v10, {32 * 3584}")
    a("v_lshl_add_u64 v[180:181], v[10:11], 0, v[176:177]")
    a("v_lshl_add_u64 v[182:183], v[10:11], 0, v[178:179]")


def modb_loads():
    a(f"global_load_dwordx4 v[132:135], v124, {sp(sBC)} offset:-4096 sc1")
    a(f"global_load_dwordx4 v[136:139], v124, {sp(sBC)} sc1")
    a(f"global_load_dwordx4 v[140:143], v125, {sp(sBC)} sc1")


W, F, ACC = 16, 48, 16
KR, VR, SA, VT, OA = 16, 48, 80, 144, 80


def a_regs(on):
    global sBA, sBB, sBC, sMK
    sBA, sBB, sBC, sMK = (6, 8, 10, 12) if on else (32, 34, 36, 38)


def sec_ffn():
    a_regs(True)
    CLS[0] = 1
    a.label("L_FF")
    a(f"s_cmp_ge_u32 s{sM}, 14")
    a("s_cbranch_scc1 L_fin2")
    a(f"s_lshl_b32 s{sT0}, s{sT4}, 10")
    a("v_and_b32 v9, 15, v0")
    a("s_barrier")
    if OPT["xml"]:
        a(f"global_load_dwordx2 v[128:129], v119, {sp(sBB)}")
        a(f"global_load_dwordx2 v[130:131], v119, {sp(sBB)} offset:64")
        modb_loads()
    for half in range(OPT["gue"], 2):
        gu_loads(half)
    a("v_lshlrev_b32 v12, 4, v9")
    a("v_lshl_add_u32 v12, v3, 12, v12")
    a("v_add_u32 v13, 0x4000, v12")
    base(sBA, sWS, sT0, H4)
    a(f"s_lshl_b32 s{sT1}, s{sT0}, 1")
    base(sBB, sWS, sT1, X1)
    a(f"s_lshr_b32 s{sT1}, s{sG}, 1")
    a(f"s_and_b32 s{sT2}, s{sG}, 1")
    a(f"s_lshl2_add_u32 s{sT1}, s{sT2}, s{sT1}")
    a("v_and_b32 v15, 7, v1")
    a(f"v_cmp_eq_u32 s[20:21], s{sT1}, v15")

    a(f"s_lshl_b32 s{sT1}, s{sT4}, 9")
    a(f"s_add_u32 s{sT1}, s{sT1}, {LY}")
    a("v_lshlrev_b32 v5, 7, v3")
    a("v_lshl_add_u32 v5, v2, 5, v5")
    a(f"v_add_u32 v5, s{sT1}, v5")
    a("v_and_b32 v6, 1, v0")
    a("v_lshlrev_b32 v6, 4, v6")
    a("v_mov_b32 v7, 0x3f80")
    a("v_lshlrev_b32 v6, v6, v7")
    a("v_lshrrev_b32 v7, 1, v9")
    for x in range(8):
        a(f"v_cmp_eq_u32 vcc, {x}, v7")
        a(f"v_cndmask_b32 v{(120 + x) if x < 4 else (88 + x)}, 0, v6, vcc")
    a(f"s_lshl_b32 s{sT1}, s{sT4}, 2")
    a(f"s_add_u32 s{sT1}, s{sT1}, {LST}")
    a("v_and_b32 v6, 3, v1")
    a("v_lshlrev_b32 v6, 5, v6")
    a("v_lshl_add_u32 v6, v3, 3, v6")
    a(f"v_add_u32 v6, s{sT1}, v6")
    a("s_waitcnt vmcnt(8)")
    for ins in sentinel_ops(range(132, 144), 14):
        a(ins)
    a("s_cbranch_vccz L_FF1")
    lab = poll_begin()
    modb_loads()
    poll_mid()
    for ins in sentinel_ops(range(132, 144), 14):
        a(ins)
    poll_end(lab)
    a.label("L_FF1")
    a("v_lshlrev_b32 v124, 7, v1")
    a("v_lshl_add_u32 v124, v2, 4, v124")
    XV, GA, P0, P1 = 96, 104, 112, 84
    unpack(XV, 128, 4)
    unpack(GA, 132, 4)
    unpack(P0, 140, 4)
    for i in range(8):
        a(f"v_add_f32 v{P0 + i}, 1.0, v{P0 + i}")
    for i in range(4):
        a(f"v_cvt_pk_bf16_f32 v{140 + i}, v{P0 + 2 * i}, v{P0 + 2 * i + 1}")
    unpack(P0, 140, 4)
    CBF = 140
    for i in range(8):
        a(f"v_mul_f32 v{P1 + i}, v{GA + i}, v{P0 + i}")
    for i in range(8):
        a(f"v_mul_f32 v{P0 + i}, v{XV + i}, v{P0 + i}")
    perms8(W, F, waits=[6, 4, 2, 0])
    stamp(9)
    if OPT["gate"] and not OPT["adap"]:
        a("s_barrier")

    def h4_loads():
        for t in range(4):
            for hf in range(2):
                a(f"global_load_dwordx4 {vr(16 + 8 * t + 4 * hf, 4)}, v{12 + hf}, {sp(sBA)} offset:{256 * t} sc1")

    UA, UB = 144, 176
    if OPT["adap"]:
        a(f"ds_read_b32 v14, v4 offset:{LGT}")
    for e in range(8):
        a(mfma(UA + 4 * e, 136, F + 4 * e))
    if OPT["adap"]:
        a("s_waitcnt lgkmcnt(0)")
        a(f"v_readfirstlane_b32 s{sT2}, v14")
        a("s_nop 1")
        a(f"s_cmp_eq_u32 s{sT2}, 0")
        a("s_cbranch_scc1 L_FFa")
        h4_loads()
        a.label("L_FFa")
    dv = [f"v_add_f32_dpp v{128 + e}, v{UA + 4 * e + k}, v{UA + 4 * e if k == 1 else 128 + e} row_shl:{4 * k} {DPPM}"
          for k in (1, 2, 3) for e in range(8)]
    interleave([mfma(UB + 4 * e, CBF, F + 4 * e) for e in range(8)], dv, 2)
    set_exec(0x000F000F000F000F)
    a(f"ds_write_b128 v5, v[128:131] offset:{LV - LY}")
    a(f"ds_write_b128 v5, v[132:135] offset:{LV - LY + 16}")
    set_exec(-1)
    diagX_reduce(UB, 144)
    set_exec(0x000F000F000F000F)
    a(f"ds_write_b128 v5, v[144:147] offset:{LU - LY}")
    a(f"ds_write_b128 v5, v[148:151] offset:{LU - LY + 16}")
    set_exec(-1)
    a(f"s_mov_b32 s{sCNT}, {OPT['limit']}")
    if OPT["adap"]:
        a(f"s_cmp_lg_u32 s{sT2}, 0")
    a("s_waitcnt lgkmcnt(0)")
    a("s_barrier")
    stamp(8)
    if OPT["adap"]:
        a("s_cbranch_scc1 L_FF2")
    lab = uid("poll")
    a.label(lab)
    h4_loads()
    a.label("L_FF2")
    poll_mid()
    AT = 8
    seq = [mfma(80, 120, 16), mfma(8, 120, 24), mfma(80, 120, 20, 80), mfma(8, 120, 28, 8),
           mfma(80, 92, 32, 80), mfma(8, 92, 40, 8), mfma(80, 92, 36, 80), mfma(8, 92, 44, 8)]
    interleave(seq, sentinel_ops(range(16, 48), 14), 2)
    poll_end(lab)
    stamp(12)
    if OPT["stamps"] == 1:
        a(f"v_writelane_b32 v126, s{sCNT}, 13")
    att = [80, 82, 8, 10]
    for i in range(4):
        a(f"v_pk_fma_f32 v[{P0 + 2 * i}:{P0 + 2 * i + 1}], v[{att[i]}:{att[i] + 1}], v[{P1 + 2 * i}:{P1 + 2 * i + 1}], v[{P0 + 2 * i}:{P0 + 2 * i + 1}]")
    for i in range(4):
        a(f"v_cvt_pk_bf16_f32 v{84 + i}, v{P0 + 2 * i}, v{P0 + 2 * i + 1}")
    st = []
    for i in range(4):
        st.append(f"v_pk_fma_f32 v[{XV + 2 * i}:{XV + 2 * i + 1}], v[{att[i]}:{att[i] + 1}], v[{GA + 2 * i}:{GA + 2 * i + 1}], v[{XV + 2 * i}:{XV + 2 * i + 1}]")
    st.append(f"v_pk_mul_f32 v[8:9], v[{XV}:{XV + 1}], v[{XV}:{XV + 1}]")
    st.append(f"v_pk_add_f32 v[14:15], v[{XV}:{XV + 1}], v[{XV + 2}:{XV + 3}]")
    for i in range(1, 4):
        st.append(f"v_pk_fma_f32 v[8:9], v[{XV + 2 * i}:{XV + 2 * i + 1}], v[{XV + 2 * i}:{XV + 2 * i + 1}], v[8:9]")
        if i > 1:
            st.append(f"v_pk_add_f32 v[14:15], v[14:15], v[{XV + 2 * i}:{XV + 2 * i + 1}]")
    st.append("v_add_f32 v8, v8, v9")
    st.append("v_add_f32 v14, v14, v15")
    st.append("v_permlane32_swap_b32 v14, v8")
    st.append("v_add_f32 v14, v14, v8")
    interleave([mfma(ACC + 4 * e, 84, F + 4 * e) for e in range(2)], st[:4], 2)
    a(f"s_cmp_lg_u32 s{sM}, 13")
    a("s_cbranch_scc1 L_FF3")
    for i in range(4):
        a(f"v_cvt_pk_bf16_f32 v{128 + i}, v{XV + 2 * i}, v{XV + 2 * i + 1}")
    a("s_mov_b64 exec, s[20:21]")
    a(f"global_store_dwordx4 v124, v[128:131], {sp(sBB)} sc1")
    set_exec(-1)
    a.label("L_FF3")
    interleave([mfma(ACC + 4 * e, 84, F + 4 * e) for e in range(2, 8)], st[4:], 2)
    d1 = [f"v_add_f32_dpp v{104 + e}, v{ACC + 4 * e + 1}, v{ACC + 4 * e} row_shl:4 {DPPM}" for e in range(8)]
    d2 = [f"v_add_f32_dpp v{104 + e}, v{ACC + 4 * e + 2}, v{104 + e} row_shl:8 {DPPM}" for e in range(8)]
    d3 = [f"v_add_f32_dpp v{104 + e}, v{ACC + 4 * e + 3}, v{104 + e} row_shl:12 {DPPM}" for e in range(8)]
    for ins in d1[:3]:
        a(ins)
    a(f"v_add_f32_dpp v14, v14, v14 quad_perm:[1,0,3,2] {DPPM}")
    for ins in d1[3:6]:
        a(ins)
    a(f"v_add_f32_dpp v14, v14, v14 quad_perm:[2,3,0,1] {DPPM}")
    for ins in d2[:3]:
        a(ins)
    a("v_mov_b32 v15, v14")
    for ins in d1[6:] + d2[3:5]:
        a(ins)
    a("v_permlane16_swap_b32 v15, v14")
    for ins in d2[5:]:
        a(ins)
    a("v_add_f32 v14, v14, v15")
    for ins in d3:
        a(ins)
    set_exec(0x000F000F000F000F)
    a("ds_write_b128 v5, v[104:107]")
    a("ds_write_b128 v5, v[108:111] offset:16")
    set_exec(0x0000111100001111)
    a("ds_write_b32 v6, v14")
    set_exec(-1)
    a("s_waitcnt lgkmcnt(0)")
    a("s_barrier")
    stamp(10)
    a.label("L_fin2")
    finish_wave()

    a.label("L_FF0")
    a(f"s_cmp_lg_u32 s{sWAVE}, 0")
    a("s_cbranch_scc1 L_fin2")
    if OPT["gate"]:
        a(f"s_cmp_eq_u32 s{sM}, 15")
        a("s_cbranch_scc1 L_fin2")
        base(sBA, sWS, None, GATE)
        a("v_lshlrev_b32 v5, 7, v0")
        a("v_and_b32 v7, 0x380, v5")
        a("v_add_u32 v7, 0x2000, v7")
        a(f"s_movk_i32 s{sCNT}, 60")
        if not OPT["adap"]:
            a("s_barrier                      ; 2c")
        a.label("L_FFg")
        if OPT["gatew"]:
            a(f"global_load_dword v6, v5, {sp(sBA)} sc1")
        a(f"global_load_dword v8, v7, {sp(sBA)} sc1")
        poll_mid()
        if OPT["gatew"]:
            a("v_max_u32 v8, v6, v8")
        a("v_cmp_eq_u32 vcc, -1, v8")
        poll_end("L_FFg")
        if OPT["gate"] > 1:
            a(f"s_sleep {OPT['gate'] - 1}")
        if OPT["adap"]:
            a("v_mov_b32 v6, 1")
            a(f"ds_write_b32 v4, v6 offset:{LGT}")
    a(f"s_cmp_ge_u32 s{sM}, 14")
    a("s_cbranch_scc1 L_fin2")
    if OPT["gate"]:
        a("s_barrier                      ; 3")
    a("v_bfe_u32 v8, v0, 3, 2")
    a("v_lshlrev_b32 v5, 7, v8")
    a("v_and_b32 v6, 7, v0")
    a("v_lshl_add_u32 v5, v6, 3, v5")
    a("v_lshrrev_b32 v6, 5, v0")
    a("v_lshl_add_u32 v5, v6, 2, v5")
    a("v_add_u32 v6, 64, v5")
    a("v_lshlrev_b32 v8, 5, v8")
    a(f"s_mul_i32 s{sT0}, s{sG}, 14")
    a(f"s_add_u32 s{sT0}, s{sT0}, s{sM}")
    a(f"s_lshl_b32 s{sT0}, s{sT0}, 7")
    base(sBA, sWS, sT0, ACT)
    a("v_lshlrev_b32 v7, 2, v0")
    a(f"s_mov_b32 s{sT1}, {INV512:#x}")
    if not OPT["gate"]:
        a("s_barrier                      ; 3")
    for k, L0 in enumerate((LU, LV)):
        o = L0 // 256
        a(f"ds_read2st64_b32 v[{16 + 8 * k}:{17 + 8 * k}], v5 offset0:{o} offset1:{o + 2}")
        a(f"ds_read2st64_b32 v[{18 + 8 * k}:{19 + 8 * k}], v5 offset0:{o + 4} offset1:{o + 6}")
        a(f"ds_read2st64_b32 v[{20 + 8 * k}:{21 + 8 * k}], v6 offset0:{o} offset1:{o + 2}")
        a(f"ds_read2st64_b32 v[{22 + 8 * k}:{23 + 8 * k}], v6 offset0:{o + 4} offset1:{o + 6}")
    a("s_waitcnt lgkmcnt(0)")
    for k in range(4):
        a(f"v_pk_add_f32 v[{16 + 4 * k}:{17 + 4 * k}], v[{16 + 4 * k}:{17 + 4 * k}], v[{18 + 4 * k}:{19 + 4 * k}]")
    for k in range(4):
        a(f"v_add_f32 v{40 + k}, v{16 + 4 * k}, v{17 + 4 * k}")
    a("s_barrier                      ; 4")
    o = LY // 256
    a(f"ds_read_b128 v[24:27], v8 offset:{LST}")
    a(f"ds_read_b128 v[28:31], v8 offset:{LST + 16}")
    a(f"ds_read2st64_b32 v[16:17], v5 offset0:{o} offset1:{o + 2}")
    a(f"ds_read2st64_b32 v[18:19], v5 offset0:{o + 4} offset1:{o + 6}")
    a(f"ds_read2st64_b32 v[20:21], v6 offset0:{o} offset1:{o + 2}")
    a(f"ds_read2st64_b32 v[22:23], v6 offset0:{o + 4} offset1:{o + 6}")
    a("s_waitcnt lgkmcnt(4)")
    a("v_pk_add_f32 v[24:25], v[24:25], v[26:27]")
    a("v_pk_add_f32 v[28:29], v[28:29], v[30:31]")
    a("v_add_f32 v24, v24, v25")
    a("v_add_f32 v28, v28, v29")
    a(f"v_mul_f32 v24, s{sT1}, v24             ; mean")
    a("v_mul_f32 v25, v24, v24")
    a(f"v_fma_f32 v28, v28, s{sT1}, -v25       ; variance")
    a("v_max_f32 v28, 0, v28")
    a(f"v_add_f32 v28, {EPS:#x}, v28")
    a("v_rsq_f32 v28, v28")
    a("s_waitcnt lgkmcnt(0)")
    a("v_pk_add_f32 v[16:17], v[16:17], v[18:19]")
    a("v_pk_add_f32 v[20:21], v[20:21], v[22:23]")
    a("v_add_f32 v16, v16, v17")
    a("v_add_f32 v17, v20, v21")
    a("v_fma_f32 v16, -v24, v40, v16")
    a("v_fma_f32 v17, -v24, v41, v17")
    a("v_fma_f32 v16, v16, v28, v42          ; gate")
    a("v_fma_f32 v17, v17, v28, v43          ; up")
    a(f"v_mul_f32 v18, {0x80000000 | LOG2E:#x}, v16")
    a("v_exp_f32 v18, v18")
    a("v_mul_f32 v16, v16, v17")
    a("v_add_f32 v18, 1.0, v18")
    a("v_rcp_f32 v18, v18")
    a("v_mul_f32 v16, v16, v18")
    a("v_mov_b32 v17, v16")
    a("v_permlane32_swap_b32 v16, v17")
    a("v_cvt_pk_bf16_f32 v16, v16, v17")
    set_exec(0xFFFFFFFF)
    a(f"global_store_dword v7, v16, {sp(sBA)} sc1")
    stamp(11)
    finish_wave()


def wq_pf():
    a(f"s_lshl_b32 s{sT0}, s{sT0}, 6")
    a(f"s_add_u32 s{sT0}, s{sT0}, s{sT1}")
    a(f"s_lshl_b32 s{sT0}, s{sT0}, 10")
    a("v_lshlrev_b32 v8, 13, v14")
    a("v_lshl_add_u32 v8, v15, 7, v8")
    a(f"v_add_u32 v8, s{sT0}, v8")
    prefetch(8, sWQ, delta=8192)


def sec_entry():
    a(f"{NAME}_kernel:")
    a("s_load_dwordx16 s[4:19], s[0:1], 0")
    a("s_load_dwordx8 s[20:27], s[0:1], 64")
    a("s_load_dwordx2 s[30:31], s[0:1], 104")
    if OPT["stamps"]:
        a("v_mov_b32 v126, 0")
        a("s_memrealtime s[100:101]")
    if OPT["probe"]:
        a("s_memrealtime s[100:101]")
    a("s_cmp_ge_u32 s2, 256")
    a("s_cbranch_scc1 L_exit")
    a("v_lshrrev_b32 v1, 6, v0")
    if OPT["pf"]:
        a(f"s_getpc_b64 {sp(sPC)}")
        a.label("L_pc0")
        a("v_lshlrev_b32 v2, 7, v0")
    a(f"v_readfirstlane_b32 s{sWAVE}, v1")
    if OPT["pf"]:
        a(f"s_sub_u32 s{sPC}, s{sPC}, L_pc0-L_code0")
        a(f"s_subb_u32 s{sPC + 1}, s{sPC + 1}, 0")
        a("v_cmp_gt_u32 vcc, (L_exit-L_code0)/128, v0")
        if OPT["cpf1"]:
            a("s_and_b32 s33, s2, 0xf8")
            a("s_cmp_lg_u32 s33, 0x78")
            a("s_cbranch_scc1 L_nopf")
        a("s_cbranch_vccz L_nopf")
        a("s_mov_b64 exec, vcc")
        a(f"global_load_dword v127, v2, {sp(sPC)}")
        a("s_mov_b64 exec, -1")
        a.label("L_nopf")
    a("v_and_b32 v0, 63, v0")
    a(f"s_and_b32 s{sT1}, s2, 7")
    a(f"s_lshr_b32 s{sT2}, s2, 3")
    a("v_lshrrev_b32 v1, 2, v0        ; l>>2")
    a("v_and_b32 v2, 3, v0            ; l&3")
    a("v_lshrrev_b32 v3, 4, v0        ; l>>4")
    a("v_mov_b32 v4, 0")
    a("v_and_b32 v5, 3, v1")
    a("v_lshrrev_b32 v14, 3, v0")
    a("v_and_b32 v15, 7, v0")
    a("s_cmp_lt_u32 s2, 128")
    a("s_cbranch_scc1 L_G")
    if OPT["kfirst"]:
        a("s_setprio 3")
    a(f"s_sub_u32 s{sT2}, s{sT2}, 16             ; a = 4b + s")
    a(f"s_and_b32 s{sT0}, s{sT2}, 12")
    a(f"s_lshl_b32 s{sT0}, s{sT0}, 1")
    a(f"s_add_u32 s{sT0}, s{sT0}, s{sT1}")
    a(f"s_lshl_b32 s{sT0}, s{sT0}, 4")
    a(f"s_and_b32 s{sT3}, s{sT2}, 3")
    a(f"s_add_u32 s{sT0}, s{sT0}, s{sT3}")
    a(f"s_lshl_b32 s{sT0}, s{sT0}, 3")
    a(f"s_add_u32 s{sT0}, s{sT0}, s{sWAVE}")
    a(f"s_lshl_b32 s{sT0}, s{sT0}, 13")
    a(f"s_add_u32 s{sT0}, s{sT0}, {3072 * 256 + 4096}")
    a("v_lshlrev_b32 v7, 4, v0")
    a("s_waitcnt lgkmcnt(0)")
    base(sBA, sK, sT0)
    base(sBB, sV, sT0)
    if OPT["stag"]:
        a("s_waitcnt lgkmcnt(0)")
        a(f"s_load_dword s{45}, {sp(sWS)}, 0")
        a("s_waitcnt lgkmcnt(0)")
    a(f"global_load_dword v12, v4, {sp(sWS)} sc1      ; epoch")
    if OPT["pfaw"] == 1:
        a(f"s_cmp_lg_u32 s{sWAVE}, 2")
        a("s_cbranch_scc1 L_nopfa")
        a("v_lshrrev_b32 v8, 1, v0")
        a(f"v_lshl_add_u32 v8, s{sT2}, 5, v8")
        a("v_mul_u32_u24 v8, 6144, v8")
        a("v_and_b32 v9, 1, v0")
        a("v_lshl_add_u32 v8, v9, 10, v8")
        a(f"v_lshl_add_u32 v8, s{sT1}, 7, v8")
        prefetch(8, sWM, delta=4 * 6144)
        a.label("L_nopfa")
    if OPT["ahelp"]:
        if OPT["plan"] in (1, 3):
            a(f"s_cmp_ge_u32 s{sWAVE}, 2")
            a("s_cbranch_scc1 L_nopfq")
            a(f"s_lshl1_add_u32 s{sT0}, s{sT2}, s{sWAVE}")
            a(f"s_add_u32 s{sT0}, s{sT0}, 32")
        else:
            a(f"s_cmp_lg_u32 s{sWAVE}, 0")
            a("s_cbranch_scc1 L_nopfq")
            a(f"s_add_u32 s{sT0}, s{sT2}, 48")
        wq_pf()
        a.label("L_nopfq")
    if OPT["athr"] < 8:
        a(f"s_cmp_lt_u32 s{sWAVE}, {OPT['athr']}")
        a("s_cbranch_scc1 L_Ald")
        a("s_waitcnt vmcnt(0)")
        a.label("L_Ald")
    for u in range(8):
        a(f"global_load_dwordx4 {vr(KR + 4 * u, 4)}, v7, {sp(sBA)} offset:{1024 * u - 4096}{NT}")
    if OPT["kfirst"]:
        a("s_setprio 0")
    if OPT["kstage"]:
        a(f"s_cmp_ge_u32 s{sWAVE}, 4")
        a("s_cbranch_scc1 L_A2")
    for u in range(0 if OPT["vlate"] else 8):
        a(f"global_load_dwordx4 {vr(VR + 4 * u, 4)}, v7, {sp(sBB)} offset:{1024 * u - 4096}{NT}")
    a("s_branch L_A2")
    a.label("L_G")
    a(f"s_and_b32 s{sT3}, s{sT2}, 1")
    a(f"s_lshr_b32 s{sT0}, s{sT2}, 2")
    a(f"s_and_b32 s{sT0}, s{sT0}, 2")
    a(f"s_or_b32 s{sKIND}, s{sT3}, s{sT0}")
    if OPT["pfa"] and not OPT["pfaw"]:
        a("v_lshrrev_b32 v6, 1, v0")
        a(f"v_lshl_add_u32 v6, s{sT2}, 5, v6")
        a("v_mul_u32_u24 v6, 6144, v6")
        a("v_and_b32 v7, 1, v0")
        a("v_lshl_add_u32 v6, v7, 10, v6")
        a(f"v_lshl_add_u32 v6, s{sT1}, 7, v6")
        a(f"s_cmp_lg_u32 s{sWAVE}, 0")
        a("s_cbranch_scc1 L_nopfa")
        PFWAIT[0] = True
        prefetch(6, sWM, delta=4 * 6144)
        a.label("L_nopfa")
    a(f"s_bfe_u32 s{sT0}, s{sT2}, 0x20001")
    a(f"s_lshl2_add_u32 s{sCNT}, s{sT1}, s{sT0}      ; p = 4g + ((m>>1)&3)")
    a(f"s_cmp_eq_u32 s{sKIND}, 1")
    a("s_cbranch_scc1 L_GA")
    if OPT["stag"] == 1:
        a("s_waitcnt lgkmcnt(0)")
        a(f"s_load_dword s{45}, {sp(sWS)}, 0")
        a("s_waitcnt lgkmcnt(0)")
    if OPT["plan"] in (1, 2, 3):
        a(f"s_cmp_eq_u32 s{sKIND}, 3")
        a("s_cbranch_scc1 L_GB")
    a(f"s_sub_u32 s{sT4}, s{sWAVE}, 1")
    a(f"s_cmp_ge_u32 s{sT4}, {6 if OPT['plan'] == 2 else 4}")
    a("s_cbranch_scc1 L_nopfw")
    a(f"s_lshr_b32 s{sT0}, s{sT2}, 1")
    if OPT["plan"] == 2:
        a(f"s_mul_i32 s{sT0}, s{sT0}, 6")
        a(f"s_add_u32 s{sT0}, s{sT0}, s{sT4}")
    else:
        a(f"s_lshl2_add_u32 s{sT0}, s{sT3}, s{sT0}")
        a(f"s_lshl2_add_u32 s{sT0}, s{sT0}, s{sT4}")
    PFWAIT[0] = True
    wq_pf()
    a.label("L_nopfw")
    a(f"s_cmp_eq_u32 s{sKIND}, 3")
    a("s_cbranch_scc1 L_GB")
    a(f"s_lshl_b32 s{sT0}, s{sWAVE}, 9")
    a(f"s_add_u32 s{sT0}, s{sT0}, s{sT1}")
    a(f"s_lshl4_add_u32 s{sT0}, s{sT0}, s{sT2}")
    a(f"s_lshl_b32 s{sT0}, s{sT0}, 6")
    a("v_lshlrev_b32 v6, 16, v14")
    a("v_lshl_add_u32 v6, v15, 4, v6")
    a(f"s_movk_i32 s{sT3}, 8192")
    a(f"s_lshr_b32 s{sT4}, s{sT2}, 2")
    a(f"s_lshl2_add_u32 s{sT4}, s{sT1}, s{sT4}")
    a(f"s_mul_i32 s{sT4}, s{sT4}, {NREP * 128}")
    if OPT["qfast"] == 1:
        a(f"s_bfe_u32 s{sCNT}, s{sT2}, 0x10001")
    else:
        a(f"s_and_b32 s{sCNT}, s{sT2}, 2")
        a(f"s_add_u32 s{sCNT}, s{sCNT}, s{sWAVE}")
    a(f"s_lshl2_add_u32 s{sT4}, s{sCNT}, s{sT4}")
    a(f"s_add_u32 s{sT4}, s{sT4}, {FL:#x}")
    a(f"v_and_b32 v96, {NREP - 1}, v0")
    a(f"v_lshl_add_u32 v96, v96, 7, s{sT4}")
    a("s_waitcnt lgkmcnt(0)")
    base(sBB, sWQ, sT0)
    a(f"global_load_dword v12, v4, {sp(sWS)} sc1      ; epoch")
    a(f"s_cmp_lg_u32 s{sWAVE}, 1")
    a("s_cbranch_scc1 L_G_ld")
    a(f"global_load_dword v127, v96, {sp(sWS)} sc1")
    a.label("L_G_ld")
    for j in range(8):
        a(f"global_load_dwordx4 {vr(W + 4 * j, 4)}, v6, {sp(sBB)}{NT}")
        if j < 7:
            a(f"v_add_u32 v6, s{sT3}, v6")
    a(f"s_cmp_eq_u32 s{sKIND}, 1")
    a("s_cbranch_scc0 L_GQ2")
    a("s_branch L_GM2")
    a.label("L_GA")
    a(f"s_cmp_ge_u32 s{sWAVE}, 4")
    a("s_cbranch_scc1 L_GQA")
    a(f"s_lshl_b32 s{sT0}, s{sCNT}, 5")
    a(f"s_mul_i32 s{sT3}, s{sWAVE}, {128 * 6144}")
    a(f"s_add_u32 s{sT0}, s{sT0}, s{sT3}")
    a("v_lshlrev_b32 v5, 10, v5")
    a("v_lshl_add_u32 v5, v3, 6, v5")
    a("v_lshl_add_u32 v5, v2, 4, v5")
    a(f"v_lshl_add_u32 v5, s{sWAVE}, 8, v5")
    a("v_mul_u32_u24 v6, 49152, v1")
    a("v_and_b32 v7, 1, v2")
    a("v_lshl_add_u32 v6, v7, 4, v6")
    a("v_lshrrev_b32 v7, 1, v2")
    a("v_lshl_add_u32 v6, v7, 10, v6")
    a("v_mov_b32 v96, 0")
    if OPT["pfaw"] == 2:
        a(f"s_lshl1_add_u32 s{sT4}, s{sT2}, s{sWAVE}")
        a(f"s_sub_u32 s{sT4}, s{sT4}, 2")
        a("v_lshrrev_b32 v13, 1, v0")
        a(f"v_lshl_add_u32 v13, s{sT4}, 5, v13")
        a("v_mul_u32_u24 v13, 6144, v13")
        a("v_and_b32 v7, 1, v0")
        a("v_lshl_add_u32 v13, v7, 10, v13")
        a(f"v_lshl_add_u32 v13, s{sT1}, 7, v13")
    a(f"s_movk_i32 s{sT3}, 6144")
    a("s_waitcnt lgkmcnt(0)")
    base(sBB, sWM, sT0)
    a(f"global_load_dwordx4 v[8:11], v5, {sp(sC)}")
    if OPT["pfaw"] == 2:
        prefetch(13, sWM, delta=4 * 6144)
        a("s_barrier")
    a("s_branch L_G_ld")
    a.label("L_GQA")
    a("s_setprio 3")
    a("v_and_b32 v7, 15, v0")
    a("v_lshlrev_b32 v13, 10, v3")
    a("v_lshl_add_u32 v14, v7, 4, v13")
    a("v_lshl_add_u32 v15, v7, 1, v13")
    a(f"v_lshl_add_u32 v15, s{sCNT}, 5, v15")
    a("s_waitcnt lgkmcnt(0)")
    a(f"s_cmp_lg_u32 s{sWAVE}, 7")
    a("s_cbranch_scc1 L_GQA2")
    a(f"global_load_dword v12, v4, {sp(sWS)} sc1      ; epoch")
    for t in range(4):
        a(f"global_load_dwordx4 {vr(80 + 4 * t, 4)}, v14, {sp(sX)} offset:{256 * t}")
    a(f"global_load_ushort v13, v15, {sp(sX)}")
    a("s_branch L_GQA2")
    a.label("L_GB")
    a(f"s_cmp_lg_u32 s{sWAVE}, 7")
    a("s_cbranch_scc1 L_GB1")
    a("s_setprio 3")
    a(f"s_mul_i32 s{sT0}, s{sCNT}, {CLR_PER_WG * 1024}")
    a("v_lshlrev_b32 v6, 4, v0")
    for i in range(4):
        a(f"v_mov_b32 v{8 + i}, -1")
    a("s_waitcnt lgkmcnt(0)")
    base(sBA, sWS, sT0, CLR + 4096)
    a(f"global_load_dword v12, v4, {sp(sWS)} sc1      ; epoch")
    for i in range(CLR_PER_WG):
        a(f"global_store_dwordx4 v6, v[8:11], {sp(sBA)} offset:{1024 * i - 4096} sc1")
    a("s_branch L_GB2")


def ids():
    a(f"s_mov_b32 s{sG}, s{sT1}")
    a(f"s_mov_b32 s{sM}, s{sT2}")
    sels()
    if OPT["stamps"]:
        a("s_mov_b32 m0, 0")
    if OPT["probe"]:
        a("v_mov_b32 v208, s100")
        a("v_mov_b32 v209, s100")
        a("v_mov_b32 v210, 0")
        a(f"s_getreg_b32 s100, hwreg(HW_REG_XCC_ID, 0, 4)")
        a("v_mov_b32 v211, s100")


def silu_frag():
    unpack(80, 8, 4)
    for i in range(8):
        a(f"v_mul_f32 v{88 + i}, {0x80000000 | LOG2E:#x}, v{80 + i}")
    for i in range(8):
        a(f"v_exp_f32 v{88 + i}, v{88 + i}")
    for i in range(8):
        a(f"v_add_f32 v{88 + i}, 1.0, v{88 + i}")
    for i in range(8):
        a(f"v_rcp_f32 v{88 + i}, v{88 + i}")
    for i in range(8):
        a(f"v_mul_f32 v{80 + i}, v{80 + i}, v{88 + i}")
    for i in range(4):
        a(f"v_cvt_pk_bf16_f32 v{8 + i}, v{80 + 2 * i}, v{81 + 2 * i}")


def xcc_flag():
    a(f"s_lshr_b32 s{sT0}, s{sM}, 2")
    a(f"s_lshl2_add_u32 s{sT0}, s{sG}, s{sT0}")
    a(f"s_mul_i32 s{sT0}, s{sT0}, {NREP * 128}")
    a(f"s_and_b32 s{sT1}, s{sM}, 2")
    a(f"s_lshl1_add_u32 s{sT0}, s{sT1}, s{sT0}")
    a(f"s_add_u32 s{sT0}, s{sT0}, {FL + 16:#x}")
    a(f"v_and_b32 v5, {NREP - 1}, v0")
    a(f"v_lshl_add_u32 v5, v5, 7, s{sT0}")
    a(f"s_getreg_b32 s{sT0}, hwreg(HW_REG_XCC_ID, 0, 4)")
    a(f"s_xor_b32 s{sT0}, s{sTAG}, s{sT0}")
    a(f"v_mov_b32 v6, s{sT0}")
    a(f"global_store_dword v5, v6, {sp(sWS)}")


def q_trigger(lab):
    a(f"s_mul_i32 s{sT0}, s{sG}, {4 * NREP * 128}")
    base(sBA, sWS, sT0, FL)
    a("v_and_b32 v9, 3, v1")
    a(f"v_mul_u32_u24 v9, {NREP * 128}, v9")
    a("v_lshl_add_u32 v9, v2, 2, v9")
    a(f"s_mov_b32 s45, s{sCNT}")
    a(f"s_movk_i32 s{sCNT}, 40")
    a.label(lab)
    a(f"global_load_dword v10, v9, {sp(sBA)} sc1")
    poll_mid(sleep=2)
    a(f"v_xor_b32 v10, s{sTAG}, v10")
    a("v_cmp_gt_u32 vcc, 16, v10")
    a("s_cmp_eq_u64 vcc, 0")
    a("s_cselect_b64 vcc, -1, 0")
    poll_end(lab)
    a(f"s_mov_b32 s{sCNT}, s45")


def h_trigger(lab):
    base(sBA, sWS, None, H1 + 4)
    a("v_lshlrev_b32 v9, 7, v0")
    a(f"s_mov_b32 s45, s{sCNT}")
    a(f"s_movk_i32 s{sCNT}, 40")
    a.label(lab)
    a(f"global_load_dword v10, v9, {sp(sBA)} sc1")
    poll_mid(sleep=2)
    a(f"v_cmp_ne_u32 vcc, s{sTAG}, v10")
    poll_end(lab)
    a(f"s_mov_b32 s{sCNT}, s45")


def cf_poll():
    base(sBB, sWS, None, CF)
    a("v_and_b32 v5, 31, v0")
    a("v_lshlrev_b32 v5, 7, v5")
    lab = poll_begin()
    a(f"global_load_dword v6, v5, {sp(sBB)} sc1")
    poll_mid(sleep=4)
    a(f"v_cmp_ne_u32 vcc, s{sTAG}, v6")
    poll_end(lab)


def tile64_tail(first):
    for e in range(first, 8):
        a(mfma(ACC + 4 * e, 8, F + 4 * e))
    for e in range(8):
        a(f"v_add_f32_dpp v{80 + e}, v{ACC + 4 * e + 1}, v{ACC + 4 * e} row_shl:8 {DPPM}")
    set_exec(0x00FF00FF00FF00FF)
    a("ds_write_b128 v6, v[80:83]")
    a("ds_write_b128 v6, v[84:87] offset:16")
    set_exec(-1)


def tile64_addr():
    a("v_lshlrev_b32 v6, 8, v3")
    a("v_lshl_add_u32 v6, v15, 5, v6")
    a(f"v_lshl_add_u32 v6, s{sWAVE}, 10, v6")
    a("v_lshlrev_b32 v7, 3, v0")
    a(f"v_lshl_add_u32 v7, s{sWAVE}, 9, v7")


def tile64_sum():
    for t in range(4):
        a(f"ds_read2st64_b64 {vr(16 + 4 * t, 4)}, v7 offset0:{4 * t} offset1:{4 * t + 2}")


def sec_gm():
    CLS[0] = 4
    a.label("L_GM2")
    ids()
    stamp(1)
    a("s_waitcnt vmcnt(8)")
    silu_frag()
    a("v_lshlrev_b32 v5, 7, v3")
    a("v_lshl_add_u32 v5, v2, 5, v5")
    a(f"v_lshl_add_u32 v5, s{sWAVE}, 9, v5")
    perms8(W, F, waits=[6, 4, 2, 0])
    for e in range(8):
        a(mfma(ACC + 4 * e, 8, F + 4 * e))
    diagX_reduce(ACC, 48)
    set_exec(0x000F000F000F000F)
    a("ds_write_b128 v5, v[48:51]")
    a("ds_write_b128 v5, v[52:55] offset:16")
    set_exec(-1)
    a("s_waitcnt lgkmcnt(0)")
    stamp(2)
    a("s_barrier                      ; 1")
    if OPT["bhelp"]:
        a(f"s_lshl1_add_u32 s{sT0}, s{sM}, s{sWAVE}")
        a(f"s_add_u32 s{sT0}, s{sT0}, 14")
        a(f"s_mul_i32 s{sT0}, s{sT0}, {16 * 6144}")
        a(f"s_lshl_b32 s{sT1}, s{sG}, 9")
        a(f"s_add_u32 s{sT0}, s{sT0}, s{sT1}")
        a(f"s_add_u32 s{sT0}, s{sT0}, 2048")
        a("v_mul_u32_u24 v8, 6144, v1")
        a("v_lshl_add_u32 v8, v2, 7, v8")
        a(f"v_add_u32 v8, s{sT0}, v8")
        a("s_barrier")
        if OPT["hpull"]:
            a(f"s_cmp_eq_u32 s{sM}, 1")
            a("s_cbranch_scc1 L_DOWN")
        prefetch(8, sWM, delta=2 * 6144)
    a("s_branch L_DOWN")


def sec_gb():
    CLS[0] = 2
    a.label("L_GB1")
    a("s_waitcnt lgkmcnt(0)")
    a.label("L_GB2")
    ids()
    if OPT["h1m"] == 1:
        a(f"s_lshl3_add_u32 s{sT0}, s{sM}, s{sWAVE}")
        a(f"s_cmp_lg_u32 s{sT0}, {9 * 8 + 6}")
        a("s_cbranch_scc1 L_GBh")
        base(sBA, sWS, None, H1)
        a("v_lshlrev_b32 v9, 7, v0")
        a(f"global_load_dword v127, v9, {sp(sBA)} sc1")
        a.label("L_GBh")
    a("v_lshlrev_b32 v5, 10, v5")
    a("v_lshl_add_u32 v5, v3, 5, v5")
    a("v_and_b32 v7, 1, v0")
    a("v_lshl_add_u32 v5, v7, 4, v5")
    a(f"v_lshl_add_u32 v16, s{sWAVE}, 7, v5")
    a(f"s_lshl_b32 s{sT0}, s{sCNT}, 7")
    a(f"s_mul_i32 s{sT3}, s{sWAVE}, {64 * 6144}")
    a(f"s_add_u32 s{sT0}, s{sT0}, s{sT3}")
    base(sBC, sWM, sT0, 2048)
    a(f"s_lshl_b32 s{sT4}, s{sCNT}, 9           ; p*512")
    a("v_mul_u32_u24 v13, 49152, v14")
    a("v_lshl_add_u32 v13, v15, 4, v13")
    a(f"s_movk_i32 s{sT3}, 6144")
    a(f"s_cmp_lg_u32 s{sWAVE}, 7")
    a("s_cbranch_scc1 L_GB3")
    a("s_waitcnt vmcnt(0)")
    make_tag(12)
    base(sBB, sWS, None, CF)
    a(f"v_lshlrev_b32_e64 v5, 7, s{sCNT}")
    a(f"v_mov_b32 v6, s{sTAG}")
    set_exec(1)
    a(f"global_store_dword v5, v6, {sp(sBB)} sc1")
    set_exec(-1)
    if OPT["late"] & 1:
        (h_trigger if OPT["late"] & 4 else q_trigger)("L_GBt")
    a("s_setprio 0")
    a.label("L_GB3")
    stamp(1)
    if OPT["bcoop"]:
        a(f"s_and_b32 s{sT0}, s{sCNT}, 3")
        a(f"s_lshl2_add_u32 s{sT0}, s{sWAVE}, s{sT0}")
        a(f"s_mul_i32 s{sT0}, s{sT0}, {16 * 6144}")
        a(f"s_lshl_b32 s{sT1}, s{sG}, 9")
        a(f"s_add_u32 s{sT0}, s{sT0}, s{sT1}")
        a(f"s_add_u32 s{sT0}, s{sT0}, 2048")
        a("v_mul_u32_u24 v17, 6144, v1")
        a("v_lshl_add_u32 v17, v2, 7, v17")
        a(f"v_add_u32 v17, s{sT0}, v17")
        if OPT["bcoop"] == 2:
            a(f"s_cmp_ge_u32 s{sWAVE}, 3")
            a("s_cbranch_scc1 L_GBc")
            prefetch(17, sWM, delta=2 * 6144)
            a.label("L_GBc")
    a("s_barrier")
    if OPT["bcoop"]:
        if OPT["bcoop"] == 2:
            a(f"s_cmp_lt_u32 s{sWAVE}, 3")
            a("s_cbranch_scc1 L_GBd")
        prefetch(17, sWM, delta=2 * 6144)
        a.label("L_GBd")
        a("s_barrier")
    if OPT["b3"]:
        a(f"s_and_b32 s{sT0}, s{sCNT}, 3")
        a(f"s_lshl2_add_u32 s{sT1}, s{sWAVE}, s{sT0}")
        a(f"s_cmp_ge_u32 s{sT1}, 3")
        a("s_cbranch_scc1 L_GBe")
        a(f"s_add_u32 s{sT0}, s{sT0}, 5")
        a(f"v_lshl_add_u32 v17, s{sT0}, 6, v0")
        a("v_mul_u32_u24 v17, 6144, v17")
        a(f"s_lshl_b32 s{sT0}, s{sG}, 9")
        a(f"s_add_u32 s{sT0}, s{sT0}, {2048 + 384}")
        a(f"v_add_u32 v17, s{sT0}, v17")
        prefetch(17, sWM)
        a.label("L_GBe")
    a(f"global_load_dwordx4 v[8:11], v16, {sp(sC)}")
    for j in range(8):
        a(f"global_load_dwordx4 {vr(W + 4 * j, 4)}, v13, {sp(sBC)}{NT}")
        if j < 7:
            a(f"v_add_u32 v13, s{sT3}, v13")
    a("s_waitcnt vmcnt(8)")
    silu_frag()
    tile64_addr()
    perms8(W, F, waits=[6, 4, 2, 0])
    tile64_tail(0)
    a(f"s_cmp_lg_u32 s{sWAVE}, 7")
    a("s_cbranch_scc1 L_GB4")
    cf_poll()
    a.label("L_GB4")
    a("s_waitcnt lgkmcnt(0)")
    stamp(2)
    a("s_barrier                      ; 1")
    a(f"s_cmp_ge_u32 s{sWAVE}, 2")
    a("s_cbranch_scc1 L_HB")
    tile64_sum()
    base(sBA, sWS, sT4, MODB)
    a("v_and_b32 v5, 2, v0")
    a("v_lshlrev_b32 v5, 7, v5")
    a("v_and_b32 v6, 32, v0")
    a("v_lshl_add_u32 v5, v6, 1, v5")
    a(f"v_lshl_add_u32 v5, s{sWAVE}, 7, v5")
    a("v_and_b32 v6, 13, v0")
    a("v_lshl_add_u32 v5, v6, 2, v5")
    a("v_bfe_u32 v6, v0, 4, 1")
    a("v_lshl_add_u32 v5, v6, 3, v5")
    a("s_waitcnt lgkmcnt(0)")
    sum8_b64(16)
    a("v_cvt_pk_bf16_f32 v12, v16, v17")
    a(f"global_store_dword v5, v12, {sp(sBA)} sc1")
    stamp(3)
    a("s_branch L_HB")


def sec_ln():
    CLS[0] = 3
    a.label("L_GQA2")
    if OPT["pfaw"] == 2:
        a("s_barrier")
    ids()
    stamp(1)
    a(f"s_cmp_lg_u32 s{sWAVE}, 7")
    a("s_cbranch_scc1 L_GQA3")
    a("s_waitcnt vmcnt(0)")
    make_tag(12)
    unpack(16, 80, 16)
    a("v_pk_add_f32 v[8:9], v[16:17], v[18:19]")
    for i in range(2, 16):
        a(f"v_pk_add_f32 v[8:9], v[8:9], v[{16 + 2 * i}:{17 + 2 * i}]")
    a("v_add_f32 v8, v8, v9")
    row_allsum(8)
    a(f"v_mul_f32 v8, {INV512:#x}, v8       ; mean")
    a("v_mov_b32 v9, v8")
    for i in range(16):
        a(f"v_pk_add_f32 v[{16 + 2 * i}:{17 + 2 * i}], v[{16 + 2 * i}:{17 + 2 * i}], v[8:9] neg_lo:[0,1] neg_hi:[0,1]")
    a("v_pk_mul_f32 v[10:11], v[16:17], v[16:17]")
    for i in range(1, 16):
        a(f"v_pk_fma_f32 v[10:11], v[{16 + 2 * i}:{17 + 2 * i}], v[{16 + 2 * i}:{17 + 2 * i}], v[10:11]")
    a("v_add_f32 v10, v10, v11")
    row_allsum(10)
    a(f"v_mul_f32 v9, {INV512:#x}, v10      ; var")
    round_bf16([8, 9])
    a(f"v_add_f32 v9, {EPS:#x}, v9")
    round_bf16([9])
    a("v_sqrt_f32 v9, v9")
    round_bf16([9])
    a("v_rcp_f32 v9, v9")
    a("v_lshlrev_b32 v13, 16, v13")
    a("v_sub_f32 v13, v13, v8")
    round_bf16([13])
    a("v_mul_f32 v13, v13, v9")
    round_bf16([13])
    a("v_lshlrev_b32 v5, 7, v3")
    a("v_lshl_add_u32 v5, v7, 2, v5")
    a("v_add_u32 v10, 64, v5")
    a("v_lshlrev_b32 v14, 6, v3              ; b*64")
    a("v_and_b32 v8, 8, v7")
    a("v_lshl_add_u32 v14, v8, 2, v14        ; c'lo*32")
    a("v_and_b32 v8, 2, v7")
    a("v_lshl_add_u32 v14, v8, 3, v14        ; (d&1)*16")
    a("v_and_b32 v8, 4, v7")
    a("v_lshl_add_u32 v14, v8, 1, v14        ; (d>>1)*8")
    a(f"s_lshl_b32 s{sT0}, s{sCNT}, 8")
    base(sBA, sWS, sT0, H1)
    a(f"v_mov_b32 v9, s{sTAG}")
    stamp(2)
    a("s_barrier                      ; 1")
    a("ds_read2st64_b32 v[80:81], v5 offset0:0 offset1:2")
    a("ds_read2st64_b32 v[82:83], v5 offset0:4 offset1:6")
    a("ds_read2st64_b32 v[84:85], v10 offset0:0 offset1:2")
    a("ds_read2st64_b32 v[86:87], v10 offset0:4 offset1:6")
    a("s_waitcnt lgkmcnt(0)")
    a("v_pk_add_f32 v[80:81], v[80:81], v[82:83]")
    a("v_pk_add_f32 v[84:85], v[84:85], v[86:87]")
    a("v_add_f32 v80, v80, v81               ; sa")
    a("v_add_f32 v81, v84, v85               ; ca")
    round_bf16([80, 81])
    a("v_add_f32 v81, 1.0, v81")
    round_bf16([81])
    a("v_mul_f32 v81, v13, v81")
    round_bf16([81])
    a("v_add_f32 v80, v81, v80")
    a(f"v_mov_b32_dpp v81, v80 quad_perm:[1,1,3,3] {DPPM}")
    a("v_cvt_pk_bf16_f32 v8, v80, v81")
    set_exec(0x5555555555555555)
    a(f"global_store_dwordx2 v14, v[8:9], {sp(sBA)} sc1")
    set_exec(-1)
    stamp(3)
    if OPT["late"] & 2:
        (h_trigger if OPT["late"] & 4 else q_trigger)("L_GAt")
    if OPT["bhelp"]:
        a("s_barrier                      ; 1b")
    a("s_branch L_DOWN")
    a.label("L_GQA3")
    if OPT["hpull"]:
        a(f"global_load_dword v12, v4, {sp(sWS)} sc1      ; epoch")
        base(sBA, sWS, None, H1 + 4)
        a("v_lshlrev_b32 v5, 7, v0")
        a("s_waitcnt vmcnt(0)")
        make_tag(12)
    a("s_barrier                      ; 1")
    if OPT["bhelp"]:
        a("s_barrier                      ; 1b")
    if OPT["hpull"]:
        a(f"s_lshl_b32 s{sT0}, s{sM}, 3")
        a(f"s_add_u32 s{sT0}, s{sT0}, s{sWAVE}")
        a(f"s_cmp_lg_u32 s{sT0}, 12")
        a("s_cbranch_scc1 L_DOWN")
        a(f"s_movk_i32 s{sCNT}, 30")
        a.label("L_hp")
        a(f"global_load_dword v6, v5, {sp(sBA)} sc1")
        poll_mid()
        a(f"v_cmp_ne_u32 vcc, s{sTAG}, v6")
        poll_end("L_hp")
    a("s_branch L_DOWN")


def sec_gq():
    CLS[0] = 0
    a.label("L_GQ2")
    ids()
    stamp(1)
    a(f"s_lshl_b32 s{sT0}, s{sWAVE}, 10")
    base(sBA, sWS, sT0, H1)
    a(f"s_lshl_b32 s{sT0}, s{sWAVE}, 9")
    base(sBC, sWS, sT0, CF)
    a("v_lshlrev_b32 v5, 6, v1")
    a("v_and_b32 v7, 1, v0")
    a("v_lshl_add_u32 v5, v7, 5, v5")
    a("v_lshlrev_b32 v98, 7, v2")
    tile64_addr()
    a(f"s_lshl_b32 s{sT0}, s{sG}, 12")
    a(f"s_lshl_b32 s{sT1}, s{sM}, 6")
    a(f"s_add_u32 s{sT0}, s{sT0}, s{sT1}")
    a(f"s_and_b32 s{sT1}, s{sWAVE}, 1")
    a(f"s_lshl_b32 s{sT1}, s{sT1}, 11")
    a(f"s_add_u32 s{sT0}, s{sT0}, s{sT1}")
    a("v_and_b32 v97, 31, v0")
    a(f"v_lshl_add_u32 v97, v97, 2, s{sT0}")
    a("v_and_b32 v99, 32, v0")
    a("v_lshl_add_u32 v97, v99, 5, v97")
    a("v_lshlrev_b32 v99, 1, v97")
    base(sBB, sWS, None, QS)
    a.label("L_GQ3")
    if OPT["woe"]:
        a(f"s_cmp_lt_u32 s{sWAVE}, 4")
        a("s_cbranch_scc1 L_GQ4")
        a(f"s_lshl1_add_u32 s{sT0}, s{sM}, s{sWAVE}")
        a(f"s_lshl_b32 s{sT1}, s{sG}, 6")
        a(f"s_add_u32 s{sT0}, s{sT0}, s{sT1}")
        a(f"s_add_u32 s{sT0}, s{sT0}, 28")
        a(f"s_lshl_b32 s{sT0}, s{sT0}, 13")
        a(f"v_lshl_add_u32 v8, v0, 7, s{sT0}")
        prefetch(8, sWO, delta=1024)
        a.label("L_GQ4")
    a("s_waitcnt vmcnt(8)")
    make_tag(12)
    a(f"s_getreg_b32 s{sT0}, hwreg(HW_REG_XCC_ID, 0, 4)")
    a(f"s_xor_b32 s{sT0}, s{sTAG}, s{sT0}")
    a(f"v_mov_b32 v101, s{sT0}")
    perms8(W, F, waits=[6, 4, 2, 0])
    stamp(4)
    if OPT["h1m"] >= 2:
        a(f"s_lshl_b32 s{sT0}, s{sG}, 10")
        a(f"s_add_u32 s{sT0}, s{sT0}, {H1 + 4:#x}")
        a("v_and_b32 v9, 7, v0")
        a(f"v_lshl_add_u32 v9, v9, 7, s{sT0}")
        a(f"s_movk_i32 s{sCNT}, 40")
        a.label("L_GQh")
        a(f"global_load_dword v10, v9, {sp(sWS)} sc1")
        poll_mid()
        a(f"v_cmp_ne_u32 vcc, s{sTAG}, v10")
        poll_end("L_GQh")
        if OPT["h1m"] > 2:
            a(f"s_sleep {OPT['h1m'] - 2}")
    lab = poll_begin()
    a(f"global_load_dwordx4 v[8:11], v5, {sp(sBA)} sc1")
    a(f"global_load_dwordx4 v[12:15], v5, {sp(sBA)} offset:16 sc1")
    a(f"global_load_dword v84, v98, {sp(sBC)} sc1")
    a(f"global_load_dword v127, v97, {sp(sBB)} sc1")
    poll_mid()
    a(f"v_xor_b32 v80, s{sTAG}, v9")
    a(f"v_xor_b32 v81, s{sTAG}, v11")
    a("v_mov_b32 v9, v12")
    a("v_mov_b32 v11, v14")
    a(f"v_xor_b32 v82, s{sTAG}, v13")
    a(f"v_xor_b32 v83, s{sTAG}, v15")
    interleave([mfma(ACC + 4 * e, 8, F + 4 * e) for e in range(2)],
               [f"v_xor_b32 v84, s{sTAG}, v84", "v_or3_b32 v80, v80, v81, v82", "v_or3_b32 v80, v80, v83, v84", "v_cmp_ne_u32 vcc, 0, v80"], 2)
    poll_end(lab)
    tile64_tail(2)
    a("s_waitcnt lgkmcnt(0)")
    stamp(5)
    a(f"s_cmp_ge_u32 s{sWAVE}, 2")
    a("s_barrier                      ; 1")
    a("s_cbranch_scc1 L_GQ5")
    tile64_sum()
    base(sBA, sWS, None, H2G)
    a("s_waitcnt lgkmcnt(0)")
    sum8_b64(16)
    a("v_cvt_pk_bf16_f32 v100, v16, v17")
    a(f"global_store_dword v97, v100, {sp(sBB)}")
    if OPT["qfast"] != 1:
        if not OPT["qfast"]:
            a("s_waitcnt vmcnt(0)")
        set_exec((1 << NREP) - 1 if NREP < 64 else -1)
        a(f"global_store_dword v96, v101, {sp(sWS)}")
        set_exec(-1)
    a(f"global_store_dwordx2 v99, v[100:101], {sp(sBA)} sc1")
    stamp(6)
    a("s_branch L_WO")
    a.label("L_GQ5")
    if OPT["qfast"] == 1:
        a(f"s_cmp_lg_u32 s{sWAVE}, 2")
        a("s_cbranch_scc1 L_WO")
        set_exec((1 << NREP) - 1 if NREP < 64 else -1)
        a(f"global_store_dword v96, v101, {sp(sWS)}")
        set_exec(-1)
    a("s_branch L_WO")


WD = 128


def down_loads():
    a(f"s_lshr_b32 s{sT2}, s{sM}, 1")
    a(f"s_lshl2_add_u32 s{sT0}, s{sG}, s{sT2}")
    a(f"s_lshl_b32 s{sT0}, s{sT0}, 5")
    a(f"s_lshl_b32 s{sT2}, s{sWAVE}, 18")
    a(f"s_add_u32 s{sT0}, s{sT0}, s{sT2}")
    base(sBB, sWD, sT0, 4096)
    a("v_lshlrev_b32 v6, 13, v1")
    a("v_lshl_add_u32 v6, v2, 3, v6")
    a("v_add_u32 v7, 0x20000, v6")
    for f in range(2):
        for j in range(8):
            a(f"global_load_dwordx2 {vr(WD + 16 * f + 2 * j, 2)}, v{7 if f else 6}, {sp(sBB)} offset:{1024 * j - 4096}{NTW}")


def wo_pf(first, per):
    for r in range((per + 7) // 8):
        n = min(8, per - 8 * r)
        lab = uid("wp")
        if n < 8:
            a(f"s_cmp_ge_u32 s{sWAVE}, {n}")
            a(f"s_cbranch_scc1 {lab}")
        a(f"s_mul_i32 s{sT0}, s{sT2}, {per}")
        a(f"s_add_u32 s{sT0}, s{sT0}, s{sWAVE}")
        a(f"s_lshl_b32 s{sT4}, s{sG}, 6")
        a(f"s_add_u32 s{sT0}, s{sT0}, s{sT4}")
        a(f"s_add_u32 s{sT0}, s{sT0}, {first + 8 * r}")
        a(f"s_lshl_b32 s{sT0}, s{sT0}, 13")
        a(f"v_lshl_add_u32 v8, v0, 7, s{sT0}")
        prefetch(8, sWO, delta=1024)
        a.label(lab)


def sec_wo():
    CLS[0] = 0
    a.label("L_WO")
    a(f"s_lshr_b32 s{sT1}, s{sWAVE}, 1")
    a(f"s_lshl2_add_u32 s{sT0}, s{sG}, s{sT1}")
    a(f"s_lshl_b32 s{sT0}, s{sT0}, 5")
    a(f"s_and_b32 s{sT2}, s{sWAVE}, 1")
    a(f"s_add_u32 s{sT0}, s{sT0}, s{sT2}")
    a(f"s_lshl_b32 s{sT0}, s{sT0}, 6            ; (512g + 128h + 4*(i&1)) * 16")
    a(f"s_add_u32 s{sT0}, s{sT0}, s{sM}")
    a(f"s_lshl_b32 s{sT0}, s{sT0}, 6")
    base(sBB, sWO, sT0)
    a("v_and_b32 v9, 15, v0")
    a("v_and_b32 v6, 1, v3")
    a("v_lshlrev_b32 v6, 16, v6")
    a("v_lshrrev_b32 v5, 1, v3")
    a("v_lshl_add_u32 v6, v5, 10, v6")
    a("v_lshl_add_u32 v6, v9, 2, v6")
    a(f"s_movk_i32 s{sT3}, 8192")
    a(f"s_lshl3_add_u32 s{sT0}, s{sG}, s{sWAVE}")
    a(f"s_lshl_b32 s{sT0}, s{sT0}, 11")
    base(sBA, sWS, sT0, H3O)
    a("v_lshlrev_b32 v5, 4, v0")
    a(f"s_lshr_b32 s{sT2}, s{sM}, 1")
    a("s_barrier")
    if OPT["touch"]:
        a(f"s_cmp_lg_u32 s{sWAVE}, s{sT2}")
        a("s_cbranch_scc1 L_WOt")
        a(f"global_load_dwordx4 v[64:67], v5, {sp(sBA)} sc1")
        a(f"global_load_dwordx4 v[68:71], v5, {sp(sBA)} offset:1024 sc1")
        a.label("L_WOt")
    rest = 64 - 4 * OPT["woa"]
    if OPT["woq"] and rest:
        wo_pf(4 * OPT["woa"], rest // 8)
    for j in range(8):
        for ks in range(2):
            for ch in range(2):
                a(f"global_load_dword v{128 + 16 * ks + 8 * ch + j}, v6, {sp(sBB)} offset:{2048 * ks + 64 * ch}{NTW}")
        if j < 7:
            a(f"v_add_u32 v6, s{sT3}, v6")
    a(f"s_lshl2_add_u32 s{sT0}, s{sG}, s{sT1}")
    a(f"s_lshl_b32 s{sT0}, s{sT0}, 7")
    base(sBC, sWS, sT0, H3ML)
    a("v_lshlrev_b32 v6, 5, v3")
    a("v_lshlrev_b32 v12, 8, v3")
    a("v_lshl_add_u32 v12, v9, 3, v12")
    a(f"v_lshl_add_u32 v12, s{sWAVE}, 10, v12")
    a(f"s_lshl4_add_u32 s{sT0}, s{sG}, s{sM}")
    a(f"s_lshl1_add_u32 s{sT0}, s{sT0}, s{sWAVE}")
    a(f"s_lshl_b32 s{sT0}, s{sT0}, 7")
    base(sBB, sWS, sT0, H4)
    a("v_and_b32 v13, 16, v0")
    a("v_lshlrev_b32 v13, 4, v13")
    a("v_and_b32 v10, 32, v0")
    a("v_lshl_add_u32 v13, v10, 1, v13")
    a("v_lshl_add_u32 v13, v9, 2, v13")
    a(f"s_lshl4_add_u32 s{sT0}, s{sG}, s{sM}")
    a(f"s_lshl_b32 s{sT0}, s{sT0}, 6")
    a(f"s_add_u32 s{sT0}, s{sT0}, {GATE:#x}")
    a(f"v_mov_b32 v14, s{sT0}")
    a("s_waitcnt vmcnt(0)")
    stamp(7)
    if OPT["gate"] and OPT["gatew"]:
        a(f"s_cmp_lg_u32 s{sWAVE}, 7")
        a("s_cbranch_scc1 L_WOg")
        set_exec(1)
        a(f"global_store_dword v14, v4, {sp(sWS)} sc1")
        set_exec(-1)
        a.label("L_WOg")
    for ks in range(2):
        for ch in range(2):
            for eo in range(2):
                for x in range(4):
                    src = 128 + 16 * ks + 8 * ch + 2 * x
                    a(f"v_perm_b32 v{32 + 16 * ks + 8 * ch + 4 * eo + x}, v{src + 1}, v{src}, s{sHI if eo else sLO}")
    lab = poll_begin()
    a(f"global_load_dwordx4 v[72:75], v6, {sp(sBC)} sc1")
    a(f"global_load_dwordx4 v[76:79], v6, {sp(sBC)} offset:16 sc1")
    poll_mid(sleep=OPT["mls"])
    for ins in sentinel_ops(range(72, 80), 8):
        a(ins)
    poll_end(lab)
    a(f"global_load_dwordx4 v[64:67], v5, {sp(sBA)} sc1")
    a(f"global_load_dwordx4 v[68:71], v5, {sp(sBA)} offset:1024 sc1")
    a("v_max3_f32 v8, v72, v74, v76")
    a("v_max_f32 v8, v8, v78")
    for s in range(4):
        a(f"v_sub_f32 v{72 + 2 * s}, v{72 + 2 * s}, v8")
    for s in range(4):
        a(f"v_exp_f32 v{72 + 2 * s}, v{72 + 2 * s}")
    a("v_mul_f32 v9, v72, v73")
    for s in range(1, 4):
        a(f"v_fmac_f32 v9, v{72 + 2 * s}, v{73 + 2 * s}")
    a("v_rcp_f32 v9, v9")
    for s in range(4):
        a(f"v_mul_f32 v{80 + s}, v{72 + 2 * s}, v9")
    stamp(8)
    a(f"s_mov_b32 s{sCNT}, {OPT['limit']}")
    a("s_branch L_WO2")
    a.label("L_WO1")
    a(f"global_load_dwordx4 v[64:67], v5, {sp(sBA)} sc1")
    a(f"global_load_dwordx4 v[68:71], v5, {sp(sBA)} offset:1024 sc1")
    a.label("L_WO2")
    poll_mid()
    interleave([mfma(16 + 4 * c, 64, 32 + 4 * c) for c in range(3)], sentinel_ops(range(64, 72), 8), 2)
    poll_end("L_WO1")
    a(mfma(28, 64, 44))
    for c in range(4):
        a(mfma(16 + 4 * c, 68, 48 + 4 * c, 16 + 4 * c))
    for ch in range(2):
        for c in (2 * ch, 2 * ch + 1):
            a(f"v_pk_mul_f32 v[{16 + 4 * c}:{17 + 4 * c}], v[{16 + 4 * c}:{17 + 4 * c}], v[80:81]")
            a(f"v_pk_fma_f32 v[{16 + 4 * c}:{17 + 4 * c}], v[{18 + 4 * c}:{19 + 4 * c}], v[82:83], v[{16 + 4 * c}:{17 + 4 * c}]")
        a(f"v_add_f32 v{84 + 2 * ch}, v{16 + 8 * ch}, v{17 + 8 * ch}")
        a(f"v_add_f32 v{85 + 2 * ch}, v{20 + 8 * ch}, v{21 + 8 * ch}")
        a(f"ds_write_b64 v12, v[{84 + 2 * ch}:{85 + 2 * ch}] offset:{128 * ch}")
    a("s_waitcnt lgkmcnt(0)")
    stamp(9)
    a("s_barrier                      ; 3")
    a(f"s_cmp_ge_u32 s{sWAVE}, 2")
    a("s_cbranch_scc1 L_fin")
    tile64_sum()
    a("s_waitcnt lgkmcnt(0)")
    sum8_b64(16)
    a("v_cvt_pk_bf16_f32 v8, v16, v17")
    a(f"global_store_dword v13, v8, {sp(sBB)} sc1")
    stamp(10)
    a.label("L_fin")
    finish_wave()


def sec_down():
    CLS[0] = 0
    a.label("L_HB")
    a("s_barrier")
    a(f"s_bfe_u32 s{sT2}, s{sM}, 0x20001")
    rest = 64 - 4 * OPT["woa"]
    if not OPT["woq"] and rest:
        wo_pf(4 * OPT["woa"], rest // 4)
    if OPT["gua"] < 4:
        a(f"s_sub_u32 s{sT2}, 3, s{sT2}")
        a(f"s_lshl3_add_u32 s{sT2}, s{sT2}, s{sWAVE}")
        a(f"s_cmp_ge_u32 s{sT2}, {16 * (4 - OPT['gua'])}")
        a("s_cbranch_scc1 L_HBu")
        a(f"s_cmp_lt_u32 s{sT2}, 16")
        a(f"s_cselect_b64 {sp(sBA)}, {sp(sWU)}, {sp(sWG)}")
        a(f"s_and_b32 s{sT0}, s{sT2}, 15")
        a(f"s_lshl2_add_u32 s{sT0}, s{sT0}, 2")
        a(f"s_mul_i32 s{sT0}, s{sT0}, {8 * 3584}")
        a(f"s_mul_i32 s{sT1}, s{sG}, 448")
        a(f"s_andn2_b32 s{sT1}, s{sT1}, 127")
        a(f"s_add_u32 s{sT0}, s{sT0}, s{sT1}")
        a("v_mul_u32_u24 v13, 3584, v1")
        a("v_lshl_add_u32 v13, v2, 7, v13")
        a(f"v_add_u32 v13, s{sT0}, v13")
        prefetch(13, sBA, True, 2 * 3584)
        a.label("L_HBu")
    if OPT["xml"]:
        pass
    if OPT["gate"]:
        a(f"s_lshl3_add_u32 s{sT0}, s{sM}, s{sWAVE}")
        a(f"s_cmp_lg_u32 s{sT0}, {9 * 8 + 7}")
        a("s_cbranch_scc1 L_fin")
        a(f"s_lshl_b32 s{sT0}, s{sG}, 9")
        base(sBA, sWS, sT0, H3ML)
        a(f"s_lshl_b32 s{sT0}, s{sG}, 7")
        base(sBB, sWS, sT0, GATE + 0x2000)
        a("v_lshlrev_b32 v5, 3, v0")
        a(f"s_movk_i32 s{sCNT}, 100")
        a.label("L_HBg")
        a(f"global_load_dword v6, v5, {sp(sBA)} sc1")
        poll_mid()
        a("v_cmp_eq_u32 vcc, -1, v6")
        poll_end("L_HBg")
        set_exec(1)
        a(f"global_store_dword v4, v4, {sp(sBB)} sc1")
    finish_wave()
    a.label("L_DOWN")
    a("s_setprio 0")
    a("s_barrier")
    a(f"s_lshr_b32 s{sT2}, s{sM}, 1")
    if OPT["vh"]:
        a(f"s_lshl3_add_u32 s{sT0}, s{sT2}, s{sG}")
        a(f"s_lshl_b32 s{sT0}, s{sT0}, 4")
        a(f"s_lshr_b32 s{sT4}, s{sWAVE}, 1")
        a(f"s_add_u32 s{sT0}, s{sT0}, s{sT4}")
        a(f"s_lshl_b32 s{sT0}, s{sT0}, 3")
        a(f"s_or_b32 s{sT4}, s{sWAVE}, 6")
        a(f"s_add_u32 s{sT0}, s{sT0}, s{sT4}")
        a(f"s_lshl_b32 s{sT0}, s{sT0}, 13")
        a(f"s_add_u32 s{sT0}, s{sT0}, {3072 * 256}")
        a(f"v_lshl_add_u32 v9, v0, 7, s{sT0}")
        prefetch(9, sV, delta=1024)
    wo_pf(0, OPT["woa"])
    if OPT["wdl"]:
        a(f"s_cmp_lg_u32 s{sWAVE}, 7")
        a("s_cbranch_scc1 L_DNw")
        cf_poll()
        a(f"s_lshl_b32 s{sT0}, s{sG}, 9")
        base(sBA, sWS, sT0, H3ML)
        a("v_lshlrev_b32 v5, 3, v0")
        a(f"s_movk_i32 s{sCNT}, 60")
        a.label("L_DNg")
        a(f"global_load_dword v6, v5, {sp(sBA)} sc1")
        poll_mid(sleep=2)
        a("v_cmp_ne_u32 vcc, -1, v6")
        a("s_cmp_eq_u64 vcc, 0")
        a("s_cselect_b64 vcc, -1, 0")
        poll_end("L_DNg")
        a.label("L_DNw")
        a("s_barrier")
    a(f"s_cmp_eq_u32 s{sWAVE}, 7")
    a("s_cbranch_scc1 L_DN7")
    a(f"s_lshl2_add_u32 s{sT0}, s{sWAVE}, s{sT2}")
    a(f"s_lshl_b32 s{sT0}, s{sT0}, 9")
    a(f"s_add_u32 s{sT0}, s{sT0}, s{sG}")
    a(f"s_lshl_b32 s{sT0}, s{sT0}, 7")
    a(f"v_lshl_add_u32 v8, v0, 10, s{sT0}")
    a("s_waitcnt vmcnt(0)")
    prefetch(8, sWD, delta=8192)
    a("s_waitcnt vmcnt(0)")
    down_loads()
    a(f"s_lshl_b32 s{sT0}, s{sWAVE}, 11")
    base(sBA, sWS, sT0, ACT)
    a("v_lshlrev_b32 v5, 4, v0")
    a("v_lshlrev_b32 v6, 7, v3")
    a("v_lshl_add_u32 v6, v2, 4, v6")
    a(f"v_lshl_add_u32 v6, s{sWAVE}, 9, v6")
    a("s_waitcnt vmcnt(0)")
    a("s_barrier")
    for f in range(2):
        for e in range(4):
            for x in range(4):
                a(f"v_perm_b32 v{48 + 16 * f + 4 * e + x}, v{WD + 16 * f + 2 * (2 * x + 1) + (e >> 1)}, "
                  f"v{WD + 16 * f + 2 * (2 * x) + (e >> 1)}, s{sHI if e & 1 else sLO}")
    stamp(11)
    a("s_barrier")
    lab = poll_begin()
    a(f"global_load_dwordx4 v[8:11], v5, {sp(sBA)} sc1")
    a(f"global_load_dwordx4 v[12:15], v5, {sp(sBA)} offset:1024 sc1")
    poll_mid()
    interleave([mfma(16 + 4 * e, 8, 48 + 4 * e) for e in range(3)], sentinel_ops(range(8, 16), 7), 2)
    poll_end(lab)
    stamp(5)
    if OPT["stamps"] == 1:
        a(f"v_writelane_b32 v126, s{sCNT}, 6")
    a(mfma(28, 8, 60))
    for e in range(4):
        a(mfma(16 + 4 * e, 12, 64 + 4 * e, 16 + 4 * e))
    for e in range(4):
        for b0 in range(2):
            a(f"v_add_f32_dpp v{32 + 4 * b0 + e}, v{16 + 4 * e + 2 * b0 + 1}, v{16 + 4 * e + 2 * b0} row_shl:4 {DPPM}")
    set_exec(0x0F000F00000F000F)
    a("ds_write_b128 v6, v[32:35] offset:10240")
    a("ds_write_b128 v6, v[36:39] offset:10304")
    a("s_waitcnt lgkmcnt(0)")
    stamp(12)
    a("s_barrier                      ; 5")
    finish_wave()
    a.label("L_DN7")
    a("s_barrier                      ; 3")
    if not OPT["wdl"]:
        cf_poll()
    if not OPT["xgate"]:
        a("s_barrier                      ; 4")
    a(f"s_lshr_b32 s{sT1}, s{sM}, 1")
    a(f"s_lshl2_add_u32 s{sT2}, s{sG}, s{sT1}       ; col0/16")
    a(f"s_lshl_b32 s{sT0}, s{sG}, 9")
    a(f"s_and_b32 s{sT3}, s{sT1}, 1")
    a(f"s_lshl_b32 s{sT3}, s{sT3}, 5")
    a(f"s_add_u32 s{sT0}, s{sT0}, s{sT3}")
    a(f"s_and_b32 s{sT3}, s{sT1}, 2")
    a(f"s_lshl2_add_u32 s{sT0}, s{sT3}, s{sT0}")
    base(sBB, sWS, sT0, MODB + 3 * 4096)
    a(f"s_lshl_b32 s{sT3}, s{sG}, 9")
    a(f"s_add_u32 s{sT0}, s{sT0}, s{sT3}")
    base(sBA, sWS, sT0, X1)
    a("v_and_b32 v7, 4, v0")
    a("v_lshlrev_b32 v5, 6, v7")
    a("v_lshl_add_u32 v5, v3, 6, v5")
    a("v_and_b32 v7, 10, v0")
    a("v_lshl_add_u32 v5, v7, 1, v5")
    a("v_and_b32 v7, 0x1c0, v5")
    a("v_add_u32 v12, v7, v5")
    a(f"s_lshl_b32 s{sT0}, s{sT2}, 5")
    base(sBC, sOUT, sT0)
    a("v_and_b32 v7, 15, v0")
    a("v_lshlrev_b32 v11, 10, v3")
    a("v_lshl_add_u32 v11, v7, 1, v11")
    a("v_and_b32 v7, 1, v0")
    a("v_lshlrev_b32 v7, 4, v7")
    a("v_lshlrev_b32 v6, 2, v0")
    lab = poll_begin()
    a(f"global_load_dword v8, v12, {sp(sBA)} sc1")
    a(f"global_load_dword v9, v5, {sp(sBB)} sc1")
    poll_mid()
    for ins in sentinel_ops([8, 9], 10):
        a(ins)
    poll_end(lab)
    if OPT["xgate"]:
        if OPT["xgate"] > 1:
            a(f"s_sleep {OPT['xgate'] - 1}")
        a("s_barrier                      ; 4")
    a("v_lshrrev_b32 v8, v7, v8")
    a("v_lshrrev_b32 v9, v7, v9")
    a("v_lshlrev_b32 v8, 16, v8              ; x1")
    a("v_lshlrev_b32 v9, 16, v9              ; gb")
    stamp(9)
    a("s_barrier                      ; 5")
    for t in range(7):
        a(f"ds_read2st64_b32 v[{16 + 2 * t}:{17 + 2 * t}], v6 offset0:{40 + 2 * t} offset1:{41 + 2 * t}")
    a("s_waitcnt lgkmcnt(3)")
    a("v_pk_add_f32 v[16:17], v[16:17], v[18:19]")
    a("v_pk_add_f32 v[20:21], v[20:21], v[22:23]")
    a("v_pk_add_f32 v[16:17], v[16:17], v[20:21]")
    a("s_waitcnt lgkmcnt(0)")
    a("v_pk_add_f32 v[24:25], v[24:25], v[26:27]")
    a("v_pk_add_f32 v[16:17], v[16:17], v[28:29]")
    a("v_pk_add_f32 v[16:17], v[16:17], v[24:25]")
    a("v_add_f32 v16, v16, v17")
    a("v_fma_f32 v16, v9, v16, v8")
    a("v_cvt_pk_bf16_f32 v16, v16, v16")
    a(f"global_store_short v11, v16, {sp(sBC)}")
    stamp(13)
    a("s_cmp_lg_u32 s2, 8")
    a("s_cbranch_scc1 L_fin")
    a(f"v_mov_b32 v8, s{sTAG}")
    set_exec(1)
    a(f"global_store_dword v4, v8, {sp(sWS)} sc1")
    finish_wave()


def sec_att():
    a_regs(True)
    CLS[0] = 1
    a.label("L_A2")
    ids()
    if not OPT["vlate"]:
        stamp(1)
    a(f"s_lshl_b32 s{sT0}, s{sWAVE}, 13")
    a(f"s_add_u32 s{sT0}, s{sT0}, {LK}")
    a("v_and_b32 v8, 15, v0")
    a("v_lshlrev_b32 v9, 2, v3")
    a("v_xor_b32 v9, v9, v8")
    a(f"v_lshl_add_u32 v10, v3, 8, s{sT0}")
    for x in range(4):
        a(f"v_xor_b32 v11, {x}, v9")
        a(f"v_lshl_add_u32 v{104 + x}, v11, 4, v10")
    a("v_lshl_add_u32 v10, v2, 2, v5         ; key = 4*(m&3) + (m>>2)")
    a(f"v_lshl_add_u32 v10, v10, 8, s{sT0}")
    a("v_xor_b32 v9, v3, v8")
    for ks in range(4):
        a(f"v_xor_b32 v11, {4 * ks}, v9")
        a(f"v_lshl_add_u32 v{108 + ks}, v11, 4, v10")
    a("v_lshlrev_b32 v6, 8, v5")
    a("v_lshl_add_u32 v6, v3, 4, v6")
    a(f"s_mul_i32 s{sT0}, s{sWAVE}, 2560")
    a("v_mul_u32_u24 v7, 576, v5")
    a("v_lshl_add_u32 v7, v2, 6, v7")
    a("v_lshl_add_u32 v7, v3, 4, v7")
    a(f"v_add_u32 v7, s{sT0}, v7")
    a("v_lshlrev_b32 v5, 5, v5               ; h*32")
    a(f"v_lshl_add_u32 v120, s{sWAVE}, 2, v5     ; h*32 + wave*4")
    a(f"v_add_u32 v120, {LM}, v120")
    a("v_lshlrev_b32 v124, 4, v0")
    a("v_add_u32 v125, 0x1000, v124")
    a(f"s_lshl2_add_u32 s{sT0}, s{sG}, s{sWAVE}")
    a(f"s_lshl_b32 s{sT0}, s{sT0}, 8")
    a(f"s_add_u32 s{sT0}, s{sT0}, s{sM}")
    a(f"s_lshl_b32 s{sT0}, s{sT0}, 4")
    base(sBA, sWS, sT0, H3O)
    a("v_lshlrev_b32 v121, 8, v1")
    a("v_lshl_add_u32 v121, v2, 2, v121")
    a(f"s_mul_i32 s{sT0}, s{sWAVE}, 576")
    a(f"v_lshl_add_u32 v122, v0, 3, s{sT0}")
    a(f"s_and_b32 s{sT4}, s{sWAVE}, 3")
    a(f"s_lshl_b32 s{sT0}, s{sT4}, 8")
    base(sBB, sX, sT0)
    a(f"s_lshl_b32 s{sT0}, s{sT4}, 10")
    base(sBC, sWS, sT0, MODB + 4096)
    a("v_lshrrev_b32 v119, 1, v3")
    a("v_lshlrev_b32 v119, 7, v119")
    a("v_and_b32 v14, 1, v3")
    a("v_lshl_add_u32 v119, v14, 3, v119")
    a("v_lshl_add_u32 v119, v2, 4, v119")
    a("v_lshl_add_u32 v119, v5, 5, v119        ; x offset: b*1024 + (G>>1)*128 + c*16 + (G&1)*8")
    for y in range(4):
        a(f"v_cmp_ne_u32 s[{20 + 2 * y}:{21 + 2 * y}], {y}, v2")
    a("v_mov_b32 v123, 0")
    gu_addr()
    a("v_lshlrev_b32 v184, 2, v0")
    a(f"v_add_u32 v184, {LM}, v184")
    a("v_lshlrev_b32 v185, 4, v0")
    a(f"s_lshl_b32 s{sT0}, s{sG}, 6")
    a(f"s_add_u32 s{sT0}, s{sT0}, s{sM}")
    a(f"s_lshl_b32 s{sT0}, s{sT0}, 3")
    a(f"s_add_u32 s{sT0}, s{sT0}, {H3ML:#x}")
    a(f"v_add_u32 v185, s{sT0}, v185")
    if OPT["pfgl"]:
        a(f"s_and_b32 s{sT0}, s{sWAVE}, 2")
        a(f"s_lshl2_add_u32 s{sT0}, s{sM}, s{sT0}")
        a(f"s_mul_i32 s{sT0}, s{sT0}, {8 * 3584}")
        a(f"s_mul_i32 s{sT1}, s{sG}, 448")
        a(f"s_andn2_b32 s{sT1}, s{sT1}, 127")
        a(f"s_add_u32 s{sT0}, s{sT0}, s{sT1}")
        a("v_mul_u32_u24 v118, 3584, v1")
        a("v_lshl_add_u32 v118, v2, 7, v118")
        a(f"v_add_u32 v118, s{sT0}, v118")
    if OPT["vlate"]:
        for u in range(8):
            a(f"global_load_dwordx4 {vr(VR + 4 * u, 4)}, v124, s[34:35] offset:{1024 * u - 4096}{NT}")
        stamp(1)
    if OPT["kstage"]:
        a(f"s_cmp_lt_u32 s{sWAVE}, 4")
        a("s_cbranch_scc1 L_A2k")
        a("s_waitcnt vmcnt(0)")
        a.label("L_A2k")
    for u in range(8):
        a(f"s_waitcnt vmcnt({15 - u})")
        a(f"ds_write_b128 v{104 + (u & 3)}, {vr(KR + 4 * u, 4)} offset:{1024 * u}")
    a("s_waitcnt lgkmcnt(0)")
    for t in range(2):
        for ks in range(4):
            a(f"ds_read_b128 {vr(KR + 16 * t + 4 * ks, 4)}, v{108 + ks} offset:{4096 * t}")
    stamp(2)
    a(f"s_cmp_lt_u32 s{sWAVE}, 4")
    a("s_cbranch_scc1 L_A2b")
    if OPT["kstage"]:
        for u in range(8):
            a(f"global_load_dwordx4 {vr(VR + 4 * u, 4)}, v124, s[34:35] offset:{1024 * u - 4096}{NT}")
        stamp(1)
    if not OPT["xml"]:
        a(f"global_load_dwordx2 v[128:129], v119, {sp(sBB)}")
        a(f"global_load_dwordx2 v[130:131], v119, {sp(sBB)} offset:64")
    if OPT["pfgw"]:
        if OPT["gua"] < 4:
            a(f"s_cmp_ge_u32 s{sWAVE}, {4 + OPT['gua']}")
            a("s_cselect_b64 exec, 1, -1")
        a(f"s_bitcmp1_b32 s{sWAVE}, 0")
        a(f"s_cselect_b64 s[0:1], {sp(sWU)}, {sp(sWG)}")
        a(f"s_and_b32 s{sT0}, s{sWAVE}, 2")
        a(f"s_lshl2_add_u32 s{sT0}, s{sM}, s{sT0}")
        a(f"s_mul_i32 s{sT0}, s{sT0}, {8 * 3584}")
        a(f"s_mul_i32 s{sT1}, s{sG}, 448")
        a(f"s_andn2_b32 s{sT1}, s{sT1}, 127")
        a(f"s_add_u32 s{sT0}, s{sT0}, s{sT1}")
        a("v_mul_u32_u24 v13, 3584, v1")
        a("v_lshl_add_u32 v13, v2, 7, v13")
        a(f"v_add_u32 v13, s{sT0}, v13")
        prefetch(13, 0, True, 2 * 3584)
        set_exec(-1)
    if OPT["vfirst"]:
        ex = 2 + NPF * OPT["pfgw"]
        perms8(VR, VT, waits=[6 + ex, 4 + ex, 2 + ex, ex])
        stamp(7)
    a("s_branch L_A3")
    a.label("L_A2b")
    make_tag(12)
    if not OPT["kfirst"] or OPT["vfirst"]:
        perms8(VR, VT, waits=[6, 4, 2, 0])
    a("s_waitcnt lgkmcnt(0)")
    a(f"s_getreg_b32 s{sT0}, hwreg(HW_REG_XCC_ID, 0, 4)")
    a(f"s_xor_b32 s56, s{sTAG}, s{sT0}")
    a("s_mov_b32 s57, s56")
    a(f"s_lshl2_add_u32 s{sT0}, s{sG}, s{sWAVE}")
    a(f"s_mul_i32 s{sT0}, s{sT0}, {NREP * 128}")
    base(32, sWS, sT0, FL)
    a(f"s_lshr_b32 s{sT0}, s{sM}, 2")
    a(f"s_lshl2_add_u32 s{sT0}, s{sG}, s{sT0}")
    a(f"s_lshl2_add_u32 s{sT0}, s{sT0}, s{sWAVE}")
    a(f"s_lshl_b32 s{sT0}, s{sT0}, 8")
    base(0, sWS, sT0, QS)
    a("v_lshlrev_b32 v112, 2, v0")
    a(f"v_lshl_add_u32 v112, s{sWAVE}, 8, v112")
    a(f"v_lshlrev_b32_e64 v113, 2, s{sWAVE}")
    a("v_lshlrev_b32 v117, 4, v0")
    a(f"v_lshl_add_u32 v117, s{sWAVE}, 8, v117")
    a("s_setprio 2")
    a(f"s_mov_b32 s{sCNT}, 0")
    a.label("L_Aq")
    a(f"s_load_dwordx{2 if OPT['qfast'] == 1 else 4} s[48:{49 if OPT['qfast'] == 1 else 51}], s[32:33], s{sCNT}")
    a(f"s_add_u32 s{sCNT}, s{sCNT}, 128")
    a("s_waitcnt lgkmcnt(0)")
    a("s_xor_b64 s[48:49], s[48:49], s[56:57]")
    if OPT["qfast"] != 1:
        a("s_xor_b64 s[50:51], s[50:51], s[56:57]")
        a("s_or_b64 s[48:49], s[48:49], s[50:51]")
    a("s_cbranch_scc0 L_Aq_ok")
    if OPT["qsleep"]:
        a(f"s_sleep {OPT['qsleep']}")
    a(f"s_cmp_lt_u32 s{sCNT}, {NREP * 128}")
    a("s_cbranch_scc1 L_Aq")
    a.label("L_Aq_fb")
    set_exec(-1)
    a(f"s_getreg_b32 s{sT0}, hwreg(HW_REG_XCC_ID, 0, 4)")
    a(f"s_xor_b32 s56, s{sTAG}, s{sT0}")
    a(f"s_lshr_b32 s{sT0}, s{sM}, 2")
    a(f"s_lshl2_add_u32 s{sT0}, s{sG}, s{sT0}")
    a(f"s_lshl2_add_u32 s{sT0}, s{sT0}, s{sWAVE}")
    a(f"s_lshl_b32 s{sT0}, s{sT0}, 9")
    base(32, sWS, sT0, H2G)
    a("v_lshlrev_b32 v10, 3, v0")
    lab = poll_begin()
    a(f"global_load_dwordx2 v[8:9], v10, s[32:33] sc1")
    poll_mid()
    a("v_xor_b32 v9, s56, v9")
    a("v_cmp_lt_u32 vcc, 15, v9")
    poll_end(lab)
    a("v_cmp_ne_u32 vcc, 0, v9")
    a("s_cmp_lg_u64 vcc, 0")
    a(f"s_cselect_b32 s{sT0}, 2, 1")
    a(f"v_mov_b32 v9, s{sT0}")
    a(f"ds_write_b32 v112, v8 offset:{LQ}")
    if OPT["probe"] == 3:
        a("v_mov_b32 v210, 1")
    a("s_branch L_Aq_st")
    a.label("L_Aq_ok")
    for t in range(4):
        a(f"s_load_dwordx16 s[{sQ + 16 * t}:{sQ + 16 * t + 15}], s[0:1], {64 * t}")
    a("v_mov_b32 v9, 1")
    if OPT["stamps"] == 1:
        a("v_writelane_b32 v126, s100, m0")
        a("s_mov_b32 m0, 12")
        a("s_memrealtime s[100:101]")
    a("s_waitcnt lgkmcnt(0)")
    if OPT["stamps"] == 1:
        stamp(13)
    if OPT["qmv"] == 0:
        for i in range(64):
            a(f"v_writelane_b32 v{80 + (i & 3)}, s{sQ + i}, {i >> 2}")
        set_exec(0xFFFF)
        a(f"ds_write_b128 v117, v[80:83] offset:{LQ}")
        if OPT["qfast"]:
            for ins in sentinel_ops(range(80, 84), 10):
                a(ins)
            a("s_cbranch_vccnz L_Aq_fb")
    else:
        set_exec(1)
        for i in range(16):
            a(f"v_mov_b64 v[{48 + 4 * i}:{49 + 4 * i}], s[{sQ + 4 * i}:{sQ + 4 * i + 1}]")
            a(f"v_mov_b64 v[{50 + 4 * i}:{51 + 4 * i}], s[{sQ + 4 * i + 2}:{sQ + 4 * i + 3}]")
            a(f"ds_write_b128 v112, {vr(48 + 4 * i, 4)} offset:{LQ + 16 * i}")
    set_exec(-1)
    a.label("L_Aq_st")
    a(f"ds_write_b32 v113, v9 offset:{LQF}")
    a("s_setprio 0")
    a.label("L_A3")
    a(f"s_mov_b32 s{sT0}, {LOG2E:#x}")
    a("s_waitcnt lgkmcnt(0)")
    a("s_barrier")
    for ks in range(4):
        a(f"ds_read_b128 {vr(88 + 4 * ks, 4)}, v6 offset:{LQ + 64 * ks}")
    a(f"ds_read_b128 v[12:15], v4 offset:{LQF}")
    if OPT["stamps"] == 1:
        a("v_writelane_b32 v126, s100, m0")
        a("s_mov_b32 m0, 3")
        a("s_memrealtime s[100:101]")
    loc = ["v_or3_b32 v12, v12, v13, v14", "v_or_b32 v12, v12, v15", "v_lshrrev_b32 v12, 1, v12", "s_nop 0",
           f"v_readfirstlane_b32 s{sLOCAL}, v12"]
    for ks in range(4):
        a(f"s_waitcnt lgkmcnt({0 if OPT['stamps'] == 1 or ks == 3 else 4 - ks})")
        for t in range(2):
            a(mfma(80 + 4 * t, KR + 16 * t + 4 * ks, 88 + 4 * ks, None if ks == 0 else 80 + 4 * t))
    for ins in loc:
        a(ins)
    if OPT["pfgl"] == 2:
        a(f"s_cmp_ge_u32 s{sWAVE}, 4")
        a("s_cbranch_scc1 L_A4")
        a(f"s_bitcmp1_b32 s{sWAVE}, 0")
        a(f"s_cselect_b64 s[0:1], {sp(sWU)}, {sp(sWG)}")
        prefetch(118, 0, True, 2 * 3584)
        a.label("L_A4")
    a("v_max3_f32 v12, v80, v81, v82")
    a("v_cndmask_b32 v112, v82, v80, s[22:23]")
    a("v_max3_f32 v13, v83, v84, v85")
    a("v_cndmask_b32 v113, v83, v81, s[22:23]")
    a("v_max3_f32 v12, v12, v86, v87")
    a("v_cndmask_b32 v112, v84, v112, s[24:25]")
    a("v_max_f32 v12, v12, v13")
    a("v_mov_b32 v13, v12")
    a("v_cndmask_b32 v113, v85, v113, s[24:25]")
    a("v_cndmask_b32 v112, v86, v112, s[26:27]")
    a("v_permlane16_swap_b32 v13, v12")
    a("v_cndmask_b32 v113, v87, v113, s[26:27]")
    a("v_max_f32 v12, v12, v13")
    a("v_mov_b32 v13, v12")
    a("v_cvt_pk_bf16_f32 v113, v112, v113")
    a("v_lshlrev_b32 v112, 16, v113")
    a("v_permlane32_swap_b32 v13, v12")
    a("v_and_b32 v113, 0xffff0000, v113")
    a("v_max_f32 v12, v12, v13")
    a(f"v_mul_f32 v112, {SCALE:#x}, v112")
    a("v_cvt_pk_bf16_f32 v12, v123, v12")
    a(f"v_mul_f32 v113, {SCALE:#x}, v113")
    a(f"v_mul_f32 v12, {SCALE:#x}, v12")
    a("v_cvt_pk_bf16_f32 v113, v112, v113")
    a("v_cvt_pk_bf16_f32 v12, v123, v12")
    a("v_lshlrev_b32 v112, 16, v113")
    a(f"v_mul_f32 v12, {LOG2E:#x}, v12")
    a("v_and_b32 v113, 0xffff0000, v113")
    a(f"v_fma_f32 v112, v112, s{sT0}, -v12")
    a(f"v_fma_f32 v113, v113, s{sT0}, -v12")
    a("v_exp_f32 v112, v112")
    a("v_exp_f32 v113, v113")
    a("s_mov_b64 vcc, s[20:21]")
    a("v_add_f32 v13, v112, v113")
    a("v_cvt_pk_bf16_f32 v8, v112, v113")
    PY = 88
    red = [f"v_add_f32_dpp v13, v13, v13 quad_perm:[1,0,3,2] {DPPM}",
           f"v_add_f32_dpp v13, v13, v13 quad_perm:[2,3,0,1] {DPPM}",
           "v_mov_b32 v14, v13", "v_permlane16_swap_b32 v14, v13", "v_add_f32 v13, v13, v14",
           "v_mov_b32 v14, v13", "v_permlane32_swap_b32 v14, v13", "v_add_f32 v13, v13, v14"]
    for y in range(4):
        if y:
            a(f"s_mov_b64 vcc, s[{20 + 2 * y}:{21 + 2 * y}]")
        for x in range(4):
            if x % 2 == 0:
                a(red[2 * y + x // 2])
            a(f"v_cndmask_b32_dpp v{PY + 4 * y + x}, v8, v123, vcc quad_perm:[{x},{x},{x},{x}] {DPPM}")
    set_exec(0x1111)
    a(f"ds_write2_b32 v120, v12, v13 offset0:0 offset1:32")
    set_exec(-1)
    a("s_waitcnt lgkmcnt(0)")
    a("s_barrier")
    stamp(4)
    a(f"ds_read_b128 v[104:107], v5 offset:{LM}")
    a(f"ds_read_b128 v[108:111], v5 offset:{LM + 16}")
    if OPT["mls2"]:
        a("ds_read2_b32 v[186:187], v184 offset0:0 offset1:32")
    a(f"s_cmp_lt_u32 s{sWAVE}, 4")
    if OPT["kfirst"] and not OPT["vfirst"]:
        a("s_cbranch_scc0 L_A5")
        a(f"s_waitcnt vmcnt({NPF if OPT['pfgl'] == 2 else 0})")
        if OPT["pfgl"] == 3:
            a(f"s_bitcmp1_b32 s{sWAVE}, 0")
            a(f"s_cselect_b64 s[0:1], {sp(sWU)}, {sp(sWG)}")
            prefetch(118, 0, True, 2 * 3584)

        a("s_branch L_A5b")
        a.label("L_A5")
    else:
        a("s_cbranch_scc1 L_A6")
    if not OPT["xml"]:
        modb_loads()
    for half in range(OPT["gue"]):
        gu_loads(half)
    a.label("L_A5b")
    ex = (0 if OPT["xml"] else 5) + NPF * OPT["pfgw"] + 4 * OPT["gue"]
    if not OPT["vfirst"]:
        perms8(VR, VT, waits=[6 + ex, 4 + ex, 2 + ex, ex])
        stamp(7)
    a.label("L_A6")
    fac = ["s_waitcnt lgkmcnt(0)", "v_max3_f32 v14, v104, v105, v106", "v_max3_f32 v15, v107, v108, v109",
           "v_max3_f32 v14, v14, v110, v111", "v_max_f32 v14, v14, v15", "v_sub_f32 v10, v12, v14", "v_exp_f32 v10, v10"]
    pvm = [mfma(OA + 4 * (e >> 2), VT + 4 * e, PY + 4 * (e & 3), None if (e & 3) == 0 else OA + 4 * (e >> 2)) for e in range(8)]
    if OPT["mls2"]:
        ml = [f"v_max_f32_dpp v188, v186, v186 quad_perm:[1,0,3,2] {DPPM}",
              f"v_max_f32_dpp v188, v188, v188 quad_perm:[2,3,0,1] {DPPM}",
              f"v_max_f32_dpp v188, v188, v188 row_half_mirror {DPPM}",
              "v_sub_f32 v186, v186, v188", "v_exp_f32 v186, v186", "v_mul_f32 v189, v186, v187",
              f"v_add_f32_dpp v189, v189, v189 quad_perm:[1,0,3,2] {DPPM}"]
        both = [fac[0], "s_nop 0"]
        for x, y in zip(fac[1:] + [None], ml):
            both += [y] + ([x] if x else [])
        interleave(pvm, both, 2)
    else:
        interleave(pvm, fac, 1)
    for i in range(2):
        a(f"v_pk_mul_f32 v[{OA + 2 * i}:{OA + 2 * i + 1}], v[{OA + 2 * i}:{OA + 2 * i + 1}], v[10:11] op_sel_hi:[1,0]")
    if OPT["mls2"]:
        a(f"v_add_f32_dpp v189, v189, v189 quad_perm:[2,3,0,1] {DPPM}")
    a(f"ds_write_b128 v7, {vr(OA, 4)}")
    if OPT["mls2"]:
        a(f"s_cmp_eq_u32 s{sWAVE}, 0")
        a(f"v_add_f32_dpp v189, v189, v189 row_half_mirror {DPPM}")
    for i in range(2, 4):
        a(f"v_pk_mul_f32 v[{OA + 2 * i}:{OA + 2 * i + 1}], v[{OA + 2 * i}:{OA + 2 * i + 1}], v[10:11] op_sel_hi:[1,0]")
    a(f"ds_write_b128 v7, {vr(OA + 4, 4)} offset:256")
    if not OPT["mll"]:
        a(f"s_cmp_eq_u32 s{sWAVE}, 0")
        a("s_cbranch_scc1 L_A7")
    a.label("L_A8")
    a("s_waitcnt lgkmcnt(0)")
    stamp(5)
    a("s_barrier                      ; 2")
    a(f"s_cmp_ge_u32 s{sWAVE}, 4")
    a("s_cbranch_scc1 L_A9" if OPT["mll"] else "s_cbranch_scc1 L_FF")
    for t in range(4):
        a(f"ds_read2st64_b64 {vr(16 + 4 * t, 4)}, v122 offset0:{10 * t} offset1:{10 * t + 5}")
    a(f"s_cmp_lg_u32 s{sLOCAL}, 0")
    a("s_waitcnt lgkmcnt(0)")
    sum8_b64(16)
    a("v_cvt_pk_bf16_f32 v10, v16, v17")
    a("s_cbranch_scc1 L_A_pubg")
    a(f"global_store_dword v121, v10, {sp(sBA)}")
    a.label("L_A_pubd")
    if OPT["pfgl"] == 1:
        a(f"s_bitcmp1_b32 s{sWAVE}, 0")
        a(f"s_cselect_b64 s[0:1], {sp(sWU)}, {sp(sWG)}")
        prefetch(118, 0, True, 2 * 3584)
    stamp(6)
    if OPT["pfgl"] == 4:
        a("s_setprio 3")
    a("s_barrier                      ; 2b")
    if OPT["pfgl"] == 4:
        a(f"s_bitcmp1_b32 s{sWAVE}, 0")
        a(f"s_cselect_b64 s[0:1], {sp(sWU)}, {sp(sWG)}")
        prefetch(118, 0, True, 2 * 3584)

    a("s_branch L_FF0")
    a.label("L_A_pubg")
    a(f"global_store_dword v121, v10, {sp(sBA)} sc1")
    a("s_branch L_A_pubd")
    a.label("L_A9")
    a(f"s_cmp_lg_u32 s{sWAVE}, 5")
    a("s_cbranch_scc1 L_FF")
    a.label("L_A7")
    if OPT["mls2"]:
        set_exec(0x01010101)
        a(f"s_cmp_lg_u32 s{sLOCAL}, 0")
        a("s_cbranch_scc1 L_A_mlg")
        a(f"global_store_dwordx2 v185, v[188:189], {sp(sWS)}")
    else:
        a(f"ds_read_b128 v[16:19], v5 offset:{LL}")
        a(f"ds_read_b128 v[20:23], v5 offset:{LL + 16}")
        for i in range(8):
            a(f"v_sub_f32 v{104 + i}, v{104 + i}, v14")
        for i in range(8):
            a(f"v_exp_f32 v{104 + i}, v{104 + i}")
        a(f"s_lshl_b32 s{sT0}, s{sG}, 6")
        a(f"s_add_u32 s{sT0}, s{sT0}, s{sM}")
        a(f"s_lshl_b32 s{sT0}, s{sT0}, 3")
        base(sBB, sWS, sT0, H3ML)
        a("v_lshlrev_b32 v13, 2, v5              ; h*128")
        a("s_waitcnt lgkmcnt(0)")
        a("v_pk_mul_f32 v[16:17], v[16:17], v[104:105]")
        for i in range(1, 4):
            a(f"v_pk_fma_f32 v[16:17], v[{16 + 2 * i}:{17 + 2 * i}], v[{104 + 2 * i}:{105 + 2 * i}], v[16:17]")
        a("v_add_f32 v15, v16, v17")
        set_exec(0x1111)
        a(f"s_cmp_lg_u32 s{sLOCAL}, 0")
        a("s_cbranch_scc1 L_A_mlg")
        a(f"global_store_dwordx2 v13, v[14:15], {sp(sBB)}")
    a.label("L_A_mld")
    set_exec(-1)
    a("s_branch L_FF" if OPT["mll"] else "s_branch L_A8")
    a.label("L_A_mlg")
    if OPT["mls2"]:
        a(f"global_store_dwordx2 v185, v[188:189], {sp(sWS)} sc1")
    else:
        a(f"global_store_dwordx2 v13, v[14:15], {sp(sBB)} sc1")
    a("s_branch L_A_mld")


def sec_dump():
    a_regs(False)
    if OPT["probe"]:
        a.label("L_dump")
        a("s_mov_b64 exec, 1")
        a(f"s_lshl3_add_u32 s{sT0}, s2, s{sWAVE}")
        a(f"s_lshl_b32 s{sT0}, s{sT0}, 4")
        base(sBA, sWS, sT0, STAMP)
        a("v_mov_b32 v4, 0")
        a(f"global_store_dwordx4 v4, v[208:211], {sp(sBA)} sc1")
        if OPT["wb"]:
            a("s_waitcnt vmcnt(0)")
            a("buffer_wbl2 sc1")
            a("s_waitcnt vmcnt(0)")
        a("s_cmp_lg_u32 s2, 8")
        a("s_cbranch_scc1 L_exit")
        a(f"s_cmp_lg_u32 s{sWAVE}, 7")
        a("s_cbranch_scc1 L_exit")
        a("s_mov_b64 exec, -1")
        a("s_memrealtime s[60:61]")
        a("s_sleep 100")
        a("s_waitcnt vmcnt(0) lgkmcnt(0)")
        base(sBA, sWS, None, STAMP)
        a("v_lshlrev_b32 v4, 4, v0")
        for i in range(32):
            a(f"global_load_dwordx4 {vr(16 + 4 * i, 4)}, v4, {sp(sBA)} sc1")
            a("v_add_u32 v4, 0x400, v4")
        a("s_waitcnt vmcnt(0)")
        a("v_mov_b32 v8, v16")
        a("v_mov_b32 v9, 0")
        for i in range(1, 32):
            a(f"v_max_u32 v8, v8, v{16 + 4 * i}")
            a(f"v_min_u32 v16, v16, v{16 + 4 * i}")
            a(f"v_max_u32 v17, v17, v{17 + 4 * i}")
            a(f"v_add_u32 v18, v18, v{18 + 4 * i}")
            a(f"v_cmp_ne_u32 vcc, v19, v{19 + 4 * i}")
            a(f"v_addc_co_u32 v9, vcc, 0, v9, vcc")
        for op, r in (("v_max_u32", 8), ("v_min_u32", 16), ("v_max_u32", 17), ("v_add_u32", 18), ("v_add_u32", 9)):
            for n in (8, 4, 2, 1):
                a(f"{op}_dpp v{r}, v{r}, v{r} row_ror:{n} {DPPM}")
            cross_rows(op, r, 10)
        a("v_readfirstlane_b32 s50, v8")
        a("v_readfirstlane_b32 s51, v16")
        a("v_readfirstlane_b32 s53, v17")
        a("v_readfirstlane_b32 s52, v18")
        a("v_readfirstlane_b32 s56, v9")
        a("s_nop 3")
        p = OPT["probe"]
        if p == 1:
            a("s_sub_u32 s54, s50, s51")
        elif p == 2:
            a("s_sub_u32 s54, s60, s51")
        elif p == 3:
            a("s_mul_i32 s54, s52, 1")
        elif p == 4:
            a("s_lshr_b32 s54, s56, 1")
        elif p >= 100:
            a("s_sub_u32 s54, s53, s51")
        else:
            a("s_mov_b32 s54, 0")
        a("s_min_u32 s54, s54, 5000")
        a("s_lshl_b32 s54, s54, 2")
        a("s_add_u32 s54, s54, 3000")
        a.label("L_spin")
        a("s_memrealtime s[62:63]")
        a("s_waitcnt lgkmcnt(0)")
        a("s_sub_u32 s55, s62, s51")
        a("s_cmp_lt_u32 s55, s54")
        a("s_cbranch_scc1 L_spin")
    if OPT["stamps"]:
        a.label("L_dump")
        a("s_mov_b64 exec, -1")
        stamp(15)
        stamp(16)
        a(f"s_getreg_b32 s{sT0}, hwreg(HW_REG_XCC_ID)")
        a(f"v_writelane_b32 v126, s{sT0}, 14")
        a(f"s_lshl3_add_u32 s{sT0}, s2, s{sWAVE}")
        a(f"s_lshl_b32 s{sT0}, s{sT0}, 6")
        base(sBA, sWS, sT0, STAMP)
        a("v_lshlrev_b32 v4, 2, v0")
        set_exec(0xFFFF)
        a(f"global_store_dword v4, v126, {sp(sBA)}")
    a.label("L_exit")
    a("s_endpgm")


a(".p2align 12")
a.label("L_code0")
sec_wo()
sec_ln()
a(".p2align 8")
a(f".fill (4096-768-(.-L_code0))/4, 4, 0xbf810000")
a(f".type {NAME}_kernel,@function")
sec_entry()
sec_gm()
sec_gq()
sec_gb()
sec_down()
a(".p2align 12")
sec_att()
a(".p2align 12")
sec_ffn()
sec_dump()

body = a.finish()
hdr = open("cdna_kernels/" + NAME + ".s.ref").read().split("; Override launch geometry")[0]
out = hdr + f"""; Generated by a hand-written generator script; one persistent launch of 256 workgroups.
; @launch grid=(256,1,1) block=(512,1,1) lds={OPT['lds']}
.amdgcn_target "amdgcn-amd-amdhsa--gfx950"
.text
.globl {NAME}_kernel
{body}.section .rodata,"a"
.p2align 6
.amdhsa_kernel {NAME}_kernel
  .amdhsa_next_free_vgpr {OPT['vgpr']}
  .amdhsa_next_free_sgpr 102
  .amdhsa_accum_offset {OPT['vgpr']}
  .amdhsa_group_segment_fixed_size 0
  .amdhsa_kernarg_size 112
  .amdhsa_user_sgpr_count 2
  .amdhsa_user_sgpr_kernarg_segment_ptr 1
  .amdhsa_system_sgpr_workgroup_id_x 1
  .amdhsa_float_denorm_mode_32 3
.end_amdhsa_kernel
"""
open(sys.argv[1], "w").write(out)
```

```python
import sys
from asmlib import Asm

NAME = "adaLN_cond__sliding_block_cached__swiglu_ffn__decode"
OPT = dict(stamps=0, lds=94208, nt=1, limit=20000, pf=1, pfa=1, pfg=1, athr=8, nrep=64, qsleep=0, vgpr=208, psleep=0, ahelp=1, bhelp=0, wowait=0, pfpol=1, wpol=0, wopf=0, epair=1, wb=0, qmv=0, hpull=0, kfirst=1, cpf1=1, vfirst=0, mlm=0, woe=0, h4e=0, stag=3, pfgl=0, h4d=0, mls=0, touch=1, plan=3, bcoop=2, pf2=0, late=0, woa=14, woq=1, xgate=1, gub=0, gate=3, gatew=0, adap=0, qfast=0, h1m=0, kstage=0, wdl=1, vh=0, gue=0, mls2=1, vlate=1, b3=0, mll=1, gua=3, xml=0, q3=2, epe=1, outp=0, prog=1, wbl=0, wod=0, wo3=2, guh=0, pfb=0, nq=6, nb=0, na=1, warm=1, hp2=0, gbe=0, guq=0, wdh=2, wob=0, gsh=1, ftb=0, afirst=1, pfq=1, pfw=1, qbar=0, abar=1, nm=0, split=0, gskip=0, ge=0, clra=0, qtb=1, h4b=0, actb=0, pfaw=0, pfgw=1, probe=0, pcls=0)
for arg in sys.argv[2:]:
    k, v = arg.split("=")
    assert k in OPT, k
    OPT[k] = int(v, 0)
if OPT["probe"]:
    OPT["vgpr"] = 216
if OPT["pfb"]:
    assert OPT["xml"] and not OPT["gue"] and OPT["pfgw"] and not OPT["pf2"] and not OPT["vfirst"]
NT = " nt" if OPT["nt"] else ""
NREP = OPT["nrep"]
NTW = " nt" if OPT["wpol"] else ""

H1 = 0xC000 if OPT['split'] else 0x1000
CF = 0x3000
H2G = 0x10000
FL = 0x20000
assert FL + 32 * NREP * 128 <= 0x60000
CLR = 0x60000
MODB = CLR
H4 = MODB + 0x4000
ACT = H4 + 0x8000
X1 = ACT + 0x4000
H4B = X1 + 0x2000
QS = 0x4000
assert not OPT["qfast"]
H3ML = H4B + 0x8000
H3O = H3ML + 0x1000
GATE = H3O + 0x20000 - 0x2000
ACTB = GATE + 0x2400
CLR_END = ACTB + 0x3800
CLR_PER_WG = 8
assert CLR_END - CLR <= 32 * CLR_PER_WG * 1024
STAMP = 0x100000

LO = 0
LQ = 20480
LQF = LQ + 1024
LM = LQF + 64
LL = LM + 128
LY = 22016
LU = LY + 2048
LV = LU + 2048
LST = LV + 2048
LGT = LST + 128
LK = 28672

sX, sK, sV, sWQ, sWO, sWG, sWU = 4, 6, 8, 10, 12, 16, 18
sWD, sC, sWM, sOUT, sDBG, sWS = 20, 22, 24, 26, 28, 30
sG, sM, sWAVE, sTAG = 14, 15, 3, 28
sLO, sHI, sCNT, sT0 = 96, 97, 98, 99
sBA, sBB, sBC = 32, 34, 36
sMK = 38
sT1, sT2, sT3, sT4 = 40, 41, 42, 43
sLOCAL, sKIND = 29, 44
sPC = 46
sSTAMP = 48 if False else 64
sQ = 32

LOG2E = 0x3FB8AA3B
SCALE = 0x3DB504F3
INV512 = 0x3B000000
EPS = 0x3727C5AC


def sp(r):
    return f"s[{r}:{r + 1}]"


def vr(a, n):
    return f"v[{a}:{a + n - 1}]" if n > 1 else f"v{a}"


a = Asm()
_uid = [0]


def uid(p):
    _uid[0] += 1
    return f"L_{p}{_uid[0]}"


CLS = [0]


def stamp(i):
    if OPT["probe"] == 100 + i and OPT["pcls"] == CLS[0]:
        a("s_memrealtime s[100:101]")
        a("s_waitcnt lgkmcnt(0)")
        a("v_writelane_b32 v209, s100, 0")
    if OPT["stamps"] == 1 or (OPT["stamps"] and i >= 13):
        a("s_waitcnt lgkmcnt(0)")
        a("v_writelane_b32 v126, s100, m0")
        a(f"s_mov_b32 m0, {i}")
        a("s_memrealtime s[100:101]")


def finish_wave():
    a("s_branch L_dump" if OPT["stamps"] or OPT["probe"] else "s_endpgm")


def base(dst, ptr, off_s=None, off_imm=0):
    if off_s is not None and off_imm:
        a(f"s_add_u32 s{dst}, s{off_s}, {off_imm:#x}")
        a(f"s_add_u32 s{dst}, s{ptr}, s{dst}")
    elif off_s is not None:
        a(f"s_add_u32 s{dst}, s{ptr}, s{off_s}")
    else:
        a(f"s_add_u32 s{dst}, s{ptr}, {off_imm:#x}")
    a(f"s_addc_u32 s{dst + 1}, s{ptr + 1}, 0")


def set_exec(mask):
    if mask in (-1, 1):
        a(f"s_mov_b64 exec, {mask}")
    else:
        lo, hi = mask & 0xFFFFFFFF, mask >> 32
        a(f"s_mov_b32 exec_lo, {lo:#x}")
        a(f"s_mov_b32 exec_hi, {hi:#x}")


def prefetch(v, b, late=False, delta=None):
    pol = "" if OPT["pfpol"] == 1 else " nt"
    if OPT["hp2"] and CLS[0] in (0, 2) and HELP[0]:
        a("v_lshlrev_b32 v114, 1, v0")
        a("v_and_b32 v114, 0x7c, v114")
        a(f"ds_bpermute_b32 v115, v114, v{v}")
        a(f"ds_bpermute_b32 v116, v114, v{v} offset:128")
        a("v_and_b32 v114, 1, v0")
        a("s_waitcnt lgkmcnt(0)")
        a("v_lshl_add_u32 v115, v114, 6, v115")
        a("v_lshl_add_u32 v116, v114, 6, v116")
        if OPT["hp2"] == 2:
            a(f"global_load_dword v127, v115, {sp(b)} nt")
            a(f"global_load_dword v127, v116, {sp(b)} nt")
            a(f"global_load_dword v127, v{v}, {sp(b)} sc1")
        else:
            a(f"global_load_dword v127, v115, {sp(b)}{pol}")
            a(f"global_load_dword v127, v116, {sp(b)}{pol}")
    elif OPT["pf2"] == 2:
        a("v_lshrrev_b32 v114, 1, v0")
        a("v_and_b32 v114, 28, v114")
        a(f"ds_bpermute_b32 v115, v114, v{v}")
        a("v_and_b32 v114, 7, v0")
        a("s_waitcnt lgkmcnt(0)")
        a("v_lshl_add_u32 v115, v114, 4, v115")
        for k in range(8):
            a(f"global_load_dwordx4 v[204:207], v115, {sp(b)}{pol}")
            if k < 7:
                a(f"v_add_u32 v115, {delta:#x}, v115")
    elif OPT["pf2"]:
        a("v_lshlrev_b32 v114, 6, v0")
        a("v_and_b32 v114, 64, v114")
        a(f"v_add_u32_dpp v115, v{v}, v114 quad_perm:[0,0,2,2] row_mask:0xf bank_mask:0xf")
        a(f"v_add_u32_dpp v116, v{v}, v114 quad_perm:[1,1,3,3] row_mask:0xf bank_mask:0xf")
        if PFWAIT[0]:
            a("s_waitcnt lgkmcnt(0)")
        a(f"global_load_dword v127, v115, {sp(b)}{pol}")
        a(f"global_load_dword v127, v116, {sp(b)}{pol}")
    else:
        if PFWAIT[0]:
            a("s_waitcnt lgkmcnt(0)")
        a(f"global_load_dword v127, v{v}, {sp(b)}{pol}")
    PFWAIT[0] = False


PFWAIT = [False]
HELP = [False]
NPF = (1, 2, 8)[OPT["pf2"]]


def stub(name, over=False):
    if not OPT["warm"]:
        return
    if over:
        a(f"s_branch {name}o")
    a.label(name)
    a("s_setpc_b64 s[58:59]")
    if over:
        a.label(f"{name}o")


def warm(calls):
    if not OPT["warm"]:
        return
    if OPT["stamps"] or OPT["probe"]:
        a("s_waitcnt lgkmcnt(0)")
    for w, names in calls.items():
        lab = uid("wm")
        a(f"s_cmp_lg_u32 s{sWAVE}, {w}")
        a(f"s_cbranch_scc1 {lab}")
        for n in names:
            a(f"s_call_b64 s[58:59], {n}")
        a.label(lab)


def sels():
    a(f"s_mov_b32 s{sLO}, 0x05040100")
    a(f"s_mov_b32 s{sHI}, 0x07060302")


def perms8(W, F, waits=None, hook=None):
    for x in range(4):
        if hook and x == hook[0]:
            a(hook[1])
        if waits is not None and waits[x] == "pf":
            a("s_cbranch_scc1 L_A5w")
            a("s_waitcnt vmcnt(0)")
            a.label("L_A5w")
            a("s_waitcnt vmcnt(1)")
        elif waits is not None:
            a(f"s_waitcnt vmcnt({waits[x]})")
        for e in range(8):
            sel = sHI if e & 1 else sLO
            a(f"v_perm_b32 v{F + 4 * e + x}, v{W + 4 * (2 * x + 1) + (e >> 1)}, v{W + 4 * (2 * x) + (e >> 1)}, s{sel}")


def unpack(dst, src, n):
    for i in range(n):
        a(f"v_lshlrev_b32 v{dst + 2 * i}, 16, v{src + i}")
        a(f"v_and_b32 v{dst + 2 * i + 1}, 0xffff0000, v{src + i}")


def round_bf16(regs):
    if len(regs) == 1:
        a(f"v_cvt_pk_bf16_f32 v{regs[0]}, v{regs[0]}, v{regs[0]}")
        a(f"v_lshlrev_b32 v{regs[0]}, 16, v{regs[0]}")
        return
    for i in range(0, len(regs), 2):
        a(f"v_cvt_pk_bf16_f32 v{regs[i + 1]}, v{regs[i]}, v{regs[i + 1]}")
    for i in range(0, len(regs), 2):
        a(f"v_lshlrev_b32 v{regs[i]}, 16, v{regs[i + 1]}")
        a(f"v_and_b32 v{regs[i + 1]}, 0xffff0000, v{regs[i + 1]}")


def poll_begin():
    lab = uid("poll")
    a(f"s_mov_b32 s{sCNT}, {OPT['limit']}")
    a.label(lab)
    return lab


def poll_mid(cnt="vmcnt(0)", sleep=None):
    sleep = OPT["psleep"] if sleep is None else sleep
    if sleep and cnt.startswith("vm"):
        a(f"s_sleep {sleep}")
    a(f"s_sub_u32 s{sCNT}, s{sCNT}, 1")
    a(f"s_cselect_b64 {sp(sMK)}, 0, -1")
    a(f"s_waitcnt {cnt}")


def poll_end(lab):
    a(f"s_and_b64 vcc, vcc, {sp(sMK)}")
    a(f"s_cbranch_scc1 {lab}")


def sentinel_ops(regs, tmp):
    regs = list(regs)
    out = []
    if len(regs) == 2:
        out.append(f"v_max_u32 v{tmp}, v{regs[0]}, v{regs[1]}")
    else:
        out.append(f"v_max3_u32 v{tmp}, v{regs[0]}, v{regs[1]}, v{regs[2]}")
        rest = regs[3:]
        while len(rest) >= 2:
            out.append(f"v_max3_u32 v{tmp}, v{tmp}, v{rest[0]}, v{rest[1]}")
            rest = rest[2:]
        if rest:
            out.append(f"v_max_u32 v{tmp}, v{tmp}, v{rest[0]}")
    out.append(f"v_cmp_eq_u32 vcc, -1, v{tmp}")
    return out


def interleave(major, minor, per):
    minor = list(minor)
    for ins in major:
        a(ins)
        for _ in range(per):
            if minor:
                a(minor.pop(0))
    for ins in minor:
        a(ins)


def make_tag(vE):
    a(f"v_readfirstlane_b32 s{sTAG}, v{vE}")
    a("s_nop 1")
    a(f"s_mul_i32 s{sTAG}, s{sTAG}, 1664525")
    a(f"s_add_u32 s{sTAG}, s{sTAG}, 1013904223")


DPPM = "row_mask:0xf bank_mask:0xf"


def row_allsum(v):
    for n in (8, 4, 2, 1):
        a(f"v_add_f32_dpp v{v}, v{v}, v{v} row_ror:{n} {DPPM}")


def cross_rows(op, v, tmp):
    a(f"v_mov_b32 v{tmp}, v{v}")
    a(f"v_permlane16_swap_b32 v{tmp}, v{v}")
    a(f"{op} v{v}, v{v}, v{tmp}")
    a(f"v_mov_b32 v{tmp}, v{v}")
    a(f"v_permlane32_swap_b32 v{tmp}, v{v}")
    a(f"{op} v{v}, v{v}, v{tmp}")


def mfma(d, x, y, c=None):
    return f"v_mfma_f32_16x16x32_bf16 {vr(d, 4)}, {vr(x, 4)}, {vr(y, 4)}, {vr(c, 4) if c is not None else 0}"


def diagX_reduce(ACC, T):
    for e in range(8):
        a(f"v_add_f32_dpp v{T + e}, v{ACC + 4 * e + 1}, v{ACC + 4 * e} row_shl:4 {DPPM}")
    for e in range(8):
        a(f"v_add_f32_dpp v{T + e}, v{ACC + 4 * e + 2}, v{T + e} row_shl:8 {DPPM}")
    for e in range(8):
        a(f"v_add_f32_dpp v{T + e}, v{ACC + 4 * e + 3}, v{T + e} row_shl:12 {DPPM}")


def sum8_b64(r):
    for t in range(4):
        a(f"v_pk_add_f32 v[{r + 4 * t}:{r + 4 * t + 1}], v[{r + 4 * t}:{r + 4 * t + 1}], v[{r + 4 * t + 2}:{r + 4 * t + 3}]")
    a(f"v_pk_add_f32 v[{r}:{r + 1}], v[{r}:{r + 1}], v[{r + 4}:{r + 5}]")
    a(f"v_pk_add_f32 v[{r + 8}:{r + 9}], v[{r + 8}:{r + 9}], v[{r + 12}:{r + 13}]")
    a(f"v_pk_add_f32 v[{r}:{r + 1}], v[{r}:{r + 1}], v[{r + 8}:{r + 9}]")


def gu_loads(half):
    for jj in range(4):
        r, off = ((176, 3584 * (jj - 1)) if jj < 3 else (178, 0))
        a(f"global_load_dwordx4 {vr(16 + 16 * half + 4 * jj, 4)}, v[{r + 4 * half}:{r + 4 * half + 1}], off offset:{off}{NTW}")


def gu_addr():
    a(f"s_min_u32 s{sT1}, s{sM}, 13")
    a(f"s_mul_i32 s{sT0}, s{sG}, 14")
    a(f"s_add_u32 s{sT0}, s{sT0}, s{sT1}")
    a(f"s_lshl_b32 s{sT0}, s{sT0}, 5")
    a(f"s_mul_i32 s{sT1}, s{sT4}, {128 * 3584}")
    a(f"s_add_u32 s{sT0}, s{sT0}, s{sT1}")
    a(f"s_add_u32 s{sT0}, s{sT0}, 3584")
    a("v_lshrrev_b32 v8, 1, v3")
    a("v_and_b32 v9, 1, v3")
    a("v_lshlrev_b32 v8, 6, v8")
    a("v_lshl_add_u32 v8, v9, 2, v8")
    a("v_and_b32 v9, 3, v1")
    a("v_lshl_add_u32 v8, v9, 3, v8")
    a("v_mul_u32_u24 v10, 3584, v8")
    a("v_and_b32 v9, 1, v2")
    a("v_lshl_add_u32 v10, v9, 4, v10")
    a(f"v_add_u32 v10, s{sT0}, v10")
    a("v_mov_b32 v11, 0")
    a("v_cmp_lt_u32 vcc, 1, v2")
    a(f"v_mov_b32 v176, s{sWG}")
    a(f"v_mov_b32 v177, s{sWG + 1}")
    a(f"v_mov_b32 v178, s{sWU}")
    a(f"v_mov_b32 v179, s{sWU + 1}")
    a("v_cndmask_b32 v176, v176, v178, vcc")
    a("v_cndmask_b32 v177, v177, v179, vcc")
    a("v_lshl_add_u64 v[176:177], v[10:11], 0, v[176:177]      ; row +1")
    a(f"v_mov_b32 v10, {2 * 3584}")
    a("v_lshl_add_u64 v[178:179], v[10:11], 0, v[176:177]      ; row +3")
    a(f"v_mov_b32 v10, {32 * 3584}")
    a("v_lshl_add_u64 v[180:181], v[10:11], 0, v[176:177]")
    a("v_lshl_add_u64 v[182:183], v[10:11], 0, v[178:179]")


def modb_loads():
    a(f"global_load_dwordx4 v[132:135], v124, {sp(sBC)} offset:-4096 sc1")
    a(f"global_load_dwordx4 v[136:139], v124, {sp(sBC)} sc1")
    a(f"global_load_dwordx4 v[140:143], v125, {sp(sBC)} sc1")


W, F, ACC = 16, 48, 16
KR, VR, SA, VT, OA = 16, 48, 80, 144, 80


def a_regs(on):
    global sBA, sBB, sBC, sMK
    sBA, sBB, sBC, sMK = (6, 8, 10, 12) if on else (32, 34, 36, 38)


def sec_ffn():
    HELP[0] = False
    a_regs(True)
    CLS[0] = 1
    stub("L_s0")
    a.label("L_FF")
    a(f"s_cmp_ge_u32 s{sM}, 14")
    a("s_cbranch_scc1 L_fin2")
    a(f"s_lshl_b32 s{sT0}, s{sT4}, 10")
    a("v_and_b32 v9, 15, v0")
    a("s_barrier")
    if OPT["xml"]:
        a(f"global_load_dwordx2 v[128:129], v119, {sp(sBB)}")
        a(f"global_load_dwordx2 v[130:131], v119, {sp(sBB)} offset:64")
        modb_loads()
    for half in range(OPT["gue"], 2):
        gu_loads(half)
    a("v_lshlrev_b32 v12, 4, v9")
    a("v_lshl_add_u32 v12, v3, 12, v12")
    a("v_add_u32 v13, 0x4000, v12")
    base(sBA, sWS, sT0, H4)
    a(f"s_lshl_b32 s{sT1}, s{sT0}, 1")
    base(sBB, sWS, sT1, X1)
    a(f"s_lshr_b32 s{sT1}, s{sG}, 1")
    a(f"s_and_b32 s{sT2}, s{sG}, 1")
    a(f"s_lshl2_add_u32 s{sT1}, s{sT2}, s{sT1}")
    a("v_and_b32 v15, 7, v1")
    a(f"v_cmp_eq_u32 s[20:21], s{sT1}, v15")

    a(f"s_lshl_b32 s{sT1}, s{sT4}, 9")
    a(f"s_add_u32 s{sT1}, s{sT1}, {LY}")
    a("v_lshlrev_b32 v5, 7, v3")
    a("v_lshl_add_u32 v5, v2, 5, v5")
    a(f"v_add_u32 v5, s{sT1}, v5")
    a("v_and_b32 v6, 1, v0")
    a("v_lshlrev_b32 v6, 4, v6")
    a("v_mov_b32 v7, 0x3f80")
    a("v_lshlrev_b32 v6, v6, v7")
    a("v_lshrrev_b32 v7, 1, v9")
    for x in range(8):
        a(f"v_cmp_eq_u32 vcc, {x}, v7")
        a(f"v_cndmask_b32 v{(120 + x) if x < 4 else (88 + x)}, 0, v6, vcc")
    a(f"s_lshl_b32 s{sT1}, s{sT4}, 2")
    a(f"s_add_u32 s{sT1}, s{sT1}, {LST}")
    a("v_and_b32 v6, 3, v1")
    a("v_lshlrev_b32 v6, 5, v6")
    a("v_lshl_add_u32 v6, v3, 3, v6")
    a(f"v_add_u32 v6, s{sT1}, v6")
    a("s_waitcnt vmcnt(8)")
    for ins in sentinel_ops(range(132, 144), 14):
        a(ins)
    a("s_cbranch_vccz L_FF1")
    lab = poll_begin()
    modb_loads()
    poll_mid()
    for ins in sentinel_ops(range(132, 144), 14):
        a(ins)
    poll_end(lab)
    a.label("L_FF1")
    base(sBC, sWS, sT0, H4B)
    a("v_lshlrev_b32 v124, 7, v1")
    a("v_lshl_add_u32 v124, v2, 4, v124")
    XV, GA, P0, P1 = 96, 104, 112, 84
    unpack(XV, 128, 4)
    unpack(GA, 132, 4)
    unpack(P0, 140, 4)
    for i in range(8):
        a(f"v_add_f32 v{P0 + i}, 1.0, v{P0 + i}")
    for i in range(4):
        a(f"v_cvt_pk_bf16_f32 v{140 + i}, v{P0 + 2 * i}, v{P0 + 2 * i + 1}")
    unpack(P0, 140, 4)
    CBF = 140
    for i in range(8):
        a(f"v_mul_f32 v{P1 + i}, v{GA + i}, v{P0 + i}")
    for i in range(8):
        a(f"v_mul_f32 v{P0 + i}, v{XV + i}, v{P0 + i}")
    stub("L_s1", True)
    perms8(W, F, waits=[6, 4, 2, 0], hook=(OPT["ge"], "s_barrier") if OPT["ge"] else None)
    stamp(9)
    if OPT["gate"] and not OPT["adap"] and not OPT["ge"]:
        a("s_barrier")

    def h4_loads():
        for t in range(4):
            for hf in range(2):
                a(f"global_load_dwordx4 {vr(16 + 8 * t + 4 * hf, 4)}, v{12 + hf}, {sp(sBA)} offset:{256 * t} sc1")

    def h4_first():
        chk = sentinel_ops(range(16, 48), 14)
        seq = [mfma(80, 120, 16), mfma(80, 120, 20, 80), mfma(8, 120, 24), mfma(8, 120, 28, 8),
               mfma(80, 92, 32, 80), mfma(80, 92, 36, 80), mfma(8, 92, 40, 8), mfma(8, 92, 44, 8)]
        cuts = [0, 3, 7, 11, 17]
        for p in range(4):
            a(f"s_waitcnt vmcnt({14 - 2 * p})")
            interleave(seq[2 * p:2 * p + 2], chk[cuts[p]:cuts[p + 1]], 2)

    UA, UB = 144, 176
    if OPT["adap"]:
        a(f"ds_read_b32 v14, v4 offset:{LGT}")
    if OPT["ge"]:
        a("s_barrier")
        h4_loads()
    for e in range(8):
        a(mfma(UA + 4 * e, 136, F + 4 * e))
    if OPT["adap"]:
        a("s_waitcnt lgkmcnt(0)")
        a(f"v_readfirstlane_b32 s{sT2}, v14")
        a("s_nop 1")
        a(f"s_cmp_eq_u32 s{sT2}, 0")
        a("s_cbranch_scc1 L_FFa")
        h4_loads()
        a.label("L_FFa")
    dv = [f"v_add_f32_dpp v{128 + e}, v{UA + 4 * e + k}, v{UA + 4 * e if k == 1 else 128 + e} row_shl:{4 * k} {DPPM}"
          for k in (1, 2, 3) for e in range(8)]
    interleave([mfma(UB + 4 * e, CBF, F + 4 * e) for e in range(8)], dv[:16], 2)
    if OPT["gsh"] and not OPT["ge"]:
        a("s_barrier")
        h4_loads()
    for ins in dv[16:]:
        a(ins)
    set_exec(0x000F000F000F000F)
    a(f"ds_write_b128 v5, v[128:131] offset:{LV - LY}")
    a(f"ds_write_b128 v5, v[132:135] offset:{LV - LY + 16}")
    set_exec(-1)
    diagX_reduce(UB, 144)
    set_exec(0x000F000F000F000F)
    a(f"ds_write_b128 v5, v[144:147] offset:{LU - LY}")
    a(f"ds_write_b128 v5, v[148:151] offset:{LU - LY + 16}")
    set_exec(-1)
    a(f"s_mov_b32 s{sCNT}, {OPT['limit']}")
    if OPT["adap"]:
        a(f"s_cmp_lg_u32 s{sT2}, 0")
    stub("L_s2", True)
    a("s_waitcnt lgkmcnt(0)")
    a("s_barrier")
    stamp(8)
    if OPT["adap"]:
        a("s_cbranch_scc1 L_FF2")
    if OPT["h4b"]:
        assert OPT["gsh"] and OPT["prog"]
        for t in range(4):
            for hf in range(2):
                a(f"global_load_dwordx4 {vr(176 + 8 * t + 4 * hf, 4)}, v{12 + hf}, {sp(sBC)} offset:{256 * t} sc1")
        h4_first()
        a("s_cbranch_vccz L_FF4")
        a("s_waitcnt vmcnt(0)")
        for i in range(16):
            a(f"v_mov_b64 v[{16 + 2 * i}:{17 + 2 * i}], v[{176 + 2 * i}:{177 + 2 * i}]")
    if OPT["gsh"]:
        a("s_branch L_FF2")
    lab = uid("poll")
    a.label(lab)
    h4_loads()
    a.label("L_FF2")
    if OPT["prog"]:
        poll_mid("vmcnt(6)")
        chk = sentinel_ops(range(16, 48), 14)
        seq = [mfma(80, 120, 16), mfma(80, 120, 20, 80), mfma(8, 120, 24), mfma(8, 120, 28, 8),
               mfma(80, 92, 32, 80), mfma(80, 92, 36, 80), mfma(8, 92, 40, 8), mfma(8, 92, 44, 8)]
        cuts = [0, 3, 7, 11, 17]
        for p in range(4):
            if p:
                a(f"s_waitcnt vmcnt({6 - 2 * p})")
            interleave(seq[2 * p:2 * p + 2], chk[cuts[p]:cuts[p + 1]], 2)
    else:
        poll_mid()
        seq = [mfma(80, 120, 16), mfma(8, 120, 24), mfma(80, 120, 20, 80), mfma(8, 120, 28, 8),
               mfma(80, 92, 32, 80), mfma(8, 92, 40, 8), mfma(80, 92, 36, 80), mfma(8, 92, 44, 8)]
        interleave(seq, sentinel_ops(range(16, 48), 14), 2)
    poll_end(lab)
    if OPT["h4b"]:
        a.label("L_FF4")
        a("s_nop 0")
    stamp(12)
    if OPT["stamps"] == 1:
        a(f"v_writelane_b32 v126, s{sCNT}, 13")
    att = [80, 82, 8, 10]
    for i in range(4):
        a(f"v_pk_fma_f32 v[{P0 + 2 * i}:{P0 + 2 * i + 1}], v[{att[i]}:{att[i] + 1}], v[{P1 + 2 * i}:{P1 + 2 * i + 1}], v[{P0 + 2 * i}:{P0 + 2 * i + 1}]")
    for i in range(4):
        a(f"v_cvt_pk_bf16_f32 v{84 + i}, v{P0 + 2 * i}, v{P0 + 2 * i + 1}")
    st = []
    for i in range(4):
        st.append(f"v_pk_fma_f32 v[{XV + 2 * i}:{XV + 2 * i + 1}], v[{att[i]}:{att[i] + 1}], v[{GA + 2 * i}:{GA + 2 * i + 1}], v[{XV + 2 * i}:{XV + 2 * i + 1}]")
    st.append(f"v_pk_mul_f32 v[8:9], v[{XV}:{XV + 1}], v[{XV}:{XV + 1}]")
    st.append(f"v_pk_add_f32 v[14:15], v[{XV}:{XV + 1}], v[{XV + 2}:{XV + 3}]")
    for i in range(1, 4):
        st.append(f"v_pk_fma_f32 v[8:9], v[{XV + 2 * i}:{XV + 2 * i + 1}], v[{XV + 2 * i}:{XV + 2 * i + 1}], v[8:9]")
        if i > 1:
            st.append(f"v_pk_add_f32 v[14:15], v[14:15], v[{XV + 2 * i}:{XV + 2 * i + 1}]")
    st.append("v_add_f32 v8, v8, v9")
    st.append("v_add_f32 v14, v14, v15")
    st.append("v_permlane32_swap_b32 v14, v8")
    st.append("v_add_f32 v14, v14, v8")
    interleave([mfma(ACC + 4 * e, 84, F + 4 * e) for e in range(2)], st[:4], 2)
    a(f"s_cmp_eq_u32 s{sM}, 13")
    a("s_cbranch_scc1 L_FFx")
    a.label("L_FF3")
    interleave([mfma(ACC + 4 * e, 84, F + 4 * e) for e in range(2, 8)], st[4:], 2)
    d1 = [f"v_add_f32_dpp v{104 + e}, v{ACC + 4 * e + 1}, v{ACC + 4 * e} row_shl:4 {DPPM}" for e in range(8)]
    d2 = [f"v_add_f32_dpp v{104 + e}, v{ACC + 4 * e + 2}, v{104 + e} row_shl:8 {DPPM}" for e in range(8)]
    d3 = [f"v_add_f32_dpp v{104 + e}, v{ACC + 4 * e + 3}, v{104 + e} row_shl:12 {DPPM}" for e in range(8)]
    for ins in d1[:3]:
        a(ins)
    a(f"v_add_f32_dpp v14, v14, v14 quad_perm:[1,0,3,2] {DPPM}")
    for ins in d1[3:6]:
        a(ins)
    a(f"v_add_f32_dpp v14, v14, v14 quad_perm:[2,3,0,1] {DPPM}")
    for ins in d2[:3]:
        a(ins)
    a("v_mov_b32 v15, v14")
    for ins in d1[6:] + d2[3:5]:
        a(ins)
    a("v_permlane16_swap_b32 v15, v14")
    for ins in d2[5:]:
        a(ins)
    a("v_add_f32 v14, v14, v15")
    for ins in d3:
        a(ins)
    set_exec(0x000F000F000F000F)
    a("ds_write_b128 v5, v[104:107]")
    a("ds_write_b128 v5, v[108:111] offset:16")
    set_exec(0x0000111100001111)
    a("ds_write_b32 v6, v14")
    set_exec(-1)
    a("s_waitcnt lgkmcnt(0)")
    a("s_barrier")
    stamp(10)
    a.label("L_fin2")
    finish_wave()
    stub("L_s3")
    a.label("L_FFx")
    for i in range(4):
        a(f"v_cvt_pk_bf16_f32 v{128 + i}, v{XV + 2 * i}, v{XV + 2 * i + 1}")
    a("s_mov_b64 exec, s[20:21]")
    a(f"global_store_dwordx4 v124, v[128:131], {sp(sBB)} sc1")
    set_exec(-1)
    a("s_branch L_FF3")

    a.label("L_FF0")
    a(f"s_cmp_lg_u32 s{sWAVE}, 0")
    a("s_cbranch_scc1 L_fin2")
    if OPT["gate"]:
        a(f"s_cmp_eq_u32 s{sM}, 15")
        a("s_cbranch_scc1 L_fin2")
        base(sBA, sWS, None, GATE)
        a("v_lshlrev_b32 v5, 7, v0")
        a("v_and_b32 v7, 0x380, v5")
        a("v_add_u32 v7, 0x2000, v7")
        a(f"s_movk_i32 s{sCNT}, 60")
        if not OPT["adap"]:
            a("s_barrier                      ; 2c")
        a.label("L_FFg")
        if OPT["gatew"]:
            a(f"global_load_dword v6, v5, {sp(sBA)} sc1")
        a(f"global_load_dword v8, v7, {sp(sBA)} sc1")
        poll_mid()
        if OPT["gatew"]:
            a("v_max_u32 v8, v6, v8")
        a("v_cmp_eq_u32 vcc, -1, v8")
        poll_end("L_FFg")
        stamp(10)
        if OPT["gate"] > 1:
            if OPT["gskip"]:
                a(f"s_cmp_eq_u32 s{sCNT}, 59")
                a("s_cbranch_scc1 L_FFh")
            a(f"s_sleep {OPT['gate'] - 1}")
            a.label("L_FFh")
        if OPT["adap"]:
            a("v_mov_b32 v6, 1")
            a(f"ds_write_b32 v4, v6 offset:{LGT}")
    a(f"s_cmp_ge_u32 s{sM}, 14")
    a("s_cbranch_scc1 L_fin2")
    if OPT["gate"]:
        a("s_barrier                      ; 3")
    a("v_bfe_u32 v8, v0, 3, 2")
    a("v_lshlrev_b32 v5, 7, v8")
    a("v_and_b32 v6, 7, v0")
    a("v_lshl_add_u32 v5, v6, 3, v5")
    a("v_lshrrev_b32 v6, 5, v0")
    a("v_lshl_add_u32 v5, v6, 2, v5")
    a("v_add_u32 v6, 64, v5")
    a("v_lshlrev_b32 v8, 5, v8")
    a(f"s_mul_i32 s{sT0}, s{sG}, 14")
    a(f"s_add_u32 s{sT0}, s{sT0}, s{sM}")
    a(f"s_lshl_b32 s{sT0}, s{sT0}, 7")
    base(sBA, sWS, sT0, ACT)
    a("v_lshlrev_b32 v7, 2, v0")
    a(f"s_mov_b32 s{sT1}, {INV512:#x}")
    if not OPT["gate"] or OPT["gsh"]:
        a("s_barrier                      ; 3")
    for k, L0 in enumerate((LU, LV)):
        o = L0 // 256
        a(f"ds_read2st64_b32 v[{16 + 8 * k}:{17 + 8 * k}], v5 offset0:{o} offset1:{o + 2}")
        a(f"ds_read2st64_b32 v[{18 + 8 * k}:{19 + 8 * k}], v5 offset0:{o + 4} offset1:{o + 6}")
        a(f"ds_read2st64_b32 v[{20 + 8 * k}:{21 + 8 * k}], v6 offset0:{o} offset1:{o + 2}")
        a(f"ds_read2st64_b32 v[{22 + 8 * k}:{23 + 8 * k}], v6 offset0:{o + 4} offset1:{o + 6}")
    a("s_waitcnt lgkmcnt(0)")
    for k in range(4):
        a(f"v_pk_add_f32 v[{16 + 4 * k}:{17 + 4 * k}], v[{16 + 4 * k}:{17 + 4 * k}], v[{18 + 4 * k}:{19 + 4 * k}]")
    for k in range(4):
        a(f"v_add_f32 v{40 + k}, v{16 + 4 * k}, v{17 + 4 * k}")
    a("s_barrier                      ; 4")
    o = LY // 256
    a(f"ds_read_b128 v[24:27], v8 offset:{LST}")
    a(f"ds_read_b128 v[28:31], v8 offset:{LST + 16}")
    a(f"ds_read2st64_b32 v[16:17], v5 offset0:{o} offset1:{o + 2}")
    a(f"ds_read2st64_b32 v[18:19], v5 offset0:{o + 4} offset1:{o + 6}")
    a(f"ds_read2st64_b32 v[20:21], v6 offset0:{o} offset1:{o + 2}")
    a(f"ds_read2st64_b32 v[22:23], v6 offset0:{o + 4} offset1:{o + 6}")
    a("s_waitcnt lgkmcnt(4)")
    a("v_pk_add_f32 v[24:25], v[24:25], v[26:27]")
    a("v_pk_add_f32 v[28:29], v[28:29], v[30:31]")
    a("v_add_f32 v24, v24, v25")
    a("v_add_f32 v28, v28, v29")
    a(f"v_mul_f32 v24, s{sT1}, v24             ; mean")
    a("v_mul_f32 v25, v24, v24")
    a(f"v_fma_f32 v28, v28, s{sT1}, -v25       ; variance")
    a("v_max_f32 v28, 0, v28")
    a(f"v_add_f32 v28, {EPS:#x}, v28")
    a("v_rsq_f32 v28, v28")
    a("s_waitcnt lgkmcnt(0)")
    a("v_pk_add_f32 v[16:17], v[16:17], v[18:19]")
    a("v_pk_add_f32 v[20:21], v[20:21], v[22:23]")
    a("v_add_f32 v16, v16, v17")
    a("v_add_f32 v17, v20, v21")
    a("v_fma_f32 v16, -v24, v40, v16")
    a("v_fma_f32 v17, -v24, v41, v17")
    a("v_fma_f32 v16, v16, v28, v42          ; gate")
    a("v_fma_f32 v17, v17, v28, v43          ; up")
    a(f"v_mul_f32 v18, {0x80000000 | LOG2E:#x}, v16")
    a("v_exp_f32 v18, v18")
    a("v_mul_f32 v16, v16, v17")
    a("v_add_f32 v18, 1.0, v18")
    a("v_rcp_f32 v18, v18")
    a("v_mul_f32 v16, v16, v18")
    a("v_mov_b32 v17, v16")
    a("v_permlane32_swap_b32 v16, v17")
    a("v_cvt_pk_bf16_f32 v16, v16, v17")
    set_exec(0xFFFFFFFF)
    a(f"global_store_dword v7, v16, {sp(sBA)} sc1")
    stamp(11)
    finish_wave()


def wq_pf():
    a(f"s_lshl_b32 s{sT0}, s{sT0}, 6")
    a(f"s_add_u32 s{sT0}, s{sT0}, s{sT1}")
    a(f"s_lshl_b32 s{sT0}, s{sT0}, 10")
    a("v_lshlrev_b32 v8, 13, v14")
    a("v_lshl_add_u32 v8, v15, 7, v8")
    a(f"v_add_u32 v8, s{sT0}, v8")
    prefetch(8, sWQ, delta=8192)


def sec_entry():
    HELP[0] = False
    a(f"{NAME}_kernel:")
    a("s_load_dwordx16 s[4:19], s[0:1], 0")
    a("s_load_dwordx8 s[20:27], s[0:1], 64")
    a("s_load_dwordx2 s[30:31], s[0:1], 104")
    if OPT["stamps"]:
        a("v_mov_b32 v126, 0")
        a("s_memrealtime s[100:101]")
    if OPT["probe"]:
        a("s_memrealtime s[100:101]")
    a("s_cmp_ge_u32 s2, 256")
    a("s_cbranch_scc1 L_exit")
    a("v_lshrrev_b32 v1, 6, v0")
    if OPT["pf"]:
        a(f"s_getpc_b64 {sp(sPC)}")
        a.label("L_pc0")
        a("v_lshlrev_b32 v2, 7, v0")
    a(f"v_readfirstlane_b32 s{sWAVE}, v1")
    if OPT["pf"]:
        a(f"s_sub_u32 s{sPC}, s{sPC}, L_pc0-L_code0")
        a(f"s_subb_u32 s{sPC + 1}, s{sPC + 1}, 0")
        a("v_cmp_gt_u32 vcc, (L_exit-L_code0)/128, v0")
        if OPT["cpf1"]:
            a("s_and_b32 s33, s2, 0xf8")
            a("s_cmp_lg_u32 s33, 0x78")
            a("s_cbranch_scc1 L_nopf")
        a("s_cbranch_vccz L_nopf")
        a("s_mov_b64 exec, vcc")
        a(f"global_load_dword v127, v2, {sp(sPC)}")
        a("s_mov_b64 exec, -1")
        a.label("L_nopf")
    a("v_and_b32 v0, 63, v0")
    a(f"s_and_b32 s{sT1}, s2, 7")
    a(f"s_lshr_b32 s{sT2}, s2, 3")
    a("v_lshrrev_b32 v1, 2, v0        ; l>>2")
    a("v_and_b32 v2, 3, v0            ; l&3")
    a("v_lshrrev_b32 v3, 4, v0        ; l>>4")
    a("v_mov_b32 v4, 0")
    a("v_and_b32 v5, 3, v1")
    a("v_lshrrev_b32 v14, 3, v0")
    a("v_and_b32 v15, 7, v0")
    if OPT["pfw"]:
        a(f"s_cmp_lg_u32 s{sWAVE}, {0 if OPT['pfw'] < 3 else 2}")
        a("s_cbranch_scc1 L_nopfa")
        a("s_setprio 3")
        a(f"v_lshl_add_u32 v6, s{sT2}, 4, v1")
        a("v_mul_u32_u24 v6, 6144, v6")
        a("v_and_b32 v7, 2, v0")
        a("v_lshl_add_u32 v6, v7, 9, v6")
        if OPT["pfw"] != 2:
            a("v_and_b32 v7, 1, v0")
            a("v_lshl_add_u32 v6, v7, 6, v6")
        a(f"v_lshl_add_u32 v6, s{sT1}, 7, v6")
        a("s_waitcnt lgkmcnt(0)")
        a(f"global_load_dword v127, v6, {sp(sWM)}")
        a("s_setprio 0")
        a.label("L_nopfa")
    a("s_cmp_lt_u32 s2, 128")
    a("s_cbranch_scc1 L_G")
    if OPT["kfirst"]:
        a("s_setprio 3")
    a(f"s_sub_u32 s{sT2}, s{sT2}, 16             ; a = 4b + s")
    if OPT["afirst"]:
        PFWAIT[0] = True
        if OPT["ahelp"]:
            assert 8 * OPT["nq"] + 4 * OPT["nb"] + 4 * OPT["nm"] + 16 * OPT["na"] == 64
            a(f"s_cmp_ge_u32 s{sWAVE}, {OPT['na']}")
            a("s_cbranch_scc1 L_nopfq")
            a(f"s_lshl4_add_u32 s{sT0}, s{sWAVE}, s{sT2}")
            a(f"s_add_u32 s{sT0}, s{sT0}, {64 - 16 * OPT['na']}")
            wq_pf()
            a.label("L_nopfq")
    a(f"s_and_b32 s{sT0}, s{sT2}, 12")
    a(f"s_lshl_b32 s{sT0}, s{sT0}, 1")
    a(f"s_add_u32 s{sT0}, s{sT0}, s{sT1}")
    a(f"s_lshl_b32 s{sT0}, s{sT0}, 4")
    a(f"s_and_b32 s{sT3}, s{sT2}, 3")
    a(f"s_add_u32 s{sT0}, s{sT0}, s{sT3}")
    a(f"s_lshl_b32 s{sT0}, s{sT0}, 3")
    a(f"s_add_u32 s{sT0}, s{sT0}, s{sWAVE}")
    a(f"s_lshl_b32 s{sT0}, s{sT0}, 13")
    a(f"s_add_u32 s{sT0}, s{sT0}, {3072 * 256 + 4096}")
    a("v_lshlrev_b32 v7, 4, v0")
    a("s_waitcnt lgkmcnt(0)")
    base(sBA, sK, sT0)
    base(sBB, sV, sT0)
    if OPT["stag"] >= 3:
        a("s_barrier")
    elif OPT["stag"]:
        a("s_waitcnt lgkmcnt(0)")
        a(f"s_load_dword s{45}, {sp(sWS)}, 0")
        a("s_waitcnt lgkmcnt(0)")
    a(f"global_load_dword v12, v4, {sp(sWS)} sc1      ; epoch")
    if OPT["pfaw"] == 1:
        a(f"s_cmp_lg_u32 s{sWAVE}, 2")
        a("s_cbranch_scc1 L_nopfa")
        a("v_lshrrev_b32 v8, 1, v0")
        a(f"v_lshl_add_u32 v8, s{sT2}, 5, v8")
        a("v_mul_u32_u24 v8, 6144, v8")
        a("v_and_b32 v9, 1, v0")
        a("v_lshl_add_u32 v8, v9, 10, v8")
        a(f"v_lshl_add_u32 v8, s{sT1}, 7, v8")
        prefetch(8, sWM, delta=4 * 6144)
        a.label("L_nopfa")
    if not OPT["afirst"]:
        if OPT["ahelp"]:
            assert 8 * OPT["nq"] + 4 * OPT["nb"] + 4 * OPT["nm"] + 16 * OPT["na"] == 64
            a(f"s_cmp_ge_u32 s{sWAVE}, {OPT['na']}")
            a("s_cbranch_scc1 L_nopfq")
            a(f"s_lshl4_add_u32 s{sT0}, s{sWAVE}, s{sT2}")
            a(f"s_add_u32 s{sT0}, s{sT0}, {64 - 16 * OPT['na']}")
            wq_pf()
            a.label("L_nopfq")
    if OPT["athr"] < 8:
        a(f"s_cmp_lt_u32 s{sWAVE}, {OPT['athr']}")
        a("s_cbranch_scc1 L_Ald")
        a("s_waitcnt vmcnt(0)")
        a.label("L_Ald")
    for u in range(8):
        a(f"global_load_dwordx4 {vr(KR + 4 * u, 4)}, v7, {sp(sBA)} offset:{1024 * u - 4096}{NT}")
    if OPT["kfirst"]:
        a("s_setprio 0")
    if OPT["kstage"]:
        a(f"s_cmp_ge_u32 s{sWAVE}, 4")
        a("s_cbranch_scc1 L_A2")
    for u in range(0 if OPT["vlate"] else 8):
        a(f"global_load_dwordx4 {vr(VR + 4 * u, 4)}, v7, {sp(sBB)} offset:{1024 * u - 4096}{NT}")
    a("s_branch L_A2")
    a.label("L_G")
    a(f"s_and_b32 s{sT3}, s{sT2}, 1")
    a(f"s_lshr_b32 s{sT0}, s{sT2}, 2")
    a(f"s_and_b32 s{sT0}, s{sT0}, 2")
    a(f"s_or_b32 s{sKIND}, s{sT3}, s{sT0}")
    if OPT["pfa"] and not OPT["pfaw"] and not OPT["pfw"]:
        a("v_lshrrev_b32 v6, 1, v0")
        if OPT["pfq"]:
            a(f"v_lshl_add_u32 v6, s{sT2}, 5, v6")
        else:
            a(f"s_and_b32 s{sT0}, s{sWAVE}, 1")
            a(f"s_xor_b32 s{sT0}, s{sT0}, s{sT2}")
            a(f"v_lshl_add_u32 v6, s{sT0}, 5, v6")
        a("v_mul_u32_u24 v6, 6144, v6")
        a("v_and_b32 v7, 1, v0")
        a("v_lshl_add_u32 v6, v7, 10, v6")
        a(f"v_lshl_add_u32 v6, s{sT1}, 7, v6")
        if OPT["pfq"]:
            a(f"s_cmp_lg_u32 s{sWAVE}, 0")
        else:
            a(f"s_lshr_b32 s{sT0}, 0x21, s{sWAVE}")
            a(f"s_and_b32 s{sT0}, s{sT0}, s{sT3}")
            a(f"s_cmp_eq_u32 s{sT0}, 0")
        a("s_cbranch_scc1 L_nopfa")
        PFWAIT[0] = True
        prefetch(6, sWM, delta=4 * 6144)
        a.label("L_nopfa")
    a(f"s_bfe_u32 s{sT0}, s{sT2}, 0x20001")
    a(f"s_lshl2_add_u32 s{sCNT}, s{sT1}, s{sT0}      ; p = 4g + ((m>>1)&3)")
    a(f"s_cmp_eq_u32 s{sKIND}, 1")
    a("s_cbranch_scc1 L_GA")
    if OPT["stag"] == 1:
        a("s_waitcnt lgkmcnt(0)")
        a(f"s_load_dword s{45}, {sp(sWS)}, 0")
        a("s_waitcnt lgkmcnt(0)")
    if not OPT["nb"]:
        a(f"s_cmp_eq_u32 s{sKIND}, 3")
        a("s_cbranch_scc1 L_GB")
    a(f"s_sub_u32 s{sT4}, s{sWAVE}, 1")
    a(f"s_lshr_b32 s{sT0}, s{sT2}, 1")
    if OPT["nb"]:
        a(f"s_lshl3_add_u32 s32, s{sT4}, s{sT0}")
        a(f"s_lshl2_add_u32 s33, s{sT4}, s{sT0}")
        a(f"s_add_u32 s33, s33, {8 * OPT['nq'] - 4}")
        a(f"s_cmp_eq_u32 s{sKIND}, 3")
        a(f"s_cselect_b32 s{sT0}, s33, s32")
        a(f"s_cselect_b32 s32, {OPT['nb']}, {OPT['nq']}")
        a(f"s_cmp_ge_u32 s{sT4}, s32")
    else:
        a(f"s_lshl3_add_u32 s{sT0}, s{sT4}, s{sT0}")
        a(f"s_cmp_ge_u32 s{sT4}, {OPT['nq']}")
    a("s_cbranch_scc1 L_nopfw")
    PFWAIT[0] = True
    wq_pf()
    a.label("L_nopfw")
    a(f"s_cmp_eq_u32 s{sKIND}, 3")
    a("s_cbranch_scc1 L_GB")
    a(f"s_lshl_b32 s{sT0}, s{sWAVE}, 9")
    a(f"s_add_u32 s{sT0}, s{sT0}, s{sT1}")
    a(f"s_lshl4_add_u32 s{sT0}, s{sT0}, s{sT2}")
    a(f"s_lshl_b32 s{sT0}, s{sT0}, 6")
    a("v_lshlrev_b32 v6, 16, v14")
    a("v_lshl_add_u32 v6, v15, 4, v6")
    a(f"s_movk_i32 s{sT3}, 8192")
    a(f"s_lshr_b32 s{sT4}, s{sT2}, 2")
    a(f"s_lshl2_add_u32 s{sT4}, s{sT1}, s{sT4}")
    a(f"s_mul_i32 s{sT4}, s{sT4}, {NREP * 128}")
    if OPT["qfast"] == 1:
        a(f"s_bfe_u32 s{sCNT}, s{sT2}, 0x10001")
    else:
        a(f"s_and_b32 s{sCNT}, s{sT2}, 2")
        a(f"s_add_u32 s{sCNT}, s{sCNT}, s{sWAVE}")
    a(f"s_lshl2_add_u32 s{sT4}, s{sCNT}, s{sT4}")
    a(f"s_add_u32 s{sT4}, s{sT4}, {FL:#x}")
    a(f"v_and_b32 v96, {NREP - 1}, v0")
    a(f"v_lshl_add_u32 v96, v96, 7, s{sT4}")
    a("s_waitcnt lgkmcnt(0)")
    base(sBB, sWQ, sT0)
    a(f"global_load_dword v12, v4, {sp(sWS)} sc1      ; epoch")
    if OPT["stag"] == 4 or OPT["qbar"]:
        a("s_barrier")
    if not OPT["ftb"]:
        a(f"s_cmp_lg_u32 s{sWAVE}, 1")
        a("s_cbranch_scc1 L_G_ld")
        a(f"global_load_dword v127, v96, {sp(sWS)} sc1")
    a.label("L_G_ld")
    for j in range(8):
        a(f"global_load_dwordx4 {vr(W + 4 * j, 4)}, v6, {sp(sBB)}{NT}")
        if j < 7:
            a(f"v_add_u32 v6, s{sT3}, v6")
    a(f"s_cmp_eq_u32 s{sKIND}, 1")
    a("s_cbranch_scc0 L_GQ2")
    a("s_branch L_GM2")
    a.label("L_GA")
    a(f"s_cmp_ge_u32 s{sWAVE}, 4")
    a("s_cbranch_scc1 L_GQA")
    if OPT["split"]:
        a(f"s_andn2_b32 s{sT0}, s{sCNT}, 1")
        a(f"s_lshl_b32 s{sT0}, s{sT0}, 5")
        a(f"s_bitcmp0_b32 s{sCNT}, 0")
        a(f"s_cselect_b32 s{sT3}, 1024, 0")
        a(f"s_add_u32 s{sT0}, s{sT0}, s{sT3}")
    else:
        a(f"s_lshl_b32 s{sT0}, s{sCNT}, 5")
    a(f"s_mul_i32 s{sT3}, s{sWAVE}, {128 * 6144}")
    a(f"s_add_u32 s{sT0}, s{sT0}, s{sT3}")
    a("v_lshlrev_b32 v5, 10, v5")
    a("v_lshl_add_u32 v5, v3, 6, v5")
    a("v_lshl_add_u32 v5, v2, 4, v5")
    a(f"v_lshl_add_u32 v5, s{sWAVE}, 8, v5")
    a("v_mul_u32_u24 v6, 49152, v1")
    if OPT["split"]:
        a("v_lshl_add_u32 v6, v2, 4, v6")
    else:
        a("v_and_b32 v7, 1, v2")
        a("v_lshl_add_u32 v6, v7, 4, v6")
        a("v_lshrrev_b32 v7, 1, v2")
        a("v_lshl_add_u32 v6, v7, 10, v6")
    a("v_mov_b32 v96, 0")
    if OPT["pfaw"] == 2:
        a(f"s_lshl1_add_u32 s{sT4}, s{sT2}, s{sWAVE}")
        a(f"s_sub_u32 s{sT4}, s{sT4}, 2")
        a("v_lshrrev_b32 v13, 1, v0")
        a(f"v_lshl_add_u32 v13, s{sT4}, 5, v13")
        a("v_mul_u32_u24 v13, 6144, v13")
        a("v_and_b32 v7, 1, v0")
        a("v_lshl_add_u32 v13, v7, 10, v13")
        a(f"v_lshl_add_u32 v13, s{sT1}, 7, v13")
    a(f"s_movk_i32 s{sT3}, 6144")
    a("s_waitcnt lgkmcnt(0)")
    base(sBB, sWM, sT0)
    a(f"global_load_dwordx4 v[8:11], v5, {sp(sC)}")
    if OPT["pfaw"] == 2:
        prefetch(13, sWM, delta=4 * 6144)
        a("s_barrier")
    if OPT["abar"]:
        a("s_barrier")
        if OPT["abar"] == 2:
            a("s_waitcnt vmcnt(0)")
    a("s_branch L_G_ld")
    a.label("L_GQA")
    a("s_setprio 3")
    a("v_and_b32 v7, 15, v0")
    a("v_lshlrev_b32 v13, 10, v3")
    a("v_lshl_add_u32 v14, v7, 4, v13")
    if OPT["split"]:
        a("v_lshl_add_u32 v15, v7, 2, v13")
        a(f"s_andn2_b32 s{sT0}, s{sCNT}, 1")
        a(f"v_lshl_add_u32 v15, s{sT0}, 5, v15")
    else:
        a("v_lshl_add_u32 v15, v7, 1, v13")
        a(f"v_lshl_add_u32 v15, s{sCNT}, 5, v15")
    a("s_waitcnt lgkmcnt(0)")
    a(f"s_cmp_lg_u32 s{sWAVE}, 7")
    a("s_cbranch_scc1 L_GQA1")
    a(f"global_load_dword v12, v4, {sp(sWS)} sc1      ; epoch")
    for t in range(4):
        a(f"global_load_dwordx4 {vr(80 + 4 * t, 4)}, v14, {sp(sX)} offset:{256 * t}")
    a(f"global_load_{'dword' if OPT['split'] else 'ushort'} v13, v15, {sp(sX)}")
    a.label("L_GQA1")
    if OPT["abar"]:
        a("s_barrier")
    if OPT["clra"]:
        a(f"s_cmp_eq_u32 s{sWAVE}, 6")
        a("s_cbranch_scc1 L_GC")
    if OPT["nm"]:
        a(f"s_sub_u32 s{sT4}, s{sWAVE}, 4")
        a(f"s_cmp_ge_u32 s{sT4}, {OPT['nm']}")
        a("s_cbranch_scc1 L_GQA2")
        a(f"s_lshr_b32 s{sT0}, s{sT2}, 1")
        a(f"s_lshl2_add_u32 s{sT0}, s{sT4}, s{sT0}")
        a(f"s_add_u32 s{sT0}, s{sT0}, {8 * OPT['nq'] + 4 * OPT['nb']}")
        a("v_lshrrev_b32 v14, 3, v0")
        a("v_and_b32 v15, 7, v0")
        wq_pf()
    a("s_branch L_GQA2")
    if OPT["clra"]:
        a.label("L_GC")
        a(f"s_mul_i32 s{sT0}, s{sCNT}, {CLR_PER_WG * 1024}")
        a("v_lshlrev_b32 v6, 4, v0")
        for i in range(4):
            a(f"v_mov_b32 v{8 + i}, -1")
        base(sBA, sWS, sT0, CLR + 4096)
        a(f"global_load_dword v12, v4, {sp(sWS)} sc1      ; epoch")
        for i in range(CLR_PER_WG):
            a(f"global_store_dwordx4 v6, v[8:11], {sp(sBA)} offset:{1024 * i - 4096} sc1")
        base(sBB, sWS, None, CF)
        a(f"v_lshlrev_b32_e64 v5, 7, s{sCNT}")
        a("s_waitcnt vmcnt(0)")
        make_tag(12)
        a(f"v_mov_b32 v6, s{sTAG}")
        set_exec(1)
        a(f"global_store_dword v5, v6, {sp(sBB)} sc1")
        set_exec(-1)
        a("s_branch L_GQA2")
        a.label("L_GB")
        a("s_waitcnt lgkmcnt(0)")
        a(f"global_load_dword v12, v4, {sp(sWS)} sc1      ; epoch")
        a("s_branch L_GB2")
    else:
        a.label("L_GB")
        a(f"s_cmp_lg_u32 s{sWAVE}, 7")
        a("s_cbranch_scc1 L_GB1")
        a("s_setprio 3")
        a(f"s_mul_i32 s{sT0}, s{sCNT}, {CLR_PER_WG * 1024}")
        a("v_lshlrev_b32 v6, 4, v0")
        for i in range(4):
            a(f"v_mov_b32 v{8 + i}, -1")
        a("s_waitcnt lgkmcnt(0)")
        base(sBA, sWS, sT0, CLR + 4096)
        a(f"global_load_dword v12, v4, {sp(sWS)} sc1      ; epoch")
        for i in range(CLR_PER_WG):
            a(f"global_store_dwordx4 v6, v[8:11], {sp(sBA)} offset:{1024 * i - 4096} sc1")
        a("s_branch L_GB2")


def ids():
    a(f"s_mov_b32 s{sG}, s{sT1}")
    a(f"s_mov_b32 s{sM}, s{sT2}")
    sels()
    if OPT["stamps"]:
        a("s_mov_b32 m0, 0")
    if OPT["probe"]:
        a("v_mov_b32 v208, s100")
        a("v_mov_b32 v209, s100")
        a("v_mov_b32 v210, 0")
        a(f"s_getreg_b32 s100, hwreg(HW_REG_XCC_ID, 0, 4)")
        a("v_mov_b32 v211, s100")


def silu_frag():
    unpack(80, 8, 4)
    for i in range(8):
        a(f"v_mul_f32 v{88 + i}, {0x80000000 | LOG2E:#x}, v{80 + i}")
    for i in range(8):
        a(f"v_exp_f32 v{88 + i}, v{88 + i}")
    for i in range(8):
        a(f"v_add_f32 v{88 + i}, 1.0, v{88 + i}")
    for i in range(8):
        a(f"v_rcp_f32 v{88 + i}, v{88 + i}")
    for i in range(8):
        a(f"v_mul_f32 v{80 + i}, v{80 + i}, v{88 + i}")
    for i in range(4):
        a(f"v_cvt_pk_bf16_f32 v{8 + i}, v{80 + 2 * i}, v{81 + 2 * i}")


def xcc_flag():
    a(f"s_lshr_b32 s{sT0}, s{sM}, 2")
    a(f"s_lshl2_add_u32 s{sT0}, s{sG}, s{sT0}")
    a(f"s_mul_i32 s{sT0}, s{sT0}, {NREP * 128}")
    a(f"s_and_b32 s{sT1}, s{sM}, 2")
    a(f"s_lshl1_add_u32 s{sT0}, s{sT1}, s{sT0}")
    a(f"s_add_u32 s{sT0}, s{sT0}, {FL + 16:#x}")
    a(f"v_and_b32 v5, {NREP - 1}, v0")
    a(f"v_lshl_add_u32 v5, v5, 7, s{sT0}")
    a(f"s_getreg_b32 s{sT0}, hwreg(HW_REG_XCC_ID, 0, 4)")
    a(f"s_xor_b32 s{sT0}, s{sTAG}, s{sT0}")
    a(f"v_mov_b32 v6, s{sT0}")
    a(f"global_store_dword v5, v6, {sp(sWS)}")


def q_trigger(lab):
    a(f"s_mul_i32 s{sT0}, s{sG}, {4 * NREP * 128}")
    base(sBA, sWS, sT0, FL)
    a("v_and_b32 v9, 3, v1")
    a(f"v_mul_u32_u24 v9, {NREP * 128}, v9")
    a("v_lshl_add_u32 v9, v2, 2, v9")
    a(f"s_mov_b32 s45, s{sCNT}")
    a(f"s_movk_i32 s{sCNT}, 40")
    a.label(lab)
    a(f"global_load_dword v10, v9, {sp(sBA)} sc1")
    poll_mid(sleep=2)
    a(f"v_xor_b32 v10, s{sTAG}, v10")
    a("v_cmp_gt_u32 vcc, 16, v10")
    a("s_cmp_eq_u64 vcc, 0")
    a("s_cselect_b64 vcc, -1, 0")
    poll_end(lab)
    a(f"s_mov_b32 s{sCNT}, s45")


def h_trigger(lab):
    base(sBA, sWS, None, H1 + 4)
    a("v_lshlrev_b32 v9, 7, v0")
    a(f"s_mov_b32 s45, s{sCNT}")
    a(f"s_movk_i32 s{sCNT}, 40")
    a.label(lab)
    a(f"global_load_dword v10, v9, {sp(sBA)} sc1")
    poll_mid(sleep=2)
    a(f"v_cmp_ne_u32 vcc, s{sTAG}, v10")
    poll_end(lab)
    a(f"s_mov_b32 s{sCNT}, s45")


def cf_poll():
    base(sBB, sWS, None, CF)
    a("v_and_b32 v5, 31, v0")
    a("v_lshlrev_b32 v5, 7, v5")
    lab = poll_begin()
    a(f"global_load_dword v6, v5, {sp(sBB)} sc1")
    poll_mid(sleep=4)
    a(f"v_cmp_ne_u32 vcc, s{sTAG}, v6")
    poll_end(lab)


def tile64_tail(first):
    for e in range(first, 8):
        a(mfma(ACC + 4 * e, 8, F + 4 * e))
    for e in range(8):
        a(f"v_add_f32_dpp v{80 + e}, v{ACC + 4 * e + 1}, v{ACC + 4 * e} row_shl:8 {DPPM}")
    set_exec(0x00FF00FF00FF00FF)
    a("ds_write_b128 v6, v[80:83]")
    a("ds_write_b128 v6, v[84:87] offset:16")
    set_exec(-1)


def tile64_addr():
    a("v_lshlrev_b32 v6, 8, v3")
    a("v_lshl_add_u32 v6, v15, 5, v6")
    a(f"v_lshl_add_u32 v6, s{sWAVE}, 10, v6")
    a("v_lshlrev_b32 v7, 3, v0")
    a(f"v_lshl_add_u32 v7, s{sWAVE}, 9, v7")


def tile64_sum():
    for t in range(4):
        a(f"ds_read2st64_b64 {vr(16 + 4 * t, 4)}, v7 offset0:{4 * t} offset1:{4 * t + 2}")


def sec_gm():
    HELP[0] = False
    CLS[0] = 4
    a.label("L_GM2")
    ids()
    stamp(1)
    a("s_waitcnt vmcnt(8)")
    silu_frag()
    a("v_lshlrev_b32 v5, 7, v3")
    a("v_lshl_add_u32 v5, v2, 5, v5")
    a(f"v_lshl_add_u32 v5, s{sWAVE}, 9, v5")
    perms8(W, F, waits=[6, 4, 2, 0])
    for e in range(8):
        a(mfma(ACC + 4 * e, 8, F + 4 * e))
    diagX_reduce(ACC, 48)
    set_exec(0x000F000F000F000F)
    a("ds_write_b128 v5, v[48:51]")
    a("ds_write_b128 v5, v[52:55] offset:16")
    set_exec(-1)
    a("s_waitcnt lgkmcnt(0)")
    stamp(2)
    a("s_barrier                      ; 1")
    if OPT["bhelp"]:
        a(f"s_lshl1_add_u32 s{sT0}, s{sM}, s{sWAVE}")
        a(f"s_add_u32 s{sT0}, s{sT0}, 14")
        a(f"s_mul_i32 s{sT0}, s{sT0}, {16 * 6144}")
        a(f"s_lshl_b32 s{sT1}, s{sG}, 9")
        a(f"s_add_u32 s{sT0}, s{sT0}, s{sT1}")
        a(f"s_add_u32 s{sT0}, s{sT0}, 2048")
        a("v_mul_u32_u24 v8, 6144, v1")
        a("v_lshl_add_u32 v8, v2, 7, v8")
        a(f"v_add_u32 v8, s{sT0}, v8")
        a("s_barrier")
        if OPT["hpull"]:
            a(f"s_cmp_eq_u32 s{sM}, 1")
            a("s_cbranch_scc1 L_DOWN")
        prefetch(8, sWM, delta=2 * 6144)
    a("s_branch L_DOWN")


def sec_gb():
    HELP[0] = True
    CLS[0] = 2
    a.label("L_GB1")
    a("s_waitcnt lgkmcnt(0)")
    if OPT["plan"] == 5:
        a(f"s_sub_u32 s{sT0}, s{sWAVE}, 3")
        a(f"s_cmp_ge_u32 s{sT0}, {OPT['q3']}")
        a("s_cbranch_scc1 L_GB2")
        a(f"s_and_b32 s{sT3}, s{sCNT}, 3")
        a(f"s_lshl2_add_u32 s{sT0}, s{sT0}, s{sT3}")
        a(f"s_sub_u32 s{sT0}, 7, s{sT0}")
        a(f"s_lshl_b32 s{sT0}, s{sT0}, 9")
        a(f"s_add_u32 s{sT0}, s{sT0}, s{sT1}")
        a(f"s_lshl_b32 s{sT0}, s{sT0}, 10")
        a(f"s_add_u32 s{sT0}, s{sT0}, 384")
        a(f"v_lshl_add_u32 v8, v0, 13, s{sT0}")
        prefetch(8, sWQ)
    a.label("L_GB2")
    ids()
    if OPT["ftb"]:
        a(f"s_cmp_lg_u32 s{sWAVE}, 4")
        a("s_cbranch_scc1 L_GBf")
        a(f"s_mul_i32 s{sT0}, s{sCNT}, {NREP * 128}")
        base(sBA, sWS, sT0, FL)
        a(f"v_and_b32 v9, {NREP - 1}, v0")
        a("v_lshlrev_b32 v9, 7, v9")
        a(f"global_load_dword v127, v9, {sp(sBA)} sc1")
        a.label("L_GBf")
    if OPT["qtb"]:
        a(f"s_lshl3_add_u32 s{sT0}, s{sM}, s{sWAVE}")
        a(f"s_cmp_lg_u32 s{sT0}, {11 * 8 + 5}")
        a("s_cbranch_scc1 L_GBq")
        a(f"s_lshl_b32 s{sT0}, s{sG}, 12")
        base(sBA, sWS, sT0, QS)
        a("v_lshlrev_b32 v9, 6, v0")
        a(f"global_load_dword v127, v9, {sp(sBA)} sc1")
        a.label("L_GBq")
    if OPT["h1m"] == 1:
        a(f"s_lshl3_add_u32 s{sT0}, s{sM}, s{sWAVE}")
        a(f"s_cmp_lg_u32 s{sT0}, {9 * 8 + 6}")
        a("s_cbranch_scc1 L_GBh")
        base(sBA, sWS, None, H1)
        a("v_lshlrev_b32 v9, 7, v0")
        a(f"global_load_dword v127, v9, {sp(sBA)} sc1")
        if OPT["split"]:
            a("v_add_u32 v9, 0x2000, v9")
            a(f"global_load_dword v127, v9, {sp(sBA)} sc1")
        a.label("L_GBh")
    a("v_lshlrev_b32 v5, 10, v5")
    a("v_lshl_add_u32 v5, v3, 5, v5")
    a("v_and_b32 v7, 1, v0")
    a("v_lshl_add_u32 v5, v7, 4, v5")
    a(f"v_lshl_add_u32 v16, s{sWAVE}, 7, v5")
    a(f"s_lshl_b32 s{sT0}, s{sCNT}, 7")
    a(f"s_mul_i32 s{sT3}, s{sWAVE}, {64 * 6144}")
    a(f"s_add_u32 s{sT0}, s{sT0}, s{sT3}")
    base(sBC, sWM, sT0, 2048)
    a(f"s_lshl_b32 s{sT4}, s{sCNT}, 9           ; p*512")
    a("v_mul_u32_u24 v13, 49152, v14")
    a("v_lshl_add_u32 v13, v15, 4, v13")
    a(f"s_movk_i32 s{sT3}, 6144")
    if OPT["clra"]:
        a("s_branch L_GB3")
    a(f"s_cmp_lg_u32 s{sWAVE}, 7")
    a("s_cbranch_scc1 L_GB3")
    a("s_waitcnt vmcnt(0)")
    make_tag(12)
    base(sBB, sWS, None, CF)
    a(f"v_lshlrev_b32_e64 v5, 7, s{sCNT}")
    a(f"v_mov_b32 v6, s{sTAG}")
    set_exec(1)
    a(f"global_store_dword v5, v6, {sp(sBB)} sc1")
    set_exec(-1)
    if OPT["late"] & 1:
        (h_trigger if OPT["late"] & 4 else q_trigger)("L_GBt")
    a("s_setprio 0")
    a.label("L_GB3")
    stamp(1)
    if OPT["bcoop"]:
        a(f"s_and_b32 s{sT0}, s{sCNT}, 3")
        a(f"s_lshl2_add_u32 s{sT0}, s{sWAVE}, s{sT0}")
        a(f"s_mul_i32 s{sT0}, s{sT0}, {16 * 6144}")
        a(f"s_lshl_b32 s{sT1}, s{sG}, 9")
        a(f"s_add_u32 s{sT0}, s{sT0}, s{sT1}")
        a(f"s_add_u32 s{sT0}, s{sT0}, 2048")
        a("v_mul_u32_u24 v17, 6144, v1")
        a("v_lshl_add_u32 v17, v2, 7, v17")
        a(f"v_add_u32 v17, s{sT0}, v17")
        if OPT["bcoop"] == 2:
            a(f"s_cmp_ge_u32 s{sWAVE}, 3")
            a("s_cbranch_scc1 L_GBc")
            prefetch(17, sWM, delta=2 * 6144)
            a.label("L_GBc")
    if not OPT["clra"]:
        a("s_barrier")
    if OPT["bcoop"]:
        if OPT["bcoop"] == 2:
            a(f"s_cmp_lt_u32 s{sWAVE}, 3")
            a("s_cbranch_scc1 L_GBd")
        prefetch(17, sWM, delta=2 * 6144)
        a.label("L_GBd")
        a("s_barrier")
    if OPT["b3"]:
        a(f"s_and_b32 s{sT0}, s{sCNT}, 3")
        a(f"s_lshl2_add_u32 s{sT1}, s{sWAVE}, s{sT0}")
        a(f"s_cmp_ge_u32 s{sT1}, 3")
        a("s_cbranch_scc1 L_GBe")
        a(f"s_add_u32 s{sT0}, s{sT0}, 5")
        a(f"v_lshl_add_u32 v17, s{sT0}, 6, v0")
        a("v_mul_u32_u24 v17, 6144, v17")
        a(f"s_lshl_b32 s{sT0}, s{sG}, 9")
        a(f"s_add_u32 s{sT0}, s{sT0}, {2048 + 384}")
        a(f"v_add_u32 v17, s{sT0}, v17")
        prefetch(17, sWM)
        a.label("L_GBe")
    a(f"global_load_dwordx4 v[8:11], v16, {sp(sC)}")
    for j in range(8):
        a(f"global_load_dwordx4 {vr(W + 4 * j, 4)}, v13, {sp(sBC)}{NT}")
        if j < 7:
            a(f"v_add_u32 v13, s{sT3}, v13")
    if OPT["gbe"]:
        assert OPT["gua"] <= 2 and not OPT["hp2"]
        base(sBB, sWS, None, CF)
        a("v_and_b32 v5, 31, v0")
        a("v_lshlrev_b32 v5, 7, v5")
        a(f"global_load_dword v100, v5, {sp(sBB)} sc1")
        a("s_barrier")
        gu_help(0, 32)
    ex = 2 if OPT["gbe"] else 0
    a(f"s_waitcnt vmcnt({8 + ex})")
    silu_frag()
    tile64_addr()
    perms8(W, F, waits=[6 + ex, 4 + ex, 2 + ex, ex])
    tile64_tail(0)
    a(f"s_cmp_lg_u32 s{sWAVE}, 7")
    a("s_cbranch_scc1 L_GB4")
    if OPT["clra"]:
        make_tag(12)
    if OPT["gbe"]:
        a("s_waitcnt vmcnt(1)")
        a(f"v_cmp_ne_u32 vcc, s{sTAG}, v100")
        a("s_cbranch_vccz L_GB4")
    cf_poll()
    a.label("L_GB4")
    a("s_waitcnt lgkmcnt(0)")
    stamp(2)
    a("s_barrier                      ; 1")
    a(f"s_cmp_ge_u32 s{sWAVE}, 2")
    a("s_cbranch_scc1 L_HB")
    tile64_sum()
    base(sBA, sWS, sT4, MODB)
    a("v_and_b32 v5, 2, v0")
    a("v_lshlrev_b32 v5, 7, v5")
    a("v_and_b32 v6, 32, v0")
    a("v_lshl_add_u32 v5, v6, 1, v5")
    a(f"v_lshl_add_u32 v5, s{sWAVE}, 7, v5")
    a("v_and_b32 v6, 13, v0")
    a("v_lshl_add_u32 v5, v6, 2, v5")
    a("v_bfe_u32 v6, v0, 4, 1")
    a("v_lshl_add_u32 v5, v6, 3, v5")
    a("s_waitcnt lgkmcnt(0)")
    sum8_b64(16)
    a("v_cvt_pk_bf16_f32 v12, v16, v17")
    a(f"global_store_dword v5, v12, {sp(sBA)} sc1")
    stamp(3)
    a("s_branch L_HB")


def sec_ln():
    HELP[0] = False
    CLS[0] = 3
    a.label("L_GQA2")
    if OPT["pfaw"] == 2:
        a("s_barrier")
    ids()
    stamp(1)
    a(f"s_cmp_lg_u32 s{sWAVE}, 7")
    a("s_cbranch_scc1 L_GQA3")
    a("s_waitcnt vmcnt(0)")
    make_tag(12)
    if OPT["split"]:
        a(f"s_bitcmp1_b32 s{sCNT}, 0")
        a("s_cbranch_scc1 L_LN1")
    unpack(16, 80, 16)
    a("v_pk_add_f32 v[8:9], v[16:17], v[18:19]")
    for i in range(2, 16):
        a(f"v_pk_add_f32 v[8:9], v[8:9], v[{16 + 2 * i}:{17 + 2 * i}]")
    a("v_add_f32 v8, v8, v9")
    row_allsum(8)
    a(f"v_mul_f32 v8, {INV512:#x}, v8       ; mean")
    a("v_mov_b32 v9, v8")
    for i in range(16):
        a(f"v_pk_add_f32 v[{16 + 2 * i}:{17 + 2 * i}], v[{16 + 2 * i}:{17 + 2 * i}], v[8:9] neg_lo:[0,1] neg_hi:[0,1]")
    a("v_pk_mul_f32 v[10:11], v[16:17], v[16:17]")
    for i in range(1, 16):
        a(f"v_pk_fma_f32 v[10:11], v[{16 + 2 * i}:{17 + 2 * i}], v[{16 + 2 * i}:{17 + 2 * i}], v[10:11]")
    a("v_add_f32 v10, v10, v11")
    row_allsum(10)
    a(f"v_mul_f32 v9, {INV512:#x}, v10      ; var")
    round_bf16([8, 9])
    a(f"v_add_f32 v9, {EPS:#x}, v9")
    round_bf16([9])
    a("v_sqrt_f32 v9, v9")
    round_bf16([9])
    a("v_rcp_f32 v9, v9")
    if OPT["split"]:
        unpack(10, 13, 1)
        a("v_sub_f32 v10, v10, v8")
        a("v_sub_f32 v11, v11, v8")
        round_bf16([10, 11])
        a("v_mul_f32 v10, v10, v9")
        a("v_mul_f32 v11, v11, v9")
        round_bf16([10, 11])
        a.label("L_LN1")
        a("v_lshlrev_b32 v5, 3, v0")
        a("v_lshlrev_b32 v14, 6, v3              ; b*64")
        a("v_and_b32 v8, 8, v7")
        a("v_lshl_add_u32 v14, v8, 5, v14        ; (n>>3)*256")
        a("v_and_b32 v8, 4, v7")
        a("v_lshl_add_u32 v14, v8, 3, v14        ; c'lo*32")
        a("v_and_b32 v8, 1, v7")
        a("v_lshl_add_u32 v14, v8, 4, v14        ; (d&1)*16")
        a("v_and_b32 v8, 2, v7")
        a("v_lshl_add_u32 v14, v8, 2, v14        ; (d>>1)*8")
        a(f"s_andn2_b32 s{sT0}, s{sCNT}, 1")
        a(f"s_lshl_b32 s{sT0}, s{sT0}, 8")
        a(f"s_and_b32 s{sT1}, s{sCNT}, 1")
        a(f"s_lshl_b32 s{sT1}, s{sT1}, 13")
        a(f"s_add_u32 s{sT0}, s{sT0}, s{sT1}")
        base(sBA, sWS, sT0, H1)
        a(f"v_mov_b32 v9, s{sTAG}")
        stamp(2)
        a(f"s_bitcmp1_b32 s{sCNT}, 0")
        a("s_barrier                      ; 1")
        a("ds_read2st64_b64 v[80:83], v5 offset0:0 offset1:1")
        a("ds_read2st64_b64 v[84:87], v5 offset0:2 offset1:3")
        a("s_waitcnt lgkmcnt(0)")
        a("v_pk_add_f32 v[80:81], v[80:81], v[82:83]")
        a("v_pk_add_f32 v[84:85], v[84:85], v[86:87]")
        a("v_pk_add_f32 v[80:81], v[80:81], v[84:85]")
        a("v_cvt_pk_bf16_f32 v8, v80, v81")
        a("s_cbranch_scc1 L_LN2")
        unpack(80, 8, 1)
        a("v_add_f32 v80, 1.0, v80")
        a("v_add_f32 v81, 1.0, v81")
        round_bf16([80, 81])
        a("v_pk_mul_f32 v[80:81], v[80:81], v[10:11]")
        a("v_cvt_pk_bf16_f32 v8, v80, v81")
        a.label("L_LN2")
        a(f"global_store_dwordx2 v14, v[8:9], {sp(sBA)} sc1")
    else:
        a("v_lshlrev_b32 v13, 16, v13")
        a("v_sub_f32 v13, v13, v8")
        round_bf16([13])
        a("v_mul_f32 v13, v13, v9")
        round_bf16([13])
        a("v_lshlrev_b32 v5, 7, v3")
        a("v_lshl_add_u32 v5, v7, 2, v5")
        a("v_add_u32 v10, 64, v5")
        a("v_lshlrev_b32 v14, 6, v3              ; b*64")
        a("v_and_b32 v8, 8, v7")
        a("v_lshl_add_u32 v14, v8, 2, v14        ; c'lo*32")
        a("v_and_b32 v8, 2, v7")
        a("v_lshl_add_u32 v14, v8, 3, v14        ; (d&1)*16")
        a("v_and_b32 v8, 4, v7")
        a("v_lshl_add_u32 v14, v8, 1, v14        ; (d>>1)*8")
        a(f"s_lshl_b32 s{sT0}, s{sCNT}, 8")
        base(sBA, sWS, sT0, H1)
        a(f"v_mov_b32 v9, s{sTAG}")
        stamp(2)
        a("s_barrier                      ; 1")
        a("ds_read2st64_b32 v[80:81], v5 offset0:0 offset1:2")
        a("ds_read2st64_b32 v[82:83], v5 offset0:4 offset1:6")
        a("ds_read2st64_b32 v[84:85], v10 offset0:0 offset1:2")
        a("ds_read2st64_b32 v[86:87], v10 offset0:4 offset1:6")
        a("s_waitcnt lgkmcnt(0)")
        a("v_pk_add_f32 v[80:81], v[80:81], v[82:83]")
        a("v_pk_add_f32 v[84:85], v[84:85], v[86:87]")
        a("v_add_f32 v80, v80, v81               ; sa")
        a("v_add_f32 v81, v84, v85               ; ca")
        round_bf16([80, 81])
        a("v_add_f32 v81, 1.0, v81")
        round_bf16([81])
        a("v_mul_f32 v81, v13, v81")
        round_bf16([81])
        a("v_add_f32 v80, v81, v80")
        a(f"v_mov_b32_dpp v81, v80 quad_perm:[1,1,3,3] {DPPM}")
        a("v_cvt_pk_bf16_f32 v8, v80, v81")
        set_exec(0x5555555555555555)
        a(f"global_store_dwordx2 v14, v[8:9], {sp(sBA)} sc1")
        set_exec(-1)
    stamp(3)
    if OPT["late"] & 2:
        (h_trigger if OPT["late"] & 4 else q_trigger)("L_GAt")
    if OPT["bhelp"]:
        a("s_barrier                      ; 1b")
    a("s_branch L_DOWN")
    a.label("L_GQA3")
    if OPT["hpull"]:
        a(f"global_load_dword v12, v4, {sp(sWS)} sc1      ; epoch")
        base(sBA, sWS, None, H1 + 4)
        a("v_lshlrev_b32 v5, 7, v0")
        a("s_waitcnt vmcnt(0)")
        make_tag(12)
    a("s_barrier                      ; 1")
    if OPT["bhelp"]:
        a("s_barrier                      ; 1b")
    if OPT["hpull"]:
        a(f"s_lshl_b32 s{sT0}, s{sM}, 3")
        a(f"s_add_u32 s{sT0}, s{sT0}, s{sWAVE}")
        a(f"s_cmp_lg_u32 s{sT0}, 12")
        a("s_cbranch_scc1 L_DOWN")
        a(f"s_movk_i32 s{sCNT}, 30")
        a.label("L_hp")
        a(f"global_load_dword v6, v5, {sp(sBA)} sc1")
        poll_mid()
        a(f"v_cmp_ne_u32 vcc, s{sTAG}, v6")
        poll_end("L_hp")
    a("s_branch L_DOWN")


def sec_gq():
    HELP[0] = False
    CLS[0] = 0
    a.label("L_GQ2")
    ids()
    stamp(1)
    a(f"s_lshl_b32 s{sT0}, s{sWAVE}, 10")
    base(sBA, sWS, sT0, H1)
    a(f"s_lshl_b32 s{sT0}, s{sWAVE}, 9")
    base(sBC, sWS, sT0, CF)
    a("v_lshlrev_b32 v5, 6, v1")
    a("v_and_b32 v7, 1, v0")
    a("v_lshl_add_u32 v5, v7, 5, v5")
    if OPT["split"]:
        a("v_and_b32 v7, 2, v0")
        a("v_lshl_add_u32 v5, v7, 12, v5")
    a("v_lshlrev_b32 v98, 7, v2")
    tile64_addr()
    a(f"s_lshl_b32 s{sT0}, s{sG}, 12")
    a(f"s_lshl_b32 s{sT1}, s{sM}, 6")
    a(f"s_add_u32 s{sT0}, s{sT0}, s{sT1}")
    a(f"s_and_b32 s{sT1}, s{sWAVE}, 1")
    a(f"s_lshl_b32 s{sT1}, s{sT1}, 11")
    a(f"s_add_u32 s{sT0}, s{sT0}, s{sT1}")
    a("v_and_b32 v97, 31, v0")
    a(f"v_lshl_add_u32 v97, v97, 2, s{sT0}")
    a("v_and_b32 v99, 32, v0")
    a("v_lshl_add_u32 v97, v99, 5, v97")
    a("v_lshlrev_b32 v99, 1, v97")
    base(sBB, sWS, None, QS)
    a.label("L_GQ3")
    if OPT["woe"]:
        a(f"s_cmp_lt_u32 s{sWAVE}, 4")
        a("s_cbranch_scc1 L_GQ4")
        a(f"s_lshl1_add_u32 s{sT0}, s{sM}, s{sWAVE}")
        a(f"s_lshl_b32 s{sT1}, s{sG}, 6")
        a(f"s_add_u32 s{sT0}, s{sT0}, s{sT1}")
        a(f"s_add_u32 s{sT0}, s{sT0}, 28")
        a(f"s_lshl_b32 s{sT0}, s{sT0}, 13")
        a(f"v_lshl_add_u32 v8, v0, 7, s{sT0}")
        prefetch(8, sWO, delta=1024)
        a.label("L_GQ4")
    a("s_waitcnt vmcnt(8)")
    make_tag(12)
    a(f"s_getreg_b32 s{sT0}, hwreg(HW_REG_XCC_ID, 0, 4)")
    a(f"s_xor_b32 s{sT0}, s{sTAG}, s{sT0}")
    a(f"v_mov_b32 v101, s{sT0}")
    perms8(W, F, waits=[6, 4, 2, 0])
    stamp(4)
    if OPT["h1m"] >= 2:
        a(f"s_lshl_b32 s{sT0}, s{sG}, 10")
        a(f"s_add_u32 s{sT0}, s{sT0}, {H1 + 4:#x}")
        a("v_and_b32 v9, 7, v0")
        a(f"v_lshl_add_u32 v9, v9, 7, s{sT0}")
        a(f"s_movk_i32 s{sCNT}, 40")
        a.label("L_GQh")
        a(f"global_load_dword v10, v9, {sp(sWS)} sc1")
        poll_mid()
        a(f"v_cmp_ne_u32 vcc, s{sTAG}, v10")
        poll_end("L_GQh")
        if OPT["h1m"] > 2:
            a(f"s_sleep {OPT['h1m'] - 2}")
    lab = poll_begin()
    a(f"global_load_dwordx4 v[8:11], v5, {sp(sBA)} sc1")
    a(f"global_load_dwordx4 v[12:15], v5, {sp(sBA)} offset:16 sc1")
    a(f"global_load_dword v84, v98, {sp(sBC)} sc1")
    if not OPT["qtb"]:
        a(f"global_load_dword v127, v97, {sp(sBB)} sc1")
    poll_mid()
    if OPT["split"]:
        pay = [8, 12, 10, 14]
        for i in range(4):
            a(f"v_lshlrev_b32 v{88 + 2 * i}, 16, v{pay[i]}")
            a(f"v_and_b32 v{89 + 2 * i}, 0xffff0000, v{pay[i]}")
        a(f"v_xor_b32 v80, s{sTAG}, v9")
        a(f"v_xor_b32 v81, s{sTAG}, v11")
        for i in range(8):
            a(f"v_add_f32_dpp v{88 + i}, v{88 + i}, v{88 + i} quad_perm:[2,3,0,1] {DPPM}")
        for i in range(4):
            a(f"v_cvt_pk_bf16_f32 v{8 + i}, v{88 + 2 * i}, v{89 + 2 * i}")
        a(f"v_xor_b32 v82, s{sTAG}, v13")
        a(f"v_xor_b32 v83, s{sTAG}, v15")
        interleave([mfma(ACC + 4 * e, 8, F + 4 * e) for e in range(2)],
                   [f"v_xor_b32 v84, s{sTAG}, v84", "v_or3_b32 v80, v80, v81, v82", "v_or3_b32 v80, v80, v83, v84", "v_cmp_ne_u32 vcc, 0, v80"], 2)
        poll_end(lab)
        tile64_tail(2)
    else:
        a(f"v_xor_b32 v80, s{sTAG}, v9")
        a(f"v_xor_b32 v81, s{sTAG}, v11")
        a("v_mov_b32 v9, v12")
        a("v_mov_b32 v11, v14")
        a(f"v_xor_b32 v82, s{sTAG}, v13")
        a(f"v_xor_b32 v83, s{sTAG}, v15")
        interleave([mfma(ACC + 4 * e, 8, F + 4 * e) for e in range(2)],
                   [f"v_xor_b32 v84, s{sTAG}, v84", "v_or3_b32 v80, v80, v81, v82", "v_or3_b32 v80, v80, v83, v84", "v_cmp_ne_u32 vcc, 0, v80"], 2)
        poll_end(lab)
        tile64_tail(2)
    a("s_waitcnt lgkmcnt(0)")
    stamp(5)
    a(f"s_cmp_ge_u32 s{sWAVE}, 2")
    a("s_barrier                      ; 1")
    a("s_cbranch_scc1 L_GQ5")
    tile64_sum()
    base(sBA, sWS, None, H2G)
    a("s_waitcnt lgkmcnt(0)")
    sum8_b64(16)
    a("v_cvt_pk_bf16_f32 v100, v16, v17")
    a(f"global_store_dword v97, v100, {sp(sBB)}")
    if OPT["qfast"] != 1:
        if not OPT["qfast"]:
            a("s_waitcnt vmcnt(0)")
        set_exec((1 << NREP) - 1 if NREP < 64 else -1)
        a(f"global_store_dword v96, v101, {sp(sWS)}")
        set_exec(-1)
    a(f"global_store_dwordx2 v99, v[100:101], {sp(sBA)} sc1")
    stamp(6)
    a("s_branch L_WO")
    a.label("L_GQ5")
    if OPT["qfast"] == 1:
        a(f"s_cmp_lg_u32 s{sWAVE}, 2")
        a("s_cbranch_scc1 L_WO")
        set_exec((1 << NREP) - 1 if NREP < 64 else -1)
        a(f"global_store_dword v96, v101, {sp(sWS)}")
        set_exec(-1)
    a("s_branch L_WO")


WD = 128


def down_loads():
    a(f"s_lshr_b32 s{sT2}, s{sM}, 1")
    a(f"s_lshl2_add_u32 s{sT0}, s{sG}, s{sT2}")
    a(f"s_lshl_b32 s{sT0}, s{sT0}, 5")
    a(f"s_lshl_b32 s{sT2}, s{sWAVE}, 18")
    a(f"s_add_u32 s{sT0}, s{sT0}, s{sT2}")
    base(sBB, sWD, sT0, 4096)
    a("v_lshlrev_b32 v6, 13, v1")
    a("v_lshl_add_u32 v6, v2, 3, v6")
    a("v_add_u32 v7, 0x20000, v6")
    for f in range(2):
        for j in range(8):
            a(f"global_load_dwordx2 {vr(WD + 16 * f + 2 * j, 2)}, v{7 if f else 6}, {sp(sBB)} offset:{1024 * j - 4096}{NTW}")


def gu_item():
    a(f"s_bitcmp0_b32 s{sT4}, 4")
    a(f"s_cselect_b64 s[0:1], {sp(sWU)}, {sp(sWG)}")
    a(f"s_and_b32 s{sT0}, s{sT4}, 15")
    a(f"s_lshl_b32 s{sT0}, s{sT0}, 1")
    a(f"s_cmp_lt_u32 s{sT4}, 32")
    a(f"s_addc_u32 s{sT0}, s{sT0}, 0")
    a(f"s_mul_i32 s{sT0}, s{sT0}, {16 * 3584}")
    a(f"s_mul_i32 s{sT4}, s{sG}, 448")
    a(f"s_andn2_b32 s{sT4}, s{sT4}, 127")
    a(f"s_add_u32 s{sT0}, s{sT0}, s{sT4}")
    a("v_mul_u32_u24 v13, 3584, v1")
    a("v_lshl_add_u32 v13, v2, 7, v13")
    a(f"v_add_u32 v13, s{sT0}, v13")
    prefetch(13, 0, True, 2 * 3584)


def gu_help(lo, hi):
    for first in range(lo, hi, 32):
        lab = uid("gh")
        a(f"s_bfe_u32 s{sT2}, s{sM}, 0x20001")
        a(f"s_sub_u32 s{sT2}, 3, s{sT2}")
        a(f"s_lshl3_add_u32 s{sT2}, s{sT2}, s{sWAVE}")
        if hi - first < 32:
            a(f"s_cmp_ge_u32 s{sT2}, {hi - first}")
            a(f"s_cbranch_scc1 {lab}")
        a(f"s_bitcmp0_b32 s{sT2}, 4")
        a(f"s_cselect_b64 {sp(sBA)}, {sp(sWU)}, {sp(sWG)}")
        a(f"s_and_b32 s{sT0}, s{sT2}, 15")
        a(f"s_lshl2_add_u32 s{sT0}, s{sT0}, {2 if first == 0 else 0}")
        a(f"s_mul_i32 s{sT0}, s{sT0}, {8 * 3584}")
        a(f"s_mul_i32 s{sT1}, s{sG}, 448")
        a(f"s_andn2_b32 s{sT1}, s{sT1}, 127")
        a(f"s_add_u32 s{sT0}, s{sT0}, s{sT1}")
        a("v_mul_u32_u24 v13, 3584, v1")
        a("v_lshl_add_u32 v13, v2, 7, v13")
        a(f"v_add_u32 v13, s{sT0}, v13")
        prefetch(13, sBA, True, 2 * 3584)
        a.label(lab)


def wo_pf(first, per):
    for r in range((per + 7) // 8):
        n = min(8, per - 8 * r)
        lab = uid("wp")
        if n < 8:
            a(f"s_cmp_ge_u32 s{sWAVE}, {n}")
            a(f"s_cbranch_scc1 {lab}")
        a(f"s_mul_i32 s{sT0}, s{sT2}, {per}")
        a(f"s_add_u32 s{sT0}, s{sT0}, s{sWAVE}")
        a(f"s_lshl_b32 s{sT4}, s{sG}, 6")
        a(f"s_add_u32 s{sT0}, s{sT0}, s{sT4}")
        a(f"s_add_u32 s{sT0}, s{sT0}, {first + 8 * r}")
        a(f"s_lshl_b32 s{sT0}, s{sT0}, 13")
        a(f"v_lshl_add_u32 v8, v0, 7, s{sT0}")
        prefetch(8, sWO, delta=1024)
        a.label(lab)


def sec_wo():
    HELP[0] = True
    CLS[0] = 0
    a.label("L_WO")
    a(f"s_lshr_b32 s{sT1}, s{sWAVE}, 1")
    a(f"s_lshl2_add_u32 s{sT0}, s{sG}, s{sT1}")
    a(f"s_lshl_b32 s{sT0}, s{sT0}, 5")
    a(f"s_and_b32 s{sT2}, s{sWAVE}, 1")
    a(f"s_add_u32 s{sT0}, s{sT0}, s{sT2}")
    a(f"s_lshl_b32 s{sT0}, s{sT0}, 6            ; (512g + 128h + 4*(i&1)) * 16")
    a(f"s_add_u32 s{sT0}, s{sT0}, s{sM}")
    a(f"s_lshl_b32 s{sT0}, s{sT0}, 6")
    base(sBB, sWO, sT0)
    a("v_and_b32 v9, 15, v0")
    a("v_and_b32 v6, 1, v3")
    a("v_lshlrev_b32 v6, 16, v6")
    a("v_lshrrev_b32 v5, 1, v3")
    a("v_lshl_add_u32 v6, v5, 10, v6")
    a(f"v_lshl_add_u32 v6, v9, {3 if OPT['wod'] else 2}, v6")
    a(f"s_movk_i32 s{sT3}, 8192")
    a(f"s_lshl3_add_u32 s{sT0}, s{sG}, s{sWAVE}")
    a(f"s_lshl_b32 s{sT0}, s{sT0}, 11")
    base(sBA, sWS, sT0, H3O)
    a("v_lshlrev_b32 v5, 4, v0")
    a(f"s_lshr_b32 s{sT2}, s{sM}, 1")
    a("s_barrier")
    if OPT["touch"]:
        a(f"s_cmp_lg_u32 s{sWAVE}, s{sT2}")
        a("s_cbranch_scc1 L_WOt")
        a(f"global_load_dwordx4 v[64:67], v5, {sp(sBA)} sc1")
        a(f"global_load_dwordx4 v[68:71], v5, {sp(sBA)} offset:1024 sc1")
        a.label("L_WOt")
    rest = 64 - 4 * OPT["woa"] - 8 * OPT["wob"]
    if OPT["woq"] and rest and not OPT["wod"]:
        wo_pf(4 * OPT["woa"], rest // 8)
    if OPT["guq"]:
        a(f"s_sub_u32 s{sT4}, 7, s{sWAVE}")
        a(f"s_cmp_ge_u32 s{sT4}, {OPT['guq']}")
        a("s_cbranch_scc1 L_WOu")
        a(f"s_lshl3_add_u32 s{sT4}, s{sT4}, s{sT2}")
        a(f"s_add_u32 s{sT4}, s{sT4}, 24")
        gu_item()
        a.label("L_WOu")
    for j in range(8):
        for ks in range(2):
            if OPT["wod"]:
                a(f"global_load_dwordx2 {vr(128 + 16 * ks + 2 * j, 2)}, v6, {sp(sBB)} offset:{2048 * ks} nt")
                continue
            for ch in range(2):
                a(f"global_load_dword v{128 + 16 * ks + 8 * ch + j}, v6, {sp(sBB)} offset:{2048 * ks + 64 * ch}{NTW}")
        if j < 7:
            a(f"v_add_u32 v6, s{sT3}, v6")
    a(f"s_lshl2_add_u32 s{sT0}, s{sG}, s{sT1}")
    a(f"s_lshl_b32 s{sT0}, s{sT0}, 7")
    base(sBC, sWS, sT0, H3ML)
    a("v_lshlrev_b32 v6, 5, v3")
    a("v_lshlrev_b32 v12, 8, v3")
    a(f"v_lshl_add_u32 v12, v9, {4 if OPT['wod'] else 3}, v12")
    a(f"v_lshl_add_u32 v12, s{sWAVE}, 10, v12")
    a(f"s_lshl4_add_u32 s{sT0}, s{sG}, s{sM}")
    a(f"s_lshl1_add_u32 s{sT0}, s{sT0}, s{sWAVE}")
    a(f"s_lshl_b32 s{sT0}, s{sT0}, 7")
    base(sBB, sWS, sT0, H4)
    a("v_and_b32 v13, 16, v0")
    a("v_lshlrev_b32 v13, 4, v13")
    a("v_and_b32 v10, 32, v0")
    a("v_lshl_add_u32 v13, v10, 1, v13")
    a("v_lshl_add_u32 v13, v9, 2, v13")
    a(f"s_lshl4_add_u32 s{sT0}, s{sG}, s{sM}")
    a(f"s_lshl_b32 s{sT0}, s{sT0}, 6")
    a(f"s_add_u32 s{sT0}, s{sT0}, {GATE:#x}")
    a(f"v_mov_b32 v14, s{sT0}")
    a(f"v_add_u32 v15, {H4B - H4:#x}, v13")
    a("s_waitcnt vmcnt(0)")
    stamp(7)
    if OPT["gate"] and OPT["gatew"]:
        a(f"s_cmp_lg_u32 s{sWAVE}, 7")
        a("s_cbranch_scc1 L_WOg")
        set_exec(1)
        a(f"global_store_dword v14, v4, {sp(sWS)} sc1")
        set_exec(-1)
        a.label("L_WOg")
    for ks in range(2):
        for ch in range(2):
            for eo in range(2):
                for x in range(4):
                    if OPT["wod"]:
                        src = 128 + 16 * ks + 4 * x + ch
                        a(f"v_perm_b32 v{32 + 16 * ks + 8 * ch + 4 * eo + x}, v{src + 2}, v{src}, s{sHI if eo else sLO}")
                        continue
                    src = 128 + 16 * ks + 8 * ch + 2 * x
                    a(f"v_perm_b32 v{32 + 16 * ks + 8 * ch + 4 * eo + x}, v{src + 1}, v{src}, s{sHI if eo else sLO}")
    lab = poll_begin()
    a(f"global_load_dwordx4 v[72:75], v6, {sp(sBC)} sc1")
    a(f"global_load_dwordx4 v[76:79], v6, {sp(sBC)} offset:16 sc1")
    poll_mid(sleep=OPT["mls"])
    for ins in sentinel_ops(range(72, 80), 8):
        a(ins)
    poll_end(lab)
    a(f"global_load_dwordx4 v[64:67], v5, {sp(sBA)} sc1")
    a(f"global_load_dwordx4 v[68:71], v5, {sp(sBA)} offset:1024 sc1")
    a("v_max3_f32 v8, v72, v74, v76")
    a("v_max_f32 v8, v8, v78")
    for s in range(4):
        a(f"v_sub_f32 v{72 + 2 * s}, v{72 + 2 * s}, v8")
    for s in range(4):
        a(f"v_exp_f32 v{72 + 2 * s}, v{72 + 2 * s}")
    a("v_mul_f32 v9, v72, v73")
    for s in range(1, 4):
        a(f"v_fmac_f32 v9, v{72 + 2 * s}, v{73 + 2 * s}")
    a("v_rcp_f32 v9, v9")
    for s in range(4):
        a(f"v_mul_f32 v{80 + s}, v{72 + 2 * s}, v9")
    stamp(8)
    a(f"s_mov_b32 s{sCNT}, {OPT['limit']}")
    a("s_branch L_WO2")
    a.label("L_WO1")
    a(f"global_load_dwordx4 v[64:67], v5, {sp(sBA)} sc1")
    a(f"global_load_dwordx4 v[68:71], v5, {sp(sBA)} offset:1024 sc1")
    a.label("L_WO2")
    poll_mid()
    interleave([mfma(16 + 4 * c, 64, 32 + 4 * c) for c in range(3)], sentinel_ops(range(64, 72), 8), 2)
    poll_end("L_WO1")
    a(mfma(28, 64, 44))
    for c in range(4):
        a(mfma(16 + 4 * c, 68, 48 + 4 * c, 16 + 4 * c))
    for ch in range(2):
        for c in (2 * ch, 2 * ch + 1):
            a(f"v_pk_mul_f32 v[{16 + 4 * c}:{17 + 4 * c}], v[{16 + 4 * c}:{17 + 4 * c}], v[80:81]")
            a(f"v_pk_fma_f32 v[{16 + 4 * c}:{17 + 4 * c}], v[{18 + 4 * c}:{19 + 4 * c}], v[82:83], v[{16 + 4 * c}:{17 + 4 * c}]")
        a(f"v_add_f32 v{84 + 2 * ch}, v{16 + 8 * ch}, v{17 + 8 * ch}")
        a(f"v_add_f32 v{85 + 2 * ch}, v{20 + 8 * ch}, v{21 + 8 * ch}")
        a(f"ds_write_b64 v12, v[{84 + 2 * ch}:{85 + 2 * ch}] offset:{(8 if OPT['wod'] else 128) * ch}")
    a("s_waitcnt lgkmcnt(0)")
    stamp(9)
    a("s_barrier                      ; 3")
    a(f"s_cmp_ge_u32 s{sWAVE}, 2")
    a("s_cbranch_scc1 L_WOe" if OPT["wbl"] else "s_cbranch_scc1 L_fin")
    tile64_sum()
    a("s_waitcnt lgkmcnt(0)")
    sum8_b64(16)
    a("v_cvt_pk_bf16_f32 v8, v16, v17")
    a(f"global_store_dword v13, v8, {sp(sBB)} sc1")
    if OPT["h4b"]:
        a(f"global_store_dword v15, v8, {sp(sBB)} sc1")
    stamp(10)
    a.label("L_fin")
    finish_wave()
    if OPT["wbl"]:
        a.label("L_WOe")
        a(f"s_lshl3_add_u32 s{sT0}, s{sM}, s{sWAVE}")
        a(f"s_cmp_lg_u32 s{sT0}, 2")
        a("s_cbranch_scc1 L_fin")
        if OPT["wbl"] > 1:
            a(f"s_sleep {OPT['wbl']}")
        a("buffer_wbl2 sc1")
        a("s_waitcnt vmcnt(0)")
        finish_wave()


def sec_down():
    HELP[0] = True
    CLS[0] = 0
    a.label("L_HB")
    a("s_barrier")
    a(f"s_bfe_u32 s{sT2}, s{sM}, 0x20001")
    rest = 64 - 4 * OPT["woa"]
    if not OPT["woq"] and rest:
        wo_pf(4 * OPT["woa"], rest // 4)
    if OPT["wob"]:
        a(f"s_cmp_lg_u32 s{sM}, 11")
        a("s_cbranch_scc1 L_HBo")
        a(f"s_mov_b32 s{sT2}, 0")
        wo_pf(56, 8)
        a.label("L_HBo")
    if OPT["guq"]:
        assert 16 * OPT["gua"] + 24 + 8 * OPT["guq"] == 64 and not OPT["gbe"]
        gu_help(0, 24)
    elif OPT["gua"] < 4:
        gu_help(32 if OPT["gbe"] else 0, 16 * (4 - OPT["gua"]))
    if OPT["wdh"]:
        a(f"s_bfe_u32 s{sT2}, s{sM}, 0x20001")
        a(f"s_cmp_eq_u32 s{sT2}, 0")
        a("s_cbranch_scc1 L_HBd")
        a(f"s_mul_i32 s{sT0}, s{sWAVE}, 3")
        a(f"s_add_u32 s{sT0}, s{sT0}, s{sT2}")
        a(f"s_add_u32 s{sT0}, s{sT0}, {4 * OPT['wdh'] - 1}")
        a(f"s_cmp_ge_u32 s{sT0}, 28")
        a("s_cbranch_scc1 L_HBd")
        a(f"s_lshl_b32 s{sT0}, s{sT0}, 9")
        a(f"s_add_u32 s{sT0}, s{sT0}, s{sG}")
        a(f"s_lshl_b32 s{sT0}, s{sT0}, 7")
        a(f"v_lshl_add_u32 v8, v0, 10, s{sT0}")
        a("s_waitcnt vmcnt(0)")
        prefetch(8, sWD, delta=8192)
        a.label("L_HBd")
    if OPT["xml"]:
        pass
    if OPT["gate"]:
        a(f"s_lshl3_add_u32 s{sT0}, s{sM}, s{sWAVE}")
        a(f"s_cmp_lg_u32 s{sT0}, {9 * 8 + 7}")
        a("s_cbranch_scc1 L_fin")
        a(f"s_lshl_b32 s{sT0}, s{sG}, 9")
        base(sBA, sWS, sT0, H3ML)
        a(f"s_lshl_b32 s{sT0}, s{sG}, 7")
        base(sBB, sWS, sT0, GATE + 0x2000)
        a("v_lshlrev_b32 v5, 3, v0")
        a(f"s_movk_i32 s{sCNT}, 100")
        a.label("L_HBg")
        a(f"global_load_dword v6, v5, {sp(sBA)} sc1")
        poll_mid()
        a("v_cmp_eq_u32 vcc, -1, v6")
        poll_end("L_HBg")
        stamp(8)
        set_exec(1)
        a(f"global_store_dword v4, v4, {sp(sBB)} sc1")
    finish_wave()
    a.label("L_DOWN")
    a("s_setprio 0")
    a("s_barrier")
    a(f"s_lshr_b32 s{sT2}, s{sM}, 1")
    if OPT["vh"]:
        a(f"s_lshl3_add_u32 s{sT0}, s{sT2}, s{sG}")
        a(f"s_lshl_b32 s{sT0}, s{sT0}, 4")
        a(f"s_lshr_b32 s{sT4}, s{sWAVE}, 1")
        a(f"s_add_u32 s{sT0}, s{sT0}, s{sT4}")
        a(f"s_lshl_b32 s{sT0}, s{sT0}, 3")
        a(f"s_or_b32 s{sT4}, s{sWAVE}, 6")
        a(f"s_add_u32 s{sT0}, s{sT0}, s{sT4}")
        a(f"s_lshl_b32 s{sT0}, s{sT0}, 13")
        a(f"s_add_u32 s{sT0}, s{sT0}, {3072 * 256}")
        a(f"v_lshl_add_u32 v9, v0, 7, s{sT0}")
        prefetch(9, sV, delta=1024)
    if OPT["wod"]:
        a(f"s_cmp_ge_u32 s{sWAVE}, {OPT['wo3']}")
        a("s_cbranch_scc1 L_DN3")
        a(f"s_lshl2_add_u32 s{sT0}, s{sWAVE}, s{sT2}")
        a(f"s_sub_u32 s{sT0}, 7, s{sT0}")
        a(f"s_lshl3_add_u32 s{sT0}, s{sG}, s{sT0}")
        a(f"s_lshl_b32 s{sT0}, s{sT0}, 16")
        a(f"s_add_u32 s{sT0}, s{sT0}, 384")
        a(f"v_lshl_add_u32 v8, v0, 10, s{sT0}")
        prefetch(8, sWO)
        a.label("L_DN3")
        if OPT["woa"]:
            wo_pf(64 - 4 * OPT["woa"], OPT["woa"])
    else:
        wo_pf(0, OPT["woa"])
    if OPT["guh"]:
        a(f"s_lshl3_add_u32 s{sT4}, s{sT2}, s{sWAVE}")
        if OPT["guh"] == 1:
            a(f"s_cmp_ge_u32 s{sWAVE}, 4")
            a("s_cbranch_scc1 L_DNu")
            a(f"s_lshl2_add_u32 s{sT4}, s{sT2}, s{sWAVE}")
        a(f"s_bitcmp0_b32 s{sT4}, 4")
        a(f"s_cselect_b64 {sp(sBA)}, {sp(sWU)}, {sp(sWG)}")
        a(f"s_and_b32 s{sT0}, s{sT4}, 15")
        a(f"s_mul_i32 s{sT0}, s{sT0}, {32 * 3584}")
        a(f"s_mul_i32 s{sT1}, s{sG}, 448")
        a(f"s_andn2_b32 s{sT1}, s{sT1}, 127")
        a(f"s_add_u32 s{sT0}, s{sT0}, s{sT1}")
        a("v_mul_u32_u24 v13, 3584, v1")
        a("v_lshl_add_u32 v13, v2, 7, v13")
        a(f"v_add_u32 v13, s{sT0}, v13")
        prefetch(13, sBA, True, 2 * 3584)
        a.label("L_DNu")
    if OPT["wdl"]:
        a(f"s_cmp_lg_u32 s{sWAVE}, 7")
        a("s_cbranch_scc1 L_DNw")
        cf_poll()
        a(f"s_lshl_b32 s{sT0}, s{sG}, 9")
        base(sBA, sWS, sT0, H3ML)
        a("v_lshlrev_b32 v5, 3, v0")
        a(f"s_movk_i32 s{sCNT}, 60")
        a.label("L_DNg")
        a(f"global_load_dword v6, v5, {sp(sBA)} sc1")
        poll_mid(sleep=2)
        a("v_cmp_ne_u32 vcc, -1, v6")
        a("s_cmp_eq_u64 vcc, 0")
        a("s_cselect_b64 vcc, -1, 0")
        poll_end("L_DNg")
        a.label("L_DNw")
        a("s_barrier")
    a(f"s_cmp_eq_u32 s{sWAVE}, 7")
    a("s_cbranch_scc1 L_DN7")
    a(f"s_lshl2_add_u32 s{sT0}, s{sWAVE}, s{sT2}")
    a(f"s_lshl_b32 s{sT0}, s{sT0}, 9")
    a(f"s_add_u32 s{sT0}, s{sT0}, s{sG}")
    a(f"s_lshl_b32 s{sT0}, s{sT0}, 7")
    a(f"v_lshl_add_u32 v8, v0, 10, s{sT0}")
    if OPT["wdh"]:
        a(f"s_cmp_ge_u32 s{sWAVE}, {OPT['wdh']}")
        a("s_cbranch_scc1 L_DNr")
    a("s_waitcnt vmcnt(0)")
    prefetch(8, sWD, delta=8192)
    a.label("L_DNr")
    if OPT["wdh"]:
        a("s_waitcnt vmcnt(0)")
        a("s_barrier")
    a("s_waitcnt vmcnt(0)")
    down_loads()
    a(f"s_lshl_b32 s{sT0}, s{sWAVE}, 11")
    base(sBA, sWS, sT0, ACT)
    a("v_lshlrev_b32 v5, 4, v0")
    a("v_lshlrev_b32 v6, 7, v3")
    a("v_lshl_add_u32 v6, v2, 4, v6")
    a(f"v_lshl_add_u32 v6, s{sWAVE}, 9, v6")
    a("s_waitcnt vmcnt(0)")
    a("s_barrier")
    for f in range(2):
        for e in range(4):
            for x in range(4):
                a(f"v_perm_b32 v{48 + 16 * f + 4 * e + x}, v{WD + 16 * f + 2 * (2 * x + 1) + (e >> 1)}, "
                  f"v{WD + 16 * f + 2 * (2 * x) + (e >> 1)}, s{sHI if e & 1 else sLO}")
    stamp(11)
    a("s_barrier")
    lab = poll_begin()
    a(f"global_load_dwordx4 v[8:11], v5, {sp(sBA)} sc1")
    a(f"global_load_dwordx4 v[12:15], v5, {sp(sBA)} offset:1024 sc1")
    poll_mid()
    interleave([mfma(16 + 4 * e, 8, 48 + 4 * e) for e in range(3)], sentinel_ops(range(8, 16), 7), 2)
    poll_end(lab)
    stamp(5)
    if OPT["stamps"] == 1:
        a(f"v_writelane_b32 v126, s{sCNT}, 6")
    a(mfma(28, 8, 60))
    for e in range(4):
        a(mfma(16 + 4 * e, 12, 64 + 4 * e, 16 + 4 * e))
    for e in range(4):
        for b0 in range(2):
            a(f"v_add_f32_dpp v{32 + 4 * b0 + e}, v{16 + 4 * e + 2 * b0 + 1}, v{16 + 4 * e + 2 * b0} row_shl:4 {DPPM}")
    set_exec(0x0F000F00000F000F)
    a("ds_write_b128 v6, v[32:35] offset:10240")
    a("ds_write_b128 v6, v[36:39] offset:10304")
    a("s_waitcnt lgkmcnt(0)")
    stamp(12)
    a("s_barrier                      ; 5")
    finish_wave()
    a.label("L_DN7")
    if OPT["wdh"]:
        a("s_barrier")
    a("s_barrier                      ; 3")
    if not OPT["wdl"]:
        cf_poll()
    if not OPT["xgate"]:
        a("s_barrier                      ; 4")
    a(f"s_lshr_b32 s{sT1}, s{sM}, 1")
    a(f"s_lshl2_add_u32 s{sT2}, s{sG}, s{sT1}       ; col0/16")
    a(f"s_lshl_b32 s{sT0}, s{sG}, 9")
    a(f"s_and_b32 s{sT3}, s{sT1}, 1")
    a(f"s_lshl_b32 s{sT3}, s{sT3}, 5")
    a(f"s_add_u32 s{sT0}, s{sT0}, s{sT3}")
    a(f"s_and_b32 s{sT3}, s{sT1}, 2")
    a(f"s_lshl2_add_u32 s{sT0}, s{sT3}, s{sT0}")
    base(sBB, sWS, sT0, MODB + 3 * 4096)
    a(f"s_lshl_b32 s{sT3}, s{sG}, 9")
    a(f"s_add_u32 s{sT0}, s{sT0}, s{sT3}")
    base(sBA, sWS, sT0, X1)
    a("v_and_b32 v7, 4, v0")
    a("v_lshlrev_b32 v5, 6, v7")
    a("v_lshl_add_u32 v5, v3, 6, v5")
    a("v_and_b32 v7, 10, v0")
    a("v_lshl_add_u32 v5, v7, 1, v5")
    a("v_and_b32 v7, 0x1c0, v5")
    a("v_add_u32 v12, v7, v5")
    a(f"s_lshl_b32 s{sT0}, s{sT2}, 5")
    base(sBC, sOUT, sT0)
    a("v_and_b32 v7, 15, v0")
    a("v_lshlrev_b32 v11, 10, v3")
    a("v_lshl_add_u32 v11, v7, 1, v11")
    a("v_and_b32 v7, 1, v0")
    a("v_lshlrev_b32 v7, 4, v7")
    a("v_lshlrev_b32 v6, 2, v0")
    lab = poll_begin()
    a(f"global_load_dword v8, v12, {sp(sBA)} sc1")
    a(f"global_load_dword v9, v5, {sp(sBB)} sc1")
    poll_mid()
    for ins in sentinel_ops([8, 9], 10):
        a(ins)
    poll_end(lab)
    if OPT["xgate"]:
        if OPT["xgate"] > 1:
            a(f"s_sleep {OPT['xgate'] - 1}")
        a("s_barrier                      ; 4")
    a("v_lshrrev_b32 v8, v7, v8")
    a("v_lshrrev_b32 v9, v7, v9")
    a("v_lshlrev_b32 v8, 16, v8              ; x1")
    a("v_lshlrev_b32 v9, 16, v9              ; gb")
    if OPT["epe"]:
        a("s_cmp_lg_u32 s2, 8")
        a("s_cbranch_scc1 L_DNe")
        a(f"v_mov_b32 v10, s{sTAG}")
        set_exec(1)
        a(f"global_store_dword v4, v10, {sp(sWS)} sc1")
        set_exec(-1)
        a.label("L_DNe")
    stamp(9)
    a("s_barrier                      ; 5")
    for t in range(7):
        a(f"ds_read2st64_b32 v[{16 + 2 * t}:{17 + 2 * t}], v6 offset0:{40 + 2 * t} offset1:{41 + 2 * t}")
    a("s_waitcnt lgkmcnt(3)")
    a("v_pk_add_f32 v[16:17], v[16:17], v[18:19]")
    a("v_pk_add_f32 v[20:21], v[20:21], v[22:23]")
    a("v_pk_add_f32 v[16:17], v[16:17], v[20:21]")
    a("s_waitcnt lgkmcnt(0)")
    a("v_pk_add_f32 v[24:25], v[24:25], v[26:27]")
    a("v_pk_add_f32 v[16:17], v[16:17], v[28:29]")
    a("v_pk_add_f32 v[16:17], v[16:17], v[24:25]")
    a("v_add_f32 v16, v16, v17")
    a("v_fma_f32 v16, v9, v16, v8")
    a("v_cvt_pk_bf16_f32 v16, v16, v16")
    a(f"global_store_short v11, v16, {sp(sBC)}" + ("", " sc1", " nt", " sc0 sc1")[OPT["outp"]])
    stamp(13)
    if not OPT["epe"]:
        a("s_cmp_lg_u32 s2, 8")
        a("s_cbranch_scc1 L_fin")
        a(f"v_mov_b32 v8, s{sTAG}")
        set_exec(1)
        a(f"global_store_dword v4, v8, {sp(sWS)} sc1")
    finish_wave()


def sec_att():
    HELP[0] = False
    a_regs(True)
    CLS[0] = 1
    a.label("L_A2")
    ids()
    if not OPT["vlate"]:
        stamp(1)
    a(f"s_lshl_b32 s{sT0}, s{sWAVE}, 13")
    a(f"s_add_u32 s{sT0}, s{sT0}, {LK}")
    a("v_and_b32 v8, 15, v0")
    a("v_lshlrev_b32 v9, 2, v3")
    a("v_xor_b32 v9, v9, v8")
    a(f"v_lshl_add_u32 v10, v3, 8, s{sT0}")
    for x in range(4):
        a(f"v_xor_b32 v11, {x}, v9")
        a(f"v_lshl_add_u32 v{104 + x}, v11, 4, v10")
    a("v_lshl_add_u32 v10, v2, 2, v5         ; key = 4*(m&3) + (m>>2)")
    a(f"v_lshl_add_u32 v10, v10, 8, s{sT0}")
    a("v_xor_b32 v9, v3, v8")
    for ks in range(4):
        a(f"v_xor_b32 v11, {4 * ks}, v9")
        a(f"v_lshl_add_u32 v{108 + ks}, v11, 4, v10")
    a("v_lshlrev_b32 v6, 8, v5")
    a("v_lshl_add_u32 v6, v3, 4, v6")
    a(f"s_mul_i32 s{sT0}, s{sWAVE}, 2560")
    a("v_mul_u32_u24 v7, 576, v5")
    a("v_lshl_add_u32 v7, v2, 6, v7")
    a("v_lshl_add_u32 v7, v3, 4, v7")
    a(f"v_add_u32 v7, s{sT0}, v7")
    a("v_lshlrev_b32 v5, 5, v5               ; h*32")
    a(f"v_lshl_add_u32 v120, s{sWAVE}, 2, v5     ; h*32 + wave*4")
    a(f"v_add_u32 v120, {LM}, v120")
    a("v_lshlrev_b32 v124, 4, v0")
    a("v_add_u32 v125, 0x1000, v124")
    a(f"s_lshl2_add_u32 s{sT0}, s{sG}, s{sWAVE}")
    a(f"s_lshl_b32 s{sT0}, s{sT0}, 8")
    a(f"s_add_u32 s{sT0}, s{sT0}, s{sM}")
    a(f"s_lshl_b32 s{sT0}, s{sT0}, 4")
    base(sBA, sWS, sT0, H3O)
    a("v_lshlrev_b32 v121, 8, v1")
    a("v_lshl_add_u32 v121, v2, 2, v121")
    a(f"s_mul_i32 s{sT0}, s{sWAVE}, 576")
    a(f"v_lshl_add_u32 v122, v0, 3, s{sT0}")
    a(f"s_and_b32 s{sT4}, s{sWAVE}, 3")
    a(f"s_lshl_b32 s{sT0}, s{sT4}, 8")
    base(sBB, sX, sT0)
    a(f"s_lshl_b32 s{sT0}, s{sT4}, 10")
    base(sBC, sWS, sT0, MODB + 4096)
    a("v_lshrrev_b32 v119, 1, v3")
    a("v_lshlrev_b32 v119, 7, v119")
    a("v_and_b32 v14, 1, v3")
    a("v_lshl_add_u32 v119, v14, 3, v119")
    a("v_lshl_add_u32 v119, v2, 4, v119")
    a("v_lshl_add_u32 v119, v5, 5, v119        ; x offset: b*1024 + (G>>1)*128 + c*16 + (G&1)*8")
    for y in range(4):
        a(f"v_cmp_ne_u32 s[{20 + 2 * y}:{21 + 2 * y}], {y}, v2")
    a("v_mov_b32 v123, 0")
    gu_addr()
    a("v_lshlrev_b32 v184, 2, v0")
    a(f"v_add_u32 v184, {LM}, v184")
    a("v_lshlrev_b32 v185, 4, v0")
    a(f"s_lshl_b32 s{sT0}, s{sG}, 6")
    a(f"s_add_u32 s{sT0}, s{sT0}, s{sM}")
    a(f"s_lshl_b32 s{sT0}, s{sT0}, 3")
    a(f"s_add_u32 s{sT0}, s{sT0}, {H3ML:#x}")
    a(f"v_add_u32 v185, s{sT0}, v185")
    if OPT["pfgl"]:
        a(f"s_and_b32 s{sT0}, s{sWAVE}, 2")
        a(f"s_lshl2_add_u32 s{sT0}, s{sM}, s{sT0}")
        a(f"s_mul_i32 s{sT0}, s{sT0}, {8 * 3584}")
        a(f"s_mul_i32 s{sT1}, s{sG}, 448")
        a(f"s_andn2_b32 s{sT1}, s{sT1}, 127")
        a(f"s_add_u32 s{sT0}, s{sT0}, s{sT1}")
        a("v_mul_u32_u24 v118, 3584, v1")
        a("v_lshl_add_u32 v118, v2, 7, v118")
        a(f"v_add_u32 v118, s{sT0}, v118")
    warm({4: ["L_s0"], 5: ["L_s1"], 6: ["L_s2"], 7: ["L_s3"], **({3: ["L_s4"]} if OPT["warm"] > 1 else {})})
    if OPT["vlate"]:
        for u in range(8):
            a(f"global_load_dwordx4 {vr(VR + 4 * u, 4)}, v124, s[34:35] offset:{1024 * u - 4096}{NT}")
        stamp(1)
    if OPT["kstage"]:
        a(f"s_cmp_lt_u32 s{sWAVE}, 4")
        a("s_cbranch_scc1 L_A2k")
        a("s_waitcnt vmcnt(0)")
        a.label("L_A2k")
    for u in range(8):
        a(f"s_waitcnt vmcnt({max(15 - u, 9) if False else 15 - u})")
        a(f"ds_write_b128 v{104 + (u & 3)}, {vr(KR + 4 * u, 4)} offset:{1024 * u}")
    a("s_waitcnt lgkmcnt(0)")
    for t in range(2):
        for ks in range(4):
            a(f"ds_read_b128 {vr(KR + 16 * t + 4 * ks, 4)}, v{108 + ks} offset:{4096 * t}")
    stamp(2)
    a(f"s_cmp_lt_u32 s{sWAVE}, 4")
    a("s_cbranch_scc1 L_A2b")
    if OPT["kstage"]:
        for u in range(8):
            a(f"global_load_dwordx4 {vr(VR + 4 * u, 4)}, v124, s[34:35] offset:{1024 * u - 4096}{NT}")
        stamp(1)
    if not OPT["xml"]:
        a(f"global_load_dwordx2 v[128:129], v119, {sp(sBB)}")
        a(f"global_load_dwordx2 v[130:131], v119, {sp(sBB)} offset:64")
    if OPT["pfgw"]:
        if OPT["gua"] < 4:
            a(f"s_cmp_ge_u32 s{sWAVE}, {4 + OPT['gua'] - OPT['guh']}")
            a("s_cbranch_scc1 L_A3" if OPT["pfb"] else "s_cselect_b64 exec, 1, -1")
        a(f"s_bitcmp1_b32 s{sWAVE}, 0")
        a(f"s_cselect_b64 s[0:1], {sp(sWU)}, {sp(sWG)}")
        a(f"s_and_b32 s{sT0}, s{sWAVE}, 2")
        a(f"s_lshl2_add_u32 s{sT0}, s{sM}, s{sT0}")
        a(f"s_mul_i32 s{sT0}, s{sT0}, {8 * 3584}")
        a(f"s_mul_i32 s{sT1}, s{sG}, 448")
        a(f"s_andn2_b32 s{sT1}, s{sT1}, 127")
        a(f"s_add_u32 s{sT0}, s{sT0}, s{sT1}")
        a("v_mul_u32_u24 v13, 3584, v1")
        a("v_lshl_add_u32 v13, v2, 7, v13")
        a(f"v_add_u32 v13, s{sT0}, v13")
        prefetch(13, 0, True, 2 * 3584)
        set_exec(-1)
    if OPT["vfirst"]:
        ex = 2 + NPF * OPT["pfgw"]
        perms8(VR, VT, waits=[6 + ex, 4 + ex, 2 + ex, ex])
        stamp(7)
    a("s_branch L_A3")
    a.label("L_A2b")
    make_tag(12)
    if not OPT["kfirst"] or OPT["vfirst"]:
        perms8(VR, VT, waits=[6, 4, 2, 0])
    a("s_waitcnt lgkmcnt(0)")
    a(f"s_getreg_b32 s{sT0}, hwreg(HW_REG_XCC_ID, 0, 4)")
    a(f"s_xor_b32 s56, s{sTAG}, s{sT0}")
    a("s_mov_b32 s57, s56")
    a(f"s_lshl2_add_u32 s{sT0}, s{sG}, s{sWAVE}")
    a(f"s_mul_i32 s{sT0}, s{sT0}, {NREP * 128}")
    base(32, sWS, sT0, FL)
    a(f"s_lshr_b32 s{sT0}, s{sM}, 2")
    a(f"s_lshl2_add_u32 s{sT0}, s{sG}, s{sT0}")
    a(f"s_lshl2_add_u32 s{sT0}, s{sT0}, s{sWAVE}")
    a(f"s_lshl_b32 s{sT0}, s{sT0}, 8")
    base(0, sWS, sT0, QS)
    a("v_lshlrev_b32 v112, 2, v0")
    a(f"v_lshl_add_u32 v112, s{sWAVE}, 8, v112")
    a(f"v_lshlrev_b32_e64 v113, 2, s{sWAVE}")
    a("v_lshlrev_b32 v117, 4, v0")
    a(f"v_lshl_add_u32 v117, s{sWAVE}, 8, v117")
    a("s_setprio 2")
    a(f"s_mov_b32 s{sCNT}, 0")
    a.label("L_Aq")
    a(f"s_load_dwordx{2 if OPT['qfast'] == 1 else 4} s[48:{49 if OPT['qfast'] == 1 else 51}], s[32:33], s{sCNT}")
    a(f"s_add_u32 s{sCNT}, s{sCNT}, 128")
    a("s_waitcnt lgkmcnt(0)")
    a("s_xor_b64 s[48:49], s[48:49], s[56:57]")
    if OPT["qfast"] != 1:
        a("s_xor_b64 s[50:51], s[50:51], s[56:57]")
        a("s_or_b64 s[48:49], s[48:49], s[50:51]")
    a("s_cbranch_scc0 L_Aq_ok")
    if OPT["qsleep"]:
        a(f"s_sleep {OPT['qsleep']}")
    a(f"s_cmp_lt_u32 s{sCNT}, {NREP * 128}")
    a("s_cbranch_scc1 L_Aq")
    a.label("L_Aq_fb")
    set_exec(-1)
    a(f"s_getreg_b32 s{sT0}, hwreg(HW_REG_XCC_ID, 0, 4)")
    a(f"s_xor_b32 s56, s{sTAG}, s{sT0}")
    a(f"s_lshr_b32 s{sT0}, s{sM}, 2")
    a(f"s_lshl2_add_u32 s{sT0}, s{sG}, s{sT0}")
    a(f"s_lshl2_add_u32 s{sT0}, s{sT0}, s{sWAVE}")
    a(f"s_lshl_b32 s{sT0}, s{sT0}, 9")
    base(32, sWS, sT0, H2G)
    a("v_lshlrev_b32 v10, 3, v0")
    lab = poll_begin()
    a(f"global_load_dwordx2 v[8:9], v10, s[32:33] sc1")
    poll_mid()
    a("v_xor_b32 v9, s56, v9")
    a("v_cmp_lt_u32 vcc, 15, v9")
    poll_end(lab)
    a("v_cmp_ne_u32 vcc, 0, v9")
    a("s_cmp_lg_u64 vcc, 0")
    a(f"s_cselect_b32 s{sT0}, 2, 1")
    a(f"v_mov_b32 v9, s{sT0}")
    a(f"ds_write_b32 v112, v8 offset:{LQ}")
    if OPT["probe"] == 3:
        a("v_mov_b32 v210, 1")
    a("s_branch L_Aq_st")
    a.label("L_Aq_ok")
    for t in range(4):
        a(f"s_load_dwordx16 s[{sQ + 16 * t}:{sQ + 16 * t + 15}], s[0:1], {64 * t}")
    a("v_mov_b32 v9, 1")
    if OPT["stamps"] == 1:
        a("v_writelane_b32 v126, s100, m0")
        a("s_mov_b32 m0, 12")
        a("s_memrealtime s[100:101]")
    a("s_waitcnt lgkmcnt(0)")
    if OPT["stamps"] == 1:
        stamp(13)
    if OPT["qmv"] == 0:
        for i in range(64):
            a(f"v_writelane_b32 v{80 + (i & 3)}, s{sQ + i}, {i >> 2}")
        set_exec(0xFFFF)
        a(f"ds_write_b128 v117, v[80:83] offset:{LQ}")
        if OPT["qfast"]:
            for ins in sentinel_ops(range(80, 84), 10):
                a(ins)
            a("s_cbranch_vccnz L_Aq_fb")
    else:
        set_exec(1)
        for i in range(16):
            a(f"v_mov_b64 v[{48 + 4 * i}:{49 + 4 * i}], s[{sQ + 4 * i}:{sQ + 4 * i + 1}]")
            a(f"v_mov_b64 v[{50 + 4 * i}:{51 + 4 * i}], s[{sQ + 4 * i + 2}:{sQ + 4 * i + 3}]")
            a(f"ds_write_b128 v112, {vr(48 + 4 * i, 4)} offset:{LQ + 16 * i}")
    set_exec(-1)
    a.label("L_Aq_st")
    a(f"ds_write_b32 v113, v9 offset:{LQF}")
    a("s_setprio 0")
    a.label("L_A3")
    a(f"s_mov_b32 s{sT0}, {LOG2E:#x}")
    a("s_waitcnt lgkmcnt(0)")
    a("s_barrier")
    for ks in range(4):
        a(f"ds_read_b128 {vr(88 + 4 * ks, 4)}, v6 offset:{LQ + 64 * ks}")
    a(f"ds_read_b128 v[12:15], v4 offset:{LQF}")
    if OPT["stamps"] == 1:
        a("v_writelane_b32 v126, s100, m0")
        a("s_mov_b32 m0, 3")
        a("s_memrealtime s[100:101]")
    loc = ["v_or3_b32 v12, v12, v13, v14", "v_or_b32 v12, v12, v15", "v_lshrrev_b32 v12, 1, v12", "s_nop 0",
           f"v_readfirstlane_b32 s{sLOCAL}, v12"]
    for ks in range(4):
        a(f"s_waitcnt lgkmcnt({0 if OPT['stamps'] == 1 or ks == 3 else 4 - ks})")
        for t in range(2):
            a(mfma(80 + 4 * t, KR + 16 * t + 4 * ks, 88 + 4 * ks, None if ks == 0 else 80 + 4 * t))
    for ins in loc:
        a(ins)
    if OPT["pfgl"] == 2:
        a(f"s_cmp_ge_u32 s{sWAVE}, 4")
        a("s_cbranch_scc1 L_A4")
        a(f"s_bitcmp1_b32 s{sWAVE}, 0")
        a(f"s_cselect_b64 s[0:1], {sp(sWU)}, {sp(sWG)}")
        prefetch(118, 0, True, 2 * 3584)
        a.label("L_A4")
    a("v_max3_f32 v12, v80, v81, v82")
    a("v_cndmask_b32 v112, v82, v80, s[22:23]")
    a("v_max3_f32 v13, v83, v84, v85")
    a("v_cndmask_b32 v113, v83, v81, s[22:23]")
    a("v_max3_f32 v12, v12, v86, v87")
    a("v_cndmask_b32 v112, v84, v112, s[24:25]")
    a("v_max_f32 v12, v12, v13")
    a("v_mov_b32 v13, v12")
    a("v_cndmask_b32 v113, v85, v113, s[24:25]")
    a("v_cndmask_b32 v112, v86, v112, s[26:27]")
    a("v_permlane16_swap_b32 v13, v12")
    a("v_cndmask_b32 v113, v87, v113, s[26:27]")
    a("v_max_f32 v12, v12, v13")
    a("v_mov_b32 v13, v12")
    a("v_cvt_pk_bf16_f32 v113, v112, v113")
    a("v_lshlrev_b32 v112, 16, v113")
    a("v_permlane32_swap_b32 v13, v12")
    a("v_and_b32 v113, 0xffff0000, v113")
    a("v_max_f32 v12, v12, v13")
    a(f"v_mul_f32 v112, {SCALE:#x}, v112")
    a("v_cvt_pk_bf16_f32 v12, v123, v12")
    a(f"v_mul_f32 v113, {SCALE:#x}, v113")
    a(f"v_mul_f32 v12, {SCALE:#x}, v12")
    a("v_cvt_pk_bf16_f32 v113, v112, v113")
    a("v_cvt_pk_bf16_f32 v12, v123, v12")
    a("v_lshlrev_b32 v112, 16, v113")
    a(f"v_mul_f32 v12, {LOG2E:#x}, v12")
    a("v_and_b32 v113, 0xffff0000, v113")
    a(f"v_fma_f32 v112, v112, s{sT0}, -v12")
    a(f"v_fma_f32 v113, v113, s{sT0}, -v12")
    a("v_exp_f32 v112, v112")
    a("v_exp_f32 v113, v113")
    a("s_mov_b64 vcc, s[20:21]")
    a("v_add_f32 v13, v112, v113")
    a("v_cvt_pk_bf16_f32 v8, v112, v113")
    PY = 88
    red = [f"v_add_f32_dpp v13, v13, v13 quad_perm:[1,0,3,2] {DPPM}",
           f"v_add_f32_dpp v13, v13, v13 quad_perm:[2,3,0,1] {DPPM}",
           "v_mov_b32 v14, v13", "v_permlane16_swap_b32 v14, v13", "v_add_f32 v13, v13, v14",
           "v_mov_b32 v14, v13", "v_permlane32_swap_b32 v14, v13", "v_add_f32 v13, v13, v14"]
    for y in range(4):
        if y:
            a(f"s_mov_b64 vcc, s[{20 + 2 * y}:{21 + 2 * y}]")
        for x in range(4):
            if x % 2 == 0:
                a(red[2 * y + x // 2])
            a(f"v_cndmask_b32_dpp v{PY + 4 * y + x}, v8, v123, vcc quad_perm:[{x},{x},{x},{x}] {DPPM}")
    set_exec(0x1111)
    a(f"ds_write2_b32 v120, v12, v13 offset0:0 offset1:32")
    set_exec(-1)
    if OPT["warm"] > 1:
        stub("L_s4", True)
    a("s_waitcnt lgkmcnt(0)")
    a("s_barrier")
    stamp(4)
    a(f"ds_read_b128 v[104:107], v5 offset:{LM}")
    a(f"ds_read_b128 v[108:111], v5 offset:{LM + 16}")
    if OPT["mls2"]:
        a("ds_read2_b32 v[186:187], v184 offset0:0 offset1:32")
    a(f"s_cmp_lt_u32 s{sWAVE}, 4")
    if OPT["pfb"]:
        pass
    elif OPT["kfirst"] and not OPT["vfirst"]:
        a("s_cbranch_scc0 L_A5")
        a(f"s_waitcnt vmcnt({NPF if OPT['pfgl'] == 2 else 0})")
        if OPT["pfgl"] == 3:
            a(f"s_bitcmp1_b32 s{sWAVE}, 0")
            a(f"s_cselect_b64 s[0:1], {sp(sWU)}, {sp(sWG)}")
            prefetch(118, 0, True, 2 * 3584)

        a("s_branch L_A5b")
        a.label("L_A5")
    else:
        a("s_cbranch_scc1 L_A6")
    if not OPT["xml"]:
        modb_loads()
    for half in range(OPT["gue"]):
        gu_loads(half)
    a.label("L_A5b")
    ex = (0 if OPT["xml"] else 5) + NPF * OPT["pfgw"] + 4 * OPT["gue"]
    if OPT["pfb"]:
        a(f"s_sub_u32 s{sT2}, s{sWAVE}, 4")
        a(f"s_cmp_lt_u32 s{sT2}, {OPT['gua'] - OPT['guh']}")
        perms8(VR, VT, waits=[6, 4, 2, "pf"])
        stamp(7)
    elif not OPT["vfirst"]:
        perms8(VR, VT, waits=[6 + ex, 4 + ex, 2 + ex, ex])
        stamp(7)
    a.label("L_A6")
    fac = ["s_waitcnt lgkmcnt(0)", "v_max3_f32 v14, v104, v105, v106", "v_max3_f32 v15, v107, v108, v109",
           "v_max3_f32 v14, v14, v110, v111", "v_max_f32 v14, v14, v15", "v_sub_f32 v10, v12, v14", "v_exp_f32 v10, v10"]
    pvm = [mfma(OA + 4 * (e >> 2), VT + 4 * e, PY + 4 * (e & 3), None if (e & 3) == 0 else OA + 4 * (e >> 2)) for e in range(8)]
    if OPT["mls2"]:
        ml = [f"v_max_f32_dpp v188, v186, v186 quad_perm:[1,0,3,2] {DPPM}",
              f"v_max_f32_dpp v188, v188, v188 quad_perm:[2,3,0,1] {DPPM}",
              f"v_max_f32_dpp v188, v188, v188 row_half_mirror {DPPM}",
              "v_sub_f32 v186, v186, v188", "v_exp_f32 v186, v186", "v_mul_f32 v189, v186, v187",
              f"v_add_f32_dpp v189, v189, v189 quad_perm:[1,0,3,2] {DPPM}"]
        both = [fac[0], "s_nop 0"]
        for x, y in zip(fac[1:] + [None], ml):
            both += [y] + ([x] if x else [])
        interleave(pvm, both, 2)
    else:
        interleave(pvm, fac, 1)
    for i in range(2):
        a(f"v_pk_mul_f32 v[{OA + 2 * i}:{OA + 2 * i + 1}], v[{OA + 2 * i}:{OA + 2 * i + 1}], v[10:11] op_sel_hi:[1,0]")
    if OPT["mls2"]:
        a(f"v_add_f32_dpp v189, v189, v189 quad_perm:[2,3,0,1] {DPPM}")
    a(f"ds_write_b128 v7, {vr(OA, 4)}")
    if OPT["mls2"]:
        a(f"s_cmp_eq_u32 s{sWAVE}, 0")
        a(f"v_add_f32_dpp v189, v189, v189 row_half_mirror {DPPM}")
    for i in range(2, 4):
        a(f"v_pk_mul_f32 v[{OA + 2 * i}:{OA + 2 * i + 1}], v[{OA + 2 * i}:{OA + 2 * i + 1}], v[10:11] op_sel_hi:[1,0]")
    a(f"ds_write_b128 v7, {vr(OA + 4, 4)} offset:256")
    if not OPT["mll"]:
        a(f"s_cmp_eq_u32 s{sWAVE}, 0")
        a("s_cbranch_scc1 L_A7")
    a.label("L_A8")
    a("s_waitcnt lgkmcnt(0)")
    stamp(5)
    a("s_barrier                      ; 2")
    a(f"s_cmp_ge_u32 s{sWAVE}, 4")
    a("s_cbranch_scc1 L_A9" if OPT["mll"] else "s_cbranch_scc1 L_FF")
    for t in range(4):
        a(f"ds_read2st64_b64 {vr(16 + 4 * t, 4)}, v122 offset0:{10 * t} offset1:{10 * t + 5}")
    a(f"s_cmp_lg_u32 s{sLOCAL}, 0")
    a("s_waitcnt lgkmcnt(0)")
    sum8_b64(16)
    a("v_cvt_pk_bf16_f32 v10, v16, v17")
    a("s_cbranch_scc1 L_A_pubg")
    a(f"global_store_dword v121, v10, {sp(sBA)}")
    a.label("L_A_pubd")
    if OPT["pfgl"] == 1:
        a(f"s_bitcmp1_b32 s{sWAVE}, 0")
        a(f"s_cselect_b64 s[0:1], {sp(sWU)}, {sp(sWG)}")
        prefetch(118, 0, True, 2 * 3584)
    stamp(6)
    if OPT["pfgl"] == 4:
        a("s_setprio 3")
    a("s_barrier                      ; 2b")
    if OPT["pfgl"] == 4:
        a(f"s_bitcmp1_b32 s{sWAVE}, 0")
        a(f"s_cselect_b64 s[0:1], {sp(sWU)}, {sp(sWG)}")
        prefetch(118, 0, True, 2 * 3584)

    a("s_branch L_FF0")
    a.label("L_A_pubg")
    a(f"global_store_dword v121, v10, {sp(sBA)} sc1")
    a("s_branch L_A_pubd")
    a.label("L_A9")
    a(f"s_cmp_lg_u32 s{sWAVE}, 5")
    a("s_cbranch_scc1 L_FF")
    a.label("L_A7")
    if OPT["mls2"]:
        set_exec(0x01010101)
        a(f"s_cmp_lg_u32 s{sLOCAL}, 0")
        a("s_cbranch_scc1 L_A_mlg")
        a(f"global_store_dwordx2 v185, v[188:189], {sp(sWS)}")
    else:
        a(f"ds_read_b128 v[16:19], v5 offset:{LL}")
        a(f"ds_read_b128 v[20:23], v5 offset:{LL + 16}")
        for i in range(8):
            a(f"v_sub_f32 v{104 + i}, v{104 + i}, v14")
        for i in range(8):
            a(f"v_exp_f32 v{104 + i}, v{104 + i}")
        a(f"s_lshl_b32 s{sT0}, s{sG}, 6")
        a(f"s_add_u32 s{sT0}, s{sT0}, s{sM}")
        a(f"s_lshl_b32 s{sT0}, s{sT0}, 3")
        base(sBB, sWS, sT0, H3ML)
        a("v_lshlrev_b32 v13, 2, v5              ; h*128")
        a("s_waitcnt lgkmcnt(0)")
        a("v_pk_mul_f32 v[16:17], v[16:17], v[104:105]")
        for i in range(1, 4):
            a(f"v_pk_fma_f32 v[16:17], v[{16 + 2 * i}:{17 + 2 * i}], v[{104 + 2 * i}:{105 + 2 * i}], v[16:17]")
        a("v_add_f32 v15, v16, v17")
        set_exec(0x1111)
        a(f"s_cmp_lg_u32 s{sLOCAL}, 0")
        a("s_cbranch_scc1 L_A_mlg")
        a(f"global_store_dwordx2 v13, v[14:15], {sp(sBB)}")
    a.label("L_A_mld")
    set_exec(-1)
    a("s_branch L_FF" if OPT["mll"] else "s_branch L_A8")
    a.label("L_A_mlg")
    if OPT["mls2"]:
        a(f"global_store_dwordx2 v185, v[188:189], {sp(sWS)} sc1")
    else:
        a(f"global_store_dwordx2 v13, v[14:15], {sp(sBB)} sc1")
    a("s_branch L_A_mld")


def sec_dump():
    a_regs(False)
    if OPT["probe"]:
        a.label("L_dump")
        a("s_mov_b64 exec, 1")
        a(f"s_lshl3_add_u32 s{sT0}, s2, s{sWAVE}")
        a(f"s_lshl_b32 s{sT0}, s{sT0}, 4")
        base(sBA, sWS, sT0, STAMP)
        a("v_mov_b32 v4, 0")
        a(f"global_store_dwordx4 v4, v[208:211], {sp(sBA)} sc1")
        if OPT["wb"]:
            a("s_waitcnt vmcnt(0)")
            a("buffer_wbl2 sc1")
            a("s_waitcnt vmcnt(0)")
        a("s_cmp_lg_u32 s2, 8")
        a("s_cbranch_scc1 L_exit")
        a(f"s_cmp_lg_u32 s{sWAVE}, 7")
        a("s_cbranch_scc1 L_exit")
        a("s_mov_b64 exec, -1")
        a("s_memrealtime s[60:61]")
        a("s_sleep 100")
        a("s_waitcnt vmcnt(0) lgkmcnt(0)")
        base(sBA, sWS, None, STAMP)
        a("v_lshlrev_b32 v4, 4, v0")
        for i in range(32):
            a(f"global_load_dwordx4 {vr(16 + 4 * i, 4)}, v4, {sp(sBA)} sc1")
            a("v_add_u32 v4, 0x400, v4")
        a("s_waitcnt vmcnt(0)")
        a("v_mov_b32 v8, v16")
        a("v_mov_b32 v9, 0")
        for i in range(1, 32):
            a(f"v_max_u32 v8, v8, v{16 + 4 * i}")
            a(f"v_min_u32 v16, v16, v{16 + 4 * i}")
            a(f"v_max_u32 v17, v17, v{17 + 4 * i}")
            a(f"v_add_u32 v18, v18, v{18 + 4 * i}")
            a(f"v_cmp_ne_u32 vcc, v19, v{19 + 4 * i}")
            a(f"v_addc_co_u32 v9, vcc, 0, v9, vcc")
        for op, r in (("v_max_u32", 8), ("v_min_u32", 16), ("v_max_u32", 17), ("v_add_u32", 18), ("v_add_u32", 9)):
            for n in (8, 4, 2, 1):
                a(f"{op}_dpp v{r}, v{r}, v{r} row_ror:{n} {DPPM}")
            cross_rows(op, r, 10)
        a("v_readfirstlane_b32 s50, v8")
        a("v_readfirstlane_b32 s51, v16")
        a("v_readfirstlane_b32 s53, v17")
        a("v_readfirstlane_b32 s52, v18")
        a("v_readfirstlane_b32 s56, v9")
        a("s_nop 3")
        p = OPT["probe"]
        if p == 1:
            a("s_sub_u32 s54, s50, s51")
        elif p == 2:
            a("s_sub_u32 s54, s60, s51")
        elif p == 3:
            a("s_mul_i32 s54, s52, 1")
        elif p == 4:
            a("s_lshr_b32 s54, s56, 1")
        elif p >= 100:
            a("s_sub_u32 s54, s53, s51")
        else:
            a("s_mov_b32 s54, 0")
        a("s_min_u32 s54, s54, 5000")
        a("s_lshl_b32 s54, s54, 2")
        a("s_add_u32 s54, s54, 3000")
        a.label("L_spin")
        a("s_memrealtime s[62:63]")
        a("s_waitcnt lgkmcnt(0)")
        a("s_sub_u32 s55, s62, s51")
        a("s_cmp_lt_u32 s55, s54")
        a("s_cbranch_scc1 L_spin")
    if OPT["stamps"]:
        a.label("L_dump")
        a("s_mov_b64 exec, -1")
        stamp(15)
        stamp(16)
        a(f"s_getreg_b32 s{sT0}, hwreg(HW_REG_XCC_ID)")
        a(f"v_writelane_b32 v126, s{sT0}, 14")
        a(f"s_lshl3_add_u32 s{sT0}, s2, s{sWAVE}")
        a(f"s_lshl_b32 s{sT0}, s{sT0}, 6")
        base(sBA, sWS, sT0, STAMP)
        a("v_lshlrev_b32 v4, 2, v0")
        set_exec(0xFFFF)
        a(f"global_store_dword v4, v126, {sp(sBA)}")
    a.label("L_exit")
    a("s_endpgm")


a(".p2align 12")
a.label("L_code0")
sec_wo()
sec_ln()
a(".p2align 8")
a(f".fill (4096-768-(.-L_code0))/4, 4, 0xbf810000")
a(f".type {NAME}_kernel,@function")
sec_entry()
sec_gm()
sec_gq()
sec_gb()
sec_down()
a(".p2align 12")
sec_att()
a(".p2align 12")
sec_ffn()
sec_dump()

body = a.finish()
hdr = open("cdna_kernels/" + NAME + ".s.ref").read().split("; Override launch geometry")[0]
out = hdr + f"""; Generated by a hand-written generator script; one persistent launch of 256 workgroups.
; @launch grid=(256,1,1) block=(512,1,1) lds={OPT['lds']}
.amdgcn_target "amdgcn-amd-amdhsa--gfx950"
.text
.globl {NAME}_kernel
{body}.section .rodata,"a"
.p2align 6
.amdhsa_kernel {NAME}_kernel
  .amdhsa_next_free_vgpr {OPT['vgpr']}
  .amdhsa_next_free_sgpr 102
  .amdhsa_accum_offset {OPT['vgpr']}
  .amdhsa_group_segment_fixed_size 0
  .amdhsa_kernarg_size 112
  .amdhsa_user_sgpr_count 2
  .amdhsa_user_sgpr_kernarg_segment_ptr 1
  .amdhsa_system_sgpr_workgroup_id_x 1
  .amdhsa_float_denorm_mode_32 3
.end_amdhsa_kernel
"""
open(sys.argv[1], "w").write(out)
```

```python
import re

TRANS = ("v_exp_f32", "v_log_f32", "v_rcp_f32", "v_rsq_f32", "v_sqrt_f32", "v_sin_f32", "v_cos_f32")


def _regs(tok):
    tok = tok.strip()
    tok = tok.lstrip("-")
    m = re.match(r"^\|(.*)\|$", tok)
    if m:
        tok = m.group(1)
    m = re.match(r"^abs\((.*)\)$", tok)
    if m:
        tok = m.group(1)
    if tok == "vcc":
        return {("s", 106), ("s", 107)}
    if tok == "vcc_lo":
        return {("s", 106)}
    if tok == "vcc_hi":
        return {("s", 107)}
    if tok == "exec":
        return {("s", 126), ("s", 127)}
    if tok == "m0":
        return {("s", 124)}
    m = re.match(r"^([vs])(\d+)$", tok)
    if m:
        return {(m.group(1), int(m.group(2)))}
    m = re.match(r"^([vs])\[(\d+):(\d+)\]$", tok)
    if m:
        return {(m.group(1), i) for i in range(int(m.group(2)), int(m.group(3)) + 1)}
    return set()


def _split_ops(s):
    ops, depth, cur = [], 0, ""
    for ch in s:
        if ch in "[(":
            depth += 1
        if ch in "])":
            depth -= 1
        if ch == "," and depth == 0:
            ops.append(cur.strip())
            cur = ""
        else:
            cur += ch
    if cur.strip():
        ops.append(cur.strip())
    return ops


class Ins:
    def __init__(self, text):
        self.text = text
        code = text.split(";")[0].strip()
        self.is_label = code.endswith(":")
        self.is_dir = code.startswith(".") or code == ""
        self.op = ""
        self.dst = set()
        self.src = set()
        self.srcC = set()
        self.srcAB = set()
        self.dpp = False
        self.kind = "none"
        self.storedata = set()
        if self.is_label or self.is_dir:
            return
        parts = code.split(None, 1)
        self.op = parts[0]
        rest = parts[1] if len(parts) > 1 else ""
        ops = _split_ops(rest)
        toks = [o.split()[0] if o.split() else "" for o in ops]
        op = self.op
        self.dpp = "_dpp" in op or "row_" in rest or "quad_perm" in rest
        if op.startswith("v_mfma"):
            self.kind = "mfma"
            self.dst = _regs(toks[0])
            self.srcAB = _regs(toks[1]) | _regs(toks[2])
            self.srcC = _regs(toks[3])
            self.src = self.srcAB | self.srcC
        elif op.startswith("v_"):
            self.kind = "valu"
            if op.startswith("v_permlane") and "swap" in op:
                self.dst = _regs(toks[0]) | _regs(toks[1])
                self.src = set(self.dst)
            elif op.startswith(("v_add_co", "v_sub_co", "v_addc_co", "v_subb_co")):
                self.dst = _regs(toks[0]) | _regs(toks[1])
                for t in toks[2:]:
                    self.src |= _regs(t)
            else:
                self.dst = _regs(toks[0])
                for t in toks[1:]:
                    self.src |= _regs(t)
                if op.startswith(("v_fmac", "v_dot2c", "v_writelane")) or self.dpp or "sdwa" in op:
                    self.src |= self.dst
        elif op.startswith(("global_", "buffer_")):
            self.kind = "vmem"
            if "load_lds" in op:
                for t in toks:
                    self.src |= _regs(t)
            elif "load" in op:
                self.dst = _regs(toks[0])
                for t in toks[1:]:
                    self.src |= _regs(t)
            else:
                for t in toks:
                    self.src |= _regs(t)
                if "dwordx4" in op or "dwordx3" in op:
                    self.storedata = _regs(toks[1]) if op.startswith("global_") else _regs(toks[0])
        elif op.startswith("ds_"):
            self.kind = "ds"
            if "read" in op or "permute" in op or "swizzle" in op:
                self.dst = _regs(toks[0])
                for t in toks[1:]:
                    self.src |= _regs(t)
            else:
                for t in toks:
                    self.src |= _regs(t)
        elif op.startswith(("s_load", "s_memtime", "s_memrealtime")):
            self.kind = "smem"
            self.dst = _regs(toks[0])
            for t in toks[1:]:
                self.src |= _regs(t)
        elif op.startswith("s_"):
            self.kind = "salu"
            if op.startswith(("s_cmp", "s_bitcmp", "s_cbranch", "s_branch", "s_waitcnt", "s_barrier", "s_nop",
                              "s_sleep", "s_setprio", "s_endpgm")):
                for t in toks:
                    self.src |= _regs(t)
            else:
                self.dst = _regs(toks[0])
                for t in toks[1:]:
                    self.src |= _regs(t)

    def states(self):
        if self.is_label or self.is_dir:
            return 0
        if self.op == "s_nop":
            return int(self.text.split(";")[0].split()[1], 0) + 1
        return 1


def vonly(s):
    return {r for r in s if r[0] == "v"}


def sonly(s):
    return {r for r in s if r[0] == "s"}


def required(p, c):
    need = 0
    if p.kind == "valu":
        pv, ps = vonly(p.dst), sonly(p.dst)
        isdot = p.op.startswith("v_dot")
        if c.kind == "valu":
            if c.dpp and pv & vonly(c.src):
                need = max(need, 2)
            if c.op.startswith("v_permlane") and pv & vonly(c.src):
                need = max(need, 2)
            if c.op.startswith(("v_readlane", "v_readfirstlane")) and pv & vonly(c.src):
                need = max(need, 1)
            if p.op.replace("_e32", "").replace("_e64", "") in TRANS and pv & vonly(c.src):
                need = max(need, 1)
            if "sdwa" in p.op and pv & (vonly(c.src) | vonly(c.dst)):
                need = max(need, 1)
            if ps & sonly(c.src):
                need = max(need, 4 if c.op.startswith(("v_readlane", "v_writelane")) else 2)
            if isdot and pv & (vonly(c.src) | vonly(c.dst)):
                same = c.op == p.op
                if same:
                    toks = [o.split()[0] for o in _split_ops(c.text.split(";")[0].strip().split(None, 1)[1])]
                    ab = _regs(toks[1]) | _regs(toks[2])
                    if pv & ab:
                        need = max(need, 3)
                else:
                    need = max(need, 3)
        if c.kind == "mfma" and pv & vonly(c.src):
            need = max(need, 3 if isdot else 2)
        if c.kind == "vmem" and ps & sonly(c.src):
            need = max(need, 5)
        if isdot and c.kind in ("vmem", "ds") and pv & vonly(c.src):
            need = max(need, 3)
    if p.kind == "mfma":
        d = p.dst
        if c.kind == "mfma":
            if d & c.srcAB:
                need = max(need, 8)
            if d & c.srcC and d != c.srcC:
                need = max(need, 6)
            if d & c.dst and not (d & c.srcC):
                need = max(need, 8)
        elif c.kind in ("valu", "vmem", "ds"):
            if d & (c.src | c.dst):
                need = max(need, 8)
        if c.kind == "valu" and p.srcC & c.dst:
            need = max(need, 3)
    if p.kind == "vmem" and p.storedata:
        if c.kind in ("valu", "mfma") and p.storedata & c.dst:
            need = max(need, 2)
        elif p.storedata & c.dst:
            need = max(need, 1)
    if p.kind == "salu" and ("s", 124) in p.dst and c.kind == "vmem" and "lds" in c.text:
        need = max(need, 1)
    return need


class Asm:
    def __init__(self):
        self.lines = []

    def __call__(self, s):
        for ln in s.split("\n"):
            ln = ln.strip()
            if ln:
                self.lines.append(ln)

    def label(self, name):
        self.lines.append(name + ":")

    def finish(self):
        out = []
        nins = 0
        for ln in self.lines:
            c = Ins(ln)
            if not (c.is_label or c.is_dir):
                dist = 0
                need = 0
                for p in reversed(out):
                    if dist >= 9:
                        break
                    if p.op in ("s_branch", "s_endpgm", "s_setpc_b64"):
                        break
                    r = required(p, c)
                    if r > dist:
                        need = max(need, r - dist)
                    dist += p.states()
                if need:
                    out.append(Ins(f"s_nop {need - 1}"))
                    nins += 1
            out.append(c)
        txt = []
        for i in out:
            txt.append(i.text if (i.is_label or i.is_dir) else "    " + i.text)
        return "\n".join(txt) + "\n"
```

```python
import sys
from asmlib import Asm

NAME = "adaLN_cond__sliding_block_cached__swiglu_ffn__decode"
OPT = dict(stamps=0, lds=94208, nt=1, limit=20000, pf=1, pfa=1, pfg=1, athr=8, nrep=64, qsleep=0, vgpr=208, psleep=0, ahelp=1, bhelp=0, wowait=0, pfpol=1, wpol=0, wopf=0, epair=1, wb=0, qmv=0, hpull=0, kfirst=1, cpf1=1, vfirst=0, mlm=0, woe=0, h4e=0, stag=3, pfgl=0, h4d=0, mls=0, touch=1, plan=3, bcoop=2, pf2=0, late=0, woa=14, woq=1, xgate=1, gub=0, gate=2, gatew=0, adap=0, qfast=0, h1m=0, kstage=0, wdl=1, vh=0, gue=0, mls2=1, vlate=1, b3=0, mll=1, gua=3, xml=0, q3=2, epe=1, outp=0, prog=1, wbl=0, wod=0, wo3=2, guh=0, pfb=2, nq=6, nb=0, na=1, warm=1, hp2=0, gbe=0, guq=0, wdh=2, wob=0, gsh=1, ftb=0, afirst=1, pfq=1, pfw=1, qbar=0, abar=1, nm=0, split=0, gskip=0, ge=0, clra=0, ilv=1, mix=0, fin=1, vb=0, bh2=0, kthr=0, vthr=0, hearly=1, otch=0, dma=1, qtb=1, h4b=0, actb=0, pfaw=0, pfgw=1, probe=0, pcls=0)
for arg in sys.argv[2:]:
    k, v = arg.split("=")
    assert k in OPT, k
    OPT[k] = int(v, 0)
if OPT["probe"]:
    OPT["vgpr"] = 216
if OPT["pfb"]:
    assert (OPT["xml"] or OPT["pfb"] == 2) and not OPT["gue"] and OPT["pfgw"] and not OPT["pf2"] and not OPT["vfirst"]
NT = " nt" if OPT["nt"] else ""
NREP = OPT["nrep"]
if OPT["dma"]:
    OPT["ilv"] = 0
    OPT["lds"] = 160000
    assert OPT["vlate"] and OPT["pfb"] == 2 and OPT["mls2"] and not OPT["wod"]
NTW = " nt" if OPT["wpol"] else ""

H1 = 0xC000 if OPT['split'] else 0x1000
CF = 0x3000
H2G = 0x10000
FL = 0x20000
assert FL + 32 * NREP * 128 <= 0x60000
CLR = 0x60000
MODB = CLR
H4 = MODB + 0x4000
ACT = H4 + 0x8000
X1 = ACT + 0x4000
H4B = X1 + 0x2000
QS = 0x4000
assert not OPT["qfast"]
H3ML = H4B + 0x8000
H3O = H3ML + 0x1000
GATE = H3O + 0x20000 - 0x2000
ACTB = GATE + 0x2400
CLR_END = ACTB + 0x3800
CLR_PER_WG = 8
assert CLR_END - CLR <= 32 * CLR_PER_WG * 1024
STAMP = 0x100000

LO = 0
LQ = 20480
LQF = LQ + 1024
LM = LQF + 64
LL = LM + 128
LY = 22016
LU = LY + 2048
LV = LU + 2048
LST = LV + 2048
LGT = LST + 128
LVV = 28672 + 65536
LK = 28672

sX, sK, sV, sWQ, sWO, sWG, sWU = 4, 6, 8, 10, 12, 16, 18
sWD, sC, sWM, sOUT, sDBG, sWS = 20, 22, 24, 26, 28, 30
sG, sM, sWAVE, sTAG = 14, 15, 3, 28
sLO, sHI, sCNT, sT0 = 96, 97, 98, 99
sBA, sBB, sBC = 32, 34, 36
sMK = 38
sT1, sT2, sT3, sT4 = 40, 41, 42, 43
sLOCAL, sKIND = 29, 44
sPC = 46
sSTAMP = 48 if False else 64
sQ = 32

LOG2E = 0x3FB8AA3B
SCALE = 0x3DB504F3
INV512 = 0x3B000000
EPS = 0x3727C5AC


def sp(r):
    return f"s[{r}:{r + 1}]"


def vr(a, n):
    return f"v[{a}:{a + n - 1}]" if n > 1 else f"v{a}"


a = Asm()
_uid = [0]


def uid(p):
    _uid[0] += 1
    return f"L_{p}{_uid[0]}"


CLS = [0]


def stamp(i):
    if OPT["probe"] == 100 + i and OPT["pcls"] == CLS[0]:
        a("s_memrealtime s[100:101]")
        a("s_waitcnt lgkmcnt(0)")
        a("v_writelane_b32 v209, s100, 0")
    if OPT["stamps"] == 1 or (OPT["stamps"] and i >= 13):
        a("s_waitcnt lgkmcnt(0)")
        a("v_writelane_b32 v126, s100, m0")
        a(f"s_mov_b32 m0, {i}")
        a("s_memrealtime s[100:101]")


def finish_wave():
    a("s_branch L_dump" if OPT["stamps"] or OPT["probe"] else "s_endpgm")


def base(dst, ptr, off_s=None, off_imm=0):
    if off_s is not None and off_imm:
        a(f"s_add_u32 s{dst}, s{off_s}, {off_imm:#x}")
        a(f"s_add_u32 s{dst}, s{ptr}, s{dst}")
    elif off_s is not None:
        a(f"s_add_u32 s{dst}, s{ptr}, s{off_s}")
    else:
        a(f"s_add_u32 s{dst}, s{ptr}, {off_imm:#x}")
    a(f"s_addc_u32 s{dst + 1}, s{ptr + 1}, 0")


def set_exec(mask):
    if mask in (-1, 1):
        a(f"s_mov_b64 exec, {mask}")
    else:
        lo, hi = mask & 0xFFFFFFFF, mask >> 32
        a(f"s_mov_b32 exec_lo, {lo:#x}")
        a(f"s_mov_b32 exec_hi, {hi:#x}")


def prefetch(v, b, late=False, delta=None):
    pol = "" if OPT["pfpol"] == 1 else " nt"
    if OPT["hp2"] and CLS[0] in (0, 2) and HELP[0]:
        a("v_lshlrev_b32 v114, 1, v0")
        a("v_and_b32 v114, 0x7c, v114")
        a(f"ds_bpermute_b32 v115, v114, v{v}")
        a(f"ds_bpermute_b32 v116, v114, v{v} offset:128")
        a("v_and_b32 v114, 1, v0")
        a("s_waitcnt lgkmcnt(0)")
        a("v_lshl_add_u32 v115, v114, 6, v115")
        a("v_lshl_add_u32 v116, v114, 6, v116")
        if OPT["hp2"] == 2:
            a(f"global_load_dword v127, v115, {sp(b)} nt")
            a(f"global_load_dword v127, v116, {sp(b)} nt")
            a(f"global_load_dword v127, v{v}, {sp(b)} sc1")
        else:
            a(f"global_load_dword v127, v115, {sp(b)}{pol}")
            a(f"global_load_dword v127, v116, {sp(b)}{pol}")
    elif OPT["pf2"] == 2:
        a("v_lshrrev_b32 v114, 1, v0")
        a("v_and_b32 v114, 28, v114")
        a(f"ds_bpermute_b32 v115, v114, v{v}")
        a("v_and_b32 v114, 7, v0")
        a("s_waitcnt lgkmcnt(0)")
        a("v_lshl_add_u32 v115, v114, 4, v115")
        for k in range(8):
            a(f"global_load_dwordx4 v[204:207], v115, {sp(b)}{pol}")
            if k < 7:
                a(f"v_add_u32 v115, {delta:#x}, v115")
    elif OPT["pf2"]:
        a("v_lshlrev_b32 v114, 6, v0")
        a("v_and_b32 v114, 64, v114")
        a(f"v_add_u32_dpp v115, v{v}, v114 quad_perm:[0,0,2,2] row_mask:0xf bank_mask:0xf")
        a(f"v_add_u32_dpp v116, v{v}, v114 quad_perm:[1,1,3,3] row_mask:0xf bank_mask:0xf")
        if PFWAIT[0]:
            a("s_waitcnt lgkmcnt(0)")
        a(f"global_load_dword v127, v115, {sp(b)}{pol}")
        a(f"global_load_dword v127, v116, {sp(b)}{pol}")
    else:
        if PFWAIT[0]:
            a("s_waitcnt lgkmcnt(0)")
        a(f"global_load_dword v127, v{v}, {sp(b)}{pol}")
    PFWAIT[0] = False


PFWAIT = [False]
HELP = [False]
NPF = (1, 2, 8)[OPT["pf2"]]


def stub(name, over=False):
    if not OPT["warm"]:
        return
    if over:
        a(f"s_branch {name}o")
    a.label(name)
    a("s_setpc_b64 s[58:59]")
    if over:
        a.label(f"{name}o")


def warm(calls):
    if not OPT["warm"]:
        return
    if OPT["stamps"] or OPT["probe"]:
        a("s_waitcnt lgkmcnt(0)")
    for w, names in calls.items():
        lab = uid("wm")
        a(f"s_cmp_lg_u32 s{sWAVE}, {w}")
        a(f"s_cbranch_scc1 {lab}")
        for n in names:
            a(f"s_call_b64 s[58:59], {n}")
        a.label(lab)


def sels():
    a(f"s_mov_b32 s{sLO}, 0x05040100")
    a(f"s_mov_b32 s{sHI}, 0x07060302")


def perms8(W, F, waits=None, hook=None):
    for x in range(4):
        if hook and x == hook[0]:
            a(hook[1])
        if waits is not None and waits[x] == "pf":
            a("s_cbranch_scc1 L_A5w")
            a(f"s_waitcnt vmcnt({waits[2] - 2})")
            a.label("L_A5w")
            a(f"s_waitcnt vmcnt({waits[2] - 1})")
        elif waits is not None:
            a(f"s_waitcnt vmcnt({waits[x]})")
        for e in range(8):
            sel = sHI if e & 1 else sLO
            a(f"v_perm_b32 v{F + 4 * e + x}, v{W + 4 * (2 * x + 1) + (e >> 1)}, v{W + 4 * (2 * x) + (e >> 1)}, s{sel}")


def unpack(dst, src, n):
    for i in range(n):
        a(f"v_lshlrev_b32 v{dst + 2 * i}, 16, v{src + i}")
        a(f"v_and_b32 v{dst + 2 * i + 1}, 0xffff0000, v{src + i}")


def round_bf16(regs):
    if len(regs) == 1:
        a(f"v_cvt_pk_bf16_f32 v{regs[0]}, v{regs[0]}, v{regs[0]}")
        a(f"v_lshlrev_b32 v{regs[0]}, 16, v{regs[0]}")
        return
    for i in range(0, len(regs), 2):
        a(f"v_cvt_pk_bf16_f32 v{regs[i + 1]}, v{regs[i]}, v{regs[i + 1]}")
    for i in range(0, len(regs), 2):
        a(f"v_lshlrev_b32 v{regs[i]}, 16, v{regs[i + 1]}")
        a(f"v_and_b32 v{regs[i + 1]}, 0xffff0000, v{regs[i + 1]}")


def poll_begin():
    lab = uid("poll")
    a(f"s_mov_b32 s{sCNT}, {OPT['limit']}")
    a.label(lab)
    return lab


def poll_mid(cnt="vmcnt(0)", sleep=None):
    sleep = OPT["psleep"] if sleep is None else sleep
    if sleep and cnt.startswith("vm"):
        a(f"s_sleep {sleep}")
    a(f"s_sub_u32 s{sCNT}, s{sCNT}, 1")
    a(f"s_cselect_b64 {sp(sMK)}, 0, -1")
    a(f"s_waitcnt {cnt}")


def poll_end(lab):
    a(f"s_and_b64 vcc, vcc, {sp(sMK)}")
    a(f"s_cbranch_scc1 {lab}")


def sentinel_ops(regs, tmp):
    regs = list(regs)
    out = []
    if len(regs) == 2:
        out.append(f"v_max_u32 v{tmp}, v{regs[0]}, v{regs[1]}")
    else:
        out.append(f"v_max3_u32 v{tmp}, v{regs[0]}, v{regs[1]}, v{regs[2]}")
        rest = regs[3:]
        while len(rest) >= 2:
            out.append(f"v_max3_u32 v{tmp}, v{tmp}, v{rest[0]}, v{rest[1]}")
            rest = rest[2:]
        if rest:
            out.append(f"v_max_u32 v{tmp}, v{tmp}, v{rest[0]}")
    out.append(f"v_cmp_eq_u32 vcc, -1, v{tmp}")
    return out


def interleave(major, minor, per):
    minor = list(minor)
    for ins in major:
        a(ins)
        for _ in range(per):
            if minor:
                a(minor.pop(0))
    for ins in minor:
        a(ins)


def make_tag(vE):
    a(f"v_readfirstlane_b32 s{sTAG}, v{vE}")
    a("s_nop 1")
    a(f"s_mul_i32 s{sTAG}, s{sTAG}, 1664525")
    a(f"s_add_u32 s{sTAG}, s{sTAG}, 1013904223")


DPPM = "row_mask:0xf bank_mask:0xf"


def row_allsum(v):
    for n in (8, 4, 2, 1):
        a(f"v_add_f32_dpp v{v}, v{v}, v{v} row_ror:{n} {DPPM}")


def cross_rows(op, v, tmp):
    a(f"v_mov_b32 v{tmp}, v{v}")
    a(f"v_permlane16_swap_b32 v{tmp}, v{v}")
    a(f"{op} v{v}, v{v}, v{tmp}")
    a(f"v_mov_b32 v{tmp}, v{v}")
    a(f"v_permlane32_swap_b32 v{tmp}, v{v}")
    a(f"{op} v{v}, v{v}, v{tmp}")


def mfma(d, x, y, c=None):
    return f"v_mfma_f32_16x16x32_bf16 {vr(d, 4)}, {vr(x, 4)}, {vr(y, 4)}, {vr(c, 4) if c is not None else 0}"


def diagX_reduce(ACC, T):
    for e in range(8):
        a(f"v_add_f32_dpp v{T + e}, v{ACC + 4 * e + 1}, v{ACC + 4 * e} row_shl:4 {DPPM}")
    for e in range(8):
        a(f"v_add_f32_dpp v{T + e}, v{ACC + 4 * e + 2}, v{T + e} row_shl:8 {DPPM}")
    for e in range(8):
        a(f"v_add_f32_dpp v{T + e}, v{ACC + 4 * e + 3}, v{T + e} row_shl:12 {DPPM}")


def sum8_b64(r):
    if OPT["fin"]:
        assert a.lines[-1] == "s_waitcnt lgkmcnt(0)"
        a.lines.pop()
        a("s_waitcnt lgkmcnt(2)")
        a(f"v_pk_add_f32 v[{r}:{r + 1}], v[{r}:{r + 1}], v[{r + 2}:{r + 3}]")
        a(f"v_pk_add_f32 v[{r + 4}:{r + 5}], v[{r + 4}:{r + 5}], v[{r + 6}:{r + 7}]")
        a("s_waitcnt lgkmcnt(1)")
        a(f"v_pk_add_f32 v[{r + 8}:{r + 9}], v[{r + 8}:{r + 9}], v[{r + 10}:{r + 11}]")
        a(f"v_pk_add_f32 v[{r}:{r + 1}], v[{r}:{r + 1}], v[{r + 4}:{r + 5}]")
        a("s_waitcnt lgkmcnt(0)")
        a(f"v_pk_add_f32 v[{r + 12}:{r + 13}], v[{r + 12}:{r + 13}], v[{r + 14}:{r + 15}]")
        a(f"v_pk_add_f32 v[{r}:{r + 1}], v[{r}:{r + 1}], v[{r + 8}:{r + 9}]")
        a(f"v_pk_add_f32 v[{r}:{r + 1}], v[{r}:{r + 1}], v[{r + 12}:{r + 13}]")
        return
    for t in range(4):
        a(f"v_pk_add_f32 v[{r + 4 * t}:{r + 4 * t + 1}], v[{r + 4 * t}:{r + 4 * t + 1}], v[{r + 4 * t + 2}:{r + 4 * t + 3}]")
    a(f"v_pk_add_f32 v[{r}:{r + 1}], v[{r}:{r + 1}], v[{r + 4}:{r + 5}]")
    a(f"v_pk_add_f32 v[{r + 8}:{r + 9}], v[{r + 8}:{r + 9}], v[{r + 12}:{r + 13}]")
    a(f"v_pk_add_f32 v[{r}:{r + 1}], v[{r}:{r + 1}], v[{r + 8}:{r + 9}]")


def gu_loads(half):
    for jj in range(4):
        r, off = ((176, 3584 * (jj - 1)) if jj < 3 else (178, 0))
        a(f"global_load_dwordx4 {vr(16 + 16 * half + 4 * jj, 4)}, v[{r + 4 * half}:{r + 4 * half + 1}], off offset:{off}{NTW}")


def gu_addr():
    a(f"s_min_u32 s{sT1}, s{sM}, 13")
    a(f"s_mul_i32 s{sT0}, s{sG}, 14")
    a(f"s_add_u32 s{sT0}, s{sT0}, s{sT1}")
    a(f"s_lshl_b32 s{sT0}, s{sT0}, 5")
    a(f"s_mul_i32 s{sT1}, s{sT4}, {128 * 3584}")
    a(f"s_add_u32 s{sT0}, s{sT0}, s{sT1}")
    a(f"s_add_u32 s{sT0}, s{sT0}, 3584")
    a("v_lshrrev_b32 v8, 1, v3")
    a("v_and_b32 v9, 1, v3")
    a("v_lshlrev_b32 v8, 6, v8")
    a("v_lshl_add_u32 v8, v9, 2, v8")
    a("v_and_b32 v9, 3, v1")
    a("v_lshl_add_u32 v8, v9, 3, v8")
    a("v_mul_u32_u24 v10, 3584, v8")
    a("v_and_b32 v9, 1, v2")
    a("v_lshl_add_u32 v10, v9, 4, v10")
    a(f"v_add_u32 v10, s{sT0}, v10")
    a("v_mov_b32 v11, 0")
    a("v_cmp_lt_u32 vcc, 1, v2")
    a(f"v_mov_b32 v176, s{sWG}")
    a(f"v_mov_b32 v177, s{sWG + 1}")
    a(f"v_mov_b32 v178, s{sWU}")
    a(f"v_mov_b32 v179, s{sWU + 1}")
    a("v_cndmask_b32 v176, v176, v178, vcc")
    a("v_cndmask_b32 v177, v177, v179, vcc")
    a("v_lshl_add_u64 v[176:177], v[10:11], 0, v[176:177]      ; row +1")
    a(f"v_mov_b32 v10, {2 * 3584}")
    a("v_lshl_add_u64 v[178:179], v[10:11], 0, v[176:177]      ; row +3")
    a(f"v_mov_b32 v10, {32 * 3584}")
    a("v_lshl_add_u64 v[180:181], v[10:11], 0, v[176:177]")
    a("v_lshl_add_u64 v[182:183], v[10:11], 0, v[178:179]")


def modb_loads():
    a(f"global_load_dwordx4 v[132:135], v124, {sp(sBC)} offset:-4096 sc1")
    a(f"global_load_dwordx4 v[136:139], v124, {sp(sBC)} sc1")
    a(f"global_load_dwordx4 v[140:143], v125, {sp(sBC)} sc1")


W, F, ACC = 16, 48, 16
KR, VR, SA, VT, OA = 16, 48, 80, 144, 80


def a_regs(on):
    global sBA, sBB, sBC, sMK
    sBA, sBB, sBC, sMK = (6, 8, 10, 12) if on else (32, 34, 36, 38)


def sec_ffn():
    HELP[0] = False
    a_regs(True)
    CLS[0] = 1
    stub("L_s0")
    a.label("L_FF")
    a(f"s_cmp_ge_u32 s{sM}, 14")
    a("s_cbranch_scc1 L_fin2")
    a(f"s_lshl_b32 s{sT0}, s{sT4}, 10")
    a("v_and_b32 v9, 15, v0")
    a("s_barrier")
    if OPT["xml"]:
        a(f"global_load_dwordx2 v[128:129], v119, {sp(sBB)}")
        a(f"global_load_dwordx2 v[130:131], v119, {sp(sBB)} offset:64")
        modb_loads()
    for half in range(OPT["gue"], 2):
        gu_loads(half)
    a("v_lshlrev_b32 v12, 4, v9")
    a("v_lshl_add_u32 v12, v3, 12, v12")
    a("v_add_u32 v13, 0x4000, v12")
    base(sBA, sWS, sT0, H4)
    a(f"s_lshl_b32 s{sT1}, s{sT0}, 1")
    base(sBB, sWS, sT1, X1)
    a(f"s_lshr_b32 s{sT1}, s{sG}, 1")
    a(f"s_and_b32 s{sT2}, s{sG}, 1")
    a(f"s_lshl2_add_u32 s{sT1}, s{sT2}, s{sT1}")
    a("v_and_b32 v15, 7, v1")
    a(f"v_cmp_eq_u32 s[20:21], s{sT1}, v15")

    a(f"s_lshl_b32 s{sT1}, s{sT4}, 9")
    a(f"s_add_u32 s{sT1}, s{sT1}, {LY}")
    a("v_lshlrev_b32 v5, 7, v3")
    a("v_lshl_add_u32 v5, v2, 5, v5")
    a(f"v_add_u32 v5, s{sT1}, v5")
    a("v_and_b32 v6, 1, v0")
    a("v_lshlrev_b32 v6, 4, v6")
    a("v_mov_b32 v7, 0x3f80")
    a("v_lshlrev_b32 v6, v6, v7")
    a("v_lshrrev_b32 v7, 1, v9")
    for x in range(8):
        a(f"v_cmp_eq_u32 vcc, {x}, v7")
        a(f"v_cndmask_b32 v{(120 + x) if x < 4 else (88 + x)}, 0, v6, vcc")
    a(f"s_lshl_b32 s{sT1}, s{sT4}, 2")
    a(f"s_add_u32 s{sT1}, s{sT1}, {LST}")
    a("v_and_b32 v6, 3, v1")
    a("v_lshlrev_b32 v6, 5, v6")
    a("v_lshl_add_u32 v6, v3, 3, v6")
    a(f"v_add_u32 v6, s{sT1}, v6")
    a("s_waitcnt vmcnt(8)")
    for ins in sentinel_ops(range(132, 144), 14):
        a(ins)
    a("s_cbranch_vccz L_FF1")
    lab = poll_begin()
    modb_loads()
    poll_mid()
    for ins in sentinel_ops(range(132, 144), 14):
        a(ins)
    poll_end(lab)
    a.label("L_FF1")
    base(sBC, sWS, sT0, H4B)
    a("v_lshlrev_b32 v124, 7, v1")
    a("v_lshl_add_u32 v124, v2, 4, v124")
    XV, GA, P0, P1 = 96, 104, 112, 84
    unpack(XV, 128, 4)
    unpack(GA, 132, 4)
    unpack(P0, 140, 4)
    for i in range(8):
        a(f"v_add_f32 v{P0 + i}, 1.0, v{P0 + i}")
    for i in range(4):
        a(f"v_cvt_pk_bf16_f32 v{140 + i}, v{P0 + 2 * i}, v{P0 + 2 * i + 1}")
    unpack(P0, 140, 4)
    CBF = 140
    for i in range(8):
        a(f"v_mul_f32 v{P1 + i}, v{GA + i}, v{P0 + i}")
    for i in range(8):
        a(f"v_mul_f32 v{P0 + i}, v{XV + i}, v{P0 + i}")
    stub("L_s1", True)
    perms8(W, F, waits=[6, 4, 2, 0], hook=(OPT["ge"], "s_barrier") if OPT["ge"] else None)
    stamp(9)
    if OPT["gate"] and not OPT["adap"] and not OPT["ge"]:
        a("s_barrier")

    def h4_loads():
        for t in range(4):
            for hf in range(2):
                a(f"global_load_dwordx4 {vr(16 + 8 * t + 4 * hf, 4)}, v{12 + hf}, {sp(sBA)} offset:{256 * t} sc1")

    def h4_first():
        chk = sentinel_ops(range(16, 48), 14)
        seq = [mfma(80, 120, 16), mfma(80, 120, 20, 80), mfma(8, 120, 24), mfma(8, 120, 28, 8),
               mfma(80, 92, 32, 80), mfma(80, 92, 36, 80), mfma(8, 92, 40, 8), mfma(8, 92, 44, 8)]
        cuts = [0, 3, 7, 11, 17]
        for p in range(4):
            a(f"s_waitcnt vmcnt({14 - 2 * p})")
            interleave(seq[2 * p:2 * p + 2], chk[cuts[p]:cuts[p + 1]], 2)

    UA, UB = 144, 176
    if OPT["adap"]:
        a(f"ds_read_b32 v14, v4 offset:{LGT}")
    if OPT["ge"]:
        a("s_barrier")
        h4_loads()
    for e in range(8):
        a(mfma(UA + 4 * e, 136, F + 4 * e))
    if OPT["adap"]:
        a("s_waitcnt lgkmcnt(0)")
        a(f"v_readfirstlane_b32 s{sT2}, v14")
        a("s_nop 1")
        a(f"s_cmp_eq_u32 s{sT2}, 0")
        a("s_cbranch_scc1 L_FFa")
        h4_loads()
        a.label("L_FFa")
    dv = [f"v_add_f32_dpp v{128 + e}, v{UA + 4 * e + k}, v{UA + 4 * e if k == 1 else 128 + e} row_shl:{4 * k} {DPPM}"
          for k in (1, 2, 3) for e in range(8)]
    interleave([mfma(UB + 4 * e, CBF, F + 4 * e) for e in range(8)], dv[:16], 2)
    if OPT["gsh"] and not OPT["ge"]:
        a("s_barrier")
        h4_loads()
    for ins in dv[16:]:
        a(ins)
    set_exec(0x000F000F000F000F)
    a(f"ds_write_b128 v5, v[128:131] offset:{LV - LY}")
    a(f"ds_write_b128 v5, v[132:135] offset:{LV - LY + 16}")
    set_exec(-1)
    diagX_reduce(UB, 144)
    set_exec(0x000F000F000F000F)
    a(f"ds_write_b128 v5, v[144:147] offset:{LU - LY}")
    a(f"ds_write_b128 v5, v[148:151] offset:{LU - LY + 16}")
    set_exec(-1)
    a(f"s_mov_b32 s{sCNT}, {OPT['limit']}")
    if OPT["adap"]:
        a(f"s_cmp_lg_u32 s{sT2}, 0")
    stub("L_s2", True)
    a("s_waitcnt lgkmcnt(0)")
    a("s_barrier")
    stamp(8)
    if OPT["adap"]:
        a("s_cbranch_scc1 L_FF2")
    if OPT["h4b"]:
        assert OPT["gsh"] and OPT["prog"]
        for t in range(4):
            for hf in range(2):
                a(f"global_load_dwordx4 {vr(176 + 8 * t + 4 * hf, 4)}, v{12 + hf}, {sp(sBC)} offset:{256 * t} sc1")
        h4_first()
        a("s_cbranch_vccz L_FF4")
        a("s_waitcnt vmcnt(0)")
        for i in range(16):
            a(f"v_mov_b64 v[{16 + 2 * i}:{17 + 2 * i}], v[{176 + 2 * i}:{177 + 2 * i}]")
    if OPT["gsh"]:
        a("s_branch L_FF2")
    lab = uid("poll")
    a.label(lab)
    h4_loads()
    a.label("L_FF2")
    if OPT["prog"]:
        poll_mid("vmcnt(6)")
        chk = sentinel_ops(range(16, 48), 14)
        seq = [mfma(80, 120, 16), mfma(80, 120, 20, 80), mfma(8, 120, 24), mfma(8, 120, 28, 8),
               mfma(80, 92, 32, 80), mfma(80, 92, 36, 80), mfma(8, 92, 40, 8), mfma(8, 92, 44, 8)]
        cuts = [0, 3, 7, 11, 17]
        for p in range(4):
            if p:
                a(f"s_waitcnt vmcnt({6 - 2 * p})")
            interleave(seq[2 * p:2 * p + 2], chk[cuts[p]:cuts[p + 1]], 2)
    else:
        poll_mid()
        seq = [mfma(80, 120, 16), mfma(8, 120, 24), mfma(80, 120, 20, 80), mfma(8, 120, 28, 8),
               mfma(80, 92, 32, 80), mfma(8, 92, 40, 8), mfma(80, 92, 36, 80), mfma(8, 92, 44, 8)]
        interleave(seq, sentinel_ops(range(16, 48), 14), 2)
    poll_end(lab)
    if OPT["h4b"]:
        a.label("L_FF4")
        a("s_nop 0")
    stamp(12)
    if OPT["stamps"] == 1:
        a(f"v_writelane_b32 v126, s{sCNT}, 13")
    att = [80, 82, 8, 10]
    for i in range(4):
        a(f"v_pk_fma_f32 v[{P0 + 2 * i}:{P0 + 2 * i + 1}], v[{att[i]}:{att[i] + 1}], v[{P1 + 2 * i}:{P1 + 2 * i + 1}], v[{P0 + 2 * i}:{P0 + 2 * i + 1}]")
    for i in range(4):
        a(f"v_cvt_pk_bf16_f32 v{84 + i}, v{P0 + 2 * i}, v{P0 + 2 * i + 1}")
    st = []
    for i in range(4):
        st.append(f"v_pk_fma_f32 v[{XV + 2 * i}:{XV + 2 * i + 1}], v[{att[i]}:{att[i] + 1}], v[{GA + 2 * i}:{GA + 2 * i + 1}], v[{XV + 2 * i}:{XV + 2 * i + 1}]")
    st.append(f"v_pk_mul_f32 v[8:9], v[{XV}:{XV + 1}], v[{XV}:{XV + 1}]")
    st.append(f"v_pk_add_f32 v[14:15], v[{XV}:{XV + 1}], v[{XV + 2}:{XV + 3}]")
    for i in range(1, 4):
        st.append(f"v_pk_fma_f32 v[8:9], v[{XV + 2 * i}:{XV + 2 * i + 1}], v[{XV + 2 * i}:{XV + 2 * i + 1}], v[8:9]")
        if i > 1:
            st.append(f"v_pk_add_f32 v[14:15], v[14:15], v[{XV + 2 * i}:{XV + 2 * i + 1}]")
    st.append("v_add_f32 v8, v8, v9")
    st.append("v_add_f32 v14, v14, v15")
    st.append("v_permlane32_swap_b32 v14, v8")
    st.append("v_add_f32 v14, v14, v8")
    interleave([mfma(ACC + 4 * e, 84, F + 4 * e) for e in range(2)], st[:4], 2)
    a(f"s_cmp_eq_u32 s{sM}, 13")
    a("s_cbranch_scc1 L_FFx")
    a.label("L_FF3")
    interleave([mfma(ACC + 4 * e, 84, F + 4 * e) for e in range(2, 8)], st[4:], 2)
    d1 = [f"v_add_f32_dpp v{104 + e}, v{ACC + 4 * e + 1}, v{ACC + 4 * e} row_shl:4 {DPPM}" for e in range(8)]
    d2 = [f"v_add_f32_dpp v{104 + e}, v{ACC + 4 * e + 2}, v{104 + e} row_shl:8 {DPPM}" for e in range(8)]
    d3 = [f"v_add_f32_dpp v{104 + e}, v{ACC + 4 * e + 3}, v{104 + e} row_shl:12 {DPPM}" for e in range(8)]
    for ins in d1[:3]:
        a(ins)
    a(f"v_add_f32_dpp v14, v14, v14 quad_perm:[1,0,3,2] {DPPM}")
    for ins in d1[3:6]:
        a(ins)
    a(f"v_add_f32_dpp v14, v14, v14 quad_perm:[2,3,0,1] {DPPM}")
    for ins in d2[:3]:
        a(ins)
    a("v_mov_b32 v15, v14")
    for ins in d1[6:] + d2[3:5]:
        a(ins)
    a("v_permlane16_swap_b32 v15, v14")
    for ins in d2[5:]:
        a(ins)
    a("v_add_f32 v14, v14, v15")
    for ins in d3:
        a(ins)
    set_exec(0x000F000F000F000F)
    a("ds_write_b128 v5, v[104:107]")
    a("ds_write_b128 v5, v[108:111] offset:16")
    set_exec(0x0000111100001111)
    a("ds_write_b32 v6, v14")
    set_exec(-1)
    a("s_waitcnt lgkmcnt(0)")
    a("s_barrier")
    stamp(10)
    a.label("L_fin2")
    finish_wave()
    stub("L_s3")
    a.label("L_FFx")
    for i in range(4):
        a(f"v_cvt_pk_bf16_f32 v{128 + i}, v{XV + 2 * i}, v{XV + 2 * i + 1}")
    a("s_mov_b64 exec, s[20:21]")
    a(f"global_store_dwordx4 v124, v[128:131], {sp(sBB)} sc1")
    set_exec(-1)
    a("s_branch L_FF3")

    a.label("L_FF0")
    a(f"s_cmp_lg_u32 s{sWAVE}, 0")
    a("s_cbranch_scc1 L_fin2")
    if OPT["gate"]:
        a(f"s_cmp_eq_u32 s{sM}, 15")
        a("s_cbranch_scc1 L_fin2")
        base(sBA, sWS, None, GATE)
        a("v_lshlrev_b32 v5, 7, v0")
        a("v_and_b32 v7, 0x380, v5")
        a("v_add_u32 v7, 0x2000, v7")
        a(f"s_movk_i32 s{sCNT}, 60")
        if not OPT["adap"]:
            a("s_barrier                      ; 2c")
        a.label("L_FFg")
        if OPT["gatew"]:
            a(f"global_load_dword v6, v5, {sp(sBA)} sc1")
        a(f"global_load_dword v8, v7, {sp(sBA)} sc1")
        poll_mid()
        if OPT["gatew"]:
            a("v_max_u32 v8, v6, v8")
        a("v_cmp_eq_u32 vcc, -1, v8")
        poll_end("L_FFg")
        stamp(10)
        if OPT["gate"] > 1:
            if OPT["gskip"]:
                a(f"s_cmp_eq_u32 s{sCNT}, 59")
                a("s_cbranch_scc1 L_FFh")
            a(f"s_sleep {OPT['gate'] - 1}")
            a.label("L_FFh")
        if OPT["adap"]:
            a("v_mov_b32 v6, 1")
            a(f"ds_write_b32 v4, v6 offset:{LGT}")
    a(f"s_cmp_ge_u32 s{sM}, 14")
    a("s_cbranch_scc1 L_fin2")
    if OPT["gate"] and not OPT["fin"]:
        a("s_barrier                      ; 3")
    a("v_bfe_u32 v8, v0, 3, 2")
    a("v_lshlrev_b32 v5, 7, v8")
    a("v_and_b32 v6, 7, v0")
    a("v_lshl_add_u32 v5, v6, 3, v5")
    a("v_lshrrev_b32 v6, 5, v0")
    a("v_lshl_add_u32 v5, v6, 2, v5")
    a("v_add_u32 v6, 64, v5")
    a("v_lshlrev_b32 v8, 5, v8")
    a(f"s_mul_i32 s{sT0}, s{sG}, 14")
    a(f"s_add_u32 s{sT0}, s{sT0}, s{sM}")
    a(f"s_lshl_b32 s{sT0}, s{sT0}, 7")
    base(sBA, sWS, sT0, ACT)
    a("v_lshlrev_b32 v7, 2, v0")
    a(f"s_mov_b32 s{sT1}, {INV512:#x}")
    if OPT["gate"] and OPT["fin"]:
        a("s_barrier                      ; g")
    if not OPT["gate"] or OPT["gsh"]:
        a("s_barrier                      ; 3")
    for k, L0 in enumerate((LU, LV)):
        o = L0 // 256
        a(f"ds_read2st64_b32 v[{16 + 8 * k}:{17 + 8 * k}], v5 offset0:{o} offset1:{o + 2}")
        a(f"ds_read2st64_b32 v[{18 + 8 * k}:{19 + 8 * k}], v5 offset0:{o + 4} offset1:{o + 6}")
        a(f"ds_read2st64_b32 v[{20 + 8 * k}:{21 + 8 * k}], v6 offset0:{o} offset1:{o + 2}")
        a(f"ds_read2st64_b32 v[{22 + 8 * k}:{23 + 8 * k}], v6 offset0:{o + 4} offset1:{o + 6}")
    a("s_waitcnt lgkmcnt(0)")
    for k in range(4):
        a(f"v_pk_add_f32 v[{16 + 4 * k}:{17 + 4 * k}], v[{16 + 4 * k}:{17 + 4 * k}], v[{18 + 4 * k}:{19 + 4 * k}]")
    for k in range(4):
        a(f"v_add_f32 v{40 + k}, v{16 + 4 * k}, v{17 + 4 * k}")
    a("s_barrier                      ; 4")
    o = LY // 256
    a(f"ds_read_b128 v[24:27], v8 offset:{LST}")
    a(f"ds_read_b128 v[28:31], v8 offset:{LST + 16}")
    a(f"ds_read2st64_b32 v[16:17], v5 offset0:{o} offset1:{o + 2}")
    a(f"ds_read2st64_b32 v[18:19], v5 offset0:{o + 4} offset1:{o + 6}")
    a(f"ds_read2st64_b32 v[20:21], v6 offset0:{o} offset1:{o + 2}")
    a(f"ds_read2st64_b32 v[22:23], v6 offset0:{o + 4} offset1:{o + 6}")
    a("s_waitcnt lgkmcnt(4)")
    a("v_pk_add_f32 v[24:25], v[24:25], v[26:27]")
    a("v_pk_add_f32 v[28:29], v[28:29], v[30:31]")
    a("v_add_f32 v24, v24, v25")
    a("v_add_f32 v28, v28, v29")
    a(f"v_mul_f32 v24, s{sT1}, v24             ; mean")
    a("v_mul_f32 v25, v24, v24")
    a(f"v_fma_f32 v28, v28, s{sT1}, -v25       ; variance")
    a("v_max_f32 v28, 0, v28")
    a(f"v_add_f32 v28, {EPS:#x}, v28")
    a("v_rsq_f32 v28, v28")
    a("s_waitcnt lgkmcnt(0)")
    a("v_pk_add_f32 v[16:17], v[16:17], v[18:19]")
    a("v_pk_add_f32 v[20:21], v[20:21], v[22:23]")
    a("v_add_f32 v16, v16, v17")
    a("v_add_f32 v17, v20, v21")
    a("v_fma_f32 v16, -v24, v40, v16")
    a("v_fma_f32 v17, -v24, v41, v17")
    a("v_fma_f32 v16, v16, v28, v42          ; gate")
    a("v_fma_f32 v17, v17, v28, v43          ; up")
    a(f"v_mul_f32 v18, {0x80000000 | LOG2E:#x}, v16")
    a("v_exp_f32 v18, v18")
    a("v_mul_f32 v16, v16, v17")
    a("v_add_f32 v18, 1.0, v18")
    a("v_rcp_f32 v18, v18")
    a("v_mul_f32 v16, v16, v18")
    a("v_mov_b32 v17, v16")
    a("v_permlane32_swap_b32 v16, v17")
    a("v_cvt_pk_bf16_f32 v16, v16, v17")
    set_exec(0xFFFFFFFF)
    a(f"global_store_dword v7, v16, {sp(sBA)} sc1")
    stamp(11)
    finish_wave()


def wq_pf():
    a(f"s_lshl_b32 s{sT0}, s{sT0}, 6")
    a(f"s_add_u32 s{sT0}, s{sT0}, s{sT1}")
    a(f"s_lshl_b32 s{sT0}, s{sT0}, 10")
    a("v_lshlrev_b32 v8, 13, v14")
    a("v_lshl_add_u32 v8, v15, 7, v8")
    a(f"v_add_u32 v8, s{sT0}, v8")
    prefetch(8, sWQ, delta=8192)


def sec_entry():
    HELP[0] = False
    a(f"{NAME}_kernel:")
    a("s_load_dwordx16 s[4:19], s[0:1], 0")
    a("s_load_dwordx8 s[20:27], s[0:1], 64")
    a("s_load_dwordx2 s[30:31], s[0:1], 104")
    if OPT["stamps"]:
        a("v_mov_b32 v126, 0")
        a("s_memrealtime s[100:101]")
    if OPT["probe"]:
        a("s_memrealtime s[100:101]")
    a("s_cmp_ge_u32 s2, 256")
    a("s_cbranch_scc1 L_exit")
    a("v_lshrrev_b32 v1, 6, v0")
    if OPT["pf"]:
        a(f"s_getpc_b64 {sp(sPC)}")
        a.label("L_pc0")
        a("v_lshlrev_b32 v2, 7, v0")
    a(f"v_readfirstlane_b32 s{sWAVE}, v1")
    if OPT["pf"]:
        a(f"s_sub_u32 s{sPC}, s{sPC}, L_pc0-L_code0")
        a(f"s_subb_u32 s{sPC + 1}, s{sPC + 1}, 0")
        a("v_cmp_gt_u32 vcc, (L_exit-L_code0)/128, v0")
        if OPT["cpf1"]:
            a("s_and_b32 s33, s2, 0xf8")
            a("s_cmp_lg_u32 s33, 0x78")
            a("s_cbranch_scc1 L_nopf")
        a("s_cbranch_vccz L_nopf")
        a("s_mov_b64 exec, vcc")
        a(f"global_load_dword v127, v2, {sp(sPC)}")
        a("s_mov_b64 exec, -1")
        a.label("L_nopf")
    a("v_and_b32 v0, 63, v0")
    a(f"s_and_b32 s{sT1}, s2, 7")
    a(f"s_lshr_b32 s{sT2}, s2, 3")
    if OPT["mix"]:
        a(f"s_and_b32 s{sT0}, s{sT2}, 17")
        a(f"s_cmp_eq_u32 s{sT0}, 17")
        a(f"s_addc_u32 s{sT1}, s{sT1}, 0")
        a(f"s_and_b32 s{sT1}, s{sT1}, 7")
    a("v_lshrrev_b32 v1, 2, v0        ; l>>2")
    a("v_and_b32 v2, 3, v0            ; l&3")
    a("v_lshrrev_b32 v3, 4, v0        ; l>>4")
    a("v_mov_b32 v4, 0")
    a("v_and_b32 v5, 3, v1")
    a("v_lshrrev_b32 v14, 3, v0")
    a("v_and_b32 v15, 7, v0")
    if OPT["pfw"]:
        a(f"s_cmp_lg_u32 s{sWAVE}, {0 if OPT['pfw'] < 3 else 2}")
        a("s_cbranch_scc1 L_nopfa")
        a("s_setprio 3")
        a(f"v_lshl_add_u32 v6, s{sT2}, 4, v1")
        a("v_mul_u32_u24 v6, 6144, v6")
        a("v_and_b32 v7, 2, v0")
        a("v_lshl_add_u32 v6, v7, 9, v6")
        if OPT["pfw"] != 2:
            a("v_and_b32 v7, 1, v0")
            a("v_lshl_add_u32 v6, v7, 6, v6")
        a(f"v_lshl_add_u32 v6, s{sT1}, 7, v6")
        a("s_waitcnt lgkmcnt(0)")
        a(f"global_load_dword v127, v6, {sp(sWM)}")
        a("s_setprio 0")
        a.label("L_nopfa")
    a("s_cmp_lt_u32 s2, 128")
    a("s_cbranch_scc1 L_G")
    if OPT["kfirst"]:
        a("s_setprio 3")
    a(f"s_sub_u32 s{sT2}, s{sT2}, 16             ; a = 4b + s")
    if OPT["afirst"]:
        PFWAIT[0] = True
        if OPT["ahelp"]:
            assert 8 * OPT["nq"] + 4 * OPT["nb"] + 4 * OPT["nm"] + 16 * OPT["na"] == 64
            a(f"s_cmp_ge_u32 s{sWAVE}, {OPT['na']}")
            a("s_cbranch_scc1 L_nopfq")
            a(f"s_lshl4_add_u32 s{sT0}, s{sWAVE}, s{sT2}")
            a(f"s_add_u32 s{sT0}, s{sT0}, {64 - 16 * OPT['na']}")
            wq_pf()
            a.label("L_nopfq")
    a(f"s_and_b32 s{sT0}, s{sT2}, 12")
    a(f"s_lshl_b32 s{sT0}, s{sT0}, 1")
    a(f"s_add_u32 s{sT0}, s{sT0}, s{sT1}")
    a(f"s_lshl_b32 s{sT0}, s{sT0}, 4")
    a(f"s_and_b32 s{sT3}, s{sT2}, 3")
    a(f"s_add_u32 s{sT0}, s{sT0}, s{sT3}")
    if OPT["ilv"]:
        a(f"s_lshl_b32 s{sT0}, s{sT0}, 6")
        a(f"s_add_u32 s{sT0}, s{sT0}, s{sWAVE}")
        a(f"s_lshl_b32 s{sT0}, s{sT0}, 10")
        a(f"s_add_u32 s{sT0}, s{sT0}, {3072 * 256}")
        a(f"s_movk_i32 s{sT3}, 8192")
    else:
        a(f"s_lshl_b32 s{sT0}, s{sT0}, 3")
        a(f"s_add_u32 s{sT0}, s{sT0}, s{sWAVE}")
        a(f"s_lshl_b32 s{sT0}, s{sT0}, 13")
        a(f"s_add_u32 s{sT0}, s{sT0}, {3072 * 256 + (0 if OPT['dma'] else 4096)}")
    if OPT["dma"]:
        a("v_and_b32 v8, 15, v0")
        a("v_lshlrev_b32 v9, 2, v3")
        a("v_xor_b32 v9, v9, v8")
        a("v_lshlrev_b32 v9, 4, v9")
        a("v_lshl_add_u32 v16, v3, 8, v9")
        for x in range(1, 4):
            a(f"v_xor_b32 v{16 + x}, {16 * x}, v16")
        a(f"s_lshl_b32 s{sT3}, s{sWAVE}, 13")
        a(f"s_add_u32 m0, s{sT3}, {LK}")
    a("v_lshlrev_b32 v7, 4, v0")
    a("s_waitcnt lgkmcnt(0)")
    base(sBA, sK, sT0)
    base(sBB, sV, sT0)
    if OPT["stag"] >= 3:
        a("s_barrier")
    elif OPT["stag"]:
        a("s_waitcnt lgkmcnt(0)")
        a(f"s_load_dword s{45}, {sp(sWS)}, 0")
        a("s_waitcnt lgkmcnt(0)")
    a(f"global_load_dword v12, v4, {sp(sWS)} sc1      ; epoch")
    if OPT["pfaw"] == 1:
        a(f"s_cmp_lg_u32 s{sWAVE}, 2")
        a("s_cbranch_scc1 L_nopfa")
        a("v_lshrrev_b32 v8, 1, v0")
        a(f"v_lshl_add_u32 v8, s{sT2}, 5, v8")
        a("v_mul_u32_u24 v8, 6144, v8")
        a("v_and_b32 v9, 1, v0")
        a("v_lshl_add_u32 v8, v9, 10, v8")
        a(f"v_lshl_add_u32 v8, s{sT1}, 7, v8")
        prefetch(8, sWM, delta=4 * 6144)
        a.label("L_nopfa")
    if not OPT["afirst"]:
        if OPT["ahelp"]:
            assert 8 * OPT["nq"] + 4 * OPT["nb"] + 4 * OPT["nm"] + 16 * OPT["na"] == 64
            a(f"s_cmp_ge_u32 s{sWAVE}, {OPT['na']}")
            a("s_cbranch_scc1 L_nopfq")
            a(f"s_lshl4_add_u32 s{sT0}, s{sWAVE}, s{sT2}")
            a(f"s_add_u32 s{sT0}, s{sT0}, {64 - 16 * OPT['na']}")
            wq_pf()
            a.label("L_nopfq")
    if OPT["athr"] < 8:
        a(f"s_cmp_lt_u32 s{sWAVE}, {OPT['athr']}")
        a("s_cbranch_scc1 L_Ald")
        a("s_waitcnt vmcnt(0)")
        a.label("L_Ald")
    for u in range(8):
        if OPT["kthr"] and u >= OPT["kthr"]:
            a(f"s_waitcnt vmcnt({OPT['kthr'] - 1})")
        if OPT["dma"]:
            if u == 4:
                a("s_add_u32 m0, m0, 4096")
                a(f"s_add_u32 s{sBA}, s{sBA}, 4096")
                a(f"s_addc_u32 s{sBA + 1}, s{sBA + 1}, 0")
            a(f"global_load_lds_dwordx4 v{16 + (u & 3)}, {sp(sBA)} offset:{1024 * (u & 3)}{NT}")
        elif OPT["ilv"]:
            a(f"global_load_dwordx4 {vr(KR + 4 * u, 4)}, v7, {sp(sBA)}{NT}")
            if u < 7:
                a(f"v_add_u32 v7, s{sT3}, v7")
        else:
            a(f"global_load_dwordx4 {vr(KR + 4 * u, 4)}, v7, {sp(sBA)} offset:{1024 * u - 4096}{NT}")
    if OPT["kfirst"]:
        a("s_setprio 0")
    if OPT["kstage"]:
        a(f"s_cmp_ge_u32 s{sWAVE}, 4")
        a("s_cbranch_scc1 L_A2")
    for u in range(0 if OPT["vlate"] else 8):
        a(f"global_load_dwordx4 {vr(VR + 4 * u, 4)}, v7, {sp(sBB)} offset:{1024 * u - 4096}{NT}")
    a("s_branch L_A2")
    a.label("L_G")
    a(f"s_and_b32 s{sT3}, s{sT2}, 1")
    a(f"s_lshr_b32 s{sT0}, s{sT2}, 2")
    a(f"s_and_b32 s{sT0}, s{sT0}, 2")
    a(f"s_or_b32 s{sKIND}, s{sT3}, s{sT0}")
    if OPT["pfa"] and not OPT["pfaw"] and not OPT["pfw"]:
        a("v_lshrrev_b32 v6, 1, v0")
        if OPT["pfq"]:
            a(f"v_lshl_add_u32 v6, s{sT2}, 5, v6")
        else:
            a(f"s_and_b32 s{sT0}, s{sWAVE}, 1")
            a(f"s_xor_b32 s{sT0}, s{sT0}, s{sT2}")
            a(f"v_lshl_add_u32 v6, s{sT0}, 5, v6")
        a("v_mul_u32_u24 v6, 6144, v6")
        a("v_and_b32 v7, 1, v0")
        a("v_lshl_add_u32 v6, v7, 10, v6")
        a(f"v_lshl_add_u32 v6, s{sT1}, 7, v6")
        if OPT["pfq"]:
            a(f"s_cmp_lg_u32 s{sWAVE}, 0")
        else:
            a(f"s_lshr_b32 s{sT0}, 0x21, s{sWAVE}")
            a(f"s_and_b32 s{sT0}, s{sT0}, s{sT3}")
            a(f"s_cmp_eq_u32 s{sT0}, 0")
        a("s_cbranch_scc1 L_nopfa")
        PFWAIT[0] = True
        prefetch(6, sWM, delta=4 * 6144)
        a.label("L_nopfa")
    a(f"s_bfe_u32 s{sT0}, s{sT2}, 0x20001")
    a(f"s_lshl2_add_u32 s{sCNT}, s{sT1}, s{sT0}      ; p = 4g + ((m>>1)&3)")
    a(f"s_cmp_eq_u32 s{sKIND}, 1")
    a("s_cbranch_scc1 L_GA")
    if OPT["stag"] == 1:
        a("s_waitcnt lgkmcnt(0)")
        a(f"s_load_dword s{45}, {sp(sWS)}, 0")
        a("s_waitcnt lgkmcnt(0)")
    if not OPT["nb"]:
        a(f"s_cmp_eq_u32 s{sKIND}, 3")
        a("s_cbranch_scc1 L_GB")
    a(f"s_sub_u32 s{sT4}, s{sWAVE}, 1")
    a(f"s_lshr_b32 s{sT0}, s{sT2}, 1")
    if OPT["nb"]:
        a(f"s_lshl3_add_u32 s32, s{sT4}, s{sT0}")
        a(f"s_lshl2_add_u32 s33, s{sT4}, s{sT0}")
        a(f"s_add_u32 s33, s33, {8 * OPT['nq'] - 4}")
        a(f"s_cmp_eq_u32 s{sKIND}, 3")
        a(f"s_cselect_b32 s{sT0}, s33, s32")
        a(f"s_cselect_b32 s32, {OPT['nb']}, {OPT['nq']}")
        a(f"s_cmp_ge_u32 s{sT4}, s32")
    else:
        a(f"s_lshl3_add_u32 s{sT0}, s{sT4}, s{sT0}")
        a(f"s_cmp_ge_u32 s{sT4}, {OPT['nq']}")
    a("s_cbranch_scc1 L_nopfw")
    PFWAIT[0] = True
    wq_pf()
    a.label("L_nopfw")
    a(f"s_cmp_eq_u32 s{sKIND}, 3")
    a("s_cbranch_scc1 L_GB")
    a(f"s_lshl_b32 s{sT0}, s{sWAVE}, 9")
    a(f"s_add_u32 s{sT0}, s{sT0}, s{sT1}")
    a(f"s_lshl4_add_u32 s{sT0}, s{sT0}, s{sT2}")
    a(f"s_lshl_b32 s{sT0}, s{sT0}, 6")
    a("v_lshlrev_b32 v6, 16, v14")
    a("v_lshl_add_u32 v6, v15, 4, v6")
    a(f"s_movk_i32 s{sT3}, 8192")
    a(f"s_lshr_b32 s{sT4}, s{sT2}, 2")
    a(f"s_lshl2_add_u32 s{sT4}, s{sT1}, s{sT4}")
    a(f"s_mul_i32 s{sT4}, s{sT4}, {NREP * 128}")
    if OPT["qfast"] == 1:
        a(f"s_bfe_u32 s{sCNT}, s{sT2}, 0x10001")
    else:
        a(f"s_and_b32 s{sCNT}, s{sT2}, 2")
        a(f"s_add_u32 s{sCNT}, s{sCNT}, s{sWAVE}")
    a(f"s_lshl2_add_u32 s{sT4}, s{sCNT}, s{sT4}")
    a(f"s_add_u32 s{sT4}, s{sT4}, {FL:#x}")
    a(f"v_and_b32 v96, {NREP - 1}, v0")
    a(f"v_lshl_add_u32 v96, v96, 7, s{sT4}")
    a("s_waitcnt lgkmcnt(0)")
    base(sBB, sWQ, sT0)
    a(f"global_load_dword v12, v4, {sp(sWS)} sc1      ; epoch")
    if OPT["stag"] == 4 or OPT["qbar"]:
        a("s_barrier")
    if not OPT["ftb"]:
        a(f"s_cmp_lg_u32 s{sWAVE}, 1")
        a("s_cbranch_scc1 L_G_ld")
        a(f"global_load_dword v127, v96, {sp(sWS)} sc1")
    a.label("L_G_ld")
    for j in range(8):
        a(f"global_load_dwordx4 {vr(W + 4 * j, 4)}, v6, {sp(sBB)}{NT}")
        if j < 7:
            a(f"v_add_u32 v6, s{sT3}, v6")
    a(f"s_cmp_eq_u32 s{sKIND}, 1")
    a("s_cbranch_scc0 L_GQ2")
    a("s_branch L_GM2")
    a.label("L_GA")
    a(f"s_cmp_ge_u32 s{sWAVE}, 4")
    a("s_cbranch_scc1 L_GQA")
    if OPT["split"]:
        a(f"s_andn2_b32 s{sT0}, s{sCNT}, 1")
        a(f"s_lshl_b32 s{sT0}, s{sT0}, 5")
        a(f"s_bitcmp0_b32 s{sCNT}, 0")
        a(f"s_cselect_b32 s{sT3}, 1024, 0")
        a(f"s_add_u32 s{sT0}, s{sT0}, s{sT3}")
    else:
        a(f"s_lshl_b32 s{sT0}, s{sCNT}, 5")
    a(f"s_mul_i32 s{sT3}, s{sWAVE}, {128 * 6144}")
    a(f"s_add_u32 s{sT0}, s{sT0}, s{sT3}")
    a("v_lshlrev_b32 v5, 10, v5")
    a("v_lshl_add_u32 v5, v3, 6, v5")
    a("v_lshl_add_u32 v5, v2, 4, v5")
    a(f"v_lshl_add_u32 v5, s{sWAVE}, 8, v5")
    a("v_mul_u32_u24 v6, 49152, v1")
    if OPT["split"]:
        a("v_lshl_add_u32 v6, v2, 4, v6")
    else:
        a("v_and_b32 v7, 1, v2")
        a("v_lshl_add_u32 v6, v7, 4, v6")
        a("v_lshrrev_b32 v7, 1, v2")
        a("v_lshl_add_u32 v6, v7, 10, v6")
    a("v_mov_b32 v96, 0")
    if OPT["pfaw"] == 2:
        a(f"s_lshl1_add_u32 s{sT4}, s{sT2}, s{sWAVE}")
        a(f"s_sub_u32 s{sT4}, s{sT4}, 2")
        a("v_lshrrev_b32 v13, 1, v0")
        a(f"v_lshl_add_u32 v13, s{sT4}, 5, v13")
        a("v_mul_u32_u24 v13, 6144, v13")
        a("v_and_b32 v7, 1, v0")
        a("v_lshl_add_u32 v13, v7, 10, v13")
        a(f"v_lshl_add_u32 v13, s{sT1}, 7, v13")
    a(f"s_movk_i32 s{sT3}, 6144")
    a("s_waitcnt lgkmcnt(0)")
    base(sBB, sWM, sT0)
    a(f"global_load_dwordx4 v[8:11], v5, {sp(sC)}")
    if OPT["pfaw"] == 2:
        prefetch(13, sWM, delta=4 * 6144)
        a("s_barrier")
    if OPT["abar"]:
        a("s_barrier")
        if OPT["abar"] == 2:
            a("s_waitcnt vmcnt(0)")
    a("s_branch L_G_ld")
    a.label("L_GQA")
    a("s_setprio 3")
    a("v_and_b32 v7, 15, v0")
    a("v_lshlrev_b32 v13, 10, v3")
    a("v_lshl_add_u32 v14, v7, 4, v13")
    if OPT["split"]:
        a("v_lshl_add_u32 v15, v7, 2, v13")
        a(f"s_andn2_b32 s{sT0}, s{sCNT}, 1")
        a(f"v_lshl_add_u32 v15, s{sT0}, 5, v15")
    else:
        a("v_lshl_add_u32 v15, v7, 1, v13")
        a(f"v_lshl_add_u32 v15, s{sCNT}, 5, v15")
    a("s_waitcnt lgkmcnt(0)")
    a(f"s_cmp_lg_u32 s{sWAVE}, 7")
    a("s_cbranch_scc1 L_GQA1")
    a(f"global_load_dword v12, v4, {sp(sWS)} sc1      ; epoch")
    for t in range(4):
        a(f"global_load_dwordx4 {vr(80 + 4 * t, 4)}, v14, {sp(sX)} offset:{256 * t}")
    a(f"global_load_{'dword' if OPT['split'] else 'ushort'} v13, v15, {sp(sX)}")
    a.label("L_GQA1")
    if OPT["abar"]:
        a("s_barrier")
    if OPT["clra"]:
        a(f"s_cmp_eq_u32 s{sWAVE}, 6")
        a("s_cbranch_scc1 L_GC")
    if OPT["nm"]:
        a(f"s_sub_u32 s{sT4}, s{sWAVE}, 4")
        a(f"s_cmp_ge_u32 s{sT4}, {OPT['nm']}")
        a("s_cbranch_scc1 L_GQA2")
        a(f"s_lshr_b32 s{sT0}, s{sT2}, 1")
        a(f"s_lshl2_add_u32 s{sT0}, s{sT4}, s{sT0}")
        a(f"s_add_u32 s{sT0}, s{sT0}, {8 * OPT['nq'] + 4 * OPT['nb']}")
        a("v_lshrrev_b32 v14, 3, v0")
        a("v_and_b32 v15, 7, v0")
        wq_pf()
    a("s_branch L_GQA2")
    if OPT["clra"]:
        a.label("L_GC")
        a(f"s_mul_i32 s{sT0}, s{sCNT}, {CLR_PER_WG * 1024}")
        a("v_lshlrev_b32 v6, 4, v0")
        for i in range(4):
            a(f"v_mov_b32 v{8 + i}, -1")
        base(sBA, sWS, sT0, CLR + 4096)
        a(f"global_load_dword v12, v4, {sp(sWS)} sc1      ; epoch")
        for i in range(CLR_PER_WG):
            a(f"global_store_dwordx4 v6, v[8:11], {sp(sBA)} offset:{1024 * i - 4096} sc1")
        base(sBB, sWS, None, CF)
        a(f"v_lshlrev_b32_e64 v5, 7, s{sCNT}")
        a("s_waitcnt vmcnt(0)")
        make_tag(12)
        a(f"v_mov_b32 v6, s{sTAG}")
        set_exec(1)
        a(f"global_store_dword v5, v6, {sp(sBB)} sc1")
        set_exec(-1)
        a("s_branch L_GQA2")
        a.label("L_GB")
        a("s_waitcnt lgkmcnt(0)")
        a(f"global_load_dword v12, v4, {sp(sWS)} sc1      ; epoch")
        a("s_branch L_GB2")
    else:
        a.label("L_GB")
        a(f"s_cmp_lg_u32 s{sWAVE}, 7")
        a("s_cbranch_scc1 L_GB1")
        a("s_setprio 3")
        a(f"s_mul_i32 s{sT0}, s{sCNT}, {CLR_PER_WG * 1024}")
        a("v_lshlrev_b32 v6, 4, v0")
        for i in range(4):
            a(f"v_mov_b32 v{8 + i}, -1")
        a("s_waitcnt lgkmcnt(0)")
        base(sBA, sWS, sT0, CLR + 4096)
        a(f"global_load_dword v12, v4, {sp(sWS)} sc1      ; epoch")
        for i in range(CLR_PER_WG):
            a(f"global_store_dwordx4 v6, v[8:11], {sp(sBA)} offset:{1024 * i - 4096} sc1")
        a("s_branch L_GB2")


def ids():
    a(f"s_mov_b32 s{sG}, s{sT1}")
    a(f"s_mov_b32 s{sM}, s{sT2}")
    sels()
    if OPT["stamps"]:
        a("s_mov_b32 m0, 0")
    if OPT["probe"]:
        a("v_mov_b32 v208, s100")
        a("v_mov_b32 v209, s100")
        a("v_mov_b32 v210, 0")
        a(f"s_getreg_b32 s100, hwreg(HW_REG_XCC_ID, 0, 4)")
        a("v_mov_b32 v211, s100")


def silu_frag():
    unpack(80, 8, 4)
    for i in range(8):
        a(f"v_mul_f32 v{88 + i}, {0x80000000 | LOG2E:#x}, v{80 + i}")
    for i in range(8):
        a(f"v_exp_f32 v{88 + i}, v{88 + i}")
    for i in range(8):
        a(f"v_add_f32 v{88 + i}, 1.0, v{88 + i}")
    for i in range(8):
        a(f"v_rcp_f32 v{88 + i}, v{88 + i}")
    for i in range(8):
        a(f"v_mul_f32 v{80 + i}, v{80 + i}, v{88 + i}")
    for i in range(4):
        a(f"v_cvt_pk_bf16_f32 v{8 + i}, v{80 + 2 * i}, v{81 + 2 * i}")


def xcc_flag():
    a(f"s_lshr_b32 s{sT0}, s{sM}, 2")
    a(f"s_lshl2_add_u32 s{sT0}, s{sG}, s{sT0}")
    a(f"s_mul_i32 s{sT0}, s{sT0}, {NREP * 128}")
    a(f"s_and_b32 s{sT1}, s{sM}, 2")
    a(f"s_lshl1_add_u32 s{sT0}, s{sT1}, s{sT0}")
    a(f"s_add_u32 s{sT0}, s{sT0}, {FL + 16:#x}")
    a(f"v_and_b32 v5, {NREP - 1}, v0")
    a(f"v_lshl_add_u32 v5, v5, 7, s{sT0}")
    a(f"s_getreg_b32 s{sT0}, hwreg(HW_REG_XCC_ID, 0, 4)")
    a(f"s_xor_b32 s{sT0}, s{sTAG}, s{sT0}")
    a(f"v_mov_b32 v6, s{sT0}")
    a(f"global_store_dword v5, v6, {sp(sWS)}")


def q_trigger(lab):
    a(f"s_mul_i32 s{sT0}, s{sG}, {4 * NREP * 128}")
    base(sBA, sWS, sT0, FL)
    a("v_and_b32 v9, 3, v1")
    a(f"v_mul_u32_u24 v9, {NREP * 128}, v9")
    a("v_lshl_add_u32 v9, v2, 2, v9")
    a(f"s_mov_b32 s45, s{sCNT}")
    a(f"s_movk_i32 s{sCNT}, 40")
    a.label(lab)
    a(f"global_load_dword v10, v9, {sp(sBA)} sc1")
    poll_mid(sleep=2)
    a(f"v_xor_b32 v10, s{sTAG}, v10")
    a("v_cmp_gt_u32 vcc, 16, v10")
    a("s_cmp_eq_u64 vcc, 0")
    a("s_cselect_b64 vcc, -1, 0")
    poll_end(lab)
    a(f"s_mov_b32 s{sCNT}, s45")


def h_trigger(lab):
    base(sBA, sWS, None, H1 + 4)
    a("v_lshlrev_b32 v9, 7, v0")
    a(f"s_mov_b32 s45, s{sCNT}")
    a(f"s_movk_i32 s{sCNT}, 40")
    a.label(lab)
    a(f"global_load_dword v10, v9, {sp(sBA)} sc1")
    poll_mid(sleep=2)
    a(f"v_cmp_ne_u32 vcc, s{sTAG}, v10")
    poll_end(lab)
    a(f"s_mov_b32 s{sCNT}, s45")


def cf_poll():
    base(sBB, sWS, None, CF)
    a("v_and_b32 v5, 31, v0")
    a("v_lshlrev_b32 v5, 7, v5")
    lab = poll_begin()
    a(f"global_load_dword v6, v5, {sp(sBB)} sc1")
    poll_mid(sleep=4)
    a(f"v_cmp_ne_u32 vcc, s{sTAG}, v6")
    poll_end(lab)


def tile64_tail(first):
    for e in range(first, 8):
        a(mfma(ACC + 4 * e, 8, F + 4 * e))
    for e in range(8):
        a(f"v_add_f32_dpp v{80 + e}, v{ACC + 4 * e + 1}, v{ACC + 4 * e} row_shl:8 {DPPM}")
    set_exec(0x00FF00FF00FF00FF)
    a("ds_write_b128 v6, v[80:83]")
    a("ds_write_b128 v6, v[84:87] offset:16")
    set_exec(-1)


def tile64_addr():
    a("v_lshlrev_b32 v6, 8, v3")
    a("v_lshl_add_u32 v6, v15, 5, v6")
    a(f"v_lshl_add_u32 v6, s{sWAVE}, 10, v6")
    a("v_lshlrev_b32 v7, 3, v0")
    a(f"v_lshl_add_u32 v7, s{sWAVE}, 9, v7")


def tile64_sum():
    for t in range(4):
        a(f"ds_read2st64_b64 {vr(16 + 4 * t, 4)}, v7 offset0:{4 * t} offset1:{4 * t + 2}")


def sec_gm():
    HELP[0] = False
    CLS[0] = 4
    a.label("L_GM2")
    ids()
    stamp(1)
    a("s_waitcnt vmcnt(8)")
    silu_frag()
    a("v_lshlrev_b32 v5, 7, v3")
    a("v_lshl_add_u32 v5, v2, 5, v5")
    a(f"v_lshl_add_u32 v5, s{sWAVE}, 9, v5")
    perms8(W, F, waits=[6, 4, 2, 0])
    for e in range(8):
        a(mfma(ACC + 4 * e, 8, F + 4 * e))
    diagX_reduce(ACC, 48)
    set_exec(0x000F000F000F000F)
    a("ds_write_b128 v5, v[48:51]")
    a("ds_write_b128 v5, v[52:55] offset:16")
    set_exec(-1)
    a("s_waitcnt lgkmcnt(0)")
    stamp(2)
    a("s_barrier                      ; 1")
    if OPT["bhelp"]:
        a(f"s_lshl1_add_u32 s{sT0}, s{sM}, s{sWAVE}")
        a(f"s_add_u32 s{sT0}, s{sT0}, 14")
        a(f"s_mul_i32 s{sT0}, s{sT0}, {16 * 6144}")
        a(f"s_lshl_b32 s{sT1}, s{sG}, 9")
        a(f"s_add_u32 s{sT0}, s{sT0}, s{sT1}")
        a(f"s_add_u32 s{sT0}, s{sT0}, 2048")
        a("v_mul_u32_u24 v8, 6144, v1")
        a("v_lshl_add_u32 v8, v2, 7, v8")
        a(f"v_add_u32 v8, s{sT0}, v8")
        a("s_barrier")
        if OPT["hpull"]:
            a(f"s_cmp_eq_u32 s{sM}, 1")
            a("s_cbranch_scc1 L_DOWN")
        prefetch(8, sWM, delta=2 * 6144)
    a("s_branch L_DOWN")


def sec_gb():
    HELP[0] = True
    CLS[0] = 2
    a.label("L_GB1")
    a("s_waitcnt lgkmcnt(0)")
    if OPT["plan"] == 5:
        a(f"s_sub_u32 s{sT0}, s{sWAVE}, 3")
        a(f"s_cmp_ge_u32 s{sT0}, {OPT['q3']}")
        a("s_cbranch_scc1 L_GB2")
        a(f"s_and_b32 s{sT3}, s{sCNT}, 3")
        a(f"s_lshl2_add_u32 s{sT0}, s{sT0}, s{sT3}")
        a(f"s_sub_u32 s{sT0}, 7, s{sT0}")
        a(f"s_lshl_b32 s{sT0}, s{sT0}, 9")
        a(f"s_add_u32 s{sT0}, s{sT0}, s{sT1}")
        a(f"s_lshl_b32 s{sT0}, s{sT0}, 10")
        a(f"s_add_u32 s{sT0}, s{sT0}, 384")
        a(f"v_lshl_add_u32 v8, v0, 13, s{sT0}")
        prefetch(8, sWQ)
    a.label("L_GB2")
    ids()
    if OPT["ftb"]:
        a(f"s_cmp_lg_u32 s{sWAVE}, 4")
        a("s_cbranch_scc1 L_GBf")
        a(f"s_mul_i32 s{sT0}, s{sCNT}, {NREP * 128}")
        base(sBA, sWS, sT0, FL)
        a(f"v_and_b32 v9, {NREP - 1}, v0")
        a("v_lshlrev_b32 v9, 7, v9")
        a(f"global_load_dword v127, v9, {sp(sBA)} sc1")
        a.label("L_GBf")
    if OPT["qtb"]:
        a(f"s_lshl3_add_u32 s{sT0}, s{sM}, s{sWAVE}")
        a(f"s_cmp_lg_u32 s{sT0}, {11 * 8 + 5}")
        a("s_cbranch_scc1 L_GBq")
        a(f"s_lshl_b32 s{sT0}, s{sG}, 12")
        base(sBA, sWS, sT0, QS)
        a("v_lshlrev_b32 v9, 6, v0")
        a(f"global_load_dword v127, v9, {sp(sBA)} sc1")
        a.label("L_GBq")
    if OPT["h1m"] == 1:
        a(f"s_lshl3_add_u32 s{sT0}, s{sM}, s{sWAVE}")
        a(f"s_cmp_lg_u32 s{sT0}, {9 * 8 + 6}")
        a("s_cbranch_scc1 L_GBh")
        base(sBA, sWS, None, H1)
        a("v_lshlrev_b32 v9, 7, v0")
        a(f"global_load_dword v127, v9, {sp(sBA)} sc1")
        if OPT["split"]:
            a("v_add_u32 v9, 0x2000, v9")
            a(f"global_load_dword v127, v9, {sp(sBA)} sc1")
        a.label("L_GBh")
    a("v_lshlrev_b32 v5, 10, v5")
    a("v_lshl_add_u32 v5, v3, 5, v5")
    a("v_and_b32 v7, 1, v0")
    a("v_lshl_add_u32 v5, v7, 4, v5")
    a(f"v_lshl_add_u32 v16, s{sWAVE}, 7, v5")
    a(f"s_lshl_b32 s{sT0}, s{sCNT}, 7")
    a(f"s_mul_i32 s{sT3}, s{sWAVE}, {64 * 6144}")
    a(f"s_add_u32 s{sT0}, s{sT0}, s{sT3}")
    base(sBC, sWM, sT0, 2048)
    a(f"s_lshl_b32 s{sT4}, s{sCNT}, 9           ; p*512")
    a("v_mul_u32_u24 v13, 49152, v14")
    a("v_lshl_add_u32 v13, v15, 4, v13")
    a(f"s_movk_i32 s{sT3}, 6144")
    if OPT["clra"]:
        a("s_branch L_GB3")
    a(f"s_cmp_lg_u32 s{sWAVE}, 7")
    a("s_cbranch_scc1 L_GB3")
    a("s_waitcnt vmcnt(0)")
    make_tag(12)
    base(sBB, sWS, None, CF)
    a(f"v_lshlrev_b32_e64 v5, 7, s{sCNT}")
    a(f"v_mov_b32 v6, s{sTAG}")
    set_exec(1)
    a(f"global_store_dword v5, v6, {sp(sBB)} sc1")
    set_exec(-1)
    if OPT["late"] & 1:
        (h_trigger if OPT["late"] & 4 else q_trigger)("L_GBt")
    a("s_setprio 0")
    a.label("L_GB3")
    stamp(1)
    if OPT["bcoop"]:
        a(f"s_and_b32 s{sT0}, s{sCNT}, 3")
        a(f"s_lshl2_add_u32 s{sT0}, s{sWAVE}, s{sT0}")
        a(f"s_mul_i32 s{sT0}, s{sT0}, {16 * 6144}")
        a(f"s_lshl_b32 s{sT1}, s{sG}, 9")
        a(f"s_add_u32 s{sT0}, s{sT0}, s{sT1}")
        a(f"s_add_u32 s{sT0}, s{sT0}, 2048")
        a("v_mul_u32_u24 v17, 6144, v1")
        a("v_lshl_add_u32 v17, v2, 7, v17")
        a(f"v_add_u32 v17, s{sT0}, v17")
        if OPT["bcoop"] == 2:
            a(f"s_cmp_ge_u32 s{sWAVE}, 3")
            a("s_cbranch_scc1 L_GBc")
            prefetch(17, sWM, delta=2 * 6144)
            a.label("L_GBc")
    if not OPT["clra"]:
        a("s_barrier")
    if OPT["vb"]:
        a(f"s_and_b32 s{sT2}, s{sCNT}, 3")
        v_help(4)
        a("s_barrier")
    if OPT["bcoop"]:
        if OPT["bcoop"] == 2:
            a(f"s_cmp_lt_u32 s{sWAVE}, 3")
            a("s_cbranch_scc1 L_GBd")
        if OPT["bh2"]:
            a(f"s_cmp_ge_u32 s{sWAVE}, 4")
            a("s_cbranch_scc1 L_GBd")
        prefetch(17, sWM, delta=2 * 6144)
        a.label("L_GBd")
        a("s_barrier")
    if OPT["b3"]:
        a(f"s_and_b32 s{sT0}, s{sCNT}, 3")
        a(f"s_lshl2_add_u32 s{sT1}, s{sWAVE}, s{sT0}")
        a(f"s_cmp_ge_u32 s{sT1}, 3")
        a("s_cbranch_scc1 L_GBe")
        a(f"s_add_u32 s{sT0}, s{sT0}, 5")
        a(f"v_lshl_add_u32 v17, s{sT0}, 6, v0")
        a("v_mul_u32_u24 v17, 6144, v17")
        a(f"s_lshl_b32 s{sT0}, s{sG}, 9")
        a(f"s_add_u32 s{sT0}, s{sT0}, {2048 + 384}")
        a(f"v_add_u32 v17, s{sT0}, v17")
        prefetch(17, sWM)
        a.label("L_GBe")
    a(f"global_load_dwordx4 v[8:11], v16, {sp(sC)}")
    for j in range(8):
        a(f"global_load_dwordx4 {vr(W + 4 * j, 4)}, v13, {sp(sBC)}{NT}")
        if j < 7:
            a(f"v_add_u32 v13, s{sT3}, v13")
    if OPT["gbe"]:
        assert OPT["gua"] <= 2 and not OPT["hp2"]
        base(sBB, sWS, None, CF)
        a("v_and_b32 v5, 31, v0")
        a("v_lshlrev_b32 v5, 7, v5")
        a(f"global_load_dword v100, v5, {sp(sBB)} sc1")
        a("s_barrier")
        gu_help(0, 32)
    ex = 2 if OPT["gbe"] else 0
    a(f"s_waitcnt vmcnt({8 + ex})")
    silu_frag()
    tile64_addr()
    perms8(W, F, waits=[6 + ex, 4 + ex, 2 + ex, ex])
    tile64_tail(0)
    a(f"s_cmp_lg_u32 s{sWAVE}, 7")
    a("s_cbranch_scc1 L_GB4")
    if OPT["clra"]:
        make_tag(12)
    if OPT["gbe"]:
        a("s_waitcnt vmcnt(1)")
        a(f"v_cmp_ne_u32 vcc, s{sTAG}, v100")
        a("s_cbranch_vccz L_GB4")
    cf_poll()
    a.label("L_GB4")
    a("s_waitcnt lgkmcnt(0)")
    stamp(2)
    a("s_barrier                      ; 1")
    a(f"s_cmp_ge_u32 s{sWAVE}, 2")
    a("s_cbranch_scc1 L_HB")
    tile64_sum()
    base(sBA, sWS, sT4, MODB)
    a("v_and_b32 v5, 2, v0")
    a("v_lshlrev_b32 v5, 7, v5")
    a("v_and_b32 v6, 32, v0")
    a("v_lshl_add_u32 v5, v6, 1, v5")
    a(f"v_lshl_add_u32 v5, s{sWAVE}, 7, v5")
    a("v_and_b32 v6, 13, v0")
    a("v_lshl_add_u32 v5, v6, 2, v5")
    a("v_bfe_u32 v6, v0, 4, 1")
    a("v_lshl_add_u32 v5, v6, 3, v5")
    a("s_waitcnt lgkmcnt(0)")
    sum8_b64(16)
    a("v_cvt_pk_bf16_f32 v12, v16, v17")
    a(f"global_store_dword v5, v12, {sp(sBA)} sc1")
    stamp(3)
    a("s_branch L_HB")


def sec_ln():
    HELP[0] = False
    CLS[0] = 3
    a.label("L_GQA2")
    if OPT["pfaw"] == 2:
        a("s_barrier")
    ids()
    stamp(1)
    a(f"s_cmp_lg_u32 s{sWAVE}, 7")
    a("s_cbranch_scc1 L_GQA3")
    a("s_waitcnt vmcnt(0)")
    make_tag(12)
    if OPT["split"]:
        a(f"s_bitcmp1_b32 s{sCNT}, 0")
        a("s_cbranch_scc1 L_LN1")
    unpack(16, 80, 16)
    a("v_pk_add_f32 v[8:9], v[16:17], v[18:19]")
    for i in range(2, 16):
        a(f"v_pk_add_f32 v[8:9], v[8:9], v[{16 + 2 * i}:{17 + 2 * i}]")
    a("v_add_f32 v8, v8, v9")
    row_allsum(8)
    a(f"v_mul_f32 v8, {INV512:#x}, v8       ; mean")
    a("v_mov_b32 v9, v8")
    for i in range(16):
        a(f"v_pk_add_f32 v[{16 + 2 * i}:{17 + 2 * i}], v[{16 + 2 * i}:{17 + 2 * i}], v[8:9] neg_lo:[0,1] neg_hi:[0,1]")
    a("v_pk_mul_f32 v[10:11], v[16:17], v[16:17]")
    for i in range(1, 16):
        a(f"v_pk_fma_f32 v[10:11], v[{16 + 2 * i}:{17 + 2 * i}], v[{16 + 2 * i}:{17 + 2 * i}], v[10:11]")
    a("v_add_f32 v10, v10, v11")
    row_allsum(10)
    a(f"v_mul_f32 v9, {INV512:#x}, v10      ; var")
    round_bf16([8, 9])
    a(f"v_add_f32 v9, {EPS:#x}, v9")
    round_bf16([9])
    a("v_sqrt_f32 v9, v9")
    round_bf16([9])
    a("v_rcp_f32 v9, v9")
    if OPT["split"]:
        unpack(10, 13, 1)
        a("v_sub_f32 v10, v10, v8")
        a("v_sub_f32 v11, v11, v8")
        round_bf16([10, 11])
        a("v_mul_f32 v10, v10, v9")
        a("v_mul_f32 v11, v11, v9")
        round_bf16([10, 11])
        a.label("L_LN1")
        a("v_lshlrev_b32 v5, 3, v0")
        a("v_lshlrev_b32 v14, 6, v3              ; b*64")
        a("v_and_b32 v8, 8, v7")
        a("v_lshl_add_u32 v14, v8, 5, v14        ; (n>>3)*256")
        a("v_and_b32 v8, 4, v7")
        a("v_lshl_add_u32 v14, v8, 3, v14        ; c'lo*32")
        a("v_and_b32 v8, 1, v7")
        a("v_lshl_add_u32 v14, v8, 4, v14        ; (d&1)*16")
        a("v_and_b32 v8, 2, v7")
        a("v_lshl_add_u32 v14, v8, 2, v14        ; (d>>1)*8")
        a(f"s_andn2_b32 s{sT0}, s{sCNT}, 1")
        a(f"s_lshl_b32 s{sT0}, s{sT0}, 8")
        a(f"s_and_b32 s{sT1}, s{sCNT}, 1")
        a(f"s_lshl_b32 s{sT1}, s{sT1}, 13")
        a(f"s_add_u32 s{sT0}, s{sT0}, s{sT1}")
        base(sBA, sWS, sT0, H1)
        a(f"v_mov_b32 v9, s{sTAG}")
        stamp(2)
        a(f"s_bitcmp1_b32 s{sCNT}, 0")
        a("s_barrier                      ; 1")
        a("ds_read2st64_b64 v[80:83], v5 offset0:0 offset1:1")
        a("ds_read2st64_b64 v[84:87], v5 offset0:2 offset1:3")
        a("s_waitcnt lgkmcnt(0)")
        a("v_pk_add_f32 v[80:81], v[80:81], v[82:83]")
        a("v_pk_add_f32 v[84:85], v[84:85], v[86:87]")
        a("v_pk_add_f32 v[80:81], v[80:81], v[84:85]")
        a("v_cvt_pk_bf16_f32 v8, v80, v81")
        a("s_cbranch_scc1 L_LN2")
        unpack(80, 8, 1)
        a("v_add_f32 v80, 1.0, v80")
        a("v_add_f32 v81, 1.0, v81")
        round_bf16([80, 81])
        a("v_pk_mul_f32 v[80:81], v[80:81], v[10:11]")
        a("v_cvt_pk_bf16_f32 v8, v80, v81")
        a.label("L_LN2")
        a(f"global_store_dwordx2 v14, v[8:9], {sp(sBA)} sc1")
    else:
        a("v_lshlrev_b32 v13, 16, v13")
        a("v_sub_f32 v13, v13, v8")
        round_bf16([13])
        a("v_mul_f32 v13, v13, v9")
        round_bf16([13])
        a("v_lshlrev_b32 v5, 7, v3")
        a("v_lshl_add_u32 v5, v7, 2, v5")
        a("v_add_u32 v10, 64, v5")
        a("v_lshlrev_b32 v14, 6, v3              ; b*64")
        a("v_and_b32 v8, 8, v7")
        a("v_lshl_add_u32 v14, v8, 2, v14        ; c'lo*32")
        a("v_and_b32 v8, 2, v7")
        a("v_lshl_add_u32 v14, v8, 3, v14        ; (d&1)*16")
        a("v_and_b32 v8, 4, v7")
        a("v_lshl_add_u32 v14, v8, 1, v14        ; (d>>1)*8")
        a(f"s_lshl_b32 s{sT0}, s{sCNT}, 8")
        base(sBA, sWS, sT0, H1)
        a(f"v_mov_b32 v9, s{sTAG}")
        stamp(2)
        a("s_barrier                      ; 1")
        a("ds_read2st64_b32 v[80:81], v5 offset0:0 offset1:2")
        a("ds_read2st64_b32 v[82:83], v5 offset0:4 offset1:6")
        a("ds_read2st64_b32 v[84:85], v10 offset0:0 offset1:2")
        a("ds_read2st64_b32 v[86:87], v10 offset0:4 offset1:6")
        a("s_waitcnt lgkmcnt(0)")
        a("v_pk_add_f32 v[80:81], v[80:81], v[82:83]")
        a("v_pk_add_f32 v[84:85], v[84:85], v[86:87]")
        a("v_add_f32 v80, v80, v81               ; sa")
        a("v_add_f32 v81, v84, v85               ; ca")
        round_bf16([80, 81])
        a("v_add_f32 v81, 1.0, v81")
        round_bf16([81])
        a("v_mul_f32 v81, v13, v81")
        round_bf16([81])
        a("v_add_f32 v80, v81, v80")
        a(f"v_mov_b32_dpp v81, v80 quad_perm:[1,1,3,3] {DPPM}")
        a("v_cvt_pk_bf16_f32 v8, v80, v81")
        set_exec(0x5555555555555555)
        a(f"global_store_dwordx2 v14, v[8:9], {sp(sBA)} sc1")
        set_exec(-1)
    stamp(3)
    if OPT["late"] & 2:
        (h_trigger if OPT["late"] & 4 else q_trigger)("L_GAt")
    if OPT["bhelp"]:
        a("s_barrier                      ; 1b")
    a("s_branch L_DOWN")
    a.label("L_GQA3")
    if OPT["hpull"]:
        a(f"global_load_dword v12, v4, {sp(sWS)} sc1      ; epoch")
        base(sBA, sWS, None, H1 + 4)
        a("v_lshlrev_b32 v5, 7, v0")
        a("s_waitcnt vmcnt(0)")
        make_tag(12)
    a("s_barrier                      ; 1")
    if OPT["bhelp"]:
        a("s_barrier                      ; 1b")
    if OPT["hpull"]:
        a(f"s_lshl_b32 s{sT0}, s{sM}, 3")
        a(f"s_add_u32 s{sT0}, s{sT0}, s{sWAVE}")
        a(f"s_cmp_lg_u32 s{sT0}, 12")
        a("s_cbranch_scc1 L_DOWN")
        a(f"s_movk_i32 s{sCNT}, 30")
        a.label("L_hp")
        a(f"global_load_dword v6, v5, {sp(sBA)} sc1")
        poll_mid()
        a(f"v_cmp_ne_u32 vcc, s{sTAG}, v6")
        poll_end("L_hp")
    a("s_branch L_DOWN")


def sec_gq():
    HELP[0] = False
    CLS[0] = 0
    a.label("L_GQ2")
    ids()
    stamp(1)
    a(f"s_lshl_b32 s{sT0}, s{sWAVE}, 10")
    base(sBA, sWS, sT0, H1)
    a(f"s_lshl_b32 s{sT0}, s{sWAVE}, 9")
    base(sBC, sWS, sT0, CF)
    a("v_lshlrev_b32 v5, 6, v1")
    a("v_and_b32 v7, 1, v0")
    a("v_lshl_add_u32 v5, v7, 5, v5")
    if OPT["split"]:
        a("v_and_b32 v7, 2, v0")
        a("v_lshl_add_u32 v5, v7, 12, v5")
    a("v_lshlrev_b32 v98, 7, v2")
    tile64_addr()
    a(f"s_lshl_b32 s{sT0}, s{sG}, 12")
    a(f"s_lshl_b32 s{sT1}, s{sM}, 6")
    a(f"s_add_u32 s{sT0}, s{sT0}, s{sT1}")
    a(f"s_and_b32 s{sT1}, s{sWAVE}, 1")
    a(f"s_lshl_b32 s{sT1}, s{sT1}, 11")
    a(f"s_add_u32 s{sT0}, s{sT0}, s{sT1}")
    a("v_and_b32 v97, 31, v0")
    a(f"v_lshl_add_u32 v97, v97, 2, s{sT0}")
    a("v_and_b32 v99, 32, v0")
    a("v_lshl_add_u32 v97, v99, 5, v97")
    a("v_lshlrev_b32 v99, 1, v97")
    base(sBB, sWS, None, QS)
    a.label("L_GQ3")
    if OPT["woe"]:
        a(f"s_cmp_lt_u32 s{sWAVE}, 4")
        a("s_cbranch_scc1 L_GQ4")
        a(f"s_lshl1_add_u32 s{sT0}, s{sM}, s{sWAVE}")
        a(f"s_lshl_b32 s{sT1}, s{sG}, 6")
        a(f"s_add_u32 s{sT0}, s{sT0}, s{sT1}")
        a(f"s_add_u32 s{sT0}, s{sT0}, 28")
        a(f"s_lshl_b32 s{sT0}, s{sT0}, 13")
        a(f"v_lshl_add_u32 v8, v0, 7, s{sT0}")
        prefetch(8, sWO, delta=1024)
        a.label("L_GQ4")
    a("s_waitcnt vmcnt(8)")
    make_tag(12)
    a(f"s_getreg_b32 s{sT0}, hwreg(HW_REG_XCC_ID, 0, 4)")
    a(f"s_xor_b32 s{sT0}, s{sTAG}, s{sT0}")
    a(f"v_mov_b32 v101, s{sT0}")
    if OPT["hearly"]:
        assert OPT["qtb"]
        if OPT["hearly"] > 1:
            a(f"s_waitcnt vmcnt({8 - 2 * (OPT['hearly'] - 1)})")
        a("s_barrier")
        a(f"global_load_dwordx4 v[8:11], v5, {sp(sBA)} sc1")
        a(f"global_load_dwordx4 v[12:15], v5, {sp(sBA)} offset:16 sc1")
        a(f"global_load_dword v84, v98, {sp(sBC)} sc1")
        perms8(W, F, waits=[9, 7, 5, 3])
        stamp(4)
        a(f"s_mov_b32 s{sCNT}, {OPT['limit']}")
        a("s_branch L_GQ6")
    else:
        perms8(W, F, waits=[6, 4, 2, 0])
        stamp(4)
    if OPT["h1m"] >= 2:
        a(f"s_lshl_b32 s{sT0}, s{sG}, 10")
        a(f"s_add_u32 s{sT0}, s{sT0}, {H1 + 4:#x}")
        a("v_and_b32 v9, 7, v0")
        a(f"v_lshl_add_u32 v9, v9, 7, s{sT0}")
        a(f"s_movk_i32 s{sCNT}, 40")
        a.label("L_GQh")
        a(f"global_load_dword v10, v9, {sp(sWS)} sc1")
        poll_mid()
        a(f"v_cmp_ne_u32 vcc, s{sTAG}, v10")
        poll_end("L_GQh")
        if OPT["h1m"] > 2:
            a(f"s_sleep {OPT['h1m'] - 2}")
    lab = poll_begin()
    a(f"global_load_dwordx4 v[8:11], v5, {sp(sBA)} sc1")
    a(f"global_load_dwordx4 v[12:15], v5, {sp(sBA)} offset:16 sc1")
    a(f"global_load_dword v84, v98, {sp(sBC)} sc1")
    if not OPT["qtb"]:
        a(f"global_load_dword v127, v97, {sp(sBB)} sc1")
    a.label("L_GQ6")
    poll_mid()
    if OPT["split"]:
        pay = [8, 12, 10, 14]
        for i in range(4):
            a(f"v_lshlrev_b32 v{88 + 2 * i}, 16, v{pay[i]}")
            a(f"v_and_b32 v{89 + 2 * i}, 0xffff0000, v{pay[i]}")
        a(f"v_xor_b32 v80, s{sTAG}, v9")
        a(f"v_xor_b32 v81, s{sTAG}, v11")
        for i in range(8):
            a(f"v_add_f32_dpp v{88 + i}, v{88 + i}, v{88 + i} quad_perm:[2,3,0,1] {DPPM}")
        for i in range(4):
            a(f"v_cvt_pk_bf16_f32 v{8 + i}, v{88 + 2 * i}, v{89 + 2 * i}")
        a(f"v_xor_b32 v82, s{sTAG}, v13")
        a(f"v_xor_b32 v83, s{sTAG}, v15")
        interleave([mfma(ACC + 4 * e, 8, F + 4 * e) for e in range(2)],
                   [f"v_xor_b32 v84, s{sTAG}, v84", "v_or3_b32 v80, v80, v81, v82", "v_or3_b32 v80, v80, v83, v84", "v_cmp_ne_u32 vcc, 0, v80"], 2)
        poll_end(lab)
        tile64_tail(2)
    else:
        a(f"v_xor_b32 v80, s{sTAG}, v9")
        a(f"v_xor_b32 v81, s{sTAG}, v11")
        a("v_mov_b32 v9, v12")
        a("v_mov_b32 v11, v14")
        a(f"v_xor_b32 v82, s{sTAG}, v13")
        a(f"v_xor_b32 v83, s{sTAG}, v15")
        interleave([mfma(ACC + 4 * e, 8, F + 4 * e) for e in range(2)],
                   [f"v_xor_b32 v84, s{sTAG}, v84", "v_or3_b32 v80, v80, v81, v82", "v_or3_b32 v80, v80, v83, v84", "v_cmp_ne_u32 vcc, 0, v80"], 2)
        poll_end(lab)
        tile64_tail(2)
    a("s_waitcnt lgkmcnt(0)")
    stamp(5)
    a(f"s_cmp_ge_u32 s{sWAVE}, 2")
    a("s_barrier                      ; 1")
    a("s_cbranch_scc1 L_GQ5")
    tile64_sum()
    base(sBA, sWS, None, H2G)
    a("s_waitcnt lgkmcnt(0)")
    sum8_b64(16)
    a("v_cvt_pk_bf16_f32 v100, v16, v17")
    a(f"global_store_dword v97, v100, {sp(sBB)}")
    if OPT["qfast"] != 1:
        if not OPT["qfast"]:
            a("s_waitcnt vmcnt(0)")
        set_exec((1 << NREP) - 1 if NREP < 64 else -1)
        a(f"global_store_dword v96, v101, {sp(sWS)}")
        set_exec(-1)
    a(f"global_store_dwordx2 v99, v[100:101], {sp(sBA)} sc1")
    stamp(6)
    a("s_branch L_WO")
    a.label("L_GQ5")
    if OPT["qfast"] == 1:
        a(f"s_cmp_lg_u32 s{sWAVE}, 2")
        a("s_cbranch_scc1 L_WO")
        set_exec((1 << NREP) - 1 if NREP < 64 else -1)
        a(f"global_store_dword v96, v101, {sp(sWS)}")
        set_exec(-1)
    a("s_branch L_WO")


WD = 128


def down_loads():
    a(f"s_lshr_b32 s{sT2}, s{sM}, 1")
    a(f"s_lshl2_add_u32 s{sT0}, s{sG}, s{sT2}")
    a(f"s_lshl_b32 s{sT0}, s{sT0}, 5")
    a(f"s_lshl_b32 s{sT2}, s{sWAVE}, 18")
    a(f"s_add_u32 s{sT0}, s{sT0}, s{sT2}")
    base(sBB, sWD, sT0, 4096)
    a("v_lshlrev_b32 v6, 13, v1")
    a("v_lshl_add_u32 v6, v2, 3, v6")
    a("v_add_u32 v7, 0x20000, v6")
    for f in range(2):
        for j in range(8):
            a(f"global_load_dwordx2 {vr(WD + 16 * f + 2 * j, 2)}, v{7 if f else 6}, {sp(sBB)} offset:{1024 * j - 4096}{NTW}")


def v_help(wbase):
    a(f"s_lshl3_add_u32 s{sT0}, s{sT2}, s{sG}")
    a(f"s_lshl_b32 s{sT0}, s{sT0}, 4")
    a(f"s_lshr_b32 s{sT1}, s{sWAVE}, 1")
    a(f"s_add_u32 s{sT0}, s{sT0}, s{sT1}")
    a(f"s_and_b32 s{sT1}, s{sWAVE}, 1")
    a(f"s_add_u32 s{sT1}, s{sT1}, {wbase}")
    if OPT["ilv"]:
        a(f"s_lshl_b32 s{sT0}, s{sT0}, 6")
        a(f"s_add_u32 s{sT0}, s{sT0}, s{sT1}")
        a(f"s_lshl_b32 s{sT0}, s{sT0}, 10")
        a(f"s_add_u32 s{sT0}, s{sT0}, {3072 * 256}")
        a("v_lshrrev_b32 v9, 3, v0")
        a("v_and_b32 v10, 7, v0")
        a("v_lshlrev_b32 v9, 13, v9")
        a("v_lshl_add_u32 v9, v10, 7, v9")
        a(f"v_add_u32 v9, s{sT0}, v9")
    else:
        a(f"s_lshl_b32 s{sT0}, s{sT0}, 3")
        a(f"s_add_u32 s{sT0}, s{sT0}, s{sT1}")
        a(f"s_lshl_b32 s{sT0}, s{sT0}, 13")
        a(f"s_add_u32 s{sT0}, s{sT0}, {3072 * 256}")
        a(f"v_lshl_add_u32 v9, v0, 7, s{sT0}")
    prefetch(9, sV, delta=1024)


def gu_item():
    a(f"s_bitcmp0_b32 s{sT4}, 4")
    a(f"s_cselect_b64 s[0:1], {sp(sWU)}, {sp(sWG)}")
    a(f"s_and_b32 s{sT0}, s{sT4}, 15")
    a(f"s_lshl_b32 s{sT0}, s{sT0}, 1")
    a(f"s_cmp_lt_u32 s{sT4}, 32")
    a(f"s_addc_u32 s{sT0}, s{sT0}, 0")
    a(f"s_mul_i32 s{sT0}, s{sT0}, {16 * 3584}")
    a(f"s_mul_i32 s{sT4}, s{sG}, 448")
    a(f"s_andn2_b32 s{sT4}, s{sT4}, 127")
    a(f"s_add_u32 s{sT0}, s{sT0}, s{sT4}")
    a("v_mul_u32_u24 v13, 3584, v1")
    a("v_lshl_add_u32 v13, v2, 7, v13")
    a(f"v_add_u32 v13, s{sT0}, v13")
    prefetch(13, 0, True, 2 * 3584)


def gu_help(lo, hi):
    for first in range(lo, hi, 32):
        lab = uid("gh")
        a(f"s_bfe_u32 s{sT2}, s{sM}, 0x20001")
        a(f"s_sub_u32 s{sT2}, 3, s{sT2}")
        a(f"s_lshl3_add_u32 s{sT2}, s{sT2}, s{sWAVE}")
        if hi - first < 32:
            a(f"s_cmp_ge_u32 s{sT2}, {hi - first}")
            a(f"s_cbranch_scc1 {lab}")
        a(f"s_bitcmp0_b32 s{sT2}, 4")
        a(f"s_cselect_b64 {sp(sBA)}, {sp(sWU)}, {sp(sWG)}")
        a(f"s_and_b32 s{sT0}, s{sT2}, 15")
        a(f"s_lshl2_add_u32 s{sT0}, s{sT0}, {2 if first == 0 else 0}")
        a(f"s_mul_i32 s{sT0}, s{sT0}, {8 * 3584}")
        a(f"s_mul_i32 s{sT1}, s{sG}, 448")
        a(f"s_andn2_b32 s{sT1}, s{sT1}, 127")
        a(f"s_add_u32 s{sT0}, s{sT0}, s{sT1}")
        a("v_mul_u32_u24 v13, 3584, v1")
        a("v_lshl_add_u32 v13, v2, 7, v13")
        a(f"v_add_u32 v13, s{sT0}, v13")
        prefetch(13, sBA, True, 2 * 3584)
        a.label(lab)


def wo_pf(first, per):
    for r in range((per + 7) // 8):
        n = min(8, per - 8 * r)
        lab = uid("wp")
        if n < 8:
            a(f"s_cmp_ge_u32 s{sWAVE}, {n}")
            a(f"s_cbranch_scc1 {lab}")
        a(f"s_mul_i32 s{sT0}, s{sT2}, {per}")
        a(f"s_add_u32 s{sT0}, s{sT0}, s{sWAVE}")
        a(f"s_lshl_b32 s{sT4}, s{sG}, 6")
        a(f"s_add_u32 s{sT0}, s{sT0}, s{sT4}")
        a(f"s_add_u32 s{sT0}, s{sT0}, {first + 8 * r}")
        a(f"s_lshl_b32 s{sT0}, s{sT0}, 13")
        a(f"v_lshl_add_u32 v8, v0, 7, s{sT0}")
        prefetch(8, sWO, delta=1024)
        a.label(lab)


def sec_wo():
    HELP[0] = True
    CLS[0] = 0
    a.label("L_WO")
    a(f"s_lshr_b32 s{sT1}, s{sWAVE}, 1")
    if OPT["dma"]:
        a(f"s_lshl3_add_u32 s{sT0}, s{sG}, s{sWAVE}")
        a(f"s_lshl_b32 s{sT0}, s{sT0}, 10")
        a(f"s_add_u32 s{sT0}, s{sT0}, s{sM}")
        a(f"s_lshl_b32 s{sT0}, s{sT0}, 6")
        base(sBB, sWO, sT0, 4096)
        a("v_and_b32 v9, 15, v0")
        a("v_lshlrev_b32 v6, 13, v3")
        a("v_lshl_add_u32 v6, v9, 2, v6")
        a("v_add_u32 v11, 0x8000, v6")
    else:
        a(f"s_lshl2_add_u32 s{sT0}, s{sG}, s{sT1}")
        a(f"s_lshl_b32 s{sT0}, s{sT0}, 5")
        a(f"s_and_b32 s{sT2}, s{sWAVE}, 1")
        a(f"s_add_u32 s{sT0}, s{sT0}, s{sT2}")
        a(f"s_lshl_b32 s{sT0}, s{sT0}, 6            ; (512g + 128h + 4*(i&1)) * 16")
        a(f"s_add_u32 s{sT0}, s{sT0}, s{sM}")
        a(f"s_lshl_b32 s{sT0}, s{sT0}, 6")
        base(sBB, sWO, sT0)
        a("v_and_b32 v9, 15, v0")
        a("v_and_b32 v6, 1, v3")
        a("v_lshlrev_b32 v6, 16, v6")
        a("v_lshrrev_b32 v5, 1, v3")
        a("v_lshl_add_u32 v6, v5, 10, v6")
        a(f"v_lshl_add_u32 v6, v9, {3 if OPT['wod'] else 2}, v6")
    a(f"s_movk_i32 s{sT3}, 8192")
    a(f"s_lshl3_add_u32 s{sT0}, s{sG}, s{sWAVE}")
    a(f"s_lshl_b32 s{sT0}, s{sT0}, 11")
    base(sBA, sWS, sT0, H3O)
    a("v_lshlrev_b32 v5, 4, v0")
    a(f"s_lshr_b32 s{sT2}, s{sM}, 1")
    a("s_barrier")
    if OPT["touch"]:
        a(f"s_cmp_lg_u32 s{sWAVE}, s{sT2}")
        a("s_cbranch_scc1 L_WOt")
        a(f"global_load_dwordx4 v[64:67], v5, {sp(sBA)} sc1")
        a(f"global_load_dwordx4 v[68:71], v5, {sp(sBA)} offset:1024 sc1")
        a.label("L_WOt")
    rest = 64 - 4 * OPT["woa"] - 8 * OPT["wob"]
    if OPT["woq"] and rest and not OPT["wod"]:
        wo_pf(4 * OPT["woa"], rest // 8)
    if OPT["guq"]:
        a(f"s_sub_u32 s{sT4}, 7, s{sWAVE}")
        a(f"s_cmp_ge_u32 s{sT4}, {OPT['guq']}")
        a("s_cbranch_scc1 L_WOu")
        a(f"s_lshl3_add_u32 s{sT4}, s{sT4}, s{sT2}")
        a(f"s_add_u32 s{sT4}, s{sT4}, 24")
        gu_item()
        a.label("L_WOu")
    for j in range(8):
        for ks in range(2):
            if OPT["wod"]:
                a(f"global_load_dwordx2 {vr(128 + 16 * ks + 2 * j, 2)}, v6, {sp(sBB)} offset:{2048 * ks} nt")
                continue
            for ch in range(2):
                if OPT["dma"]:
                    a(f"global_load_dword v{128 + 16 * ks + 8 * ch + j}, v{11 if ks else 6}, {sp(sBB)} offset:{1024 * j - 4096 + 64 * ch}{NTW}")
                else:
                    a(f"global_load_dword v{128 + 16 * ks + 8 * ch + j}, v6, {sp(sBB)} offset:{2048 * ks + 64 * ch}{NTW}")
        if j < 7 and not OPT["dma"]:
            a(f"v_add_u32 v6, s{sT3}, v6")
    a(f"s_lshl2_add_u32 s{sT0}, s{sG}, s{sT1}")
    a(f"s_lshl_b32 s{sT0}, s{sT0}, 7")
    base(sBC, sWS, sT0, H3ML)
    a("v_lshlrev_b32 v6, 5, v3")
    a("v_lshlrev_b32 v12, 8, v3")
    a(f"v_lshl_add_u32 v12, v9, {4 if OPT['wod'] else 3}, v12")
    a(f"v_lshl_add_u32 v12, s{sWAVE}, 10, v12")
    a(f"s_lshl4_add_u32 s{sT0}, s{sG}, s{sM}")
    a(f"s_lshl1_add_u32 s{sT0}, s{sT0}, s{sWAVE}")
    a(f"s_lshl_b32 s{sT0}, s{sT0}, 7")
    base(sBB, sWS, sT0, H4)
    a("v_and_b32 v13, 16, v0")
    a("v_lshlrev_b32 v13, 4, v13")
    a("v_and_b32 v10, 32, v0")
    a("v_lshl_add_u32 v13, v10, 1, v13")
    a("v_lshl_add_u32 v13, v9, 2, v13")
    a(f"s_lshl4_add_u32 s{sT0}, s{sG}, s{sM}")
    a(f"s_lshl_b32 s{sT0}, s{sT0}, 6")
    a(f"s_add_u32 s{sT0}, s{sT0}, {GATE:#x}")
    a(f"v_mov_b32 v14, s{sT0}")
    a(f"v_add_u32 v15, {H4B - H4:#x}, v13")
    a("s_waitcnt vmcnt(0)")
    stamp(7)
    if OPT["gate"] and OPT["gatew"]:
        a(f"s_cmp_lg_u32 s{sWAVE}, 7")
        a("s_cbranch_scc1 L_WOg")
        set_exec(1)
        a(f"global_store_dword v14, v4, {sp(sWS)} sc1")
        set_exec(-1)
        a.label("L_WOg")
    for ks in range(2):
        for ch in range(2):
            for eo in range(2):
                for x in range(4):
                    if OPT["wod"]:
                        src = 128 + 16 * ks + 4 * x + ch
                        a(f"v_perm_b32 v{32 + 16 * ks + 8 * ch + 4 * eo + x}, v{src + 2}, v{src}, s{sHI if eo else sLO}")
                        continue
                    src = 128 + 16 * ks + 8 * ch + 2 * x
                    a(f"v_perm_b32 v{32 + 16 * ks + 8 * ch + 4 * eo + x}, v{src + 1}, v{src}, s{sHI if eo else sLO}")
    lab = poll_begin()
    a(f"global_load_dwordx4 v[72:75], v6, {sp(sBC)} sc1")
    a(f"global_load_dwordx4 v[76:79], v6, {sp(sBC)} offset:16 sc1")
    poll_mid(sleep=OPT["mls"])
    for ins in sentinel_ops(range(72, 80), 8):
        a(ins)
    poll_end(lab)
    a(f"global_load_dwordx4 v[64:67], v5, {sp(sBA)} sc1")
    a(f"global_load_dwordx4 v[68:71], v5, {sp(sBA)} offset:1024 sc1")
    a("v_max3_f32 v8, v72, v74, v76")
    a("v_max_f32 v8, v8, v78")
    for s in range(4):
        a(f"v_sub_f32 v{72 + 2 * s}, v{72 + 2 * s}, v8")
    for s in range(4):
        a(f"v_exp_f32 v{72 + 2 * s}, v{72 + 2 * s}")
    a("v_mul_f32 v9, v72, v73")
    for s in range(1, 4):
        a(f"v_fmac_f32 v9, v{72 + 2 * s}, v{73 + 2 * s}")
    a("v_rcp_f32 v9, v9")
    for s in range(4):
        a(f"v_mul_f32 v{80 + s}, v{72 + 2 * s}, v9")
    stamp(8)
    a(f"s_mov_b32 s{sCNT}, {OPT['limit']}")
    a("s_branch L_WO2")
    a.label("L_WO1")
    a(f"global_load_dwordx4 v[64:67], v5, {sp(sBA)} sc1")
    a(f"global_load_dwordx4 v[68:71], v5, {sp(sBA)} offset:1024 sc1")
    a.label("L_WO2")
    if OPT["fin"]:
        chk = sentinel_ops(range(64, 72), 8)
        poll_mid("vmcnt(1)")
        interleave([mfma(16, 64, 32), mfma(20, 64, 36)], chk[:1], 1)
        a("s_waitcnt vmcnt(0)")
        interleave([mfma(16, 68, 48, 16), mfma(20, 68, 52, 20)], chk[1:], 2)
        poll_end("L_WO1")
        for ins in (mfma(24, 64, 40), mfma(28, 64, 44), mfma(24, 68, 56, 24), mfma(28, 68, 60, 28)):
            a(ins)
    else:
        poll_mid()
        interleave([mfma(16 + 4 * c, 64, 32 + 4 * c) for c in range(3)], sentinel_ops(range(64, 72), 8), 2)
        poll_end("L_WO1")
        a(mfma(28, 64, 44))
        for c in range(4):
            a(mfma(16 + 4 * c, 68, 48 + 4 * c, 16 + 4 * c))
    for ch in range(2):
        for c in (2 * ch, 2 * ch + 1):
            a(f"v_pk_mul_f32 v[{16 + 4 * c}:{17 + 4 * c}], v[{16 + 4 * c}:{17 + 4 * c}], v[80:81]")
            a(f"v_pk_fma_f32 v[{16 + 4 * c}:{17 + 4 * c}], v[{18 + 4 * c}:{19 + 4 * c}], v[82:83], v[{16 + 4 * c}:{17 + 4 * c}]")
        a(f"v_add_f32 v{84 + 2 * ch}, v{16 + 8 * ch}, v{17 + 8 * ch}")
        a(f"v_add_f32 v{85 + 2 * ch}, v{20 + 8 * ch}, v{21 + 8 * ch}")
        a(f"ds_write_b64 v12, v[{84 + 2 * ch}:{85 + 2 * ch}] offset:{(8 if OPT['wod'] else 128) * ch}")
    a("s_waitcnt lgkmcnt(0)")
    stamp(9)
    a("s_barrier                      ; 3")
    a(f"s_cmp_ge_u32 s{sWAVE}, 2")
    a("s_cbranch_scc1 L_WOe" if OPT["wbl"] else "s_cbranch_scc1 L_fin")
    tile64_sum()
    a("s_waitcnt lgkmcnt(0)")
    sum8_b64(16)
    a("v_cvt_pk_bf16_f32 v8, v16, v17")
    a(f"global_store_dword v13, v8, {sp(sBB)} sc1")
    if OPT["h4b"]:
        a(f"global_store_dword v15, v8, {sp(sBB)} sc1")
    stamp(10)
    a.label("L_fin")
    finish_wave()
    if OPT["wbl"]:
        a.label("L_WOe")
        a(f"s_lshl3_add_u32 s{sT0}, s{sM}, s{sWAVE}")
        a(f"s_cmp_lg_u32 s{sT0}, 2")
        a("s_cbranch_scc1 L_fin")
        if OPT["wbl"] > 1:
            a(f"s_sleep {OPT['wbl']}")
        a("buffer_wbl2 sc1")
        a("s_waitcnt vmcnt(0)")
        finish_wave()


def sec_down():
    HELP[0] = True
    CLS[0] = 0
    a.label("L_HB")
    a("s_barrier")
    a(f"s_bfe_u32 s{sT2}, s{sM}, 0x20001")
    rest = 64 - 4 * OPT["woa"]
    if not OPT["woq"] and rest:
        wo_pf(4 * OPT["woa"], rest // 4)
    if OPT["wob"]:
        a(f"s_cmp_lg_u32 s{sM}, 11")
        a("s_cbranch_scc1 L_HBo")
        a(f"s_mov_b32 s{sT2}, 0")
        wo_pf(56, 8)
        a.label("L_HBo")
    if OPT["guq"]:
        assert 16 * OPT["gua"] + 24 + 8 * OPT["guq"] == 64 and not OPT["gbe"]
        gu_help(0, 24)
    elif OPT["gua"] < 4:
        gu_help(32 if OPT["gbe"] else 0, 16 * (4 - OPT["gua"]))
    if OPT["wdh"]:
        a(f"s_bfe_u32 s{sT2}, s{sM}, 0x20001")
        a(f"s_cmp_eq_u32 s{sT2}, 0")
        a("s_cbranch_scc1 L_HBd")
        a(f"s_mul_i32 s{sT0}, s{sWAVE}, 3")
        a(f"s_add_u32 s{sT0}, s{sT0}, s{sT2}")
        a(f"s_add_u32 s{sT0}, s{sT0}, {4 * OPT['wdh'] - 1}")
        a(f"s_cmp_ge_u32 s{sT0}, 28")
        a("s_cbranch_scc1 L_HBd")
        a(f"s_lshl_b32 s{sT0}, s{sT0}, 9")
        a(f"s_add_u32 s{sT0}, s{sT0}, s{sG}")
        a(f"s_lshl_b32 s{sT0}, s{sT0}, 7")
        a(f"v_lshl_add_u32 v8, v0, 10, s{sT0}")
        a("s_waitcnt vmcnt(0)")
        prefetch(8, sWD, delta=8192)
        a.label("L_HBd")
    if OPT["xml"]:
        pass
    if OPT["gate"]:
        a(f"s_lshl3_add_u32 s{sT0}, s{sM}, s{sWAVE}")
        a(f"s_cmp_lg_u32 s{sT0}, {9 * 8 + 7}")
        a("s_cbranch_scc1 L_fin")
        a(f"s_lshl_b32 s{sT0}, s{sG}, 9")
        base(sBA, sWS, sT0, H3ML)
        a(f"s_lshl_b32 s{sT0}, s{sG}, 7")
        base(sBB, sWS, sT0, GATE + 0x2000)
        a("v_lshlrev_b32 v5, 3, v0")
        a(f"s_movk_i32 s{sCNT}, 100")
        a.label("L_HBg")
        a(f"global_load_dword v6, v5, {sp(sBA)} sc1")
        poll_mid()
        a("v_cmp_eq_u32 vcc, -1, v6")
        poll_end("L_HBg")
        stamp(8)
        set_exec(1)
        a(f"global_store_dword v4, v4, {sp(sBB)} sc1")
    finish_wave()
    a.label("L_DOWN")
    a("s_setprio 0")
    a("s_barrier")
    a(f"s_lshr_b32 s{sT2}, s{sM}, 1")
    if OPT["vh"]:
        v_help(6)
    if OPT["bh2"]:
        a(f"s_cmp_lt_u32 s{sWAVE}, 4")
        a("s_cbranch_scc1 L_DNb")
        a(f"s_lshl2_add_u32 s{sT0}, s{sWAVE}, s{sT2}")
        a(f"s_mul_i32 s{sT0}, s{sT0}, {16 * 6144}")
        a(f"s_lshl_b32 s{sT1}, s{sG}, 9")
        a(f"s_add_u32 s{sT0}, s{sT0}, s{sT1}")
        a(f"s_add_u32 s{sT0}, s{sT0}, 2048")
        a("v_mul_u32_u24 v8, 6144, v1")
        a("v_lshl_add_u32 v8, v2, 7, v8")
        a(f"v_add_u32 v8, s{sT0}, v8")
        prefetch(8, sWM)
        a.label("L_DNb")
    if OPT["wod"]:
        a(f"s_cmp_ge_u32 s{sWAVE}, {OPT['wo3']}")
        a("s_cbranch_scc1 L_DN3")
        a(f"s_lshl2_add_u32 s{sT0}, s{sWAVE}, s{sT2}")
        a(f"s_sub_u32 s{sT0}, 7, s{sT0}")
        a(f"s_lshl3_add_u32 s{sT0}, s{sG}, s{sT0}")
        a(f"s_lshl_b32 s{sT0}, s{sT0}, 16")
        a(f"s_add_u32 s{sT0}, s{sT0}, 384")
        a(f"v_lshl_add_u32 v8, v0, 10, s{sT0}")
        prefetch(8, sWO)
        a.label("L_DN3")
        if OPT["woa"]:
            wo_pf(64 - 4 * OPT["woa"], OPT["woa"])
    else:
        wo_pf(0, OPT["woa"])
    if OPT["guh"]:
        a(f"s_lshl3_add_u32 s{sT4}, s{sT2}, s{sWAVE}")
        if OPT["guh"] == 1:
            a(f"s_cmp_ge_u32 s{sWAVE}, 4")
            a("s_cbranch_scc1 L_DNu")
            a(f"s_lshl2_add_u32 s{sT4}, s{sT2}, s{sWAVE}")
        a(f"s_bitcmp0_b32 s{sT4}, 4")
        a(f"s_cselect_b64 {sp(sBA)}, {sp(sWU)}, {sp(sWG)}")
        a(f"s_and_b32 s{sT0}, s{sT4}, 15")
        a(f"s_mul_i32 s{sT0}, s{sT0}, {32 * 3584}")
        a(f"s_mul_i32 s{sT1}, s{sG}, 448")
        a(f"s_andn2_b32 s{sT1}, s{sT1}, 127")
        a(f"s_add_u32 s{sT0}, s{sT0}, s{sT1}")
        a("v_mul_u32_u24 v13, 3584, v1")
        a("v_lshl_add_u32 v13, v2, 7, v13")
        a(f"v_add_u32 v13, s{sT0}, v13")
        prefetch(13, sBA, True, 2 * 3584)
        a.label("L_DNu")
    if OPT["wdl"]:
        a(f"s_cmp_lg_u32 s{sWAVE}, 7")
        a("s_cbranch_scc1 L_DNw")
        cf_poll()
        a(f"s_lshl_b32 s{sT0}, s{sG}, 9")
        base(sBA, sWS, sT0, H3ML)
        a("v_lshlrev_b32 v5, 3, v0")
        a(f"s_movk_i32 s{sCNT}, 60")
        a.label("L_DNg")
        a(f"global_load_dword v6, v5, {sp(sBA)} sc1")
        poll_mid(sleep=2)
        a("v_cmp_ne_u32 vcc, -1, v6")
        a("s_cmp_eq_u64 vcc, 0")
        a("s_cselect_b64 vcc, -1, 0")
        poll_end("L_DNg")
        a.label("L_DNw")
        a("s_barrier")
    a(f"s_cmp_eq_u32 s{sWAVE}, 7")
    a("s_cbranch_scc1 L_DN7")
    a(f"s_lshl2_add_u32 s{sT0}, s{sWAVE}, s{sT2}")
    a(f"s_lshl_b32 s{sT0}, s{sT0}, 9")
    a(f"s_add_u32 s{sT0}, s{sT0}, s{sG}")
    a(f"s_lshl_b32 s{sT0}, s{sT0}, 7")
    a(f"v_lshl_add_u32 v8, v0, 10, s{sT0}")
    if OPT["wdh"]:
        a(f"s_cmp_ge_u32 s{sWAVE}, {OPT['wdh']}")
        a("s_cbranch_scc1 L_DNr")
    a("s_waitcnt vmcnt(0)")
    prefetch(8, sWD, delta=8192)
    a.label("L_DNr")
    if OPT["wdh"]:
        a("s_waitcnt vmcnt(0)")
        a("s_barrier")
    a("s_waitcnt vmcnt(0)")
    down_loads()
    a(f"s_lshl_b32 s{sT0}, s{sWAVE}, 11")
    base(sBA, sWS, sT0, ACT)
    a("v_lshlrev_b32 v5, 4, v0")
    a("v_lshlrev_b32 v6, 7, v3")
    a("v_lshl_add_u32 v6, v2, 4, v6")
    a(f"v_lshl_add_u32 v6, s{sWAVE}, 9, v6")
    a("s_waitcnt vmcnt(0)")
    a("s_barrier")
    for f in range(2):
        for e in range(4):
            for x in range(4):
                a(f"v_perm_b32 v{48 + 16 * f + 4 * e + x}, v{WD + 16 * f + 2 * (2 * x + 1) + (e >> 1)}, "
                  f"v{WD + 16 * f + 2 * (2 * x) + (e >> 1)}, s{sHI if e & 1 else sLO}")
    stamp(11)
    a("s_barrier")
    lab = poll_begin()
    a(f"global_load_dwordx4 v[8:11], v5, {sp(sBA)} sc1")
    a(f"global_load_dwordx4 v[12:15], v5, {sp(sBA)} offset:1024 sc1")
    poll_mid()
    interleave([mfma(16 + 4 * e, 8, 48 + 4 * e) for e in range(3)], sentinel_ops(range(8, 16), 7), 2)
    poll_end(lab)
    stamp(5)
    if OPT["stamps"] == 1:
        a(f"v_writelane_b32 v126, s{sCNT}, 6")
    a(mfma(28, 8, 60))
    for e in range(4):
        a(mfma(16 + 4 * e, 12, 64 + 4 * e, 16 + 4 * e))
    for e in range(4):
        for b0 in range(2):
            a(f"v_add_f32_dpp v{32 + 4 * b0 + e}, v{16 + 4 * e + 2 * b0 + 1}, v{16 + 4 * e + 2 * b0} row_shl:4 {DPPM}")
    set_exec(0x0F000F00000F000F)
    a("ds_write_b128 v6, v[32:35] offset:10240")
    a("ds_write_b128 v6, v[36:39] offset:10304")
    a("s_waitcnt lgkmcnt(0)")
    stamp(12)
    a("s_barrier                      ; 5")
    finish_wave()
    a.label("L_DN7")
    if OPT["wdh"]:
        a("s_barrier")
    a("s_barrier                      ; 3")
    if not OPT["wdl"]:
        cf_poll()
    if not OPT["xgate"]:
        a("s_barrier                      ; 4")
    a(f"s_lshr_b32 s{sT1}, s{sM}, 1")
    a(f"s_lshl2_add_u32 s{sT2}, s{sG}, s{sT1}       ; col0/16")
    a(f"s_lshl_b32 s{sT0}, s{sG}, 9")
    a(f"s_and_b32 s{sT3}, s{sT1}, 1")
    a(f"s_lshl_b32 s{sT3}, s{sT3}, 5")
    a(f"s_add_u32 s{sT0}, s{sT0}, s{sT3}")
    a(f"s_and_b32 s{sT3}, s{sT1}, 2")
    a(f"s_lshl2_add_u32 s{sT0}, s{sT3}, s{sT0}")
    base(sBB, sWS, sT0, MODB + 3 * 4096)
    a(f"s_lshl_b32 s{sT3}, s{sG}, 9")
    a(f"s_add_u32 s{sT0}, s{sT0}, s{sT3}")
    base(sBA, sWS, sT0, X1)
    a("v_and_b32 v7, 4, v0")
    a("v_lshlrev_b32 v5, 6, v7")
    a("v_lshl_add_u32 v5, v3, 6, v5")
    a("v_and_b32 v7, 10, v0")
    a("v_lshl_add_u32 v5, v7, 1, v5")
    a("v_and_b32 v7, 0x1c0, v5")
    a("v_add_u32 v12, v7, v5")
    a(f"s_lshl_b32 s{sT0}, s{sT2}, 5")
    base(sBC, sOUT, sT0)
    a("v_and_b32 v7, 15, v0")
    a("v_lshlrev_b32 v11, 10, v3")
    a("v_lshl_add_u32 v11, v7, 1, v11")
    if OPT["otch"]:
        a(f"global_load_ushort v127, v11, {sp(sBC)}")
    a("v_and_b32 v7, 1, v0")
    a("v_lshlrev_b32 v7, 4, v7")
    a("v_lshlrev_b32 v6, 2, v0")
    lab = poll_begin()
    a(f"global_load_dword v8, v12, {sp(sBA)} sc1")
    a(f"global_load_dword v9, v5, {sp(sBB)} sc1")
    poll_mid()
    for ins in sentinel_ops([8, 9], 10):
        a(ins)
    poll_end(lab)
    if OPT["xgate"]:
        if OPT["xgate"] > 1:
            a(f"s_sleep {OPT['xgate'] - 1}")
        a("s_barrier                      ; 4")
    a("v_lshrrev_b32 v8, v7, v8")
    a("v_lshrrev_b32 v9, v7, v9")
    a("v_lshlrev_b32 v8, 16, v8              ; x1")
    a("v_lshlrev_b32 v9, 16, v9              ; gb")
    if OPT["epe"]:
        a("s_cmp_lg_u32 s2, 8")
        a("s_cbranch_scc1 L_DNe")
        a(f"v_mov_b32 v10, s{sTAG}")
        set_exec(1)
        a(f"global_store_dword v4, v10, {sp(sWS)} sc1")
        set_exec(-1)
        a.label("L_DNe")
    stamp(9)
    a("s_barrier                      ; 5")
    for t in range(7):
        a(f"ds_read2st64_b32 v[{16 + 2 * t}:{17 + 2 * t}], v6 offset0:{40 + 2 * t} offset1:{41 + 2 * t}")
    a("s_waitcnt lgkmcnt(3)")
    a("v_pk_add_f32 v[16:17], v[16:17], v[18:19]")
    a("v_pk_add_f32 v[20:21], v[20:21], v[22:23]")
    a("v_pk_add_f32 v[16:17], v[16:17], v[20:21]")
    a("s_waitcnt lgkmcnt(0)")
    a("v_pk_add_f32 v[24:25], v[24:25], v[26:27]")
    a("v_pk_add_f32 v[16:17], v[16:17], v[28:29]")
    a("v_pk_add_f32 v[16:17], v[16:17], v[24:25]")
    a("v_add_f32 v16, v16, v17")
    a("v_fma_f32 v16, v9, v16, v8")
    a("v_cvt_pk_bf16_f32 v16, v16, v16")
    a(f"global_store_short v11, v16, {sp(sBC)}" + ("", " sc1", " nt", " sc0 sc1")[OPT["outp"]])
    stamp(13)
    if not OPT["epe"]:
        a("s_cmp_lg_u32 s2, 8")
        a("s_cbranch_scc1 L_fin")
        a(f"v_mov_b32 v8, s{sTAG}")
        set_exec(1)
        a(f"global_store_dword v4, v8, {sp(sWS)} sc1")
    finish_wave()


def sec_att():
    HELP[0] = False
    a_regs(True)
    CLS[0] = 1
    a.label("L_A2")
    ids()
    if not OPT["vlate"]:
        stamp(1)
    a(f"s_lshl_b32 s{sT0}, s{sWAVE}, 13")
    a(f"s_add_u32 s{sT0}, s{sT0}, {LK}")
    a("v_and_b32 v8, 15, v0")
    a("v_lshlrev_b32 v9, 2, v3")
    a("v_xor_b32 v9, v9, v8")
    a(f"v_lshl_add_u32 v10, v3, 8, s{sT0}")
    for x in range(4):
        a(f"v_xor_b32 v11, {x}, v9")
        a(f"v_lshl_add_u32 v{104 + x}, v11, 4, v10")
    a("v_lshl_add_u32 v10, v2, 2, v5         ; key = 4*(m&3) + (m>>2)")
    a(f"v_lshl_add_u32 v10, v10, 8, s{sT0}")
    a("v_xor_b32 v9, v3, v8")
    for ks in range(4):
        a(f"v_xor_b32 v11, {4 * ks}, v9")
        a(f"v_lshl_add_u32 v{108 + ks}, v11, 4, v10")
    a("v_lshlrev_b32 v6, 8, v5")
    a("v_lshl_add_u32 v6, v3, 4, v6")
    a(f"s_mul_i32 s{sT0}, s{sWAVE}, 2560")
    a("v_mul_u32_u24 v7, 576, v5")
    a("v_lshl_add_u32 v7, v2, 6, v7")
    a("v_lshl_add_u32 v7, v3, 4, v7")
    a(f"v_add_u32 v7, s{sT0}, v7")
    a("v_lshlrev_b32 v5, 5, v5               ; h*32")
    a(f"v_lshl_add_u32 v120, s{sWAVE}, 2, v5     ; h*32 + wave*4")
    a(f"v_add_u32 v120, {LM}, v120")
    a("v_lshlrev_b32 v124, 4, v0")
    a("v_add_u32 v125, 0x1000, v124")
    a(f"s_lshl2_add_u32 s{sT0}, s{sG}, s{sWAVE}")
    a(f"s_lshl_b32 s{sT0}, s{sT0}, 8")
    a(f"s_add_u32 s{sT0}, s{sT0}, s{sM}")
    a(f"s_lshl_b32 s{sT0}, s{sT0}, 4")
    base(sBA, sWS, sT0, H3O)
    a("v_lshlrev_b32 v121, 8, v1")
    a("v_lshl_add_u32 v121, v2, 2, v121")
    a(f"s_mul_i32 s{sT0}, s{sWAVE}, 576")
    a(f"v_lshl_add_u32 v122, v0, 3, s{sT0}")
    a(f"s_and_b32 s{sT4}, s{sWAVE}, 3")
    a(f"s_lshl_b32 s{sT0}, s{sT4}, 8")
    base(sBB, sX, sT0)
    a(f"s_lshl_b32 s{sT0}, s{sT4}, 10")
    base(sBC, sWS, sT0, MODB + 4096)
    a("v_lshrrev_b32 v119, 1, v3")
    a("v_lshlrev_b32 v119, 7, v119")
    a("v_and_b32 v14, 1, v3")
    a("v_lshl_add_u32 v119, v14, 3, v119")
    a("v_lshl_add_u32 v119, v2, 4, v119")
    a("v_lshl_add_u32 v119, v5, 5, v119        ; x offset: b*1024 + (G>>1)*128 + c*16 + (G&1)*8")
    for y in range(4):
        a(f"v_cmp_ne_u32 s[{20 + 2 * y}:{21 + 2 * y}], {y}, v2")
    a("v_mov_b32 v123, 0")
    gu_addr()
    a("v_lshlrev_b32 v184, 2, v0")
    a(f"v_add_u32 v184, {LM}, v184")
    a("v_lshlrev_b32 v185, 4, v0")
    a(f"s_lshl_b32 s{sT0}, s{sG}, 6")
    a(f"s_add_u32 s{sT0}, s{sT0}, s{sM}")
    a(f"s_lshl_b32 s{sT0}, s{sT0}, 3")
    a(f"s_add_u32 s{sT0}, s{sT0}, {H3ML:#x}")
    a(f"v_add_u32 v185, s{sT0}, v185")
    if OPT["pfgl"]:
        a(f"s_and_b32 s{sT0}, s{sWAVE}, 2")
        a(f"s_lshl2_add_u32 s{sT0}, s{sM}, s{sT0}")
        a(f"s_mul_i32 s{sT0}, s{sT0}, {8 * 3584}")
        a(f"s_mul_i32 s{sT1}, s{sG}, 448")
        a(f"s_andn2_b32 s{sT1}, s{sT1}, 127")
        a(f"s_add_u32 s{sT0}, s{sT0}, s{sT1}")
        a("v_mul_u32_u24 v118, 3584, v1")
        a("v_lshl_add_u32 v118, v2, 7, v118")
        a(f"v_add_u32 v118, s{sT0}, v118")
    warm({4: ["L_s0"], 5: ["L_s1"], 6: ["L_s2"], 7: ["L_s3"], **({3: ["L_s4"]} if OPT["warm"] > 1 else {})})
    if OPT["dma"]:
        a("v_and_b32 v8, 15, v0")
        a("v_and_b32 v9, 1, v3")
        a("v_lshlrev_b32 v10, 1, v9")
        a("v_xor_b32 v8, v10, v8")
        a("v_lshlrev_b32 v8, 4, v8")
        a("v_lshl_add_u32 v48, v3, 8, v8")
        for x in range(1, 4):
            a(f"v_xor_b32 v{48 + x}, {64 * x}, v48")
        a(f"s_lshl_b32 s{sT0}, s{sWAVE}, 13")
        a(f"s_add_u32 s{sT0}, s{sT0}, {LVV}")
        a("v_and_b32 v8, 3, v1")
        a("v_lshl_add_u32 v10, v8, 2, v3")
        a(f"v_lshl_add_u32 v10, v10, 8, s{sT0}")
        a("v_lshl_add_u32 v9, v8, 1, v9")
        a("v_lshl_add_u32 v10, v9, 5, v10")
        a("v_lshl_add_u32 v56, v2, 3, v10")
        for e in range(1, 8):
            a(f"v_xor_b32 v{56 + e}, {32 * e}, v56")
        a(f"s_mov_b32 m0, s{sT0}")
        for u in range(8):
            if u == 4:
                a("s_add_u32 m0, m0, 4096")
                a("s_add_u32 s34, s34, 4096")
                a("s_addc_u32 s35, s35, 0")
            a(f"global_load_lds_dwordx4 v{48 + (u & 3)}, s[34:35] offset:{1024 * (u & 3)}{NT}")
        if OPT["stamps"]:
            a("s_mov_b32 m0, 0")
        stamp(1)
    elif OPT["vlate"] and OPT["ilv"]:
        assert OPT["afirst"]
        a("v_mov_b32 v13, v124")
        for u in range(8):
            if OPT["vthr"] and u < 4:
                a(f"s_waitcnt vmcnt({OPT['vthr'] - 1})")
            a(f"global_load_dwordx4 {vr(VR + 4 * u, 4)}, v13, s[34:35]{NT}")
            if u < 7:
                a(f"v_add_u32 v13, s{sT3}, v13")
        stamp(1)
    elif OPT["vlate"]:
        for u in range(8):
            a(f"global_load_dwordx4 {vr(VR + 4 * u, 4)}, v124, s[34:35] offset:{1024 * u - 4096}{NT}")
        stamp(1)
    if OPT["kstage"]:
        a(f"s_cmp_lt_u32 s{sWAVE}, 4")
        a("s_cbranch_scc1 L_A2k")
        a("s_waitcnt vmcnt(0)")
        a.label("L_A2k")
    if OPT["dma"]:
        for t in range(2):
            a(f"s_waitcnt vmcnt({12 - 4 * t})")
            for ks in range(4):
                a(f"ds_read_b128 {vr(KR + 16 * t + 4 * ks, 4)}, v{108 + ks} offset:{4096 * t}")
    else:
        for u in range(8):
            a(f"s_waitcnt vmcnt({max(15 - u, 9) if False else 15 - u})")
            a(f"ds_write_b128 v{104 + (u & 3)}, {vr(KR + 4 * u, 4)} offset:{1024 * u}")
        a("s_waitcnt lgkmcnt(0)")
        for t in range(2):
            for ks in range(4):
                a(f"ds_read_b128 {vr(KR + 16 * t + 4 * ks, 4)}, v{108 + ks} offset:{4096 * t}")
    stamp(2)
    a(f"s_cmp_lt_u32 s{sWAVE}, 4")
    a("s_cbranch_scc1 L_A2b")
    if OPT["kstage"]:
        for u in range(8):
            a(f"global_load_dwordx4 {vr(VR + 4 * u, 4)}, v124, s[34:35] offset:{1024 * u - 4096}{NT}")
        stamp(1)
    if not OPT["xml"] and OPT["pfb"] != 2:
        a(f"global_load_dwordx2 v[128:129], v119, {sp(sBB)}")
        a(f"global_load_dwordx2 v[130:131], v119, {sp(sBB)} offset:64")
    if OPT["pfgw"]:
        if OPT["gua"] < 4:
            a(f"s_cmp_ge_u32 s{sWAVE}, {4 + OPT['gua'] - OPT['guh']}")
            a("s_cbranch_scc1 L_A3" if OPT["pfb"] else "s_cselect_b64 exec, 1, -1")
        a(f"s_bitcmp1_b32 s{sWAVE}, 0")
        a(f"s_cselect_b64 s[0:1], {sp(sWU)}, {sp(sWG)}")
        a(f"s_and_b32 s{sT0}, s{sWAVE}, 2")
        a(f"s_lshl2_add_u32 s{sT0}, s{sM}, s{sT0}")
        a(f"s_mul_i32 s{sT0}, s{sT0}, {8 * 3584}")
        a(f"s_mul_i32 s{sT1}, s{sG}, 448")
        a(f"s_andn2_b32 s{sT1}, s{sT1}, 127")
        a(f"s_add_u32 s{sT0}, s{sT0}, s{sT1}")
        a("v_mul_u32_u24 v13, 3584, v1")
        a("v_lshl_add_u32 v13, v2, 7, v13")
        a(f"v_add_u32 v13, s{sT0}, v13")
        prefetch(13, 0, True, 2 * 3584)
        set_exec(-1)
    if OPT["vfirst"]:
        ex = 2 + NPF * OPT["pfgw"]
        perms8(VR, VT, waits=[6 + ex, 4 + ex, 2 + ex, ex])
        stamp(7)
    a("s_branch L_A3")
    a.label("L_A2b")
    make_tag(12)
    if not OPT["kfirst"] or OPT["vfirst"]:
        perms8(VR, VT, waits=[6, 4, 2, 0])
    a("s_waitcnt lgkmcnt(0)")
    a(f"s_getreg_b32 s{sT0}, hwreg(HW_REG_XCC_ID, 0, 4)")
    a(f"s_xor_b32 s56, s{sTAG}, s{sT0}")
    a("s_mov_b32 s57, s56")
    a(f"s_lshl2_add_u32 s{sT0}, s{sG}, s{sWAVE}")
    a(f"s_mul_i32 s{sT0}, s{sT0}, {NREP * 128}")
    base(32, sWS, sT0, FL)
    a(f"s_lshr_b32 s{sT0}, s{sM}, 2")
    a(f"s_lshl2_add_u32 s{sT0}, s{sG}, s{sT0}")
    a(f"s_lshl2_add_u32 s{sT0}, s{sT0}, s{sWAVE}")
    a(f"s_lshl_b32 s{sT0}, s{sT0}, 8")
    base(0, sWS, sT0, QS)
    a("v_lshlrev_b32 v112, 2, v0")
    a(f"v_lshl_add_u32 v112, s{sWAVE}, 8, v112")
    a(f"v_lshlrev_b32_e64 v113, 2, s{sWAVE}")
    a("v_lshlrev_b32 v117, 4, v0")
    a(f"v_lshl_add_u32 v117, s{sWAVE}, 8, v117")
    a("s_setprio 2")
    a(f"s_mov_b32 s{sCNT}, 0")
    a.label("L_Aq")
    a(f"s_load_dwordx{2 if OPT['qfast'] == 1 else 4} s[48:{49 if OPT['qfast'] == 1 else 51}], s[32:33], s{sCNT}")
    a(f"s_add_u32 s{sCNT}, s{sCNT}, 128")
    a("s_waitcnt lgkmcnt(0)")
    a("s_xor_b64 s[48:49], s[48:49], s[56:57]")
    if OPT["qfast"] != 1:
        a("s_xor_b64 s[50:51], s[50:51], s[56:57]")
        a("s_or_b64 s[48:49], s[48:49], s[50:51]")
    a("s_cbranch_scc0 L_Aq_ok")
    if OPT["qsleep"]:
        a(f"s_sleep {OPT['qsleep']}")
    a(f"s_cmp_lt_u32 s{sCNT}, {NREP * 128}")
    a("s_cbranch_scc1 L_Aq")
    a.label("L_Aq_fb")
    set_exec(-1)
    a(f"s_getreg_b32 s{sT0}, hwreg(HW_REG_XCC_ID, 0, 4)")
    a(f"s_xor_b32 s56, s{sTAG}, s{sT0}")
    a(f"s_lshr_b32 s{sT0}, s{sM}, 2")
    a(f"s_lshl2_add_u32 s{sT0}, s{sG}, s{sT0}")
    a(f"s_lshl2_add_u32 s{sT0}, s{sT0}, s{sWAVE}")
    a(f"s_lshl_b32 s{sT0}, s{sT0}, 9")
    base(32, sWS, sT0, H2G)
    a("v_lshlrev_b32 v10, 3, v0")
    lab = poll_begin()
    a(f"global_load_dwordx2 v[8:9], v10, s[32:33] sc1")
    poll_mid()
    a("v_xor_b32 v9, s56, v9")
    a("v_cmp_lt_u32 vcc, 15, v9")
    poll_end(lab)
    a("v_cmp_ne_u32 vcc, 0, v9")
    a("s_cmp_lg_u64 vcc, 0")
    a(f"s_cselect_b32 s{sT0}, 2, 1")
    a(f"v_mov_b32 v9, s{sT0}")
    a(f"ds_write_b32 v112, v8 offset:{LQ}")
    if OPT["probe"] == 3:
        a("v_mov_b32 v210, 1")
    a("s_branch L_Aq_st")
    a.label("L_Aq_ok")
    for t in range(4):
        a(f"s_load_dwordx16 s[{sQ + 16 * t}:{sQ + 16 * t + 15}], s[0:1], {64 * t}")
    a("v_mov_b32 v9, 1")
    if OPT["stamps"] == 1:
        a("v_writelane_b32 v126, s100, m0")
        a("s_mov_b32 m0, 12")
        a("s_memrealtime s[100:101]")
    a("s_waitcnt lgkmcnt(0)")
    if OPT["stamps"] == 1:
        stamp(13)
    if OPT["qmv"] == 0:
        for i in range(64):
            a(f"v_writelane_b32 v{80 + (i & 3)}, s{sQ + i}, {i >> 2}")
        set_exec(0xFFFF)
        a(f"ds_write_b128 v117, v[80:83] offset:{LQ}")
        if OPT["qfast"]:
            for ins in sentinel_ops(range(80, 84), 10):
                a(ins)
            a("s_cbranch_vccnz L_Aq_fb")
    else:
        set_exec(1)
        for i in range(16):
            a(f"v_mov_b64 v[{48 + 4 * i}:{49 + 4 * i}], s[{sQ + 4 * i}:{sQ + 4 * i + 1}]")
            a(f"v_mov_b64 v[{50 + 4 * i}:{51 + 4 * i}], s[{sQ + 4 * i + 2}:{sQ + 4 * i + 3}]")
            a(f"ds_write_b128 v112, {vr(48 + 4 * i, 4)} offset:{LQ + 16 * i}")
    set_exec(-1)
    a.label("L_Aq_st")
    a(f"ds_write_b32 v113, v9 offset:{LQF}")
    a("s_setprio 0")
    a.label("L_A3")
    a(f"s_mov_b32 s{sT0}, {LOG2E:#x}")
    a("s_waitcnt lgkmcnt(0)")
    a("s_barrier")
    for ks in range(4):
        a(f"ds_read_b128 {vr(88 + 4 * ks, 4)}, v6 offset:{LQ + 64 * ks}")
    a(f"ds_read_b128 v[12:15], v4 offset:{LQF}")
    if OPT["stamps"] == 1:
        a("v_writelane_b32 v126, s100, m0")
        a("s_mov_b32 m0, 3")
        a("s_memrealtime s[100:101]")
    loc = ["v_or3_b32 v12, v12, v13, v14", "v_or_b32 v12, v12, v15", "v_lshrrev_b32 v12, 1, v12", "s_nop 0",
           f"v_readfirstlane_b32 s{sLOCAL}, v12"]
    for ks in range(4):
        a(f"s_waitcnt lgkmcnt({0 if OPT['stamps'] == 1 or ks == 3 else 4 - ks})")
        for t in range(2):
            a(mfma(80 + 4 * t, KR + 16 * t + 4 * ks, 88 + 4 * ks, None if ks == 0 else 80 + 4 * t))
    for ins in loc:
        a(ins)
    if OPT["pfgl"] == 2:
        a(f"s_cmp_ge_u32 s{sWAVE}, 4")
        a("s_cbranch_scc1 L_A4")
        a(f"s_bitcmp1_b32 s{sWAVE}, 0")
        a(f"s_cselect_b64 s[0:1], {sp(sWU)}, {sp(sWG)}")
        prefetch(118, 0, True, 2 * 3584)
        a.label("L_A4")
    a("v_max3_f32 v12, v80, v81, v82")
    a("v_cndmask_b32 v112, v82, v80, s[22:23]")
    a("v_max3_f32 v13, v83, v84, v85")
    a("v_cndmask_b32 v113, v83, v81, s[22:23]")
    a("v_max3_f32 v12, v12, v86, v87")
    a("v_cndmask_b32 v112, v84, v112, s[24:25]")
    a("v_max_f32 v12, v12, v13")
    a("v_mov_b32 v13, v12")
    a("v_cndmask_b32 v113, v85, v113, s[24:25]")
    a("v_cndmask_b32 v112, v86, v112, s[26:27]")
    a("v_permlane16_swap_b32 v13, v12")
    a("v_cndmask_b32 v113, v87, v113, s[26:27]")
    a("v_max_f32 v12, v12, v13")
    a("v_mov_b32 v13, v12")
    a("v_cvt_pk_bf16_f32 v113, v112, v113")
    a("v_lshlrev_b32 v112, 16, v113")
    a("v_permlane32_swap_b32 v13, v12")
    a("v_and_b32 v113, 0xffff0000, v113")
    a("v_max_f32 v12, v12, v13")
    a(f"v_mul_f32 v112, {SCALE:#x}, v112")
    a("v_cvt_pk_bf16_f32 v12, v123, v12")
    a(f"v_mul_f32 v113, {SCALE:#x}, v113")
    a(f"v_mul_f32 v12, {SCALE:#x}, v12")
    a("v_cvt_pk_bf16_f32 v113, v112, v113")
    a("v_cvt_pk_bf16_f32 v12, v123, v12")
    a("v_lshlrev_b32 v112, 16, v113")
    a(f"v_mul_f32 v12, {LOG2E:#x}, v12")
    a("v_and_b32 v113, 0xffff0000, v113")
    a(f"v_fma_f32 v112, v112, s{sT0}, -v12")
    a(f"v_fma_f32 v113, v113, s{sT0}, -v12")
    a("v_exp_f32 v112, v112")
    a("v_exp_f32 v113, v113")
    a("s_mov_b64 vcc, s[20:21]")
    a("v_add_f32 v13, v112, v113")
    a("v_cvt_pk_bf16_f32 v8, v112, v113")
    PY = 88
    red = [f"v_add_f32_dpp v13, v13, v13 quad_perm:[1,0,3,2] {DPPM}",
           f"v_add_f32_dpp v13, v13, v13 quad_perm:[2,3,0,1] {DPPM}",
           "v_mov_b32 v14, v13", "v_permlane16_swap_b32 v14, v13", "v_add_f32 v13, v13, v14",
           "v_mov_b32 v14, v13", "v_permlane32_swap_b32 v14, v13", "v_add_f32 v13, v13, v14"]
    for y in range(4):
        if y:
            a(f"s_mov_b64 vcc, s[{20 + 2 * y}:{21 + 2 * y}]")
        for x in range(4):
            if x % 2 == 0:
                a(red[2 * y + x // 2])
            a(f"v_cndmask_b32_dpp v{PY + 4 * y + x}, v8, v123, vcc quad_perm:[{x},{x},{x},{x}] {DPPM}")
    set_exec(0x1111)
    a(f"ds_write2_b32 v120, v12, v13 offset0:0 offset1:32")
    set_exec(-1)
    if OPT["warm"] > 1:
        stub("L_s4", True)
    a("s_waitcnt lgkmcnt(0)")
    a("s_barrier")
    stamp(4)
    a(f"ds_read_b128 v[104:107], v5 offset:{LM}")
    a(f"ds_read_b128 v[108:111], v5 offset:{LM + 16}")
    if OPT["mls2"]:
        a("ds_read2_b32 v[186:187], v184 offset0:0 offset1:32")
    a(f"s_cmp_lt_u32 s{sWAVE}, 4")
    if OPT["pfb"] == 1:
        pass
    elif OPT["kfirst"] and not OPT["vfirst"]:
        a("s_cbranch_scc0 L_A5")
        a(f"s_waitcnt vmcnt({NPF if OPT['pfgl'] == 2 else 0})")
        if OPT["pfgl"] == 3:
            a(f"s_bitcmp1_b32 s{sWAVE}, 0")
            a(f"s_cselect_b64 s[0:1], {sp(sWU)}, {sp(sWG)}")
            prefetch(118, 0, True, 2 * 3584)

        a("s_branch L_A5b")
        a.label("L_A5")
    else:
        a("s_cbranch_scc1 L_A6")
    if OPT["pfb"] == 2:
        a(f"global_load_dwordx2 v[128:129], v119, {sp(sBB)}")
        a(f"global_load_dwordx2 v[130:131], v119, {sp(sBB)} offset:64")
    if not OPT["xml"]:
        modb_loads()
    for half in range(OPT["gue"]):
        gu_loads(half)
    a.label("L_A5b")
    ex = (0 if OPT["xml"] else 5) + NPF * OPT["pfgw"] + 4 * OPT["gue"]
    if OPT["pfb"]:
        a(f"s_sub_u32 s{sT2}, s{sWAVE}, 4")
        a(f"s_cmp_lt_u32 s{sT2}, {OPT['gua'] - OPT['guh']}")
        e5 = 5 if OPT["pfb"] == 2 else 0
        if OPT["dma"]:
            a("s_cbranch_scc1 L_A5w")
            a(f"s_waitcnt vmcnt({e5})")
            a.label("L_A5w")
            a(f"s_waitcnt vmcnt({e5 + 1}) lgkmcnt(0)")
            stamp(7)
            for e in range(6):
                a(f"ds_read_b64_tr_b16 v[{VT + 4 * e}:{VT + 4 * e + 1}], v{56 + e}")
                a(f"ds_read_b64_tr_b16 v[{VT + 4 * e + 2}:{VT + 4 * e + 3}], v{56 + e} offset:4096")
        else:
            perms8(VR, VT, waits=[6 + e5, 4 + e5, 2 + e5, "pf"])
            stamp(7)
    elif not OPT["vfirst"]:
        perms8(VR, VT, waits=[6 + ex, 4 + ex, 2 + ex, ex])
        stamp(7)
    a.label("L_A6")
    fac = ["s_waitcnt lgkmcnt(0)", "v_max3_f32 v14, v104, v105, v106", "v_max3_f32 v15, v107, v108, v109",
           "v_max3_f32 v14, v14, v110, v111", "v_max_f32 v14, v14, v15", "v_sub_f32 v10, v12, v14", "v_exp_f32 v10, v10"]
    pvm = [mfma(OA + 4 * (e >> 2), VT + 4 * e, PY + 4 * (e & 3), None if (e & 3) == 0 else OA + 4 * (e >> 2)) for e in range(8)]
    if OPT["mls2"]:
        ml = [f"v_max_f32_dpp v188, v186, v186 quad_perm:[1,0,3,2] {DPPM}",
              f"v_max_f32_dpp v188, v188, v188 quad_perm:[2,3,0,1] {DPPM}",
              f"v_max_f32_dpp v188, v188, v188 row_half_mirror {DPPM}",
              "v_sub_f32 v186, v186, v188", "v_exp_f32 v186, v186", "v_mul_f32 v189, v186, v187",
              f"v_add_f32_dpp v189, v189, v189 quad_perm:[1,0,3,2] {DPPM}"]
        both = [fac[0], "s_nop 0"]
        for x, y in zip(fac[1:] + [None], ml):
            both += [y] + ([x] if x else [])
        if OPT["dma"]:
            both = both[2:]
            for e in range(8):
                a(f"s_waitcnt lgkmcnt({0 if OPT['stamps'] == 1 else (10 if e < 2 else 14 - 2 * e)})")
                a(pvm[e])
                if e < 2:
                    a(f"ds_read_b64_tr_b16 v[{VT + 4 * e + 24}:{VT + 4 * e + 25}], v{62 + e}")
                    a(f"ds_read_b64_tr_b16 v[{VT + 4 * e + 26}:{VT + 4 * e + 27}], v{62 + e} offset:4096")
                for ins in both[2 * e:2 * e + 2]:
                    a(ins)
        else:
            interleave(pvm, both, 2)
    else:
        interleave(pvm, fac, 1)
    for i in range(2):
        a(f"v_pk_mul_f32 v[{OA + 2 * i}:{OA + 2 * i + 1}], v[{OA + 2 * i}:{OA + 2 * i + 1}], v[10:11] op_sel_hi:[1,0]")
    if OPT["mls2"]:
        a(f"v_add_f32_dpp v189, v189, v189 quad_perm:[2,3,0,1] {DPPM}")
    a(f"ds_write_b128 v7, {vr(OA, 4)}")
    if OPT["mls2"]:
        a(f"s_cmp_eq_u32 s{sWAVE}, 0")
        a(f"v_add_f32_dpp v189, v189, v189 row_half_mirror {DPPM}")
    for i in range(2, 4):
        a(f"v_pk_mul_f32 v[{OA + 2 * i}:{OA + 2 * i + 1}], v[{OA + 2 * i}:{OA + 2 * i + 1}], v[10:11] op_sel_hi:[1,0]")
    a(f"ds_write_b128 v7, {vr(OA + 4, 4)} offset:256")
    if not OPT["mll"]:
        a(f"s_cmp_eq_u32 s{sWAVE}, 0")
        a("s_cbranch_scc1 L_A7")
    a.label("L_A8")
    a("s_waitcnt lgkmcnt(0)")
    stamp(5)
    a("s_barrier                      ; 2")
    a(f"s_cmp_ge_u32 s{sWAVE}, 4")
    a("s_cbranch_scc1 L_A9" if OPT["mll"] else "s_cbranch_scc1 L_FF")
    for t in range(4):
        a(f"ds_read2st64_b64 {vr(16 + 4 * t, 4)}, v122 offset0:{10 * t} offset1:{10 * t + 5}")
    a(f"s_cmp_lg_u32 s{sLOCAL}, 0")
    a("s_waitcnt lgkmcnt(0)")
    sum8_b64(16)
    a("v_cvt_pk_bf16_f32 v10, v16, v17")
    a("s_cbranch_scc1 L_A_pubg")
    a(f"global_store_dword v121, v10, {sp(sBA)}")
    a.label("L_A_pubd")
    if OPT["pfgl"] == 1:
        a(f"s_bitcmp1_b32 s{sWAVE}, 0")
        a(f"s_cselect_b64 s[0:1], {sp(sWU)}, {sp(sWG)}")
        prefetch(118, 0, True, 2 * 3584)
    stamp(6)
    if OPT["pfgl"] == 4:
        a("s_setprio 3")
    a("s_barrier                      ; 2b")
    if OPT["pfgl"] == 4:
        a(f"s_bitcmp1_b32 s{sWAVE}, 0")
        a(f"s_cselect_b64 s[0:1], {sp(sWU)}, {sp(sWG)}")
        prefetch(118, 0, True, 2 * 3584)

    a("s_branch L_FF0")
    a.label("L_A_pubg")
    a(f"global_store_dword v121, v10, {sp(sBA)} sc1")
    a("s_branch L_A_pubd")
    a.label("L_A9")
    a(f"s_cmp_lg_u32 s{sWAVE}, 5")
    a("s_cbranch_scc1 L_FF")
    a.label("L_A7")
    if OPT["mls2"]:
        set_exec(0x01010101)
        a(f"s_cmp_lg_u32 s{sLOCAL}, 0")
        a("s_cbranch_scc1 L_A_mlg")
        a(f"global_store_dwordx2 v185, v[188:189], {sp(sWS)}")
    else:
        a(f"ds_read_b128 v[16:19], v5 offset:{LL}")
        a(f"ds_read_b128 v[20:23], v5 offset:{LL + 16}")
        for i in range(8):
            a(f"v_sub_f32 v{104 + i}, v{104 + i}, v14")
        for i in range(8):
            a(f"v_exp_f32 v{104 + i}, v{104 + i}")
        a(f"s_lshl_b32 s{sT0}, s{sG}, 6")
        a(f"s_add_u32 s{sT0}, s{sT0}, s{sM}")
        a(f"s_lshl_b32 s{sT0}, s{sT0}, 3")
        base(sBB, sWS, sT0, H3ML)
        a("v_lshlrev_b32 v13, 2, v5              ; h*128")
        a("s_waitcnt lgkmcnt(0)")
        a("v_pk_mul_f32 v[16:17], v[16:17], v[104:105]")
        for i in range(1, 4):
            a(f"v_pk_fma_f32 v[16:17], v[{16 + 2 * i}:{17 + 2 * i}], v[{104 + 2 * i}:{105 + 2 * i}], v[16:17]")
        a("v_add_f32 v15, v16, v17")
        set_exec(0x1111)
        a(f"s_cmp_lg_u32 s{sLOCAL}, 0")
        a("s_cbranch_scc1 L_A_mlg")
        a(f"global_store_dwordx2 v13, v[14:15], {sp(sBB)}")
    a.label("L_A_mld")
    set_exec(-1)
    a("s_branch L_FF" if OPT["mll"] else "s_branch L_A8")
    a.label("L_A_mlg")
    if OPT["mls2"]:
        a(f"global_store_dwordx2 v185, v[188:189], {sp(sWS)} sc1")
    else:
        a(f"global_store_dwordx2 v13, v[14:15], {sp(sBB)} sc1")
    a("s_branch L_A_mld")


def sec_dump():
    a_regs(False)
    if OPT["probe"]:
        a.label("L_dump")
        a("s_mov_b64 exec, 1")
        a(f"s_lshl3_add_u32 s{sT0}, s2, s{sWAVE}")
        a(f"s_lshl_b32 s{sT0}, s{sT0}, 4")
        base(sBA, sWS, sT0, STAMP)
        a("v_mov_b32 v4, 0")
        a(f"global_store_dwordx4 v4, v[208:211], {sp(sBA)} sc1")
        if OPT["wb"]:
            a("s_waitcnt vmcnt(0)")
            a("buffer_wbl2 sc1")
            a("s_waitcnt vmcnt(0)")
        a("s_cmp_lg_u32 s2, 8")
        a("s_cbranch_scc1 L_exit")
        a(f"s_cmp_lg_u32 s{sWAVE}, 7")
        a("s_cbranch_scc1 L_exit")
        a("s_mov_b64 exec, -1")
        a("s_memrealtime s[60:61]")
        a("s_sleep 100")
        a("s_waitcnt vmcnt(0) lgkmcnt(0)")
        base(sBA, sWS, None, STAMP)
        a("v_lshlrev_b32 v4, 4, v0")
        for i in range(32):
            a(f"global_load_dwordx4 {vr(16 + 4 * i, 4)}, v4, {sp(sBA)} sc1")
            a("v_add_u32 v4, 0x400, v4")
        a("s_waitcnt vmcnt(0)")
        a("v_mov_b32 v8, v16")
        a("v_mov_b32 v9, 0")
        for i in range(1, 32):
            a(f"v_max_u32 v8, v8, v{16 + 4 * i}")
            a(f"v_min_u32 v16, v16, v{16 + 4 * i}")
            a(f"v_max_u32 v17, v17, v{17 + 4 * i}")
            a(f"v_add_u32 v18, v18, v{18 + 4 * i}")
            a(f"v_cmp_ne_u32 vcc, v19, v{19 + 4 * i}")
            a(f"v_addc_co_u32 v9, vcc, 0, v9, vcc")
        for op, r in (("v_max_u32", 8), ("v_min_u32", 16), ("v_max_u32", 17), ("v_add_u32", 18), ("v_add_u32", 9)):
            for n in (8, 4, 2, 1):
                a(f"{op}_dpp v{r}, v{r}, v{r} row_ror:{n} {DPPM}")
            cross_rows(op, r, 10)
        a("v_readfirstlane_b32 s50, v8")
        a("v_readfirstlane_b32 s51, v16")
        a("v_readfirstlane_b32 s53, v17")
        a("v_readfirstlane_b32 s52, v18")
        a("v_readfirstlane_b32 s56, v9")
        a("s_nop 3")
        p = OPT["probe"]
        if p == 1:
            a("s_sub_u32 s54, s50, s51")
        elif p == 2:
            a("s_sub_u32 s54, s60, s51")
        elif p == 3:
            a("s_mul_i32 s54, s52, 1")
        elif p == 4:
            a("s_lshr_b32 s54, s56, 1")
        elif p >= 100:
            a("s_sub_u32 s54, s53, s51")
        else:
            a("s_mov_b32 s54, 0")
        a("s_min_u32 s54, s54, 5000")
        a("s_lshl_b32 s54, s54, 2")
        a("s_add_u32 s54, s54, 3000")
        a.label("L_spin")
        a("s_memrealtime s[62:63]")
        a("s_waitcnt lgkmcnt(0)")
        a("s_sub_u32 s55, s62, s51")
        a("s_cmp_lt_u32 s55, s54")
        a("s_cbranch_scc1 L_spin")
    if OPT["stamps"]:
        a.label("L_dump")
        a("s_mov_b64 exec, -1")
        stamp(15)
        stamp(16)
        a(f"s_getreg_b32 s{sT0}, hwreg(HW_REG_XCC_ID)")
        a(f"v_writelane_b32 v126, s{sT0}, 14")
        a(f"s_lshl3_add_u32 s{sT0}, s2, s{sWAVE}")
        a(f"s_lshl_b32 s{sT0}, s{sT0}, 6")
        base(sBA, sWS, sT0, STAMP)
        a("v_lshlrev_b32 v4, 2, v0")
        set_exec(0xFFFF)
        a(f"global_store_dword v4, v126, {sp(sBA)}")
    a.label("L_exit")
    a("s_endpgm")


a(".p2align 12")
a.label("L_code0")
sec_wo()
sec_ln()
a(".p2align 8")
a(f".fill (4096-768-(.-L_code0))/4, 4, 0xbf810000")
a(f".type {NAME}_kernel,@function")
sec_entry()
sec_gm()
sec_gq()
sec_gb()
sec_down()
a(".p2align 12")
sec_att()
a(".p2align 12")
sec_ffn()
sec_dump()

body = a.finish()
hdr = open("cdna_kernels/" + NAME + ".s.ref").read().split("; Override launch geometry")[0]
out = hdr + f"""; Generated by a hand-written generator script; one persistent launch of 256 workgroups.
; @launch grid=(256,1,1) block=(512,1,1) lds={OPT['lds']}
.amdgcn_target "amdgcn-amd-amdhsa--gfx950"
.text
.globl {NAME}_kernel
{body}.section .rodata,"a"
.p2align 6
.amdhsa_kernel {NAME}_kernel
  .amdhsa_next_free_vgpr {OPT['vgpr']}
  .amdhsa_next_free_sgpr 102
  .amdhsa_accum_offset {OPT['vgpr']}
  .amdhsa_group_segment_fixed_size 0
  .amdhsa_kernarg_size 112
  .amdhsa_user_sgpr_count 2
  .amdhsa_user_sgpr_kernarg_segment_ptr 1
  .amdhsa_system_sgpr_workgroup_id_x 1
  .amdhsa_float_denorm_mode_32 3
.end_amdhsa_kernel
"""
open(sys.argv[1], "w").write(out)
```

```python
import sys
from asmlib import Asm

NAME = "adaLN_cond__sliding_block_cached__swiglu_ffn__decode"
OPT = dict(stamps=0, lds=94208, nt=1, limit=20000, pf=1, pfa=1, pfg=1, athr=8, nrep=64, qsleep=0, vgpr=208, psleep=0, ahelp=1, bhelp=0, wowait=0, pfpol=1, wpol=0, wopf=0, epair=1, wb=0, qmv=0, hpull=0, kfirst=1, cpf1=1, vfirst=0, mlm=0, woe=0, h4e=0, stag=3, pfgl=0, h4d=0, mls=0, touch=1, plan=3, bcoop=2, pf2=0, late=0, woa=14, woq=1, xgate=1, gub=0, gate=3, gatew=0, adap=0, qfast=0, h1m=0, kstage=0, wdl=1, vh=0, gue=0, mls2=1, vlate=1, b3=0, mll=1, gua=3, xml=0, q3=2, epe=1, outp=0, prog=1, wbl=0, wod=0, wo3=2, guh=0, pfb=2, nq=6, nb=0, na=1, warm=1, hp2=0, gbe=0, guq=0, wdh=2, wob=0, gsh=1, ftb=0, afirst=1, pfq=1, pfw=1, qbar=0, abar=1, nm=0, split=0, gskip=0, ge=0, clra=0, ilv=1, mix=0, fin=1, vb=0, bh2=0, kthr=0, vthr=0, hearly=1, otch=0, dma=1, bank=1, gbh=2, nclr=7, nearly=3, qtb=1, h4b=0, actb=0, pfaw=0, pfgw=1, probe=0, pcls=0)
for arg in sys.argv[2:]:
    k, v = arg.split("=")
    assert k in OPT, k
    OPT[k] = int(v, 0)
if OPT["probe"]:
    OPT["vgpr"] = 216
if OPT["pfb"]:
    assert (OPT["xml"] or OPT["pfb"] == 2) and not OPT["gue"] and OPT["pfgw"] and not OPT["pf2"] and not OPT["vfirst"]
NT = " nt" if OPT["nt"] else ""
NREP = OPT["nrep"]
if OPT["dma"]:
    OPT["ilv"] = 0
    OPT["lds"] = 160000
    assert OPT["vlate"] and OPT["pfb"] == 2 and OPT["mls2"] and not OPT["wod"]
NTW = " nt" if OPT["wpol"] else ""

H1 = 0xC000 if OPT['split'] else 0x1000
CF = 0x3000
H2G = 0x10000
FL = 0x20000
assert FL + 32 * NREP * 128 <= 0x60000
CLR = 0x60000
MODB = CLR
H4 = MODB + 0x4000
ACT = H4 + 0x8000
X1 = ACT + 0x4000
H4B = X1 + 0x2000
QS = 0x4000
assert not OPT["qfast"]
H3ML = H4B + (0x8000 if OPT["h4b"] else 0)
H3O = H3ML + 0x1000
GATE = H3O + 0x20000 - 0x2000
ACTB = GATE + 0x2400
CLR_END = ACTB
CLR_PER_WG = OPT['nclr']
assert CLR_END - CLR <= 32 * CLR_PER_WG * 1024
STAMP = 0x100000

LO = 0
LQ = 20480
QST = 320 if OPT['bank'] else 256
LQF = LQ + 1216
LM = LQF + 16
LL = LM + 128
LY = 22016
LU = LY + 2048
LV = LU + 2048
LST = LV + 2048
LGT = LST + 128
LVV = 28672 + 65536
LK = 28672

sX, sK, sV, sWQ, sWO, sWG, sWU = 4, 6, 8, 10, 12, 16, 18
sWD, sC, sWM, sOUT, sDBG, sWS = 20, 22, 24, 26, 28, 30
sG, sM, sWAVE, sTAG = 14, 15, 3, 28
sLO, sHI, sCNT, sT0 = 96, 97, 98, 99
sBA, sBB, sBC = 32, 34, 36
sMK = 38
sT1, sT2, sT3, sT4 = 40, 41, 42, 43
sLOCAL, sKIND = 29, 44
sPC = 46
sSTAMP = 48 if False else 64
sQ = 32

LOG2E = 0x3FB8AA3B
SCALE = 0x3DB504F3
INV512 = 0x3B000000
EPS = 0x3727C5AC


def sp(r):
    return f"s[{r}:{r + 1}]"


def vr(a, n):
    return f"v[{a}:{a + n - 1}]" if n > 1 else f"v{a}"


a = Asm()
_uid = [0]


def uid(p):
    _uid[0] += 1
    return f"L_{p}{_uid[0]}"


CLS = [0]


def stamp(i):
    if OPT["probe"] == 100 + i and OPT["pcls"] == CLS[0]:
        a("s_memrealtime s[100:101]")
        a("s_waitcnt lgkmcnt(0)")
        a("v_writelane_b32 v209, s100, 0")
    if OPT["stamps"] == 1 or (OPT["stamps"] and i >= 13):
        a("s_waitcnt lgkmcnt(0)")
        a("v_writelane_b32 v126, s100, m0")
        a(f"s_mov_b32 m0, {i}")
        a("s_memrealtime s[100:101]")


def finish_wave():
    a("s_branch L_dump" if OPT["stamps"] or OPT["probe"] else "s_endpgm")


def base(dst, ptr, off_s=None, off_imm=0):
    if off_s is not None and off_imm:
        a(f"s_add_u32 s{dst}, s{off_s}, {off_imm:#x}")
        a(f"s_add_u32 s{dst}, s{ptr}, s{dst}")
    elif off_s is not None:
        a(f"s_add_u32 s{dst}, s{ptr}, s{off_s}")
    else:
        a(f"s_add_u32 s{dst}, s{ptr}, {off_imm:#x}")
    a(f"s_addc_u32 s{dst + 1}, s{ptr + 1}, 0")


def set_exec(mask):
    if mask in (-1, 1):
        a(f"s_mov_b64 exec, {mask}")
    else:
        lo, hi = mask & 0xFFFFFFFF, mask >> 32
        a(f"s_mov_b32 exec_lo, {lo:#x}")
        a(f"s_mov_b32 exec_hi, {hi:#x}")


def prefetch(v, b, late=False, delta=None):
    pol = "" if OPT["pfpol"] == 1 else " nt"
    if OPT["hp2"] and CLS[0] in (0, 2) and HELP[0]:
        a("v_lshlrev_b32 v114, 1, v0")
        a("v_and_b32 v114, 0x7c, v114")
        a(f"ds_bpermute_b32 v115, v114, v{v}")
        a(f"ds_bpermute_b32 v116, v114, v{v} offset:128")
        a("v_and_b32 v114, 1, v0")
        a("s_waitcnt lgkmcnt(0)")
        a("v_lshl_add_u32 v115, v114, 6, v115")
        a("v_lshl_add_u32 v116, v114, 6, v116")
        if OPT["hp2"] == 2:
            a(f"global_load_dword v127, v115, {sp(b)} nt")
            a(f"global_load_dword v127, v116, {sp(b)} nt")
            a(f"global_load_dword v127, v{v}, {sp(b)} sc1")
        else:
            a(f"global_load_dword v127, v115, {sp(b)}{pol}")
            a(f"global_load_dword v127, v116, {sp(b)}{pol}")
    elif OPT["pf2"] == 2:
        a("v_lshrrev_b32 v114, 1, v0")
        a("v_and_b32 v114, 28, v114")
        a(f"ds_bpermute_b32 v115, v114, v{v}")
        a("v_and_b32 v114, 7, v0")
        a("s_waitcnt lgkmcnt(0)")
        a("v_lshl_add_u32 v115, v114, 4, v115")
        for k in range(8):
            a(f"global_load_dwordx4 v[204:207], v115, {sp(b)}{pol}")
            if k < 7:
                a(f"v_add_u32 v115, {delta:#x}, v115")
    elif OPT["pf2"]:
        a("v_lshlrev_b32 v114, 6, v0")
        a("v_and_b32 v114, 64, v114")
        a(f"v_add_u32_dpp v115, v{v}, v114 quad_perm:[0,0,2,2] row_mask:0xf bank_mask:0xf")
        a(f"v_add_u32_dpp v116, v{v}, v114 quad_perm:[1,1,3,3] row_mask:0xf bank_mask:0xf")
        if PFWAIT[0]:
            a("s_waitcnt lgkmcnt(0)")
        a(f"global_load_dword v127, v115, {sp(b)}{pol}")
        a(f"global_load_dword v127, v116, {sp(b)}{pol}")
    else:
        if PFWAIT[0]:
            a("s_waitcnt lgkmcnt(0)")
        a(f"global_load_dword v127, v{v}, {sp(b)}{pol}")
    PFWAIT[0] = False


PFWAIT = [False]
HELP = [False]
NPF = (1, 2, 8)[OPT["pf2"]]


def stub(name, over=False):
    if not OPT["warm"]:
        return
    if over:
        a(f"s_branch {name}o")
    a.label(name)
    a("s_setpc_b64 s[58:59]")
    if over:
        a.label(f"{name}o")


def warm(calls):
    if not OPT["warm"]:
        return
    if OPT["stamps"] or OPT["probe"]:
        a("s_waitcnt lgkmcnt(0)")
    for w, names in calls.items():
        lab = uid("wm")
        a(f"s_cmp_lg_u32 s{sWAVE}, {w}")
        a(f"s_cbranch_scc1 {lab}")
        for n in names:
            a(f"s_call_b64 s[58:59], {n}")
        a.label(lab)


def sels():
    a(f"s_mov_b32 s{sLO}, 0x05040100")
    a(f"s_mov_b32 s{sHI}, 0x07060302")


def perms8(W, F, waits=None, hook=None):
    for x in range(4):
        if hook and x == hook[0]:
            a(hook[1])
        if waits is not None and waits[x] == "pf":
            a("s_cbranch_scc1 L_A5w")
            a(f"s_waitcnt vmcnt({waits[2] - 2})")
            a.label("L_A5w")
            a(f"s_waitcnt vmcnt({waits[2] - 1})")
        elif waits is not None:
            a(f"s_waitcnt vmcnt({waits[x]})")
        for e in range(8):
            sel = sHI if e & 1 else sLO
            a(f"v_perm_b32 v{F + 4 * e + x}, v{W + 4 * (2 * x + 1) + (e >> 1)}, v{W + 4 * (2 * x) + (e >> 1)}, s{sel}")


def unpack(dst, src, n):
    for i in range(n):
        a(f"v_lshlrev_b32 v{dst + 2 * i}, 16, v{src + i}")
        a(f"v_and_b32 v{dst + 2 * i + 1}, 0xffff0000, v{src + i}")


def round_bf16(regs):
    if len(regs) == 1:
        a(f"v_cvt_pk_bf16_f32 v{regs[0]}, v{regs[0]}, v{regs[0]}")
        a(f"v_lshlrev_b32 v{regs[0]}, 16, v{regs[0]}")
        return
    for i in range(0, len(regs), 2):
        a(f"v_cvt_pk_bf16_f32 v{regs[i + 1]}, v{regs[i]}, v{regs[i + 1]}")
    for i in range(0, len(regs), 2):
        a(f"v_lshlrev_b32 v{regs[i]}, 16, v{regs[i + 1]}")
        a(f"v_and_b32 v{regs[i + 1]}, 0xffff0000, v{regs[i + 1]}")


def poll_begin():
    lab = uid("poll")
    a(f"s_mov_b32 s{sCNT}, {OPT['limit']}")
    a.label(lab)
    return lab


def poll_mid(cnt="vmcnt(0)", sleep=None):
    sleep = OPT["psleep"] if sleep is None else sleep
    if sleep and cnt.startswith("vm"):
        a(f"s_sleep {sleep}")
    a(f"s_sub_u32 s{sCNT}, s{sCNT}, 1")
    a(f"s_cselect_b64 {sp(sMK)}, 0, -1")
    a(f"s_waitcnt {cnt}")


def poll_end(lab):
    a(f"s_and_b64 vcc, vcc, {sp(sMK)}")
    a(f"s_cbranch_scc1 {lab}")


def sentinel_ops(regs, tmp):
    regs = list(regs)
    out = []
    if len(regs) == 2:
        out.append(f"v_max_u32 v{tmp}, v{regs[0]}, v{regs[1]}")
    else:
        out.append(f"v_max3_u32 v{tmp}, v{regs[0]}, v{regs[1]}, v{regs[2]}")
        rest = regs[3:]
        while len(rest) >= 2:
            out.append(f"v_max3_u32 v{tmp}, v{tmp}, v{rest[0]}, v{rest[1]}")
            rest = rest[2:]
        if rest:
            out.append(f"v_max_u32 v{tmp}, v{tmp}, v{rest[0]}")
    out.append(f"v_cmp_eq_u32 vcc, -1, v{tmp}")
    return out


def interleave(major, minor, per):
    minor = list(minor)
    for ins in major:
        a(ins)
        for _ in range(per):
            if minor:
                a(minor.pop(0))
    for ins in minor:
        a(ins)


def make_tag(vE):
    a(f"v_readfirstlane_b32 s{sTAG}, v{vE}")
    a("s_nop 1")
    a(f"s_mul_i32 s{sTAG}, s{sTAG}, 1664525")
    a(f"s_add_u32 s{sTAG}, s{sTAG}, 1013904223")


DPPM = "row_mask:0xf bank_mask:0xf"


def row_allsum(v):
    for n in (8, 4, 2, 1):
        a(f"v_add_f32_dpp v{v}, v{v}, v{v} row_ror:{n} {DPPM}")


def cross_rows(op, v, tmp):
    a(f"v_mov_b32 v{tmp}, v{v}")
    a(f"v_permlane16_swap_b32 v{tmp}, v{v}")
    a(f"{op} v{v}, v{v}, v{tmp}")
    a(f"v_mov_b32 v{tmp}, v{v}")
    a(f"v_permlane32_swap_b32 v{tmp}, v{v}")
    a(f"{op} v{v}, v{v}, v{tmp}")


def mfma(d, x, y, c=None):
    return f"v_mfma_f32_16x16x32_bf16 {vr(d, 4)}, {vr(x, 4)}, {vr(y, 4)}, {vr(c, 4) if c is not None else 0}"


def diagX_reduce(ACC, T):
    for e in range(8):
        a(f"v_add_f32_dpp v{T + e}, v{ACC + 4 * e + 1}, v{ACC + 4 * e} row_shl:4 {DPPM}")
    for e in range(8):
        a(f"v_add_f32_dpp v{T + e}, v{ACC + 4 * e + 2}, v{T + e} row_shl:8 {DPPM}")
    for e in range(8):
        a(f"v_add_f32_dpp v{T + e}, v{ACC + 4 * e + 3}, v{T + e} row_shl:12 {DPPM}")


def sum8_b64(r):
    if OPT["fin"]:
        assert a.lines[-1] == "s_waitcnt lgkmcnt(0)"
        a.lines.pop()
        a("s_waitcnt lgkmcnt(2)")
        a(f"v_pk_add_f32 v[{r}:{r + 1}], v[{r}:{r + 1}], v[{r + 2}:{r + 3}]")
        a(f"v_pk_add_f32 v[{r + 4}:{r + 5}], v[{r + 4}:{r + 5}], v[{r + 6}:{r + 7}]")
        a("s_waitcnt lgkmcnt(1)")
        a(f"v_pk_add_f32 v[{r + 8}:{r + 9}], v[{r + 8}:{r + 9}], v[{r + 10}:{r + 11}]")
        a(f"v_pk_add_f32 v[{r}:{r + 1}], v[{r}:{r + 1}], v[{r + 4}:{r + 5}]")
        a("s_waitcnt lgkmcnt(0)")
        a(f"v_pk_add_f32 v[{r + 12}:{r + 13}], v[{r + 12}:{r + 13}], v[{r + 14}:{r + 15}]")
        a(f"v_pk_add_f32 v[{r}:{r + 1}], v[{r}:{r + 1}], v[{r + 8}:{r + 9}]")
        a(f"v_pk_add_f32 v[{r}:{r + 1}], v[{r}:{r + 1}], v[{r + 12}:{r + 13}]")
        return
    for t in range(4):
        a(f"v_pk_add_f32 v[{r + 4 * t}:{r + 4 * t + 1}], v[{r + 4 * t}:{r + 4 * t + 1}], v[{r + 4 * t + 2}:{r + 4 * t + 3}]")
    a(f"v_pk_add_f32 v[{r}:{r + 1}], v[{r}:{r + 1}], v[{r + 4}:{r + 5}]")
    a(f"v_pk_add_f32 v[{r + 8}:{r + 9}], v[{r + 8}:{r + 9}], v[{r + 12}:{r + 13}]")
    a(f"v_pk_add_f32 v[{r}:{r + 1}], v[{r}:{r + 1}], v[{r + 8}:{r + 9}]")


def gu_loads(half):
    for jj in range(4):
        r, off = ((176, 3584 * (jj - 1)) if jj < 3 else (178, 0))
        a(f"global_load_dwordx4 {vr(16 + 16 * half + 4 * jj, 4)}, v[{r + 4 * half}:{r + 4 * half + 1}], off offset:{off}{NTW}")


def gu_addr():
    a(f"s_min_u32 s{sT1}, s{sM}, 13")
    a(f"s_mul_i32 s{sT0}, s{sG}, 14")
    a(f"s_add_u32 s{sT0}, s{sT0}, s{sT1}")
    a(f"s_lshl_b32 s{sT0}, s{sT0}, 5")
    a(f"s_mul_i32 s{sT1}, s{sT4}, {128 * 3584}")
    a(f"s_add_u32 s{sT0}, s{sT0}, s{sT1}")
    a(f"s_add_u32 s{sT0}, s{sT0}, 3584")
    a("v_lshrrev_b32 v8, 1, v3")
    a("v_and_b32 v9, 1, v3")
    a("v_lshlrev_b32 v8, 6, v8")
    a("v_lshl_add_u32 v8, v9, 2, v8")
    a("v_and_b32 v9, 3, v1")
    a("v_lshl_add_u32 v8, v9, 3, v8")
    a("v_mul_u32_u24 v10, 3584, v8")
    a("v_and_b32 v9, 1, v2")
    a("v_lshl_add_u32 v10, v9, 4, v10")
    a(f"v_add_u32 v10, s{sT0}, v10")
    a("v_mov_b32 v11, 0")
    a("v_cmp_lt_u32 vcc, 1, v2")
    a(f"v_mov_b32 v176, s{sWG}")
    a(f"v_mov_b32 v177, s{sWG + 1}")
    a(f"v_mov_b32 v178, s{sWU}")
    a(f"v_mov_b32 v179, s{sWU + 1}")
    a("v_cndmask_b32 v176, v176, v178, vcc")
    a("v_cndmask_b32 v177, v177, v179, vcc")
    a("v_lshl_add_u64 v[176:177], v[10:11], 0, v[176:177]      ; row +1")
    a(f"v_mov_b32 v10, {2 * 3584}")
    a("v_lshl_add_u64 v[178:179], v[10:11], 0, v[176:177]      ; row +3")
    a(f"v_mov_b32 v10, {32 * 3584}")
    a("v_lshl_add_u64 v[180:181], v[10:11], 0, v[176:177]")
    a("v_lshl_add_u64 v[182:183], v[10:11], 0, v[178:179]")


def modb_loads():
    a(f"global_load_dwordx4 v[132:135], v124, {sp(sBC)} offset:-4096 sc1")
    a(f"global_load_dwordx4 v[136:139], v124, {sp(sBC)} sc1")
    a(f"global_load_dwordx4 v[140:143], v125, {sp(sBC)} sc1")


W, F, ACC = 16, 48, 16
KR, VR, SA, VT, OA = 16, 48, 80, 144, 80


def a_regs(on):
    global sBA, sBB, sBC, sMK
    sBA, sBB, sBC, sMK = (6, 8, 10, 12) if on else (32, 34, 36, 38)


def sec_ffn():
    HELP[0] = False
    a_regs(True)
    CLS[0] = 1
    stub("L_s0")
    a.label("L_FF")
    a(f"s_cmp_ge_u32 s{sM}, 14")
    a("s_cbranch_scc1 L_fin2")
    a(f"s_lshl_b32 s{sT0}, s{sT4}, 10")
    a("v_and_b32 v9, 15, v0")
    a("s_barrier")
    if OPT["xml"]:
        a(f"global_load_dwordx2 v[128:129], v119, {sp(sBB)}")
        a(f"global_load_dwordx2 v[130:131], v119, {sp(sBB)} offset:64")
        modb_loads()
    for half in range(OPT["gue"], 2):
        gu_loads(half)
    a("v_lshlrev_b32 v12, 4, v9")
    a("v_lshl_add_u32 v12, v3, 12, v12")
    a("v_add_u32 v13, 0x4000, v12")
    base(sBA, sWS, sT0, H4)
    a(f"s_lshl_b32 s{sT1}, s{sT0}, 1")
    base(sBB, sWS, sT1, X1)
    a(f"s_lshr_b32 s{sT1}, s{sG}, 1")
    a(f"s_and_b32 s{sT2}, s{sG}, 1")
    a(f"s_lshl2_add_u32 s{sT1}, s{sT2}, s{sT1}")
    a("v_and_b32 v15, 7, v1")
    a(f"v_cmp_eq_u32 s[20:21], s{sT1}, v15")

    a(f"s_lshl_b32 s{sT1}, s{sT4}, 9")
    a(f"s_add_u32 s{sT1}, s{sT1}, {LY}")
    a("v_lshlrev_b32 v5, 7, v3")
    a("v_lshl_add_u32 v5, v2, 5, v5")
    a(f"v_add_u32 v5, s{sT1}, v5")
    a("v_and_b32 v6, 1, v0")
    a("v_lshlrev_b32 v6, 4, v6")
    a("v_mov_b32 v7, 0x3f80")
    a("v_lshlrev_b32 v6, v6, v7")
    a("v_lshrrev_b32 v7, 1, v9")
    for x in range(8):
        a(f"v_cmp_eq_u32 vcc, {x}, v7")
        a(f"v_cndmask_b32 v{(120 + x) if x < 4 else (88 + x)}, 0, v6, vcc")
    a(f"s_lshl_b32 s{sT1}, s{sT4}, 2")
    a(f"s_add_u32 s{sT1}, s{sT1}, {LST}")
    a("v_and_b32 v6, 3, v1")
    a("v_lshlrev_b32 v6, 5, v6")
    a("v_lshl_add_u32 v6, v3, 3, v6")
    a(f"v_add_u32 v6, s{sT1}, v6")
    a("s_waitcnt vmcnt(8)")
    for ins in sentinel_ops(range(132, 144), 14):
        a(ins)
    a("s_cbranch_vccz L_FF1")
    lab = poll_begin()
    modb_loads()
    poll_mid()
    for ins in sentinel_ops(range(132, 144), 14):
        a(ins)
    poll_end(lab)
    a.label("L_FF1")
    if OPT["h4b"]:
        base(sBC, sWS, sT0, H4B)
    a("v_lshlrev_b32 v124, 7, v1")
    a("v_lshl_add_u32 v124, v2, 4, v124")
    XV, GA, P0, P1 = 96, 104, 112, 84
    unpack(XV, 128, 4)
    unpack(GA, 132, 4)
    unpack(P0, 140, 4)
    for i in range(8):
        a(f"v_add_f32 v{P0 + i}, 1.0, v{P0 + i}")
    for i in range(4):
        a(f"v_cvt_pk_bf16_f32 v{140 + i}, v{P0 + 2 * i}, v{P0 + 2 * i + 1}")
    unpack(P0, 140, 4)
    CBF = 140
    for i in range(8):
        a(f"v_mul_f32 v{P1 + i}, v{GA + i}, v{P0 + i}")
    for i in range(8):
        a(f"v_mul_f32 v{P0 + i}, v{XV + i}, v{P0 + i}")
    stub("L_s1", True)
    perms8(W, F, waits=[6, 4, 2, 0], hook=(OPT["ge"], "s_barrier") if OPT["ge"] else None)
    stamp(9)
    if OPT["gate"] and not OPT["adap"] and not OPT["ge"]:
        a("s_barrier")

    def h4_loads():
        for t in range(4):
            for hf in range(2):
                a(f"global_load_dwordx4 {vr(16 + 8 * t + 4 * hf, 4)}, v{12 + hf}, {sp(sBA)} offset:{256 * t} sc1")

    def h4_first():
        chk = sentinel_ops(range(16, 48), 14)
        seq = [mfma(80, 120, 16), mfma(80, 120, 20, 80), mfma(8, 120, 24), mfma(8, 120, 28, 8),
               mfma(80, 92, 32, 80), mfma(80, 92, 36, 80), mfma(8, 92, 40, 8), mfma(8, 92, 44, 8)]
        cuts = [0, 3, 7, 11, 17]
        for p in range(4):
            a(f"s_waitcnt vmcnt({14 - 2 * p})")
            interleave(seq[2 * p:2 * p + 2], chk[cuts[p]:cuts[p + 1]], 2)

    UA, UB = 144, 176
    if OPT["adap"]:
        a(f"ds_read_b32 v14, v4 offset:{LGT}")
    if OPT["ge"]:
        a("s_barrier")
        h4_loads()
    for e in range(8):
        a(mfma(UA + 4 * e, 136, F + 4 * e))
    if OPT["adap"]:
        a("s_waitcnt lgkmcnt(0)")
        a(f"v_readfirstlane_b32 s{sT2}, v14")
        a("s_nop 1")
        a(f"s_cmp_eq_u32 s{sT2}, 0")
        a("s_cbranch_scc1 L_FFa")
        h4_loads()
        a.label("L_FFa")
    dv = [f"v_add_f32_dpp v{128 + e}, v{UA + 4 * e + k}, v{UA + 4 * e if k == 1 else 128 + e} row_shl:{4 * k} {DPPM}"
          for k in (1, 2, 3) for e in range(8)]
    interleave([mfma(UB + 4 * e, CBF, F + 4 * e) for e in range(8)], dv[:16], 2)
    if OPT["gsh"] and not OPT["ge"]:
        a("s_barrier")
        h4_loads()
    for ins in dv[16:]:
        a(ins)
    set_exec(0x000F000F000F000F)
    a(f"ds_write_b128 v5, v[128:131] offset:{LV - LY}")
    a(f"ds_write_b128 v5, v[132:135] offset:{LV - LY + 16}")
    set_exec(-1)
    diagX_reduce(UB, 144)
    set_exec(0x000F000F000F000F)
    a(f"ds_write_b128 v5, v[144:147] offset:{LU - LY}")
    a(f"ds_write_b128 v5, v[148:151] offset:{LU - LY + 16}")
    set_exec(-1)
    a(f"s_mov_b32 s{sCNT}, {OPT['limit']}")
    if OPT["adap"]:
        a(f"s_cmp_lg_u32 s{sT2}, 0")
    stub("L_s2", True)
    a("s_waitcnt lgkmcnt(0)")
    a("s_barrier")
    stamp(8)
    if OPT["adap"]:
        a("s_cbranch_scc1 L_FF2")
    if OPT["h4b"]:
        assert OPT["gsh"] and OPT["prog"]
        for t in range(4):
            for hf in range(2):
                a(f"global_load_dwordx4 {vr(176 + 8 * t + 4 * hf, 4)}, v{12 + hf}, {sp(sBC)} offset:{256 * t} sc1")
        h4_first()
        a("s_cbranch_vccz L_FF4")
        a("s_waitcnt vmcnt(0)")
        for i in range(16):
            a(f"v_mov_b64 v[{16 + 2 * i}:{17 + 2 * i}], v[{176 + 2 * i}:{177 + 2 * i}]")
    if OPT["gsh"]:
        a("s_branch L_FF2")
    lab = uid("poll")
    a.label(lab)
    h4_loads()
    a.label("L_FF2")
    if OPT["prog"]:
        poll_mid("vmcnt(6)")
        chk = sentinel_ops(range(16, 48), 14)
        seq = [mfma(80, 120, 16), mfma(80, 120, 20, 80), mfma(8, 120, 24), mfma(8, 120, 28, 8),
               mfma(80, 92, 32, 80), mfma(80, 92, 36, 80), mfma(8, 92, 40, 8), mfma(8, 92, 44, 8)]
        cuts = [0, 3, 7, 11, 17]
        for p in range(4):
            if p:
                a(f"s_waitcnt vmcnt({6 - 2 * p})")
            interleave(seq[2 * p:2 * p + 2], chk[cuts[p]:cuts[p + 1]], 2)
    else:
        poll_mid()
        seq = [mfma(80, 120, 16), mfma(8, 120, 24), mfma(80, 120, 20, 80), mfma(8, 120, 28, 8),
               mfma(80, 92, 32, 80), mfma(8, 92, 40, 8), mfma(80, 92, 36, 80), mfma(8, 92, 44, 8)]
        interleave(seq, sentinel_ops(range(16, 48), 14), 2)
    poll_end(lab)
    if OPT["h4b"]:
        a.label("L_FF4")
        a("s_nop 0")
    stamp(12)
    if OPT["stamps"] == 1:
        a(f"v_writelane_b32 v126, s{sCNT}, 13")
    att = [80, 82, 8, 10]
    for i in range(4):
        a(f"v_pk_fma_f32 v[{P0 + 2 * i}:{P0 + 2 * i + 1}], v[{att[i]}:{att[i] + 1}], v[{P1 + 2 * i}:{P1 + 2 * i + 1}], v[{P0 + 2 * i}:{P0 + 2 * i + 1}]")
    for i in range(4):
        a(f"v_cvt_pk_bf16_f32 v{84 + i}, v{P0 + 2 * i}, v{P0 + 2 * i + 1}")
    st = []
    for i in range(4):
        st.append(f"v_pk_fma_f32 v[{XV + 2 * i}:{XV + 2 * i + 1}], v[{att[i]}:{att[i] + 1}], v[{GA + 2 * i}:{GA + 2 * i + 1}], v[{XV + 2 * i}:{XV + 2 * i + 1}]")
    st.append(f"v_pk_mul_f32 v[8:9], v[{XV}:{XV + 1}], v[{XV}:{XV + 1}]")
    st.append(f"v_pk_add_f32 v[14:15], v[{XV}:{XV + 1}], v[{XV + 2}:{XV + 3}]")
    for i in range(1, 4):
        st.append(f"v_pk_fma_f32 v[8:9], v[{XV + 2 * i}:{XV + 2 * i + 1}], v[{XV + 2 * i}:{XV + 2 * i + 1}], v[8:9]")
        if i > 1:
            st.append(f"v_pk_add_f32 v[14:15], v[14:15], v[{XV + 2 * i}:{XV + 2 * i + 1}]")
    st.append("v_add_f32 v8, v8, v9")
    st.append("v_add_f32 v14, v14, v15")
    st.append("v_permlane32_swap_b32 v14, v8")
    st.append("v_add_f32 v14, v14, v8")
    interleave([mfma(ACC + 4 * e, 84, F + 4 * e) for e in range(2)], st[:4], 2)
    a(f"s_cmp_eq_u32 s{sM}, 13")
    a("s_cbranch_scc1 L_FFx")
    a.label("L_FF3")
    interleave([mfma(ACC + 4 * e, 84, F + 4 * e) for e in range(2, 8)], st[4:], 2)
    d1 = [f"v_add_f32_dpp v{104 + e}, v{ACC + 4 * e + 1}, v{ACC + 4 * e} row_shl:4 {DPPM}" for e in range(8)]
    d2 = [f"v_add_f32_dpp v{104 + e}, v{ACC + 4 * e + 2}, v{104 + e} row_shl:8 {DPPM}" for e in range(8)]
    d3 = [f"v_add_f32_dpp v{104 + e}, v{ACC + 4 * e + 3}, v{104 + e} row_shl:12 {DPPM}" for e in range(8)]
    for ins in d1[:3]:
        a(ins)
    a(f"v_add_f32_dpp v14, v14, v14 quad_perm:[1,0,3,2] {DPPM}")
    for ins in d1[3:6]:
        a(ins)
    a(f"v_add_f32_dpp v14, v14, v14 quad_perm:[2,3,0,1] {DPPM}")
    for ins in d2[:3]:
        a(ins)
    a("v_mov_b32 v15, v14")
    for ins in d1[6:] + d2[3:5]:
        a(ins)
    a("v_permlane16_swap_b32 v15, v14")
    for ins in d2[5:]:
        a(ins)
    a("v_add_f32 v14, v14, v15")
    for ins in d3:
        a(ins)
    set_exec(0x000F000F000F000F)
    a("ds_write_b128 v5, v[104:107]")
    a("ds_write_b128 v5, v[108:111] offset:16")
    set_exec(0x0000111100001111)
    a("ds_write_b32 v6, v14")
    set_exec(-1)
    a("s_waitcnt lgkmcnt(0)")
    a("s_barrier")
    stamp(10)
    a.label("L_fin2")
    finish_wave()
    stub("L_s3")
    a.label("L_FFx")
    for i in range(4):
        a(f"v_cvt_pk_bf16_f32 v{128 + i}, v{XV + 2 * i}, v{XV + 2 * i + 1}")
    a("s_mov_b64 exec, s[20:21]")
    a(f"global_store_dwordx4 v124, v[128:131], {sp(sBB)} sc1")
    set_exec(-1)
    a("s_branch L_FF3")

    a.label("L_FF0")
    a(f"s_cmp_lg_u32 s{sWAVE}, 0")
    a("s_cbranch_scc1 L_fin2")
    if OPT["gate"]:
        a(f"s_cmp_eq_u32 s{sM}, 15")
        a("s_cbranch_scc1 L_fin2")
        base(sBA, sWS, None, GATE)
        a("v_lshlrev_b32 v5, 7, v0")
        a("v_and_b32 v7, 0x380, v5")
        a("v_add_u32 v7, 0x2000, v7")
        a(f"s_movk_i32 s{sCNT}, 60")
        if not OPT["adap"]:
            a("s_barrier                      ; 2c")
        a.label("L_FFg")
        if OPT["gatew"]:
            a(f"global_load_dword v6, v5, {sp(sBA)} sc1")
        a(f"global_load_dword v8, v7, {sp(sBA)} sc1")
        poll_mid()
        if OPT["gatew"]:
            a("v_max_u32 v8, v6, v8")
        a("v_cmp_eq_u32 vcc, -1, v8")
        poll_end("L_FFg")
        stamp(10)
        if OPT["gate"] > 1:
            if OPT["gskip"]:
                a(f"s_cmp_eq_u32 s{sCNT}, 59")
                a("s_cbranch_scc1 L_FFh")
            a(f"s_sleep {OPT['gate'] - 1}")
            a.label("L_FFh")
        if OPT["adap"]:
            a("v_mov_b32 v6, 1")
            a(f"ds_write_b32 v4, v6 offset:{LGT}")
    a(f"s_cmp_ge_u32 s{sM}, 14")
    a("s_cbranch_scc1 L_fin2")
    if OPT["gate"] and not OPT["fin"]:
        a("s_barrier                      ; 3")
    a("v_bfe_u32 v8, v0, 3, 2")
    a("v_lshlrev_b32 v5, 7, v8")
    a("v_and_b32 v6, 7, v0")
    a("v_lshl_add_u32 v5, v6, 3, v5")
    a("v_lshrrev_b32 v6, 5, v0")
    a("v_lshl_add_u32 v5, v6, 2, v5")
    a("v_add_u32 v6, 64, v5")
    a("v_lshlrev_b32 v8, 5, v8")
    a(f"s_mul_i32 s{sT0}, s{sG}, 14")
    a(f"s_add_u32 s{sT0}, s{sT0}, s{sM}")
    a(f"s_lshl_b32 s{sT0}, s{sT0}, 7")
    base(sBA, sWS, sT0, ACT)
    a("v_lshlrev_b32 v7, 2, v0")
    a(f"s_mov_b32 s{sT1}, {INV512:#x}")
    if OPT["gate"] and OPT["fin"]:
        a("s_barrier                      ; g")
    if not OPT["gate"] or OPT["gsh"]:
        a("s_barrier                      ; 3")
    for k, L0 in enumerate((LU, LV)):
        o = L0 // 256
        a(f"ds_read2st64_b32 v[{16 + 8 * k}:{17 + 8 * k}], v5 offset0:{o} offset1:{o + 2}")
        a(f"ds_read2st64_b32 v[{18 + 8 * k}:{19 + 8 * k}], v5 offset0:{o + 4} offset1:{o + 6}")
        a(f"ds_read2st64_b32 v[{20 + 8 * k}:{21 + 8 * k}], v6 offset0:{o} offset1:{o + 2}")
        a(f"ds_read2st64_b32 v[{22 + 8 * k}:{23 + 8 * k}], v6 offset0:{o + 4} offset1:{o + 6}")
    a("s_waitcnt lgkmcnt(0)")
    for k in range(4):
        a(f"v_pk_add_f32 v[{16 + 4 * k}:{17 + 4 * k}], v[{16 + 4 * k}:{17 + 4 * k}], v[{18 + 4 * k}:{19 + 4 * k}]")
    for k in range(4):
        a(f"v_add_f32 v{40 + k}, v{16 + 4 * k}, v{17 + 4 * k}")
    a("s_barrier                      ; 4")
    o = LY // 256
    a(f"ds_read_b128 v[24:27], v8 offset:{LST}")
    a(f"ds_read_b128 v[28:31], v8 offset:{LST + 16}")
    a(f"ds_read2st64_b32 v[16:17], v5 offset0:{o} offset1:{o + 2}")
    a(f"ds_read2st64_b32 v[18:19], v5 offset0:{o + 4} offset1:{o + 6}")
    a(f"ds_read2st64_b32 v[20:21], v6 offset0:{o} offset1:{o + 2}")
    a(f"ds_read2st64_b32 v[22:23], v6 offset0:{o + 4} offset1:{o + 6}")
    a("s_waitcnt lgkmcnt(4)")
    a("v_pk_add_f32 v[24:25], v[24:25], v[26:27]")
    a("v_pk_add_f32 v[28:29], v[28:29], v[30:31]")
    a("v_add_f32 v24, v24, v25")
    a("v_add_f32 v28, v28, v29")
    a(f"v_mul_f32 v24, s{sT1}, v24             ; mean")
    a("v_mul_f32 v25, v24, v24")
    a(f"v_fma_f32 v28, v28, s{sT1}, -v25       ; variance")
    a("v_max_f32 v28, 0, v28")
    a(f"v_add_f32 v28, {EPS:#x}, v28")
    a("v_rsq_f32 v28, v28")
    a("s_waitcnt lgkmcnt(0)")
    a("v_pk_add_f32 v[16:17], v[16:17], v[18:19]")
    a("v_pk_add_f32 v[20:21], v[20:21], v[22:23]")
    a("v_add_f32 v16, v16, v17")
    a("v_add_f32 v17, v20, v21")
    a("v_fma_f32 v16, -v24, v40, v16")
    a("v_fma_f32 v17, -v24, v41, v17")
    a("v_fma_f32 v16, v16, v28, v42          ; gate")
    a("v_fma_f32 v17, v17, v28, v43          ; up")
    a(f"v_mul_f32 v18, {0x80000000 | LOG2E:#x}, v16")
    a("v_exp_f32 v18, v18")
    a("v_mul_f32 v16, v16, v17")
    a("v_add_f32 v18, 1.0, v18")
    a("v_rcp_f32 v18, v18")
    a("v_mul_f32 v16, v16, v18")
    a("v_mov_b32 v17, v16")
    a("v_permlane32_swap_b32 v16, v17")
    a("v_cvt_pk_bf16_f32 v16, v16, v17")
    set_exec(0xFFFFFFFF)
    a(f"global_store_dword v7, v16, {sp(sBA)} sc1")
    stamp(11)
    finish_wave()


def wq_pf():
    a(f"s_lshl_b32 s{sT0}, s{sT0}, 6")
    a(f"s_add_u32 s{sT0}, s{sT0}, s{sT1}")
    a(f"s_lshl_b32 s{sT0}, s{sT0}, 10")
    a("v_lshlrev_b32 v8, 13, v14")
    a("v_lshl_add_u32 v8, v15, 7, v8")
    a(f"v_add_u32 v8, s{sT0}, v8")
    prefetch(8, sWQ, delta=8192)


def sec_entry():
    HELP[0] = False
    a(f"{NAME}_kernel:")
    a("s_load_dwordx16 s[4:19], s[0:1], 0")
    a("s_load_dwordx8 s[20:27], s[0:1], 64")
    a("s_load_dwordx2 s[30:31], s[0:1], 104")
    if OPT["stamps"]:
        a("v_mov_b32 v126, 0")
        a("s_memrealtime s[100:101]")
    if OPT["probe"]:
        a("s_memrealtime s[100:101]")
    a("s_cmp_ge_u32 s2, 256")
    a("s_cbranch_scc1 L_exit")
    a("v_lshrrev_b32 v1, 6, v0")
    if OPT["pf"]:
        a(f"s_getpc_b64 {sp(sPC)}")
        a.label("L_pc0")
        a("v_lshlrev_b32 v2, 7, v0")
    a(f"v_readfirstlane_b32 s{sWAVE}, v1")
    if OPT["pf"]:
        a(f"s_sub_u32 s{sPC}, s{sPC}, L_pc0-L_code0")
        a(f"s_subb_u32 s{sPC + 1}, s{sPC + 1}, 0")
        a("v_cmp_gt_u32 vcc, (L_exit-L_code0)/128, v0")
        if OPT["cpf1"]:
            a("s_and_b32 s33, s2, 0xf8")
            a("s_cmp_lg_u32 s33, 0x78")
            a("s_cbranch_scc1 L_nopf")
        a("s_cbranch_vccz L_nopf")
        a("s_mov_b64 exec, vcc")
        a(f"global_load_dword v127, v2, {sp(sPC)}")
        a("s_mov_b64 exec, -1")
        a.label("L_nopf")
    a("v_and_b32 v0, 63, v0")
    a(f"s_and_b32 s{sT1}, s2, 7")
    a(f"s_lshr_b32 s{sT2}, s2, 3")
    if OPT["mix"]:
        a(f"s_and_b32 s{sT0}, s{sT2}, 17")
        a(f"s_cmp_eq_u32 s{sT0}, 17")
        a(f"s_addc_u32 s{sT1}, s{sT1}, 0")
        a(f"s_and_b32 s{sT1}, s{sT1}, 7")
    a("v_lshrrev_b32 v1, 2, v0        ; l>>2")
    a("v_and_b32 v2, 3, v0            ; l&3")
    a("v_lshrrev_b32 v3, 4, v0        ; l>>4")
    a("v_mov_b32 v4, 0")
    a("v_and_b32 v5, 3, v1")
    a("v_lshrrev_b32 v14, 3, v0")
    a("v_and_b32 v15, 7, v0")
    if OPT["pfw"]:
        a(f"s_cmp_lg_u32 s{sWAVE}, {0 if OPT['pfw'] < 3 else 2}")
        a("s_cbranch_scc1 L_nopfa")
        a("s_setprio 3")
        a(f"v_lshl_add_u32 v6, s{sT2}, 4, v1")
        a("v_mul_u32_u24 v6, 6144, v6")
        a("v_and_b32 v7, 2, v0")
        a("v_lshl_add_u32 v6, v7, 9, v6")
        if OPT["pfw"] != 2:
            a("v_and_b32 v7, 1, v0")
            a("v_lshl_add_u32 v6, v7, 6, v6")
        a(f"v_lshl_add_u32 v6, s{sT1}, 7, v6")
        a("s_waitcnt lgkmcnt(0)")
        a(f"global_load_dword v127, v6, {sp(sWM)}")
        a("s_setprio 0")
        a.label("L_nopfa")
    a("s_cmp_lt_u32 s2, 128")
    a("s_cbranch_scc1 L_G")
    if OPT["kfirst"]:
        a("s_setprio 3")
    a(f"s_sub_u32 s{sT2}, s{sT2}, 16             ; a = 4b + s")
    if OPT["afirst"]:
        PFWAIT[0] = True
        if OPT["ahelp"]:
            assert 8 * OPT["nq"] + 4 * OPT["nb"] + 4 * OPT["nm"] + 16 * OPT["na"] == 64
            a(f"s_cmp_ge_u32 s{sWAVE}, {OPT['na']}")
            a("s_cbranch_scc1 L_nopfq")
            a(f"s_lshl4_add_u32 s{sT0}, s{sWAVE}, s{sT2}")
            a(f"s_add_u32 s{sT0}, s{sT0}, {64 - 16 * OPT['na']}")
            wq_pf()
            a.label("L_nopfq")
    a(f"s_and_b32 s{sT0}, s{sT2}, 12")
    a(f"s_lshl_b32 s{sT0}, s{sT0}, 1")
    a(f"s_add_u32 s{sT0}, s{sT0}, s{sT1}")
    a(f"s_lshl_b32 s{sT0}, s{sT0}, 4")
    a(f"s_and_b32 s{sT3}, s{sT2}, 3")
    a(f"s_add_u32 s{sT0}, s{sT0}, s{sT3}")
    if OPT["ilv"]:
        a(f"s_lshl_b32 s{sT0}, s{sT0}, 6")
        a(f"s_add_u32 s{sT0}, s{sT0}, s{sWAVE}")
        a(f"s_lshl_b32 s{sT0}, s{sT0}, 10")
        a(f"s_add_u32 s{sT0}, s{sT0}, {3072 * 256}")
        a(f"s_movk_i32 s{sT3}, 8192")
    else:
        a(f"s_lshl_b32 s{sT0}, s{sT0}, 3")
        a(f"s_add_u32 s{sT0}, s{sT0}, s{sWAVE}")
        a(f"s_lshl_b32 s{sT0}, s{sT0}, 13")
        a(f"s_add_u32 s{sT0}, s{sT0}, {3072 * 256 + (0 if OPT['dma'] else 4096)}")
    if OPT["dma"]:
        a("v_and_b32 v8, 15, v0")
        a("v_lshlrev_b32 v9, 2, v3")
        a("v_xor_b32 v9, v9, v8")
        a("v_lshlrev_b32 v9, 4, v9")
        a("v_lshl_add_u32 v16, v3, 8, v9")
        for x in range(1, 4):
            a(f"v_xor_b32 v{16 + x}, {16 * x}, v16")
        a(f"s_lshl_b32 s{sT3}, s{sWAVE}, 13")
        a(f"s_add_u32 m0, s{sT3}, {LK}")
    if not OPT["dma"]:
        a("v_lshlrev_b32 v7, 4, v0")
    a("s_waitcnt lgkmcnt(0)")
    base(sBA, sK, sT0)
    base(sBB, sV, sT0)
    if OPT["stag"] >= 3:
        a("s_barrier")
    elif OPT["stag"]:
        a("s_waitcnt lgkmcnt(0)")
        a(f"s_load_dword s{45}, {sp(sWS)}, 0")
        a("s_waitcnt lgkmcnt(0)")
    a(f"global_load_dword v12, v4, {sp(sWS)} sc1      ; epoch")
    if OPT["pfaw"] == 1:
        a(f"s_cmp_lg_u32 s{sWAVE}, 2")
        a("s_cbranch_scc1 L_nopfa")
        a("v_lshrrev_b32 v8, 1, v0")
        a(f"v_lshl_add_u32 v8, s{sT2}, 5, v8")
        a("v_mul_u32_u24 v8, 6144, v8")
        a("v_and_b32 v9, 1, v0")
        a("v_lshl_add_u32 v8, v9, 10, v8")
        a(f"v_lshl_add_u32 v8, s{sT1}, 7, v8")
        prefetch(8, sWM, delta=4 * 6144)
        a.label("L_nopfa")
    if not OPT["afirst"]:
        if OPT["ahelp"]:
            assert 8 * OPT["nq"] + 4 * OPT["nb"] + 4 * OPT["nm"] + 16 * OPT["na"] == 64
            a(f"s_cmp_ge_u32 s{sWAVE}, {OPT['na']}")
            a("s_cbranch_scc1 L_nopfq")
            a(f"s_lshl4_add_u32 s{sT0}, s{sWAVE}, s{sT2}")
            a(f"s_add_u32 s{sT0}, s{sT0}, {64 - 16 * OPT['na']}")
            wq_pf()
            a.label("L_nopfq")
    if OPT["athr"] < 8:
        a(f"s_cmp_lt_u32 s{sWAVE}, {OPT['athr']}")
        a("s_cbranch_scc1 L_Ald")
        a("s_waitcnt vmcnt(0)")
        a.label("L_Ald")
    for u in range(8):
        if OPT["kthr"] and u >= OPT["kthr"]:
            a(f"s_waitcnt vmcnt({OPT['kthr'] - 1})")
        if OPT["dma"]:
            if u == 4:
                a("s_add_u32 m0, m0, 4096")
                a(f"s_add_u32 s{sBA}, s{sBA}, 4096")
                a(f"s_addc_u32 s{sBA + 1}, s{sBA + 1}, 0")
            a(f"global_load_lds_dwordx4 v{16 + (u & 3)}, {sp(sBA)} offset:{1024 * (u & 3)}{NT}")
        elif OPT["ilv"]:
            a(f"global_load_dwordx4 {vr(KR + 4 * u, 4)}, v7, {sp(sBA)}{NT}")
            if u < 7:
                a(f"v_add_u32 v7, s{sT3}, v7")
        else:
            a(f"global_load_dwordx4 {vr(KR + 4 * u, 4)}, v7, {sp(sBA)} offset:{1024 * u - 4096}{NT}")
    if OPT["kfirst"]:
        a("s_setprio 0")
    if OPT["kstage"]:
        a(f"s_cmp_ge_u32 s{sWAVE}, 4")
        a("s_cbranch_scc1 L_A2")
    for u in range(0 if OPT["vlate"] else 8):
        a(f"global_load_dwordx4 {vr(VR + 4 * u, 4)}, v7, {sp(sBB)} offset:{1024 * u - 4096}{NT}")
    a("s_branch L_A2")
    a.label("L_G")
    a(f"s_and_b32 s{sT3}, s{sT2}, 1")
    a(f"s_lshr_b32 s{sT0}, s{sT2}, 2")
    a(f"s_and_b32 s{sT0}, s{sT0}, 2")
    a(f"s_or_b32 s{sKIND}, s{sT3}, s{sT0}")
    if OPT["pfa"] and not OPT["pfaw"] and not OPT["pfw"]:
        a("v_lshrrev_b32 v6, 1, v0")
        if OPT["pfq"]:
            a(f"v_lshl_add_u32 v6, s{sT2}, 5, v6")
        else:
            a(f"s_and_b32 s{sT0}, s{sWAVE}, 1")
            a(f"s_xor_b32 s{sT0}, s{sT0}, s{sT2}")
            a(f"v_lshl_add_u32 v6, s{sT0}, 5, v6")
        a("v_mul_u32_u24 v6, 6144, v6")
        a("v_and_b32 v7, 1, v0")
        a("v_lshl_add_u32 v6, v7, 10, v6")
        a(f"v_lshl_add_u32 v6, s{sT1}, 7, v6")
        if OPT["pfq"]:
            a(f"s_cmp_lg_u32 s{sWAVE}, 0")
        else:
            a(f"s_lshr_b32 s{sT0}, 0x21, s{sWAVE}")
            a(f"s_and_b32 s{sT0}, s{sT0}, s{sT3}")
            a(f"s_cmp_eq_u32 s{sT0}, 0")
        a("s_cbranch_scc1 L_nopfa")
        PFWAIT[0] = True
        prefetch(6, sWM, delta=4 * 6144)
        a.label("L_nopfa")
    a(f"s_bfe_u32 s{sT0}, s{sT2}, 0x20001")
    a(f"s_lshl2_add_u32 s{sCNT}, s{sT1}, s{sT0}      ; p = 4g + ((m>>1)&3)")
    a(f"s_cmp_eq_u32 s{sKIND}, 1")
    a("s_cbranch_scc1 L_GA")
    if OPT["stag"] == 1:
        a("s_waitcnt lgkmcnt(0)")
        a(f"s_load_dword s{45}, {sp(sWS)}, 0")
        a("s_waitcnt lgkmcnt(0)")
    if not OPT["nb"]:
        a(f"s_cmp_eq_u32 s{sKIND}, 3")
        a("s_cbranch_scc1 L_GB")
    a(f"s_sub_u32 s{sT4}, s{sWAVE}, 1")
    a(f"s_lshr_b32 s{sT0}, s{sT2}, 1")
    if OPT["nb"]:
        a(f"s_lshl3_add_u32 s32, s{sT4}, s{sT0}")
        a(f"s_lshl2_add_u32 s33, s{sT4}, s{sT0}")
        a(f"s_add_u32 s33, s33, {8 * OPT['nq'] - 4}")
        a(f"s_cmp_eq_u32 s{sKIND}, 3")
        a(f"s_cselect_b32 s{sT0}, s33, s32")
        a(f"s_cselect_b32 s32, {OPT['nb']}, {OPT['nq']}")
        a(f"s_cmp_ge_u32 s{sT4}, s32")
    else:
        a(f"s_lshl3_add_u32 s{sT0}, s{sT4}, s{sT0}")
        a(f"s_cmp_ge_u32 s{sT4}, {OPT['nq']}")
    a("s_cbranch_scc1 L_nopfw")
    PFWAIT[0] = True
    wq_pf()
    a.label("L_nopfw")
    a(f"s_cmp_eq_u32 s{sKIND}, 3")
    a("s_cbranch_scc1 L_GB")
    a(f"s_lshl_b32 s{sT0}, s{sWAVE}, 9")
    a(f"s_add_u32 s{sT0}, s{sT0}, s{sT1}")
    a(f"s_lshl4_add_u32 s{sT0}, s{sT0}, s{sT2}")
    a(f"s_lshl_b32 s{sT0}, s{sT0}, 6")
    a("v_lshlrev_b32 v6, 16, v14")
    a("v_lshl_add_u32 v6, v15, 4, v6")
    a(f"s_movk_i32 s{sT3}, 8192")
    a(f"s_lshr_b32 s{sT4}, s{sT2}, 2")
    a(f"s_lshl2_add_u32 s{sT4}, s{sT1}, s{sT4}")
    a(f"s_mul_i32 s{sT4}, s{sT4}, {NREP * 128}")
    if OPT["qfast"] == 1:
        a(f"s_bfe_u32 s{sCNT}, s{sT2}, 0x10001")
    else:
        a(f"s_and_b32 s{sCNT}, s{sT2}, 2")
        a(f"s_add_u32 s{sCNT}, s{sCNT}, s{sWAVE}")
    a(f"s_lshl2_add_u32 s{sT4}, s{sCNT}, s{sT4}")
    a(f"s_add_u32 s{sT4}, s{sT4}, {FL:#x}")
    a(f"v_and_b32 v96, {NREP - 1}, v0")
    a(f"v_lshl_add_u32 v96, v96, 7, s{sT4}")
    a("s_waitcnt lgkmcnt(0)")
    base(sBB, sWQ, sT0)
    a(f"global_load_dword v12, v4, {sp(sWS)} sc1      ; epoch")
    if OPT["stag"] == 4 or OPT["qbar"]:
        a("s_barrier")
    if not OPT["ftb"]:
        a(f"s_cmp_lg_u32 s{sWAVE}, 1")
        a("s_cbranch_scc1 L_G_ld")
        a(f"global_load_dword v127, v96, {sp(sWS)} sc1")
    a.label("L_G_ld")
    for j in range(8):
        a(f"global_load_dwordx4 {vr(W + 4 * j, 4)}, v6, {sp(sBB)}{NT}")
        if j < 7:
            a(f"v_add_u32 v6, s{sT3}, v6")
    a(f"s_cmp_eq_u32 s{sKIND}, 1")
    a("s_cbranch_scc0 L_GQ2")
    a("s_branch L_GM2")
    a.label("L_GA")
    a(f"s_cmp_ge_u32 s{sWAVE}, 4")
    a("s_cbranch_scc1 L_GQA")
    if OPT["split"]:
        a(f"s_andn2_b32 s{sT0}, s{sCNT}, 1")
        a(f"s_lshl_b32 s{sT0}, s{sT0}, 5")
        a(f"s_bitcmp0_b32 s{sCNT}, 0")
        a(f"s_cselect_b32 s{sT3}, 1024, 0")
        a(f"s_add_u32 s{sT0}, s{sT0}, s{sT3}")
    else:
        a(f"s_lshl_b32 s{sT0}, s{sCNT}, 5")
    a(f"s_mul_i32 s{sT3}, s{sWAVE}, {128 * 6144}")
    a(f"s_add_u32 s{sT0}, s{sT0}, s{sT3}")
    a("v_lshlrev_b32 v5, 10, v5")
    a("v_lshl_add_u32 v5, v3, 6, v5")
    a("v_lshl_add_u32 v5, v2, 4, v5")
    a(f"v_lshl_add_u32 v5, s{sWAVE}, 8, v5")
    a("v_mul_u32_u24 v6, 49152, v1")
    if OPT["split"]:
        a("v_lshl_add_u32 v6, v2, 4, v6")
    else:
        a("v_and_b32 v7, 1, v2")
        a("v_lshl_add_u32 v6, v7, 4, v6")
        a("v_lshrrev_b32 v7, 1, v2")
        a("v_lshl_add_u32 v6, v7, 10, v6")
    a("v_mov_b32 v96, 0")
    if OPT["pfaw"] == 2:
        a(f"s_lshl1_add_u32 s{sT4}, s{sT2}, s{sWAVE}")
        a(f"s_sub_u32 s{sT4}, s{sT4}, 2")
        a("v_lshrrev_b32 v13, 1, v0")
        a(f"v_lshl_add_u32 v13, s{sT4}, 5, v13")
        a("v_mul_u32_u24 v13, 6144, v13")
        a("v_and_b32 v7, 1, v0")
        a("v_lshl_add_u32 v13, v7, 10, v13")
        a(f"v_lshl_add_u32 v13, s{sT1}, 7, v13")
    a(f"s_movk_i32 s{sT3}, 6144")
    a("s_waitcnt lgkmcnt(0)")
    base(sBB, sWM, sT0)
    a(f"global_load_dwordx4 v[8:11], v5, {sp(sC)}")
    if OPT["pfaw"] == 2:
        prefetch(13, sWM, delta=4 * 6144)
        a("s_barrier")
    if OPT["abar"]:
        a("s_barrier")
        if OPT["abar"] == 2:
            a("s_waitcnt vmcnt(0)")
    a("s_branch L_G_ld")
    a.label("L_GQA")
    a("s_setprio 3")
    a("v_and_b32 v7, 15, v0")
    a("v_lshlrev_b32 v13, 10, v3")
    a("v_lshl_add_u32 v14, v7, 4, v13")
    if OPT["split"]:
        a("v_lshl_add_u32 v15, v7, 2, v13")
        a(f"s_andn2_b32 s{sT0}, s{sCNT}, 1")
        a(f"v_lshl_add_u32 v15, s{sT0}, 5, v15")
    else:
        a("v_lshl_add_u32 v15, v7, 1, v13")
        a(f"v_lshl_add_u32 v15, s{sCNT}, 5, v15")
    a("s_waitcnt lgkmcnt(0)")
    a(f"s_cmp_lg_u32 s{sWAVE}, 7")
    a("s_cbranch_scc1 L_GQA1")
    a(f"global_load_dword v12, v4, {sp(sWS)} sc1      ; epoch")
    for t in range(4):
        a(f"global_load_dwordx4 {vr(80 + 4 * t, 4)}, v14, {sp(sX)} offset:{256 * t}")
    a(f"global_load_{'dword' if OPT['split'] else 'ushort'} v13, v15, {sp(sX)}")
    a.label("L_GQA1")
    if OPT["abar"]:
        a("s_barrier")
    if OPT["clra"]:
        a(f"s_cmp_eq_u32 s{sWAVE}, 6")
        a("s_cbranch_scc1 L_GC")
    if OPT["nm"]:
        a(f"s_sub_u32 s{sT4}, s{sWAVE}, 4")
        a(f"s_cmp_ge_u32 s{sT4}, {OPT['nm']}")
        a("s_cbranch_scc1 L_GQA2")
        a(f"s_lshr_b32 s{sT0}, s{sT2}, 1")
        a(f"s_lshl2_add_u32 s{sT0}, s{sT4}, s{sT0}")
        a(f"s_add_u32 s{sT0}, s{sT0}, {8 * OPT['nq'] + 4 * OPT['nb']}")
        a("v_lshrrev_b32 v14, 3, v0")
        a("v_and_b32 v15, 7, v0")
        wq_pf()
    a("s_branch L_GQA2")
    if OPT["clra"]:
        a.label("L_GC")
        a(f"s_mul_i32 s{sT0}, s{sCNT}, {CLR_PER_WG * 1024}")
        a("v_lshlrev_b32 v6, 4, v0")
        for i in range(4):
            a(f"v_mov_b32 v{8 + i}, -1")
        base(sBA, sWS, sT0, CLR + 4096)
        a(f"global_load_dword v12, v4, {sp(sWS)} sc1      ; epoch")
        for i in range(CLR_PER_WG):
            a(f"global_store_dwordx4 v6, v[8:11], {sp(sBA)} offset:{1024 * i - 4096} sc1")
        base(sBB, sWS, None, CF)
        a(f"v_lshlrev_b32_e64 v5, 7, s{sCNT}")
        a("s_waitcnt vmcnt(0)")
        make_tag(12)
        a(f"v_mov_b32 v6, s{sTAG}")
        set_exec(1)
        a(f"global_store_dword v5, v6, {sp(sBB)} sc1")
        set_exec(-1)
        a("s_branch L_GQA2")
        a.label("L_GB")
        a("s_waitcnt lgkmcnt(0)")
        a(f"global_load_dword v12, v4, {sp(sWS)} sc1      ; epoch")
        a("s_branch L_GB2")
    else:
        a.label("L_GB")
        if OPT["gbh"]:
            a(f"s_cmp_lg_u32 s{sWAVE}, 7")
            a("s_cbranch_scc1 L_GB0")
            a("s_setprio 3")
            a(f"s_mul_i32 s{sT0}, s{sCNT}, {CLR_PER_WG * 1024}")
            a(f"s_add_u32 s{sT0}, s{sT0}, {CLR + 4096:#x}")
            a("v_lshlrev_b32 v6, 4, v0")
            for i in range(4):
                a(f"v_mov_b32 v{8 + i}, -1")
            a("s_waitcnt lgkmcnt(0)")
            base(sBA, sWS, sT0)
            a(f"global_load_dword v12, v4, {sp(sWS)} sc1      ; epoch")
            for i in range(CLR_PER_WG):
                a(f"global_store_dwordx4 v6, v[8:11], {sp(sBA)} offset:{1024 * i - 4096} sc1")
            a.label("L_GB0")
            a(f"s_and_b32 s{sT0}, s{sCNT}, 3")
            a(f"s_lshl2_add_u32 s{sT0}, s{sWAVE}, s{sT0}")
            a(f"v_lshl_add_u32 v17, s{sT0}, 4, v1")
            a("v_mul_u32_u24 v17, 6144, v17")
            a("v_lshl_add_u32 v17, v2, 7, v17")
            a(f"v_lshl_add_u32 v17, s{sT1}, 9, v17")
            a("v_add_u32 v17, 0x800, v17")
            a(f"s_cmp_ge_u32 s{sWAVE}, {OPT['nearly']}")
            a("s_waitcnt lgkmcnt(0)")
            a("s_barrier")
            a("s_cbranch_scc1 L_GB2")
            a(f"global_load_dword v127, v17, {sp(sWM)}")
            a("s_branch L_GB2")
        a(f"s_cmp_lg_u32 s{sWAVE}, 7")
        a("s_cbranch_scc1 L_GB1")
        a("s_setprio 3")
        a(f"s_mul_i32 s{sT0}, s{sCNT}, {CLR_PER_WG * 1024}")
        a("v_lshlrev_b32 v6, 4, v0")
        for i in range(4):
            a(f"v_mov_b32 v{8 + i}, -1")
        a("s_waitcnt lgkmcnt(0)")
        base(sBA, sWS, sT0, CLR + 4096)
        a(f"global_load_dword v12, v4, {sp(sWS)} sc1      ; epoch")
        for i in range(CLR_PER_WG):
            a(f"global_store_dwordx4 v6, v[8:11], {sp(sBA)} offset:{1024 * i - 4096} sc1")
        a("s_branch L_GB2")


def ids():
    a(f"s_mov_b32 s{sG}, s{sT1}")
    a(f"s_mov_b32 s{sM}, s{sT2}")
    sels()
    if OPT["stamps"]:
        a("s_mov_b32 m0, 0")
    if OPT["probe"]:
        a("v_mov_b32 v208, s100")
        a("v_mov_b32 v209, s100")
        a("v_mov_b32 v210, 0")
        a(f"s_getreg_b32 s100, hwreg(HW_REG_XCC_ID, 0, 4)")
        a("v_mov_b32 v211, s100")


def silu_frag():
    unpack(80, 8, 4)
    for i in range(8):
        a(f"v_mul_f32 v{88 + i}, {0x80000000 | LOG2E:#x}, v{80 + i}")
    for i in range(8):
        a(f"v_exp_f32 v{88 + i}, v{88 + i}")
    for i in range(8):
        a(f"v_add_f32 v{88 + i}, 1.0, v{88 + i}")
    for i in range(8):
        a(f"v_rcp_f32 v{88 + i}, v{88 + i}")
    for i in range(8):
        a(f"v_mul_f32 v{80 + i}, v{80 + i}, v{88 + i}")
    for i in range(4):
        a(f"v_cvt_pk_bf16_f32 v{8 + i}, v{80 + 2 * i}, v{81 + 2 * i}")


def xcc_flag():
    a(f"s_lshr_b32 s{sT0}, s{sM}, 2")
    a(f"s_lshl2_add_u32 s{sT0}, s{sG}, s{sT0}")
    a(f"s_mul_i32 s{sT0}, s{sT0}, {NREP * 128}")
    a(f"s_and_b32 s{sT1}, s{sM}, 2")
    a(f"s_lshl1_add_u32 s{sT0}, s{sT1}, s{sT0}")
    a(f"s_add_u32 s{sT0}, s{sT0}, {FL + 16:#x}")
    a(f"v_and_b32 v5, {NREP - 1}, v0")
    a(f"v_lshl_add_u32 v5, v5, 7, s{sT0}")
    a(f"s_getreg_b32 s{sT0}, hwreg(HW_REG_XCC_ID, 0, 4)")
    a(f"s_xor_b32 s{sT0}, s{sTAG}, s{sT0}")
    a(f"v_mov_b32 v6, s{sT0}")
    a(f"global_store_dword v5, v6, {sp(sWS)}")


def q_trigger(lab):
    a(f"s_mul_i32 s{sT0}, s{sG}, {4 * NREP * 128}")
    base(sBA, sWS, sT0, FL)
    a("v_and_b32 v9, 3, v1")
    a(f"v_mul_u32_u24 v9, {NREP * 128}, v9")
    a("v_lshl_add_u32 v9, v2, 2, v9")
    a(f"s_mov_b32 s45, s{sCNT}")
    a(f"s_movk_i32 s{sCNT}, 40")
    a.label(lab)
    a(f"global_load_dword v10, v9, {sp(sBA)} sc1")
    poll_mid(sleep=2)
    a(f"v_xor_b32 v10, s{sTAG}, v10")
    a("v_cmp_gt_u32 vcc, 16, v10")
    a("s_cmp_eq_u64 vcc, 0")
    a("s_cselect_b64 vcc, -1, 0")
    poll_end(lab)
    a(f"s_mov_b32 s{sCNT}, s45")


def h_trigger(lab):
    base(sBA, sWS, None, H1 + 4)
    a("v_lshlrev_b32 v9, 7, v0")
    a(f"s_mov_b32 s45, s{sCNT}")
    a(f"s_movk_i32 s{sCNT}, 40")
    a.label(lab)
    a(f"global_load_dword v10, v9, {sp(sBA)} sc1")
    poll_mid(sleep=2)
    a(f"v_cmp_ne_u32 vcc, s{sTAG}, v10")
    poll_end(lab)
    a(f"s_mov_b32 s{sCNT}, s45")


def cf_poll():
    base(sBB, sWS, None, CF)
    a("v_and_b32 v5, 31, v0")
    a("v_lshlrev_b32 v5, 7, v5")
    lab = poll_begin()
    a(f"global_load_dword v6, v5, {sp(sBB)} sc1")
    poll_mid(sleep=4)
    a(f"v_cmp_ne_u32 vcc, s{sTAG}, v6")
    poll_end(lab)


def tile64_tail(first):
    for e in range(first, 8):
        a(mfma(ACC + 4 * e, 8, F + 4 * e))
    for e in range(8):
        a(f"v_add_f32_dpp v{80 + e}, v{ACC + 4 * e + 1}, v{ACC + 4 * e} row_shl:8 {DPPM}")
    set_exec(0x00FF00FF00FF00FF)
    a("ds_write_b128 v6, v[80:83]")
    a("ds_write_b128 v6, v[84:87] offset:16")
    set_exec(-1)


def tile64_addr():
    a("v_lshlrev_b32 v6, 8, v3")
    a("v_lshl_add_u32 v6, v15, 5, v6")
    a(f"v_lshl_add_u32 v6, s{sWAVE}, 10, v6")
    a("v_lshlrev_b32 v7, 3, v0")
    a(f"v_lshl_add_u32 v7, s{sWAVE}, 9, v7")


def tile64_sum():
    for t in range(4):
        a(f"ds_read2st64_b64 {vr(16 + 4 * t, 4)}, v7 offset0:{4 * t} offset1:{4 * t + 2}")


def sec_gm():
    HELP[0] = False
    CLS[0] = 4
    a.label("L_GM2")
    ids()
    stamp(1)
    a("s_waitcnt vmcnt(8)")
    silu_frag()
    a("v_lshlrev_b32 v5, 7, v3")
    a("v_lshl_add_u32 v5, v2, 5, v5")
    a(f"v_lshl_add_u32 v5, s{sWAVE}, 9, v5")
    perms8(W, F, waits=[6, 4, 2, 0])
    for e in range(8):
        a(mfma(ACC + 4 * e, 8, F + 4 * e))
    diagX_reduce(ACC, 48)
    set_exec(0x000F000F000F000F)
    a("ds_write_b128 v5, v[48:51]")
    a("ds_write_b128 v5, v[52:55] offset:16")
    set_exec(-1)
    a("s_waitcnt lgkmcnt(0)")
    stamp(2)
    a("s_barrier                      ; 1")
    if OPT["bhelp"]:
        a(f"s_lshl1_add_u32 s{sT0}, s{sM}, s{sWAVE}")
        a(f"s_add_u32 s{sT0}, s{sT0}, 14")
        a(f"s_mul_i32 s{sT0}, s{sT0}, {16 * 6144}")
        a(f"s_lshl_b32 s{sT1}, s{sG}, 9")
        a(f"s_add_u32 s{sT0}, s{sT0}, s{sT1}")
        a(f"s_add_u32 s{sT0}, s{sT0}, 2048")
        a("v_mul_u32_u24 v8, 6144, v1")
        a("v_lshl_add_u32 v8, v2, 7, v8")
        a(f"v_add_u32 v8, s{sT0}, v8")
        a("s_barrier")
        if OPT["hpull"]:
            a(f"s_cmp_eq_u32 s{sM}, 1")
            a("s_cbranch_scc1 L_DOWN")
        prefetch(8, sWM, delta=2 * 6144)
    a("s_branch L_DOWN")


def sec_gb():
    HELP[0] = True
    CLS[0] = 2
    a.label("L_GB1")
    a("s_waitcnt lgkmcnt(0)")
    if OPT["plan"] == 5:
        a(f"s_sub_u32 s{sT0}, s{sWAVE}, 3")
        a(f"s_cmp_ge_u32 s{sT0}, {OPT['q3']}")
        a("s_cbranch_scc1 L_GB2")
        a(f"s_and_b32 s{sT3}, s{sCNT}, 3")
        a(f"s_lshl2_add_u32 s{sT0}, s{sT0}, s{sT3}")
        a(f"s_sub_u32 s{sT0}, 7, s{sT0}")
        a(f"s_lshl_b32 s{sT0}, s{sT0}, 9")
        a(f"s_add_u32 s{sT0}, s{sT0}, s{sT1}")
        a(f"s_lshl_b32 s{sT0}, s{sT0}, 10")
        a(f"s_add_u32 s{sT0}, s{sT0}, 384")
        a(f"v_lshl_add_u32 v8, v0, 13, s{sT0}")
        prefetch(8, sWQ)
    a.label("L_GB2")
    ids()
    if OPT["ftb"]:
        a(f"s_cmp_lg_u32 s{sWAVE}, 4")
        a("s_cbranch_scc1 L_GBf")
        a(f"s_mul_i32 s{sT0}, s{sCNT}, {NREP * 128}")
        base(sBA, sWS, sT0, FL)
        a(f"v_and_b32 v9, {NREP - 1}, v0")
        a("v_lshlrev_b32 v9, 7, v9")
        a(f"global_load_dword v127, v9, {sp(sBA)} sc1")
        a.label("L_GBf")
    if OPT["qtb"]:
        a(f"s_lshl3_add_u32 s{sT0}, s{sM}, s{sWAVE}")
        a(f"s_cmp_lg_u32 s{sT0}, {11 * 8 + 5}")
        a("s_cbranch_scc1 L_GBq")
        a(f"s_lshl_b32 s{sT0}, s{sG}, 12")
        base(sBA, sWS, sT0, QS)
        a("v_lshlrev_b32 v9, 6, v0")
        a(f"global_load_dword v127, v9, {sp(sBA)} sc1")
        a.label("L_GBq")
    if OPT["h1m"] == 1:
        a(f"s_lshl3_add_u32 s{sT0}, s{sM}, s{sWAVE}")
        a(f"s_cmp_lg_u32 s{sT0}, {9 * 8 + 6}")
        a("s_cbranch_scc1 L_GBh")
        base(sBA, sWS, None, H1)
        a("v_lshlrev_b32 v9, 7, v0")
        a(f"global_load_dword v127, v9, {sp(sBA)} sc1")
        if OPT["split"]:
            a("v_add_u32 v9, 0x2000, v9")
            a(f"global_load_dword v127, v9, {sp(sBA)} sc1")
        a.label("L_GBh")
    a("v_lshlrev_b32 v5, 10, v5")
    a("v_lshl_add_u32 v5, v3, 5, v5")
    a("v_and_b32 v7, 1, v0")
    a("v_lshl_add_u32 v5, v7, 4, v5")
    a(f"v_lshl_add_u32 v16, s{sWAVE}, 7, v5")
    a(f"s_lshl_b32 s{sT0}, s{sCNT}, 7")
    a(f"s_mul_i32 s{sT3}, s{sWAVE}, {64 * 6144}")
    a(f"s_add_u32 s{sT0}, s{sT0}, s{sT3}")
    base(sBC, sWM, sT0, 2048)
    a(f"s_lshl_b32 s{sT4}, s{sCNT}, 9           ; p*512")
    a("v_mul_u32_u24 v13, 49152, v14")
    a("v_lshl_add_u32 v13, v15, 4, v13")
    a(f"s_movk_i32 s{sT3}, 6144")
    if OPT["clra"]:
        a("s_branch L_GB3")
    a(f"s_cmp_lg_u32 s{sWAVE}, 7")
    a("s_cbranch_scc1 L_GB3")
    a("s_waitcnt vmcnt(0)")
    make_tag(12)
    base(sBB, sWS, None, CF)
    a(f"v_lshlrev_b32_e64 v5, 7, s{sCNT}")
    a(f"v_mov_b32 v6, s{sTAG}")
    set_exec(1)
    a(f"global_store_dword v5, v6, {sp(sBB)} sc1")
    set_exec(-1)
    if OPT["late"] & 1:
        (h_trigger if OPT["late"] & 4 else q_trigger)("L_GBt")
    a("s_setprio 0")
    a.label("L_GB3")
    stamp(1)
    if OPT["bcoop"] and not OPT["gbh"]:
        a(f"s_and_b32 s{sT0}, s{sCNT}, 3")
        a(f"s_lshl2_add_u32 s{sT0}, s{sWAVE}, s{sT0}")
        a(f"s_mul_i32 s{sT0}, s{sT0}, {16 * 6144}")
        a(f"s_lshl_b32 s{sT1}, s{sG}, 9")
        a(f"s_add_u32 s{sT0}, s{sT0}, s{sT1}")
        a(f"s_add_u32 s{sT0}, s{sT0}, 2048")
        a("v_mul_u32_u24 v17, 6144, v1")
        a("v_lshl_add_u32 v17, v2, 7, v17")
        a(f"v_add_u32 v17, s{sT0}, v17")
        if OPT["bcoop"] == 2:
            a(f"s_cmp_ge_u32 s{sWAVE}, {OPT['nearly']}")
            a("s_cbranch_scc1 L_GBc")
            prefetch(17, sWM, delta=2 * 6144)
            a.label("L_GBc")
    if not OPT["clra"]:
        a("s_barrier")
    if OPT["vb"]:
        a(f"s_and_b32 s{sT2}, s{sCNT}, 3")
        v_help(4)
        a("s_barrier")
    if OPT["bcoop"]:
        if OPT["bcoop"] == 2:
            a(f"s_cmp_lt_u32 s{sWAVE}, {OPT['nearly']}")
            a("s_cbranch_scc1 L_GBd")
        if OPT["bh2"]:
            a(f"s_cmp_ge_u32 s{sWAVE}, 4")
            a("s_cbranch_scc1 L_GBd")
        prefetch(17, sWM, delta=2 * 6144)
        a.label("L_GBd")
        a("s_barrier")
    if OPT["b3"]:
        a(f"s_and_b32 s{sT0}, s{sCNT}, 3")
        a(f"s_lshl2_add_u32 s{sT1}, s{sWAVE}, s{sT0}")
        a(f"s_cmp_ge_u32 s{sT1}, 3")
        a("s_cbranch_scc1 L_GBe")
        a(f"s_add_u32 s{sT0}, s{sT0}, 5")
        a(f"v_lshl_add_u32 v17, s{sT0}, 6, v0")
        a("v_mul_u32_u24 v17, 6144, v17")
        a(f"s_lshl_b32 s{sT0}, s{sG}, 9")
        a(f"s_add_u32 s{sT0}, s{sT0}, {2048 + 384}")
        a(f"v_add_u32 v17, s{sT0}, v17")
        prefetch(17, sWM)
        a.label("L_GBe")
    a(f"global_load_dwordx4 v[8:11], v16, {sp(sC)}")
    for j in range(8):
        a(f"global_load_dwordx4 {vr(W + 4 * j, 4)}, v13, {sp(sBC)}{NT}")
        if j < 7:
            a(f"v_add_u32 v13, s{sT3}, v13")
    if OPT["gbe"]:
        assert OPT["gua"] <= 2 and not OPT["hp2"]
        base(sBB, sWS, None, CF)
        a("v_and_b32 v5, 31, v0")
        a("v_lshlrev_b32 v5, 7, v5")
        a(f"global_load_dword v100, v5, {sp(sBB)} sc1")
        a("s_barrier")
        gu_help(0, 32)
    ex = 2 if OPT["gbe"] else 0
    a(f"s_waitcnt vmcnt({8 + ex})")
    silu_frag()
    tile64_addr()
    perms8(W, F, waits=[6 + ex, 4 + ex, 2 + ex, ex])
    tile64_tail(0)
    a(f"s_cmp_lg_u32 s{sWAVE}, 7")
    a("s_cbranch_scc1 L_GB4")
    if OPT["clra"]:
        make_tag(12)
    if OPT["gbe"]:
        a("s_waitcnt vmcnt(1)")
        a(f"v_cmp_ne_u32 vcc, s{sTAG}, v100")
        a("s_cbranch_vccz L_GB4")
    cf_poll()
    a.label("L_GB4")
    a("s_waitcnt lgkmcnt(0)")
    stamp(2)
    a("s_barrier                      ; 1")
    a(f"s_cmp_ge_u32 s{sWAVE}, 2")
    a("s_cbranch_scc1 L_HB")
    tile64_sum()
    base(sBA, sWS, sT4, MODB)
    a("v_and_b32 v5, 2, v0")
    a("v_lshlrev_b32 v5, 7, v5")
    a("v_and_b32 v6, 32, v0")
    a("v_lshl_add_u32 v5, v6, 1, v5")
    a(f"v_lshl_add_u32 v5, s{sWAVE}, 7, v5")
    a("v_and_b32 v6, 13, v0")
    a("v_lshl_add_u32 v5, v6, 2, v5")
    a("v_bfe_u32 v6, v0, 4, 1")
    a("v_lshl_add_u32 v5, v6, 3, v5")
    a("s_waitcnt lgkmcnt(0)")
    sum8_b64(16)
    a("v_cvt_pk_bf16_f32 v12, v16, v17")
    a(f"global_store_dword v5, v12, {sp(sBA)} sc1")
    stamp(3)
    a("s_branch L_HB")


def sec_ln():
    HELP[0] = False
    CLS[0] = 3
    a.label("L_GQA2")
    if OPT["pfaw"] == 2:
        a("s_barrier")
    ids()
    stamp(1)
    a(f"s_cmp_lg_u32 s{sWAVE}, 7")
    a("s_cbranch_scc1 L_GQA3")
    a("s_waitcnt vmcnt(0)")
    make_tag(12)
    if OPT["split"]:
        a(f"s_bitcmp1_b32 s{sCNT}, 0")
        a("s_cbranch_scc1 L_LN1")
    unpack(16, 80, 16)
    a("v_pk_add_f32 v[8:9], v[16:17], v[18:19]")
    for i in range(2, 16):
        a(f"v_pk_add_f32 v[8:9], v[8:9], v[{16 + 2 * i}:{17 + 2 * i}]")
    a("v_add_f32 v8, v8, v9")
    row_allsum(8)
    a(f"v_mul_f32 v8, {INV512:#x}, v8       ; mean")
    a("v_mov_b32 v9, v8")
    for i in range(16):
        a(f"v_pk_add_f32 v[{16 + 2 * i}:{17 + 2 * i}], v[{16 + 2 * i}:{17 + 2 * i}], v[8:9] neg_lo:[0,1] neg_hi:[0,1]")
    a("v_pk_mul_f32 v[10:11], v[16:17], v[16:17]")
    for i in range(1, 16):
        a(f"v_pk_fma_f32 v[10:11], v[{16 + 2 * i}:{17 + 2 * i}], v[{16 + 2 * i}:{17 + 2 * i}], v[10:11]")
    a("v_add_f32 v10, v10, v11")
    row_allsum(10)
    a(f"v_mul_f32 v9, {INV512:#x}, v10      ; var")
    round_bf16([8, 9])
    a(f"v_add_f32 v9, {EPS:#x}, v9")
    round_bf16([9])
    a("v_sqrt_f32 v9, v9")
    round_bf16([9])
    a("v_rcp_f32 v9, v9")
    if OPT["split"]:
        unpack(10, 13, 1)
        a("v_sub_f32 v10, v10, v8")
        a("v_sub_f32 v11, v11, v8")
        round_bf16([10, 11])
        a("v_mul_f32 v10, v10, v9")
        a("v_mul_f32 v11, v11, v9")
        round_bf16([10, 11])
        a.label("L_LN1")
        a("v_lshlrev_b32 v5, 3, v0")
        a("v_lshlrev_b32 v14, 6, v3              ; b*64")
        a("v_and_b32 v8, 8, v7")
        a("v_lshl_add_u32 v14, v8, 5, v14        ; (n>>3)*256")
        a("v_and_b32 v8, 4, v7")
        a("v_lshl_add_u32 v14, v8, 3, v14        ; c'lo*32")
        a("v_and_b32 v8, 1, v7")
        a("v_lshl_add_u32 v14, v8, 4, v14        ; (d&1)*16")
        a("v_and_b32 v8, 2, v7")
        a("v_lshl_add_u32 v14, v8, 2, v14        ; (d>>1)*8")
        a(f"s_andn2_b32 s{sT0}, s{sCNT}, 1")
        a(f"s_lshl_b32 s{sT0}, s{sT0}, 8")
        a(f"s_and_b32 s{sT1}, s{sCNT}, 1")
        a(f"s_lshl_b32 s{sT1}, s{sT1}, 13")
        a(f"s_add_u32 s{sT0}, s{sT0}, s{sT1}")
        base(sBA, sWS, sT0, H1)
        a(f"v_mov_b32 v9, s{sTAG}")
        stamp(2)
        a(f"s_bitcmp1_b32 s{sCNT}, 0")
        a("s_barrier                      ; 1")
        a("ds_read2st64_b64 v[80:83], v5 offset0:0 offset1:1")
        a("ds_read2st64_b64 v[84:87], v5 offset0:2 offset1:3")
        a("s_waitcnt lgkmcnt(0)")
        a("v_pk_add_f32 v[80:81], v[80:81], v[82:83]")
        a("v_pk_add_f32 v[84:85], v[84:85], v[86:87]")
        a("v_pk_add_f32 v[80:81], v[80:81], v[84:85]")
        a("v_cvt_pk_bf16_f32 v8, v80, v81")
        a("s_cbranch_scc1 L_LN2")
        unpack(80, 8, 1)
        a("v_add_f32 v80, 1.0, v80")
        a("v_add_f32 v81, 1.0, v81")
        round_bf16([80, 81])
        a("v_pk_mul_f32 v[80:81], v[80:81], v[10:11]")
        a("v_cvt_pk_bf16_f32 v8, v80, v81")
        a.label("L_LN2")
        a(f"global_store_dwordx2 v14, v[8:9], {sp(sBA)} sc1")
    else:
        a("v_lshlrev_b32 v13, 16, v13")
        a("v_sub_f32 v13, v13, v8")
        round_bf16([13])
        a("v_mul_f32 v13, v13, v9")
        round_bf16([13])
        a("v_lshlrev_b32 v5, 7, v3")
        a("v_lshl_add_u32 v5, v7, 2, v5")
        a("v_add_u32 v10, 64, v5")
        a("v_lshlrev_b32 v14, 6, v3              ; b*64")
        a("v_and_b32 v8, 8, v7")
        a("v_lshl_add_u32 v14, v8, 2, v14        ; c'lo*32")
        a("v_and_b32 v8, 2, v7")
        a("v_lshl_add_u32 v14, v8, 3, v14        ; (d&1)*16")
        a("v_and_b32 v8, 4, v7")
        a("v_lshl_add_u32 v14, v8, 1, v14        ; (d>>1)*8")
        a(f"s_lshl_b32 s{sT0}, s{sCNT}, 8")
        base(sBA, sWS, sT0, H1)
        a(f"v_mov_b32 v9, s{sTAG}")
        stamp(2)
        a("s_barrier                      ; 1")
        a("ds_read2st64_b32 v[80:81], v5 offset0:0 offset1:2")
        a("ds_read2st64_b32 v[82:83], v5 offset0:4 offset1:6")
        a("ds_read2st64_b32 v[84:85], v10 offset0:0 offset1:2")
        a("ds_read2st64_b32 v[86:87], v10 offset0:4 offset1:6")
        a("s_waitcnt lgkmcnt(0)")
        a("v_pk_add_f32 v[80:81], v[80:81], v[82:83]")
        a("v_pk_add_f32 v[84:85], v[84:85], v[86:87]")
        a("v_add_f32 v80, v80, v81               ; sa")
        a("v_add_f32 v81, v84, v85               ; ca")
        round_bf16([80, 81])
        a("v_add_f32 v81, 1.0, v81")
        round_bf16([81])
        a("v_mul_f32 v81, v13, v81")
        round_bf16([81])
        a("v_add_f32 v80, v81, v80")
        a(f"v_mov_b32_dpp v81, v80 quad_perm:[1,1,3,3] {DPPM}")
        a("v_cvt_pk_bf16_f32 v8, v80, v81")
        set_exec(0x5555555555555555)
        a(f"global_store_dwordx2 v14, v[8:9], {sp(sBA)} sc1")
        set_exec(-1)
    stamp(3)
    if OPT["late"] & 2:
        (h_trigger if OPT["late"] & 4 else q_trigger)("L_GAt")
    if OPT["bhelp"]:
        a("s_barrier                      ; 1b")
    a("s_branch L_DOWN")
    a.label("L_GQA3")
    if OPT["hpull"]:
        a(f"global_load_dword v12, v4, {sp(sWS)} sc1      ; epoch")
        base(sBA, sWS, None, H1 + 4)
        a("v_lshlrev_b32 v5, 7, v0")
        a("s_waitcnt vmcnt(0)")
        make_tag(12)
    a("s_barrier                      ; 1")
    if OPT["bhelp"]:
        a("s_barrier                      ; 1b")
    if OPT["hpull"]:
        a(f"s_lshl_b32 s{sT0}, s{sM}, 3")
        a(f"s_add_u32 s{sT0}, s{sT0}, s{sWAVE}")
        a(f"s_cmp_lg_u32 s{sT0}, 12")
        a("s_cbranch_scc1 L_DOWN")
        a(f"s_movk_i32 s{sCNT}, 30")
        a.label("L_hp")
        a(f"global_load_dword v6, v5, {sp(sBA)} sc1")
        poll_mid()
        a(f"v_cmp_ne_u32 vcc, s{sTAG}, v6")
        poll_end("L_hp")
    a("s_branch L_DOWN")


def sec_gq():
    HELP[0] = False
    CLS[0] = 0
    a.label("L_GQ2")
    ids()
    stamp(1)
    a(f"s_lshl_b32 s{sT0}, s{sWAVE}, 10")
    base(sBA, sWS, sT0, H1)
    a(f"s_lshl_b32 s{sT0}, s{sWAVE}, 9")
    base(sBC, sWS, sT0, CF)
    a("v_lshlrev_b32 v5, 6, v1")
    a("v_and_b32 v7, 1, v0")
    a("v_lshl_add_u32 v5, v7, 5, v5")
    if OPT["split"]:
        a("v_and_b32 v7, 2, v0")
        a("v_lshl_add_u32 v5, v7, 12, v5")
    a("v_lshlrev_b32 v98, 7, v2")
    tile64_addr()
    a(f"s_lshl_b32 s{sT0}, s{sG}, 12")
    a(f"s_lshl_b32 s{sT1}, s{sM}, 6")
    a(f"s_add_u32 s{sT0}, s{sT0}, s{sT1}")
    a(f"s_and_b32 s{sT1}, s{sWAVE}, 1")
    a(f"s_lshl_b32 s{sT1}, s{sT1}, 11")
    a(f"s_add_u32 s{sT0}, s{sT0}, s{sT1}")
    a("v_and_b32 v97, 31, v0")
    a(f"v_lshl_add_u32 v97, v97, 2, s{sT0}")
    a("v_and_b32 v99, 32, v0")
    a("v_lshl_add_u32 v97, v99, 5, v97")
    a("v_lshlrev_b32 v99, 1, v97")
    base(sBB, sWS, None, QS)
    a.label("L_GQ3")
    if OPT["woe"]:
        a(f"s_cmp_lt_u32 s{sWAVE}, 4")
        a("s_cbranch_scc1 L_GQ4")
        a(f"s_lshl1_add_u32 s{sT0}, s{sM}, s{sWAVE}")
        a(f"s_lshl_b32 s{sT1}, s{sG}, 6")
        a(f"s_add_u32 s{sT0}, s{sT0}, s{sT1}")
        a(f"s_add_u32 s{sT0}, s{sT0}, 28")
        a(f"s_lshl_b32 s{sT0}, s{sT0}, 13")
        a(f"v_lshl_add_u32 v8, v0, 7, s{sT0}")
        prefetch(8, sWO, delta=1024)
        a.label("L_GQ4")
    a("s_waitcnt vmcnt(8)")
    make_tag(12)
    a(f"s_getreg_b32 s{sT0}, hwreg(HW_REG_XCC_ID, 0, 4)")
    a(f"s_xor_b32 s{sT0}, s{sTAG}, s{sT0}")
    a(f"v_mov_b32 v101, s{sT0}")
    if OPT["hearly"]:
        assert OPT["qtb"]
        if OPT["hearly"] > 1:
            a(f"s_waitcnt vmcnt({8 - 2 * (OPT['hearly'] - 1)})")
        a("s_barrier")
        a(f"global_load_dwordx4 v[8:11], v5, {sp(sBA)} sc1")
        a(f"global_load_dwordx4 v[12:15], v5, {sp(sBA)} offset:16 sc1")
        a(f"global_load_dword v84, v98, {sp(sBC)} sc1")
        perms8(W, F, waits=[9, 7, 5, 3])
        stamp(4)
        a(f"s_mov_b32 s{sCNT}, {OPT['limit']}")
        a("s_branch L_GQ6")
    else:
        perms8(W, F, waits=[6, 4, 2, 0])
        stamp(4)
    if OPT["h1m"] >= 2:
        a(f"s_lshl_b32 s{sT0}, s{sG}, 10")
        a(f"s_add_u32 s{sT0}, s{sT0}, {H1 + 4:#x}")
        a("v_and_b32 v9, 7, v0")
        a(f"v_lshl_add_u32 v9, v9, 7, s{sT0}")
        a(f"s_movk_i32 s{sCNT}, 40")
        a.label("L_GQh")
        a(f"global_load_dword v10, v9, {sp(sWS)} sc1")
        poll_mid()
        a(f"v_cmp_ne_u32 vcc, s{sTAG}, v10")
        poll_end("L_GQh")
        if OPT["h1m"] > 2:
            a(f"s_sleep {OPT['h1m'] - 2}")
    lab = poll_begin()
    a(f"global_load_dwordx4 v[8:11], v5, {sp(sBA)} sc1")
    a(f"global_load_dwordx4 v[12:15], v5, {sp(sBA)} offset:16 sc1")
    a(f"global_load_dword v84, v98, {sp(sBC)} sc1")
    if not OPT["qtb"]:
        a(f"global_load_dword v127, v97, {sp(sBB)} sc1")
    a.label("L_GQ6")
    poll_mid()
    if OPT["split"]:
        pay = [8, 12, 10, 14]
        for i in range(4):
            a(f"v_lshlrev_b32 v{88 + 2 * i}, 16, v{pay[i]}")
            a(f"v_and_b32 v{89 + 2 * i}, 0xffff0000, v{pay[i]}")
        a(f"v_xor_b32 v80, s{sTAG}, v9")
        a(f"v_xor_b32 v81, s{sTAG}, v11")
        for i in range(8):
            a(f"v_add_f32_dpp v{88 + i}, v{88 + i}, v{88 + i} quad_perm:[2,3,0,1] {DPPM}")
        for i in range(4):
            a(f"v_cvt_pk_bf16_f32 v{8 + i}, v{88 + 2 * i}, v{89 + 2 * i}")
        a(f"v_xor_b32 v82, s{sTAG}, v13")
        a(f"v_xor_b32 v83, s{sTAG}, v15")
        interleave([mfma(ACC + 4 * e, 8, F + 4 * e) for e in range(2)],
                   [f"v_xor_b32 v84, s{sTAG}, v84", "v_or3_b32 v80, v80, v81, v82", "v_or3_b32 v80, v80, v83, v84", "v_cmp_ne_u32 vcc, 0, v80"], 2)
        poll_end(lab)
        tile64_tail(2)
    else:
        a(f"v_xor_b32 v80, s{sTAG}, v9")
        a(f"v_xor_b32 v81, s{sTAG}, v11")
        a("v_mov_b32 v9, v12")
        a("v_mov_b32 v11, v14")
        a(f"v_xor_b32 v82, s{sTAG}, v13")
        a(f"v_xor_b32 v83, s{sTAG}, v15")
        interleave([mfma(ACC + 4 * e, 8, F + 4 * e) for e in range(2)],
                   [f"v_xor_b32 v84, s{sTAG}, v84", "v_or3_b32 v80, v80, v81, v82", "v_or3_b32 v80, v80, v83, v84", "v_cmp_ne_u32 vcc, 0, v80"], 2)
        poll_end(lab)
        tile64_tail(2)
    a("s_waitcnt lgkmcnt(0)")
    stamp(5)
    a(f"s_cmp_ge_u32 s{sWAVE}, 2")
    a("s_barrier                      ; 1")
    a("s_cbranch_scc1 L_GQ5")
    tile64_sum()
    base(sBA, sWS, None, H2G)
    a("s_waitcnt lgkmcnt(0)")
    sum8_b64(16)
    a("v_cvt_pk_bf16_f32 v100, v16, v17")
    a(f"global_store_dword v97, v100, {sp(sBB)}")
    if OPT["qfast"] != 1:
        if not OPT["qfast"]:
            a("s_waitcnt vmcnt(0)")
        if NREP < 64:
            set_exec((1 << NREP) - 1)
        a(f"global_store_dword v96, v101, {sp(sWS)}")
        if NREP < 64:
            set_exec(-1)
    a(f"global_store_dwordx2 v99, v[100:101], {sp(sBA)} sc1")
    stamp(6)
    a("s_branch L_WO")
    a.label("L_GQ5")
    if OPT["qfast"] == 1:
        a(f"s_cmp_lg_u32 s{sWAVE}, 2")
        a("s_cbranch_scc1 L_WO")
        if NREP < 64:
            set_exec((1 << NREP) - 1)
        a(f"global_store_dword v96, v101, {sp(sWS)}")
        if NREP < 64:
            set_exec(-1)
    a("s_branch L_WO")


WD = 128


def down_loads():
    a(f"s_lshr_b32 s{sT2}, s{sM}, 1")
    a(f"s_lshl2_add_u32 s{sT0}, s{sG}, s{sT2}")
    a(f"s_lshl_b32 s{sT0}, s{sT0}, 5")
    a(f"s_lshl_b32 s{sT2}, s{sWAVE}, 18")
    a(f"s_add_u32 s{sT0}, s{sT0}, s{sT2}")
    base(sBB, sWD, sT0, 4096)
    a("v_lshlrev_b32 v6, 13, v1")
    a("v_lshl_add_u32 v6, v2, 3, v6")
    a("v_add_u32 v7, 0x20000, v6")
    for f in range(2):
        for j in range(8):
            a(f"global_load_dwordx2 {vr(WD + 16 * f + 2 * j, 2)}, v{7 if f else 6}, {sp(sBB)} offset:{1024 * j - 4096}{NTW}")


def v_help(wbase):
    a(f"s_lshl3_add_u32 s{sT0}, s{sT2}, s{sG}")
    a(f"s_lshl_b32 s{sT0}, s{sT0}, 4")
    a(f"s_lshr_b32 s{sT1}, s{sWAVE}, 1")
    a(f"s_add_u32 s{sT0}, s{sT0}, s{sT1}")
    a(f"s_and_b32 s{sT1}, s{sWAVE}, 1")
    a(f"s_add_u32 s{sT1}, s{sT1}, {wbase}")
    if OPT["ilv"]:
        a(f"s_lshl_b32 s{sT0}, s{sT0}, 6")
        a(f"s_add_u32 s{sT0}, s{sT0}, s{sT1}")
        a(f"s_lshl_b32 s{sT0}, s{sT0}, 10")
        a(f"s_add_u32 s{sT0}, s{sT0}, {3072 * 256}")
        a("v_lshrrev_b32 v9, 3, v0")
        a("v_and_b32 v10, 7, v0")
        a("v_lshlrev_b32 v9, 13, v9")
        a("v_lshl_add_u32 v9, v10, 7, v9")
        a(f"v_add_u32 v9, s{sT0}, v9")
    else:
        a(f"s_lshl_b32 s{sT0}, s{sT0}, 3")
        a(f"s_add_u32 s{sT0}, s{sT0}, s{sT1}")
        a(f"s_lshl_b32 s{sT0}, s{sT0}, 13")
        a(f"s_add_u32 s{sT0}, s{sT0}, {3072 * 256}")
        a(f"v_lshl_add_u32 v9, v0, 7, s{sT0}")
    prefetch(9, sV, delta=1024)


def gu_item():
    a(f"s_bitcmp0_b32 s{sT4}, 4")
    a(f"s_cselect_b64 s[0:1], {sp(sWU)}, {sp(sWG)}")
    a(f"s_and_b32 s{sT0}, s{sT4}, 15")
    a(f"s_lshl_b32 s{sT0}, s{sT0}, 1")
    a(f"s_cmp_lt_u32 s{sT4}, 32")
    a(f"s_addc_u32 s{sT0}, s{sT0}, 0")
    a(f"s_mul_i32 s{sT0}, s{sT0}, {16 * 3584}")
    a(f"s_mul_i32 s{sT4}, s{sG}, 448")
    a(f"s_andn2_b32 s{sT4}, s{sT4}, 127")
    a(f"s_add_u32 s{sT0}, s{sT0}, s{sT4}")
    a("v_mul_u32_u24 v13, 3584, v1")
    a("v_lshl_add_u32 v13, v2, 7, v13")
    a(f"v_add_u32 v13, s{sT0}, v13")
    prefetch(13, 0, True, 2 * 3584)


def gu_help(lo, hi):
    for first in range(lo, hi, 32):
        lab = uid("gh")
        a(f"s_bfe_u32 s{sT2}, s{sM}, 0x20001")
        a(f"s_sub_u32 s{sT2}, 3, s{sT2}")
        a(f"s_lshl3_add_u32 s{sT2}, s{sT2}, s{sWAVE}")
        if hi - first < 32:
            a(f"s_cmp_ge_u32 s{sT2}, {hi - first}")
            a(f"s_cbranch_scc1 {lab}")
        a(f"s_bitcmp0_b32 s{sT2}, 4")
        a(f"s_cselect_b64 {sp(sBA)}, {sp(sWU)}, {sp(sWG)}")
        a(f"s_and_b32 s{sT0}, s{sT2}, 15")
        a(f"s_lshl2_add_u32 s{sT0}, s{sT0}, {2 if first == 0 else 0}")
        a(f"s_mul_i32 s{sT0}, s{sT0}, {8 * 3584}")
        a(f"s_mul_i32 s{sT1}, s{sG}, 448")
        a(f"s_andn2_b32 s{sT1}, s{sT1}, 127")
        a(f"s_add_u32 s{sT0}, s{sT0}, s{sT1}")
        a("v_mul_u32_u24 v13, 3584, v1")
        a("v_lshl_add_u32 v13, v2, 7, v13")
        a(f"v_add_u32 v13, s{sT0}, v13")
        prefetch(13, sBA, True, 2 * 3584)
        a.label(lab)


def wo_pf(first, per):
    for r in range((per + 7) // 8):
        n = min(8, per - 8 * r)
        lab = uid("wp")
        if n < 8:
            a(f"s_cmp_ge_u32 s{sWAVE}, {n}")
            a(f"s_cbranch_scc1 {lab}")
        a(f"s_mul_i32 s{sT0}, s{sT2}, {per}")
        a(f"s_add_u32 s{sT0}, s{sT0}, s{sWAVE}")
        a(f"s_lshl_b32 s{sT4}, s{sG}, 6")
        a(f"s_add_u32 s{sT0}, s{sT0}, s{sT4}")
        a(f"s_add_u32 s{sT0}, s{sT0}, {first + 8 * r}")
        a(f"s_lshl_b32 s{sT0}, s{sT0}, 13")
        a(f"v_lshl_add_u32 v8, v0, 7, s{sT0}")
        prefetch(8, sWO, delta=1024)
        a.label(lab)


def sec_wo():
    HELP[0] = True
    CLS[0] = 0
    a.label("L_WO")
    a(f"s_lshr_b32 s{sT1}, s{sWAVE}, 1")
    if OPT["dma"]:
        a(f"s_lshl3_add_u32 s{sT0}, s{sG}, s{sWAVE}")
        a(f"s_lshl_b32 s{sT0}, s{sT0}, 10")
        a(f"s_add_u32 s{sT0}, s{sT0}, s{sM}")
        a(f"s_lshl_b32 s{sT0}, s{sT0}, 6")
        base(sBB, sWO, sT0, 4096)
        a("v_and_b32 v9, 15, v0")
        a("v_lshlrev_b32 v6, 13, v3")
        a("v_lshl_add_u32 v6, v9, 2, v6")
        a("v_add_u32 v11, 0x8000, v6")
    else:
        a(f"s_lshl2_add_u32 s{sT0}, s{sG}, s{sT1}")
        a(f"s_lshl_b32 s{sT0}, s{sT0}, 5")
        a(f"s_and_b32 s{sT2}, s{sWAVE}, 1")
        a(f"s_add_u32 s{sT0}, s{sT0}, s{sT2}")
        a(f"s_lshl_b32 s{sT0}, s{sT0}, 6            ; (512g + 128h + 4*(i&1)) * 16")
        a(f"s_add_u32 s{sT0}, s{sT0}, s{sM}")
        a(f"s_lshl_b32 s{sT0}, s{sT0}, 6")
        base(sBB, sWO, sT0)
        a("v_and_b32 v9, 15, v0")
        a("v_and_b32 v6, 1, v3")
        a("v_lshlrev_b32 v6, 16, v6")
        a("v_lshrrev_b32 v5, 1, v3")
        a("v_lshl_add_u32 v6, v5, 10, v6")
        a(f"v_lshl_add_u32 v6, v9, {3 if OPT['wod'] else 2}, v6")
    a(f"s_movk_i32 s{sT3}, 8192")
    a(f"s_lshl3_add_u32 s{sT0}, s{sG}, s{sWAVE}")
    a(f"s_lshl_b32 s{sT0}, s{sT0}, 11")
    base(sBA, sWS, sT0, H3O)
    a("v_lshlrev_b32 v5, 4, v0")
    a(f"s_lshr_b32 s{sT2}, s{sM}, 1")
    a("s_barrier")
    if OPT["touch"]:
        a(f"s_cmp_lg_u32 s{sWAVE}, s{sT2}")
        a("s_cbranch_scc1 L_WOt")
        a(f"global_load_dwordx4 v[64:67], v5, {sp(sBA)} sc1")
        a(f"global_load_dwordx4 v[68:71], v5, {sp(sBA)} offset:1024 sc1")
        a.label("L_WOt")
    rest = 64 - 4 * OPT["woa"] - 8 * OPT["wob"]
    if OPT["woq"] and rest and not OPT["wod"]:
        wo_pf(4 * OPT["woa"], rest // 8)
    if OPT["guq"]:
        a(f"s_sub_u32 s{sT4}, 7, s{sWAVE}")
        a(f"s_cmp_ge_u32 s{sT4}, {OPT['guq']}")
        a("s_cbranch_scc1 L_WOu")
        a(f"s_lshl3_add_u32 s{sT4}, s{sT4}, s{sT2}")
        a(f"s_add_u32 s{sT4}, s{sT4}, 24")
        gu_item()
        a.label("L_WOu")
    for j in range(8):
        for ks in range(2):
            if OPT["wod"]:
                a(f"global_load_dwordx2 {vr(128 + 16 * ks + 2 * j, 2)}, v6, {sp(sBB)} offset:{2048 * ks} nt")
                continue
            for ch in range(2):
                if OPT["dma"]:
                    a(f"global_load_dword v{128 + 16 * ks + 8 * ch + j}, v{11 if ks else 6}, {sp(sBB)} offset:{1024 * j - 4096 + 64 * ch}{NTW}")
                else:
                    a(f"global_load_dword v{128 + 16 * ks + 8 * ch + j}, v6, {sp(sBB)} offset:{2048 * ks + 64 * ch}{NTW}")
        if j < 7 and not OPT["dma"]:
            a(f"v_add_u32 v6, s{sT3}, v6")
    a(f"s_lshl2_add_u32 s{sT0}, s{sG}, s{sT1}")
    a(f"s_lshl_b32 s{sT0}, s{sT0}, 7")
    base(sBC, sWS, sT0, H3ML)
    a("v_lshlrev_b32 v6, 5, v3")
    a("v_lshlrev_b32 v12, 8, v3")
    a(f"v_lshl_add_u32 v12, v9, {4 if OPT['wod'] else 3}, v12")
    a(f"v_lshl_add_u32 v12, s{sWAVE}, 10, v12")
    a(f"s_lshl4_add_u32 s{sT0}, s{sG}, s{sM}")
    a(f"s_lshl1_add_u32 s{sT0}, s{sT0}, s{sWAVE}")
    a(f"s_lshl_b32 s{sT0}, s{sT0}, 7")
    base(sBB, sWS, sT0, H4)
    a("v_and_b32 v13, 16, v0")
    a("v_lshlrev_b32 v13, 4, v13")
    a("v_and_b32 v10, 32, v0")
    a("v_lshl_add_u32 v13, v10, 1, v13")
    a("v_lshl_add_u32 v13, v9, 2, v13")
    if OPT["gatew"]:
        a(f"s_lshl4_add_u32 s{sT0}, s{sG}, s{sM}")
        a(f"s_lshl_b32 s{sT0}, s{sT0}, 6")
        a(f"s_add_u32 s{sT0}, s{sT0}, {GATE:#x}")
        a(f"v_mov_b32 v14, s{sT0}")
    if OPT["h4b"]:
        a(f"v_add_u32 v15, {H4B - H4:#x}, v13")
    a("s_waitcnt vmcnt(0)")
    stamp(7)
    if OPT["gate"] and OPT["gatew"]:
        a(f"s_cmp_lg_u32 s{sWAVE}, 7")
        a("s_cbranch_scc1 L_WOg")
        set_exec(1)
        a(f"global_store_dword v14, v4, {sp(sWS)} sc1")
        set_exec(-1)
        a.label("L_WOg")
    for ks in range(2):
        for ch in range(2):
            for eo in range(2):
                for x in range(4):
                    if OPT["wod"]:
                        src = 128 + 16 * ks + 4 * x + ch
                        a(f"v_perm_b32 v{32 + 16 * ks + 8 * ch + 4 * eo + x}, v{src + 2}, v{src}, s{sHI if eo else sLO}")
                        continue
                    src = 128 + 16 * ks + 8 * ch + 2 * x
                    a(f"v_perm_b32 v{32 + 16 * ks + 8 * ch + 4 * eo + x}, v{src + 1}, v{src}, s{sHI if eo else sLO}")
    lab = poll_begin()
    a(f"global_load_dwordx4 v[72:75], v6, {sp(sBC)} sc1")
    a(f"global_load_dwordx4 v[76:79], v6, {sp(sBC)} offset:16 sc1")
    poll_mid(sleep=OPT["mls"])
    for ins in sentinel_ops(range(72, 80), 8):
        a(ins)
    poll_end(lab)
    a(f"global_load_dwordx4 v[64:67], v5, {sp(sBA)} sc1")
    a(f"global_load_dwordx4 v[68:71], v5, {sp(sBA)} offset:1024 sc1")
    a("v_max3_f32 v8, v72, v74, v76")
    a("v_max_f32 v8, v8, v78")
    for s in range(4):
        a(f"v_sub_f32 v{72 + 2 * s}, v{72 + 2 * s}, v8")
    for s in range(4):
        a(f"v_exp_f32 v{72 + 2 * s}, v{72 + 2 * s}")
    a("v_mul_f32 v9, v72, v73")
    for s in range(1, 4):
        a(f"v_fmac_f32 v9, v{72 + 2 * s}, v{73 + 2 * s}")
    a("v_rcp_f32 v9, v9")
    for s in range(4):
        a(f"v_mul_f32 v{80 + s}, v{72 + 2 * s}, v9")
    stamp(8)
    a(f"s_mov_b32 s{sCNT}, {OPT['limit']}")
    a("s_branch L_WO2")
    a.label("L_WO1")
    a(f"global_load_dwordx4 v[64:67], v5, {sp(sBA)} sc1")
    a(f"global_load_dwordx4 v[68:71], v5, {sp(sBA)} offset:1024 sc1")
    a.label("L_WO2")
    if OPT["fin"]:
        chk = sentinel_ops(range(64, 72), 8)
        poll_mid("vmcnt(1)")
        interleave([mfma(16, 64, 32), mfma(20, 64, 36)], chk[:1], 1)
        a("s_waitcnt vmcnt(0)")
        interleave([mfma(16, 68, 48, 16), mfma(20, 68, 52, 20)], chk[1:], 2)
        poll_end("L_WO1")
        for ins in (mfma(24, 64, 40), mfma(28, 64, 44), mfma(24, 68, 56, 24), mfma(28, 68, 60, 28)):
            a(ins)
    else:
        poll_mid()
        interleave([mfma(16 + 4 * c, 64, 32 + 4 * c) for c in range(3)], sentinel_ops(range(64, 72), 8), 2)
        poll_end("L_WO1")
        a(mfma(28, 64, 44))
        for c in range(4):
            a(mfma(16 + 4 * c, 68, 48 + 4 * c, 16 + 4 * c))
    for ch in range(2):
        for c in (2 * ch, 2 * ch + 1):
            a(f"v_pk_mul_f32 v[{16 + 4 * c}:{17 + 4 * c}], v[{16 + 4 * c}:{17 + 4 * c}], v[80:81]")
            a(f"v_pk_fma_f32 v[{16 + 4 * c}:{17 + 4 * c}], v[{18 + 4 * c}:{19 + 4 * c}], v[82:83], v[{16 + 4 * c}:{17 + 4 * c}]")
        a(f"v_add_f32 v{84 + 2 * ch}, v{16 + 8 * ch}, v{17 + 8 * ch}")
        a(f"v_add_f32 v{85 + 2 * ch}, v{20 + 8 * ch}, v{21 + 8 * ch}")
        a(f"ds_write_b64 v12, v[{84 + 2 * ch}:{85 + 2 * ch}] offset:{(8 if OPT['wod'] else 128) * ch}")
    a("s_waitcnt lgkmcnt(0)")
    stamp(9)
    a("s_barrier                      ; 3")
    a(f"s_cmp_ge_u32 s{sWAVE}, 2")
    a("s_cbranch_scc1 L_WOe" if OPT["wbl"] else "s_cbranch_scc1 L_fin")
    tile64_sum()
    a("s_waitcnt lgkmcnt(0)")
    sum8_b64(16)
    a("v_cvt_pk_bf16_f32 v8, v16, v17")
    a(f"global_store_dword v13, v8, {sp(sBB)} sc1")
    if OPT["h4b"]:
        a(f"global_store_dword v15, v8, {sp(sBB)} sc1")
    stamp(10)
    a.label("L_fin")
    finish_wave()
    if OPT["wbl"]:
        a.label("L_WOe")
        a(f"s_lshl3_add_u32 s{sT0}, s{sM}, s{sWAVE}")
        a(f"s_cmp_lg_u32 s{sT0}, 2")
        a("s_cbranch_scc1 L_fin")
        if OPT["wbl"] > 1:
            a(f"s_sleep {OPT['wbl']}")
        a("buffer_wbl2 sc1")
        a("s_waitcnt vmcnt(0)")
        finish_wave()


def sec_down():
    HELP[0] = True
    CLS[0] = 0
    a.label("L_HB")
    a("s_barrier")
    a(f"s_bfe_u32 s{sT2}, s{sM}, 0x20001")
    rest = 64 - 4 * OPT["woa"]
    if not OPT["woq"] and rest:
        wo_pf(4 * OPT["woa"], rest // 4)
    if OPT["wob"]:
        a(f"s_cmp_lg_u32 s{sM}, 11")
        a("s_cbranch_scc1 L_HBo")
        a(f"s_mov_b32 s{sT2}, 0")
        wo_pf(56, 8)
        a.label("L_HBo")
    if OPT["guq"]:
        assert 16 * OPT["gua"] + 24 + 8 * OPT["guq"] == 64 and not OPT["gbe"]
        gu_help(0, 24)
    elif OPT["gua"] < 4:
        gu_help(32 if OPT["gbe"] else 0, 16 * (4 - OPT["gua"]))
    if OPT["wdh"]:
        a(f"s_bfe_u32 s{sT2}, s{sM}, 0x20001")
        a(f"s_cmp_eq_u32 s{sT2}, 0")
        a("s_cbranch_scc1 L_HBd")
        a(f"s_mul_i32 s{sT0}, s{sWAVE}, 3")
        a(f"s_add_u32 s{sT0}, s{sT0}, s{sT2}")
        a(f"s_add_u32 s{sT0}, s{sT0}, {4 * OPT['wdh'] - 1}")
        a(f"s_cmp_ge_u32 s{sT0}, 28")
        a("s_cbranch_scc1 L_HBd")
        a(f"s_lshl_b32 s{sT0}, s{sT0}, 9")
        a(f"s_add_u32 s{sT0}, s{sT0}, s{sG}")
        a(f"s_lshl_b32 s{sT0}, s{sT0}, 7")
        a(f"v_lshl_add_u32 v8, v0, 10, s{sT0}")
        a("s_waitcnt vmcnt(0)")
        prefetch(8, sWD, delta=8192)
        a.label("L_HBd")
    if OPT["xml"]:
        pass
    if OPT["gate"]:
        a(f"s_lshl3_add_u32 s{sT0}, s{sM}, s{sWAVE}")
        a(f"s_cmp_lg_u32 s{sT0}, {9 * 8 + 7}")
        a("s_cbranch_scc1 L_fin")
        a(f"s_lshl_b32 s{sT0}, s{sG}, 9")
        base(sBA, sWS, sT0, H3ML)
        a(f"s_lshl_b32 s{sT0}, s{sG}, 7")
        base(sBB, sWS, sT0, GATE + 0x2000)
        a("v_lshlrev_b32 v5, 3, v0")
        a(f"s_movk_i32 s{sCNT}, 100")
        a.label("L_HBg")
        a(f"global_load_dword v6, v5, {sp(sBA)} sc1")
        poll_mid()
        a("v_cmp_eq_u32 vcc, -1, v6")
        poll_end("L_HBg")
        stamp(8)
        set_exec(1)
        a(f"global_store_dword v4, v4, {sp(sBB)} sc1")
    finish_wave()
    a.label("L_DOWN")
    a("s_setprio 0")
    a("s_barrier")
    a(f"s_lshr_b32 s{sT2}, s{sM}, 1")
    if OPT["vh"]:
        v_help(6)
    if OPT["bh2"]:
        a(f"s_cmp_lt_u32 s{sWAVE}, 4")
        a("s_cbranch_scc1 L_DNb")
        a(f"s_lshl2_add_u32 s{sT0}, s{sWAVE}, s{sT2}")
        a(f"s_mul_i32 s{sT0}, s{sT0}, {16 * 6144}")
        a(f"s_lshl_b32 s{sT1}, s{sG}, 9")
        a(f"s_add_u32 s{sT0}, s{sT0}, s{sT1}")
        a(f"s_add_u32 s{sT0}, s{sT0}, 2048")
        a("v_mul_u32_u24 v8, 6144, v1")
        a("v_lshl_add_u32 v8, v2, 7, v8")
        a(f"v_add_u32 v8, s{sT0}, v8")
        prefetch(8, sWM)
        a.label("L_DNb")
    if OPT["wod"]:
        a(f"s_cmp_ge_u32 s{sWAVE}, {OPT['wo3']}")
        a("s_cbranch_scc1 L_DN3")
        a(f"s_lshl2_add_u32 s{sT0}, s{sWAVE}, s{sT2}")
        a(f"s_sub_u32 s{sT0}, 7, s{sT0}")
        a(f"s_lshl3_add_u32 s{sT0}, s{sG}, s{sT0}")
        a(f"s_lshl_b32 s{sT0}, s{sT0}, 16")
        a(f"s_add_u32 s{sT0}, s{sT0}, 384")
        a(f"v_lshl_add_u32 v8, v0, 10, s{sT0}")
        prefetch(8, sWO)
        a.label("L_DN3")
        if OPT["woa"]:
            wo_pf(64 - 4 * OPT["woa"], OPT["woa"])
    else:
        wo_pf(0, OPT["woa"])
    if OPT["guh"]:
        a(f"s_lshl3_add_u32 s{sT4}, s{sT2}, s{sWAVE}")
        if OPT["guh"] == 1:
            a(f"s_cmp_ge_u32 s{sWAVE}, 4")
            a("s_cbranch_scc1 L_DNu")
            a(f"s_lshl2_add_u32 s{sT4}, s{sT2}, s{sWAVE}")
        a(f"s_bitcmp0_b32 s{sT4}, 4")
        a(f"s_cselect_b64 {sp(sBA)}, {sp(sWU)}, {sp(sWG)}")
        a(f"s_and_b32 s{sT0}, s{sT4}, 15")
        a(f"s_mul_i32 s{sT0}, s{sT0}, {32 * 3584}")
        a(f"s_mul_i32 s{sT1}, s{sG}, 448")
        a(f"s_andn2_b32 s{sT1}, s{sT1}, 127")
        a(f"s_add_u32 s{sT0}, s{sT0}, s{sT1}")
        a("v_mul_u32_u24 v13, 3584, v1")
        a("v_lshl_add_u32 v13, v2, 7, v13")
        a(f"v_add_u32 v13, s{sT0}, v13")
        prefetch(13, sBA, True, 2 * 3584)
        a.label("L_DNu")
    if OPT["wdl"]:
        a(f"s_cmp_lg_u32 s{sWAVE}, 7")
        a("s_cbranch_scc1 L_DNw")
        cf_poll()
        a(f"s_lshl_b32 s{sT0}, s{sG}, 9")
        base(sBA, sWS, sT0, H3ML)
        a("v_lshlrev_b32 v5, 3, v0")
        a(f"s_movk_i32 s{sCNT}, 60")
        a.label("L_DNg")
        a(f"global_load_dword v6, v5, {sp(sBA)} sc1")
        poll_mid(sleep=2)
        a("v_cmp_ne_u32 vcc, -1, v6")
        a("s_cmp_eq_u64 vcc, 0")
        a("s_cselect_b64 vcc, -1, 0")
        poll_end("L_DNg")
        a.label("L_DNw")
        a("s_barrier")
    a(f"s_cmp_eq_u32 s{sWAVE}, 7")
    a("s_cbranch_scc1 L_DN7")
    a(f"s_lshl2_add_u32 s{sT0}, s{sWAVE}, s{sT2}")
    a(f"s_lshl_b32 s{sT0}, s{sT0}, 9")
    a(f"s_add_u32 s{sT0}, s{sT0}, s{sG}")
    a(f"s_lshl_b32 s{sT0}, s{sT0}, 7")
    a(f"v_lshl_add_u32 v8, v0, 10, s{sT0}")
    if OPT["wdh"]:
        a(f"s_cmp_ge_u32 s{sWAVE}, {OPT['wdh']}")
        a("s_cbranch_scc1 L_DNr")
    a("s_waitcnt vmcnt(0)")
    prefetch(8, sWD, delta=8192)
    a.label("L_DNr")
    if OPT["wdh"]:
        a("s_waitcnt vmcnt(0)")
        a("s_barrier")
    a("s_waitcnt vmcnt(0)")
    down_loads()
    a(f"s_lshl_b32 s{sT0}, s{sWAVE}, 11")
    base(sBA, sWS, sT0, ACT)
    a("v_lshlrev_b32 v5, 4, v0")
    a("v_lshlrev_b32 v6, 7, v3")
    a("v_lshl_add_u32 v6, v2, 4, v6")
    a(f"v_lshl_add_u32 v6, s{sWAVE}, 9, v6")
    a("s_waitcnt vmcnt(0)")
    a("s_barrier")
    for f in range(2):
        for e in range(4):
            for x in range(4):
                a(f"v_perm_b32 v{48 + 16 * f + 4 * e + x}, v{WD + 16 * f + 2 * (2 * x + 1) + (e >> 1)}, "
                  f"v{WD + 16 * f + 2 * (2 * x) + (e >> 1)}, s{sHI if e & 1 else sLO}")
    stamp(11)
    a("s_barrier")
    lab = poll_begin()
    a(f"global_load_dwordx4 v[8:11], v5, {sp(sBA)} sc1")
    a(f"global_load_dwordx4 v[12:15], v5, {sp(sBA)} offset:1024 sc1")
    poll_mid()
    interleave([mfma(16 + 4 * e, 8, 48 + 4 * e) for e in range(3)], sentinel_ops(range(8, 16), 7), 2)
    poll_end(lab)
    stamp(5)
    if OPT["stamps"] == 1:
        a(f"v_writelane_b32 v126, s{sCNT}, 6")
    a(mfma(28, 8, 60))
    for e in range(4):
        a(mfma(16 + 4 * e, 12, 64 + 4 * e, 16 + 4 * e))
    for e in range(4):
        for b0 in range(2):
            a(f"v_add_f32_dpp v{32 + 4 * b0 + e}, v{16 + 4 * e + 2 * b0 + 1}, v{16 + 4 * e + 2 * b0} row_shl:4 {DPPM}")
    set_exec(0x0F000F00000F000F)
    a("ds_write_b128 v6, v[32:35] offset:10240")
    a("ds_write_b128 v6, v[36:39] offset:10304")
    a("s_waitcnt lgkmcnt(0)")
    stamp(12)
    a("s_barrier                      ; 5")
    finish_wave()
    a.label("L_DN7")
    if OPT["wdh"]:
        a("s_barrier")
    a("s_barrier                      ; 3")
    if not OPT["wdl"]:
        cf_poll()
    if not OPT["xgate"]:
        a("s_barrier                      ; 4")
    a(f"s_lshr_b32 s{sT1}, s{sM}, 1")
    a(f"s_lshl2_add_u32 s{sT2}, s{sG}, s{sT1}       ; col0/16")
    a(f"s_lshl_b32 s{sT0}, s{sG}, 9")
    a(f"s_and_b32 s{sT3}, s{sT1}, 1")
    a(f"s_lshl_b32 s{sT3}, s{sT3}, 5")
    a(f"s_add_u32 s{sT0}, s{sT0}, s{sT3}")
    a(f"s_and_b32 s{sT3}, s{sT1}, 2")
    a(f"s_lshl2_add_u32 s{sT0}, s{sT3}, s{sT0}")
    base(sBB, sWS, sT0, MODB + 3 * 4096)
    a(f"s_lshl_b32 s{sT3}, s{sG}, 9")
    a(f"s_add_u32 s{sT0}, s{sT0}, s{sT3}")
    base(sBA, sWS, sT0, X1)
    a("v_and_b32 v7, 4, v0")
    a("v_lshlrev_b32 v5, 6, v7")
    a("v_lshl_add_u32 v5, v3, 6, v5")
    a("v_and_b32 v7, 10, v0")
    a("v_lshl_add_u32 v5, v7, 1, v5")
    a("v_and_b32 v7, 0x1c0, v5")
    a("v_add_u32 v12, v7, v5")
    a(f"s_lshl_b32 s{sT0}, s{sT2}, 5")
    base(sBC, sOUT, sT0)
    a("v_and_b32 v7, 15, v0")
    a("v_lshlrev_b32 v11, 10, v3")
    a("v_lshl_add_u32 v11, v7, 1, v11")
    if OPT["otch"]:
        a(f"global_load_ushort v127, v11, {sp(sBC)}")
    a("v_and_b32 v7, 1, v0")
    a("v_lshlrev_b32 v7, 4, v7")
    a("v_lshlrev_b32 v6, 2, v0")
    lab = poll_begin()
    a(f"global_load_dword v8, v12, {sp(sBA)} sc1")
    a(f"global_load_dword v9, v5, {sp(sBB)} sc1")
    poll_mid()
    for ins in sentinel_ops([8, 9], 10):
        a(ins)
    poll_end(lab)
    if OPT["xgate"]:
        if OPT["xgate"] > 1:
            a(f"s_sleep {OPT['xgate'] - 1}")
        a("s_barrier                      ; 4")
    a("v_lshrrev_b32 v8, v7, v8")
    a("v_lshrrev_b32 v9, v7, v9")
    a("v_lshlrev_b32 v8, 16, v8              ; x1")
    a("v_lshlrev_b32 v9, 16, v9              ; gb")
    if OPT["epe"]:
        a("s_cmp_lg_u32 s2, 8")
        a("s_cbranch_scc1 L_DNe")
        a(f"v_mov_b32 v10, s{sTAG}")
        set_exec(1)
        a(f"global_store_dword v4, v10, {sp(sWS)} sc1")
        set_exec(-1)
        a.label("L_DNe")
    stamp(9)
    a("s_barrier                      ; 5")
    for t in range(7):
        a(f"ds_read2st64_b32 v[{16 + 2 * t}:{17 + 2 * t}], v6 offset0:{40 + 2 * t} offset1:{41 + 2 * t}")
    a("s_waitcnt lgkmcnt(3)")
    a("v_pk_add_f32 v[16:17], v[16:17], v[18:19]")
    a("v_pk_add_f32 v[20:21], v[20:21], v[22:23]")
    a("v_pk_add_f32 v[16:17], v[16:17], v[20:21]")
    a("s_waitcnt lgkmcnt(0)")
    a("v_pk_add_f32 v[24:25], v[24:25], v[26:27]")
    a("v_pk_add_f32 v[16:17], v[16:17], v[28:29]")
    a("v_pk_add_f32 v[16:17], v[16:17], v[24:25]")
    a("v_add_f32 v16, v16, v17")
    a("v_fma_f32 v16, v9, v16, v8")
    a("v_cvt_pk_bf16_f32 v16, v16, v16")
    a(f"global_store_short v11, v16, {sp(sBC)}" + ("", " sc1", " nt", " sc0 sc1")[OPT["outp"]])
    stamp(13)
    if not OPT["epe"]:
        a("s_cmp_lg_u32 s2, 8")
        a("s_cbranch_scc1 L_fin")
        a(f"v_mov_b32 v8, s{sTAG}")
        set_exec(1)
        a(f"global_store_dword v4, v8, {sp(sWS)} sc1")
    finish_wave()


def sec_att():
    HELP[0] = False
    a_regs(True)
    CLS[0] = 1
    a.label("L_A2")
    ids()
    if not OPT["vlate"]:
        stamp(1)
    a(f"s_lshl_b32 s{sT0}, s{sWAVE}, 13")
    a(f"s_add_u32 s{sT0}, s{sT0}, {LK}")
    a("v_and_b32 v8, 15, v0")
    if not OPT["dma"]:
        a("v_lshlrev_b32 v9, 2, v3")
        a("v_xor_b32 v9, v9, v8")
        a(f"v_lshl_add_u32 v10, v3, 8, s{sT0}")
        for x in range(4):
            a(f"v_xor_b32 v11, {x}, v9")
            a(f"v_lshl_add_u32 v{104 + x}, v11, 4, v10")
    a("v_lshl_add_u32 v10, v2, 2, v5         ; key = 4*(m&3) + (m>>2)")
    a(f"v_lshl_add_u32 v10, v10, 8, s{sT0}")
    a("v_xor_b32 v9, v3, v8")
    for ks in range(4):
        a(f"v_xor_b32 v11, {4 * ks}, v9")
        a(f"v_lshl_add_u32 v{108 + ks}, v11, 4, v10")
    a(f"v_mul_u32_u24 v6, {QST}, v5")
    a("v_lshl_add_u32 v6, v3, 4, v6")
    a(f"s_mul_i32 s{sT0}, s{sWAVE}, 2560")
    a("v_mul_u32_u24 v7, 576, v5")
    a(f"v_lshl_add_u32 v7, v2, {4 if OPT['bank'] else 6}, v7")
    a(f"v_lshl_add_u32 v7, v3, {6 if OPT['bank'] else 4}, v7")
    a(f"v_add_u32 v7, s{sT0}, v7")
    a("v_lshlrev_b32 v5, 5, v5               ; h*32")
    a(f"v_lshl_add_u32 v120, s{sWAVE}, 2, v5     ; h*32 + wave*4")
    a(f"v_add_u32 v120, {LM}, v120")
    a("v_lshlrev_b32 v124, 4, v0")
    a("v_add_u32 v125, 0x1000, v124")
    a(f"s_lshl2_add_u32 s{sT0}, s{sG}, s{sWAVE}")
    a(f"s_lshl_b32 s{sT0}, s{sT0}, 8")
    a(f"s_add_u32 s{sT0}, s{sT0}, s{sM}")
    a(f"s_lshl_b32 s{sT0}, s{sT0}, 4")
    base(sBA, sWS, sT0, H3O)
    if OPT["bank"]:
        a("v_and_b32 v121, 32, v0")
        a("v_lshlrev_b32 v121, 6, v121")
        a("v_and_b32 v122, 6, v0")
        a("v_lshl_add_u32 v121, v122, 8, v121")
        a("v_and_b32 v122, 16, v0")
        a("v_lshl_add_u32 v121, v122, 4, v121")
        a("v_and_b32 v122, 8, v0")
        a("v_add_u32 v121, v122, v121")
        a("v_and_b32 v122, 1, v0")
        a("v_lshl_add_u32 v121, v122, 2, v121")
    else:
        a("v_lshlrev_b32 v121, 8, v1")
        a("v_lshl_add_u32 v121, v2, 2, v121")
    a(f"s_mul_i32 s{sT0}, s{sWAVE}, 576")
    a(f"v_lshl_add_u32 v122, v0, 3, s{sT0}")
    a(f"s_and_b32 s{sT4}, s{sWAVE}, 3")
    a(f"s_lshl_b32 s{sT0}, s{sT4}, 8")
    base(sBB, sX, sT0)
    a(f"s_lshl_b32 s{sT0}, s{sT4}, 10")
    base(sBC, sWS, sT0, MODB + 4096)
    a("v_lshrrev_b32 v119, 1, v3")
    a("v_lshlrev_b32 v119, 7, v119")
    a("v_and_b32 v14, 1, v3")
    a("v_lshl_add_u32 v119, v14, 3, v119")
    a("v_lshl_add_u32 v119, v2, 4, v119")
    a("v_lshl_add_u32 v119, v5, 5, v119        ; x offset: b*1024 + (G>>1)*128 + c*16 + (G&1)*8")
    for y in range(4):
        a(f"v_cmp_ne_u32 s[{20 + 2 * y}:{21 + 2 * y}], {y}, v2")
    a("v_mov_b32 v123, 0")
    gu_addr()
    a("v_lshlrev_b32 v184, 2, v0")
    a(f"v_add_u32 v184, {LM}, v184")
    a("v_lshlrev_b32 v185, 4, v0")
    a(f"s_lshl_b32 s{sT0}, s{sG}, 6")
    a(f"s_add_u32 s{sT0}, s{sT0}, s{sM}")
    a(f"s_lshl_b32 s{sT0}, s{sT0}, 3")
    a(f"s_add_u32 s{sT0}, s{sT0}, {H3ML:#x}")
    a(f"v_add_u32 v185, s{sT0}, v185")
    if OPT["pfgl"]:
        a(f"s_and_b32 s{sT0}, s{sWAVE}, 2")
        a(f"s_lshl2_add_u32 s{sT0}, s{sM}, s{sT0}")
        a(f"s_mul_i32 s{sT0}, s{sT0}, {8 * 3584}")
        a(f"s_mul_i32 s{sT1}, s{sG}, 448")
        a(f"s_andn2_b32 s{sT1}, s{sT1}, 127")
        a(f"s_add_u32 s{sT0}, s{sT0}, s{sT1}")
        a("v_mul_u32_u24 v118, 3584, v1")
        a("v_lshl_add_u32 v118, v2, 7, v118")
        a(f"v_add_u32 v118, s{sT0}, v118")
    warm({4: ["L_s0"], 5: ["L_s1"], 6: ["L_s2"], 7: ["L_s3"], **({3: ["L_s4"]} if OPT["warm"] > 1 else {})})
    if OPT["dma"]:
        a("v_and_b32 v8, 15, v0")
        a("v_and_b32 v9, 1, v3")
        a("v_lshlrev_b32 v10, 1, v9")
        a("v_xor_b32 v8, v10, v8")
        a("v_lshlrev_b32 v8, 4, v8")
        a("v_lshl_add_u32 v48, v3, 8, v8")
        for x in range(1, 4):
            a(f"v_xor_b32 v{48 + x}, {64 * x}, v48")
        a(f"s_lshl_b32 s{sT0}, s{sWAVE}, 13")
        a(f"s_add_u32 s{sT0}, s{sT0}, {LVV}")
        a("v_and_b32 v8, 3, v1")
        a("v_lshl_add_u32 v10, v8, 2, v3")
        a(f"v_lshl_add_u32 v10, v10, 8, s{sT0}")
        a("v_lshl_add_u32 v9, v8, 1, v9")
        a("v_lshl_add_u32 v10, v9, 5, v10")
        a("v_lshl_add_u32 v56, v2, 3, v10")
        for e in range(1, 8):
            a(f"v_xor_b32 v{56 + e}, {32 * e}, v56")
        a(f"s_mov_b32 m0, s{sT0}")
        for u in range(8):
            if u == 4:
                a("s_add_u32 m0, m0, 4096")
                a("s_add_u32 s34, s34, 4096")
                a("s_addc_u32 s35, s35, 0")
            a(f"global_load_lds_dwordx4 v{48 + (u & 3)}, s[34:35] offset:{1024 * (u & 3)}{NT}")
        if OPT["stamps"]:
            a("s_mov_b32 m0, 0")
        stamp(1)
    elif OPT["vlate"] and OPT["ilv"]:
        assert OPT["afirst"]
        a("v_mov_b32 v13, v124")
        for u in range(8):
            if OPT["vthr"] and u < 4:
                a(f"s_waitcnt vmcnt({OPT['vthr'] - 1})")
            a(f"global_load_dwordx4 {vr(VR + 4 * u, 4)}, v13, s[34:35]{NT}")
            if u < 7:
                a(f"v_add_u32 v13, s{sT3}, v13")
        stamp(1)
    elif OPT["vlate"]:
        for u in range(8):
            a(f"global_load_dwordx4 {vr(VR + 4 * u, 4)}, v124, s[34:35] offset:{1024 * u - 4096}{NT}")
        stamp(1)
    if OPT["kstage"]:
        a(f"s_cmp_lt_u32 s{sWAVE}, 4")
        a("s_cbranch_scc1 L_A2k")
        a("s_waitcnt vmcnt(0)")
        a.label("L_A2k")
    if OPT["dma"]:
        for t in range(2):
            a(f"s_waitcnt vmcnt({12 - 4 * t})")
            for ks in range(4):
                a(f"ds_read_b128 {vr(KR + 16 * t + 4 * ks, 4)}, v{108 + ks} offset:{4096 * t}")
    else:
        for u in range(8):
            a(f"s_waitcnt vmcnt({max(15 - u, 9) if False else 15 - u})")
            a(f"ds_write_b128 v{104 + (u & 3)}, {vr(KR + 4 * u, 4)} offset:{1024 * u}")
        a("s_waitcnt lgkmcnt(0)")
        for t in range(2):
            for ks in range(4):
                a(f"ds_read_b128 {vr(KR + 16 * t + 4 * ks, 4)}, v{108 + ks} offset:{4096 * t}")
    stamp(2)
    a(f"s_cmp_lt_u32 s{sWAVE}, 4")
    a("s_cbranch_scc1 L_A2b")
    if OPT["kstage"]:
        for u in range(8):
            a(f"global_load_dwordx4 {vr(VR + 4 * u, 4)}, v124, s[34:35] offset:{1024 * u - 4096}{NT}")
        stamp(1)
    if not OPT["xml"] and OPT["pfb"] != 2:
        a(f"global_load_dwordx2 v[128:129], v119, {sp(sBB)}")
        a(f"global_load_dwordx2 v[130:131], v119, {sp(sBB)} offset:64")
    if OPT["pfgw"]:
        if OPT["gua"] < 4:
            a(f"s_cmp_ge_u32 s{sWAVE}, {4 + OPT['gua'] - OPT['guh']}")
            a("s_cbranch_scc1 L_A3" if OPT["pfb"] else "s_cselect_b64 exec, 1, -1")
        a(f"s_bitcmp1_b32 s{sWAVE}, 0")
        a(f"s_cselect_b64 s[0:1], {sp(sWU)}, {sp(sWG)}")
        a(f"s_and_b32 s{sT0}, s{sWAVE}, 2")
        a(f"s_lshl2_add_u32 s{sT0}, s{sM}, s{sT0}")
        a(f"s_mul_i32 s{sT0}, s{sT0}, {8 * 3584}")
        a(f"s_mul_i32 s{sT1}, s{sG}, 448")
        a(f"s_andn2_b32 s{sT1}, s{sT1}, 127")
        a(f"s_add_u32 s{sT0}, s{sT0}, s{sT1}")
        a("v_mul_u32_u24 v13, 3584, v1")
        a("v_lshl_add_u32 v13, v2, 7, v13")
        a(f"v_add_u32 v13, s{sT0}, v13")
        prefetch(13, 0, True, 2 * 3584)
        set_exec(-1)
    if OPT["vfirst"]:
        ex = 2 + NPF * OPT["pfgw"]
        perms8(VR, VT, waits=[6 + ex, 4 + ex, 2 + ex, ex])
        stamp(7)
    a("s_branch L_A3")
    a.label("L_A2b")
    make_tag(12)
    if not OPT["kfirst"] or OPT["vfirst"]:
        perms8(VR, VT, waits=[6, 4, 2, 0])
    a("s_waitcnt lgkmcnt(0)")
    a(f"s_getreg_b32 s{sT0}, hwreg(HW_REG_XCC_ID, 0, 4)")
    a(f"s_xor_b32 s56, s{sTAG}, s{sT0}")
    a("s_mov_b32 s57, s56")
    a(f"s_lshl2_add_u32 s{sT0}, s{sG}, s{sWAVE}")
    a(f"s_mul_i32 s{sT0}, s{sT0}, {NREP * 128}")
    base(32, sWS, sT0, FL)
    a(f"s_lshr_b32 s{sT0}, s{sM}, 2")
    a(f"s_lshl2_add_u32 s{sT0}, s{sG}, s{sT0}")
    a(f"s_lshl2_add_u32 s{sT0}, s{sT0}, s{sWAVE}")
    a(f"s_lshl_b32 s{sT0}, s{sT0}, 8")
    base(0, sWS, sT0, QS)
    a(f"s_mul_i32 s{sT0}, s{sWAVE}, {QST}")
    a(f"v_lshl_add_u32 v112, v0, 2, s{sT0}")
    a(f"v_lshlrev_b32_e64 v113, 2, s{sWAVE}")
    a(f"v_lshl_add_u32 v117, v0, 4, s{sT0}")
    a("s_setprio 2")
    a(f"s_mov_b32 s{sCNT}, 0")
    a.label("L_Aq")
    a(f"s_load_dwordx{2 if OPT['qfast'] == 1 else 4} s[48:{49 if OPT['qfast'] == 1 else 51}], s[32:33], s{sCNT}")
    a(f"s_add_u32 s{sCNT}, s{sCNT}, 128")
    a("s_waitcnt lgkmcnt(0)")
    a("s_xor_b64 s[48:49], s[48:49], s[56:57]")
    if OPT["qfast"] != 1:
        a("s_xor_b64 s[50:51], s[50:51], s[56:57]")
        a("s_or_b64 s[48:49], s[48:49], s[50:51]")
    a("s_cbranch_scc0 L_Aq_ok")
    if OPT["qsleep"]:
        a(f"s_sleep {OPT['qsleep']}")
    a(f"s_cmp_lt_u32 s{sCNT}, {NREP * 128}")
    a("s_cbranch_scc1 L_Aq")
    a.label("L_Aq_fb")
    set_exec(-1)
    a(f"s_getreg_b32 s{sT0}, hwreg(HW_REG_XCC_ID, 0, 4)")
    a(f"s_xor_b32 s56, s{sTAG}, s{sT0}")
    a(f"s_lshr_b32 s{sT0}, s{sM}, 2")
    a(f"s_lshl2_add_u32 s{sT0}, s{sG}, s{sT0}")
    a(f"s_lshl2_add_u32 s{sT0}, s{sT0}, s{sWAVE}")
    a(f"s_lshl_b32 s{sT0}, s{sT0}, 9")
    base(32, sWS, sT0, H2G)
    a("v_lshlrev_b32 v10, 3, v0")
    lab = poll_begin()
    a(f"global_load_dwordx2 v[8:9], v10, s[32:33] sc1")
    poll_mid()
    a("v_xor_b32 v9, s56, v9")
    a("v_cmp_lt_u32 vcc, 15, v9")
    poll_end(lab)
    a("v_cmp_ne_u32 vcc, 0, v9")
    a("s_cmp_lg_u64 vcc, 0")
    a(f"s_cselect_b32 s{sT0}, 2, 1")
    a(f"v_mov_b32 v9, s{sT0}")
    a(f"ds_write_b32 v112, v8 offset:{LQ}")
    if OPT["probe"] == 3:
        a("v_mov_b32 v210, 1")
    a("s_branch L_Aq_st")
    a.label("L_Aq_ok")
    for t in range(4):
        a(f"s_load_dwordx16 s[{sQ + 16 * t}:{sQ + 16 * t + 15}], s[0:1], {64 * t}")
    a("v_mov_b32 v9, 1")
    if OPT["stamps"] == 1:
        a("v_writelane_b32 v126, s100, m0")
        a("s_mov_b32 m0, 12")
        a("s_memrealtime s[100:101]")
    a("s_waitcnt lgkmcnt(0)")
    if OPT["stamps"] == 1:
        stamp(13)
    if OPT["qmv"] == 0:
        for i in range(64):
            a(f"v_writelane_b32 v{80 + (i & 3)}, s{sQ + i}, {i >> 2}")
        set_exec(0xFFFF)
        a(f"ds_write_b128 v117, v[80:83] offset:{LQ}")
        if OPT["qfast"]:
            for ins in sentinel_ops(range(80, 84), 10):
                a(ins)
            a("s_cbranch_vccnz L_Aq_fb")
    else:
        set_exec(1)
        for i in range(16):
            a(f"v_mov_b64 v[{48 + 4 * i}:{49 + 4 * i}], s[{sQ + 4 * i}:{sQ + 4 * i + 1}]")
            a(f"v_mov_b64 v[{50 + 4 * i}:{51 + 4 * i}], s[{sQ + 4 * i + 2}:{sQ + 4 * i + 3}]")
            a(f"ds_write_b128 v112, {vr(48 + 4 * i, 4)} offset:{LQ + 16 * i}")
    set_exec(-1)
    a.label("L_Aq_st")
    a(f"ds_write_b32 v113, v9 offset:{LQF}")
    a("s_setprio 0")
    a.label("L_A3")
    a(f"s_mov_b32 s{sT0}, {LOG2E:#x}")
    a("s_waitcnt lgkmcnt(0)")
    a("s_barrier")
    for ks in range(4):
        a(f"ds_read_b128 {vr(88 + 4 * ks, 4)}, v6 offset:{LQ + 64 * ks}")
    a(f"ds_read_b128 v[12:15], v4 offset:{LQF}")
    if OPT["stamps"] == 1:
        a("v_writelane_b32 v126, s100, m0")
        a("s_mov_b32 m0, 3")
        a("s_memrealtime s[100:101]")
    loc = ["v_or3_b32 v12, v12, v13, v14", "v_or_b32 v12, v12, v15", "v_lshrrev_b32 v12, 1, v12", "s_nop 0",
           f"v_readfirstlane_b32 s{sLOCAL}, v12"]
    for ks in range(4):
        a(f"s_waitcnt lgkmcnt({0 if OPT['stamps'] == 1 or ks == 3 else 4 - ks})")
        for t in range(2):
            a(mfma(80 + 4 * t, KR + 16 * t + 4 * ks, 88 + 4 * ks, None if ks == 0 else 80 + 4 * t))
    for ins in loc:
        a(ins)
    if OPT["pfgl"] == 2:
        a(f"s_cmp_ge_u32 s{sWAVE}, 4")
        a("s_cbranch_scc1 L_A4")
        a(f"s_bitcmp1_b32 s{sWAVE}, 0")
        a(f"s_cselect_b64 s[0:1], {sp(sWU)}, {sp(sWG)}")
        prefetch(118, 0, True, 2 * 3584)
        a.label("L_A4")
    a("v_max3_f32 v12, v80, v81, v82")
    a("v_cndmask_b32 v112, v82, v80, s[22:23]")
    a("v_max3_f32 v13, v83, v84, v85")
    a("v_cndmask_b32 v113, v83, v81, s[22:23]")
    a("v_max3_f32 v12, v12, v86, v87")
    a("v_cndmask_b32 v112, v84, v112, s[24:25]")
    a("v_max_f32 v12, v12, v13")
    a("v_mov_b32 v13, v12")
    a("v_cndmask_b32 v113, v85, v113, s[24:25]")
    a("v_cndmask_b32 v112, v86, v112, s[26:27]")
    a("v_permlane16_swap_b32 v13, v12")
    a("v_cndmask_b32 v113, v87, v113, s[26:27]")
    a("v_max_f32 v12, v12, v13")
    a("v_mov_b32 v13, v12")
    a("v_cvt_pk_bf16_f32 v113, v112, v113")
    a("v_lshlrev_b32 v112, 16, v113")
    a("v_permlane32_swap_b32 v13, v12")
    a("v_and_b32 v113, 0xffff0000, v113")
    a("v_max_f32 v12, v12, v13")
    a(f"v_mul_f32 v112, {SCALE:#x}, v112")
    a("v_cvt_pk_bf16_f32 v12, v123, v12")
    a(f"v_mul_f32 v113, {SCALE:#x}, v113")
    a(f"v_mul_f32 v12, {SCALE:#x}, v12")
    a("v_cvt_pk_bf16_f32 v113, v112, v113")
    a("v_cvt_pk_bf16_f32 v12, v123, v12")
    a("v_lshlrev_b32 v112, 16, v113")
    a(f"v_mul_f32 v12, {LOG2E:#x}, v12")
    a("v_and_b32 v113, 0xffff0000, v113")
    a(f"v_fma_f32 v112, v112, s{sT0}, -v12")
    a(f"v_fma_f32 v113, v113, s{sT0}, -v12")
    a("v_exp_f32 v112, v112")
    a("v_exp_f32 v113, v113")
    a("s_mov_b64 vcc, s[20:21]")
    a("v_add_f32 v13, v112, v113")
    a("v_cvt_pk_bf16_f32 v8, v112, v113")
    PY = 88
    red = [f"v_add_f32_dpp v13, v13, v13 quad_perm:[1,0,3,2] {DPPM}",
           f"v_add_f32_dpp v13, v13, v13 quad_perm:[2,3,0,1] {DPPM}",
           "v_mov_b32 v14, v13", "v_permlane16_swap_b32 v14, v13", "v_add_f32 v13, v13, v14",
           "v_mov_b32 v14, v13", "v_permlane32_swap_b32 v14, v13", "v_add_f32 v13, v13, v14"]
    for y in range(4):
        if y:
            a(f"s_mov_b64 vcc, s[{20 + 2 * y}:{21 + 2 * y}]")
        for x in range(4):
            if x % 2 == 0:
                a(red[2 * y + x // 2])
            a(f"v_cndmask_b32_dpp v{PY + 4 * y + x}, v8, v123, vcc quad_perm:[{x},{x},{x},{x}] {DPPM}")
    set_exec(0x1111)
    a(f"ds_write2_b32 v120, v12, v13 offset0:0 offset1:32")
    set_exec(-1)
    if OPT["warm"] > 1:
        stub("L_s4", True)
    a("s_waitcnt lgkmcnt(0)")
    a("s_barrier")
    stamp(4)
    a(f"ds_read_b128 v[104:107], v5 offset:{LM}")
    a(f"ds_read_b128 v[108:111], v5 offset:{LM + 16}")
    if OPT["mls2"]:
        a("ds_read2_b32 v[186:187], v184 offset0:0 offset1:32")
    a(f"s_cmp_lt_u32 s{sWAVE}, 4")
    if OPT["pfb"] == 1:
        pass
    elif OPT["kfirst"] and not OPT["vfirst"]:
        a("s_cbranch_scc0 L_A5")
        a(f"s_waitcnt vmcnt({NPF if OPT['pfgl'] == 2 else 0})")
        if OPT["pfgl"] == 3:
            a(f"s_bitcmp1_b32 s{sWAVE}, 0")
            a(f"s_cselect_b64 s[0:1], {sp(sWU)}, {sp(sWG)}")
            prefetch(118, 0, True, 2 * 3584)

        a("s_branch L_A5b")
        a.label("L_A5")
    else:
        a("s_cbranch_scc1 L_A6")
    if OPT["pfb"] == 2:
        a(f"global_load_dwordx2 v[128:129], v119, {sp(sBB)}")
        a(f"global_load_dwordx2 v[130:131], v119, {sp(sBB)} offset:64")
    if not OPT["xml"]:
        modb_loads()
    for half in range(OPT["gue"]):
        gu_loads(half)
    a.label("L_A5b")
    ex = (0 if OPT["xml"] else 5) + NPF * OPT["pfgw"] + 4 * OPT["gue"]
    if OPT["pfb"]:
        a(f"s_sub_u32 s{sT2}, s{sWAVE}, 4")
        a(f"s_cmp_lt_u32 s{sT2}, {OPT['gua'] - OPT['guh']}")
        e5 = 5 if OPT["pfb"] == 2 else 0
        if OPT["dma"]:
            a("s_cbranch_scc1 L_A5w")
            a(f"s_waitcnt vmcnt({e5})")
            a.label("L_A5w")
            a(f"s_waitcnt vmcnt({e5 + 1}) lgkmcnt(0)")
            stamp(7)
            for e in range(6):
                a(f"ds_read_b64_tr_b16 v[{VT + 4 * e}:{VT + 4 * e + 1}], v{56 + e}")
                a(f"ds_read_b64_tr_b16 v[{VT + 4 * e + 2}:{VT + 4 * e + 3}], v{56 + e} offset:4096")
        else:
            perms8(VR, VT, waits=[6 + e5, 4 + e5, 2 + e5, "pf"])
            stamp(7)
    elif not OPT["vfirst"]:
        perms8(VR, VT, waits=[6 + ex, 4 + ex, 2 + ex, ex])
        stamp(7)
    a.label("L_A6")
    fac = ["s_waitcnt lgkmcnt(0)", "v_max3_f32 v14, v104, v105, v106", "v_max3_f32 v15, v107, v108, v109",
           "v_max3_f32 v14, v14, v110, v111", "v_max_f32 v14, v14, v15", "v_sub_f32 v10, v12, v14", "v_exp_f32 v10, v10"]
    pvm = [mfma(OA + 4 * (e >> 2), VT + 4 * e, PY + 4 * (e & 3), None if (e & 3) == 0 else OA + 4 * (e >> 2)) for e in range(8)]
    if OPT["mls2"]:
        ml = [f"v_max_f32_dpp v188, v186, v186 quad_perm:[1,0,3,2] {DPPM}",
              f"v_max_f32_dpp v188, v188, v188 quad_perm:[2,3,0,1] {DPPM}",
              f"v_max_f32_dpp v188, v188, v188 row_half_mirror {DPPM}",
              "v_sub_f32 v186, v186, v188", "v_exp_f32 v186, v186", "v_mul_f32 v189, v186, v187",
              f"v_add_f32_dpp v189, v189, v189 quad_perm:[1,0,3,2] {DPPM}"]
        both = [fac[0], "s_nop 0"]
        for x, y in zip(fac[1:] + [None], ml):
            both += [y] + ([x] if x else [])
        if OPT["dma"]:
            both = both[2:]
            for e in range(8):
                a(f"s_waitcnt lgkmcnt({0 if OPT['stamps'] == 1 else (10 if e < 2 else 14 - 2 * e)})")
                a(pvm[e])
                if e < 2:
                    a(f"ds_read_b64_tr_b16 v[{VT + 4 * e + 24}:{VT + 4 * e + 25}], v{62 + e}")
                    a(f"ds_read_b64_tr_b16 v[{VT + 4 * e + 26}:{VT + 4 * e + 27}], v{62 + e} offset:4096")
                for ins in both[2 * e:2 * e + 2]:
                    a(ins)
        else:
            interleave(pvm, both, 2)
    else:
        interleave(pvm, fac, 1)
    for i in range(2):
        a(f"v_pk_mul_f32 v[{OA + 2 * i}:{OA + 2 * i + 1}], v[{OA + 2 * i}:{OA + 2 * i + 1}], v[10:11] op_sel_hi:[1,0]")
    if OPT["mls2"]:
        a(f"v_add_f32_dpp v189, v189, v189 quad_perm:[2,3,0,1] {DPPM}")
    a(f"ds_write_b128 v7, {vr(OA, 4)}")
    if OPT["mls2"]:
        a(f"v_add_f32_dpp v189, v189, v189 row_half_mirror {DPPM}")
    for i in range(2, 4):
        a(f"v_pk_mul_f32 v[{OA + 2 * i}:{OA + 2 * i + 1}], v[{OA + 2 * i}:{OA + 2 * i + 1}], v[10:11] op_sel_hi:[1,0]")
    a(f"ds_write_b128 v7, {vr(OA + 4, 4)} offset:256")
    if not OPT["mll"]:
        a(f"s_cmp_eq_u32 s{sWAVE}, 0")
        a("s_cbranch_scc1 L_A7")
    a.label("L_A8")
    a("s_waitcnt lgkmcnt(0)")
    stamp(5)
    a("s_barrier                      ; 2")
    a(f"s_cmp_ge_u32 s{sWAVE}, 4")
    a("s_cbranch_scc1 L_A9" if OPT["mll"] else "s_cbranch_scc1 L_FF")
    for t in range(4):
        a(f"ds_read2st64_b64 {vr(16 + 4 * t, 4)}, v122 offset0:{10 * t} offset1:{10 * t + 5}")
    a(f"s_cmp_lg_u32 s{sLOCAL}, 0")
    a("s_waitcnt lgkmcnt(0)")
    sum8_b64(16)
    a("v_cvt_pk_bf16_f32 v10, v16, v17")
    a("s_cbranch_scc1 L_A_pubg")
    a(f"global_store_dword v121, v10, {sp(sBA)}")
    a.label("L_A_pubd")
    if OPT["pfgl"] == 1:
        a(f"s_bitcmp1_b32 s{sWAVE}, 0")
        a(f"s_cselect_b64 s[0:1], {sp(sWU)}, {sp(sWG)}")
        prefetch(118, 0, True, 2 * 3584)
    stamp(6)
    if OPT["pfgl"] == 4:
        a("s_setprio 3")
    a("s_barrier                      ; 2b")
    if OPT["pfgl"] == 4:
        a(f"s_bitcmp1_b32 s{sWAVE}, 0")
        a(f"s_cselect_b64 s[0:1], {sp(sWU)}, {sp(sWG)}")
        prefetch(118, 0, True, 2 * 3584)

    a("s_branch L_FF0")
    a.label("L_A_pubg")
    a(f"global_store_dword v121, v10, {sp(sBA)} sc1")
    a("s_branch L_A_pubd")
    a.label("L_A9")
    a(f"s_cmp_lg_u32 s{sWAVE}, 5")
    a("s_cbranch_scc1 L_FF")
    a.label("L_A7")
    if OPT["mls2"]:
        set_exec(0x01010101)
        a(f"s_cmp_lg_u32 s{sLOCAL}, 0")
        a("s_cbranch_scc1 L_A_mlg")
        a(f"global_store_dwordx2 v185, v[188:189], {sp(sWS)}")
    else:
        a(f"ds_read_b128 v[16:19], v5 offset:{LL}")
        a(f"ds_read_b128 v[20:23], v5 offset:{LL + 16}")
        for i in range(8):
            a(f"v_sub_f32 v{104 + i}, v{104 + i}, v14")
        for i in range(8):
            a(f"v_exp_f32 v{104 + i}, v{104 + i}")
        a(f"s_lshl_b32 s{sT0}, s{sG}, 6")
        a(f"s_add_u32 s{sT0}, s{sT0}, s{sM}")
        a(f"s_lshl_b32 s{sT0}, s{sT0}, 3")
        base(sBB, sWS, sT0, H3ML)
        a("v_lshlrev_b32 v13, 2, v5              ; h*128")
        a("s_waitcnt lgkmcnt(0)")
        a("v_pk_mul_f32 v[16:17], v[16:17], v[104:105]")
        for i in range(1, 4):
            a(f"v_pk_fma_f32 v[16:17], v[{16 + 2 * i}:{17 + 2 * i}], v[{104 + 2 * i}:{105 + 2 * i}], v[16:17]")
        a("v_add_f32 v15, v16, v17")
        set_exec(0x1111)
        a(f"s_cmp_lg_u32 s{sLOCAL}, 0")
        a("s_cbranch_scc1 L_A_mlg")
        a(f"global_store_dwordx2 v13, v[14:15], {sp(sBB)}")
    a.label("L_A_mld")
    set_exec(-1)
    a("s_branch L_FF" if OPT["mll"] else "s_branch L_A8")
    a.label("L_A_mlg")
    if OPT["mls2"]:
        a(f"global_store_dwordx2 v185, v[188:189], {sp(sWS)} sc1")
    else:
        a(f"global_store_dwordx2 v13, v[14:15], {sp(sBB)} sc1")
    a("s_branch L_A_mld")


def sec_dump():
    a_regs(False)
    if OPT["probe"]:
        a.label("L_dump")
        a("s_mov_b64 exec, 1")
        a(f"s_lshl3_add_u32 s{sT0}, s2, s{sWAVE}")
        a(f"s_lshl_b32 s{sT0}, s{sT0}, 4")
        base(sBA, sWS, sT0, STAMP)
        a("v_mov_b32 v4, 0")
        a(f"global_store_dwordx4 v4, v[208:211], {sp(sBA)} sc1")
        if OPT["wb"]:
            a("s_waitcnt vmcnt(0)")
            a("buffer_wbl2 sc1")
            a("s_waitcnt vmcnt(0)")
        a("s_cmp_lg_u32 s2, 8")
        a("s_cbranch_scc1 L_exit")
        a(f"s_cmp_lg_u32 s{sWAVE}, 7")
        a("s_cbranch_scc1 L_exit")
        a("s_mov_b64 exec, -1")
        a("s_memrealtime s[60:61]")
        a("s_sleep 100")
        a("s_waitcnt vmcnt(0) lgkmcnt(0)")
        base(sBA, sWS, None, STAMP)
        a("v_lshlrev_b32 v4, 4, v0")
        for i in range(32):
            a(f"global_load_dwordx4 {vr(16 + 4 * i, 4)}, v4, {sp(sBA)} sc1")
            a("v_add_u32 v4, 0x400, v4")
        a("s_waitcnt vmcnt(0)")
        a("v_mov_b32 v8, v16")
        a("v_mov_b32 v9, 0")
        for i in range(1, 32):
            a(f"v_max_u32 v8, v8, v{16 + 4 * i}")
            a(f"v_min_u32 v16, v16, v{16 + 4 * i}")
            a(f"v_max_u32 v17, v17, v{17 + 4 * i}")
            a(f"v_add_u32 v18, v18, v{18 + 4 * i}")
            a(f"v_cmp_ne_u32 vcc, v19, v{19 + 4 * i}")
            a(f"v_addc_co_u32 v9, vcc, 0, v9, vcc")
        for op, r in (("v_max_u32", 8), ("v_min_u32", 16), ("v_max_u32", 17), ("v_add_u32", 18), ("v_add_u32", 9)):
            for n in (8, 4, 2, 1):
                a(f"{op}_dpp v{r}, v{r}, v{r} row_ror:{n} {DPPM}")
            cross_rows(op, r, 10)
        a("v_readfirstlane_b32 s50, v8")
        a("v_readfirstlane_b32 s51, v16")
        a("v_readfirstlane_b32 s53, v17")
        a("v_readfirstlane_b32 s52, v18")
        a("v_readfirstlane_b32 s56, v9")
        a("s_nop 3")
        p = OPT["probe"]
        if p == 1:
            a("s_sub_u32 s54, s50, s51")
        elif p == 2:
            a("s_sub_u32 s54, s60, s51")
        elif p == 3:
            a("s_mul_i32 s54, s52, 1")
        elif p == 4:
            a("s_lshr_b32 s54, s56, 1")
        elif p >= 100:
            a("s_sub_u32 s54, s53, s51")
        else:
            a("s_mov_b32 s54, 0")
        a("s_min_u32 s54, s54, 5000")
        a("s_lshl_b32 s54, s54, 2")
        a("s_add_u32 s54, s54, 3000")
        a.label("L_spin")
        a("s_memrealtime s[62:63]")
        a("s_waitcnt lgkmcnt(0)")
        a("s_sub_u32 s55, s62, s51")
        a("s_cmp_lt_u32 s55, s54")
        a("s_cbranch_scc1 L_spin")
    if OPT["stamps"]:
        a.label("L_dump")
        a("s_mov_b64 exec, -1")
        stamp(15)
        stamp(16)
        a(f"s_getreg_b32 s{sT0}, hwreg(HW_REG_XCC_ID)")
        a(f"v_writelane_b32 v126, s{sT0}, 14")
        a(f"s_lshl3_add_u32 s{sT0}, s2, s{sWAVE}")
        a(f"s_lshl_b32 s{sT0}, s{sT0}, 6")
        base(sBA, sWS, sT0, STAMP)
        a("v_lshlrev_b32 v4, 2, v0")
        set_exec(0xFFFF)
        a(f"global_store_dword v4, v126, {sp(sBA)}")
    a.label("L_exit")
    a("s_endpgm")


a(".p2align 12")
a.label("L_code0")
sec_wo()
sec_ln()
a(".p2align 8")
a(f".fill (4096-768-(.-L_code0))/4, 4, 0xbf810000")
a(f".type {NAME}_kernel,@function")
sec_entry()
sec_gm()
sec_gq()
sec_gb()
sec_down()
a(".p2align 12")
sec_att()
a(".p2align 12")
sec_ffn()
sec_dump()

def drop_unreachable(lines):
    out, dead = [], False
    for ln in lines:
        code = ln.split(";")[0].strip()
        if code.endswith(":") or code.startswith("."):
            dead = False
        if not dead:
            out.append(ln)
        if code.startswith(("s_branch", "s_endpgm", "s_setpc_b64")):
            dead = True
    return out


a.lines = drop_unreachable(a.lines)
body = a.finish()
hdr = open("cdna_kernels/" + NAME + ".s.ref").read().split("; Override launch geometry")[0]
out = hdr + f"""; One persistent launch of 256 workgroups (one per CU), written with a hand-made generator script.
; Workgroup w: group g = w & 7 (kv head), member m = w >> 3.
;   m even < 16 : q projection of 64 columns, later the output projection of 64 columns of group g's heads
;   m odd  <  8 : shift / scale columns + LayerNorm -> h, later the down projection of 16 output columns
;   m odd  8-15 : gate / shift / scale columns of the second half of the modulation; sentinel fill of the hand-off slots
;   m >= 16     : attention over 256 keys of (batch, kv head), later gate / up projection + SwiGLU of 16 FFN columns
; Hand-offs go through d_ws.  The first ones carry a tag derived from an epoch word (advanced once per launch);
; the later ones are validated word by word against a sentinel whose fill is known to have landed.
; Plain (L2-local) stores are used only when the XCC ids of writer and readers were seen to be equal.
; Loads into v127 only bring lines into L2 for a neighbour; every polling loop is bounded.
; @launch grid=(256,1,1) block=(512,1,1) lds={OPT['lds']}
.amdgcn_target "amdgcn-amd-amdhsa--gfx950"
.text
.globl {NAME}_kernel
{body}.section .rodata,"a"
.p2align 6
.amdhsa_kernel {NAME}_kernel
  .amdhsa_next_free_vgpr {OPT['vgpr']}
  .amdhsa_next_free_sgpr 102
  .amdhsa_accum_offset {OPT['vgpr']}
  .amdhsa_group_segment_fixed_size 0
  .amdhsa_kernarg_size 112
  .amdhsa_user_sgpr_count 2
  .amdhsa_user_sgpr_kernarg_segment_ptr 1
  .amdhsa_system_sgpr_workgroup_id_x 1
  .amdhsa_float_denorm_mode_32 3
.end_amdhsa_kernel
"""
open(sys.argv[1], "w").write(out)
```

```python
import sys
from asmlib import Asm

NAME = "adaLN_cond__sliding_block_cached__swiglu_ffn__decode"
OPT = dict(stamps=0, lds=94208, nt=1, limit=20000, pf=1, pfa=1, pfg=1, athr=8, nrep=64, qsleep=0, vgpr=208, psleep=0, ahelp=1, bhelp=0, wowait=0, pfpol=1, wpol=0, wopf=0, epair=1, wb=0, qmv=0, hpull=0, kfirst=1, cpf1=1, vfirst=0, mlm=0, woe=0, h4e=0, stag=3, pfgl=0, h4d=0, mls=0, touch=1, plan=3, bcoop=2, pf2=0, late=0, woa=14, woq=1, xgate=1, gub=0, gate=1, gatew=0, adap=0, qfast=0, h1m=0, kstage=0, wdl=1, vh=0, gue=0, mls2=1, vlate=1, b3=0, mll=1, gua=3, xml=0, q3=2, epe=1, outp=0, prog=1, wbl=0, wod=0, wo3=2, guh=0, pfb=2, nq=6, nb=0, na=1, warm=1, hp2=0, gbe=0, guq=0, wdh=2, wob=0, gsh=1, ftb=0, afirst=1, pfq=1, pfw=1, qbar=0, abar=1, nm=0, split=0, gskip=0, ge=0, clra=0, ilv=1, mix=0, fin=1, vb=0, bh2=0, kthr=0, vthr=0, hearly=1, otch=0, dma=1, bank=1, gbh=2, nclr=7, nearly=3, t2=2, xe=0, xw=0, wo_w=1, wq2=0, qtb=1, h4b=0, actb=0, pfaw=0, pfgw=1, probe=0, pcls=0)
for arg in sys.argv[2:]:
    k, v = arg.split("=")
    assert k in OPT, k
    OPT[k] = int(v, 0)
if OPT["probe"]:
    OPT["vgpr"] = 216
if OPT["pfb"]:
    assert (OPT["xml"] or OPT["pfb"] == 2) and not OPT["gue"] and OPT["pfgw"] and not OPT["pf2"] and not OPT["vfirst"]
NT = " nt" if OPT["nt"] else ""
NREP = OPT["nrep"]
if OPT["dma"]:
    OPT["ilv"] = 0
    OPT["lds"] = 160000
    assert OPT["vlate"] and OPT["pfb"] == 2 and OPT["mls2"] and not OPT["wod"]
NTW = " nt" if OPT["wpol"] else ""

H1 = 0xC000 if OPT['split'] else 0x1000
CF = 0x3000
H2G = 0x10000
FL = 0x20000
assert FL + 32 * NREP * 128 <= 0x60000
CLR = 0x60000
MODB = CLR
H4 = MODB + 0x4000
ACT = H4 + 0x8000
X1 = ACT + 0x4000
H4B = X1 + 0x2000
QS = 0x4000
assert not OPT["qfast"]
H3ML = H4B + (0x8000 if OPT["h4b"] else 0)
H3O = H3ML + 0x1000
GATE = H3O + 0x20000 - 0x2000
ACTB = GATE + 0x2400
CLR_END = ACTB
CLR_PER_WG = OPT['nclr']
assert CLR_END - CLR <= 32 * CLR_PER_WG * 1024
STAMP = 0x100000

LO = 0
LQ = 20480
QST = 320 if OPT['bank'] else 256
LQF = LQ + 1216
LM = LQF + 16
LL = LM + 128
LY = 22016
LU = LY + 2048
LV = LU + 2048
LST = LV + 2048
LGT = LST + 128
LVV = 28672 + 65536
LK = 28672

sX, sK, sV, sWQ, sWO, sWG, sWU = 4, 6, 8, 10, 12, 16, 18
sWD, sC, sWM, sOUT, sDBG, sWS = 20, 22, 24, 26, 28, 30
sG, sM, sWAVE, sTAG = 14, 15, 3, 28
sLO, sHI, sCNT, sT0 = 96, 97, 98, 99
sBA, sBB, sBC = 32, 34, 36
sMK = 38
sT1, sT2, sT3, sT4 = 40, 41, 42, 43
sLOCAL, sKIND = 29, 44
sPC = 46
sSTAMP = 48 if False else 64
sQ = 32

LOG2E = 0x3FB8AA3B
SCALE = 0x3DB504F3
INV512 = 0x3B000000
EPS = 0x3727C5AC


def sp(r):
    return f"s[{r}:{r + 1}]"


def vr(a, n):
    return f"v[{a}:{a + n - 1}]" if n > 1 else f"v{a}"


a = Asm()
_uid = [0]


def uid(p):
    _uid[0] += 1
    return f"L_{p}{_uid[0]}"


CLS = [0]


def stamp(i):
    if OPT["probe"] == 100 + i and OPT["pcls"] == CLS[0]:
        a("s_memrealtime s[100:101]")
        a("s_waitcnt lgkmcnt(0)")
        a("v_writelane_b32 v209, s100, 0")
    if OPT["stamps"] == 1 or (OPT["stamps"] and i >= 13):
        a("s_waitcnt lgkmcnt(0)")
        a("v_writelane_b32 v126, s100, m0")
        a(f"s_mov_b32 m0, {i}")
        a("s_memrealtime s[100:101]")


def finish_wave():
    a("s_branch L_dump" if OPT["stamps"] or OPT["probe"] else "s_endpgm")


def base(dst, ptr, off_s=None, off_imm=0):
    if off_s is not None and off_imm:
        a(f"s_add_u32 s{dst}, s{off_s}, {off_imm:#x}")
        a(f"s_add_u32 s{dst}, s{ptr}, s{dst}")
    elif off_s is not None:
        a(f"s_add_u32 s{dst}, s{ptr}, s{off_s}")
    else:
        a(f"s_add_u32 s{dst}, s{ptr}, {off_imm:#x}")
    a(f"s_addc_u32 s{dst + 1}, s{ptr + 1}, 0")


def set_exec(mask):
    if mask in (-1, 1):
        a(f"s_mov_b64 exec, {mask}")
    else:
        lo, hi = mask & 0xFFFFFFFF, mask >> 32
        a(f"s_mov_b32 exec_lo, {lo:#x}")
        a(f"s_mov_b32 exec_hi, {hi:#x}")


def prefetch(v, b, late=False, delta=None):
    pol = "" if OPT["pfpol"] == 1 else " nt"
    if OPT["hp2"] and CLS[0] in (0, 2) and HELP[0]:
        a("v_lshlrev_b32 v114, 1, v0")
        a("v_and_b32 v114, 0x7c, v114")
        a(f"ds_bpermute_b32 v115, v114, v{v}")
        a(f"ds_bpermute_b32 v116, v114, v{v} offset:128")
        a("v_and_b32 v114, 1, v0")
        a("s_waitcnt lgkmcnt(0)")
        a("v_lshl_add_u32 v115, v114, 6, v115")
        a("v_lshl_add_u32 v116, v114, 6, v116")
        if OPT["hp2"] == 2:
            a(f"global_load_dword v127, v115, {sp(b)} nt")
            a(f"global_load_dword v127, v116, {sp(b)} nt")
            a(f"global_load_dword v127, v{v}, {sp(b)} sc1")
        else:
            a(f"global_load_dword v127, v115, {sp(b)}{pol}")
            a(f"global_load_dword v127, v116, {sp(b)}{pol}")
    elif OPT["pf2"] == 2:
        a("v_lshrrev_b32 v114, 1, v0")
        a("v_and_b32 v114, 28, v114")
        a(f"ds_bpermute_b32 v115, v114, v{v}")
        a("v_and_b32 v114, 7, v0")
        a("s_waitcnt lgkmcnt(0)")
        a("v_lshl_add_u32 v115, v114, 4, v115")
        for k in range(8):
            a(f"global_load_dwordx4 v[204:207], v115, {sp(b)}{pol}")
            if k < 7:
                a(f"v_add_u32 v115, {delta:#x}, v115")
    elif OPT["pf2"]:
        a("v_lshlrev_b32 v114, 6, v0")
        a("v_and_b32 v114, 64, v114")
        a(f"v_add_u32_dpp v115, v{v}, v114 quad_perm:[0,0,2,2] row_mask:0xf bank_mask:0xf")
        a(f"v_add_u32_dpp v116, v{v}, v114 quad_perm:[1,1,3,3] row_mask:0xf bank_mask:0xf")
        if PFWAIT[0]:
            a("s_waitcnt lgkmcnt(0)")
        a(f"global_load_dword v127, v115, {sp(b)}{pol}")
        a(f"global_load_dword v127, v116, {sp(b)}{pol}")
    else:
        if PFWAIT[0]:
            a("s_waitcnt lgkmcnt(0)")
        a(f"global_load_dword v127, v{v}, {sp(b)}{pol}")
    PFWAIT[0] = False


PFWAIT = [False]
HELP = [False]
NPF = (1, 2, 8)[OPT["pf2"]]


def stub(name, over=False):
    if not OPT["warm"]:
        return
    if over:
        a(f"s_branch {name}o")
    a.label(name)
    a("s_setpc_b64 s[58:59]")
    if over:
        a.label(f"{name}o")


def warm(calls):
    if not OPT["warm"]:
        return
    if OPT["stamps"] or OPT["probe"]:
        a("s_waitcnt lgkmcnt(0)")
    for w, names in calls.items():
        lab = uid("wm")
        a(f"s_cmp_lg_u32 s{sWAVE}, {w}")
        a(f"s_cbranch_scc1 {lab}")
        for n in names:
            a(f"s_call_b64 s[58:59], {n}")
        a.label(lab)


def sels():
    a(f"s_mov_b32 s{sLO}, 0x05040100")
    a(f"s_mov_b32 s{sHI}, 0x07060302")


def perms8(W, F, waits=None, hook=None):
    for x in range(4):
        if hook and x == hook[0]:
            a(hook[1])
        if waits is not None and waits[x] == "pf":
            a("s_cbranch_scc1 L_A5w")
            a(f"s_waitcnt vmcnt({waits[2] - 2})")
            a.label("L_A5w")
            a(f"s_waitcnt vmcnt({waits[2] - 1})")
        elif waits is not None:
            a(f"s_waitcnt vmcnt({waits[x]})")
        for e in range(8):
            sel = sHI if e & 1 else sLO
            a(f"v_perm_b32 v{F + 4 * e + x}, v{W + 4 * (2 * x + 1) + (e >> 1)}, v{W + 4 * (2 * x) + (e >> 1)}, s{sel}")


def unpack(dst, src, n):
    for i in range(n):
        a(f"v_lshlrev_b32 v{dst + 2 * i}, 16, v{src + i}")
        a(f"v_and_b32 v{dst + 2 * i + 1}, 0xffff0000, v{src + i}")


def round_bf16(regs):
    if len(regs) == 1:
        a(f"v_cvt_pk_bf16_f32 v{regs[0]}, v{regs[0]}, v{regs[0]}")
        a(f"v_lshlrev_b32 v{regs[0]}, 16, v{regs[0]}")
        return
    for i in range(0, len(regs), 2):
        a(f"v_cvt_pk_bf16_f32 v{regs[i + 1]}, v{regs[i]}, v{regs[i + 1]}")
    for i in range(0, len(regs), 2):
        a(f"v_lshlrev_b32 v{regs[i]}, 16, v{regs[i + 1]}")
        a(f"v_and_b32 v{regs[i + 1]}, 0xffff0000, v{regs[i + 1]}")


def poll_begin():
    lab = uid("poll")
    a(f"s_mov_b32 s{sCNT}, {OPT['limit']}")
    a.label(lab)
    return lab


def poll_mid(cnt="vmcnt(0)", sleep=None):
    sleep = OPT["psleep"] if sleep is None else sleep
    if sleep and cnt.startswith("vm"):
        a(f"s_sleep {sleep}")
    a(f"s_sub_u32 s{sCNT}, s{sCNT}, 1")
    a(f"s_cselect_b64 {sp(sMK)}, 0, -1")
    a(f"s_waitcnt {cnt}")


def poll_end(lab):
    a(f"s_and_b64 vcc, vcc, {sp(sMK)}")
    a(f"s_cbranch_scc1 {lab}")


def sentinel_ops(regs, tmp):
    regs = list(regs)
    out = []
    if len(regs) == 2:
        out.append(f"v_max_u32 v{tmp}, v{regs[0]}, v{regs[1]}")
    else:
        out.append(f"v_max3_u32 v{tmp}, v{regs[0]}, v{regs[1]}, v{regs[2]}")
        rest = regs[3:]
        while len(rest) >= 2:
            out.append(f"v_max3_u32 v{tmp}, v{tmp}, v{rest[0]}, v{rest[1]}")
            rest = rest[2:]
        if rest:
            out.append(f"v_max_u32 v{tmp}, v{tmp}, v{rest[0]}")
    out.append(f"v_cmp_eq_u32 vcc, -1, v{tmp}")
    return out


def interleave(major, minor, per):
    minor = list(minor)
    for ins in major:
        a(ins)
        for _ in range(per):
            if minor:
                a(minor.pop(0))
    for ins in minor:
        a(ins)


def make_tag(vE):
    a(f"v_readfirstlane_b32 s{sTAG}, v{vE}")
    a("s_nop 1")
    a(f"s_mul_i32 s{sTAG}, s{sTAG}, 1664525")
    a(f"s_add_u32 s{sTAG}, s{sTAG}, 1013904223")


DPPM = "row_mask:0xf bank_mask:0xf"


def row_allsum(v):
    for n in (8, 4, 2, 1):
        a(f"v_add_f32_dpp v{v}, v{v}, v{v} row_ror:{n} {DPPM}")


def cross_rows(op, v, tmp):
    a(f"v_mov_b32 v{tmp}, v{v}")
    a(f"v_permlane16_swap_b32 v{tmp}, v{v}")
    a(f"{op} v{v}, v{v}, v{tmp}")
    a(f"v_mov_b32 v{tmp}, v{v}")
    a(f"v_permlane32_swap_b32 v{tmp}, v{v}")
    a(f"{op} v{v}, v{v}, v{tmp}")


def mfma(d, x, y, c=None):
    return f"v_mfma_f32_16x16x32_bf16 {vr(d, 4)}, {vr(x, 4)}, {vr(y, 4)}, {vr(c, 4) if c is not None else 0}"


def diagX_reduce(ACC, T):
    for e in range(8):
        a(f"v_add_f32_dpp v{T + e}, v{ACC + 4 * e + 1}, v{ACC + 4 * e} row_shl:4 {DPPM}")
    for e in range(8):
        a(f"v_add_f32_dpp v{T + e}, v{ACC + 4 * e + 2}, v{T + e} row_shl:8 {DPPM}")
    for e in range(8):
        a(f"v_add_f32_dpp v{T + e}, v{ACC + 4 * e + 3}, v{T + e} row_shl:12 {DPPM}")


def sum8_b64(r):
    if OPT["fin"]:
        assert a.lines[-1] == "s_waitcnt lgkmcnt(0)"
        a.lines.pop()
        a("s_waitcnt lgkmcnt(2)")
        a(f"v_pk_add_f32 v[{r}:{r + 1}], v[{r}:{r + 1}], v[{r + 2}:{r + 3}]")
        a(f"v_pk_add_f32 v[{r + 4}:{r + 5}], v[{r + 4}:{r + 5}], v[{r + 6}:{r + 7}]")
        a("s_waitcnt lgkmcnt(1)")
        a(f"v_pk_add_f32 v[{r + 8}:{r + 9}], v[{r + 8}:{r + 9}], v[{r + 10}:{r + 11}]")
        a(f"v_pk_add_f32 v[{r}:{r + 1}], v[{r}:{r + 1}], v[{r + 4}:{r + 5}]")
        a("s_waitcnt lgkmcnt(0)")
        a(f"v_pk_add_f32 v[{r + 12}:{r + 13}], v[{r + 12}:{r + 13}], v[{r + 14}:{r + 15}]")
        a(f"v_pk_add_f32 v[{r}:{r + 1}], v[{r}:{r + 1}], v[{r + 8}:{r + 9}]")
        a(f"v_pk_add_f32 v[{r}:{r + 1}], v[{r}:{r + 1}], v[{r + 12}:{r + 13}]")
        return
    for t in range(4):
        a(f"v_pk_add_f32 v[{r + 4 * t}:{r + 4 * t + 1}], v[{r + 4 * t}:{r + 4 * t + 1}], v[{r + 4 * t + 2}:{r + 4 * t + 3}]")
    a(f"v_pk_add_f32 v[{r}:{r + 1}], v[{r}:{r + 1}], v[{r + 4}:{r + 5}]")
    a(f"v_pk_add_f32 v[{r + 8}:{r + 9}], v[{r + 8}:{r + 9}], v[{r + 12}:{r + 13}]")
    a(f"v_pk_add_f32 v[{r}:{r + 1}], v[{r}:{r + 1}], v[{r + 8}:{r + 9}]")


def gu_loads(half):
    for jj in range(4):
        r, off = ((176, 3584 * (jj - 1)) if jj < 3 else (178, 0))
        a(f"global_load_dwordx4 {vr(16 + 16 * half + 4 * jj, 4)}, v[{r + 4 * half}:{r + 4 * half + 1}], off offset:{off}{NTW}")


def gu_addr():
    a(f"s_min_u32 s{sT1}, s{sM}, 13")
    a(f"s_mul_i32 s{sT0}, s{sG}, 14")
    a(f"s_add_u32 s{sT0}, s{sT0}, s{sT1}")
    a(f"s_lshl_b32 s{sT0}, s{sT0}, 5")
    a(f"s_mul_i32 s{sT1}, s{sT4}, {128 * 3584}")
    a(f"s_add_u32 s{sT0}, s{sT0}, s{sT1}")
    a(f"s_add_u32 s{sT0}, s{sT0}, 3584")
    a("v_lshrrev_b32 v8, 1, v3")
    a("v_and_b32 v9, 1, v3")
    a("v_lshlrev_b32 v8, 6, v8")
    a("v_lshl_add_u32 v8, v9, 2, v8")
    a("v_and_b32 v9, 3, v1")
    a("v_lshl_add_u32 v8, v9, 3, v8")
    a("v_mul_u32_u24 v10, 3584, v8")
    a("v_and_b32 v9, 1, v2")
    a("v_lshl_add_u32 v10, v9, 4, v10")
    a(f"v_add_u32 v10, s{sT0}, v10")
    a("v_mov_b32 v11, 0")
    a("v_cmp_lt_u32 vcc, 1, v2")
    a(f"v_mov_b32 v176, s{sWG}")
    a(f"v_mov_b32 v177, s{sWG + 1}")
    a(f"v_mov_b32 v178, s{sWU}")
    a(f"v_mov_b32 v179, s{sWU + 1}")
    a("v_cndmask_b32 v176, v176, v178, vcc")
    a("v_cndmask_b32 v177, v177, v179, vcc")
    a("v_lshl_add_u64 v[176:177], v[10:11], 0, v[176:177]      ; row +1")
    a(f"v_mov_b32 v10, {2 * 3584}")
    a("v_lshl_add_u64 v[178:179], v[10:11], 0, v[176:177]      ; row +3")
    a(f"v_mov_b32 v10, {32 * 3584}")
    a("v_lshl_add_u64 v[180:181], v[10:11], 0, v[176:177]")
    a("v_lshl_add_u64 v[182:183], v[10:11], 0, v[178:179]")


def modb_loads():
    a(f"global_load_dwordx4 v[132:135], v124, {sp(sBC)} offset:-4096 sc1")
    a(f"global_load_dwordx4 v[136:139], v124, {sp(sBC)} sc1")
    a(f"global_load_dwordx4 v[140:143], v125, {sp(sBC)} sc1")


W, F, ACC = 16, 48, 16
KR, VR, SA, VT, OA = 16, 48, 80, 144, 80


def a_regs(on):
    global sBA, sBB, sBC, sMK
    sBA, sBB, sBC, sMK = (6, 8, 10, 12) if on else (32, 34, 36, 38)


def sec_ffn():
    HELP[0] = False
    a_regs(True)
    CLS[0] = 1
    stub("L_s0")
    a.label("L_FF")
    a(f"s_cmp_ge_u32 s{sM}, 14")
    a("s_cbranch_scc1 L_fin2")
    a(f"s_lshl_b32 s{sT0}, s{sT4}, 10")
    a("v_and_b32 v9, 15, v0")
    a("s_barrier")
    if OPT["xml"]:
        a(f"global_load_dwordx2 v[128:129], v119, {sp(sBB)}")
        a(f"global_load_dwordx2 v[130:131], v119, {sp(sBB)} offset:64")
        modb_loads()
    for half in range(OPT["gue"], 2):
        gu_loads(half)
    a("v_lshlrev_b32 v12, 4, v9")
    a("v_lshl_add_u32 v12, v3, 12, v12")
    a("v_add_u32 v13, 0x4000, v12")
    base(sBA, sWS, sT0, H4)
    a(f"s_lshl_b32 s{sT1}, s{sT0}, 1")
    base(sBB, sWS, sT1, X1)
    a(f"s_lshr_b32 s{sT1}, s{sG}, 1")
    a(f"s_and_b32 s{sT2}, s{sG}, 1")
    a(f"s_lshl2_add_u32 s{sT1}, s{sT2}, s{sT1}")
    if OPT["xw"]:
        a(f"s_sub_u32 s{sT2}, s{sM}, 6")
        a(f"s_lshl3_add_u32 s{sT1}, s{sT2}, s{sT1}")
        a(f"v_lshl_add_u32 v15, s{sT4}, 4, v1")
        a(f"v_cmp_eq_u32 s[20:21], s{sT1}, v15")
    else:
        a("v_and_b32 v15, 7, v1")
        a(f"v_cmp_eq_u32 s[20:21], s{sT1}, v15")

    a(f"s_lshl_b32 s{sT1}, s{sT4}, 9")
    a(f"s_add_u32 s{sT1}, s{sT1}, {LY}")
    a("v_lshlrev_b32 v5, 7, v3")
    a("v_lshl_add_u32 v5, v2, 5, v5")
    a(f"v_add_u32 v5, s{sT1}, v5")
    a("v_and_b32 v6, 1, v0")
    a("v_lshlrev_b32 v6, 4, v6")
    a("v_mov_b32 v7, 0x3f80")
    a("v_lshlrev_b32 v6, v6, v7")
    a("v_lshrrev_b32 v7, 1, v9")
    for x in range(8):
        a(f"v_cmp_eq_u32 vcc, {x}, v7")
        a(f"v_cndmask_b32 v{(120 + x) if x < 4 else (88 + x)}, 0, v6, vcc")
    a(f"s_lshl_b32 s{sT1}, s{sT4}, 2")
    a(f"s_add_u32 s{sT1}, s{sT1}, {LST}")
    a("v_and_b32 v6, 3, v1")
    a("v_lshlrev_b32 v6, 5, v6")
    a("v_lshl_add_u32 v6, v3, 3, v6")
    a(f"v_add_u32 v6, s{sT1}, v6")
    a("s_waitcnt vmcnt(8)")
    for ins in sentinel_ops(range(132, 144), 14):
        a(ins)
    a("s_cbranch_vccz L_FF1")
    lab = poll_begin()
    modb_loads()
    poll_mid()
    for ins in sentinel_ops(range(132, 144), 14):
        a(ins)
    poll_end(lab)
    a.label("L_FF1")
    if OPT["h4b"]:
        base(sBC, sWS, sT0, H4B)
    a("v_lshlrev_b32 v124, 7, v1")
    a("v_lshl_add_u32 v124, v2, 4, v124")
    XV, GA, P0, P1 = 96, 104, 112, 84
    unpack(XV, 128, 4)
    unpack(GA, 132, 4)
    unpack(P0, 140, 4)
    for i in range(8):
        a(f"v_add_f32 v{P0 + i}, 1.0, v{P0 + i}")
    for i in range(4):
        a(f"v_cvt_pk_bf16_f32 v{140 + i}, v{P0 + 2 * i}, v{P0 + 2 * i + 1}")
    unpack(P0, 140, 4)
    CBF = 140
    for i in range(8):
        a(f"v_mul_f32 v{P1 + i}, v{GA + i}, v{P0 + i}")
    for i in range(8):
        a(f"v_mul_f32 v{P0 + i}, v{XV + i}, v{P0 + i}")
    stub("L_s1", True)
    perms8(W, F, waits=[6, 4, 2, 0], hook=(OPT["ge"], "s_barrier") if OPT["ge"] else None)
    stamp(9)
    if OPT["gate"] and not OPT["adap"] and not OPT["ge"]:
        a("s_barrier")

    def h4_loads():
        for t in range(4):
            for hf in range(2):
                a(f"global_load_dwordx4 {vr(16 + 8 * t + 4 * hf, 4)}, v{12 + hf}, {sp(sBA)} offset:{256 * t} sc1")

    def h4_first():
        chk = sentinel_ops(range(16, 48), 14)
        seq = [mfma(80, 120, 16), mfma(80, 120, 20, 80), mfma(8, 120, 24), mfma(8, 120, 28, 8),
               mfma(80, 92, 32, 80), mfma(80, 92, 36, 80), mfma(8, 92, 40, 8), mfma(8, 92, 44, 8)]
        cuts = [0, 3, 7, 11, 17]
        for p in range(4):
            a(f"s_waitcnt vmcnt({14 - 2 * p})")
            interleave(seq[2 * p:2 * p + 2], chk[cuts[p]:cuts[p + 1]], 2)

    UA, UB = 144, 176
    if OPT["adap"]:
        a(f"ds_read_b32 v14, v4 offset:{LGT}")
    if OPT["ge"]:
        a("s_barrier")
        h4_loads()
    for e in range(8):
        a(mfma(UA + 4 * e, 136, F + 4 * e))
    if OPT["adap"]:
        a("s_waitcnt lgkmcnt(0)")
        a(f"v_readfirstlane_b32 s{sT2}, v14")
        a("s_nop 1")
        a(f"s_cmp_eq_u32 s{sT2}, 0")
        a("s_cbranch_scc1 L_FFa")
        h4_loads()
        a.label("L_FFa")
    dv = [f"v_add_f32_dpp v{128 + e}, v{UA + 4 * e + k}, v{UA + 4 * e if k == 1 else 128 + e} row_shl:{4 * k} {DPPM}"
          for k in (1, 2, 3) for e in range(8)]
    interleave([mfma(UB + 4 * e, CBF, F + 4 * e) for e in range(8)], dv[:16], 2)
    if OPT["gsh"] and not OPT["ge"]:
        a("s_barrier")
        h4_loads()
    for ins in dv[16:]:
        a(ins)
    set_exec(0x000F000F000F000F)
    a(f"ds_write_b128 v5, v[128:131] offset:{LV - LY}")
    a(f"ds_write_b128 v5, v[132:135] offset:{LV - LY + 16}")
    set_exec(-1)
    diagX_reduce(UB, 144)
    set_exec(0x000F000F000F000F)
    a(f"ds_write_b128 v5, v[144:147] offset:{LU - LY}")
    a(f"ds_write_b128 v5, v[148:151] offset:{LU - LY + 16}")
    set_exec(-1)
    a(f"s_mov_b32 s{sCNT}, {OPT['limit']}")
    if OPT["adap"]:
        a(f"s_cmp_lg_u32 s{sT2}, 0")
    stub("L_s2", True)
    a("s_waitcnt lgkmcnt(0)")
    a("s_barrier")
    stamp(8)
    if OPT["adap"]:
        a("s_cbranch_scc1 L_FF2")
    if OPT["h4b"]:
        assert OPT["gsh"] and OPT["prog"]
        for t in range(4):
            for hf in range(2):
                a(f"global_load_dwordx4 {vr(176 + 8 * t + 4 * hf, 4)}, v{12 + hf}, {sp(sBC)} offset:{256 * t} sc1")
        h4_first()
        a("s_cbranch_vccz L_FF4")
        a("s_waitcnt vmcnt(0)")
        for i in range(16):
            a(f"v_mov_b64 v[{16 + 2 * i}:{17 + 2 * i}], v[{176 + 2 * i}:{177 + 2 * i}]")
    if OPT["gsh"]:
        a("s_branch L_FF2")
    lab = uid("poll")
    a.label(lab)
    h4_loads()
    a.label("L_FF2")
    if OPT["prog"]:
        poll_mid("vmcnt(6)")
        chk = sentinel_ops(range(16, 48), 14)
        seq = [mfma(80, 120, 16), mfma(80, 120, 20, 80), mfma(8, 120, 24), mfma(8, 120, 28, 8),
               mfma(80, 92, 32, 80), mfma(80, 92, 36, 80), mfma(8, 92, 40, 8), mfma(8, 92, 44, 8)]
        cuts = [0, 3, 7, 11, 17]
        for p in range(4):
            if p:
                a(f"s_waitcnt vmcnt({6 - 2 * p})")
            interleave(seq[2 * p:2 * p + 2], chk[cuts[p]:cuts[p + 1]], 2)
    else:
        poll_mid()
        seq = [mfma(80, 120, 16), mfma(8, 120, 24), mfma(80, 120, 20, 80), mfma(8, 120, 28, 8),
               mfma(80, 92, 32, 80), mfma(8, 92, 40, 8), mfma(80, 92, 36, 80), mfma(8, 92, 44, 8)]
        interleave(seq, sentinel_ops(range(16, 48), 14), 2)
    poll_end(lab)
    if OPT["h4b"]:
        a.label("L_FF4")
        a("s_nop 0")
    stamp(12)
    if OPT["stamps"] == 1:
        a(f"v_writelane_b32 v126, s{sCNT}, 13")
    att = [80, 82, 8, 10]
    if OPT["xe"]:
        a("s_cmp_lg_u64 s[20:21], 0" if OPT["xw"] else f"s_cmp_eq_u32 s{sM}, 13")
        a("s_cbranch_scc1 L_FFx")
        a.label("L_FF3")
    for i in range(4):
        a(f"v_pk_fma_f32 v[{P0 + 2 * i}:{P0 + 2 * i + 1}], v[{att[i]}:{att[i] + 1}], v[{P1 + 2 * i}:{P1 + 2 * i + 1}], v[{P0 + 2 * i}:{P0 + 2 * i + 1}]")
    for i in range(4):
        a(f"v_cvt_pk_bf16_f32 v{84 + i}, v{P0 + 2 * i}, v{P0 + 2 * i + 1}")
    st = []
    for i in range(4):
        st.append(f"v_pk_fma_f32 v[{XV + 2 * i}:{XV + 2 * i + 1}], v[{att[i]}:{att[i] + 1}], v[{GA + 2 * i}:{GA + 2 * i + 1}], v[{XV + 2 * i}:{XV + 2 * i + 1}]")
    st.append(f"v_pk_mul_f32 v[8:9], v[{XV}:{XV + 1}], v[{XV}:{XV + 1}]")
    st.append(f"v_pk_add_f32 v[14:15], v[{XV}:{XV + 1}], v[{XV + 2}:{XV + 3}]")
    for i in range(1, 4):
        st.append(f"v_pk_fma_f32 v[8:9], v[{XV + 2 * i}:{XV + 2 * i + 1}], v[{XV + 2 * i}:{XV + 2 * i + 1}], v[8:9]")
        if i > 1:
            st.append(f"v_pk_add_f32 v[14:15], v[14:15], v[{XV + 2 * i}:{XV + 2 * i + 1}]")
    st.append("v_add_f32 v8, v8, v9")
    st.append("v_add_f32 v14, v14, v15")
    st.append("v_permlane32_swap_b32 v14, v8")
    st.append("v_add_f32 v14, v14, v8")
    interleave([mfma(ACC + 4 * e, 84, F + 4 * e) for e in range(2)], st[:4], 2)
    if not OPT["xe"]:
        a("s_cmp_lg_u64 s[20:21], 0" if OPT["xw"] else f"s_cmp_eq_u32 s{sM}, 13")
        a("s_cbranch_scc1 L_FFx")
        a.label("L_FF3")
    interleave([mfma(ACC + 4 * e, 84, F + 4 * e) for e in range(2, 8)], st[4:], 2)
    d1 = [f"v_add_f32_dpp v{104 + e}, v{ACC + 4 * e + 1}, v{ACC + 4 * e} row_shl:4 {DPPM}" for e in range(8)]
    d2 = [f"v_add_f32_dpp v{104 + e}, v{ACC + 4 * e + 2}, v{104 + e} row_shl:8 {DPPM}" for e in range(8)]
    d3 = [f"v_add_f32_dpp v{104 + e}, v{ACC + 4 * e + 3}, v{104 + e} row_shl:12 {DPPM}" for e in range(8)]
    for ins in d1[:3]:
        a(ins)
    a(f"v_add_f32_dpp v14, v14, v14 quad_perm:[1,0,3,2] {DPPM}")
    for ins in d1[3:6]:
        a(ins)
    a(f"v_add_f32_dpp v14, v14, v14 quad_perm:[2,3,0,1] {DPPM}")
    for ins in d2[:3]:
        a(ins)
    a("v_mov_b32 v15, v14")
    for ins in d1[6:] + d2[3:5]:
        a(ins)
    a("v_permlane16_swap_b32 v15, v14")
    for ins in d2[5:]:
        a(ins)
    if OPT["t2"] > 1:
        a("v_add_f32 v14, v14, v15")
        set_exec(0x0000111100001111)
        a("ds_write_b32 v6, v14")
        set_exec(-1)
        for ins in d3:
            a(ins)
        set_exec(0x000F000F000F000F)
        a("ds_write_b128 v5, v[104:107]")
        a("ds_write_b128 v5, v[108:111] offset:16")
        a("s_waitcnt lgkmcnt(2)")
        a("s_barrier                      ; 3b: statistics")
    else:
        a("v_add_f32 v14, v14, v15")
        for ins in d3:
            a(ins)
        set_exec(0x000F000F000F000F)
        a("ds_write_b128 v5, v[104:107]")
        a("ds_write_b128 v5, v[108:111] offset:16")
        set_exec(0x0000111100001111)
        a("ds_write_b32 v6, v14")
        set_exec(-1)
    a("s_waitcnt lgkmcnt(0)")
    a("s_barrier")
    stamp(10)
    a.label("L_fin2")
    finish_wave()
    stub("L_s3")
    a.label("L_FFx")
    if OPT["xe"]:
        for i in range(4):
            a(f"v_pk_fma_f32 v[{132 + 2 * i}:{133 + 2 * i}], v[{att[i]}:{att[i] + 1}], v[{GA + 2 * i}:{GA + 2 * i + 1}], v[{XV + 2 * i}:{XV + 2 * i + 1}]")
    for i in range(4):
        x = 132 if OPT["xe"] else XV
        a(f"v_cvt_pk_bf16_f32 v{128 + i}, v{x + 2 * i}, v{x + 2 * i + 1}")
    a("s_mov_b64 exec, s[20:21]")
    a(f"global_store_dwordx4 v124, v[128:131], {sp(sBB)} sc1")
    set_exec(-1)
    a("s_branch L_FF3")

    a.label("L_FF0")
    a(f"s_cmp_lg_u32 s{sWAVE}, 0")
    a("s_cbranch_scc1 L_fin2")
    if OPT["gate"]:
        a(f"s_cmp_eq_u32 s{sM}, 15")
        a("s_cbranch_scc1 L_fin2")
        base(sBA, sWS, None, GATE)
        a("v_lshlrev_b32 v5, 7, v0")
        a("v_and_b32 v7, 0x380, v5")
        a("v_add_u32 v7, 0x2000, v7")
        a(f"s_movk_i32 s{sCNT}, 60")
        if not OPT["adap"]:
            a("s_barrier                      ; 2c")
        a.label("L_FFg")
        if OPT["gatew"]:
            a(f"global_load_dword v6, v5, {sp(sBA)} sc1")
        a(f"global_load_dword v8, v7, {sp(sBA)} sc1")
        poll_mid()
        if OPT["gatew"]:
            a("v_max_u32 v8, v6, v8")
        a("v_cmp_eq_u32 vcc, -1, v8")
        poll_end("L_FFg")
        stamp(10)
        if OPT["gate"] > 1:
            if OPT["gskip"]:
                a(f"s_cmp_eq_u32 s{sCNT}, 59")
                a("s_cbranch_scc1 L_FFh")
            a(f"s_sleep {OPT['gate'] - 1}")
            a.label("L_FFh")
        if OPT["adap"]:
            a("v_mov_b32 v6, 1")
            a(f"ds_write_b32 v4, v6 offset:{LGT}")
    a(f"s_cmp_ge_u32 s{sM}, 14")
    a("s_cbranch_scc1 L_fin2")
    if OPT["gate"] and not OPT["fin"]:
        a("s_barrier                      ; 3")
    a("v_bfe_u32 v8, v0, 3, 2")
    a("v_lshlrev_b32 v5, 7, v8")
    a("v_and_b32 v6, 7, v0")
    a("v_lshl_add_u32 v5, v6, 3, v5")
    a("v_lshrrev_b32 v6, 5, v0")
    a("v_lshl_add_u32 v5, v6, 2, v5")
    a("v_add_u32 v6, 64, v5")
    a("v_lshlrev_b32 v8, 5, v8")
    a(f"s_mul_i32 s{sT0}, s{sG}, 14")
    a(f"s_add_u32 s{sT0}, s{sT0}, s{sM}")
    a(f"s_lshl_b32 s{sT0}, s{sT0}, 7")
    base(sBA, sWS, sT0, ACT)
    a("v_lshlrev_b32 v7, 2, v0")
    a(f"s_mov_b32 s{sT1}, {INV512:#x}")
    if OPT["gate"] and OPT["fin"]:
        a("s_barrier                      ; g")
    if not OPT["gate"] or OPT["gsh"]:
        a("s_barrier                      ; 3")
    for k, L0 in enumerate((LU, LV)):
        o = L0 // 256
        a(f"ds_read2st64_b32 v[{16 + 8 * k}:{17 + 8 * k}], v5 offset0:{o} offset1:{o + 2}")
        a(f"ds_read2st64_b32 v[{18 + 8 * k}:{19 + 8 * k}], v5 offset0:{o + 4} offset1:{o + 6}")
        a(f"ds_read2st64_b32 v[{20 + 8 * k}:{21 + 8 * k}], v6 offset0:{o} offset1:{o + 2}")
        a(f"ds_read2st64_b32 v[{22 + 8 * k}:{23 + 8 * k}], v6 offset0:{o + 4} offset1:{o + 6}")
    a("s_waitcnt lgkmcnt(0)")
    for k in range(4):
        a(f"v_pk_add_f32 v[{16 + 4 * k}:{17 + 4 * k}], v[{16 + 4 * k}:{17 + 4 * k}], v[{18 + 4 * k}:{19 + 4 * k}]")
    for k in range(4):
        a(f"v_add_f32 v{40 + k}, v{16 + 4 * k}, v{17 + 4 * k}")
    o = LY // 256
    if OPT["t2"] > 1:
        a("s_barrier                      ; 3b")
        a(f"ds_read_b128 v[24:27], v8 offset:{LST}")
        a(f"ds_read_b128 v[28:31], v8 offset:{LST + 16}")
        a("s_barrier                      ; 4")
        a(f"ds_read2st64_b32 v[16:17], v5 offset0:{o} offset1:{o + 2}")
        a(f"ds_read2st64_b32 v[18:19], v5 offset0:{o + 4} offset1:{o + 6}")
        a(f"ds_read2st64_b32 v[20:21], v6 offset0:{o} offset1:{o + 2}")
        a(f"ds_read2st64_b32 v[22:23], v6 offset0:{o + 4} offset1:{o + 6}")
        a("s_waitcnt lgkmcnt(4)")
        a("v_pk_add_f32 v[24:25], v[24:25], v[26:27]")
        a("v_pk_add_f32 v[28:29], v[28:29], v[30:31]")
        a("v_add_f32 v24, v24, v25")
        a("v_add_f32 v28, v28, v29")
        a(f"v_mul_f32 v24, s{sT1}, v24             ; mean")
        a("v_mul_f32 v25, v24, v24")
        a(f"v_fma_f32 v28, v28, s{sT1}, -v25       ; variance")
        a("v_max_f32 v28, 0, v28")
        a(f"v_add_f32 v28, {EPS:#x}, v28")
        a("v_rsq_f32 v28, v28")
    else:
        a("s_barrier                      ; 4")
        o = LY // 256
        a(f"ds_read_b128 v[24:27], v8 offset:{LST}")
        a(f"ds_read_b128 v[28:31], v8 offset:{LST + 16}")
        a(f"ds_read2st64_b32 v[16:17], v5 offset0:{o} offset1:{o + 2}")
        a(f"ds_read2st64_b32 v[18:19], v5 offset0:{o + 4} offset1:{o + 6}")
        a(f"ds_read2st64_b32 v[20:21], v6 offset0:{o} offset1:{o + 2}")
        a(f"ds_read2st64_b32 v[22:23], v6 offset0:{o + 4} offset1:{o + 6}")
        a("s_waitcnt lgkmcnt(4)")
        a("v_pk_add_f32 v[24:25], v[24:25], v[26:27]")
        a("v_pk_add_f32 v[28:29], v[28:29], v[30:31]")
        a("v_add_f32 v24, v24, v25")
        a("v_add_f32 v28, v28, v29")
        a(f"v_mul_f32 v24, s{sT1}, v24             ; mean")
        a("v_mul_f32 v25, v24, v24")
        a(f"v_fma_f32 v28, v28, s{sT1}, -v25       ; variance")
        a("v_max_f32 v28, 0, v28")
        a(f"v_add_f32 v28, {EPS:#x}, v28")
        a("v_rsq_f32 v28, v28")
    a("s_waitcnt lgkmcnt(0)")
    a("v_pk_add_f32 v[16:17], v[16:17], v[18:19]")
    a("v_pk_add_f32 v[20:21], v[20:21], v[22:23]")
    a("v_add_f32 v16, v16, v17")
    a("v_add_f32 v17, v20, v21")
    a("v_fma_f32 v16, -v24, v40, v16")
    a("v_fma_f32 v17, -v24, v41, v17")
    a("v_fma_f32 v16, v16, v28, v42          ; gate")
    a("v_fma_f32 v17, v17, v28, v43          ; up")
    a(f"v_mul_f32 v18, {0x80000000 | LOG2E:#x}, v16")
    a("v_exp_f32 v18, v18")
    a("v_mul_f32 v16, v16, v17")
    a("v_add_f32 v18, 1.0, v18")
    a("v_rcp_f32 v18, v18")
    a("v_mul_f32 v16, v16, v18")
    a("v_mov_b32 v17, v16")
    a("v_permlane32_swap_b32 v16, v17")
    a("v_cvt_pk_bf16_f32 v16, v16, v17")
    set_exec(0xFFFFFFFF)
    a(f"global_store_dword v7, v16, {sp(sBA)} sc1")
    stamp(11)
    finish_wave()


def wq_pf():
    a(f"s_lshl_b32 s{sT0}, s{sT0}, 6")
    a(f"s_add_u32 s{sT0}, s{sT0}, s{sT1}")
    a(f"s_lshl_b32 s{sT0}, s{sT0}, 10")
    a("v_lshlrev_b32 v8, 13, v14")
    a("v_lshl_add_u32 v8, v15, 7, v8")
    a(f"v_add_u32 v8, s{sT0}, v8")
    prefetch(8, sWQ, delta=8192)


def sec_entry():
    HELP[0] = False
    a(f"{NAME}_kernel:")
    a("s_load_dwordx16 s[4:19], s[0:1], 0")
    a("s_load_dwordx8 s[20:27], s[0:1], 64")
    a("s_load_dwordx2 s[30:31], s[0:1], 104")
    if OPT["stamps"]:
        a("v_mov_b32 v126, 0")
        a("s_memrealtime s[100:101]")
    if OPT["probe"]:
        a("s_memrealtime s[100:101]")
    a("s_cmp_ge_u32 s2, 256")
    a("s_cbranch_scc1 L_exit")
    a("v_lshrrev_b32 v1, 6, v0")
    if OPT["pf"]:
        a(f"s_getpc_b64 {sp(sPC)}")
        a.label("L_pc0")
        a("v_lshlrev_b32 v2, 7, v0")
    a(f"v_readfirstlane_b32 s{sWAVE}, v1")
    if OPT["pf"]:
        a(f"s_sub_u32 s{sPC}, s{sPC}, L_pc0-L_code0")
        a(f"s_subb_u32 s{sPC + 1}, s{sPC + 1}, 0")
        a("v_cmp_gt_u32 vcc, (L_exit-L_code0)/128, v0")
        if OPT["cpf1"]:
            a("s_and_b32 s33, s2, 0xf8")
            a("s_cmp_lg_u32 s33, 0x78")
            a("s_cbranch_scc1 L_nopf")
        a("s_cbranch_vccz L_nopf")
        a("s_mov_b64 exec, vcc")
        a(f"global_load_dword v127, v2, {sp(sPC)}")
        a("s_mov_b64 exec, -1")
        a.label("L_nopf")
    a("v_and_b32 v0, 63, v0")
    a(f"s_and_b32 s{sT1}, s2, 7")
    a(f"s_lshr_b32 s{sT2}, s2, 3")
    if OPT["mix"]:
        a(f"s_and_b32 s{sT0}, s{sT2}, 17")
        a(f"s_cmp_eq_u32 s{sT0}, 17")
        a(f"s_addc_u32 s{sT1}, s{sT1}, 0")
        a(f"s_and_b32 s{sT1}, s{sT1}, 7")
    a("v_lshrrev_b32 v1, 2, v0        ; l>>2")
    a("v_and_b32 v2, 3, v0            ; l&3")
    a("v_lshrrev_b32 v3, 4, v0        ; l>>4")
    a("v_mov_b32 v4, 0")
    a("v_and_b32 v5, 3, v1")
    a("v_lshrrev_b32 v14, 3, v0")
    a("v_and_b32 v15, 7, v0")
    if OPT["pfw"]:
        a(f"s_cmp_lg_u32 s{sWAVE}, {0 if OPT['pfw'] < 3 else 2}")
        a("s_cbranch_scc1 L_nopfa")
        a("s_setprio 3")
        a(f"v_lshl_add_u32 v6, s{sT2}, 4, v1")
        a("v_mul_u32_u24 v6, 6144, v6")
        a("v_and_b32 v7, 2, v0")
        a("v_lshl_add_u32 v6, v7, 9, v6")
        if OPT["pfw"] != 2:
            a("v_and_b32 v7, 1, v0")
            a("v_lshl_add_u32 v6, v7, 6, v6")
        a(f"v_lshl_add_u32 v6, s{sT1}, 7, v6")
        a("s_waitcnt lgkmcnt(0)")
        a(f"global_load_dword v127, v6, {sp(sWM)}")
        a("s_setprio 0")
        a.label("L_nopfa")
    a("s_cmp_lt_u32 s2, 128")
    a("s_cbranch_scc1 L_G")
    if OPT["kfirst"]:
        a("s_setprio 3")
    a(f"s_sub_u32 s{sT2}, s{sT2}, 16             ; a = 4b + s")
    if OPT["afirst"]:
        PFWAIT[0] = True
        if OPT["ahelp"]:
            assert 8 * OPT["nq"] + 4 * OPT["nb"] + 4 * OPT["nm"] + 16 * OPT["na"] == 64
            a(f"s_cmp_ge_u32 s{sWAVE}, {OPT['na']}")
            a("s_cbranch_scc1 L_nopfq")
            a(f"s_lshl4_add_u32 s{sT0}, s{sWAVE}, s{sT2}")
            a(f"s_add_u32 s{sT0}, s{sT0}, {64 - 16 * OPT['na']}")
            wq_pf()
            a.label("L_nopfq")
    a(f"s_and_b32 s{sT0}, s{sT2}, 12")
    a(f"s_lshl_b32 s{sT0}, s{sT0}, 1")
    a(f"s_add_u32 s{sT0}, s{sT0}, s{sT1}")
    a(f"s_lshl_b32 s{sT0}, s{sT0}, 4")
    a(f"s_and_b32 s{sT3}, s{sT2}, 3")
    a(f"s_add_u32 s{sT0}, s{sT0}, s{sT3}")
    if OPT["ilv"]:
        a(f"s_lshl_b32 s{sT0}, s{sT0}, 6")
        a(f"s_add_u32 s{sT0}, s{sT0}, s{sWAVE}")
        a(f"s_lshl_b32 s{sT0}, s{sT0}, 10")
        a(f"s_add_u32 s{sT0}, s{sT0}, {3072 * 256}")
        a(f"s_movk_i32 s{sT3}, 8192")
    else:
        a(f"s_lshl_b32 s{sT0}, s{sT0}, 3")
        a(f"s_add_u32 s{sT0}, s{sT0}, s{sWAVE}")
        a(f"s_lshl_b32 s{sT0}, s{sT0}, 13")
        a(f"s_add_u32 s{sT0}, s{sT0}, {3072 * 256 + (0 if OPT['dma'] else 4096)}")
    if OPT["dma"]:
        a("v_and_b32 v8, 15, v0")
        a("v_lshlrev_b32 v9, 2, v3")
        a("v_xor_b32 v9, v9, v8")
        a("v_lshlrev_b32 v9, 4, v9")
        a("v_lshl_add_u32 v16, v3, 8, v9")
        for x in range(1, 4):
            a(f"v_xor_b32 v{16 + x}, {16 * x}, v16")
        a(f"s_lshl_b32 s{sT3}, s{sWAVE}, 13")
        a(f"s_add_u32 m0, s{sT3}, {LK}")
    if not OPT["dma"]:
        a("v_lshlrev_b32 v7, 4, v0")
    a("s_waitcnt lgkmcnt(0)")
    base(sBA, sK, sT0)
    base(sBB, sV, sT0)
    if OPT["stag"] >= 3:
        a("s_barrier")
    elif OPT["stag"]:
        a("s_waitcnt lgkmcnt(0)")
        a(f"s_load_dword s{45}, {sp(sWS)}, 0")
        a("s_waitcnt lgkmcnt(0)")
    a(f"global_load_dword v12, v4, {sp(sWS)} sc1      ; epoch")
    if OPT["pfaw"] == 1:
        a(f"s_cmp_lg_u32 s{sWAVE}, 2")
        a("s_cbranch_scc1 L_nopfa")
        a("v_lshrrev_b32 v8, 1, v0")
        a(f"v_lshl_add_u32 v8, s{sT2}, 5, v8")
        a("v_mul_u32_u24 v8, 6144, v8")
        a("v_and_b32 v9, 1, v0")
        a("v_lshl_add_u32 v8, v9, 10, v8")
        a(f"v_lshl_add_u32 v8, s{sT1}, 7, v8")
        prefetch(8, sWM, delta=4 * 6144)
        a.label("L_nopfa")
    if not OPT["afirst"]:
        if OPT["ahelp"]:
            assert 8 * OPT["nq"] + 4 * OPT["nb"] + 4 * OPT["nm"] + 16 * OPT["na"] == 64
            a(f"s_cmp_ge_u32 s{sWAVE}, {OPT['na']}")
            a("s_cbranch_scc1 L_nopfq")
            a(f"s_lshl4_add_u32 s{sT0}, s{sWAVE}, s{sT2}")
            a(f"s_add_u32 s{sT0}, s{sT0}, {64 - 16 * OPT['na']}")
            wq_pf()
            a.label("L_nopfq")
    if OPT["athr"] < 8:
        a(f"s_cmp_lt_u32 s{sWAVE}, {OPT['athr']}")
        a("s_cbranch_scc1 L_Ald")
        a("s_waitcnt vmcnt(0)")
        a.label("L_Ald")
    for u in range(8):
        if OPT["kthr"] and u >= OPT["kthr"]:
            a(f"s_waitcnt vmcnt({OPT['kthr'] - 1})")
        if OPT["dma"]:
            if u == 4:
                a("s_add_u32 m0, m0, 4096")
                a(f"s_add_u32 s{sBA}, s{sBA}, 4096")
                a(f"s_addc_u32 s{sBA + 1}, s{sBA + 1}, 0")
            a(f"global_load_lds_dwordx4 v{16 + (u & 3)}, {sp(sBA)} offset:{1024 * (u & 3)}{NT}")
        elif OPT["ilv"]:
            a(f"global_load_dwordx4 {vr(KR + 4 * u, 4)}, v7, {sp(sBA)}{NT}")
            if u < 7:
                a(f"v_add_u32 v7, s{sT3}, v7")
        else:
            a(f"global_load_dwordx4 {vr(KR + 4 * u, 4)}, v7, {sp(sBA)} offset:{1024 * u - 4096}{NT}")
    if OPT["kfirst"]:
        a("s_setprio 0")
    if OPT["kstage"]:
        a(f"s_cmp_ge_u32 s{sWAVE}, 4")
        a("s_cbranch_scc1 L_A2")
    for u in range(0 if OPT["vlate"] else 8):
        a(f"global_load_dwordx4 {vr(VR + 4 * u, 4)}, v7, {sp(sBB)} offset:{1024 * u - 4096}{NT}")
    a("s_branch L_A2")
    a.label("L_G")
    a(f"s_and_b32 s{sT3}, s{sT2}, 1")
    a(f"s_lshr_b32 s{sT0}, s{sT2}, 2")
    a(f"s_and_b32 s{sT0}, s{sT0}, 2")
    a(f"s_or_b32 s{sKIND}, s{sT3}, s{sT0}")
    if OPT["pfa"] and not OPT["pfaw"] and not OPT["pfw"]:
        a("v_lshrrev_b32 v6, 1, v0")
        if OPT["pfq"]:
            a(f"v_lshl_add_u32 v6, s{sT2}, 5, v6")
        else:
            a(f"s_and_b32 s{sT0}, s{sWAVE}, 1")
            a(f"s_xor_b32 s{sT0}, s{sT0}, s{sT2}")
            a(f"v_lshl_add_u32 v6, s{sT0}, 5, v6")
        a("v_mul_u32_u24 v6, 6144, v6")
        a("v_and_b32 v7, 1, v0")
        a("v_lshl_add_u32 v6, v7, 10, v6")
        a(f"v_lshl_add_u32 v6, s{sT1}, 7, v6")
        if OPT["pfq"]:
            a(f"s_cmp_lg_u32 s{sWAVE}, 0")
        else:
            a(f"s_lshr_b32 s{sT0}, 0x21, s{sWAVE}")
            a(f"s_and_b32 s{sT0}, s{sT0}, s{sT3}")
            a(f"s_cmp_eq_u32 s{sT0}, 0")
        a("s_cbranch_scc1 L_nopfa")
        PFWAIT[0] = True
        prefetch(6, sWM, delta=4 * 6144)
        a.label("L_nopfa")
    a(f"s_bfe_u32 s{sT0}, s{sT2}, 0x20001")
    a(f"s_lshl2_add_u32 s{sCNT}, s{sT1}, s{sT0}      ; p = 4g + ((m>>1)&3)")
    a(f"s_cmp_eq_u32 s{sKIND}, 1")
    a("s_cbranch_scc1 L_GA")
    if OPT["stag"] == 1:
        a("s_waitcnt lgkmcnt(0)")
        a(f"s_load_dword s{45}, {sp(sWS)}, 0")
        a("s_waitcnt lgkmcnt(0)")
    if not OPT["nb"]:
        a(f"s_cmp_eq_u32 s{sKIND}, 3")
        a("s_cbranch_scc1 L_GB")
    a(f"s_sub_u32 s{sT4}, s{sWAVE}, 1")
    a(f"s_lshr_b32 s{sT0}, s{sT2}, 1")
    if OPT["nb"]:
        a(f"s_lshl3_add_u32 s32, s{sT4}, s{sT0}")
        a(f"s_lshl2_add_u32 s33, s{sT4}, s{sT0}")
        a(f"s_add_u32 s33, s33, {8 * OPT['nq'] - 4}")
        a(f"s_cmp_eq_u32 s{sKIND}, 3")
        a(f"s_cselect_b32 s{sT0}, s33, s32")
        a(f"s_cselect_b32 s32, {OPT['nb']}, {OPT['nq']}")
        a(f"s_cmp_ge_u32 s{sT4}, s32")
    else:
        a(f"s_lshl3_add_u32 s{sT0}, s{sT4}, s{sT0}")
        a(f"s_cmp_ge_u32 s{sT4}, {OPT['nq']}")
    a("s_cbranch_scc1 L_nopfw")
    PFWAIT[0] = True
    wq_pf()
    a.label("L_nopfw")
    a(f"s_cmp_eq_u32 s{sKIND}, 3")
    a("s_cbranch_scc1 L_GB")
    a(f"s_lshl_b32 s{sT0}, s{sWAVE}, 9")
    a(f"s_add_u32 s{sT0}, s{sT0}, s{sT1}")
    a(f"s_lshl4_add_u32 s{sT0}, s{sT0}, s{sT2}")
    a(f"s_lshl_b32 s{sT0}, s{sT0}, 6")
    a("v_lshlrev_b32 v6, 16, v14")
    a("v_lshl_add_u32 v6, v15, 4, v6")
    a(f"s_movk_i32 s{sT3}, 8192")
    a(f"s_lshr_b32 s{sT4}, s{sT2}, 2")
    a(f"s_lshl2_add_u32 s{sT4}, s{sT1}, s{sT4}")
    a(f"s_mul_i32 s{sT4}, s{sT4}, {NREP * 128}")
    if OPT["qfast"] == 1:
        a(f"s_bfe_u32 s{sCNT}, s{sT2}, 0x10001")
    else:
        a(f"s_and_b32 s{sCNT}, s{sT2}, 2")
        a(f"s_add_u32 s{sCNT}, s{sCNT}, s{sWAVE}")
    a(f"s_lshl2_add_u32 s{sT4}, s{sCNT}, s{sT4}")
    a(f"s_add_u32 s{sT4}, s{sT4}, {FL:#x}")
    a(f"v_and_b32 v96, {NREP - 1}, v0")
    a(f"v_lshl_add_u32 v96, v96, 7, s{sT4}")
    a("s_waitcnt lgkmcnt(0)")
    base(sBB, sWQ, sT0)
    a(f"global_load_dword v12, v4, {sp(sWS)} sc1      ; epoch")
    if OPT["stag"] == 4 or OPT["qbar"]:
        a("s_barrier")
    if not OPT["ftb"]:
        a(f"s_cmp_lg_u32 s{sWAVE}, 1")
        a("s_cbranch_scc1 L_G_ld")
        a(f"global_load_dword v127, v96, {sp(sWS)} sc1")
    a.label("L_G_ld")
    for j in range(8):
        a(f"global_load_dwordx4 {vr(W + 4 * j, 4)}, v6, {sp(sBB)}{NT}")
        if j < 7:
            a(f"v_add_u32 v6, s{sT3}, v6")
    a(f"s_cmp_eq_u32 s{sKIND}, 1")
    a("s_cbranch_scc0 L_GQ2")
    a("s_branch L_GM2")
    a.label("L_GA")
    a(f"s_cmp_ge_u32 s{sWAVE}, 4")
    a("s_cbranch_scc1 L_GQA")
    if OPT["split"]:
        a(f"s_andn2_b32 s{sT0}, s{sCNT}, 1")
        a(f"s_lshl_b32 s{sT0}, s{sT0}, 5")
        a(f"s_bitcmp0_b32 s{sCNT}, 0")
        a(f"s_cselect_b32 s{sT3}, 1024, 0")
        a(f"s_add_u32 s{sT0}, s{sT0}, s{sT3}")
    else:
        a(f"s_lshl_b32 s{sT0}, s{sCNT}, 5")
    a(f"s_mul_i32 s{sT3}, s{sWAVE}, {128 * 6144}")
    a(f"s_add_u32 s{sT0}, s{sT0}, s{sT3}")
    a("v_lshlrev_b32 v5, 10, v5")
    a("v_lshl_add_u32 v5, v3, 6, v5")
    a("v_lshl_add_u32 v5, v2, 4, v5")
    a(f"v_lshl_add_u32 v5, s{sWAVE}, 8, v5")
    a("v_mul_u32_u24 v6, 49152, v1")
    if OPT["split"]:
        a("v_lshl_add_u32 v6, v2, 4, v6")
    else:
        a("v_and_b32 v7, 1, v2")
        a("v_lshl_add_u32 v6, v7, 4, v6")
        a("v_lshrrev_b32 v7, 1, v2")
        a("v_lshl_add_u32 v6, v7, 10, v6")
    a("v_mov_b32 v96, 0")
    if OPT["pfaw"] == 2:
        a(f"s_lshl1_add_u32 s{sT4}, s{sT2}, s{sWAVE}")
        a(f"s_sub_u32 s{sT4}, s{sT4}, 2")
        a("v_lshrrev_b32 v13, 1, v0")
        a(f"v_lshl_add_u32 v13, s{sT4}, 5, v13")
        a("v_mul_u32_u24 v13, 6144, v13")
        a("v_and_b32 v7, 1, v0")
        a("v_lshl_add_u32 v13, v7, 10, v13")
        a(f"v_lshl_add_u32 v13, s{sT1}, 7, v13")
    a(f"s_movk_i32 s{sT3}, 6144")
    a("s_waitcnt lgkmcnt(0)")
    base(sBB, sWM, sT0)
    a(f"global_load_dwordx4 v[8:11], v5, {sp(sC)}")
    if OPT["pfaw"] == 2:
        prefetch(13, sWM, delta=4 * 6144)
        a("s_barrier")
    if OPT["abar"]:
        a("s_barrier")
        if OPT["abar"] == 2:
            a("s_waitcnt vmcnt(0)")
    a("s_branch L_G_ld")
    a.label("L_GQA")
    a("s_setprio 3")
    a("v_and_b32 v7, 15, v0")
    a("v_lshlrev_b32 v13, 10, v3")
    a("v_lshl_add_u32 v14, v7, 4, v13")
    if OPT["split"]:
        a("v_lshl_add_u32 v15, v7, 2, v13")
        a(f"s_andn2_b32 s{sT0}, s{sCNT}, 1")
        a(f"v_lshl_add_u32 v15, s{sT0}, 5, v15")
    else:
        a("v_lshl_add_u32 v15, v7, 1, v13")
        a(f"v_lshl_add_u32 v15, s{sCNT}, 5, v15")
    a("s_waitcnt lgkmcnt(0)")
    a(f"s_cmp_lg_u32 s{sWAVE}, 7")
    a("s_cbranch_scc1 L_GQA1")
    a(f"global_load_dword v12, v4, {sp(sWS)} sc1      ; epoch")
    for t in range(4):
        a(f"global_load_dwordx4 {vr(80 + 4 * t, 4)}, v14, {sp(sX)} offset:{256 * t}")
    a(f"global_load_{'dword' if OPT['split'] else 'ushort'} v13, v15, {sp(sX)}")
    a.label("L_GQA1")
    if OPT["abar"]:
        a("s_barrier")
    if OPT["clra"]:
        a(f"s_cmp_eq_u32 s{sWAVE}, 6")
        a("s_cbranch_scc1 L_GC")
    if OPT["nm"]:
        a(f"s_sub_u32 s{sT4}, s{sWAVE}, 4")
        a(f"s_cmp_ge_u32 s{sT4}, {OPT['nm']}")
        a("s_cbranch_scc1 L_GQA2")
        a(f"s_lshr_b32 s{sT0}, s{sT2}, 1")
        a(f"s_lshl2_add_u32 s{sT0}, s{sT4}, s{sT0}")
        a(f"s_add_u32 s{sT0}, s{sT0}, {8 * OPT['nq'] + 4 * OPT['nb']}")
        a("v_lshrrev_b32 v14, 3, v0")
        a("v_and_b32 v15, 7, v0")
        wq_pf()
    a("s_branch L_GQA2")
    if OPT["clra"]:
        a.label("L_GC")
        a(f"s_mul_i32 s{sT0}, s{sCNT}, {CLR_PER_WG * 1024}")
        a("v_lshlrev_b32 v6, 4, v0")
        for i in range(4):
            a(f"v_mov_b32 v{8 + i}, -1")
        base(sBA, sWS, sT0, CLR + 4096)
        a(f"global_load_dword v12, v4, {sp(sWS)} sc1      ; epoch")
        for i in range(CLR_PER_WG):
            a(f"global_store_dwordx4 v6, v[8:11], {sp(sBA)} offset:{1024 * i - 4096} sc1")
        base(sBB, sWS, None, CF)
        a(f"v_lshlrev_b32_e64 v5, 7, s{sCNT}")
        a("s_waitcnt vmcnt(0)")
        make_tag(12)
        a(f"v_mov_b32 v6, s{sTAG}")
        set_exec(1)
        a(f"global_store_dword v5, v6, {sp(sBB)} sc1")
        set_exec(-1)
        a("s_branch L_GQA2")
        a.label("L_GB")
        a("s_waitcnt lgkmcnt(0)")
        a(f"global_load_dword v12, v4, {sp(sWS)} sc1      ; epoch")
        a("s_branch L_GB2")
    else:
        a.label("L_GB")
        if OPT["gbh"]:
            a(f"s_cmp_lg_u32 s{sWAVE}, 7")
            a("s_cbranch_scc1 L_GB0")
            a("s_setprio 3")
            a(f"s_mul_i32 s{sT0}, s{sCNT}, {CLR_PER_WG * 1024}")
            a(f"s_add_u32 s{sT0}, s{sT0}, {CLR + 4096:#x}")
            a("v_lshlrev_b32 v6, 4, v0")
            for i in range(4):
                a(f"v_mov_b32 v{8 + i}, -1")
            a("s_waitcnt lgkmcnt(0)")
            base(sBA, sWS, sT0)
            a(f"global_load_dword v12, v4, {sp(sWS)} sc1      ; epoch")
            for i in range(CLR_PER_WG):
                a(f"global_store_dwordx4 v6, v[8:11], {sp(sBA)} offset:{1024 * i - 4096} sc1")
            a.label("L_GB0")
            a(f"s_and_b32 s{sT0}, s{sCNT}, 3")
            a(f"s_lshl2_add_u32 s{sT0}, s{sWAVE}, s{sT0}")
            a(f"v_lshl_add_u32 v17, s{sT0}, 4, v1")
            a("v_mul_u32_u24 v17, 6144, v17")
            a("v_lshl_add_u32 v17, v2, 7, v17")
            a(f"v_lshl_add_u32 v17, s{sT1}, 9, v17")
            a("v_add_u32 v17, 0x800, v17")
            a(f"s_cmp_ge_u32 s{sWAVE}, {OPT['nearly']}")
            a("s_waitcnt lgkmcnt(0)")
            a("s_barrier")
            a("s_cbranch_scc1 L_GB2")
            a(f"global_load_dword v127, v17, {sp(sWM)}")
            a("s_branch L_GB2")
        a(f"s_cmp_lg_u32 s{sWAVE}, 7")
        a("s_cbranch_scc1 L_GB1")
        a("s_setprio 3")
        a(f"s_mul_i32 s{sT0}, s{sCNT}, {CLR_PER_WG * 1024}")
        a("v_lshlrev_b32 v6, 4, v0")
        for i in range(4):
            a(f"v_mov_b32 v{8 + i}, -1")
        a("s_waitcnt lgkmcnt(0)")
        base(sBA, sWS, sT0, CLR + 4096)
        a(f"global_load_dword v12, v4, {sp(sWS)} sc1      ; epoch")
        for i in range(CLR_PER_WG):
            a(f"global_store_dwordx4 v6, v[8:11], {sp(sBA)} offset:{1024 * i - 4096} sc1")
        a("s_branch L_GB2")


def ids():
    a(f"s_mov_b32 s{sG}, s{sT1}")
    a(f"s_mov_b32 s{sM}, s{sT2}")
    sels()
    if OPT["stamps"]:
        a("s_mov_b32 m0, 0")
    if OPT["probe"]:
        a("v_mov_b32 v208, s100")
        a("v_mov_b32 v209, s100")
        a("v_mov_b32 v210, 0")
        a(f"s_getreg_b32 s100, hwreg(HW_REG_XCC_ID, 0, 4)")
        a("v_mov_b32 v211, s100")


def silu_frag():
    unpack(80, 8, 4)
    for i in range(8):
        a(f"v_mul_f32 v{88 + i}, {0x80000000 | LOG2E:#x}, v{80 + i}")
    for i in range(8):
        a(f"v_exp_f32 v{88 + i}, v{88 + i}")
    for i in range(8):
        a(f"v_add_f32 v{88 + i}, 1.0, v{88 + i}")
    for i in range(8):
        a(f"v_rcp_f32 v{88 + i}, v{88 + i}")
    for i in range(8):
        a(f"v_mul_f32 v{80 + i}, v{80 + i}, v{88 + i}")
    for i in range(4):
        a(f"v_cvt_pk_bf16_f32 v{8 + i}, v{80 + 2 * i}, v{81 + 2 * i}")


def xcc_flag():
    a(f"s_lshr_b32 s{sT0}, s{sM}, 2")
    a(f"s_lshl2_add_u32 s{sT0}, s{sG}, s{sT0}")
    a(f"s_mul_i32 s{sT0}, s{sT0}, {NREP * 128}")
    a(f"s_and_b32 s{sT1}, s{sM}, 2")
    a(f"s_lshl1_add_u32 s{sT0}, s{sT1}, s{sT0}")
    a(f"s_add_u32 s{sT0}, s{sT0}, {FL + 16:#x}")
    a(f"v_and_b32 v5, {NREP - 1}, v0")
    a(f"v_lshl_add_u32 v5, v5, 7, s{sT0}")
    a(f"s_getreg_b32 s{sT0}, hwreg(HW_REG_XCC_ID, 0, 4)")
    a(f"s_xor_b32 s{sT0}, s{sTAG}, s{sT0}")
    a(f"v_mov_b32 v6, s{sT0}")
    a(f"global_store_dword v5, v6, {sp(sWS)}")


def q_trigger(lab):
    a(f"s_mul_i32 s{sT0}, s{sG}, {4 * NREP * 128}")
    base(sBA, sWS, sT0, FL)
    a("v_and_b32 v9, 3, v1")
    a(f"v_mul_u32_u24 v9, {NREP * 128}, v9")
    a("v_lshl_add_u32 v9, v2, 2, v9")
    a(f"s_mov_b32 s45, s{sCNT}")
    a(f"s_movk_i32 s{sCNT}, 40")
    a.label(lab)
    a(f"global_load_dword v10, v9, {sp(sBA)} sc1")
    poll_mid(sleep=2)
    a(f"v_xor_b32 v10, s{sTAG}, v10")
    a("v_cmp_gt_u32 vcc, 16, v10")
    a("s_cmp_eq_u64 vcc, 0")
    a("s_cselect_b64 vcc, -1, 0")
    poll_end(lab)
    a(f"s_mov_b32 s{sCNT}, s45")


def h_trigger(lab):
    base(sBA, sWS, None, H1 + 4)
    a("v_lshlrev_b32 v9, 7, v0")
    a(f"s_mov_b32 s45, s{sCNT}")
    a(f"s_movk_i32 s{sCNT}, 40")
    a.label(lab)
    a(f"global_load_dword v10, v9, {sp(sBA)} sc1")
    poll_mid(sleep=2)
    a(f"v_cmp_ne_u32 vcc, s{sTAG}, v10")
    poll_end(lab)
    a(f"s_mov_b32 s{sCNT}, s45")


def cf_poll():
    base(sBB, sWS, None, CF)
    a("v_and_b32 v5, 31, v0")
    a("v_lshlrev_b32 v5, 7, v5")
    lab = poll_begin()
    a(f"global_load_dword v6, v5, {sp(sBB)} sc1")
    poll_mid(sleep=4)
    a(f"v_cmp_ne_u32 vcc, s{sTAG}, v6")
    poll_end(lab)


def tile64_tail(first):
    for e in range(first, 8):
        a(mfma(ACC + 4 * e, 8, F + 4 * e))
    for e in range(8):
        a(f"v_add_f32_dpp v{80 + e}, v{ACC + 4 * e + 1}, v{ACC + 4 * e} row_shl:8 {DPPM}")
    set_exec(0x00FF00FF00FF00FF)
    a("ds_write_b128 v6, v[80:83]")
    a("ds_write_b128 v6, v[84:87] offset:16")
    set_exec(-1)


def tile64_addr():
    a("v_lshlrev_b32 v6, 8, v3")
    a("v_lshl_add_u32 v6, v15, 5, v6")
    a(f"v_lshl_add_u32 v6, s{sWAVE}, 10, v6")
    a("v_lshlrev_b32 v7, 3, v0")
    a(f"v_lshl_add_u32 v7, s{sWAVE}, 9, v7")


def tile64_sum():
    for t in range(4):
        a(f"ds_read2st64_b64 {vr(16 + 4 * t, 4)}, v7 offset0:{4 * t} offset1:{4 * t + 2}")


def sec_gm():
    HELP[0] = False
    CLS[0] = 4
    a.label("L_GM2")
    ids()
    stamp(1)
    a("s_waitcnt vmcnt(8)")
    silu_frag()
    a("v_lshlrev_b32 v5, 7, v3")
    a("v_lshl_add_u32 v5, v2, 5, v5")
    a(f"v_lshl_add_u32 v5, s{sWAVE}, 9, v5")
    perms8(W, F, waits=[6, 4, 2, 0])
    for e in range(8):
        a(mfma(ACC + 4 * e, 8, F + 4 * e))
    diagX_reduce(ACC, 48)
    set_exec(0x000F000F000F000F)
    a("ds_write_b128 v5, v[48:51]")
    a("ds_write_b128 v5, v[52:55] offset:16")
    set_exec(-1)
    a("s_waitcnt lgkmcnt(0)")
    stamp(2)
    a("s_barrier                      ; 1")
    if OPT["bhelp"]:
        a(f"s_lshl1_add_u32 s{sT0}, s{sM}, s{sWAVE}")
        a(f"s_add_u32 s{sT0}, s{sT0}, 14")
        a(f"s_mul_i32 s{sT0}, s{sT0}, {16 * 6144}")
        a(f"s_lshl_b32 s{sT1}, s{sG}, 9")
        a(f"s_add_u32 s{sT0}, s{sT0}, s{sT1}")
        a(f"s_add_u32 s{sT0}, s{sT0}, 2048")
        a("v_mul_u32_u24 v8, 6144, v1")
        a("v_lshl_add_u32 v8, v2, 7, v8")
        a(f"v_add_u32 v8, s{sT0}, v8")
        a("s_barrier")
        if OPT["hpull"]:
            a(f"s_cmp_eq_u32 s{sM}, 1")
            a("s_cbranch_scc1 L_DOWN")
        prefetch(8, sWM, delta=2 * 6144)
    a("s_branch L_DOWN")


def sec_gb():
    HELP[0] = True
    CLS[0] = 2
    a.label("L_GB1")
    a("s_waitcnt lgkmcnt(0)")
    if OPT["plan"] == 5:
        a(f"s_sub_u32 s{sT0}, s{sWAVE}, 3")
        a(f"s_cmp_ge_u32 s{sT0}, {OPT['q3']}")
        a("s_cbranch_scc1 L_GB2")
        a(f"s_and_b32 s{sT3}, s{sCNT}, 3")
        a(f"s_lshl2_add_u32 s{sT0}, s{sT0}, s{sT3}")
        a(f"s_sub_u32 s{sT0}, 7, s{sT0}")
        a(f"s_lshl_b32 s{sT0}, s{sT0}, 9")
        a(f"s_add_u32 s{sT0}, s{sT0}, s{sT1}")
        a(f"s_lshl_b32 s{sT0}, s{sT0}, 10")
        a(f"s_add_u32 s{sT0}, s{sT0}, 384")
        a(f"v_lshl_add_u32 v8, v0, 13, s{sT0}")
        prefetch(8, sWQ)
    a.label("L_GB2")
    ids()
    if OPT["ftb"]:
        a(f"s_cmp_lg_u32 s{sWAVE}, 4")
        a("s_cbranch_scc1 L_GBf")
        a(f"s_mul_i32 s{sT0}, s{sCNT}, {NREP * 128}")
        base(sBA, sWS, sT0, FL)
        a(f"v_and_b32 v9, {NREP - 1}, v0")
        a("v_lshlrev_b32 v9, 7, v9")
        a(f"global_load_dword v127, v9, {sp(sBA)} sc1")
        a.label("L_GBf")
    if OPT["qtb"]:
        a(f"s_lshl3_add_u32 s{sT0}, s{sM}, s{sWAVE}")
        a(f"s_cmp_lg_u32 s{sT0}, {11 * 8 + 5}")
        a("s_cbranch_scc1 L_GBq")
        a(f"s_lshl_b32 s{sT0}, s{sG}, 12")
        base(sBA, sWS, sT0, QS)
        a("v_lshlrev_b32 v9, 6, v0")
        a(f"global_load_dword v127, v9, {sp(sBA)} sc1")
        a.label("L_GBq")
    if OPT["h1m"] == 1:
        a(f"s_lshl3_add_u32 s{sT0}, s{sM}, s{sWAVE}")
        a(f"s_cmp_lg_u32 s{sT0}, {9 * 8 + 6}")
        a("s_cbranch_scc1 L_GBh")
        base(sBA, sWS, None, H1)
        a("v_lshlrev_b32 v9, 7, v0")
        a(f"global_load_dword v127, v9, {sp(sBA)} sc1")
        if OPT["split"]:
            a("v_add_u32 v9, 0x2000, v9")
            a(f"global_load_dword v127, v9, {sp(sBA)} sc1")
        a.label("L_GBh")
    a("v_lshlrev_b32 v5, 10, v5")
    a("v_lshl_add_u32 v5, v3, 5, v5")
    a("v_and_b32 v7, 1, v0")
    a("v_lshl_add_u32 v5, v7, 4, v5")
    a(f"v_lshl_add_u32 v16, s{sWAVE}, 7, v5")
    a(f"s_lshl_b32 s{sT0}, s{sCNT}, 7")
    a(f"s_mul_i32 s{sT3}, s{sWAVE}, {64 * 6144}")
    a(f"s_add_u32 s{sT0}, s{sT0}, s{sT3}")
    base(sBC, sWM, sT0, 2048)
    a(f"s_lshl_b32 s{sT4}, s{sCNT}, 9           ; p*512")
    a("v_mul_u32_u24 v13, 49152, v14")
    a("v_lshl_add_u32 v13, v15, 4, v13")
    a(f"s_movk_i32 s{sT3}, 6144")
    if OPT["clra"]:
        a("s_branch L_GB3")
    a(f"s_cmp_lg_u32 s{sWAVE}, 7")
    a("s_cbranch_scc1 L_GB3")
    a("s_waitcnt vmcnt(0)")
    make_tag(12)
    base(sBB, sWS, None, CF)
    a(f"v_lshlrev_b32_e64 v5, 7, s{sCNT}")
    a(f"v_mov_b32 v6, s{sTAG}")
    set_exec(1)
    a(f"global_store_dword v5, v6, {sp(sBB)} sc1")
    set_exec(-1)
    if OPT["late"] & 1:
        (h_trigger if OPT["late"] & 4 else q_trigger)("L_GBt")
    a("s_setprio 0")
    a.label("L_GB3")
    stamp(1)
    if OPT["bcoop"] and not OPT["gbh"]:
        a(f"s_and_b32 s{sT0}, s{sCNT}, 3")
        a(f"s_lshl2_add_u32 s{sT0}, s{sWAVE}, s{sT0}")
        a(f"s_mul_i32 s{sT0}, s{sT0}, {16 * 6144}")
        a(f"s_lshl_b32 s{sT1}, s{sG}, 9")
        a(f"s_add_u32 s{sT0}, s{sT0}, s{sT1}")
        a(f"s_add_u32 s{sT0}, s{sT0}, 2048")
        a("v_mul_u32_u24 v17, 6144, v1")
        a("v_lshl_add_u32 v17, v2, 7, v17")
        a(f"v_add_u32 v17, s{sT0}, v17")
        if OPT["bcoop"] == 2:
            a(f"s_cmp_ge_u32 s{sWAVE}, {OPT['nearly']}")
            a("s_cbranch_scc1 L_GBc")
            prefetch(17, sWM, delta=2 * 6144)
            a.label("L_GBc")
    if not OPT["clra"]:
        a("s_barrier")
    if OPT["vb"]:
        a(f"s_and_b32 s{sT2}, s{sCNT}, 3")
        v_help(4)
        a("s_barrier")
    if OPT["bcoop"]:
        if OPT["bcoop"] == 2:
            a(f"s_cmp_lt_u32 s{sWAVE}, {OPT['nearly']}")
            a("s_cbranch_scc1 L_GBd")
        if OPT["bh2"]:
            a(f"s_cmp_ge_u32 s{sWAVE}, 4")
            a("s_cbranch_scc1 L_GBd")
        prefetch(17, sWM, delta=2 * 6144)
        a.label("L_GBd")
        a("s_barrier")
    if OPT["b3"]:
        a(f"s_and_b32 s{sT0}, s{sCNT}, 3")
        a(f"s_lshl2_add_u32 s{sT1}, s{sWAVE}, s{sT0}")
        a(f"s_cmp_ge_u32 s{sT1}, 3")
        a("s_cbranch_scc1 L_GBe")
        a(f"s_add_u32 s{sT0}, s{sT0}, 5")
        a(f"v_lshl_add_u32 v17, s{sT0}, 6, v0")
        a("v_mul_u32_u24 v17, 6144, v17")
        a(f"s_lshl_b32 s{sT0}, s{sG}, 9")
        a(f"s_add_u32 s{sT0}, s{sT0}, {2048 + 384}")
        a(f"v_add_u32 v17, s{sT0}, v17")
        prefetch(17, sWM)
        a.label("L_GBe")
    a(f"global_load_dwordx4 v[8:11], v16, {sp(sC)}")
    for j in range(8):
        a(f"global_load_dwordx4 {vr(W + 4 * j, 4)}, v13, {sp(sBC)}{NT}")
        if j < 7:
            a(f"v_add_u32 v13, s{sT3}, v13")
    if OPT["gbe"]:
        assert OPT["gua"] <= 2 and not OPT["hp2"]
        base(sBB, sWS, None, CF)
        a("v_and_b32 v5, 31, v0")
        a("v_lshlrev_b32 v5, 7, v5")
        a(f"global_load_dword v100, v5, {sp(sBB)} sc1")
        a("s_barrier")
        gu_help(0, 32)
    ex = 2 if OPT["gbe"] else 0
    a(f"s_waitcnt vmcnt({8 + ex})")
    silu_frag()
    tile64_addr()
    perms8(W, F, waits=[6 + ex, 4 + ex, 2 + ex, ex])
    tile64_tail(0)
    a(f"s_cmp_lg_u32 s{sWAVE}, 7")
    a("s_cbranch_scc1 L_GB4")
    if OPT["clra"]:
        make_tag(12)
    if OPT["gbe"]:
        a("s_waitcnt vmcnt(1)")
        a(f"v_cmp_ne_u32 vcc, s{sTAG}, v100")
        a("s_cbranch_vccz L_GB4")
    cf_poll()
    a.label("L_GB4")
    a("s_waitcnt lgkmcnt(0)")
    stamp(2)
    a("s_barrier                      ; 1")
    a(f"s_cmp_ge_u32 s{sWAVE}, 2")
    a("s_cbranch_scc1 L_HB")
    tile64_sum()
    base(sBA, sWS, sT4, MODB)
    a("v_and_b32 v5, 2, v0")
    a("v_lshlrev_b32 v5, 7, v5")
    a("v_and_b32 v6, 32, v0")
    a("v_lshl_add_u32 v5, v6, 1, v5")
    a(f"v_lshl_add_u32 v5, s{sWAVE}, 7, v5")
    a("v_and_b32 v6, 13, v0")
    a("v_lshl_add_u32 v5, v6, 2, v5")
    a("v_bfe_u32 v6, v0, 4, 1")
    a("v_lshl_add_u32 v5, v6, 3, v5")
    a("s_waitcnt lgkmcnt(0)")
    sum8_b64(16)
    a("v_cvt_pk_bf16_f32 v12, v16, v17")
    a(f"global_store_dword v5, v12, {sp(sBA)} sc1")
    stamp(3)
    a("s_branch L_HB")


def sec_ln():
    HELP[0] = False
    CLS[0] = 3
    a.label("L_GQA2")
    if OPT["pfaw"] == 2:
        a("s_barrier")
    ids()
    stamp(1)
    a(f"s_cmp_lg_u32 s{sWAVE}, 7")
    a("s_cbranch_scc1 L_GQA3")
    a("s_waitcnt vmcnt(0)")
    make_tag(12)
    if OPT["split"]:
        a(f"s_bitcmp1_b32 s{sCNT}, 0")
        a("s_cbranch_scc1 L_LN1")
    unpack(16, 80, 16)
    a("v_pk_add_f32 v[8:9], v[16:17], v[18:19]")
    for i in range(2, 16):
        a(f"v_pk_add_f32 v[8:9], v[8:9], v[{16 + 2 * i}:{17 + 2 * i}]")
    a("v_add_f32 v8, v8, v9")
    row_allsum(8)
    a(f"v_mul_f32 v8, {INV512:#x}, v8       ; mean")
    a("v_mov_b32 v9, v8")
    for i in range(16):
        a(f"v_pk_add_f32 v[{16 + 2 * i}:{17 + 2 * i}], v[{16 + 2 * i}:{17 + 2 * i}], v[8:9] neg_lo:[0,1] neg_hi:[0,1]")
    a("v_pk_mul_f32 v[10:11], v[16:17], v[16:17]")
    for i in range(1, 16):
        a(f"v_pk_fma_f32 v[10:11], v[{16 + 2 * i}:{17 + 2 * i}], v[{16 + 2 * i}:{17 + 2 * i}], v[10:11]")
    a("v_add_f32 v10, v10, v11")
    row_allsum(10)
    a(f"v_mul_f32 v9, {INV512:#x}, v10      ; var")
    round_bf16([8, 9])
    a(f"v_add_f32 v9, {EPS:#x}, v9")
    round_bf16([9])
    a("v_sqrt_f32 v9, v9")
    round_bf16([9])
    a("v_rcp_f32 v9, v9")
    if OPT["split"]:
        unpack(10, 13, 1)
        a("v_sub_f32 v10, v10, v8")
        a("v_sub_f32 v11, v11, v8")
        round_bf16([10, 11])
        a("v_mul_f32 v10, v10, v9")
        a("v_mul_f32 v11, v11, v9")
        round_bf16([10, 11])
        a.label("L_LN1")
        a("v_lshlrev_b32 v5, 3, v0")
        a("v_lshlrev_b32 v14, 6, v3              ; b*64")
        a("v_and_b32 v8, 8, v7")
        a("v_lshl_add_u32 v14, v8, 5, v14        ; (n>>3)*256")
        a("v_and_b32 v8, 4, v7")
        a("v_lshl_add_u32 v14, v8, 3, v14        ; c'lo*32")
        a("v_and_b32 v8, 1, v7")
        a("v_lshl_add_u32 v14, v8, 4, v14        ; (d&1)*16")
        a("v_and_b32 v8, 2, v7")
        a("v_lshl_add_u32 v14, v8, 2, v14        ; (d>>1)*8")
        a(f"s_andn2_b32 s{sT0}, s{sCNT}, 1")
        a(f"s_lshl_b32 s{sT0}, s{sT0}, 8")
        a(f"s_and_b32 s{sT1}, s{sCNT}, 1")
        a(f"s_lshl_b32 s{sT1}, s{sT1}, 13")
        a(f"s_add_u32 s{sT0}, s{sT0}, s{sT1}")
        base(sBA, sWS, sT0, H1)
        a(f"v_mov_b32 v9, s{sTAG}")
        stamp(2)
        a(f"s_bitcmp1_b32 s{sCNT}, 0")
        a("s_barrier                      ; 1")
        a("ds_read2st64_b64 v[80:83], v5 offset0:0 offset1:1")
        a("ds_read2st64_b64 v[84:87], v5 offset0:2 offset1:3")
        a("s_waitcnt lgkmcnt(0)")
        a("v_pk_add_f32 v[80:81], v[80:81], v[82:83]")
        a("v_pk_add_f32 v[84:85], v[84:85], v[86:87]")
        a("v_pk_add_f32 v[80:81], v[80:81], v[84:85]")
        a("v_cvt_pk_bf16_f32 v8, v80, v81")
        a("s_cbranch_scc1 L_LN2")
        unpack(80, 8, 1)
        a("v_add_f32 v80, 1.0, v80")
        a("v_add_f32 v81, 1.0, v81")
        round_bf16([80, 81])
        a("v_pk_mul_f32 v[80:81], v[80:81], v[10:11]")
        a("v_cvt_pk_bf16_f32 v8, v80, v81")
        a.label("L_LN2")
        a(f"global_store_dwordx2 v14, v[8:9], {sp(sBA)} sc1")
    else:
        a("v_lshlrev_b32 v13, 16, v13")
        a("v_sub_f32 v13, v13, v8")
        round_bf16([13])
        a("v_mul_f32 v13, v13, v9")
        round_bf16([13])
        a("v_lshlrev_b32 v5, 7, v3")
        a("v_lshl_add_u32 v5, v7, 2, v5")
        a("v_add_u32 v10, 64, v5")
        a("v_lshlrev_b32 v14, 6, v3              ; b*64")
        a("v_and_b32 v8, 8, v7")
        a("v_lshl_add_u32 v14, v8, 2, v14        ; c'lo*32")
        a("v_and_b32 v8, 2, v7")
        a("v_lshl_add_u32 v14, v8, 3, v14        ; (d&1)*16")
        a("v_and_b32 v8, 4, v7")
        a("v_lshl_add_u32 v14, v8, 1, v14        ; (d>>1)*8")
        a(f"s_lshl_b32 s{sT0}, s{sCNT}, 8")
        base(sBA, sWS, sT0, H1)
        a(f"v_mov_b32 v9, s{sTAG}")
        stamp(2)
        a("s_barrier                      ; 1")
        a("ds_read2st64_b32 v[80:81], v5 offset0:0 offset1:2")
        a("ds_read2st64_b32 v[82:83], v5 offset0:4 offset1:6")
        a("ds_read2st64_b32 v[84:85], v10 offset0:0 offset1:2")
        a("ds_read2st64_b32 v[86:87], v10 offset0:4 offset1:6")
        a("s_waitcnt lgkmcnt(0)")
        a("v_pk_add_f32 v[80:81], v[80:81], v[82:83]")
        a("v_pk_add_f32 v[84:85], v[84:85], v[86:87]")
        a("v_add_f32 v80, v80, v81               ; sa")
        a("v_add_f32 v81, v84, v85               ; ca")
        round_bf16([80, 81])
        a("v_add_f32 v81, 1.0, v81")
        round_bf16([81])
        a("v_mul_f32 v81, v13, v81")
        round_bf16([81])
        a("v_add_f32 v80, v81, v80")
        a(f"v_mov_b32_dpp v81, v80 quad_perm:[1,1,3,3] {DPPM}")
        a("v_cvt_pk_bf16_f32 v8, v80, v81")
        set_exec(0x5555555555555555)
        a(f"global_store_dwordx2 v14, v[8:9], {sp(sBA)} sc1")
        set_exec(-1)
    stamp(3)
    if OPT["late"] & 2:
        (h_trigger if OPT["late"] & 4 else q_trigger)("L_GAt")
    if OPT["bhelp"]:
        a("s_barrier                      ; 1b")
    a("s_branch L_DOWN")
    a.label("L_GQA3")
    if OPT["hpull"]:
        a(f"global_load_dword v12, v4, {sp(sWS)} sc1      ; epoch")
        base(sBA, sWS, None, H1 + 4)
        a("v_lshlrev_b32 v5, 7, v0")
        a("s_waitcnt vmcnt(0)")
        make_tag(12)
    a("s_barrier                      ; 1")
    if OPT["bhelp"]:
        a("s_barrier                      ; 1b")
    if OPT["hpull"]:
        a(f"s_lshl_b32 s{sT0}, s{sM}, 3")
        a(f"s_add_u32 s{sT0}, s{sT0}, s{sWAVE}")
        a(f"s_cmp_lg_u32 s{sT0}, 12")
        a("s_cbranch_scc1 L_DOWN")
        a(f"s_movk_i32 s{sCNT}, 30")
        a.label("L_hp")
        a(f"global_load_dword v6, v5, {sp(sBA)} sc1")
        poll_mid()
        a(f"v_cmp_ne_u32 vcc, s{sTAG}, v6")
        poll_end("L_hp")
    a("s_branch L_DOWN")


def sec_gq():
    HELP[0] = False
    CLS[0] = 0
    a.label("L_GQ2")
    ids()
    stamp(1)
    a(f"s_lshl_b32 s{sT0}, s{sWAVE}, 10")
    base(sBA, sWS, sT0, H1)
    a(f"s_lshl_b32 s{sT0}, s{sWAVE}, 9")
    base(sBC, sWS, sT0, CF)
    a("v_lshlrev_b32 v5, 6, v1")
    a("v_and_b32 v7, 1, v0")
    a("v_lshl_add_u32 v5, v7, 5, v5")
    if OPT["split"]:
        a("v_and_b32 v7, 2, v0")
        a("v_lshl_add_u32 v5, v7, 12, v5")
    a("v_lshlrev_b32 v98, 7, v2")
    tile64_addr()
    a(f"s_lshl_b32 s{sT0}, s{sG}, 12")
    a(f"s_lshl_b32 s{sT1}, s{sM}, 6")
    a(f"s_add_u32 s{sT0}, s{sT0}, s{sT1}")
    a(f"s_and_b32 s{sT1}, s{sWAVE}, 1")
    a(f"s_lshl_b32 s{sT1}, s{sT1}, 11")
    a(f"s_add_u32 s{sT0}, s{sT0}, s{sT1}")
    a("v_and_b32 v97, 31, v0")
    a(f"v_lshl_add_u32 v97, v97, 2, s{sT0}")
    a("v_and_b32 v99, 32, v0")
    a("v_lshl_add_u32 v97, v99, 5, v97")
    a("v_lshlrev_b32 v99, 1, v97")
    base(sBB, sWS, None, QS)
    a.label("L_GQ3")
    if OPT["woe"]:
        a(f"s_cmp_lt_u32 s{sWAVE}, 4")
        a("s_cbranch_scc1 L_GQ4")
        a(f"s_lshl1_add_u32 s{sT0}, s{sM}, s{sWAVE}")
        a(f"s_lshl_b32 s{sT1}, s{sG}, 6")
        a(f"s_add_u32 s{sT0}, s{sT0}, s{sT1}")
        a(f"s_add_u32 s{sT0}, s{sT0}, 28")
        a(f"s_lshl_b32 s{sT0}, s{sT0}, 13")
        a(f"v_lshl_add_u32 v8, v0, 7, s{sT0}")
        prefetch(8, sWO, delta=1024)
        a.label("L_GQ4")
    a("s_waitcnt vmcnt(8)")
    make_tag(12)
    a(f"s_getreg_b32 s{sT0}, hwreg(HW_REG_XCC_ID, 0, 4)")
    a(f"s_xor_b32 s{sT0}, s{sTAG}, s{sT0}")
    a(f"v_mov_b32 v101, s{sT0}")
    if OPT["hearly"]:
        assert OPT["qtb"]
        if OPT["hearly"] > 1:
            a(f"s_waitcnt vmcnt({8 - 2 * (OPT['hearly'] - 1)})")
        a("s_barrier")
        a(f"global_load_dwordx4 v[8:11], v5, {sp(sBA)} sc1")
        a(f"global_load_dwordx4 v[12:15], v5, {sp(sBA)} offset:16 sc1")
        a(f"global_load_dword v84, v98, {sp(sBC)} sc1")
        if OPT["wq2"]:
            a("s_barrier")
            a(f"s_sub_u32 s{sT4}, 7, s{sWAVE}")
            a(f"s_cmp_ge_u32 s{sT4}, {OPT['wq2']}")
            a("s_cbranch_scc1 L_GQ7")
            a(f"s_lshr_b32 s{sT0}, s{sM}, 1")
            a(f"s_lshl3_add_u32 s{sT0}, s{sT4}, s{sT0}")
            a(f"s_lshl_b32 s{sT1}, s{sG}, 6")
            a(f"s_add_u32 s{sT0}, s{sT0}, s{sT1}")
            a(f"s_add_u32 s{sT0}, s{sT0}, {64 - 8 * OPT['wq2']}")
            a(f"s_lshl_b32 s{sT0}, s{sT0}, 13")
            a(f"v_lshl_add_u32 v102, v0, 7, s{sT0}")
            prefetch(102, sWO)
            a.label("L_GQ7")
        perms8(W, F, waits=[9, 7, 5, 3])
        stamp(4)
        a(f"s_mov_b32 s{sCNT}, {OPT['limit']}")
        if OPT["wq2"]:
            a(f"s_cmp_ge_u32 s{sT4}, {OPT['wq2']}")
            a("s_cbranch_scc1 L_GQ6")
            a(f"s_mov_b64 {sp(sMK)}, -1")
            a("s_waitcnt vmcnt(1)")
            a("s_branch L_GQ8")
        a("s_branch L_GQ6")
    else:
        perms8(W, F, waits=[6, 4, 2, 0])
        stamp(4)
    if OPT["h1m"] >= 2:
        a(f"s_lshl_b32 s{sT0}, s{sG}, 10")
        a(f"s_add_u32 s{sT0}, s{sT0}, {H1 + 4:#x}")
        a("v_and_b32 v9, 7, v0")
        a(f"v_lshl_add_u32 v9, v9, 7, s{sT0}")
        a(f"s_movk_i32 s{sCNT}, 40")
        a.label("L_GQh")
        a(f"global_load_dword v10, v9, {sp(sWS)} sc1")
        poll_mid()
        a(f"v_cmp_ne_u32 vcc, s{sTAG}, v10")
        poll_end("L_GQh")
        if OPT["h1m"] > 2:
            a(f"s_sleep {OPT['h1m'] - 2}")
    lab = poll_begin()
    a(f"global_load_dwordx4 v[8:11], v5, {sp(sBA)} sc1")
    a(f"global_load_dwordx4 v[12:15], v5, {sp(sBA)} offset:16 sc1")
    a(f"global_load_dword v84, v98, {sp(sBC)} sc1")
    if not OPT["qtb"]:
        a(f"global_load_dword v127, v97, {sp(sBB)} sc1")
    a.label("L_GQ6")
    poll_mid()
    a.label("L_GQ8")
    if OPT["split"]:
        pay = [8, 12, 10, 14]
        for i in range(4):
            a(f"v_lshlrev_b32 v{88 + 2 * i}, 16, v{pay[i]}")
            a(f"v_and_b32 v{89 + 2 * i}, 0xffff0000, v{pay[i]}")
        a(f"v_xor_b32 v80, s{sTAG}, v9")
        a(f"v_xor_b32 v81, s{sTAG}, v11")
        for i in range(8):
            a(f"v_add_f32_dpp v{88 + i}, v{88 + i}, v{88 + i} quad_perm:[2,3,0,1] {DPPM}")
        for i in range(4):
            a(f"v_cvt_pk_bf16_f32 v{8 + i}, v{88 + 2 * i}, v{89 + 2 * i}")
        a(f"v_xor_b32 v82, s{sTAG}, v13")
        a(f"v_xor_b32 v83, s{sTAG}, v15")
        interleave([mfma(ACC + 4 * e, 8, F + 4 * e) for e in range(2)],
                   [f"v_xor_b32 v84, s{sTAG}, v84", "v_or3_b32 v80, v80, v81, v82", "v_or3_b32 v80, v80, v83, v84", "v_cmp_ne_u32 vcc, 0, v80"], 2)
        poll_end(lab)
        tile64_tail(2)
    else:
        a(f"v_xor_b32 v80, s{sTAG}, v9")
        a(f"v_xor_b32 v81, s{sTAG}, v11")
        a("v_mov_b32 v9, v12")
        a("v_mov_b32 v11, v14")
        a(f"v_xor_b32 v82, s{sTAG}, v13")
        a(f"v_xor_b32 v83, s{sTAG}, v15")
        interleave([mfma(ACC + 4 * e, 8, F + 4 * e) for e in range(2)],
                   [f"v_xor_b32 v84, s{sTAG}, v84", "v_or3_b32 v80, v80, v81, v82", "v_or3_b32 v80, v80, v83, v84", "v_cmp_ne_u32 vcc, 0, v80"], 2)
        poll_end(lab)
        tile64_tail(2)
    a("s_waitcnt lgkmcnt(0)")
    stamp(5)
    a(f"s_cmp_ge_u32 s{sWAVE}, 2")
    a("s_barrier                      ; 1")
    a("s_cbranch_scc1 L_GQ5")
    tile64_sum()
    base(sBA, sWS, None, H2G)
    a("s_waitcnt lgkmcnt(0)")
    sum8_b64(16)
    a("v_cvt_pk_bf16_f32 v100, v16, v17")
    a(f"global_store_dword v97, v100, {sp(sBB)}")
    if OPT["qfast"] != 1:
        if not OPT["qfast"]:
            a("s_waitcnt vmcnt(0)")
        if NREP < 64:
            set_exec((1 << NREP) - 1)
        a(f"global_store_dword v96, v101, {sp(sWS)}")
        if NREP < 64:
            set_exec(-1)
    a(f"global_store_dwordx2 v99, v[100:101], {sp(sBA)} sc1")
    stamp(6)
    a("s_branch L_WO")
    a.label("L_GQ5")
    if OPT["qfast"] == 1:
        a(f"s_cmp_lg_u32 s{sWAVE}, 2")
        a("s_cbranch_scc1 L_WO")
        if NREP < 64:
            set_exec((1 << NREP) - 1)
        a(f"global_store_dword v96, v101, {sp(sWS)}")
        if NREP < 64:
            set_exec(-1)
    a("s_branch L_WO")


WD = 128


def down_loads():
    a(f"s_lshr_b32 s{sT2}, s{sM}, 1")
    a(f"s_lshl2_add_u32 s{sT0}, s{sG}, s{sT2}")
    a(f"s_lshl_b32 s{sT0}, s{sT0}, 5")
    a(f"s_lshl_b32 s{sT2}, s{sWAVE}, 18")
    a(f"s_add_u32 s{sT0}, s{sT0}, s{sT2}")
    base(sBB, sWD, sT0, 4096)
    a("v_lshlrev_b32 v6, 13, v1")
    a("v_lshl_add_u32 v6, v2, 3, v6")
    a("v_add_u32 v7, 0x20000, v6")
    for f in range(2):
        for j in range(8):
            a(f"global_load_dwordx2 {vr(WD + 16 * f + 2 * j, 2)}, v{7 if f else 6}, {sp(sBB)} offset:{1024 * j - 4096}{NTW}")


def v_help(wbase):
    a(f"s_lshl3_add_u32 s{sT0}, s{sT2}, s{sG}")
    a(f"s_lshl_b32 s{sT0}, s{sT0}, 4")
    a(f"s_lshr_b32 s{sT1}, s{sWAVE}, 1")
    a(f"s_add_u32 s{sT0}, s{sT0}, s{sT1}")
    a(f"s_and_b32 s{sT1}, s{sWAVE}, 1")
    a(f"s_add_u32 s{sT1}, s{sT1}, {wbase}")
    if OPT["ilv"]:
        a(f"s_lshl_b32 s{sT0}, s{sT0}, 6")
        a(f"s_add_u32 s{sT0}, s{sT0}, s{sT1}")
        a(f"s_lshl_b32 s{sT0}, s{sT0}, 10")
        a(f"s_add_u32 s{sT0}, s{sT0}, {3072 * 256}")
        a("v_lshrrev_b32 v9, 3, v0")
        a("v_and_b32 v10, 7, v0")
        a("v_lshlrev_b32 v9, 13, v9")
        a("v_lshl_add_u32 v9, v10, 7, v9")
        a(f"v_add_u32 v9, s{sT0}, v9")
    else:
        a(f"s_lshl_b32 s{sT0}, s{sT0}, 3")
        a(f"s_add_u32 s{sT0}, s{sT0}, s{sT1}")
        a(f"s_lshl_b32 s{sT0}, s{sT0}, 13")
        a(f"s_add_u32 s{sT0}, s{sT0}, {3072 * 256}")
        a(f"v_lshl_add_u32 v9, v0, 7, s{sT0}")
    prefetch(9, sV, delta=1024)


def gu_item():
    a(f"s_bitcmp0_b32 s{sT4}, 4")
    a(f"s_cselect_b64 s[0:1], {sp(sWU)}, {sp(sWG)}")
    a(f"s_and_b32 s{sT0}, s{sT4}, 15")
    a(f"s_lshl_b32 s{sT0}, s{sT0}, 1")
    a(f"s_cmp_lt_u32 s{sT4}, 32")
    a(f"s_addc_u32 s{sT0}, s{sT0}, 0")
    a(f"s_mul_i32 s{sT0}, s{sT0}, {16 * 3584}")
    a(f"s_mul_i32 s{sT4}, s{sG}, 448")
    a(f"s_andn2_b32 s{sT4}, s{sT4}, 127")
    a(f"s_add_u32 s{sT0}, s{sT0}, s{sT4}")
    a("v_mul_u32_u24 v13, 3584, v1")
    a("v_lshl_add_u32 v13, v2, 7, v13")
    a(f"v_add_u32 v13, s{sT0}, v13")
    prefetch(13, 0, True, 2 * 3584)


def gu_help(lo, hi):
    for first in range(lo, hi, 32):
        lab = uid("gh")
        a(f"s_bfe_u32 s{sT2}, s{sM}, 0x20001")
        a(f"s_sub_u32 s{sT2}, 3, s{sT2}")
        a(f"s_lshl3_add_u32 s{sT2}, s{sT2}, s{sWAVE}")
        if hi - first < 32:
            a(f"s_cmp_ge_u32 s{sT2}, {hi - first}")
            a(f"s_cbranch_scc1 {lab}")
        a(f"s_bitcmp0_b32 s{sT2}, 4")
        a(f"s_cselect_b64 {sp(sBA)}, {sp(sWU)}, {sp(sWG)}")
        a(f"s_and_b32 s{sT0}, s{sT2}, 15")
        a(f"s_lshl2_add_u32 s{sT0}, s{sT0}, {2 if first == 0 else 0}")
        a(f"s_mul_i32 s{sT0}, s{sT0}, {8 * 3584}")
        a(f"s_mul_i32 s{sT1}, s{sG}, 448")
        a(f"s_andn2_b32 s{sT1}, s{sT1}, 127")
        a(f"s_add_u32 s{sT0}, s{sT0}, s{sT1}")
        a("v_mul_u32_u24 v13, 3584, v1")
        a("v_lshl_add_u32 v13, v2, 7, v13")
        a(f"v_add_u32 v13, s{sT0}, v13")
        prefetch(13, sBA, True, 2 * 3584)
        a.label(lab)


def wo_pf(first, per):
    for r in range((per + 7) // 8):
        n = min(8, per - 8 * r)
        lab = uid("wp")
        if n < 8:
            a(f"s_cmp_ge_u32 s{sWAVE}, {n}")
            a(f"s_cbranch_scc1 {lab}")
        a(f"s_mul_i32 s{sT0}, s{sT2}, {per}")
        a(f"s_add_u32 s{sT0}, s{sT0}, s{sWAVE}")
        a(f"s_lshl_b32 s{sT4}, s{sG}, 6")
        a(f"s_add_u32 s{sT0}, s{sT0}, s{sT4}")
        a(f"s_add_u32 s{sT0}, s{sT0}, {first + 8 * r}")
        a(f"s_lshl_b32 s{sT0}, s{sT0}, 13")
        a(f"v_lshl_add_u32 v8, v0, 7, s{sT0}")
        prefetch(8, sWO, delta=1024)
        a.label(lab)


def sec_wo():
    HELP[0] = True
    CLS[0] = 0
    a.label("L_WO")
    a(f"s_lshr_b32 s{sT1}, s{sWAVE}, 1")
    if OPT["dma"]:
        a(f"s_lshl3_add_u32 s{sT0}, s{sG}, s{sWAVE}")
        a(f"s_lshl_b32 s{sT0}, s{sT0}, 10")
        a(f"s_add_u32 s{sT0}, s{sT0}, s{sM}")
        a(f"s_lshl_b32 s{sT0}, s{sT0}, 6")
        base(sBB, sWO, sT0, 4096)
        a("v_and_b32 v9, 15, v0")
        a("v_lshlrev_b32 v6, 13, v3")
        a("v_lshl_add_u32 v6, v9, 2, v6")
        a("v_add_u32 v11, 0x8000, v6")
    else:
        a(f"s_lshl2_add_u32 s{sT0}, s{sG}, s{sT1}")
        a(f"s_lshl_b32 s{sT0}, s{sT0}, 5")
        a(f"s_and_b32 s{sT2}, s{sWAVE}, 1")
        a(f"s_add_u32 s{sT0}, s{sT0}, s{sT2}")
        a(f"s_lshl_b32 s{sT0}, s{sT0}, 6            ; (512g + 128h + 4*(i&1)) * 16")
        a(f"s_add_u32 s{sT0}, s{sT0}, s{sM}")
        a(f"s_lshl_b32 s{sT0}, s{sT0}, 6")
        base(sBB, sWO, sT0)
        a("v_and_b32 v9, 15, v0")
        a("v_and_b32 v6, 1, v3")
        a("v_lshlrev_b32 v6, 16, v6")
        a("v_lshrrev_b32 v5, 1, v3")
        a("v_lshl_add_u32 v6, v5, 10, v6")
        a(f"v_lshl_add_u32 v6, v9, {3 if OPT['wod'] else 2}, v6")
    a(f"s_movk_i32 s{sT3}, 8192")
    a(f"s_lshl3_add_u32 s{sT0}, s{sG}, s{sWAVE}")
    a(f"s_lshl_b32 s{sT0}, s{sT0}, 11")
    base(sBA, sWS, sT0, H3O)
    a("v_lshlrev_b32 v5, 4, v0")
    a(f"s_lshr_b32 s{sT2}, s{sM}, 1")
    a("s_barrier")
    if OPT["touch"]:
        a(f"s_cmp_lg_u32 s{sWAVE}, s{sT2}")
        a("s_cbranch_scc1 L_WOt")
        a(f"global_load_dwordx4 v[64:67], v5, {sp(sBA)} sc1")
        a(f"global_load_dwordx4 v[68:71], v5, {sp(sBA)} offset:1024 sc1")
        a.label("L_WOt")
    rest = 64 - 4 * OPT["woa"] - 8 * OPT["wob"] - 8 * OPT["wq2"]
    assert rest >= 0 and rest % 8 == 0
    if OPT["woq"] and rest and not OPT["wod"]:
        wo_pf(4 * OPT["woa"], rest // 8)
    if OPT["guq"]:
        a(f"s_sub_u32 s{sT4}, 7, s{sWAVE}")
        a(f"s_cmp_ge_u32 s{sT4}, {OPT['guq']}")
        a("s_cbranch_scc1 L_WOu")
        a(f"s_lshl3_add_u32 s{sT4}, s{sT4}, s{sT2}")
        a(f"s_add_u32 s{sT4}, s{sT4}, 24")
        gu_item()
        a.label("L_WOu")
    for j in range(8):
        for ks in range(2):
            if OPT["wod"]:
                a(f"global_load_dwordx2 {vr(128 + 16 * ks + 2 * j, 2)}, v6, {sp(sBB)} offset:{2048 * ks} nt")
                continue
            for ch in range(2):
                if OPT["dma"]:
                    a(f"global_load_dword v{128 + 16 * ks + 8 * ch + j}, v{11 if ks else 6}, {sp(sBB)} offset:{1024 * j - 4096 + 64 * ch}{NTW}")
                else:
                    a(f"global_load_dword v{128 + 16 * ks + 8 * ch + j}, v6, {sp(sBB)} offset:{2048 * ks + 64 * ch}{NTW}")
        if j < 7 and not OPT["dma"]:
            a(f"v_add_u32 v6, s{sT3}, v6")
    a(f"s_lshl2_add_u32 s{sT0}, s{sG}, s{sT1}")
    a(f"s_lshl_b32 s{sT0}, s{sT0}, 7")
    base(sBC, sWS, sT0, H3ML)
    a("v_lshlrev_b32 v6, 5, v3")
    a("v_lshlrev_b32 v12, 8, v3")
    a(f"v_lshl_add_u32 v12, v9, {4 if OPT['wod'] else 3}, v12")
    a(f"v_lshl_add_u32 v12, s{sWAVE}, 10, v12")
    a(f"s_lshl4_add_u32 s{sT0}, s{sG}, s{sM}")
    a(f"s_lshl1_add_u32 s{sT0}, s{sT0}, s{sWAVE}")
    a(f"s_lshl_b32 s{sT0}, s{sT0}, 7")
    base(sBB, sWS, sT0, H4)
    a("v_and_b32 v13, 16, v0")
    a("v_lshlrev_b32 v13, 4, v13")
    a("v_and_b32 v10, 32, v0")
    a("v_lshl_add_u32 v13, v10, 1, v13")
    a("v_lshl_add_u32 v13, v9, 2, v13")
    if OPT["gatew"]:
        a(f"s_lshl4_add_u32 s{sT0}, s{sG}, s{sM}")
        a(f"s_lshl_b32 s{sT0}, s{sT0}, 6")
        a(f"s_add_u32 s{sT0}, s{sT0}, {GATE:#x}")
        a(f"v_mov_b32 v14, s{sT0}")
    if OPT["h4b"]:
        a(f"v_add_u32 v15, {H4B - H4:#x}, v13")
    a("s_waitcnt vmcnt(0)")
    stamp(7)
    if OPT["gate"] and OPT["gatew"]:
        a(f"s_cmp_lg_u32 s{sWAVE}, 7")
        a("s_cbranch_scc1 L_WOg")
        set_exec(1)
        a(f"global_store_dword v14, v4, {sp(sWS)} sc1")
        set_exec(-1)
        a.label("L_WOg")
    for ks in range(2):
        for ch in range(2):
            for eo in range(2):
                for x in range(4):
                    if OPT["wod"]:
                        src = 128 + 16 * ks + 4 * x + ch
                        a(f"v_perm_b32 v{32 + 16 * ks + 8 * ch + 4 * eo + x}, v{src + 2}, v{src}, s{sHI if eo else sLO}")
                        continue
                    src = 128 + 16 * ks + 8 * ch + 2 * x
                    a(f"v_perm_b32 v{32 + 16 * ks + 8 * ch + 4 * eo + x}, v{src + 1}, v{src}, s{sHI if eo else sLO}")
    lab = poll_begin()
    a(f"global_load_dwordx4 v[72:75], v6, {sp(sBC)} sc1")
    a(f"global_load_dwordx4 v[76:79], v6, {sp(sBC)} offset:16 sc1")
    poll_mid(sleep=OPT["mls"])
    for ins in sentinel_ops(range(72, 80), 8):
        a(ins)
    poll_end(lab)
    a(f"global_load_dwordx4 v[64:67], v5, {sp(sBA)} sc1")
    a(f"global_load_dwordx4 v[68:71], v5, {sp(sBA)} offset:1024 sc1")
    a("v_max3_f32 v8, v72, v74, v76")
    a("v_max_f32 v8, v8, v78")
    for s in range(4):
        a(f"v_sub_f32 v{72 + 2 * s}, v{72 + 2 * s}, v8")
    for s in range(4):
        a(f"v_exp_f32 v{72 + 2 * s}, v{72 + 2 * s}")
    a("v_mul_f32 v9, v72, v73")
    for s in range(1, 4):
        a(f"v_fmac_f32 v9, v{72 + 2 * s}, v{73 + 2 * s}")
    a("v_rcp_f32 v9, v9")
    for s in range(4):
        a(f"v_mul_f32 v{80 + s}, v{72 + 2 * s}, v9")
    stamp(8)
    a(f"s_mov_b32 s{sCNT}, {OPT['limit']}")
    a("s_branch L_WO2")
    a.label("L_WO1")
    a(f"global_load_dwordx4 v[64:67], v5, {sp(sBA)} sc1")
    a(f"global_load_dwordx4 v[68:71], v5, {sp(sBA)} offset:1024 sc1")
    a.label("L_WO2")
    if OPT["fin"]:
        chk = sentinel_ops(range(64, 72), 8)
        poll_mid("vmcnt(1)")
        interleave([mfma(16, 64, 32), mfma(20, 64, 36)], chk[:1], 1)
        a("s_waitcnt vmcnt(0)")
        interleave([mfma(16, 68, 48, 16), mfma(20, 68, 52, 20)], chk[1:], 2)
        poll_end("L_WO1")
        for ins in (mfma(24, 64, 40), mfma(28, 64, 44), mfma(24, 68, 56, 24), mfma(28, 68, 60, 28)):
            a(ins)
    else:
        poll_mid()
        interleave([mfma(16 + 4 * c, 64, 32 + 4 * c) for c in range(3)], sentinel_ops(range(64, 72), 8), 2)
        poll_end("L_WO1")
        a(mfma(28, 64, 44))
        for c in range(4):
            a(mfma(16 + 4 * c, 68, 48 + 4 * c, 16 + 4 * c))
    for ch in range(2):
        for c in (2 * ch, 2 * ch + 1):
            a(f"v_pk_mul_f32 v[{16 + 4 * c}:{17 + 4 * c}], v[{16 + 4 * c}:{17 + 4 * c}], v[80:81]")
            a(f"v_pk_fma_f32 v[{16 + 4 * c}:{17 + 4 * c}], v[{18 + 4 * c}:{19 + 4 * c}], v[82:83], v[{16 + 4 * c}:{17 + 4 * c}]")
        a(f"v_add_f32 v{84 + 2 * ch}, v{16 + 8 * ch}, v{17 + 8 * ch}")
        a(f"v_add_f32 v{85 + 2 * ch}, v{20 + 8 * ch}, v{21 + 8 * ch}")
        a(f"ds_write_b64 v12, v[{84 + 2 * ch}:{85 + 2 * ch}] offset:{(8 if OPT['wod'] else 128) * ch}")
    a("s_waitcnt lgkmcnt(0)")
    stamp(9)
    a("s_barrier                      ; 3")
    a(f"s_cmp_ge_u32 s{sWAVE}, 2")
    a("s_cbranch_scc1 L_WOe" if OPT["wbl"] else "s_cbranch_scc1 L_fin")
    tile64_sum()
    a("s_waitcnt lgkmcnt(0)")
    sum8_b64(16)
    a("v_cvt_pk_bf16_f32 v8, v16, v17")
    a(f"global_store_dword v13, v8, {sp(sBB)} sc1")
    if OPT["h4b"]:
        a(f"global_store_dword v15, v8, {sp(sBB)} sc1")
    stamp(10)
    a.label("L_fin")
    finish_wave()
    if OPT["wbl"]:
        a.label("L_WOe")
        a(f"s_lshl3_add_u32 s{sT0}, s{sM}, s{sWAVE}")
        a(f"s_cmp_lg_u32 s{sT0}, 2")
        a("s_cbranch_scc1 L_fin")
        if OPT["wbl"] > 1:
            a(f"s_sleep {OPT['wbl']}")
        a("buffer_wbl2 sc1")
        a("s_waitcnt vmcnt(0)")
        finish_wave()


def sec_down():
    HELP[0] = True
    CLS[0] = 0
    a.label("L_HB")
    a("s_barrier")
    a(f"s_bfe_u32 s{sT2}, s{sM}, 0x20001")
    rest = 64 - 4 * OPT["woa"]
    if not OPT["woq"] and rest:
        wo_pf(4 * OPT["woa"], rest // 4)
    if OPT["wob"]:
        a(f"s_cmp_lg_u32 s{sM}, 11")
        a("s_cbranch_scc1 L_HBo")
        a(f"s_mov_b32 s{sT2}, 0")
        wo_pf(56, 8)
        a.label("L_HBo")
    if OPT["guq"]:
        assert 16 * OPT["gua"] + 24 + 8 * OPT["guq"] == 64 and not OPT["gbe"]
        gu_help(0, 24)
    elif OPT["gua"] < 4:
        gu_help(32 if OPT["gbe"] else 0, 16 * (4 - OPT["gua"]))
    if OPT["wdh"]:
        a(f"s_bfe_u32 s{sT2}, s{sM}, 0x20001")
        a(f"s_cmp_eq_u32 s{sT2}, 0")
        a("s_cbranch_scc1 L_HBd")
        a(f"s_mul_i32 s{sT0}, s{sWAVE}, 3")
        a(f"s_add_u32 s{sT0}, s{sT0}, s{sT2}")
        a(f"s_add_u32 s{sT0}, s{sT0}, {4 * OPT['wdh'] - 1}")
        a(f"s_cmp_ge_u32 s{sT0}, 28")
        a("s_cbranch_scc1 L_HBd")
        a(f"s_lshl_b32 s{sT0}, s{sT0}, 9")
        a(f"s_add_u32 s{sT0}, s{sT0}, s{sG}")
        a(f"s_lshl_b32 s{sT0}, s{sT0}, 7")
        a(f"v_lshl_add_u32 v8, v0, 10, s{sT0}")
        a("s_waitcnt vmcnt(0)")
        prefetch(8, sWD, delta=8192)
        a.label("L_HBd")
    if OPT["xml"]:
        pass
    if OPT["gate"]:
        a(f"s_lshl3_add_u32 s{sT0}, s{sM}, s{sWAVE}")
        a(f"s_cmp_lg_u32 s{sT0}, {9 * 8 + 7}")
        a("s_cbranch_scc1 L_fin")
        if OPT["wo_w"]:
            a(f"s_lshl_b32 s{sT0}, s{sG}, 14")
            base(sBA, sWS, sT0, H3O + 15 * 256)
            a("v_and_b32 v5, 15, v0")
            a("v_lshlrev_b32 v5, 4, v5")
            a("v_lshl_add_u32 v5, v3, 12, v5")
        else:
            a(f"s_lshl_b32 s{sT0}, s{sG}, 9")
            base(sBA, sWS, sT0, H3ML)
            a("v_lshlrev_b32 v5, 3, v0")
        a(f"s_lshl_b32 s{sT0}, s{sG}, 7")
        base(sBB, sWS, sT0, GATE + 0x2000)
        a(f"s_movk_i32 s{sCNT}, 100")
        a.label("L_HBg")
        a(f"global_load_dword v6, v5, {sp(sBA)} sc1")
        poll_mid()
        a("v_cmp_eq_u32 vcc, -1, v6")
        poll_end("L_HBg")
        stamp(8)
        set_exec(1)
        a(f"global_store_dword v4, v4, {sp(sBB)} sc1")
    finish_wave()
    a.label("L_DOWN")
    a("s_setprio 0")
    a("s_barrier")
    a(f"s_lshr_b32 s{sT2}, s{sM}, 1")
    if OPT["vh"]:
        v_help(6)
    if OPT["bh2"]:
        a(f"s_cmp_lt_u32 s{sWAVE}, 4")
        a("s_cbranch_scc1 L_DNb")
        a(f"s_lshl2_add_u32 s{sT0}, s{sWAVE}, s{sT2}")
        a(f"s_mul_i32 s{sT0}, s{sT0}, {16 * 6144}")
        a(f"s_lshl_b32 s{sT1}, s{sG}, 9")
        a(f"s_add_u32 s{sT0}, s{sT0}, s{sT1}")
        a(f"s_add_u32 s{sT0}, s{sT0}, 2048")
        a("v_mul_u32_u24 v8, 6144, v1")
        a("v_lshl_add_u32 v8, v2, 7, v8")
        a(f"v_add_u32 v8, s{sT0}, v8")
        prefetch(8, sWM)
        a.label("L_DNb")
    if OPT["wod"]:
        a(f"s_cmp_ge_u32 s{sWAVE}, {OPT['wo3']}")
        a("s_cbranch_scc1 L_DN3")
        a(f"s_lshl2_add_u32 s{sT0}, s{sWAVE}, s{sT2}")
        a(f"s_sub_u32 s{sT0}, 7, s{sT0}")
        a(f"s_lshl3_add_u32 s{sT0}, s{sG}, s{sT0}")
        a(f"s_lshl_b32 s{sT0}, s{sT0}, 16")
        a(f"s_add_u32 s{sT0}, s{sT0}, 384")
        a(f"v_lshl_add_u32 v8, v0, 10, s{sT0}")
        prefetch(8, sWO)
        a.label("L_DN3")
        if OPT["woa"]:
            wo_pf(64 - 4 * OPT["woa"], OPT["woa"])
    else:
        wo_pf(0, OPT["woa"])
    if OPT["guh"]:
        a(f"s_sub_u32 s{sT4}, 7, s{sWAVE}")
        a(f"s_cmp_ge_u32 s{sT4}, {4 * OPT['guh']}")
        a("s_cbranch_scc1 L_DNu")
        a(f"s_lshl2_add_u32 s{sT4}, s{sT4}, s{sT2}")
        a(f"s_add_u32 s{sT4}, s{sT4}, {16 * (4 - OPT['gua'])}")
        gu_item()
        a.label("L_DNu")
    if OPT["wdl"]:
        a(f"s_cmp_lg_u32 s{sWAVE}, 7")
        a("s_cbranch_scc1 L_DNw")
        cf_poll()
        a(f"s_lshl_b32 s{sT0}, s{sG}, 9")
        base(sBA, sWS, sT0, H3ML)
        a("v_lshlrev_b32 v5, 3, v0")
        a(f"s_movk_i32 s{sCNT}, 60")
        a.label("L_DNg")
        a(f"global_load_dword v6, v5, {sp(sBA)} sc1")
        poll_mid(sleep=2)
        a("v_cmp_ne_u32 vcc, -1, v6")
        a("s_cmp_eq_u64 vcc, 0")
        a("s_cselect_b64 vcc, -1, 0")
        poll_end("L_DNg")
        a.label("L_DNw")
        a("s_barrier")
    a(f"s_cmp_eq_u32 s{sWAVE}, 7")
    a("s_cbranch_scc1 L_DN7")
    a(f"s_lshl2_add_u32 s{sT0}, s{sWAVE}, s{sT2}")
    a(f"s_lshl_b32 s{sT0}, s{sT0}, 9")
    a(f"s_add_u32 s{sT0}, s{sT0}, s{sG}")
    a(f"s_lshl_b32 s{sT0}, s{sT0}, 7")
    a(f"v_lshl_add_u32 v8, v0, 10, s{sT0}")
    if OPT["wdh"]:
        a(f"s_cmp_ge_u32 s{sWAVE}, {OPT['wdh']}")
        a("s_cbranch_scc1 L_DNr")
    a("s_waitcnt vmcnt(0)")
    prefetch(8, sWD, delta=8192)
    a.label("L_DNr")
    if OPT["wdh"]:
        a("s_waitcnt vmcnt(0)")
        a("s_barrier")
    a("s_waitcnt vmcnt(0)")
    down_loads()
    a(f"s_lshl_b32 s{sT0}, s{sWAVE}, 11")
    base(sBA, sWS, sT0, ACT)
    a("v_lshlrev_b32 v5, 4, v0")
    a("v_lshlrev_b32 v6, 7, v3")
    a("v_lshl_add_u32 v6, v2, 4, v6")
    a(f"v_lshl_add_u32 v6, s{sWAVE}, 9, v6")
    a("s_waitcnt vmcnt(0)")
    a("s_barrier")
    for f in range(2):
        for e in range(4):
            for x in range(4):
                a(f"v_perm_b32 v{48 + 16 * f + 4 * e + x}, v{WD + 16 * f + 2 * (2 * x + 1) + (e >> 1)}, "
                  f"v{WD + 16 * f + 2 * (2 * x) + (e >> 1)}, s{sHI if e & 1 else sLO}")
    stamp(11)
    a("s_barrier")
    lab = poll_begin()
    a(f"global_load_dwordx4 v[8:11], v5, {sp(sBA)} sc1")
    a(f"global_load_dwordx4 v[12:15], v5, {sp(sBA)} offset:1024 sc1")
    if OPT["t2"]:
        chk = sentinel_ops(range(8, 16), 7)
        poll_mid("vmcnt(1)")
        interleave([mfma(16 + 4 * e, 8, 48 + 4 * e) for e in range(4)], chk[:1], 1)
        a("s_waitcnt vmcnt(0)")
        interleave([mfma(16 + 4 * e, 12, 64 + 4 * e, 16 + 4 * e) for e in range(4)], chk[1:], 1)
        poll_end(lab)
        stamp(5)
        if OPT["stamps"] == 1:
            a(f"v_writelane_b32 v126, s{sCNT}, 6")
    else:
        poll_mid()
        interleave([mfma(16 + 4 * e, 8, 48 + 4 * e) for e in range(3)], sentinel_ops(range(8, 16), 7), 2)
        poll_end(lab)
        stamp(5)
        if OPT["stamps"] == 1:
            a(f"v_writelane_b32 v126, s{sCNT}, 6")
        a(mfma(28, 8, 60))
        for e in range(4):
            a(mfma(16 + 4 * e, 12, 64 + 4 * e, 16 + 4 * e))
    for e in range(4):
        for b0 in range(2):
            a(f"v_add_f32_dpp v{32 + 4 * b0 + e}, v{16 + 4 * e + 2 * b0 + 1}, v{16 + 4 * e + 2 * b0} row_shl:4 {DPPM}")
    set_exec(0x0F000F00000F000F)
    a("ds_write_b128 v6, v[32:35] offset:10240")
    a("ds_write_b128 v6, v[36:39] offset:10304")
    a("s_waitcnt lgkmcnt(0)")
    stamp(12)
    a("s_barrier                      ; 5")
    finish_wave()
    a.label("L_DN7")
    if OPT["wdh"]:
        a("s_barrier")
    a("s_barrier                      ; 3")
    if not OPT["wdl"]:
        cf_poll()
    if not OPT["xgate"]:
        a("s_barrier                      ; 4")
    a(f"s_lshr_b32 s{sT1}, s{sM}, 1")
    a(f"s_lshl2_add_u32 s{sT2}, s{sG}, s{sT1}       ; col0/16")
    a(f"s_lshl_b32 s{sT0}, s{sG}, 9")
    a(f"s_and_b32 s{sT3}, s{sT1}, 1")
    a(f"s_lshl_b32 s{sT3}, s{sT3}, 5")
    a(f"s_add_u32 s{sT0}, s{sT0}, s{sT3}")
    a(f"s_and_b32 s{sT3}, s{sT1}, 2")
    a(f"s_lshl2_add_u32 s{sT0}, s{sT3}, s{sT0}")
    base(sBB, sWS, sT0, MODB + 3 * 4096)
    a(f"s_lshl_b32 s{sT3}, s{sG}, 9")
    a(f"s_add_u32 s{sT0}, s{sT0}, s{sT3}")
    base(sBA, sWS, sT0, X1)
    a("v_and_b32 v7, 4, v0")
    a("v_lshlrev_b32 v5, 6, v7")
    a("v_lshl_add_u32 v5, v3, 6, v5")
    a("v_and_b32 v7, 10, v0")
    a("v_lshl_add_u32 v5, v7, 1, v5")
    a("v_and_b32 v7, 0x1c0, v5")
    a("v_add_u32 v12, v7, v5")
    if OPT["xw"] == 1:
        a("v_lshlrev_b32 v13, 7, v0")
        a(f"v_add_u32 v13, {X1:#x}, v13")
    a(f"s_lshl_b32 s{sT0}, s{sT2}, 5")
    base(sBC, sOUT, sT0)
    a("v_and_b32 v7, 15, v0")
    a("v_lshlrev_b32 v11, 10, v3")
    a("v_lshl_add_u32 v11, v7, 1, v11")
    if OPT["otch"]:
        a(f"global_load_ushort v127, v11, {sp(sBC)}")
    a("v_and_b32 v7, 1, v0")
    a("v_lshlrev_b32 v7, 4, v7")
    a("v_lshlrev_b32 v6, 2, v0")
    lab = poll_begin()
    a(f"global_load_dword v8, v12, {sp(sBA)} sc1")
    a(f"global_load_dword v9, v5, {sp(sBB)} sc1")
    if OPT["xw"] == 1:
        a(f"global_load_dword v14, v13, {sp(sWS)} sc1")
    poll_mid()
    for ins in sentinel_ops([8, 9, 14] if OPT["xw"] == 1 else [8, 9], 10):
        a(ins)
    poll_end(lab)
    if OPT["xgate"]:
        if OPT["xgate"] > 1:
            a(f"s_sleep {OPT['xgate'] - 1}")
        a("s_barrier                      ; 4")
    a("v_lshrrev_b32 v8, v7, v8")
    a("v_lshrrev_b32 v9, v7, v9")
    a("v_lshlrev_b32 v8, 16, v8              ; x1")
    a("v_lshlrev_b32 v9, 16, v9              ; gb")
    if OPT["epe"]:
        a("s_cmp_lg_u32 s2, 8")
        a("s_cbranch_scc1 L_DNe")
        a(f"v_mov_b32 v10, s{sTAG}")
        set_exec(1)
        a(f"global_store_dword v4, v10, {sp(sWS)} sc1")
        set_exec(-1)
        a.label("L_DNe")
    stamp(9)
    a("s_barrier                      ; 5")
    for t in range(7):
        a(f"ds_read2st64_b32 v[{16 + 2 * t}:{17 + 2 * t}], v6 offset0:{40 + 2 * t} offset1:{41 + 2 * t}")
    a("s_waitcnt lgkmcnt(3)")
    a("v_pk_add_f32 v[16:17], v[16:17], v[18:19]")
    a("v_pk_add_f32 v[20:21], v[20:21], v[22:23]")
    a("v_pk_add_f32 v[16:17], v[16:17], v[20:21]")
    a("s_waitcnt lgkmcnt(0)")
    a("v_pk_add_f32 v[24:25], v[24:25], v[26:27]")
    a("v_pk_add_f32 v[16:17], v[16:17], v[28:29]")
    a("v_pk_add_f32 v[16:17], v[16:17], v[24:25]")
    a("v_add_f32 v16, v16, v17")
    a("v_fma_f32 v16, v9, v16, v8")
    a("v_cvt_pk_bf16_f32 v16, v16, v16")
    a(f"global_store_short v11, v16, {sp(sBC)}" + ("", " sc1", " nt", " sc0 sc1")[OPT["outp"]])
    stamp(13)
    if not OPT["epe"]:
        a("s_cmp_lg_u32 s2, 8")
        a("s_cbranch_scc1 L_fin")
        a(f"v_mov_b32 v8, s{sTAG}")
        set_exec(1)
        a(f"global_store_dword v4, v8, {sp(sWS)} sc1")
    finish_wave()


def sec_att():
    HELP[0] = False
    a_regs(True)
    CLS[0] = 1
    a.label("L_A2")
    ids()
    if not OPT["vlate"]:
        stamp(1)
    a(f"s_lshl_b32 s{sT0}, s{sWAVE}, 13")
    a(f"s_add_u32 s{sT0}, s{sT0}, {LK}")
    a("v_and_b32 v8, 15, v0")
    if not OPT["dma"]:
        a("v_lshlrev_b32 v9, 2, v3")
        a("v_xor_b32 v9, v9, v8")
        a(f"v_lshl_add_u32 v10, v3, 8, s{sT0}")
        for x in range(4):
            a(f"v_xor_b32 v11, {x}, v9")
            a(f"v_lshl_add_u32 v{104 + x}, v11, 4, v10")
    a("v_lshl_add_u32 v10, v2, 2, v5         ; key = 4*(m&3) + (m>>2)")
    a(f"v_lshl_add_u32 v10, v10, 8, s{sT0}")
    a("v_xor_b32 v9, v3, v8")
    for ks in range(4):
        a(f"v_xor_b32 v11, {4 * ks}, v9")
        a(f"v_lshl_add_u32 v{108 + ks}, v11, 4, v10")
    a(f"v_mul_u32_u24 v6, {QST}, v5")
    a("v_lshl_add_u32 v6, v3, 4, v6")
    a(f"s_mul_i32 s{sT0}, s{sWAVE}, 2560")
    a("v_mul_u32_u24 v7, 576, v5")
    a(f"v_lshl_add_u32 v7, v2, {4 if OPT['bank'] else 6}, v7")
    a(f"v_lshl_add_u32 v7, v3, {6 if OPT['bank'] else 4}, v7")
    a(f"v_add_u32 v7, s{sT0}, v7")
    a("v_lshlrev_b32 v5, 5, v5               ; h*32")
    a(f"v_lshl_add_u32 v120, s{sWAVE}, 2, v5     ; h*32 + wave*4")
    a(f"v_add_u32 v120, {LM}, v120")
    a("v_lshlrev_b32 v124, 4, v0")
    a("v_add_u32 v125, 0x1000, v124")
    a(f"s_lshl2_add_u32 s{sT0}, s{sG}, s{sWAVE}")
    a(f"s_lshl_b32 s{sT0}, s{sT0}, 8")
    a(f"s_add_u32 s{sT0}, s{sT0}, s{sM}")
    a(f"s_lshl_b32 s{sT0}, s{sT0}, 4")
    base(sBA, sWS, sT0, H3O)
    if OPT["bank"]:
        a("v_and_b32 v121, 32, v0")
        a("v_lshlrev_b32 v121, 6, v121")
        a("v_and_b32 v122, 6, v0")
        a("v_lshl_add_u32 v121, v122, 8, v121")
        a("v_and_b32 v122, 16, v0")
        a("v_lshl_add_u32 v121, v122, 4, v121")
        a("v_and_b32 v122, 8, v0")
        a("v_add_u32 v121, v122, v121")
        a("v_and_b32 v122, 1, v0")
        a("v_lshl_add_u32 v121, v122, 2, v121")
    else:
        a("v_lshlrev_b32 v121, 8, v1")
        a("v_lshl_add_u32 v121, v2, 2, v121")
    a(f"s_mul_i32 s{sT0}, s{sWAVE}, 576")
    a(f"v_lshl_add_u32 v122, v0, 3, s{sT0}")
    a(f"s_and_b32 s{sT4}, s{sWAVE}, 3")
    a(f"s_lshl_b32 s{sT0}, s{sT4}, 8")
    base(sBB, sX, sT0)
    a(f"s_lshl_b32 s{sT0}, s{sT4}, 10")
    base(sBC, sWS, sT0, MODB + 4096)
    a("v_lshrrev_b32 v119, 1, v3")
    a("v_lshlrev_b32 v119, 7, v119")
    a("v_and_b32 v14, 1, v3")
    a("v_lshl_add_u32 v119, v14, 3, v119")
    a("v_lshl_add_u32 v119, v2, 4, v119")
    a("v_lshl_add_u32 v119, v5, 5, v119        ; x offset: b*1024 + (G>>1)*128 + c*16 + (G&1)*8")
    for y in range(4):
        a(f"v_cmp_ne_u32 s[{20 + 2 * y}:{21 + 2 * y}], {y}, v2")
    a("v_mov_b32 v123, 0")
    gu_addr()
    a("v_lshlrev_b32 v184, 2, v0")
    a(f"v_add_u32 v184, {LM}, v184")
    a("v_lshlrev_b32 v185, 4, v0")
    a(f"s_lshl_b32 s{sT0}, s{sG}, 6")
    a(f"s_add_u32 s{sT0}, s{sT0}, s{sM}")
    a(f"s_lshl_b32 s{sT0}, s{sT0}, 3")
    a(f"s_add_u32 s{sT0}, s{sT0}, {H3ML:#x}")
    a(f"v_add_u32 v185, s{sT0}, v185")
    if OPT["pfgl"]:
        a(f"s_and_b32 s{sT0}, s{sWAVE}, 2")
        a(f"s_lshl2_add_u32 s{sT0}, s{sM}, s{sT0}")
        a(f"s_mul_i32 s{sT0}, s{sT0}, {8 * 3584}")
        a(f"s_mul_i32 s{sT1}, s{sG}, 448")
        a(f"s_andn2_b32 s{sT1}, s{sT1}, 127")
        a(f"s_add_u32 s{sT0}, s{sT0}, s{sT1}")
        a("v_mul_u32_u24 v118, 3584, v1")
        a("v_lshl_add_u32 v118, v2, 7, v118")
        a(f"v_add_u32 v118, s{sT0}, v118")
    warm({4: ["L_s0"], 5: ["L_s1"], 6: ["L_s2"], 7: ["L_s3"], **({3: ["L_s4"]} if OPT["warm"] > 1 else {})})
    if OPT["dma"]:
        a("v_and_b32 v8, 15, v0")
        a("v_and_b32 v9, 1, v3")
        a("v_lshlrev_b32 v10, 1, v9")
        a("v_xor_b32 v8, v10, v8")
        a("v_lshlrev_b32 v8, 4, v8")
        a("v_lshl_add_u32 v48, v3, 8, v8")
        for x in range(1, 4):
            a(f"v_xor_b32 v{48 + x}, {64 * x}, v48")
        a(f"s_lshl_b32 s{sT0}, s{sWAVE}, 13")
        a(f"s_add_u32 s{sT0}, s{sT0}, {LVV}")
        a("v_and_b32 v8, 3, v1")
        a("v_lshl_add_u32 v10, v8, 2, v3")
        a(f"v_lshl_add_u32 v10, v10, 8, s{sT0}")
        a("v_lshl_add_u32 v9, v8, 1, v9")
        a("v_lshl_add_u32 v10, v9, 5, v10")
        a("v_lshl_add_u32 v56, v2, 3, v10")
        for e in range(1, 8):
            a(f"v_xor_b32 v{56 + e}, {32 * e}, v56")
        a(f"s_mov_b32 m0, s{sT0}")
        for u in range(8):
            if u == 4:
                a("s_add_u32 m0, m0, 4096")
                a("s_add_u32 s34, s34, 4096")
                a("s_addc_u32 s35, s35, 0")
            a(f"global_load_lds_dwordx4 v{48 + (u & 3)}, s[34:35] offset:{1024 * (u & 3)}{NT}")
        if OPT["stamps"]:
            a("s_mov_b32 m0, 0")
        stamp(1)
    elif OPT["vlate"] and OPT["ilv"]:
        assert OPT["afirst"]
        a("v_mov_b32 v13, v124")
        for u in range(8):
            if OPT["vthr"] and u < 4:
                a(f"s_waitcnt vmcnt({OPT['vthr'] - 1})")
            a(f"global_load_dwordx4 {vr(VR + 4 * u, 4)}, v13, s[34:35]{NT}")
            if u < 7:
                a(f"v_add_u32 v13, s{sT3}, v13")
        stamp(1)
    elif OPT["vlate"]:
        for u in range(8):
            a(f"global_load_dwordx4 {vr(VR + 4 * u, 4)}, v124, s[34:35] offset:{1024 * u - 4096}{NT}")
        stamp(1)
    if OPT["kstage"]:
        a(f"s_cmp_lt_u32 s{sWAVE}, 4")
        a("s_cbranch_scc1 L_A2k")
        a("s_waitcnt vmcnt(0)")
        a.label("L_A2k")
    if OPT["dma"]:
        for t in range(2):
            a(f"s_waitcnt vmcnt({12 - 4 * t})")
            for ks in range(4):
                a(f"ds_read_b128 {vr(KR + 16 * t + 4 * ks, 4)}, v{108 + ks} offset:{4096 * t}")
    else:
        for u in range(8):
            a(f"s_waitcnt vmcnt({max(15 - u, 9) if False else 15 - u})")
            a(f"ds_write_b128 v{104 + (u & 3)}, {vr(KR + 4 * u, 4)} offset:{1024 * u}")
        a("s_waitcnt lgkmcnt(0)")
        for t in range(2):
            for ks in range(4):
                a(f"ds_read_b128 {vr(KR + 16 * t + 4 * ks, 4)}, v{108 + ks} offset:{4096 * t}")
    stamp(2)
    a(f"s_cmp_lt_u32 s{sWAVE}, 4")
    a("s_cbranch_scc1 L_A2b")
    if OPT["kstage"]:
        for u in range(8):
            a(f"global_load_dwordx4 {vr(VR + 4 * u, 4)}, v124, s[34:35] offset:{1024 * u - 4096}{NT}")
        stamp(1)
    if not OPT["xml"] and OPT["pfb"] != 2:
        a(f"global_load_dwordx2 v[128:129], v119, {sp(sBB)}")
        a(f"global_load_dwordx2 v[130:131], v119, {sp(sBB)} offset:64")
    if OPT["pfgw"]:
        if OPT["gua"] < 4:
            a(f"s_cmp_ge_u32 s{sWAVE}, {4 + OPT['gua'] - OPT['guh']}")
            a("s_cbranch_scc1 L_A3" if OPT["pfb"] else "s_cselect_b64 exec, 1, -1")
        a(f"s_bitcmp1_b32 s{sWAVE}, 0")
        a(f"s_cselect_b64 s[0:1], {sp(sWU)}, {sp(sWG)}")
        a(f"s_and_b32 s{sT0}, s{sWAVE}, 2")
        a(f"s_lshl2_add_u32 s{sT0}, s{sM}, s{sT0}")
        a(f"s_mul_i32 s{sT0}, s{sT0}, {8 * 3584}")
        a(f"s_mul_i32 s{sT1}, s{sG}, 448")
        a(f"s_andn2_b32 s{sT1}, s{sT1}, 127")
        a(f"s_add_u32 s{sT0}, s{sT0}, s{sT1}")
        a("v_mul_u32_u24 v13, 3584, v1")
        a("v_lshl_add_u32 v13, v2, 7, v13")
        a(f"v_add_u32 v13, s{sT0}, v13")
        prefetch(13, 0, True, 2 * 3584)
        set_exec(-1)
    if OPT["vfirst"]:
        ex = 2 + NPF * OPT["pfgw"]
        perms8(VR, VT, waits=[6 + ex, 4 + ex, 2 + ex, ex])
        stamp(7)
    a("s_branch L_A3")
    a.label("L_A2b")
    make_tag(12)
    if not OPT["kfirst"] or OPT["vfirst"]:
        perms8(VR, VT, waits=[6, 4, 2, 0])
    a("s_waitcnt lgkmcnt(0)")
    a(f"s_getreg_b32 s{sT0}, hwreg(HW_REG_XCC_ID, 0, 4)")
    a(f"s_xor_b32 s56, s{sTAG}, s{sT0}")
    a("s_mov_b32 s57, s56")
    a(f"s_lshl2_add_u32 s{sT0}, s{sG}, s{sWAVE}")
    a(f"s_mul_i32 s{sT0}, s{sT0}, {NREP * 128}")
    base(32, sWS, sT0, FL)
    a(f"s_lshr_b32 s{sT0}, s{sM}, 2")
    a(f"s_lshl2_add_u32 s{sT0}, s{sG}, s{sT0}")
    a(f"s_lshl2_add_u32 s{sT0}, s{sT0}, s{sWAVE}")
    a(f"s_lshl_b32 s{sT0}, s{sT0}, 8")
    base(0, sWS, sT0, QS)
    a(f"s_mul_i32 s{sT0}, s{sWAVE}, {QST}")
    a(f"v_lshl_add_u32 v112, v0, 2, s{sT0}")
    a(f"v_lshlrev_b32_e64 v113, 2, s{sWAVE}")
    a(f"v_lshl_add_u32 v117, v0, 4, s{sT0}")
    a("s_setprio 2")
    a(f"s_mov_b32 s{sCNT}, 0")
    a.label("L_Aq")
    a(f"s_load_dwordx{2 if OPT['qfast'] == 1 else 4} s[48:{49 if OPT['qfast'] == 1 else 51}], s[32:33], s{sCNT}")
    a(f"s_add_u32 s{sCNT}, s{sCNT}, 128")
    a("s_waitcnt lgkmcnt(0)")
    a("s_xor_b64 s[48:49], s[48:49], s[56:57]")
    if OPT["qfast"] != 1:
        a("s_xor_b64 s[50:51], s[50:51], s[56:57]")
        a("s_or_b64 s[48:49], s[48:49], s[50:51]")
    a("s_cbranch_scc0 L_Aq_ok")
    if OPT["qsleep"]:
        a(f"s_sleep {OPT['qsleep']}")
    a(f"s_cmp_lt_u32 s{sCNT}, {NREP * 128}")
    a("s_cbranch_scc1 L_Aq")
    a.label("L_Aq_fb")
    set_exec(-1)
    a(f"s_getreg_b32 s{sT0}, hwreg(HW_REG_XCC_ID, 0, 4)")
    a(f"s_xor_b32 s56, s{sTAG}, s{sT0}")
    a(f"s_lshr_b32 s{sT0}, s{sM}, 2")
    a(f"s_lshl2_add_u32 s{sT0}, s{sG}, s{sT0}")
    a(f"s_lshl2_add_u32 s{sT0}, s{sT0}, s{sWAVE}")
    a(f"s_lshl_b32 s{sT0}, s{sT0}, 9")
    base(32, sWS, sT0, H2G)
    a("v_lshlrev_b32 v10, 3, v0")
    lab = poll_begin()
    a(f"global_load_dwordx2 v[8:9], v10, s[32:33] sc1")
    poll_mid()
    a("v_xor_b32 v9, s56, v9")
    a("v_cmp_lt_u32 vcc, 15, v9")
    poll_end(lab)
    a("v_cmp_ne_u32 vcc, 0, v9")
    a("s_cmp_lg_u64 vcc, 0")
    a(f"s_cselect_b32 s{sT0}, 2, 1")
    a(f"v_mov_b32 v9, s{sT0}")
    a(f"ds_write_b32 v112, v8 offset:{LQ}")
    if OPT["probe"] == 3:
        a("v_mov_b32 v210, 1")
    a("s_branch L_Aq_st")
    a.label("L_Aq_ok")
    for t in range(4):
        a(f"s_load_dwordx16 s[{sQ + 16 * t}:{sQ + 16 * t + 15}], s[0:1], {64 * t}")
    a("v_mov_b32 v9, 1")
    if OPT["stamps"] == 1:
        a("v_writelane_b32 v126, s100, m0")
        a("s_mov_b32 m0, 12")
        a("s_memrealtime s[100:101]")
    a("s_waitcnt lgkmcnt(0)")
    if OPT["stamps"] == 1:
        stamp(13)
    if OPT["qmv"] == 0:
        for i in range(64):
            a(f"v_writelane_b32 v{80 + (i & 3)}, s{sQ + i}, {i >> 2}")
        set_exec(0xFFFF)
        a(f"ds_write_b128 v117, v[80:83] offset:{LQ}")
        if OPT["qfast"]:
            for ins in sentinel_ops(range(80, 84), 10):
                a(ins)
            a("s_cbranch_vccnz L_Aq_fb")
    else:
        set_exec(1)
        for i in range(16):
            a(f"v_mov_b64 v[{48 + 4 * i}:{49 + 4 * i}], s[{sQ + 4 * i}:{sQ + 4 * i + 1}]")
            a(f"v_mov_b64 v[{50 + 4 * i}:{51 + 4 * i}], s[{sQ + 4 * i + 2}:{sQ + 4 * i + 3}]")
            a(f"ds_write_b128 v112, {vr(48 + 4 * i, 4)} offset:{LQ + 16 * i}")
    set_exec(-1)
    a.label("L_Aq_st")
    a(f"ds_write_b32 v113, v9 offset:{LQF}")
    a("s_setprio 0")
    a.label("L_A3")
    a(f"s_mov_b32 s{sT0}, {LOG2E:#x}")
    a("s_waitcnt lgkmcnt(0)")
    a("s_barrier")
    for ks in range(4):
        a(f"ds_read_b128 {vr(88 + 4 * ks, 4)}, v6 offset:{LQ + 64 * ks}")
    a(f"ds_read_b128 v[12:15], v4 offset:{LQF}")
    if OPT["stamps"] == 1:
        a("v_writelane_b32 v126, s100, m0")
        a("s_mov_b32 m0, 3")
        a("s_memrealtime s[100:101]")
    loc = ["v_or3_b32 v12, v12, v13, v14", "v_or_b32 v12, v12, v15", "v_lshrrev_b32 v12, 1, v12", "s_nop 0",
           f"v_readfirstlane_b32 s{sLOCAL}, v12"]
    for ks in range(4):
        a(f"s_waitcnt lgkmcnt({0 if OPT['stamps'] == 1 or ks == 3 else 4 - ks})")
        for t in range(2):
            a(mfma(80 + 4 * t, KR + 16 * t + 4 * ks, 88 + 4 * ks, None if ks == 0 else 80 + 4 * t))
    for ins in loc:
        a(ins)
    if OPT["pfgl"] == 2:
        a(f"s_cmp_ge_u32 s{sWAVE}, 4")
        a("s_cbranch_scc1 L_A4")
        a(f"s_bitcmp1_b32 s{sWAVE}, 0")
        a(f"s_cselect_b64 s[0:1], {sp(sWU)}, {sp(sWG)}")
        prefetch(118, 0, True, 2 * 3584)
        a.label("L_A4")
    a("v_max3_f32 v12, v80, v81, v82")
    a("v_cndmask_b32 v112, v82, v80, s[22:23]")
    a("v_max3_f32 v13, v83, v84, v85")
    a("v_cndmask_b32 v113, v83, v81, s[22:23]")
    a("v_max3_f32 v12, v12, v86, v87")
    a("v_cndmask_b32 v112, v84, v112, s[24:25]")
    a("v_max_f32 v12, v12, v13")
    a("v_mov_b32 v13, v12")
    a("v_cndmask_b32 v113, v85, v113, s[24:25]")
    a("v_cndmask_b32 v112, v86, v112, s[26:27]")
    a("v_permlane16_swap_b32 v13, v12")
    a("v_cndmask_b32 v113, v87, v113, s[26:27]")
    a("v_max_f32 v12, v12, v13")
    a("v_mov_b32 v13, v12")
    a("v_cvt_pk_bf16_f32 v113, v112, v113")
    a("v_lshlrev_b32 v112, 16, v113")
    a("v_permlane32_swap_b32 v13, v12")
    a("v_and_b32 v113, 0xffff0000, v113")
    a("v_max_f32 v12, v12, v13")
    a(f"v_mul_f32 v112, {SCALE:#x}, v112")
    a("v_cvt_pk_bf16_f32 v12, v123, v12")
    a(f"v_mul_f32 v113, {SCALE:#x}, v113")
    a(f"v_mul_f32 v12, {SCALE:#x}, v12")
    a("v_cvt_pk_bf16_f32 v113, v112, v113")
    a("v_cvt_pk_bf16_f32 v12, v123, v12")
    a("v_lshlrev_b32 v112, 16, v113")
    a(f"v_mul_f32 v12, {LOG2E:#x}, v12")
    a("v_and_b32 v113, 0xffff0000, v113")
    a(f"v_fma_f32 v112, v112, s{sT0}, -v12")
    a(f"v_fma_f32 v113, v113, s{sT0}, -v12")
    a("v_exp_f32 v112, v112")
    a("v_exp_f32 v113, v113")
    a("s_mov_b64 vcc, s[20:21]")
    a("v_add_f32 v13, v112, v113")
    a("v_cvt_pk_bf16_f32 v8, v112, v113")
    PY = 88
    red = [f"v_add_f32_dpp v13, v13, v13 quad_perm:[1,0,3,2] {DPPM}",
           f"v_add_f32_dpp v13, v13, v13 quad_perm:[2,3,0,1] {DPPM}",
           "v_mov_b32 v14, v13", "v_permlane16_swap_b32 v14, v13", "v_add_f32 v13, v13, v14",
           "v_mov_b32 v14, v13", "v_permlane32_swap_b32 v14, v13", "v_add_f32 v13, v13, v14"]
    for y in range(4):
        if y:
            a(f"s_mov_b64 vcc, s[{20 + 2 * y}:{21 + 2 * y}]")
        for x in range(4):
            if x % 2 == 0:
                a(red[2 * y + x // 2])
            a(f"v_cndmask_b32_dpp v{PY + 4 * y + x}, v8, v123, vcc quad_perm:[{x},{x},{x},{x}] {DPPM}")
    set_exec(0x1111)
    a(f"ds_write2_b32 v120, v12, v13 offset0:0 offset1:32")
    set_exec(-1)
    if OPT["warm"] > 1:
        stub("L_s4", True)
    a("s_waitcnt lgkmcnt(0)")
    a("s_barrier")
    stamp(4)
    a(f"ds_read_b128 v[104:107], v5 offset:{LM}")
    a(f"ds_read_b128 v[108:111], v5 offset:{LM + 16}")
    if OPT["mls2"]:
        a("ds_read2_b32 v[186:187], v184 offset0:0 offset1:32")
    a(f"s_cmp_lt_u32 s{sWAVE}, 4")
    if OPT["pfb"] == 1:
        pass
    elif OPT["kfirst"] and not OPT["vfirst"]:
        a("s_cbranch_scc0 L_A5")
        a(f"s_waitcnt vmcnt({NPF if OPT['pfgl'] == 2 else 0})")
        if OPT["pfgl"] == 3:
            a(f"s_bitcmp1_b32 s{sWAVE}, 0")
            a(f"s_cselect_b64 s[0:1], {sp(sWU)}, {sp(sWG)}")
            prefetch(118, 0, True, 2 * 3584)

        a("s_branch L_A5b")
        a.label("L_A5")
    else:
        a("s_cbranch_scc1 L_A6")
    if OPT["pfb"] == 2:
        a(f"global_load_dwordx2 v[128:129], v119, {sp(sBB)}")
        a(f"global_load_dwordx2 v[130:131], v119, {sp(sBB)} offset:64")
    if not OPT["xml"]:
        modb_loads()
    for half in range(OPT["gue"]):
        gu_loads(half)
    a.label("L_A5b")
    ex = (0 if OPT["xml"] else 5) + NPF * OPT["pfgw"] + 4 * OPT["gue"]
    if OPT["pfb"]:
        a(f"s_sub_u32 s{sT2}, s{sWAVE}, 4")
        a(f"s_cmp_lt_u32 s{sT2}, {OPT['gua'] - OPT['guh']}")
        e5 = 5 if OPT["pfb"] == 2 else 0
        if OPT["dma"]:
            a("s_cbranch_scc1 L_A5w")
            a(f"s_waitcnt vmcnt({e5})")
            a.label("L_A5w")
            a(f"s_waitcnt vmcnt({e5 + 1}) lgkmcnt(0)")
            stamp(7)
            for e in range(6):
                a(f"ds_read_b64_tr_b16 v[{VT + 4 * e}:{VT + 4 * e + 1}], v{56 + e}")
                a(f"ds_read_b64_tr_b16 v[{VT + 4 * e + 2}:{VT + 4 * e + 3}], v{56 + e} offset:4096")
        else:
            perms8(VR, VT, waits=[6 + e5, 4 + e5, 2 + e5, "pf"])
            stamp(7)
    elif not OPT["vfirst"]:
        perms8(VR, VT, waits=[6 + ex, 4 + ex, 2 + ex, ex])
        stamp(7)
    a.label("L_A6")
    fac = ["s_waitcnt lgkmcnt(0)", "v_max3_f32 v14, v104, v105, v106", "v_max3_f32 v15, v107, v108, v109",
           "v_max3_f32 v14, v14, v110, v111", "v_max_f32 v14, v14, v15", "v_sub_f32 v10, v12, v14", "v_exp_f32 v10, v10"]
    pvm = [mfma(OA + 4 * (e >> 2), VT + 4 * e, PY + 4 * (e & 3), None if (e & 3) == 0 else OA + 4 * (e >> 2)) for e in range(8)]
    if OPT["mls2"]:
        ml = [f"v_max_f32_dpp v188, v186, v186 quad_perm:[1,0,3,2] {DPPM}",
              f"v_max_f32_dpp v188, v188, v188 quad_perm:[2,3,0,1] {DPPM}",
              f"v_max_f32_dpp v188, v188, v188 row_half_mirror {DPPM}",
              "v_sub_f32 v186, v186, v188", "v_exp_f32 v186, v186", "v_mul_f32 v189, v186, v187",
              f"v_add_f32_dpp v189, v189, v189 quad_perm:[1,0,3,2] {DPPM}"]
        both = [fac[0], "s_nop 0"]
        for x, y in zip(fac[1:] + [None], ml):
            both += [y] + ([x] if x else [])
        if OPT["dma"]:
            both = both[2:]
            for e in range(8):
                a(f"s_waitcnt lgkmcnt({0 if OPT['stamps'] == 1 else (10 if e < 2 else 14 - 2 * e)})")
                a(pvm[e])
                if e < 2:
                    a(f"ds_read_b64_tr_b16 v[{VT + 4 * e + 24}:{VT + 4 * e + 25}], v{62 + e}")
                    a(f"ds_read_b64_tr_b16 v[{VT + 4 * e + 26}:{VT + 4 * e + 27}], v{62 + e} offset:4096")
                for ins in both[2 * e:2 * e + 2]:
                    a(ins)
        else:
            interleave(pvm, both, 2)
    else:
        interleave(pvm, fac, 1)
    for i in range(2):
        a(f"v_pk_mul_f32 v[{OA + 2 * i}:{OA + 2 * i + 1}], v[{OA + 2 * i}:{OA + 2 * i + 1}], v[10:11] op_sel_hi:[1,0]")
    if OPT["mls2"]:
        a(f"v_add_f32_dpp v189, v189, v189 quad_perm:[2,3,0,1] {DPPM}")
    a(f"ds_write_b128 v7, {vr(OA, 4)}")
    if OPT["mls2"]:
        a(f"v_add_f32_dpp v189, v189, v189 row_half_mirror {DPPM}")
    for i in range(2, 4):
        a(f"v_pk_mul_f32 v[{OA + 2 * i}:{OA + 2 * i + 1}], v[{OA + 2 * i}:{OA + 2 * i + 1}], v[10:11] op_sel_hi:[1,0]")
    a(f"ds_write_b128 v7, {vr(OA + 4, 4)} offset:256")
    if not OPT["mll"]:
        a(f"s_cmp_eq_u32 s{sWAVE}, 0")
        a("s_cbranch_scc1 L_A7")
    a.label("L_A8")
    a("s_waitcnt lgkmcnt(0)")
    stamp(5)
    a("s_barrier                      ; 2")
    a(f"s_cmp_ge_u32 s{sWAVE}, 4")
    a("s_cbranch_scc1 L_A9" if OPT["mll"] else "s_cbranch_scc1 L_FF")
    for t in range(4):
        a(f"ds_read2st64_b64 {vr(16 + 4 * t, 4)}, v122 offset0:{10 * t} offset1:{10 * t + 5}")
    a(f"s_cmp_lg_u32 s{sLOCAL}, 0")
    a("s_waitcnt lgkmcnt(0)")
    sum8_b64(16)
    a("v_cvt_pk_bf16_f32 v10, v16, v17")
    a("s_cbranch_scc1 L_A_pubg")
    a(f"global_store_dword v121, v10, {sp(sBA)}")
    a.label("L_A_pubd")
    if OPT["pfgl"] == 1:
        a(f"s_bitcmp1_b32 s{sWAVE}, 0")
        a(f"s_cselect_b64 s[0:1], {sp(sWU)}, {sp(sWG)}")
        prefetch(118, 0, True, 2 * 3584)
    stamp(6)
    if OPT["pfgl"] == 4:
        a("s_setprio 3")
    a("s_barrier                      ; 2b")
    if OPT["pfgl"] == 4:
        a(f"s_bitcmp1_b32 s{sWAVE}, 0")
        a(f"s_cselect_b64 s[0:1], {sp(sWU)}, {sp(sWG)}")
        prefetch(118, 0, True, 2 * 3584)

    a("s_branch L_FF0")
    a.label("L_A_pubg")
    a(f"global_store_dword v121, v10, {sp(sBA)} sc1")
    a("s_branch L_A_pubd")
    a.label("L_A9")
    a(f"s_cmp_lg_u32 s{sWAVE}, 5")
    a("s_cbranch_scc1 L_FF")
    a.label("L_A7")
    if OPT["mls2"]:
        set_exec(0x01010101)
        a(f"s_cmp_lg_u32 s{sLOCAL}, 0")
        a("s_cbranch_scc1 L_A_mlg")
        a(f"global_store_dwordx2 v185, v[188:189], {sp(sWS)}")
    else:
        a(f"ds_read_b128 v[16:19], v5 offset:{LL}")
        a(f"ds_read_b128 v[20:23], v5 offset:{LL + 16}")
        for i in range(8):
            a(f"v_sub_f32 v{104 + i}, v{104 + i}, v14")
        for i in range(8):
            a(f"v_exp_f32 v{104 + i}, v{104 + i}")
        a(f"s_lshl_b32 s{sT0}, s{sG}, 6")
        a(f"s_add_u32 s{sT0}, s{sT0}, s{sM}")
        a(f"s_lshl_b32 s{sT0}, s{sT0}, 3")
        base(sBB, sWS, sT0, H3ML)
        a("v_lshlrev_b32 v13, 2, v5              ; h*128")
        a("s_waitcnt lgkmcnt(0)")
        a("v_pk_mul_f32 v[16:17], v[16:17], v[104:105]")
        for i in range(1, 4):
            a(f"v_pk_fma_f32 v[16:17], v[{16 + 2 * i}:{17 + 2 * i}], v[{104 + 2 * i}:{105 + 2 * i}], v[16:17]")
        a("v_add_f32 v15, v16, v17")
        set_exec(0x1111)
        a(f"s_cmp_lg_u32 s{sLOCAL}, 0")
        a("s_cbranch_scc1 L_A_mlg")
        a(f"global_store_dwordx2 v13, v[14:15], {sp(sBB)}")
    a.label("L_A_mld")
    set_exec(-1)
    a("s_branch L_FF" if OPT["mll"] else "s_branch L_A8")
    a.label("L_A_mlg")
    if OPT["mls2"]:
        a(f"global_store_dwordx2 v185, v[188:189], {sp(sWS)} sc1")
    else:
        a(f"global_store_dwordx2 v13, v[14:15], {sp(sBB)} sc1")
    a("s_branch L_A_mld")


def sec_dump():
    a_regs(False)
    if OPT["probe"]:
        a.label("L_dump")
        a("s_mov_b64 exec, 1")
        a(f"s_lshl3_add_u32 s{sT0}, s2, s{sWAVE}")
        a(f"s_lshl_b32 s{sT0}, s{sT0}, 4")
        base(sBA, sWS, sT0, STAMP)
        a("v_mov_b32 v4, 0")
        a(f"global_store_dwordx4 v4, v[208:211], {sp(sBA)} sc1")
        if OPT["wb"]:
            a("s_waitcnt vmcnt(0)")
            a("buffer_wbl2 sc1")
            a("s_waitcnt vmcnt(0)")
        a("s_cmp_lg_u32 s2, 8")
        a("s_cbranch_scc1 L_exit")
        a(f"s_cmp_lg_u32 s{sWAVE}, 7")
        a("s_cbranch_scc1 L_exit")
        a("s_mov_b64 exec, -1")
        a("s_memrealtime s[60:61]")
        a("s_sleep 100")
        a("s_waitcnt vmcnt(0) lgkmcnt(0)")
        base(sBA, sWS, None, STAMP)
        a("v_lshlrev_b32 v4, 4, v0")
        for i in range(32):
            a(f"global_load_dwordx4 {vr(16 + 4 * i, 4)}, v4, {sp(sBA)} sc1")
            a("v_add_u32 v4, 0x400, v4")
        a("s_waitcnt vmcnt(0)")
        a("v_mov_b32 v8, v16")
        a("v_mov_b32 v9, 0")
        for i in range(1, 32):
            a(f"v_max_u32 v8, v8, v{16 + 4 * i}")
            a(f"v_min_u32 v16, v16, v{16 + 4 * i}")
            a(f"v_max_u32 v17, v17, v{17 + 4 * i}")
            a(f"v_add_u32 v18, v18, v{18 + 4 * i}")
            a(f"v_cmp_ne_u32 vcc, v19, v{19 + 4 * i}")
            a(f"v_addc_co_u32 v9, vcc, 0, v9, vcc")
        for op, r in (("v_max_u32", 8), ("v_min_u32", 16), ("v_max_u32", 17), ("v_add_u32", 18), ("v_add_u32", 9)):
            for n in (8, 4, 2, 1):
                a(f"{op}_dpp v{r}, v{r}, v{r} row_ror:{n} {DPPM}")
            cross_rows(op, r, 10)
        a("v_readfirstlane_b32 s50, v8")
        a("v_readfirstlane_b32 s51, v16")
        a("v_readfirstlane_b32 s53, v17")
        a("v_readfirstlane_b32 s52, v18")
        a("v_readfirstlane_b32 s56, v9")
        a("s_nop 3")
        p = OPT["probe"]
        if p == 1:
            a("s_sub_u32 s54, s50, s51")
        elif p == 2:
            a("s_sub_u32 s54, s60, s51")
        elif p == 3:
            a("s_mul_i32 s54, s52, 1")
        elif p == 4:
            a("s_lshr_b32 s54, s56, 1")
        elif p >= 100:
            a("s_sub_u32 s54, s53, s51")
        else:
            a("s_mov_b32 s54, 0")
        a("s_min_u32 s54, s54, 5000")
        a("s_lshl_b32 s54, s54, 2")
        a("s_add_u32 s54, s54, 3000")
        a.label("L_spin")
        a("s_memrealtime s[62:63]")
        a("s_waitcnt lgkmcnt(0)")
        a("s_sub_u32 s55, s62, s51")
        a("s_cmp_lt_u32 s55, s54")
        a("s_cbranch_scc1 L_spin")
    if OPT["stamps"]:
        a.label("L_dump")
        a("s_mov_b64 exec, -1")
        stamp(15)
        stamp(16)
        a(f"s_getreg_b32 s{sT0}, hwreg(HW_REG_XCC_ID)")
        a(f"v_writelane_b32 v126, s{sT0}, 14")
        a(f"s_lshl3_add_u32 s{sT0}, s2, s{sWAVE}")
        a(f"s_lshl_b32 s{sT0}, s{sT0}, 6")
        base(sBA, sWS, sT0, STAMP)
        a("v_lshlrev_b32 v4, 2, v0")
        set_exec(0xFFFF)
        a(f"global_store_dword v4, v126, {sp(sBA)}")
    a.label("L_exit")
    a("s_endpgm")


a(".p2align 12")
a.label("L_code0")
sec_wo()
sec_ln()
a(".p2align 8")
a(f".fill (4096-768-(.-L_code0))/4, 4, 0xbf810000")
a(".p2align 8")
a(f".type {NAME}_kernel,@function")
sec_entry()
sec_gm()
sec_gq()
sec_gb()
sec_down()
a(".p2align 12")
sec_att()
a(".p2align 12")
sec_ffn()
sec_dump()

def drop_unreachable(lines):
    out, dead = [], False
    for ln in lines:
        code = ln.split(";")[0].strip()
        if code.endswith(":") or code.startswith("."):
            dead = False
        if not dead:
            out.append(ln)
        if code.startswith(("s_branch", "s_endpgm", "s_setpc_b64")):
            dead = True
    return out


a.lines = drop_unreachable(a.lines)
body = a.finish()
hdr = open("cdna_kernels/" + NAME + ".s.ref").read().split("; Override launch geometry")[0]
out = hdr + f"""; One persistent launch of 256 workgroups (one per CU), written with a hand-made generator script.
; Workgroup w: group g = w & 7 (kv head), member m = w >> 3.
;   m even < 16 : q projection of 64 columns, later the output projection of 64 columns of group g's heads
;   m odd  <  8 : shift / scale columns + LayerNorm -> h, later the down projection of 16 output columns
;   m odd  8-15 : gate / shift / scale columns of the second half of the modulation; sentinel fill of the hand-off slots
;   m >= 16     : attention over 256 keys of (batch, kv head), later gate / up projection + SwiGLU of 16 FFN columns
; Hand-offs go through d_ws.  The first ones carry a tag derived from an epoch word (advanced once per launch);
; the later ones are validated word by word against a sentinel whose fill is known to have landed.
; L2-local copies (plain stores) are trusted only when the XCC ids of writer and reader were seen to be equal;
; otherwise the written-through (sc1) path is taken, so any placement gives the same result.
; Loads into v127 only bring lines into L2 for a neighbour; every polling loop is bounded.
; @launch grid=(256,1,1) block=(512,1,1) lds={OPT['lds']}
.amdgcn_target "amdgcn-amd-amdhsa--gfx950"
.text
.globl {NAME}_kernel
{body}.section .rodata,"a"
.p2align 6
.amdhsa_kernel {NAME}_kernel
  .amdhsa_next_free_vgpr {OPT['vgpr']}
  .amdhsa_next_free_sgpr 102
  .amdhsa_accum_offset {OPT['vgpr']}
  .amdhsa_group_segment_fixed_size 0
  .amdhsa_kernarg_size 112
  .amdhsa_user_sgpr_count 2
  .amdhsa_user_sgpr_kernarg_segment_ptr 1
  .amdhsa_system_sgpr_workgroup_id_x 1
  .amdhsa_float_denorm_mode_32 3
.end_amdhsa_kernel
"""
open(sys.argv[1], "w").write(out)
```
